```python
import torch

def _softmax(x, axis=-1):
    return torch.softmax(x, dim=axis)
def _gelu(x):
    return torch.nn.functional.gelu(x, approximate="tanh")
def _silu(x):
    return torch.nn.functional.silu(x)
def _sigmoid(x):
    return torch.sigmoid(x)
def _layernorm(x, axis=-1, eps=1e-5):
    m = x.mean(dim=axis, keepdim=True)
    v = x.var(dim=axis, keepdim=True, unbiased=False)
    return (x - m) / torch.sqrt(v + eps)
def _scatter_add(tgt, idx, src, axis=0):
    return tgt.clone().index_add_(axis, idx, src)
def _segment_sum(src, seg, n):
    out = torch.zeros((n,) + src.shape[1:], dtype=src.dtype)
    return out.index_add_(0, seg, src)
def _pad(x, pw):
    flat = tuple(v for pair in reversed(pw) for v in pair)
    return torch.nn.functional.pad(x, flat)

kernel_name = 'parallel_sum__mha_block__mixer_s_mlp__prompt'

def setup_inputs():

    _w = (lambda a: (lambda t: t.to(torch.bfloat16) if t.is_floating_point() else t)(torch.as_tensor(a)))
    def _A_setup():
        B, S, D, H = 1, 2048, 448, 16
        return {
            "x": _w((lambda *s: torch.randn(*s, dtype=torch.bfloat16) * 0.05)(B, S, D)),
            "wqkv": _w((lambda *s: torch.randn(*s, dtype=torch.bfloat16) * 0.1)(D, 3 * D)),
            "wo": _w((lambda *s: torch.randn(*s, dtype=torch.bfloat16) * 0.05)(D, D)),
        }
    _A_in = _A_setup()

    def _B_setup():
        B, S, D, F = 1, 2048, 448, 1792
        return {
            "x":  _w((lambda *s: torch.randn(*s, dtype=torch.bfloat16) * 0.05)(B, S, D)),
            "w1": _w((lambda *s: torch.randn(*s, dtype=torch.bfloat16) * 1.6)(D, D) * (D ** -0.5)),
            "w2": _w((lambda *s: torch.randn(*s, dtype=torch.bfloat16) * 1.6)(D, D) * (D ** -0.5)),
            "w3": _w((lambda *s: torch.randn(*s, dtype=torch.bfloat16) * 1.6)(D, F) * (D ** -0.5)),
            "w4": _w((lambda *s: torch.randn(*s, dtype=torch.bfloat16) * 1.6)(F, D) * (F ** -0.5)),
        }
    _B_in = _B_setup()

    return {
        "A_x": _A_in["x"],
        "A_wqkv": _A_in["wqkv"],
        "A_wo": _A_in["wo"],
        "B_x": _B_in["x"],
        "B_w1": _B_in["w1"],
        "B_w2": _B_in["w2"],
        "B_w3": _B_in["w3"],
        "B_w4": _B_in["w4"],
    }

def reference(A_x, A_wqkv, A_wo, B_x, B_w1, B_w2, B_w3, B_w4):
    def _A_ref(x, wqkv, wo):
        B, S, D = x.shape
        H = 16
        Dh = D // H
        qkv = (lambda x, *d: x.permute(*d))((x @ wqkv).reshape(B, S, 3, H, Dh), 2, 0, 3, 1, 4)
        q, k, v = qkv[0], qkv[1], qkv[2]
        scores = torch.einsum("bhqd,bhkd->bhqk", q, k) * (Dh ** -0.5)
        p = _softmax(scores, axis=-1)
        o = torch.einsum("bhqk,bhkd->bhqd", p, v)
        return (lambda x, *d: x.permute(*d))(o, 0, 2, 1, 3).reshape(B, S, D) @ wo

    def _B_ref(x, w1, w2, w3, w4):
        B, S, D = x.shape
        h = _gelu(_layernorm(x, axis=-1) @ w1)
        c = D // 4
        g0 = _pad(h[:, :, 0*c:1*c], ((0, 0), (1, 0), (0, 0)))[:, :S, :]
        g1 = _pad(h[:, :, 1*c:2*c], ((0, 0), (0, 1), (0, 0)))[:, 1:, :]
        g2 = _pad(h[:, :, 2*c:3*c], ((0, 0), (2, 0), (0, 0)))[:, :S, :]
        g3 = _pad(h[:, :, 3*c:   ], ((0, 0), (0, 2), (0, 0)))[:, 2:, :]
        hs = torch.concatenate([g0, g1, g2, g3], axis=-1) @ w2
        x1 = x + hs
        h2 = _gelu(_layernorm(x1, axis=-1) @ w3) @ w4
        return x1 + h2

    x = A_x
    xn = _layernorm(x, axis=-1)
    return x + _A_ref(xn, A_wqkv, A_wo) + _B_ref(xn, B_w1, B_w2, B_w3, B_w4)
```

```python
import re

TRANS = ("v_exp_f32", "v_log_f32", "v_rcp_f32", "v_rsq_f32", "v_sqrt_f32", "v_sin_f32", "v_cos_f32",
         "v_exp_f16", "v_rcp_f16", "v_rcp_iflag_f32")
REG = re.compile(r"^(-|\|)?(?:abs\()?([vas])(?:(\d+)|\[(\d+):(\d+)\])\)?\|?$")

def regs_of(tok):
    tok = tok.strip()
    if tok in ("vcc",): return {("s", "vcc_lo"), ("s", "vcc_hi")}
    if tok in ("vcc_lo", "vcc_hi"): return {("s", tok)}
    if tok == "exec": return {("s", "exec_lo"), ("s", "exec_hi")}
    if tok in ("exec_lo", "exec_hi"): return {("s", tok)}
    if tok == "m0": return {("s", "m0")}
    m = REG.match(tok)
    if not m: return set()
    k = m.group(2)
    if m.group(3) is not None: return {(k, int(m.group(3)))}
    return {(k, i) for i in range(int(m.group(4)), int(m.group(5)) + 1)}

class Ins:
    __slots__ = ("text", "op", "ops", "w", "r", "kind", "passes", "A", "B", "C", "label", "target", "lds", "nstates", "sdata")
    def __init__(self, text):
        self.text = text
        t = text.split(";")[0].strip()
        self.label = None; self.target = None; self.kind = "other"; self.passes = 0
        self.w = set(); self.r = set(); self.A = self.B = self.C = set(); self.lds = False; self.sdata = set()
        self.nstates = 1
        if t.endswith(":"):
            self.label = t[:-1]; self.op = ""; self.ops = []; self.kind = "label"; self.nstates = 0; return
        if t.startswith(".") or not t:
            self.op = t; self.ops = []; self.kind = "dir"; self.nstates = 0; return
        parts = t.split(None, 1)
        op = self.op = parts[0]
        rest = parts[1] if len(parts) > 1 else ""
        ops = []; cur = ""; depth = 0
        for ch in rest:
            if ch in "[(": depth += 1
            if ch in "])": depth -= 1
            if ch == "," and depth == 0: ops.append(cur.strip()); cur = ""
            else: cur += ch
        if cur.strip(): ops.append(cur.strip())
        mods = ""
        if ops:
            sp = ops[-1].split(None, 1)
            if len(sp) > 1: ops[-1] = sp[0]; mods = sp[1]
        self.ops = ops
        R = [regs_of(o) for o in ops]
        U = lambda xs: set().union(*xs) if xs else set()
        if op == "s_nop":
            self.kind = "nop"; self.nstates = int(ops[0], 0) + 1
        elif op.startswith("v_mfma"):
            self.kind = "mfma"; self.w = R[0]; self.A, self.B, self.C = R[1], R[2], R[3]; self.r = R[1] | R[2] | R[3]
            self.passes = 8 if "32x32x16" in op else 4 if "16x16x32" in op else None
            assert self.passes, op
        elif op.startswith("v_"):
            self.kind = "valu"
            base = op.replace("_e32", "").replace("_e64", "").replace("_sdwa", "").replace("_dpp", "")
            if base.startswith("v_cmpx"):
                self.w = R[0] | regs_of("exec"); self.r = U(R[1:])
            elif base.startswith("v_permlane") and "swap" in base:
                self.w = R[0] | R[1]; self.r = R[0] | R[1]
            elif base in ("v_add_co_u32", "v_sub_co_u32", "v_addc_co_u32", "v_subb_co_u32", "v_div_scale_f32", "v_mad_u64_u32"):
                self.w = R[0] | R[1]; self.r = U(R[2:])
            elif base in ("v_fmac_f32", "v_dot2c_f32_bf16", "v_pk_fmac_f16", "v_writelane_b32") or "UNUSED_PRESERVE" in mods or "row_" in mods or "quad_perm" in mods:
                self.w = R[0]; self.r = U(R)
            elif base == "v_nop":
                pass
            else:
                self.w = R[0]; self.r = U(R[1:])
            if base == "v_cndmask_b32" and len(ops) == 3: self.r |= regs_of("vcc")
            if base == "v_div_fmas_f32": self.r |= regs_of("vcc")
        elif op.startswith("buffer_") or op.startswith("global_") or op.startswith("flat_"):
            self.kind = "vmem"
            self.lds = bool(re.search(r"\blds\b", mods)) or "_lds_" in op
            if op.startswith("buffer_inv") or op.startswith("buffer_wbl2"):
                pass
            elif "load" in op and not self.lds:
                self.w = R[0]; self.r = U(R[1:])
            elif "load" in op:
                self.r = U(R) | regs_of("m0")
            elif "atomic" in op:
                self.r = U(R)
                if re.search(r"\bsc0\b", mods): self.w = R[0]
            else:
                self.r = U(R)
                self.sdata = R[0] if op.startswith("buffer_") else R[1]
                if not re.search(r"x[34]$", op): self.sdata = set()
        elif op.startswith("ds_"):
            self.kind = "ds"
            if op.startswith("ds_read") or op.startswith("ds_bpermute") or op.startswith("ds_permute") or op.startswith("ds_swizzle") or "_rtn" in op:
                self.w = R[0]; self.r = U(R[1:])
            else:
                self.r = U(R)
        elif op.startswith("s_"):
            self.kind = "salu"
            if op in ("s_branch",) or op.startswith("s_cbranch"):
                self.kind = "branch"; self.target = ops[0]
            elif op.startswith("s_cmp") or op.startswith("s_bitcmp") or op in ("s_waitcnt", "s_barrier", "s_endpgm", "s_setprio", "s_sleep", "s_sethalt", "s_setreg_b32", "s_setreg_imm32_b32", "s_setpc_b64"):
                self.r = U(R)
            elif op.startswith("s_load") or op.startswith("s_buffer_load") or op in ("s_memtime", "s_memrealtime"):
                self.kind = "smem"; self.w = R[0]; self.r = U(R[1:])
            elif "saveexec" in op:
                self.w = R[0] | regs_of("exec"); self.r = U(R[1:]) | regs_of("exec")
            else:
                self.w = R[0]; self.r = U(R[1:])
        else:
            raise ValueError("unknown instruction: " + text)

def vset(s): return {x for x in s if x[0] in "va"}
def sset(s): return {x for x in s if x[0] == "s"}

def need(p, c):
    n = 0
    cop = c.op
    if p.kind == "valu":
        pw_v = vset(p.w); pw_s = sset(p.w)
        if c.kind == "mfma" and pw_v & c.r: n = max(n, 2)
        if c.kind == "mfma" and ("s", "exec_lo") in p.w: n = max(n, 4)
        if c.kind == "valu":
            if cop.startswith("v_permlane") and pw_v & c.r: n = max(n, 2)
            if cop.startswith("v_permlane") and ("s", "exec_lo") in p.w: n = max(n, 4)
            if (cop.startswith("v_readfirstlane") or cop.startswith("v_readlane")) and pw_v & c.r: n = max(n, 1)
            if (cop.startswith("v_readfirstlane") or cop.startswith("v_readlane") or cop.startswith("v_writelane")) and ("s", "exec_lo") in p.w: n = max(n, 4)
            if (cop.startswith("v_readlane") or cop.startswith("v_writelane")) and pw_s & c.r: n = max(n, 4)
            if ("dpp" in cop or "row_" in c.text or "quad_perm" in c.text):
                if pw_v & c.r: n = max(n, 2)
                if ("s", "exec_lo") in p.w: n = max(n, 5)
            if pw_s & c.r: n = max(n, 4 if cop.startswith("v_div_fmas") else 2)
            if p.op.replace("_e32", "").replace("_e64", "") in TRANS and pw_v & (c.r | c.w) : n = max(n, 1)
            if "sdwa" in p.op and pw_v & (c.r | c.w): n = max(n, 1)
        if p.op.startswith("v_dot2"):
            same = c.op == p.op
            if same and c.kind == "valu":
                srcab = regs_of(c.ops[1]) | regs_of(c.ops[2])
                if pw_v & srcab: n = max(n, 3)
            elif pw_v & (c.r | c.w): n = max(n, 3)
        if c.kind == "vmem" and pw_s & c.r: n = max(n, 5)
        if c.kind in ("salu", "branch", "smem") and pw_s & (c.r | ({("s","vcc_lo")} if "vcc" in cop else set()) | ({("s","exec_lo")} if "exec" in cop else set())): n = max(n, 2)
    if p.kind == "salu":
        if ("s", "m0") in p.w and ((c.kind == "vmem" and c.lds) or "addtid" in cop or cop.startswith("s_movrel") or cop == "s_sendmsg"): n = max(n, 1)
    if p.kind == "vmem" and p.sdata:
        if c.kind in ("valu", "mfma") and p.sdata & c.w: n = max(n, 2)
        elif p.sdata & c.w: n = max(n, 1)
    if p.kind == "mfma":
        P = p.passes
        D = p.w
        t_ab = {4: 8, 8: 12}[P]; t_c = {4: 6, 8: 10}[P]; t_war = {4: 3, 8: 7}[P]
        if c.kind == "mfma":
            if D & (c.A | c.B): n = max(n, t_ab)
            if D & c.C and not (c.C == D and c.passes == P): n = max(n, t_c)
            if D & c.w and not (D & c.C) : n = max(n, t_c)
        elif c.kind in ("valu", "vmem", "ds"):
            if D & (c.r | c.w): n = max(n, t_ab)
            if c.kind == "valu" and p.C & c.w: n = max(n, t_war)
            if c.kind in ("vmem", "ds") and p.C & c.w: n = max(n, t_war)
    return n

MAXD = 13

def pad_hazards(lines, verbose=False):
    ins = [Ins(l) for l in lines]
    added = 0
    while True:
        labels = {x.label: i for i, x in enumerate(ins) if x.label}
        srcs = {}
        for i, x in enumerate(ins):
            if x.target and x.target in labels: srcs.setdefault(labels[x.target], []).append(i)
        changed = False
        out = []; pend = []; bump = {}
        for i, c in enumerate(ins):
            worst = 0
            if c.kind not in ("label", "dir", "nop"):
                stack = [(i - 1, 0)]; seen = {}
                while stack:
                    j, d = stack.pop()
                    while j >= 0 and d < MAXD:
                        if seen.get(j, 99) <= d: break
                        seen[j] = d
                        p = ins[j]
                        if p.kind == "label":
                            for s in srcs.get(j, []): stack.append((s, d))
                            k = j - 1
                            while k >= 0 and ins[k].kind in ("dir",): k -= 1
                            if k >= 0 and ins[k].op in ("s_branch", "s_endpgm", "s_setpc_b64"): break
                            j -= 1; continue
                        if p.kind != "dir":
                            nd = need(p, c)
                            if nd > d: worst = max(worst, nd - d)
                            d += p.nstates + bump.get(j, 0)
                        j -= 1
            if worst:
                if verbose: print("pad", worst, "before", c.text)
                pend.append((i, worst)); added += 1; changed = True
                bump[i] = worst
            out.append(c)
        for i, w in reversed(pend):
            out.insert(i, Ins(f"    s_nop {w-1}"))
        ins = out
        if not changed: break
    return [x.text for x in ins], added

class A:
    def __init__(self):
        self.l = []; self.uid = 0
    def __call__(self, s):
        for line in s.strip("\n").split("\n"):
            line = line.strip()
            if not line: continue
            self.l.append(line if line.endswith(":") else "    " + line)
    def label(self, n): self.l.append(n + ":")
    def newlabel(self, p="L"):
        self.uid += 1; return f"{p}_{self.uid}"
    def text(self, verbose=False):
        lines, n = pad_hazards(self.l, verbose)
        return "\n".join(lines) + "\n"

def kernel_head(name):
    return f".text\n.globl {name}\n.p2align 8\n.type {name},@function\n{name}:\n"

def kernel_desc(name, vgpr=256, accum=None, sgpr=102, ka=88):
    if accum is None: accum = min(256, (vgpr + 3) // 4 * 4)
    return f""".section .rodata,"a"
.p2align 6
.amdhsa_kernel {name}
  .amdhsa_next_free_vgpr {vgpr}
  .amdhsa_next_free_sgpr {sgpr}
  .amdhsa_accum_offset {accum}
  .amdhsa_group_segment_fixed_size 0
  .amdhsa_kernarg_size {ka}
  .amdhsa_user_sgpr_count 2
  .amdhsa_user_sgpr_kernarg_segment_ptr 1
  .amdhsa_system_sgpr_workgroup_id_x 1
.end_amdhsa_kernel
"""
def v(b, n=1): return f"v[{b}:{b+n-1}]" if n > 1 else f"v{b}"
def s(b, n=1): return f"s[{b}:{b+n-1}]" if n > 1 else f"s{b}"
def a_(b, n=1): return f"a[{b}:{b+n-1}]" if n > 1 else f"a{b}"
```

```python
from common import *
import small

O_, Q_, S_, E_, P_, KV = 16, 80, 112, 144, 152, 160
sH, sQB, sW, sM, sKV, sN = 44, 45, 46, 47, 50, 51
WD = 36

def unit(a, n, q, extra):
    Sc, Sn = S_ + 16*(q & 1), S_ + 16*((q+1) & 1)
    nn, nq = (n, q+1) if q < 3 else ((n+1) & 3, 0)
    pn, pq = (n, q-1) if q > 0 else ((n-1) & 3, 3)
    K, Vc, Vp = KV + 16*nn, KV + 16*n + 8, KV + 16*pn + 8
    e = lambda i: a(f"v_exp_f32 v{E_+(i&7)}, v{Sc+i}")
    c = lambda k: a(f"v_cvt_pk_bf16_f32 v{P_+k}, v{E_+((2*k)&7)}, v{E_+((2*k+1)&7)}")
    for x in extra.get(0, []): a(x)
    a(f"{MF} {v(Sn,16)}, {v(K,4)}, {v(Q_+8*nq,4)}, 0")
    e(0); c(6); e(1); c(7); e(2); e(3)
    a(f"{MF} {v(O_+16*pq,16)}, {v(Vp+4,4)}, {v(P_+4,4)}, {v(O_+16*pq,16)}")
    for x in extra.get(1, []): a(x)
    e(4); c(0); e(5); c(1); e(6); e(7)
    a(f"{MF} {v(Sn,16)}, {v(K+4,4)}, {v(Q_+8*nq+4,4)}, {v(Sn,16)}")
    for x in extra.get(2, []): a(x)
    e(8); c(2); e(9); c(3); e(10); e(11)
    a(f"{MF} {v(O_+16*q,16)}, {v(Vc,4)}, {v(P_,4)}, {v(O_+16*q,16)}")
    e(12); c(4); e(13); c(5); e(14); e(15)

def kvload(slot, f):
    return f"buffer_load_dwordx4 {v(KV+16*slot+4*f,4)}, v0, {s(WD,4)}, s{sKV} offen offset:{f*1024}"

def mainpass(a, L):
    a(f"""s_lshl_b32 s{sKV}, s{sH}, 6
          s_lshl_b32 s3, s{sW}, 4
          s_add_u32 s{sKV}, s{sKV}, s3
          s_lshl_b32 s{sKV}, s{sKV}, 12
          s_add_u32 s{sKV}, s{sKV}, {KVF}""")
    for n in range(3):
        for f in range(4): a(kvload(n, f))
        a(f"s_add_u32 s{sKV}, s{sKV}, 4096")
    for i in range(64): a(f"v_mov_b32 v{O_+i}, 0")
    for i in range(8): a(f"v_mov_b32 v{E_+i}, 0\nv_mov_b32 v{P_+i}, 0")
    for i in range(4): a(f"v_mov_b32 v{KV+48+12+i}, 0")
    a(f"s_mov_b32 s{sN}, 4\ns_waitcnt vmcnt(8)")
    a(f"{MF} {v(S_,16)}, {v(KV,4)}, {v(Q_,4)}, 0")
    a(f"{MF} {v(S_,16)}, {v(KV+4,4)}, {v(Q_+4,4)}, {v(S_,16)}")
    a(".p2align 3")
    a.label(L)
    for n in range(4):
        ld = (n + 3) & 3
        unit(a, n, 0, {2: [kvload(ld, 0)]})
        unit(a, n, 1, {1: [kvload(ld, 1)]})
        unit(a, n, 2, {1: [kvload(ld, 2)]})
        ex = {0: ["s_waitcnt vmcnt(7)"], 1: [kvload(ld, 3)], 2: [f"s_add_u32 s{sKV}, s{sKV}, 4096"]}
        if n == 3: ex[2] += [f"s_sub_u32 s{sN}, s{sN}, 1", f"s_cmp_lg_u32 s{sN}, 0"]
        unit(a, n, 3, ex)
    a(f"s_cbranch_scc1 {L}")
    a(f"v_cvt_pk_bf16_f32 v{P_+6}, v{E_+4}, v{E_+5}\nv_cvt_pk_bf16_f32 v{P_+7}, v{E_+6}, v{E_+7}")
    a(f"{MF} {v(O_+48,16)}, {v(KV+48+12,4)}, {v(P_+4,4)}, {v(O_+48,16)}")

def att():
    a = A()
    a("s_cmp_ge_u32 s2, 256\ns_cbranch_scc1 AT_end")
    load_args(a)
    a(f"""v_and_b32 v1, 63, v0
          v_lshrrev_b32 v8, 6, v0
          s_and_b32 s26, s2, 7
          s_lshr_b32 s27, s2, 3
          v_readfirstlane_b32 s{sW}, v8
          s_lshl_b32 s{sH}, s26, 1
          s_and_b32 s3, s27, 1
          s_add_u32 s{sH}, s{sH}, s3
          s_lshr_b32 s{sQB}, s27, 1
          s_lshl_b32 s{sM}, s{sW}, 14
          v_lshlrev_b32 v0, 4, v1
          s_lshl_b32 s3, s{sH}, 6
          s_lshl_b32 s26, s{sQB}, 2
          s_add_u32 s3, s3, s26
          s_lshl_b32 s3, s3, 11
          s_add_u32 s3, s3, {QF}
          s_add_u32 s26, s3, 4096
          s_waitcnt lgkmcnt(0)""")
    srd(a, WD, 24, WS_END)
    for i in range(8): a(f"buffer_load_dwordx4 {v(Q_+4*i,4)}, v0, {s(WD,4)}, s{3 if i < 4 else 26} offen offset:{(i&3)*1024}")
    mainpass(a, "AT_loop")
    small.reduce4(a)
    a(f"""v_mov_b32 v10, v{O_+12}
          v_mov_b32 v11, v{O_+12}
          v_permlane32_swap_b32 v11, v10
          v_rcp_f32 v10, v10
          v_lshrrev_b32 v8, 5, v1
          v_add_u32 v8, -1, v8""")
    for i in range(8): a(f"v_pk_mul_f32 {v(O_+2*i,2)}, {v(O_+2*i,2)}, v[10:11] op_sel_hi:[1,0]")
    for i in range(8): a(f"v_cvt_pk_bf16_f32 v{P_+i}, v{O_+2*i}, v{O_+2*i+1}")
    a(f"""v_and_b32 v{P_+6}, v8, v{P_+6}
          v_and_b32 v{P_+7}, v8, v{P_+7}
          s_lshl_b32 s3, s{sQB}, 2
          s_add_u32 s3, s3, s{sW}
          s_lshl_b32 s3, s3, 4
          s_add_u32 s3, s3, s{sH}
          s_lshl_b32 s3, s3, 11
          s_add_u32 s3, s3, {OF}
          buffer_store_dwordx4 {v(P_,4)}, v0, {s(WD,4)}, s3 offen
          buffer_store_dwordx4 {v(P_+4,4)}, v0, {s(WD,4)}, s3 offen offset:1024""")
    a.label("AT_end")
    a("s_endpgm")
    return a
```

```python
from common import *

ACC, CS, WF, XR, TMP = 16, 80, 96, 136, 248

def kloop(a, ones, vA, offs, waits, perm):
    def reads(s):
        c = s >> 2
        for w in waits.get(c, []) if (s & 3) == 0 else []: a(w)
        for t in range(5):
            for e in range(2):
                row = 16 * (s & 3) + (8 * e if perm else 4 * e)
                a(f"ds_read_b64_tr_b16 {v(WF + 20*(s&1) + 4*t + 2*e, 2)}, v{vA+t} offset:{offs(c) + row*256}")
    reads(0)
    for s in range(28):
        if s + 1 < 28:
            reads(s + 1)
            a("s_waitcnt lgkmcnt(10)")
        else:
            a("s_waitcnt lgkmcnt(0)")
        for t in range(4):
            c = "0" if s == 0 else v(ACC + 16*t, 16)
            a(f"{MF} {v(ACC+16*t,16)}, {v(WF+20*(s&1)+4*t,4)}, {v(XR+4*s,4)}, {c}")
        c = "0" if s == 0 else v(CS, 16)
        a(f"{MF} {v(CS,16)}, {v(ones,4)}, {v(WF+20*(s&1)+16,4)}, {c}")

def tr_addrs(a, vA, sTS, sW, base, perm):
    a(f"""v_lshrrev_b32 v8, 5, v1          ; h
          v_bfe_u32 v9, v1, 2, 2           ; r
          v_bfe_u32 v10, v1, 4, 1          ; fg
          v_and_b32 v11, 3, v1             ; c
          v_lshl_add_u32 v10, v10, 2, v11  ; 4fg+c
          v_lshl_add_u32 v8, v8, {2 if perm else 3}, v9    ; row = (4h|8h)+r
          v_lshlrev_b32 v8, 8, v8
          v_add_u32 v8, {base}, v8
          v_lshlrev_b32 v9, 2, v9          ; 4r""")
    for t in range(5):
        a(f"s_mul_i32 s26, s{sTS}, {t}" if t < 4 else f"s_mul_i32 s26, s{sTS}, s{sW}")
        a(f"""v_add_u32 v11, s26, v10          ; piece
              v_lshrrev_b32 v12, 1, v11
              v_add_u32 v12, v12, v9
              v_and_b32 v12, 15, v12
              v_and_b32 v11, 1, v11
              v_lshlrev_b32 v11, 3, v11
              v_lshl_add_u32 v11, v12, 4, v11
              v_add_u32 v{vA+t}, v8, v11""")

def mean_fix(a, xch, vMU0, vMU1, sW):
    T = WF
    a(f"""v_cvt_pk_bf16_f32 v{T}, v{CS}, v{CS}
          v_and_b32 v{T+1}, 0xffff0000, v{T}
          v_sub_f32 v{T+1}, v{CS}, v{T+1}
          v_cvt_pk_bf16_f32 v{T}, v{CS}, v{T+1}
          v_and_b32 v8, 31, v1
          v_lshlrev_b32 v8, 2, v8
          s_lshl_b32 s26, s{sW}, 7
          v_add_u32 v9, s26, v8
          ds_write_b32 v9, v{T} offset:{xch}
          s_waitcnt lgkmcnt(0)
          s_barrier""")
    for t in range(4): a(f"ds_read_b32 v{T+4*t}, v8 offset:{xch + 128*t}")
    a(f"v_mov_b32 v{T+16}, v{vMU0}\nv_mov_b32 v{T+17}, v{vMU1}\nv_mov_b32 v{T+18}, 0\nv_mov_b32 v{T+19}, 0")
    for t in range(4): a(f"v_mov_b32 v{T+4*t+2}, 0\nv_mov_b32 v{T+4*t+3}, 0")
    a("s_waitcnt lgkmcnt(0)")
    for t in range(4): a(f"v_and_b32 v{T+4*t+1}, 0xffff, v{T+4*t}")
    for t in range(4): a(f"{MF} {v(ACC+16*t,16)}, {v(T+4*t,4)}, {v(T+16,4)}, {v(ACC+16*t,16)}")

def mu_frag(a, vmu, vlo_en, d0, d1):
    a(f"""v_cvt_pk_bf16_f32 v{d0}, -v{vmu}, -v{vmu}
          v_and_b32 v8, 0xffff0000, v{d0}
          v_sub_f32 v8, -v{vmu}, v8
          v_cvt_pk_bf16_f32 v{d1}, v8, 0
          v_and_b32 v{d1}, s{vlo_en}, v{d1}
          v_lshrrev_b32 v8, 5, v1
          v_add_u32 v8, -1, v8             ; h==0 -> -1, h==1 -> 0
          v_and_b32 v{d0}, v8, v{d0}
          v_and_b32 v{d1}, v8, v{d1}""")

def p1():
    a = A()
    sRB, sCB, sW, sTY, sSUB, sROW, sTS, sWO, sM, sRB4, sRB52, sLO = 44, 45, 46, 47, 48, 49, 50, 51, 52, 53, 54, 55
    XS, WS_, WD = 28, 32, 36
    WB = 0x1C000
    a("s_cmp_ge_u32 s2, 256\ns_cbranch_scc1 P1_end")
    load_args(a)
    a(f"""v_and_b32 v1, 63, v0
          v_lshrrev_b32 v8, 6, v0
          s_and_b32 s26, s2, 7
          s_lshr_b32 s27, s2, 3
          v_readfirstlane_b32 s{sW}, v8
          s_lshr_b32 s{sRB}, s26, 1
          s_lshl_b32 s{sRB}, s{sRB}, 2
          s_and_b32 s3, s27, 3
          s_add_u32 s{sRB}, s{sRB}, s3
          s_and_b32 s{sCB}, s26, 1
          s_lshl_b32 s{sCB}, s{sCB}, 3
          s_lshr_b32 s3, s27, 2
          s_add_u32 s{sCB}, s{sCB}, s3
          s_lshr_b32 s{sTY}, s{sCB}, 2
          s_and_b32 s{sSUB}, s{sCB}, 3
          s_lshr_b32 s3, s{sSUB}, 1
          s_add_u32 s3, s3, 1
          s_sub_u32 s26, 0, s3
          s_bitcmp1_b32 s{sSUB}, 0
          s_cselect_b32 s3, s3, s26              ; shift
          s_movk_i32 s{sROW}, 2688
          s_cmp_eq_u32 s{sTY}, 3
          s_cselect_b32 s3, s3, 0
          s_cselect_b32 s{sROW}, 896, s{sROW}
          s_cselect_b32 s{sTS}, 8, 7
          s_cselect_b32 s{sLO}, -1, 0
          s_cselect_b32 s27, s{sSUB}, s{sCB}
          s_mul_i32 s{sWO}, s27, 224
          s_lshl_b32 s26, s{sRB}, 7
          s_add_u32 s3, s3, s26
          s_lshl_b32 s26, s{sW}, 5
          s_add_u32 s3, s3, s26
          v_lshrrev_b32 v8, 2, v1
          v_add_u32 v8, s3, v8
          s_movk_i32 s26, 896
          v_mul_i32_i24 v8, s26, v8
          v_bfe_u32 v9, v1, 4, 2
          v_and_b32 v10, 3, v1
          v_xor_b32 v9, v9, v10
          v_lshl_add_u32 v14, v9, 4, v8
          v_add_u32 v15, {16*896}, v14           ; rows 16..31
          s_mul_i32 s{sM}, s{sW}, 28672
          s_waitcnt lgkmcnt(0)""")
    srd(a, XS, 4, 2048 * 896)
    for p in range(14):
        for g in range(2):
            a(f"s_add_u32 m0, s{sM}, {p*2048 + g*1024 - p*64}")
            a(f"buffer_load_dwordx4 v{14+g}, {s(XS,4)}, 0 offen offset:{p*64} lds")
    a(f"""s_cmp_eq_u32 s{sTY}, 3
          s_cselect_b32 s{WS_}, s12, s6
          s_cselect_b32 s{WS_+1}, s13, s7
          s_mul_i32 s{WS_+2}, s{sROW}, 448
          s_mov_b32 s{WS_+3}, 0x20000
          v_lshrrev_b32 v8, 4, v1
          v_lshlrev_b32 v9, 2, v8
          v_sub_u32 v9, v1, v9
          v_and_b32 v9, 15, v9
          v_mul_u32_u24 v8, s{sROW}, v8
          v_lshl_add_u32 v7, v9, 4, v8
          v_mov_b32 v8, {OOB}
          v_cmp_gt_u32 vcc, 14, v9
          v_cndmask_b32 v7, v8, v7, vcc
          s_lshl_b32 s26, s{sW}, 4
          s_mul_i32 s26, s26, s{sROW}
          s_add_u32 s{sWO}, s{sWO}, s26
          s_lshl_b32 s{sRB4}, s{sROW}, 2
          s_mul_i32 s{sRB52}, s{sROW}, 52
          s_lshl_b32 s27, s{sW}, 12""")
    def wchunk(c):
        base = WB + c * 16384 if c < 3 else (c - 3) * 16384
        for u in range(4):
            a(f"s_add_u32 m0, s27, {base + u*1024}")
            a(f"buffer_load_dwordx4 v7, {s(WS_,4)}, s{sWO} offen lds")
            a(f"s_add_u32 s{sWO}, s{sWO}, s{sRB4 if u < 3 else sRB52}")
    for c in range(3): wchunk(c)
    srd(a, WD, 24, WS_END)
    tr_addrs(a, 2, sTS, sW, WB, perm=False)
    a(f"""v_and_b32 v8, 31, v1
          v_lshrrev_b32 v9, 5, v1
          v_bfe_u32 v10, v1, 2, 2
          v_xor_b32 v11, v9, v10
          v_lshlrev_b32 v8, 6, v8
          v_add_u32 v8, s{sM}, v8
          v_lshl_add_u32 v12, v11, 4, v8
          v_xor_b32 v13, 32, v12
          v_lshl_add_u32 v8, v10, 4, v8
          v_lshl_add_u32 v8, v9, 3, v8
          s_min_u32 s26, s{sCB}, 6
          s_lshl_b32 s26, s26, 12
          v_add_u32 v8, s26, v8
          v_xor_b32 v9, 16, v8
          v_xor_b32 v10, 32, v8
          v_xor_b32 v11, 48, v8
          s_waitcnt vmcnt(12)""")
    for s_ in range(28):
        a(f"ds_read_b128 {v(XR+4*s_,4)}, v{12+(s_&1)} offset:{(s_>>1)*2048}")
        if s_ == 13: a("s_waitcnt lgkmcnt(6)")
    a("s_waitcnt lgkmcnt(6)")
    XD = CS
    XDr = [TMP, TMP + 4, WF + 32, WF + 36]
    for f in range(4):
        for e in range(2):
            a(f"ds_read_b64 {v(CS + 4*f + 2*e, 2)}, v{8 + 2*(f&1) + e} offset:{(f>>1)*2048}")
    a("s_waitcnt lgkmcnt(0)\ns_barrier")
    for c in range(3, 7): wchunk(c)
    a(f"""s_lshl_b32 s26, s{sRB}, 2
          s_add_u32 s26, s26, s{sW}
          s_mul_i32 s3, s26, 28
          s_lshl_b32 s27, s{sCB}, 2
          s_add_u32 s3, s3, s27
          s_lshl_b32 s3, s3, 10
          s_add_u32 s3, s3, {XF}
          s_cmp_lt_u32 s{sCB}, 7
          s_cselect_b32 s3, s3, {OOB}
          v_lshlrev_b32 v0, 4, v1""")
    for f in range(4):
        a(f"buffer_store_dwordx4 {v(CS+4*f,4)}, v0, {s(WD,4)}, s3 offen offset:{f*1024}")
    ONE = TMP
    for i in range(4): a(f"v_mov_b32 v{ONE+i}, 0x3f803f80")
    for i in range(112):
        c0 = "0" if i < 2 else f"v{8+(i&1)}"
        c1 = "0" if i < 2 else f"v{10+(i&1)}"
        a(f"v_dot2_f32_bf16 v{8+(i&1)}, v{XR+i}, v{ONE}, {c0}")
        a(f"v_dot2_f32_bf16 v{10+(i&1)}, v{XR+i}, v{XR+i}, {c1}")
    MU, VAR, SC, IS, M0_, M1_ = 12, 13, 14, 15, TMP+4, TMP+5
    a("v_add_f32 v12, v8, v9\nv_add_f32 v13, v10, v11")
    half_sum(a, 12, 8); half_sum(a, 13, 9)
    a(f"""v_mul_f32 v12, {fb(1/448)}, v12
          v_mul_f32 v13, {fb(1/448)}, v13
          v_fma_f32 v13, -v12, v12, v13
          v_max_f32 v13, 0, v13""")
    mu_frag(a, MU, sLO, M0_, M1_)
    bf16r(a, 8, "v13")
    a(f"v_add_f32 v8, {fb(EPS)}, v8")
    bf16r(a, 8, "v8")
    a("v_sqrt_f32 v8, v8")
    bf16r(a, 8, "v8")
    a(f"""v_add_f32 v9, {fb(EPS)}, v13
          v_mov_b32 v10, {fb(EPS)}
          v_fma_f32 v9, v9, v10, v13
          v_sqrt_f32 v9, v9
          v_mov_b32 v10, s{sLO}
          v_bfi_b32 v15, v10, v9, v8
          v_rcp_f32 v14, v15""")
    bf16r(a, 10, "v12")
    a(f"""v_mov_b32 v11, v14
          s_lshl_b32 s3, s26, 8
          s_add_u32 s3, s3, {ST1}
          s_cmp_eq_u32 s{sCB}, 0
          s_cselect_b32 s3, s3, {OOB}
          v_lshlrev_b32 v8, 3, v1
          v_and_b32 v8, 0xff, v8
          buffer_store_dwordx2 v[10:11], v8, {s(WD,4)}, s3 offen
          v_mov_b32 v{TMP+6}, v14
          v_mov_b32 v{TMP+7}, v15""")
    waits = {c: [f"s_waitcnt vmcnt({min(63, 24 - 4*c + 5) if c < 6 else 5})", "s_barrier"] for c in range(7)}
    waits[3] += [f"v_add_u32 v{2+t}, {-WB & 0xffffffff}, v{2+t}" for t in range(5)]
    kloop(a, ONE, 2, lambda c: c * 16384 if c < 3 else (c - 3) * 16384, waits, perm=False)
    XCH = 0
    a("v_add_u32 v1, 0, v1")
    mean_fix_hi(a, M0_, M1_, sW)
    R, DEN = TMP + 6, TMP + 7
    a(f"""s_lshl_b32 s26, s{sRB}, 2
          s_add_u32 s26, s26, s{sW}
          v_lshrrev_b32 v8, 5, v1
          v_add_u32 v8, -1, v8                   ; lanes<32: -1
          s_cmp_eq_u32 s{sTY}, 3
          s_cbranch_scc1 P1_h""")
    a(f"""s_cmp_eq_u32 s{sTY}, 0
          s_cselect_b32 s3, {fb(QSCALE)}, 1.0
          v_mul_f32 v10, s3, v{R}
          s_cmp_eq_u32 s{sTY}, 1
          s_cselect_b32 s27, 0x3f803f80, 0
          s_cselect_b32 s3, 0x3f80, 0
          s_cmp_eq_u32 s{sTY}, 2
          s_cselect_b32 s27, 0x3f80, s27
          v_mov_b32 v12, s27
          v_mov_b32 v13, s3""")
    for t in range(4):
        for i in range(8): a(f"v_pk_mul_f32 {v(ACC+16*t+2*i,2)}, {v(ACC+16*t+2*i,2)}, v[10:11] op_sel_hi:[1,0]")
        for i in range(8): a(f"v_cvt_pk_bf16_f32 v{XR+8*t+i}, v{ACC+16*t+2*i}, v{ACC+16*t+2*i+1}")
        a(f"v_bfi_b32 v{XR+8*t+6}, v8, v{XR+8*t+6}, v12\nv_bfi_b32 v{XR+8*t+7}, v8, v{XR+8*t+7}, v13")
    a(f"""s_cmp_eq_u32 s{sTY}, 2
          s_cbranch_scc0 P1_qk""")
    VT = 65536 + 1024
    a(f"""s_mul_i32 s3, s{sW}, 9216
          s_add_u32 s3, s3, {VT}
          v_and_b32 v9, 31, v1
          v_mul_u32_u24 v9, 72, v9
          v_lshrrev_b32 v10, 5, v1
          v_lshl_add_u32 v9, v10, 3, v9
          v_add_u32 v9, s3, v9
          v_bfe_u32 v11, v1, 2, 2
          v_lshl_add_u32 v10, v10, 2, v11        ; token 4h+r
          v_mul_u32_u24 v10, 72, v10
          v_bfe_u32 v11, v1, 4, 1
          v_lshl_add_u32 v10, v11, 5, v10
          v_and_b32 v11, 3, v1
          v_lshl_add_u32 v10, v11, 3, v10
          v_add_u32 v10, s3, v10""")
    for t in range(4):
        for j in range(4): a(f"ds_write_b64 v9, {v(XR+8*t+2*j,2)} offset:{t*2304 + 16*j}")
    a("s_waitcnt lgkmcnt(0)")
    for t in range(4):
        for f in range(2):
            for e in range(2): a(f"ds_read_b64_tr_b16 {v(XR+8*t+4*f+2*e,2)}, v10 offset:{t*2304 + (16*f+8*e)*72}")
    a("s_waitcnt lgkmcnt(0)")
    a.label("P1_qk")
    a(f"""s_lshl_b32 s3, s{sSUB}, 8
          s_add_u32 s3, s3, s26
          s_cmp_eq_u32 s{sTY}, 0
          s_cselect_b32 s27, 11, 12
          s_lshl_b32 s3, s3, s27
          s_lshl_b32 s26, 64, s27
          s_lshl_b32 s27, s{sTY}, 11
          s_add_u32 s27, s27, {KVF - 2048}
          s_cmp_eq_u32 s{sTY}, 0
          s_cselect_b32 s27, {QF}, s27
          s_add_u32 s3, s3, s27""")
    for t in range(4):
        for f in range(2): a(f"buffer_store_dwordx4 {v(XR+8*t+4*f,4)}, v0, {s(WD,4)}, s3 offen offset:{f*1024}")
        if t < 3: a("s_add_u32 s3, s3, s26")
    a("s_endpgm")
    a.label("P1_h")
    a(f"""v_mul_f32 v10, {fb(GK1)}, v{R}
          v_mul_f32 v12, v{R}, v{R}
          v_mul_f32 v12, v12, v{R}
          v_mul_f32 v12, {fb(GK2)}, v12
          v_mov_b32 v14, v{DEN}
          s_mul_i32 s3, s26, 28
          s_mul_i32 s27, s{sSUB}, 7
          s_add_u32 s3, s3, s27
          s_lshl_b32 s3, s3, 10
          s_add_u32 s3, s3, {HF}
          s_add_u32 s27, s3, 4096""")
    for f in range(7):
        gelu_pairs(a, [ACC + 8*f + 2*i for i in range(4)], 10, 12, 14, WF)
        for i in range(4): a(f"v_cvt_pk_bf16_f32 v{XR+4*f+i}, v{ACC+8*f+2*i}, v{ACC+8*f+2*i+1}")
        a(f"buffer_store_dwordx4 {v(XR+4*f,4)}, v0, {s(WD,4)}, s{3 if f < 4 else 27} offen offset:{(f&3)*1024}")
    a.label("P1_end")
    a("s_endpgm")
    return a

def mean_fix_hi(a, vMU0, vMU1, sW, xch=65536):
    T = WF
    a(f"""v_cvt_pk_bf16_f32 v{T}, v{CS}, v{CS}
          v_and_b32 v{T+1}, 0xffff0000, v{T}
          v_sub_f32 v{T+1}, v{CS}, v{T+1}
          v_cvt_pk_bf16_f32 v{T}, v{CS}, v{T+1}
          v_and_b32 v8, 31, v1
          v_lshlrev_b32 v8, 2, v8
          v_add_u32 v8, {xch}, v8
          s_lshl_b32 s26, s{sW}, 7
          v_add_u32 v9, s26, v8
          ds_write_b32 v9, v{T}
          s_waitcnt lgkmcnt(0)
          s_barrier""")
    for t in range(4): a(f"ds_read_b32 v{T+4*t}, v8 offset:{128*t}")
    a(f"v_mov_b32 v{T+16}, v{vMU0}\nv_mov_b32 v{T+17}, v{vMU1}\nv_mov_b32 v{T+18}, 0\nv_mov_b32 v{T+19}, 0")
    for t in range(4): a(f"v_mov_b32 v{T+4*t+2}, 0\nv_mov_b32 v{T+4*t+3}, 0")
    a("s_waitcnt lgkmcnt(0)")
    for t in range(4): a(f"v_and_b32 v{T+4*t+1}, 0xffff, v{T+4*t}")
    for t in range(4): a(f"{MF} {v(ACC+16*t,16)}, {v(T+4*t,4)}, {v(T+16,4)}, {v(ACC+16*t,16)}")

def g3():
    a = A()
    sRB, sCB, sW, sTS, sWO, sLO, sT, sXO = 44, 45, 46, 50, 51, 55, 56, 57
    WS_, WD = 32, 36
    a("s_cmp_ge_u32 s2, 224\ns_cbranch_scc1 G3_end")
    load_args(a)
    a(f"""v_and_b32 v1, 63, v0
          v_lshrrev_b32 v8, 6, v0
          s_and_b32 s26, s2, 7
          s_lshr_b32 s27, s2, 3
          v_readfirstlane_b32 s{sW}, v8
          s_lshl_b32 s{sRB}, s26, 1
          s_and_b32 s3, s27, 1
          s_add_u32 s{sRB}, s{sRB}, s3
          s_lshr_b32 s{sCB}, s27, 1
          s_mov_b32 s{sTS}, 8
          s_mov_b32 s{sLO}, -1
          s_lshl_b32 s{sT}, s{sRB}, 2
          s_add_u32 s{sT}, s{sT}, s{sW}
          v_lshlrev_b32 v0, 4, v1
          v_lshrrev_b32 v8, 4, v1
          v_lshlrev_b32 v9, 2, v8
          v_sub_u32 v9, v1, v9
          v_and_b32 v9, 15, v9
          v_mul_u32_u24 v8, 3584, v8
          v_lshl_add_u32 v7, v9, 4, v8
          s_mul_i32 s{sWO}, s{sW}, {16*3584}
          s_lshl_b32 s26, s{sCB}, 8
          s_add_u32 s{sWO}, s{sWO}, s26
          s_lshl_b32 s27, s{sW}, 12
          s_mul_i32 s{sXO}, s{sT}, {28*1024}
          s_add_u32 s{sXO}, s{sXO}, {X1F}
          v_lshrrev_b32 v8, 5, v1
          v_mul_u32_u24 v8, {7*256}, v8
          v_and_b32 v9, 31, v1
          v_lshl_add_u32 v8, v9, 3, v8
          s_mul_i32 s3, s{sT}, {14*256}
          s_add_u32 s3, s3, {ST3}
          s_waitcnt lgkmcnt(0)""")
    srd(a, WS_, 16, 448 * 3584)
    srd(a, WD, 24, WS_END)
    for i in range(7): a(f"buffer_load_dwordx2 {v(CS+2*i,2)}, v8, {s(WD,4)}, s3 offen offset:{i*256}")
    for c in range(7):
        for u in range(4):
            a(f"s_add_u32 m0, s27, {c*16384 + u*1024}")
            a(f"buffer_load_dwordx4 v7, {s(WS_,4)}, s{sWO} offen lds")
            a(f"s_add_u32 s{sWO}, s{sWO}, {4*3584 if u < 3 else 52*3584}")
        for u in range(4):
            a(f"buffer_load_dwordx4 {v(XR+16*c+4*u,4)}, v0, {s(WD,4)}, s{sXO} offen offset:{u*1024}")
        a(f"s_add_u32 s{sXO}, s{sXO}, 4096")
    tr_addrs(a, 2, sTS, sW, 0, perm=True)
    ONE = TMP
    for i in range(4): a(f"v_mov_b32 v{ONE+i}, 0x3f803f80")
    a("s_waitcnt vmcnt(56)")
    for i in range(1, 7): a(f"v_pk_add_f32 {v(CS,2)}, {v(CS,2)}, {v(CS+2*i,2)}")
    a(f"v_mov_b32 v12, v{CS}\nv_mov_b32 v13, v{CS+1}")
    half_sum(a, 12, 8); half_sum(a, 13, 9)
    M0_, M1_, R, DEN = TMP+4, TMP+5, TMP+6, TMP+7
    a(f"""v_mul_f32 v12, {fb(1/448)}, v12
          v_mul_f32 v13, {fb(1/448)}, v13
          v_fma_f32 v13, -v12, v12, v13
          v_max_f32 v13, 0, v13
          v_add_f32 v13, {fb(EPS)}, v13
          v_sqrt_f32 v{DEN}, v13
          v_rsq_f32 v{R}, v13""")
    mu_frag(a, 12, sLO, M0_, M1_)
    waits = {c: [f"s_waitcnt vmcnt({48 - 8*c})", "s_barrier"] for c in range(7)}
    waits[4] += [f"v_add_u32 v{2+t}, 0x10000, v{2+t}" for t in range(5)]
    kloop(a, ONE, 2, lambda c: (c & 3) * 16384, waits, perm=True)
    mean_fix_hi(a, M0_, M1_, sW, xch=7*16384)
    a(f"""v_mul_f32 v10, {fb(GK1)}, v{R}
          v_mul_f32 v12, v{R}, v{R}
          v_mul_f32 v12, v12, v{R}
          v_mul_f32 v12, {fb(GK2)}, v12
          v_mov_b32 v14, v{DEN}
          s_mul_i32 s3, s{sT}, 112
          s_lshl_b32 s27, s{sCB}, 3
          s_add_u32 s3, s3, s27
          s_lshl_b32 s3, s3, 10
          s_add_u32 s3, s3, {HHF}
          s_add_u32 s27, s3, 4096""")
    for f in range(8):
        gelu_pairs(a, [ACC + 8*f + 2*i for i in range(4)], 10, 12, 14, WF)
        for i in range(4): a(f"v_cvt_pk_bf16_f32 v{XR+4*f+i}, v{ACC+8*f+2*i}, v{ACC+8*f+2*i+1}")
        a(f"buffer_store_dwordx4 {v(XR+4*f,4)}, v0, {s(WD,4)}, s{3 if f < 4 else 27} offen offset:{(f&3)*1024}")
    a.label("G3_end")
    a("s_endpgm")
    return a
```

```python
import math, struct
from asmx import *

QF, KVF, HF, XF, X1F, OF, HHF, ST1, ST3 = 0x0, 0x200000, 0x600000, 0x800000, 0xA00000, 0xC00000, 0xE00000, 0x1500000, 0x1510000
WS_END = 0x1600000
def fb(x): return "0x%08x" % struct.unpack("<I", struct.pack("<f", x))[0]
EPS = 1e-5
QSCALE = 28 ** -0.5 * math.log2(math.e)
GK1 = -2.0 * math.sqrt(2.0 / math.pi) * math.log2(math.e)
GK2 = GK1 * 0.044715
OOB = 0x80000000

def load_args(a):
    a("""s_load_dwordx16 s[4:19], s[0:1], 0
         s_load_dwordx4 s[20:23], s[0:1], 64
         s_load_dwordx2 s[24:25], s[0:1], 80""")

def srd(a, d, base, nbytes):
    a(f"s_mov_b32 s{d}, s{base}\ns_mov_b32 s{d+1}, s{base+1}")
    a(f"s_mov_b32 s{d+2}, {nbytes}\ns_mov_b32 s{d+3}, 0x20000")

def half_sum(a, r, t):
    a(f"v_mov_b32 v{t}, v{r}")
    a(f"v_permlane32_swap_b32 v{r}, v{t}")
    a(f"v_add_f32 v{r}, v{r}, v{t}")

def bf16r(a, d, src):
    a(f"v_cvt_pk_bf16_f32 v{d}, {src}, {src}")
    a(f"v_and_b32 v{d}, 0xffff0000, v{d}")

def gelu_pairs(a, regs, K1, K2, IS, T):
    n = len(regs)
    for i, r in enumerate(regs): a(f"v_pk_mul_f32 {v(T+2*i,2)}, {v(r,2)}, {v(r,2)}")
    for i, r in enumerate(regs): a(f"v_pk_fma_f32 {v(T+2*i,2)}, {v(T+2*i,2)}, {v(K2,2)}, {v(K1,2)} op_sel_hi:[1,0,0]")
    for i, r in enumerate(regs): a(f"v_pk_mul_f32 {v(T+2*i,2)}, {v(T+2*i,2)}, {v(r,2)}")
    for i in range(2*n): a(f"v_exp_f32 v{T+i}, v{T+i}")
    for i, r in enumerate(regs): a(f"v_pk_fma_f32 {v(T+2*i,2)}, {v(T+2*i,2)}, {v(IS,2)}, {v(IS,2)} op_sel_hi:[1,0,0]")
    for i in range(2*n): a(f"v_rcp_f32 v{T+i}, v{T+i}")
    for i, r in enumerate(regs): a(f"v_pk_mul_f32 {v(r,2)}, {v(T+2*i,2)}, {v(r,2)}")

MF = "v_mfma_f32_32x32x16_bf16"
```

```python
from common import *

ACC, WF, AR, EP = 16, 80, 96, 160
sRB, sCB, sW, sM, sT = 44, 45, 46, 47, 48

def head(a, end):
    a(f"s_cmp_ge_u32 s2, 224\ns_cbranch_scc1 {end}")
    load_args(a)
    a(f"""v_and_b32 v1, 63, v0
          v_lshrrev_b32 v8, 6, v0
          s_and_b32 s26, s2, 7
          s_lshr_b32 s27, s2, 3
          v_readfirstlane_b32 s{sW}, v8
          s_lshl_b32 s{sRB}, s26, 2
          s_and_b32 s3, s27, 3
          s_add_u32 s{sRB}, s{sRB}, s3
          s_lshr_b32 s{sCB}, s27, 2
          s_lshl_b32 s{sM}, s{sW}, 14
          v_lshlrev_b32 v0, 4, v1
          v_lshrrev_b32 v8, 3, v1
          v_bfe_u32 v9, v1, 4, 1
          v_lshlrev_b32 v9, 2, v9
          v_and_b32 v10, 7, v1
          v_xor_b32 v9, v9, v10
          v_mul_u32_u24 v8, 896, v8
          v_lshl_add_u32 v7, v9, 4, v8
          v_lshrrev_b32 v8, 5, v1                ; h
          v_bfe_u32 v9, v1, 2, 2                 ; r
          v_lshl_add_u32 v8, v8, 2, v9
          v_lshlrev_b32 v8, 7, v8
          v_bfe_u32 v10, v1, 4, 1
          v_bfe_u32 v11, v1, 1, 1
          v_lshl_add_u32 v10, v10, 1, v11
          v_bfe_u32 v11, v1, 3, 1
          v_lshl_add_u32 v10, v11, 2, v10        ; xor 4*(r>>1)
          v_lshl_add_u32 v8, v10, 4, v8
          v_and_b32 v11, 1, v1
          v_lshl_add_u32 v8, v11, 3, v8
          v_add_u32 v2, s{sM}, v8
          v_xor_b32 v3, 64, v2
          s_lshr_b32 s3, s{sW}, 1
          s_lshl_b32 s{sT}, s{sRB}, 1
          s_add_u32 s{sT}, s{sT}, s3""")

def wreads(a, buf, off):
    for ft in range(2):
        for e in range(2):
            a(f"ds_read_b64_tr_b16 {v(WF+8*buf+4*ft+2*e,2)}, v{2+ft} offset:{off + 8*e*128}")

def mfmas(a, buf, act0, act1, first):
    for tt, ar in enumerate((act0, act1)):
        for ft in range(2):
            u = 2*tt + ft
            a(f"{MF} {v(ACC+16*u,16)}, {v(WF+8*buf+4*ft,4)}, {v(ar,4)}, {'0' if first else v(ACC+16*u,16)}")

def reduce4(a):
    a(f"v_add_u32 v8, s{sM}, v0")
    for u in range(4):
        for j in range(4): a(f"ds_write_b128 v8, {v(ACC+16*u+4*j,4)} offset:{u*4096 + j*1024}")
    a(f"""s_lshl_b32 s3, s{sW}, 12
          v_add_u32 v8, s3, v0
          s_waitcnt lgkmcnt(0)
          s_barrier""")
    for w in range(4):
        for j in range(4): a(f"ds_read_b128 {v(ACC+16*w+4*j,4)}, v8 offset:{w*16384 + j*1024}")
    a("s_waitcnt lgkmcnt(8)")
    for i in range(8): a(f"v_pk_add_f32 {v(ACC+2*i,2)}, {v(ACC+2*i,2)}, {v(ACC+16+2*i,2)}")
    a("s_waitcnt lgkmcnt(0)")
    for i in range(8): a(f"v_pk_add_f32 {v(ACC+32+2*i,2)}, {v(ACC+32+2*i,2)}, {v(ACC+48+2*i,2)}")
    for i in range(8): a(f"v_pk_add_f32 {v(ACC+2*i,2)}, {v(ACC+2*i,2)}, {v(ACC+32+2*i,2)}")

def unpack(a, dst, src, n):
    for i in range(n):
        a(f"v_lshlrev_b32 v{dst+2*i}, 16, v{src+i}\nv_and_b32 v{dst+2*i+1}, 0xffff0000, v{src+i}")

def tile_off(a, d, base):
    a(f"""s_mul_i32 s{d}, s{sT}, 28
          s_lshl_b32 s3, s{sCB}, 2
          s_add_u32 s{d}, s{d}, s3
          s_and_b32 s3, s{sW}, 1
          s_lshl_b32 s3, s3, 1
          s_add_u32 s{d}, s{d}, s3
          s_lshl_b32 s{d}, s{d}, 10
          s_add_u32 s{d}, s{d}, {base}""")

def g2():
    a = A()
    WS_, WD = 32, 36
    sWO, sA0, sA1, sX = 50, 51, 52, 53
    head(a, "G2_end")
    a(f"""s_mul_i32 s{sWO}, s{sW}, {112*896}
          s_lshl_b32 s3, s{sCB}, 7
          s_add_u32 s{sWO}, s{sWO}, s3
          s_mul_i32 s{sA0}, s{sRB}, 56
          s_mul_i32 s3, s{sW}, 7
          s_add_u32 s{sA0}, s{sA0}, s3
          s_lshl_b32 s{sA0}, s{sA0}, 10
          s_add_u32 s{sA0}, s{sA0}, {HF}
          s_add_u32 s{sA1}, s{sA0}, {28*1024}""")
    tile_off(a, sX, XF)
    a("s_waitcnt lgkmcnt(0)")
    srd(a, WS_, 14, 448 * 896)
    srd(a, WD, 24, WS_END)
    for s_ in range(7):
        for u in range(2):
            a(f"s_add_u32 m0, s{sM}, {s_*2048 + u*1024}")
            a(f"buffer_load_dwordx4 v7, {s(WS_,4)}, s{sWO} offen lds")
            a(f"s_add_u32 s{sWO}, s{sWO}, {8*896}")
        a(f"buffer_load_dwordx4 {v(AR+8*s_,4)}, v0, {s(WD,4)}, s{sA0} offen offset:{(s_&3)*1024}")
        a(f"buffer_load_dwordx4 {v(AR+8*s_+4,4)}, v0, {s(WD,4)}, s{sA1} offen offset:{(s_&3)*1024}")
        if s_ == 3: a(f"s_add_u32 s{sA0}, s{sA0}, 4096\ns_add_u32 s{sA1}, s{sA1}, 4096")
    a(f"""buffer_load_dwordx4 {v(EP,4)}, v0, {s(WD,4)}, s{sX} offen
          buffer_load_dwordx4 {v(EP+4,4)}, v0, {s(WD,4)}, s{sX} offen offset:1024
          v_lshlrev_b32 v8, 3, v1
          v_and_b32 v6, 0xff, v8
          s_lshl_b32 s3, s{sT}, 8
          s_add_u32 s3, s3, {ST1}
          buffer_load_dwordx2 {v(EP+8,2)}, v6, {s(WD,4)}, s3 offen""")
    a(f"s_waitcnt vmcnt({24+3})")
    wreads(a, 0, 0)
    for s_ in range(7):
        if s_ < 6:
            a(f"s_waitcnt vmcnt({4*(5-s_)+3})")
            wreads(a, (s_+1) & 1, (s_+1)*2048)
            a("s_waitcnt lgkmcnt(4)")
        else:
            a("s_waitcnt lgkmcnt(0)")
        mfmas(a, s_ & 1, AR+8*s_, AR+8*s_+4, s_ == 0)
    reduce4(a)
    a("s_waitcnt vmcnt(0)")
    U = ACC + 16
    unpack(a, U, EP, 8)
    for i in range(8): a(f"v_pk_add_f32 {v(U+2*i,2)}, {v(U+2*i,2)}, {v(EP+8,2)} op_sel_hi:[1,0] neg_lo:[0,1] neg_hi:[0,1]")
    for i in range(8): a(f"v_pk_fma_f32 {v(U+2*i,2)}, {v(U+2*i,2)}, {v(EP+8,2)}, {v(ACC+2*i,2)} op_sel:[0,1,0] op_sel_hi:[1,1,1]")
    for i in range(8): a(f"v_cvt_pk_bf16_f32 v{EP+i}, v{U+2*i}, v{U+2*i+1}")
    a(f"s_add_u32 s{sX}, s{sX}, {X1F - XF}")
    a(f"buffer_store_dwordx4 {v(EP,4)}, v0, {s(WD,4)}, s{sX} offen")
    a(f"buffer_store_dwordx4 {v(EP+4,4)}, v0, {s(WD,4)}, s{sX} offen offset:1024")
    a("v_mov_b32 v12, 0x3f803f80")
    for i in range(8):
        a(f"v_dot2_f32_bf16 v10, v{EP+i}, v12, {'0' if i == 0 else 'v10'}")
        a(f"v_dot2_f32_bf16 v11, v{EP+i}, v{EP+i}, {'0' if i == 0 else 'v11'}")
    half_sum(a, 10, 8); half_sum(a, 11, 9)
    a(f"""s_mul_i32 s3, s{sT}, 14
          s_lshl_b32 s26, s{sCB}, 1
          s_add_u32 s3, s3, s26
          s_and_b32 s26, s{sW}, 1
          s_add_u32 s3, s3, s26
          s_lshl_b32 s3, s3, 8
          s_add_u32 s3, s3, {ST3}
          buffer_store_dwordx2 v[10:11], v6, {s(WD,4)}, s3 offen""")
    a.label("G2_end")
    a("s_endpgm")
    return a

def fin():
    a = A()
    W4, WD, WO, OUT = 32, 36, 40, 28
    sWO, sA0, sA1, sX = 50, 51, 52, 53
    head(a, "FIN_end")
    a(f"""s_mul_i32 s{sWO}, s{sW}, {448*896}
          s_lshl_b32 s3, s{sCB}, 7
          s_add_u32 s{sWO}, s{sWO}, s3
          s_mul_i32 s{sA0}, s{sRB}, 224
          s_mul_i32 s3, s{sW}, 28
          s_add_u32 s{sA0}, s{sA0}, s3
          s_lshl_b32 s{sA0}, s{sA0}, 10
          s_add_u32 s{sA0}, s{sA0}, {HHF}
          s_add_u32 s{sA1}, s{sA0}, {112*1024}""")
    tile_off(a, sX, XF)
    a("s_waitcnt lgkmcnt(0)")
    srd(a, W4, 18, 1792 * 896)
    srd(a, WO, 8, 448 * 896)
    srd(a, WD, 24, WS_END)
    srd(a, OUT, 20, 2048 * 896)
    NC = 18
    def issue(c):
        sl = c & 3
        if c == 14:
            a(f"""s_mul_i32 s{sWO}, s{sW}, {112*896}
                  s_lshl_b32 s3, s{sCB}, 7
                  s_add_u32 s{sWO}, s{sWO}, s3
                  s_lshl_b32 s{sA0}, s{sRB}, 6
                  s_lshl_b32 s3, s{sW}, 3
                  s_add_u32 s{sA0}, s{sA0}, s3
                  s_lshl_b32 s{sA0}, s{sA0}, 10
                  s_add_u32 s{sA0}, s{sA0}, {OF}
                  s_add_u32 s{sA1}, s{sA0}, {32*1024}""")
        for u in range(4):
            a(f"s_add_u32 m0, s{sM}, {sl*4096 + u*1024}")
            a(f"buffer_load_dwordx4 v7, {s(W4 if c < 14 else WO,4)}, s{sWO} offen lds")
            a(f"s_add_u32 s{sWO}, s{sWO}, {8*896 if (c < 14 or u < 3) else 4*896}")
        for k in range(2):
            a(f"buffer_load_dwordx4 {v(AR+16*sl+8*k,4)}, v0, {s(WD,4)}, s{sA0} offen offset:{k*1024}")
            a(f"buffer_load_dwordx4 {v(AR+16*sl+8*k+4,4)}, v0, {s(WD,4)}, s{sA1} offen offset:{k*1024}")
        a(f"s_add_u32 s{sA0}, s{sA0}, 2048\ns_add_u32 s{sA1}, s{sA1}, 2048")
    a(f"""buffer_load_dwordx4 {v(EP,4)}, v0, {s(WD,4)}, s{sX} offen
          buffer_load_dwordx4 {v(EP+4,4)}, v0, {s(WD,4)}, s{sX} offen offset:1024
          s_add_u32 s{sX}, s{sX}, {X1F - XF}
          buffer_load_dwordx4 {v(EP+8,4)}, v0, {s(WD,4)}, s{sX} offen
          buffer_load_dwordx4 {v(EP+12,4)}, v0, {s(WD,4)}, s{sX} offen offset:1024""")
    for c in range(3): issue(c)
    for c in range(NC):
        sl = c & 3
        left = min(NC - 1 - c, 2)
        a(f"s_waitcnt vmcnt({8*left})")
        wreads(a, 0, sl*4096)
        wreads(a, 1, sl*4096 + 2048)
        if c + 3 < NC: issue(c + 3)
        a("s_waitcnt lgkmcnt(4)")
        mfmas(a, 0, AR+16*sl, AR+16*sl+4, c == 0)
        a("s_waitcnt lgkmcnt(0)")
        mfmas(a, 1, AR+16*sl+8, AR+16*sl+12, False)
    reduce4(a)
    U = ACC + 16
    unpack(a, U, EP, 16)
    for i in range(8): a(f"v_pk_add_f32 {v(U+2*i,2)}, {v(U+2*i,2)}, {v(U+16+2*i,2)}")
    for i in range(8): a(f"v_pk_add_f32 {v(U+2*i,2)}, {v(U+2*i,2)}, {v(ACC+2*i,2)}")
    for i in range(8): a(f"v_cvt_pk_bf16_f32 v{EP+i}, v{U+2*i}, v{U+2*i+1}")
    a(f"""v_and_b32 v8, 31, v1
          v_mul_u32_u24 v8, 896, v8
          v_lshrrev_b32 v9, 5, v1
          v_lshl_add_u32 v8, v9, 4, v8
          s_mul_i32 s3, s{sT}, {32*896}
          s_lshl_b32 s26, s{sCB}, 7
          s_add_u32 s3, s3, s26
          s_and_b32 s26, s{sW}, 1
          s_lshl_b32 s26, s26, 6
          s_add_u32 s3, s3, s26""")
    for jj in range(2):
        a(f"v_permlane32_swap_b32 v{EP+4*jj}, v{EP+4*jj+2}\nv_permlane32_swap_b32 v{EP+4*jj+1}, v{EP+4*jj+3}")
        a(f"buffer_store_dwordx4 {v(EP+4*jj,4)}, v8, {s(OUT,4)}, s3 offen offset:{32*jj}")
    a.label("FIN_end")
    a("s_endpgm")
    return a
```

```python
import sys
from common import *
import big, small, att
HDR = open("parallel_sum__mha_block__mixer_s_mlp__prompt.s.ref").read().split("; Override launch")[0]
ks = [("p1_kernel", big.p1(), 256, 163840, 256), ("g2_kernel", small.g2(), 224, 65536, 176), ("g3_kernel", big.g3(), 224, 115200, 256),
      ("att_kernel", att.att(), 256, 65536, 224), ("fin_kernel", small.fin(), 224, 65536, 176)]
extra = int(sys.argv[2]) if len(sys.argv) > 2 else 0
out = HDR
for n, _, g, l, _ in ks: out += f"; @launch kernel={n} grid=({g},1,1) block=(256,1,1) lds={l}\n"
for i in range(extra): out += f"; @launch kernel=nop_kernel grid=(256,1,1) block=(256,1,1) lds=0\n"
out += '.amdgcn_target "amdgcn-amd-amdhsa--gfx950"\n'
for n, a, *_ in ks: out += kernel_head(n) + a.text()
if extra: out += kernel_head("nop_kernel") + "    s_endpgm\n"
for n, _, _, _, vg in ks: out += kernel_desc(n, vgpr=vg, sgpr=64)
if extra: out += kernel_desc("nop_kernel", vgpr=8, sgpr=16)
open(sys.argv[1], "w").write(out)
```

```python
from common import *
import small

O_, Q_, S_, E_, P_, KV = 16, 80, 112, 144, 152, 160
sH, sQB, sW, sM, sKV, sN = 44, 45, 46, 47, 50, 51
WD = 36

def unit(a, n, q, extra):
    Sc, Sn = S_ + 16*(q & 1), S_ + 16*((q+1) & 1)
    nn, nq = (n, q+1) if q < 3 else ((n+1) & 3, 0)
    pn, pq = (n, q-1) if q > 0 else ((n-1) & 3, 3)
    K, Vc, Vp = KV + 16*nn, KV + 16*n + 8, KV + 16*pn + 8
    e = lambda i: a(f"v_exp_f32 v{E_+(i&7)}, v{Sc+i}")
    c = lambda k: a(f"v_cvt_pk_bf16_f32 v{P_+k}, v{E_+((2*k)&7)}, v{E_+((2*k+1)&7)}")
    for x in extra.get(0, []): a(x)
    a(f"{MF} {v(Sn,16)}, {v(K,4)}, {v(Q_+8*nq,4)}, 0")
    e(0); c(6); e(1); c(7); e(2); e(3)
    a(f"{MF} {v(O_+16*pq,16)}, {v(Vp+4,4)}, {v(P_+4,4)}, {v(O_+16*pq,16)}")
    for x in extra.get(1, []): a(x)
    e(4); c(0); e(5); c(1); e(6); e(7)
    a(f"{MF} {v(Sn,16)}, {v(K+4,4)}, {v(Q_+8*nq+4,4)}, {v(Sn,16)}")
    for x in extra.get(2, []): a(x)
    e(8); c(2); e(9); c(3); e(10); e(11)
    a(f"{MF} {v(O_+16*q,16)}, {v(Vc,4)}, {v(P_,4)}, {v(O_+16*q,16)}")
    e(12); c(4); e(13); c(5); e(14); e(15)

def kvload(slot, f):
    return f"buffer_load_dwordx4 {v(KV+16*slot+4*f,4)}, v0, {s(WD,4)}, s{sKV} offen offset:{f*1024}"

def mainpass(a, L):
    a(f"""s_lshl_b32 s{sKV}, s{sH}, 6
          s_lshl_b32 s3, s{sW}, 4
          s_add_u32 s{sKV}, s{sKV}, s3
          s_lshl_b32 s{sKV}, s{sKV}, 12
          s_add_u32 s{sKV}, s{sKV}, {KVF}""")
    for n in range(3):
        for f in range(4): a(kvload(n, f))
        a(f"s_add_u32 s{sKV}, s{sKV}, 4096")
    for i in range(64): a(f"v_mov_b32 v{O_+i}, 0")
    for i in range(8): a(f"v_mov_b32 v{E_+i}, 0\nv_mov_b32 v{P_+i}, 0")
    for i in range(4): a(f"v_mov_b32 v{KV+48+12+i}, 0")
    stamp(a, 2)
    a(f"s_mov_b32 s{sN}, 4\ns_waitcnt vmcnt(8)")
    stamp(a, 3)
    a(f"{MF} {v(S_,16)}, {v(KV,4)}, {v(Q_,4)}, 0")
    a(f"{MF} {v(S_,16)}, {v(KV+4,4)}, {v(Q_+4,4)}, {v(S_,16)}")
    a(".p2align 3")
    a.label(L)
    for n in range(4):
        ld = (n + 3) & 3
        unit(a, n, 0, {2: [kvload(ld, 0)]})
        unit(a, n, 1, {1: [kvload(ld, 1)]})
        unit(a, n, 2, {1: [kvload(ld, 2)]})
        ex = {0: ["s_waitcnt vmcnt(7)"], 1: [kvload(ld, 3)], 2: [f"s_add_u32 s{sKV}, s{sKV}, 4096"]}
        if n == 3: ex[2] += [f"s_sub_u32 s{sN}, s{sN}, 1", f"s_cmp_lg_u32 s{sN}, 0"]
        unit(a, n, 3, ex)
    a(f"s_cbranch_scc1 {L}")
    a(f"v_cvt_pk_bf16_f32 v{P_+6}, v{E_+4}, v{E_+5}\nv_cvt_pk_bf16_f32 v{P_+7}, v{E_+6}, v{E_+7}")
    a(f"{MF} {v(O_+48,16)}, {v(KV+48+12,4)}, {v(P_+4,4)}, {v(O_+48,16)}")

def att():
    a = A()
    a("s_cmp_ge_u32 s2, 256\ns_cbranch_scc1 AT_end")
    load_args(a)
    a(f"""v_and_b32 v1, 63, v0
          v_lshrrev_b32 v8, 6, v0
          s_and_b32 s26, s2, 7
          s_lshr_b32 s27, s2, 3
          v_readfirstlane_b32 s{sW}, v8
          s_lshl_b32 s{sH}, s26, 1
          s_and_b32 s3, s27, 1
          s_add_u32 s{sH}, s{sH}, s3
          s_lshr_b32 s{sQB}, s27, 1
          s_lshl_b32 s{sM}, s{sW}, 14
          v_lshlrev_b32 v0, 4, v1
          s_lshl_b32 s3, s{sH}, 6
          s_lshl_b32 s26, s{sQB}, 2
          s_add_u32 s3, s3, s26
          s_lshl_b32 s3, s3, 11
          s_add_u32 s3, s3, {QF}
          s_add_u32 s26, s3, 4096
          s_waitcnt lgkmcnt(0)""")
    srd(a, WD, 24, WS_END)
    for i in range(8): a(f"buffer_load_dwordx4 {v(Q_+4*i,4)}, v0, {s(WD,4)}, s{3 if i < 4 else 26} offen offset:{(i&3)*1024}")
    mainpass(a, "AT_loop")
    stamp(a, 4)
    small.reduce4(a)
    a(f"""v_mov_b32 v10, v{O_+12}
          v_mov_b32 v11, v{O_+12}
          v_permlane32_swap_b32 v11, v10
          v_rcp_f32 v10, v10
          v_lshrrev_b32 v8, 5, v1
          v_add_u32 v8, -1, v8""")
    for i in range(8): a(f"v_pk_mul_f32 {v(O_+2*i,2)}, {v(O_+2*i,2)}, v[10:11] op_sel_hi:[1,0]")
    for i in range(8): a(f"v_cvt_pk_bf16_f32 v{P_+i}, v{O_+2*i}, v{O_+2*i+1}")
    a(f"""v_and_b32 v{P_+6}, v8, v{P_+6}
          v_and_b32 v{P_+7}, v8, v{P_+7}
          s_lshl_b32 s3, s{sQB}, 2
          s_add_u32 s3, s3, s{sW}
          s_lshl_b32 s3, s3, 4
          s_add_u32 s3, s3, s{sH}
          s_lshl_b32 s3, s3, 11
          s_add_u32 s3, s3, {OF}
          buffer_store_dwordx4 {v(P_,4)}, v0, {s(WD,4)}, s3 offen
          buffer_store_dwordx4 {v(P_+4,4)}, v0, {s(WD,4)}, s3 offen offset:1024""")
    stamp(a, 5); stamp_out(a, 3, WD)
    a.label("AT_end")
    a("s_endpgm")
    return a
```

```python
from common import *

ACC, CS, WF, XR, TMP = 16, 80, 96, 136, 248

def kloop(a, ones, vA, offs, waits, perm):
    def reads(s):
        c = s >> 2
        for w in waits.get(c, []) if (s & 3) == 0 else []: a(w)
        for t in range(5):
            for e in range(2):
                row = 16 * (s & 3) + (8 * e if perm else 4 * e)
                a(f"ds_read_b64_tr_b16 {v(WF + 20*(s&1) + 4*t + 2*e, 2)}, v{vA+t} offset:{offs(c) + row*256}")
    reads(0)
    for s in range(28):
        if s + 1 < 28:
            reads(s + 1)
            a("s_waitcnt lgkmcnt(10)")
        else:
            a("s_waitcnt lgkmcnt(0)")
        for t in range(4):
            c = "0" if s == 0 else v(ACC + 16*t, 16)
            a(f"{MF} {v(ACC+16*t,16)}, {v(WF+20*(s&1)+4*t,4)}, {v(XR+4*s,4)}, {c}")
        c = "0" if s == 0 else v(CS, 16)
        a(f"{MF} {v(CS,16)}, {v(ones,4)}, {v(WF+20*(s&1)+16,4)}, {c}")

def tr_addrs(a, vA, sTS, sW, base, perm):
    a(f"""v_lshrrev_b32 v8, 5, v1          ; h
          v_bfe_u32 v9, v1, 2, 2           ; r
          v_bfe_u32 v10, v1, 4, 1          ; fg
          v_and_b32 v11, 3, v1             ; c
          v_lshl_add_u32 v10, v10, 2, v11  ; 4fg+c
          v_lshl_add_u32 v8, v8, {2 if perm else 3}, v9    ; row = (4h|8h)+r
          v_lshlrev_b32 v8, 8, v8
          v_add_u32 v8, {base}, v8
          v_lshlrev_b32 v9, 2, v9          ; 4r""")
    for t in range(5):
        a(f"s_mul_i32 s26, s{sTS}, {t}" if t < 4 else f"s_mul_i32 s26, s{sTS}, s{sW}")
        a(f"""v_add_u32 v11, s26, v10          ; piece
              v_lshrrev_b32 v12, 1, v11
              v_add_u32 v12, v12, v9
              v_and_b32 v12, 15, v12
              v_and_b32 v11, 1, v11
              v_lshlrev_b32 v11, 3, v11
              v_lshl_add_u32 v11, v12, 4, v11
              v_add_u32 v{vA+t}, v8, v11""")

def mean_fix(a, xch, vMU0, vMU1, sW):
    T = WF
    a(f"""v_cvt_pk_bf16_f32 v{T}, v{CS}, v{CS}
          v_and_b32 v{T+1}, 0xffff0000, v{T}
          v_sub_f32 v{T+1}, v{CS}, v{T+1}
          v_cvt_pk_bf16_f32 v{T}, v{CS}, v{T+1}
          v_and_b32 v8, 31, v1
          v_lshlrev_b32 v8, 2, v8
          s_lshl_b32 s26, s{sW}, 7
          v_add_u32 v9, s26, v8
          ds_write_b32 v9, v{T} offset:{xch}
          s_waitcnt lgkmcnt(0)
          s_barrier""")
    for t in range(4): a(f"ds_read_b32 v{T+4*t}, v8 offset:{xch + 128*t}")
    a(f"v_mov_b32 v{T+16}, v{vMU0}\nv_mov_b32 v{T+17}, v{vMU1}\nv_mov_b32 v{T+18}, 0\nv_mov_b32 v{T+19}, 0")
    for t in range(4): a(f"v_mov_b32 v{T+4*t+2}, 0\nv_mov_b32 v{T+4*t+3}, 0")
    a("s_waitcnt lgkmcnt(0)")
    for t in range(4): a(f"v_and_b32 v{T+4*t+1}, 0xffff, v{T+4*t}")
    for t in range(4): a(f"{MF} {v(ACC+16*t,16)}, {v(T+4*t,4)}, {v(T+16,4)}, {v(ACC+16*t,16)}")

def mu_frag(a, vmu, vlo_en, d0, d1):
    a(f"""v_cvt_pk_bf16_f32 v{d0}, -v{vmu}, -v{vmu}
          v_and_b32 v8, 0xffff0000, v{d0}
          v_sub_f32 v8, -v{vmu}, v8
          v_cvt_pk_bf16_f32 v{d1}, v8, 0
          v_and_b32 v{d1}, s{vlo_en}, v{d1}
          v_lshrrev_b32 v8, 5, v1
          v_add_u32 v8, -1, v8             ; h==0 -> -1, h==1 -> 0
          v_and_b32 v{d0}, v8, v{d0}
          v_and_b32 v{d1}, v8, v{d1}""")

def p1():
    a = A()
    sRB, sCB, sW, sTY, sSUB, sROW, sTS, sWO, sM, sRB4, sRB52, sLO = 44, 45, 46, 47, 48, 49, 50, 51, 52, 53, 54, 55
    XS, WS_, WD = 28, 32, 36
    WB = 0x1C000
    a("s_cmp_ge_u32 s2, 256\ns_cbranch_scc1 P1_end")
    load_args(a)
    a(f"""v_and_b32 v1, 63, v0
          v_lshrrev_b32 v8, 6, v0
          s_and_b32 s26, s2, 7
          s_lshr_b32 s27, s2, 3
          v_readfirstlane_b32 s{sW}, v8
          s_lshr_b32 s{sRB}, s26, 1
          s_lshl_b32 s{sRB}, s{sRB}, 2
          s_and_b32 s3, s27, 3
          s_add_u32 s{sRB}, s{sRB}, s3
          s_and_b32 s{sCB}, s26, 1
          s_lshl_b32 s{sCB}, s{sCB}, 3
          s_lshr_b32 s3, s27, 2
          s_add_u32 s{sCB}, s{sCB}, s3
          s_lshr_b32 s{sTY}, s{sCB}, 2
          s_and_b32 s{sSUB}, s{sCB}, 3
          s_lshr_b32 s3, s{sSUB}, 1
          s_add_u32 s3, s3, 1
          s_sub_u32 s26, 0, s3
          s_bitcmp1_b32 s{sSUB}, 0
          s_cselect_b32 s3, s3, s26              ; shift
          s_movk_i32 s{sROW}, 2688
          s_cmp_eq_u32 s{sTY}, 3
          s_cselect_b32 s3, s3, 0
          s_cselect_b32 s{sROW}, 896, s{sROW}
          s_cselect_b32 s{sTS}, 8, 7
          s_cselect_b32 s{sLO}, -1, 0
          s_cselect_b32 s27, s{sSUB}, s{sCB}
          s_mul_i32 s{sWO}, s27, 224
          s_lshl_b32 s26, s{sRB}, 7
          s_add_u32 s3, s3, s26
          s_lshl_b32 s26, s{sW}, 5
          s_add_u32 s3, s3, s26
          v_lshrrev_b32 v8, 2, v1
          v_add_u32 v8, s3, v8
          s_movk_i32 s26, 896
          v_mul_i32_i24 v8, s26, v8
          v_bfe_u32 v9, v1, 4, 2
          v_and_b32 v10, 3, v1
          v_xor_b32 v9, v9, v10
          v_lshl_add_u32 v14, v9, 4, v8
          v_add_u32 v15, {16*896}, v14           ; rows 16..31
          s_mul_i32 s{sM}, s{sW}, 28672
          s_waitcnt lgkmcnt(0)""")
    srd(a, XS, 4, 2048 * 896)
    for p in range(14):
        for g in range(2):
            a(f"s_add_u32 m0, s{sM}, {p*2048 + g*1024 - p*64}")
            a(f"buffer_load_dwordx4 v{14+g}, {s(XS,4)}, 0 offen offset:{p*64} lds")
    a(f"""s_cmp_eq_u32 s{sTY}, 3
          s_cselect_b32 s{WS_}, s12, s6
          s_cselect_b32 s{WS_+1}, s13, s7
          s_mul_i32 s{WS_+2}, s{sROW}, 448
          s_mov_b32 s{WS_+3}, 0x20000
          v_lshrrev_b32 v8, 4, v1
          v_lshlrev_b32 v9, 2, v8
          v_sub_u32 v9, v1, v9
          v_and_b32 v9, 15, v9
          v_mul_u32_u24 v8, s{sROW}, v8
          v_lshl_add_u32 v7, v9, 4, v8
          v_mov_b32 v8, {OOB}
          v_cmp_gt_u32 vcc, 14, v9
          v_cndmask_b32 v7, v8, v7, vcc
          s_lshl_b32 s26, s{sW}, 4
          s_mul_i32 s26, s26, s{sROW}
          s_add_u32 s{sWO}, s{sWO}, s26
          s_lshl_b32 s{sRB4}, s{sROW}, 2
          s_mul_i32 s{sRB52}, s{sROW}, 52
          s_lshl_b32 s27, s{sW}, 12""")
    def wchunk(c):
        base = WB + c * 16384 if c < 3 else (c - 3) * 16384
        for u in range(4):
            a(f"s_add_u32 m0, s27, {base + u*1024}")
            a(f"buffer_load_dwordx4 v7, {s(WS_,4)}, s{sWO} offen lds")
            a(f"s_add_u32 s{sWO}, s{sWO}, s{sRB4 if u < 3 else sRB52}")
    for c in range(3): wchunk(c)
    srd(a, WD, 24, WS_END)
    tr_addrs(a, 2, sTS, sW, WB, perm=False)
    a(f"""v_and_b32 v8, 31, v1
          v_lshrrev_b32 v9, 5, v1
          v_bfe_u32 v10, v1, 2, 2
          v_xor_b32 v11, v9, v10
          v_lshlrev_b32 v8, 6, v8
          v_add_u32 v8, s{sM}, v8
          v_lshl_add_u32 v12, v11, 4, v8
          v_xor_b32 v13, 32, v12
          v_lshl_add_u32 v8, v10, 4, v8
          v_lshl_add_u32 v8, v9, 3, v8
          s_min_u32 s26, s{sCB}, 6
          s_lshl_b32 s26, s26, 12
          v_add_u32 v8, s26, v8
          v_xor_b32 v9, 16, v8
          v_xor_b32 v10, 32, v8
          v_xor_b32 v11, 48, v8
          s_waitcnt vmcnt(12)""")
    stamp(a, 2)
    for s_ in range(28):
        a(f"ds_read_b128 {v(XR+4*s_,4)}, v{12+(s_&1)} offset:{(s_>>1)*2048}")
        if s_ == 13: a("s_waitcnt lgkmcnt(6)")
    a("s_waitcnt lgkmcnt(6)")
    XD = CS
    XDr = [TMP, TMP + 4, WF + 32, WF + 36]
    for f in range(4):
        for e in range(2):
            a(f"ds_read_b64 {v(CS + 4*f + 2*e, 2)}, v{8 + 2*(f&1) + e} offset:{(f>>1)*2048}")
    a("s_waitcnt lgkmcnt(0)\ns_barrier")
    for c in range(3, 7): wchunk(c)
    a(f"""s_lshl_b32 s26, s{sRB}, 2
          s_add_u32 s26, s26, s{sW}
          s_mul_i32 s3, s26, 28
          s_lshl_b32 s27, s{sCB}, 2
          s_add_u32 s3, s3, s27
          s_lshl_b32 s3, s3, 10
          s_add_u32 s3, s3, {XF}
          s_cmp_lt_u32 s{sCB}, 7
          s_cselect_b32 s3, s3, {OOB}
          v_lshlrev_b32 v0, 4, v1""")
    for f in range(4):
        a(f"buffer_store_dwordx4 {v(CS+4*f,4)}, v0, {s(WD,4)}, s3 offen offset:{f*1024}")
    ONE = TMP
    for i in range(4): a(f"v_mov_b32 v{ONE+i}, 0x3f803f80")
    for i in range(112):
        c0 = "0" if i < 2 else f"v{8+(i&1)}"
        c1 = "0" if i < 2 else f"v{10+(i&1)}"
        a(f"v_dot2_f32_bf16 v{8+(i&1)}, v{XR+i}, v{ONE}, {c0}")
        a(f"v_dot2_f32_bf16 v{10+(i&1)}, v{XR+i}, v{XR+i}, {c1}")
    MU, VAR, SC, IS, M0_, M1_ = 12, 13, 14, 15, TMP+4, TMP+5
    a("v_add_f32 v12, v8, v9\nv_add_f32 v13, v10, v11")
    half_sum(a, 12, 8); half_sum(a, 13, 9)
    a(f"""v_mul_f32 v12, {fb(1/448)}, v12
          v_mul_f32 v13, {fb(1/448)}, v13
          v_fma_f32 v13, -v12, v12, v13
          v_max_f32 v13, 0, v13""")
    mu_frag(a, MU, sLO, M0_, M1_)
    bf16r(a, 8, "v13")
    a(f"v_add_f32 v8, {fb(EPS)}, v8")
    bf16r(a, 8, "v8")
    a("v_sqrt_f32 v8, v8")
    bf16r(a, 8, "v8")
    a(f"""v_add_f32 v9, {fb(EPS)}, v13
          v_mov_b32 v10, {fb(EPS)}
          v_fma_f32 v9, v9, v10, v13
          v_sqrt_f32 v9, v9
          v_mov_b32 v10, s{sLO}
          v_bfi_b32 v15, v10, v9, v8
          v_rcp_f32 v14, v15""")
    bf16r(a, 10, "v12")
    a(f"""v_mov_b32 v11, v14
          s_lshl_b32 s3, s26, 8
          s_add_u32 s3, s3, {ST1}
          s_cmp_eq_u32 s{sCB}, 0
          s_cselect_b32 s3, s3, {OOB}
          v_lshlrev_b32 v8, 3, v1
          v_and_b32 v8, 0xff, v8
          buffer_store_dwordx2 v[10:11], v8, {s(WD,4)}, s3 offen
          v_mov_b32 v{TMP+6}, v14
          v_mov_b32 v{TMP+7}, v15""")
    stamp(a, 3)
    waits = {c: [f"s_waitcnt vmcnt({min(63, 24 - 4*c + 5) if c < 6 else 5})", "s_barrier"] for c in range(7)}
    waits[3] += [f"v_add_u32 v{2+t}, {-WB & 0xffffffff}, v{2+t}" for t in range(5)]
    kloop(a, ONE, 2, lambda c: c * 16384 if c < 3 else (c - 3) * 16384, waits, perm=False)
    XCH = 0
    stamp(a, 4)
    mean_fix_hi(a, M0_, M1_, sW)
    R, DEN = TMP + 6, TMP + 7
    a(f"""s_lshl_b32 s26, s{sRB}, 2
          s_add_u32 s26, s26, s{sW}
          v_lshrrev_b32 v8, 5, v1
          v_add_u32 v8, -1, v8                   ; lanes<32: -1
          s_cmp_eq_u32 s{sTY}, 3
          s_cbranch_scc1 P1_h""")
    a(f"""s_cmp_eq_u32 s{sTY}, 0
          s_cselect_b32 s3, {fb(QSCALE)}, 1.0
          v_mul_f32 v10, s3, v{R}
          s_cmp_eq_u32 s{sTY}, 1
          s_cselect_b32 s27, 0x3f803f80, 0
          s_cselect_b32 s3, 0x3f80, 0
          s_cmp_eq_u32 s{sTY}, 2
          s_cselect_b32 s27, 0x3f80, s27
          v_mov_b32 v12, s27
          v_mov_b32 v13, s3""")
    for t in range(4):
        for i in range(8): a(f"v_pk_mul_f32 {v(ACC+16*t+2*i,2)}, {v(ACC+16*t+2*i,2)}, v[10:11] op_sel_hi:[1,0]")
        for i in range(8): a(f"v_cvt_pk_bf16_f32 v{XR+8*t+i}, v{ACC+16*t+2*i}, v{ACC+16*t+2*i+1}")
        a(f"v_bfi_b32 v{XR+8*t+6}, v8, v{XR+8*t+6}, v12\nv_bfi_b32 v{XR+8*t+7}, v8, v{XR+8*t+7}, v13")
    a(f"""s_cmp_eq_u32 s{sTY}, 2
          s_cbranch_scc0 P1_qk""")
    VT = 65536 + 1024
    a(f"""s_mul_i32 s3, s{sW}, 9216
          s_add_u32 s3, s3, {VT}
          v_and_b32 v9, 31, v1
          v_mul_u32_u24 v9, 72, v9
          v_lshrrev_b32 v10, 5, v1
          v_lshl_add_u32 v9, v10, 3, v9
          v_add_u32 v9, s3, v9
          v_bfe_u32 v11, v1, 2, 2
          v_lshl_add_u32 v10, v10, 2, v11        ; token 4h+r
          v_mul_u32_u24 v10, 72, v10
          v_bfe_u32 v11, v1, 4, 1
          v_lshl_add_u32 v10, v11, 5, v10
          v_and_b32 v11, 3, v1
          v_lshl_add_u32 v10, v11, 3, v10
          v_add_u32 v10, s3, v10""")
    for t in range(4):
        for j in range(4): a(f"ds_write_b64 v9, {v(XR+8*t+2*j,2)} offset:{t*2304 + 16*j}")
    a("s_waitcnt lgkmcnt(0)")
    for t in range(4):
        for f in range(2):
            for e in range(2): a(f"ds_read_b64_tr_b16 {v(XR+8*t+4*f+2*e,2)}, v10 offset:{t*2304 + (16*f+8*e)*72}")
    a("s_waitcnt lgkmcnt(0)")
    a.label("P1_qk")
    a(f"""s_lshl_b32 s3, s{sSUB}, 8
          s_add_u32 s3, s3, s26
          s_cmp_eq_u32 s{sTY}, 0
          s_cselect_b32 s27, 11, 12
          s_lshl_b32 s3, s3, s27
          s_lshl_b32 s26, 64, s27
          s_lshl_b32 s27, s{sTY}, 11
          s_add_u32 s27, s27, {KVF - 2048}
          s_cmp_eq_u32 s{sTY}, 0
          s_cselect_b32 s27, {QF}, s27
          s_add_u32 s3, s3, s27""")
    for t in range(4):
        for f in range(2): a(f"buffer_store_dwordx4 {v(XR+8*t+4*f,4)}, v0, {s(WD,4)}, s3 offen offset:{f*1024}")
        if t < 3: a("s_add_u32 s3, s3, s26")
    stamp(a, 5); stamp_out(a, 0, WD)
    a("s_endpgm")
    a.label("P1_h")
    a(f"""v_mul_f32 v10, {fb(GK1)}, v{R}
          v_mul_f32 v12, v{R}, v{R}
          v_mul_f32 v12, v12, v{R}
          v_mul_f32 v12, {fb(GK2)}, v12
          v_mov_b32 v14, v{DEN}
          s_mul_i32 s3, s26, 28
          s_mul_i32 s27, s{sSUB}, 7
          s_add_u32 s3, s3, s27
          s_lshl_b32 s3, s3, 10
          s_add_u32 s3, s3, {HF}
          s_add_u32 s27, s3, 4096""")
    for f in range(7):
        gelu_pairs(a, [ACC + 8*f + 2*i for i in range(4)], 10, 12, 14, WF)
        for i in range(4): a(f"v_cvt_pk_bf16_f32 v{XR+4*f+i}, v{ACC+8*f+2*i}, v{ACC+8*f+2*i+1}")
        a(f"buffer_store_dwordx4 {v(XR+4*f,4)}, v0, {s(WD,4)}, s{3 if f < 4 else 27} offen offset:{(f&3)*1024}")
    stamp(a, 5); stamp_out(a, 0, WD)
    a.label("P1_end")
    a("s_endpgm")
    return a

def mean_fix_hi(a, vMU0, vMU1, sW, xch=65536):
    T = WF
    a(f"""v_cvt_pk_bf16_f32 v{T}, v{CS}, v{CS}
          v_and_b32 v{T+1}, 0xffff0000, v{T}
          v_sub_f32 v{T+1}, v{CS}, v{T+1}
          v_cvt_pk_bf16_f32 v{T}, v{CS}, v{T+1}
          v_and_b32 v8, 31, v1
          v_lshlrev_b32 v8, 2, v8
          v_add_u32 v8, {xch}, v8
          s_lshl_b32 s26, s{sW}, 7
          v_add_u32 v9, s26, v8
          ds_write_b32 v9, v{T}
          s_waitcnt lgkmcnt(0)
          s_barrier""")
    for t in range(4): a(f"ds_read_b32 v{T+4*t}, v8 offset:{128*t}")
    a(f"v_mov_b32 v{T+16}, v{vMU0}\nv_mov_b32 v{T+17}, v{vMU1}\nv_mov_b32 v{T+18}, 0\nv_mov_b32 v{T+19}, 0")
    for t in range(4): a(f"v_mov_b32 v{T+4*t+2}, 0\nv_mov_b32 v{T+4*t+3}, 0")
    a("s_waitcnt lgkmcnt(0)")
    for t in range(4): a(f"v_and_b32 v{T+4*t+1}, 0xffff, v{T+4*t}")
    for t in range(4): a(f"{MF} {v(ACC+16*t,16)}, {v(T+4*t,4)}, {v(T+16,4)}, {v(ACC+16*t,16)}")

def g3():
    a = A()
    sRB, sCB, sW, sTS, sWO, sLO, sT, sXO = 44, 45, 46, 50, 51, 55, 56, 57
    WS_, WD = 32, 36
    a("s_cmp_ge_u32 s2, 224\ns_cbranch_scc1 G3_end")
    load_args(a)
    a(f"""v_and_b32 v1, 63, v0
          v_lshrrev_b32 v8, 6, v0
          s_and_b32 s26, s2, 7
          s_lshr_b32 s27, s2, 3
          v_readfirstlane_b32 s{sW}, v8
          s_lshl_b32 s{sRB}, s26, 1
          s_and_b32 s3, s27, 1
          s_add_u32 s{sRB}, s{sRB}, s3
          s_lshr_b32 s{sCB}, s27, 1
          s_mov_b32 s{sTS}, 8
          s_mov_b32 s{sLO}, -1
          s_lshl_b32 s{sT}, s{sRB}, 2
          s_add_u32 s{sT}, s{sT}, s{sW}
          v_lshlrev_b32 v0, 4, v1
          v_lshrrev_b32 v8, 4, v1
          v_lshlrev_b32 v9, 2, v8
          v_sub_u32 v9, v1, v9
          v_and_b32 v9, 15, v9
          v_mul_u32_u24 v8, 3584, v8
          v_lshl_add_u32 v7, v9, 4, v8
          s_mul_i32 s{sWO}, s{sW}, {16*3584}
          s_lshl_b32 s26, s{sCB}, 8
          s_add_u32 s{sWO}, s{sWO}, s26
          s_lshl_b32 s27, s{sW}, 12
          s_mul_i32 s{sXO}, s{sT}, {28*1024}
          s_add_u32 s{sXO}, s{sXO}, {X1F}
          v_lshrrev_b32 v8, 5, v1
          v_mul_u32_u24 v8, {7*256}, v8
          v_and_b32 v9, 31, v1
          v_lshl_add_u32 v8, v9, 3, v8
          s_mul_i32 s3, s{sT}, {14*256}
          s_add_u32 s3, s3, {ST3}
          s_waitcnt lgkmcnt(0)""")
    srd(a, WS_, 16, 448 * 3584)
    srd(a, WD, 24, WS_END)
    for i in range(7): a(f"buffer_load_dwordx2 {v(CS+2*i,2)}, v8, {s(WD,4)}, s3 offen offset:{i*256}")
    for c in range(7):
        for u in range(4):
            a(f"s_add_u32 m0, s27, {c*16384 + u*1024}")
            a(f"buffer_load_dwordx4 v7, {s(WS_,4)}, s{sWO} offen lds")
            a(f"s_add_u32 s{sWO}, s{sWO}, {4*3584 if u < 3 else 52*3584}")
        for u in range(4):
            a(f"buffer_load_dwordx4 {v(XR+16*c+4*u,4)}, v0, {s(WD,4)}, s{sXO} offen offset:{u*1024}")
        a(f"s_add_u32 s{sXO}, s{sXO}, 4096")
    tr_addrs(a, 2, sTS, sW, 0, perm=True)
    ONE = TMP
    for i in range(4): a(f"v_mov_b32 v{ONE+i}, 0x3f803f80")
    stamp(a, 2)
    a("s_waitcnt vmcnt(56)")
    for i in range(1, 7): a(f"v_pk_add_f32 {v(CS,2)}, {v(CS,2)}, {v(CS+2*i,2)}")
    a(f"v_mov_b32 v12, v{CS}\nv_mov_b32 v13, v{CS+1}")
    half_sum(a, 12, 8); half_sum(a, 13, 9)
    M0_, M1_, R, DEN = TMP+4, TMP+5, TMP+6, TMP+7
    a(f"""v_mul_f32 v12, {fb(1/448)}, v12
          v_mul_f32 v13, {fb(1/448)}, v13
          v_fma_f32 v13, -v12, v12, v13
          v_max_f32 v13, 0, v13
          v_add_f32 v13, {fb(EPS)}, v13
          v_sqrt_f32 v{DEN}, v13
          v_rsq_f32 v{R}, v13""")
    mu_frag(a, 12, sLO, M0_, M1_)
    stamp(a, 3)
    waits = {c: [f"s_waitcnt vmcnt({48 - 8*c})", "s_barrier"] for c in range(7)}
    waits[4] += [f"v_add_u32 v{2+t}, 0x10000, v{2+t}" for t in range(5)]
    kloop(a, ONE, 2, lambda c: (c & 3) * 16384, waits, perm=True)
    stamp(a, 4)
    mean_fix_hi(a, M0_, M1_, sW, xch=7*16384)
    a(f"""v_mul_f32 v10, {fb(GK1)}, v{R}
          v_mul_f32 v12, v{R}, v{R}
          v_mul_f32 v12, v12, v{R}
          v_mul_f32 v12, {fb(GK2)}, v12
          v_mov_b32 v14, v{DEN}
          s_mul_i32 s3, s{sT}, 112
          s_lshl_b32 s27, s{sCB}, 3
          s_add_u32 s3, s3, s27
          s_lshl_b32 s3, s3, 10
          s_add_u32 s3, s3, {HHF}
          s_add_u32 s27, s3, 4096""")
    for f in range(8):
        gelu_pairs(a, [ACC + 8*f + 2*i for i in range(4)], 10, 12, 14, WF)
        for i in range(4): a(f"v_cvt_pk_bf16_f32 v{XR+4*f+i}, v{ACC+8*f+2*i}, v{ACC+8*f+2*i+1}")
        a(f"buffer_store_dwordx4 {v(XR+4*f,4)}, v0, {s(WD,4)}, s{3 if f < 4 else 27} offen offset:{(f&3)*1024}")
    stamp(a, 5); stamp_out(a, 2, WD)
    a.label("G3_end")
    a("s_endpgm")
    return a
```

```python
import math, struct
from asmx import *

QF, KVF, HF, XF, X1F, OF, HHF, ST1, ST3 = 0x0, 0x200000, 0x600000, 0x800000, 0xA00000, 0xC00000, 0xE00000, 0x1500000, 0x1510000
WS_END = 0x1600000
def fb(x): return "0x%08x" % struct.unpack("<I", struct.pack("<f", x))[0]
EPS = 1e-5
QSCALE = 28 ** -0.5 * math.log2(math.e)
GK1 = -2.0 * math.sqrt(2.0 / math.pi) * math.log2(math.e)
GK2 = GK1 * 0.044715
OOB = 0x80000000

def load_args(a):
    stamp(a, 0, True); stamp(a, 1)
    a("""s_load_dwordx16 s[4:19], s[0:1], 0
         s_load_dwordx4 s[20:23], s[0:1], 64
         s_load_dwordx2 s[24:25], s[0:1], 80""")

def srd(a, d, base, nbytes):
    a(f"s_mov_b32 s{d}, s{base}\ns_mov_b32 s{d+1}, s{base+1}")
    a(f"s_mov_b32 s{d+2}, {nbytes}\ns_mov_b32 s{d+3}, 0x20000")

def half_sum(a, r, t):
    a(f"v_mov_b32 v{t}, v{r}")
    a(f"v_permlane32_swap_b32 v{r}, v{t}")
    a(f"v_add_f32 v{r}, v{r}, v{t}")

def bf16r(a, d, src):
    a(f"v_cvt_pk_bf16_f32 v{d}, {src}, {src}")
    a(f"v_and_b32 v{d}, 0xffff0000, v{d}")

def gelu_pairs(a, regs, K1, K2, IS, T):
    n = len(regs)
    for i, r in enumerate(regs): a(f"v_pk_mul_f32 {v(T+2*i,2)}, {v(r,2)}, {v(r,2)}")
    for i, r in enumerate(regs): a(f"v_pk_fma_f32 {v(T+2*i,2)}, {v(T+2*i,2)}, {v(K2,2)}, {v(K1,2)} op_sel_hi:[1,0,0]")
    for i, r in enumerate(regs): a(f"v_pk_mul_f32 {v(T+2*i,2)}, {v(T+2*i,2)}, {v(r,2)}")
    for i in range(2*n): a(f"v_exp_f32 v{T+i}, v{T+i}")
    for i, r in enumerate(regs): a(f"v_pk_fma_f32 {v(T+2*i,2)}, {v(T+2*i,2)}, {v(IS,2)}, {v(IS,2)} op_sel_hi:[1,0,0]")
    for i in range(2*n): a(f"v_rcp_f32 v{T+i}, v{T+i}")
    for i, r in enumerate(regs): a(f"v_pk_mul_f32 {v(r,2)}, {v(T+2*i,2)}, {v(r,2)}")

MF = "v_mfma_f32_32x32x16_bf16"

STAMPS = False
TS = 0x15A0000
MINI = False
def stamp(a, i, real=False):
    if STAMPS and (not MINI or i in (0, 1, 6, 7)): a(f"{'s_memrealtime' if real else 's_memtime'} s[{64+2*i}:{65+2*i}]")
def stamp_out(a, kidx, srdreg, n=8):
    if not STAMPS: return
    a("s_waitcnt vmcnt(0)")
    stamp(a, 6); stamp(a, 7, True)
    a("s_waitcnt lgkmcnt(0)")
    for i in range(8): a(f"v_mov_b32 v{16+i}, s{64+2*i}")
    a(f"""s_lshl_b32 s3, s2, 2
          s_add_u32 s3, s3, s46
          s_lshl_b32 s3, s3, 5
          s_add_u32 s3, s3, {TS + kidx*32768}
          v_mov_b32 v8, 0
          buffer_store_dwordx4 v[16:19], v8, s[{srdreg}:{srdreg+3}], s3 offen
          buffer_store_dwordx4 v[20:23], v8, s[{srdreg}:{srdreg+3}], s3 offen offset:16""")
```

```python
from common import *

ACC, WF, AR, EP = 16, 80, 96, 160
sRB, sCB, sW, sM, sT = 44, 45, 46, 47, 48

def head(a, end):
    a(f"s_cmp_ge_u32 s2, 224\ns_cbranch_scc1 {end}")
    load_args(a)
    a(f"""v_and_b32 v1, 63, v0
          v_lshrrev_b32 v8, 6, v0
          s_and_b32 s26, s2, 7
          s_lshr_b32 s27, s2, 3
          v_readfirstlane_b32 s{sW}, v8
          s_lshl_b32 s{sRB}, s26, 2
          s_and_b32 s3, s27, 3
          s_add_u32 s{sRB}, s{sRB}, s3
          s_lshr_b32 s{sCB}, s27, 2
          s_lshl_b32 s{sM}, s{sW}, 14
          v_lshlrev_b32 v0, 4, v1
          v_lshrrev_b32 v8, 3, v1
          v_bfe_u32 v9, v1, 4, 1
          v_lshlrev_b32 v9, 2, v9
          v_and_b32 v10, 7, v1
          v_xor_b32 v9, v9, v10
          v_mul_u32_u24 v8, 896, v8
          v_lshl_add_u32 v7, v9, 4, v8
          v_lshrrev_b32 v8, 5, v1                ; h
          v_bfe_u32 v9, v1, 2, 2                 ; r
          v_lshl_add_u32 v8, v8, 2, v9
          v_lshlrev_b32 v8, 7, v8
          v_bfe_u32 v10, v1, 4, 1
          v_bfe_u32 v11, v1, 1, 1
          v_lshl_add_u32 v10, v10, 1, v11
          v_bfe_u32 v11, v1, 3, 1
          v_lshl_add_u32 v10, v11, 2, v10        ; xor 4*(r>>1)
          v_lshl_add_u32 v8, v10, 4, v8
          v_and_b32 v11, 1, v1
          v_lshl_add_u32 v8, v11, 3, v8
          v_add_u32 v2, s{sM}, v8
          v_xor_b32 v3, 64, v2
          s_lshr_b32 s3, s{sW}, 1
          s_lshl_b32 s{sT}, s{sRB}, 1
          s_add_u32 s{sT}, s{sT}, s3""")

def wreads(a, buf, off):
    for ft in range(2):
        for e in range(2):
            a(f"ds_read_b64_tr_b16 {v(WF+8*buf+4*ft+2*e,2)}, v{2+ft} offset:{off + 8*e*128}")

def mfmas(a, buf, act0, act1, first):
    for tt, ar in enumerate((act0, act1)):
        for ft in range(2):
            u = 2*tt + ft
            a(f"{MF} {v(ACC+16*u,16)}, {v(WF+8*buf+4*ft,4)}, {v(ar,4)}, {'0' if first else v(ACC+16*u,16)}")

def reduce4(a):
    a(f"v_add_u32 v8, s{sM}, v0")
    for u in range(4):
        for j in range(4): a(f"ds_write_b128 v8, {v(ACC+16*u+4*j,4)} offset:{u*4096 + j*1024}")
    a(f"""s_lshl_b32 s3, s{sW}, 12
          v_add_u32 v8, s3, v0
          s_waitcnt lgkmcnt(0)
          s_barrier""")
    for w in range(4):
        for j in range(4): a(f"ds_read_b128 {v(ACC+16*w+4*j,4)}, v8 offset:{w*16384 + j*1024}")
    a("s_waitcnt lgkmcnt(8)")
    for i in range(8): a(f"v_pk_add_f32 {v(ACC+2*i,2)}, {v(ACC+2*i,2)}, {v(ACC+16+2*i,2)}")
    a("s_waitcnt lgkmcnt(0)")
    for i in range(8): a(f"v_pk_add_f32 {v(ACC+32+2*i,2)}, {v(ACC+32+2*i,2)}, {v(ACC+48+2*i,2)}")
    for i in range(8): a(f"v_pk_add_f32 {v(ACC+2*i,2)}, {v(ACC+2*i,2)}, {v(ACC+32+2*i,2)}")

def unpack(a, dst, src, n):
    for i in range(n):
        a(f"v_lshlrev_b32 v{dst+2*i}, 16, v{src+i}\nv_and_b32 v{dst+2*i+1}, 0xffff0000, v{src+i}")

def tile_off(a, d, base):
    a(f"""s_mul_i32 s{d}, s{sT}, 28
          s_lshl_b32 s3, s{sCB}, 2
          s_add_u32 s{d}, s{d}, s3
          s_and_b32 s3, s{sW}, 1
          s_lshl_b32 s3, s3, 1
          s_add_u32 s{d}, s{d}, s3
          s_lshl_b32 s{d}, s{d}, 10
          s_add_u32 s{d}, s{d}, {base}""")

def g2():
    a = A()
    WS_, WD = 32, 36
    sWO, sA0, sA1, sX = 50, 51, 52, 53
    head(a, "G2_end")
    a(f"""s_mul_i32 s{sWO}, s{sW}, {112*896}
          s_lshl_b32 s3, s{sCB}, 7
          s_add_u32 s{sWO}, s{sWO}, s3
          s_mul_i32 s{sA0}, s{sRB}, 56
          s_mul_i32 s3, s{sW}, 7
          s_add_u32 s{sA0}, s{sA0}, s3
          s_lshl_b32 s{sA0}, s{sA0}, 10
          s_add_u32 s{sA0}, s{sA0}, {HF}
          s_add_u32 s{sA1}, s{sA0}, {28*1024}""")
    tile_off(a, sX, XF)
    a("s_waitcnt lgkmcnt(0)")
    srd(a, WS_, 14, 448 * 896)
    srd(a, WD, 24, WS_END)
    for s_ in range(7):
        for u in range(2):
            a(f"s_add_u32 m0, s{sM}, {s_*2048 + u*1024}")
            a(f"buffer_load_dwordx4 v7, {s(WS_,4)}, s{sWO} offen lds")
            a(f"s_add_u32 s{sWO}, s{sWO}, {8*896}")
        a(f"buffer_load_dwordx4 {v(AR+8*s_,4)}, v0, {s(WD,4)}, s{sA0} offen offset:{(s_&3)*1024}")
        a(f"buffer_load_dwordx4 {v(AR+8*s_+4,4)}, v0, {s(WD,4)}, s{sA1} offen offset:{(s_&3)*1024}")
        if s_ == 3: a(f"s_add_u32 s{sA0}, s{sA0}, 4096\ns_add_u32 s{sA1}, s{sA1}, 4096")
    a(f"""buffer_load_dwordx4 {v(EP,4)}, v0, {s(WD,4)}, s{sX} offen
          buffer_load_dwordx4 {v(EP+4,4)}, v0, {s(WD,4)}, s{sX} offen offset:1024
          v_lshlrev_b32 v8, 3, v1
          v_and_b32 v6, 0xff, v8
          s_lshl_b32 s3, s{sT}, 8
          s_add_u32 s3, s3, {ST1}
          buffer_load_dwordx2 {v(EP+8,2)}, v6, {s(WD,4)}, s3 offen""")
    stamp(a, 2)
    a(f"s_waitcnt vmcnt({24+3})")
    stamp(a, 3)
    wreads(a, 0, 0)
    for s_ in range(7):
        if s_ < 6:
            a(f"s_waitcnt vmcnt({4*(5-s_)+3})")
            wreads(a, (s_+1) & 1, (s_+1)*2048)
            a("s_waitcnt lgkmcnt(4)")
        else:
            a("s_waitcnt lgkmcnt(0)")
        mfmas(a, s_ & 1, AR+8*s_, AR+8*s_+4, s_ == 0)
    stamp(a, 4)
    reduce4(a)
    a("s_waitcnt vmcnt(0)")
    U = ACC + 16
    unpack(a, U, EP, 8)
    for i in range(8): a(f"v_pk_add_f32 {v(U+2*i,2)}, {v(U+2*i,2)}, {v(EP+8,2)} op_sel_hi:[1,0] neg_lo:[0,1] neg_hi:[0,1]")
    for i in range(8): a(f"v_pk_fma_f32 {v(U+2*i,2)}, {v(U+2*i,2)}, {v(EP+8,2)}, {v(ACC+2*i,2)} op_sel:[0,1,0] op_sel_hi:[1,1,1]")
    for i in range(8): a(f"v_cvt_pk_bf16_f32 v{EP+i}, v{U+2*i}, v{U+2*i+1}")
    a(f"s_add_u32 s{sX}, s{sX}, {X1F - XF}")
    a(f"buffer_store_dwordx4 {v(EP,4)}, v0, {s(WD,4)}, s{sX} offen")
    a(f"buffer_store_dwordx4 {v(EP+4,4)}, v0, {s(WD,4)}, s{sX} offen offset:1024")
    a("v_mov_b32 v12, 0x3f803f80")
    for i in range(8):
        a(f"v_dot2_f32_bf16 v10, v{EP+i}, v12, {'0' if i == 0 else 'v10'}")
        a(f"v_dot2_f32_bf16 v11, v{EP+i}, v{EP+i}, {'0' if i == 0 else 'v11'}")
    half_sum(a, 10, 8); half_sum(a, 11, 9)
    a(f"""s_mul_i32 s3, s{sT}, 14
          s_lshl_b32 s26, s{sCB}, 1
          s_add_u32 s3, s3, s26
          s_and_b32 s26, s{sW}, 1
          s_add_u32 s3, s3, s26
          s_lshl_b32 s3, s3, 8
          s_add_u32 s3, s3, {ST3}
          buffer_store_dwordx2 v[10:11], v6, {s(WD,4)}, s3 offen""")
    stamp(a, 5); stamp_out(a, 1, WD)
    a.label("G2_end")
    a("s_endpgm")
    return a

def fin():
    a = A()
    W4, WD, WO, OUT = 32, 36, 40, 28
    sWO, sA0, sA1, sX = 50, 51, 52, 53
    head(a, "FIN_end")
    a(f"""s_mul_i32 s{sWO}, s{sW}, {448*896}
          s_lshl_b32 s3, s{sCB}, 7
          s_add_u32 s{sWO}, s{sWO}, s3
          s_mul_i32 s{sA0}, s{sRB}, 224
          s_mul_i32 s3, s{sW}, 28
          s_add_u32 s{sA0}, s{sA0}, s3
          s_lshl_b32 s{sA0}, s{sA0}, 10
          s_add_u32 s{sA0}, s{sA0}, {HHF}
          s_add_u32 s{sA1}, s{sA0}, {112*1024}""")
    tile_off(a, sX, XF)
    a("s_waitcnt lgkmcnt(0)")
    srd(a, W4, 18, 1792 * 896)
    srd(a, WO, 8, 448 * 896)
    srd(a, WD, 24, WS_END)
    srd(a, OUT, 20, 2048 * 896)
    NC = 18
    def issue(c):
        sl = c & 3
        if c == 14:
            a(f"""s_mul_i32 s{sWO}, s{sW}, {112*896}
                  s_lshl_b32 s3, s{sCB}, 7
                  s_add_u32 s{sWO}, s{sWO}, s3
                  s_lshl_b32 s{sA0}, s{sRB}, 6
                  s_lshl_b32 s3, s{sW}, 3
                  s_add_u32 s{sA0}, s{sA0}, s3
                  s_lshl_b32 s{sA0}, s{sA0}, 10
                  s_add_u32 s{sA0}, s{sA0}, {OF}
                  s_add_u32 s{sA1}, s{sA0}, {32*1024}""")
        for u in range(4):
            a(f"s_add_u32 m0, s{sM}, {sl*4096 + u*1024}")
            a(f"buffer_load_dwordx4 v7, {s(W4 if c < 14 else WO,4)}, s{sWO} offen lds")
            a(f"s_add_u32 s{sWO}, s{sWO}, {8*896 if (c < 14 or u < 3) else 4*896}")
        for k in range(2):
            a(f"buffer_load_dwordx4 {v(AR+16*sl+8*k,4)}, v0, {s(WD,4)}, s{sA0} offen offset:{k*1024}")
            a(f"buffer_load_dwordx4 {v(AR+16*sl+8*k+4,4)}, v0, {s(WD,4)}, s{sA1} offen offset:{k*1024}")
        a(f"s_add_u32 s{sA0}, s{sA0}, 2048\ns_add_u32 s{sA1}, s{sA1}, 2048")
    a(f"""buffer_load_dwordx4 {v(EP,4)}, v0, {s(WD,4)}, s{sX} offen
          buffer_load_dwordx4 {v(EP+4,4)}, v0, {s(WD,4)}, s{sX} offen offset:1024
          s_add_u32 s{sX}, s{sX}, {X1F - XF}
          buffer_load_dwordx4 {v(EP+8,4)}, v0, {s(WD,4)}, s{sX} offen
          buffer_load_dwordx4 {v(EP+12,4)}, v0, {s(WD,4)}, s{sX} offen offset:1024""")
    for c in range(3): issue(c)
    stamp(a, 2)
    for c in range(NC):
        sl = c & 3
        left = min(NC - 1 - c, 2)
        a(f"s_waitcnt vmcnt({8*left})")
        if c == 0: stamp(a, 3)
        wreads(a, 0, sl*4096)
        wreads(a, 1, sl*4096 + 2048)
        if c + 3 < NC: issue(c + 3)
        a("s_waitcnt lgkmcnt(4)")
        mfmas(a, 0, AR+16*sl, AR+16*sl+4, c == 0)
        a("s_waitcnt lgkmcnt(0)")
        mfmas(a, 1, AR+16*sl+8, AR+16*sl+12, False)
    stamp(a, 4)
    reduce4(a)
    U = ACC + 16
    unpack(a, U, EP, 16)
    for i in range(8): a(f"v_pk_add_f32 {v(U+2*i,2)}, {v(U+2*i,2)}, {v(U+16+2*i,2)}")
    for i in range(8): a(f"v_pk_add_f32 {v(U+2*i,2)}, {v(U+2*i,2)}, {v(ACC+2*i,2)}")
    for i in range(8): a(f"v_cvt_pk_bf16_f32 v{EP+i}, v{U+2*i}, v{U+2*i+1}")
    a(f"""v_and_b32 v8, 31, v1
          v_mul_u32_u24 v8, 896, v8
          v_lshrrev_b32 v9, 5, v1
          v_lshl_add_u32 v8, v9, 4, v8
          s_mul_i32 s3, s{sT}, {32*896}
          s_lshl_b32 s26, s{sCB}, 7
          s_add_u32 s3, s3, s26
          s_and_b32 s26, s{sW}, 1
          s_lshl_b32 s26, s26, 6
          s_add_u32 s3, s3, s26""")
    for jj in range(2):
        a(f"v_permlane32_swap_b32 v{EP+4*jj}, v{EP+4*jj+2}\nv_permlane32_swap_b32 v{EP+4*jj+1}, v{EP+4*jj+3}")
        a(f"buffer_store_dwordx4 {v(EP+4*jj,4)}, v8, {s(OUT,4)}, s3 offen offset:{32*jj}")
    stamp(a, 5); stamp_out(a, 4, WD)
    a.label("FIN_end")
    a("s_endpgm")
    return a
```

```python
import sys
from common import *
import big, small, att
HDR = open("parallel_sum__mha_block__mixer_s_mlp__prompt.s.ref").read().split("; Override launch")[0]
def probe(ptr_off, n, stride, nbytes, base=0):
    a = A()
    a(f"""s_cmp_ge_u32 s2, 1
          s_cbranch_scc1 PR_end
          s_load_dwordx2 s[4:5], s[0:1], {ptr_off}
          s_waitcnt lgkmcnt(0)""")
    srd(a, 8, 4, nbytes)
    a(f"s_mov_b32 s12, {n}\ns_mov_b32 s13, {base}\nv_mov_b32 v1, 0")
    a.label("PR_l")
    a(f"""buffer_load_dword v2, v1, s[8:11], s13 offen
          s_waitcnt vmcnt(0)
          s_add_u32 s13, s13, {stride}
          s_sub_u32 s12, s12, 1
          s_cmp_lg_u32 s12, 0
          s_cbranch_scc1 PR_l""")
    a.label("PR_end")
    a("s_endpgm")
    return a
which = sys.argv[2]
pk = {"bx": (24, 200, 8320, 2048*896), "w4": (56, 200, 7808, 1792*896), "ws": (80, 200, 8320, 1<<28, 100<<20), "none": (24, 1, 0, 4096), "out": (64, 200, 8320, 2048*896)}[which]
ks = [("probe_kernel", probe(*pk), 1, 0, 8), ("p1_kernel", big.p1(), 256, 163840, 256), ("g2_kernel", small.g2(), 224, 65536, 176), ("g3_kernel", big.g3(), 224, 115200, 256),
      ("att_kernel", att.att(), 256, 65536, 224), ("fin_kernel", small.fin(), 224, 65536, 176)]
out = HDR
for n, _, g, l, _ in ks: out += f"; @launch kernel={n} grid=({g},1,1) block=({64 if n.startswith('probe') else 256},1,1) lds={l}\n"
out += '.amdgcn_target "amdgcn-amd-amdhsa--gfx950"\n'
for n, a, *_ in ks: out += kernel_head(n) + a.text()
for n, _, _, _, vg in ks: out += kernel_desc(n, vgpr=vg, sgpr=64)
open(sys.argv[1], "w").write(out)
```

```python
import sys
import common
from common import *

FLG = 0x1550000
FP, F2, F3, FA = FLG, FLG + 0x1000, FLG + 0x2000, FLG + 0x3000
XS, WA, WD, WB_ = 28, 32, 36, 40
sW, sSPIN = 46, 58
SC = " sc1"
CNT = 156 * 1024
SPIN_MAX = 1 << 16
DEBUG = "dbg" in sys.argv[1] if len(sys.argv) > 1 else False
if DEBUG: WS_END = 0x3000000

def poll(a, vaddr, nlanes, srdreg=WD, soff="0"):
    L, D = a.newlabel("PL"), a.newlabel("PD")
    a(f"s_mov_b32 s{sSPIN}, {SPIN_MAX}")
    a(f"s_mov_b64 exec, {(1 << nlanes) - 1}" if nlanes <= 6 else f"s_bfm_b64 exec, {nlanes}, 0")
    a.label(L)
    a(f"""buffer_load_dword v9, v{vaddr}, {s(srdreg,4)}, {soff} offen sc1
          s_waitcnt vmcnt(0)
          v_cmp_eq_u32 vcc, 0, v9
          s_cbranch_vccz {D}
          s_sleep 1
          s_sub_u32 s{sSPIN}, s{sSPIN}, 1
          s_cmp_lg_u32 s{sSPIN}, 0
          s_cbranch_scc1 {L}""")
    a.label(D)
    a("s_mov_b64 exec, -1")

def signal(a, soff):
    a(f"""s_mov_b64 exec, 1
          v_mov_b32 v8, 0
          v_mov_b32 v9, 1
          buffer_store_dword v9, v8, {s(WD,4)}, s{soff} offen sc1
          s_mov_b64 exec, -1""")

def garrive(a, off):
    a(f"""s_mov_b64 exec, 1
          v_mov_b32 v8, {CNT + off}
          v_mov_b32 v9, 1
          ds_add_u32 v8, v9
          s_mov_b64 exec, -1""")

def gwait(a, off, target):
    L, D = a.newlabel("GL"), a.newlabel("GD")
    a(f"s_mov_b32 s{sSPIN}, {SPIN_MAX * 8}\nv_mov_b32 v8, {CNT + off}")
    a.label(L)
    a(f"""ds_read_b32 v9, v8
          s_sub_u32 s{sSPIN}, s{sSPIN}, 1
          s_cbranch_scc1 {D}
          s_waitcnt lgkmcnt(0)
          v_readfirstlane_b32 s3, v9
          s_cmp_lt_u32 s3, {target}
          s_cbranch_scc1 {L}""")
    a.label(D)
    a("s_waitcnt lgkmcnt(0)")

def gbar(a, off, target):
    a("s_waitcnt lgkmcnt(0)")
    garrive(a, off); gwait(a, off, target)

def kloop(a, ACC, WF, XR, vA, nt, offs, pre, perm, ones=None, CS=None):
    def rd(s_, t):
        for e in range(2):
            row = 16 * (s_ & 3) + (8 * e if perm else 4 * e)
            a(f"ds_read_b64_tr_b16 {v(WF + 4*nt*(s_&1) + 4*t + 2*e, 2)}, v{vA+t} offset:{offs(s_ >> 2) + row*256}")
    for x in pre.get(0, []): a(x)
    for t in range(nt): rd(0, t)
    for s_ in range(28):
        last = s_ == 27
        if not last and ((s_ + 1) & 3) == 0:
            for x in pre.get((s_ + 1) >> 2, []): a(x)
        for t in range(nt):
            a(f"s_waitcnt lgkmcnt({2*nt - 2 if not last else 2*(nt - 1 - t)})")
            w = v(WF + 4*nt*(s_&1) + 4*t, 4)
            if t < 4: a(f"{MF} {v(ACC+16*t,16)}, {w}, {v(XR+4*s_,4)}, {'0' if s_ == 0 else v(ACC+16*t,16)}")
            else: a(f"{MF} {v(CS,16)}, {v(ones,4)}, {w}, {'0' if s_ == 0 else v(CS,16)}")
            if not last: rd(s_ + 1, t)

def tr_addrs(a, vA, sTS, base, perm, n=5):
    a(f"""v_lshrrev_b32 v8, 5, v1
          v_bfe_u32 v9, v1, 2, 2
          v_bfe_u32 v10, v1, 4, 1
          v_and_b32 v11, 3, v1
          v_lshl_add_u32 v10, v10, 2, v11
          v_lshl_add_u32 v8, v8, {2 if perm else 3}, v9
          v_lshlrev_b32 v8, 8, v8
          v_add_u32 v8, {base}, v8
          v_lshlrev_b32 v9, 2, v9""")
    for t in range(n):
        a(f"s_mul_i32 s26, {sTS}, {t}" if t < 4 else f"s_mul_i32 s26, {sTS}, s{sW}")
        a(f"""v_add_u32 v11, s26, v10
              v_lshrrev_b32 v12, 1, v11
              v_add_u32 v12, v12, v9
              v_and_b32 v12, 15, v12
              v_and_b32 v11, 1, v11
              v_lshlrev_b32 v11, 3, v11
              v_lshl_add_u32 v11, v12, 4, v11
              v_add_u32 v{vA+t}, v8, v11""")

def cs_publish(a, CS, T, xch):
    a(f"""v_cvt_pk_bf16_f32 v{T}, v{CS}, v{CS}
          v_and_b32 v{T+1}, 0xffff0000, v{T}
          v_sub_f32 v{T+1}, v{CS}, v{T+1}
          v_cvt_pk_bf16_f32 v{T}, v{CS}, v{T+1}
          v_and_b32 v10, 31, v1
          v_lshlrev_b32 v10, 2, v10
          v_add_u32 v10, {xch}, v10
          s_lshl_b32 s26, s{sW}, 7
          v_add_u32 v9, s26, v10
          ds_write_b32 v9, v{T}""")

def mean_fix(a, ACC, T, src, vMU0, vMU1):
    a(f"v_mov_b32 v{T+16}, v{vMU0}\nv_mov_b32 v{T+17}, v{vMU1}\nv_mov_b32 v{T+18}, 0\nv_mov_b32 v{T+19}, 0")
    for t in range(4):
        if src(t) != T + 4*t: a(f"v_mov_b32 v{T+4*t}, v{src(t)}")
        a(f"v_and_b32 v{T+4*t+1}, 0xffff, v{src(t)}\nv_mov_b32 v{T+4*t+2}, 0\nv_mov_b32 v{T+4*t+3}, 0")
    for t in range(4): a(f"{MF} {v(ACC+16*t,16)}, {v(T+4*t,4)}, {v(T+16,4)}, {v(ACC+16*t,16)}")

def mu_frag(a, vmu, lo_en, d0, d1):
    a(f"""v_cvt_pk_bf16_f32 v{d0}, -v{vmu}, -v{vmu}
          v_and_b32 v8, 0xffff0000, v{d0}
          v_sub_f32 v8, -v{vmu}, v8
          v_cvt_pk_bf16_f32 v{d1}, v8, 0
          v_and_b32 v{d1}, {lo_en}, v{d1}
          v_lshrrev_b32 v8, 5, v1
          v_add_u32 v8, -1, v8
          v_and_b32 v{d0}, v8, v{d0}
          v_and_b32 v{d1}, v8, v{d1}""")

def gelu_consts(a, R, DEN):
    a(f"""v_mul_f32 v10, {fb(GK1)}, v{R}
          v_mul_f32 v12, v{R}, v{R}
          v_mul_f32 v12, v12, v{R}
          v_mul_f32 v12, {fb(GK2)}, v12
          v_mov_b32 v14, v{DEN}""")

def reduce3(a, ACC, sM, region, cnt_off, target, xor):
    a(f"v_add_u32 v10, s{sM}, v0")
    for j in range(1, 4):
        for i in range(4): a(f"ds_write_b128 v10, {v(ACC+16*j+4*i,4)} offset:{(j-1)*4096 + i*1024}")
    for j in range(1, 4):
        region(26, j)
        a(f"v_add_u32 v{10+j}, s26, v0")
    gbar(a, cnt_off, target)
    for j in range(1, 4):
        for i in range(4): a(f"ds_read_b128 {v(ACC+16*j+4*i,4)}, v{10+j} offset:{(j-1)*4096 + i*1024}")
    for j in range(1, 4):
        a(f"s_waitcnt lgkmcnt({4*(3-j)})")
        for i in range(8): a(f"v_pk_add_f32 {v(ACC+2*i,2)}, {v(ACC+2*i,2)}, {v(ACC+16*j+2*i,2)}")

def unpack(a, dst, src, n):
    for i in range(n):
        a(f"v_lshlrev_b32 v{dst+2*i}, 16, v{src+i}\nv_and_b32 v{dst+2*i+1}, 0xffff0000, v{src+i}")

NBAR_P1 = 10
def p1a(a):
    ACC, CS, WF, XR, TMP = 16, 80, 96, 136, 248
    sRB, sCB, sTY, sSUB, sROW, sTS, sWO, sM, sRB4, sRB52, sLO, sT = 44, 45, 47, 48, 49, 50, 51, 52, 53, 54, 55, 56
    WB = 0x1C000
    a(f"""s_and_b32 s26, s2, 7
          s_lshr_b32 s27, s2, 3
          s_lshr_b32 s{sRB}, s26, 1
          s_lshl_b32 s{sRB}, s{sRB}, 2
          s_and_b32 s3, s27, 3
          s_add_u32 s{sRB}, s{sRB}, s3
          s_and_b32 s{sCB}, s26, 1
          s_lshl_b32 s{sCB}, s{sCB}, 3
          s_lshr_b32 s3, s27, 2
          s_add_u32 s{sCB}, s{sCB}, s3
          s_lshr_b32 s{sTY}, s{sCB}, 2
          s_and_b32 s{sSUB}, s{sCB}, 3
          s_lshr_b32 s3, s{sSUB}, 1
          s_add_u32 s3, s3, 1
          s_sub_u32 s26, 0, s3
          s_bitcmp1_b32 s{sSUB}, 0
          s_cselect_b32 s3, s3, s26
          s_movk_i32 s{sROW}, 2688
          s_cmp_eq_u32 s{sTY}, 3
          s_cselect_b32 s3, s3, 0
          s_cselect_b32 s{sROW}, 896, s{sROW}
          s_cselect_b32 s{sTS}, 8, 7
          s_cselect_b32 s{sLO}, -1, 0
          s_cselect_b32 s27, s{sSUB}, s{sCB}
          s_mul_i32 s{sWO}, s27, 224
          s_lshl_b32 s{sT}, s{sRB}, 2
          s_add_u32 s{sT}, s{sT}, s{sW}
          s_lshl_b32 s26, s{sT}, 5
          s_add_u32 s3, s3, s26
          v_lshrrev_b32 v8, 2, v1
          v_add_u32 v8, s3, v8
          s_movk_i32 s26, 896
          v_mul_i32_i24 v8, s26, v8
          v_bfe_u32 v9, v1, 4, 2
          v_and_b32 v10, 3, v1
          v_xor_b32 v9, v9, v10
          v_lshl_add_u32 v14, v9, 4, v8
          v_add_u32 v15, {16*896}, v14
          s_mul_i32 s{sM}, s{sW}, 28672
          s_waitcnt lgkmcnt(0)""")
    srd(a, XS, 4, 2048 * 896)
    for p in range(14):
        for g in range(2):
            a(f"s_add_u32 m0, s{sM}, {p*2048 + g*1024 - p*64}")
            a(f"buffer_load_dwordx4 v{14+g}, {s(XS,4)}, 0 offen offset:{p*64} lds")
    a(f"""s_cmp_eq_u32 s{sTY}, 3
          s_cselect_b32 s{WA}, s12, s6
          s_cselect_b32 s{WA+1}, s13, s7
          s_mul_i32 s{WA+2}, s{sROW}, 448
          s_mov_b32 s{WA+3}, 0x20000
          v_lshrrev_b32 v8, 4, v1
          v_lshlrev_b32 v9, 2, v8
          v_sub_u32 v9, v1, v9
          v_and_b32 v9, 15, v9
          v_mul_u32_u24 v8, s{sROW}, v8
          v_lshl_add_u32 v7, v9, 4, v8
          v_mov_b32 v8, {OOB}
          v_cmp_gt_u32 vcc, 14, v9
          v_cndmask_b32 v7, v8, v7, vcc
          s_lshl_b32 s26, s{sW}, 4
          s_mul_i32 s26, s26, s{sROW}
          s_add_u32 s{sWO}, s{sWO}, s26
          s_lshl_b32 s{sRB4}, s{sROW}, 2
          s_mul_i32 s{sRB52}, s{sROW}, 52
          s_lshl_b32 s27, s{sW}, 12""")
    def wchunk(c):
        base = WB + c * 16384 if c < 3 else (c - 3) * 16384
        for u in range(4):
            a(f"s_add_u32 m0, s27, {base + u*1024}")
            if u or c: a(f"s_add_u32 s{sWO}, s{sWO}, s{sRB4 if u else sRB52}")
            a(f"buffer_load_dwordx4 v7, {s(WA,4)}, s{sWO} offen lds")
    for c in range(3): wchunk(c)
    srd(a, WD, 24, WS_END)
    srd(a, WB_, 22, 256)
    tr_addrs(a, 2, f"s{sTS}", WB, perm=False)
    a(f"""v_and_b32 v8, 31, v1
          v_lshrrev_b32 v9, 5, v1
          v_bfe_u32 v10, v1, 2, 2
          v_xor_b32 v11, v9, v10
          v_lshlrev_b32 v8, 6, v8
          v_add_u32 v8, s{sM}, v8
          v_lshl_add_u32 v12, v11, 4, v8
          v_xor_b32 v13, 32, v12
          v_lshl_add_u32 v8, v10, 4, v8
          v_lshl_add_u32 v8, v9, 3, v8
          s_min_u32 s26, s{sCB}, 6
          s_lshl_b32 s26, s26, 12
          v_add_u32 v8, s26, v8
          v_xor_b32 v9, 16, v8
          v_xor_b32 v10, 32, v8
          v_xor_b32 v11, 48, v8
          s_waitcnt vmcnt(12)""")
    stamp(a, 2)
    for s_ in range(28): a(f"ds_read_b128 {v(XR+4*s_,4)}, v{12+(s_&1)} offset:{(s_>>1)*2048}")
    for f in range(4):
        for e in range(2): a(f"ds_read_b64 {v(CS + 4*f + 2*e, 2)}, v{8 + 2*(f&1) + e} offset:{(f>>1)*2048}")
    a("s_waitcnt lgkmcnt(0)\ns_barrier")
    for c in range(3, 7): wchunk(c)
    a(f"""s_mul_i32 s3, s{sT}, 28
          s_lshl_b32 s27, s{sCB}, 2
          s_add_u32 s3, s3, s27
          s_lshl_b32 s3, s3, 10
          s_add_u32 s3, s3, {XF}
          s_cmp_lt_u32 s{sCB}, 7
          s_cselect_b32 s3, s3, {OOB}""")
    for f in range(4): a(f"buffer_store_dwordx4 {v(CS+4*f,4)}, v0, {s(WD,4)}, s3 offen offset:{f*1024}{SC}")
    ONE = TMP
    for i in range(4): a(f"v_mov_b32 v{ONE+i}, 0x3f803f80")
    for i in range(112):
        a(f"v_dot2_f32_bf16 v{8+(i&1)}, v{XR+i}, v{ONE}, {'0' if i < 2 else 'v%d' % (8+(i&1))}")
        a(f"v_dot2_f32_bf16 v{10+(i&1)}, v{XR+i}, v{XR+i}, {'0' if i < 2 else 'v%d' % (10+(i&1))}")
    M0_, M1_, R, DEN = TMP+4, TMP+5, TMP+6, TMP+7
    a("v_add_f32 v12, v8, v9\nv_add_f32 v13, v10, v11")
    half_sum(a, 12, 8); half_sum(a, 13, 9)
    a(f"""v_mul_f32 v12, {fb(1/448)}, v12
          v_mul_f32 v13, {fb(1/448)}, v13
          v_fma_f32 v13, -v12, v12, v13
          v_max_f32 v13, 0, v13""")
    mu_frag(a, 12, f"s{sLO}", M0_, M1_)
    bf16r(a, 8, "v13")
    a(f"v_add_f32 v8, {fb(EPS)}, v8")
    bf16r(a, 8, "v8")
    a("v_sqrt_f32 v8, v8")
    bf16r(a, 8, "v8")
    a(f"""v_add_f32 v9, {fb(EPS)}, v13
          v_mov_b32 v10, {fb(EPS)}
          v_fma_f32 v9, v9, v10, v13
          v_sqrt_f32 v9, v9
          v_mov_b32 v10, s{sLO}
          v_bfi_b32 v{DEN}, v10, v9, v8
          v_rcp_f32 v{R}, v{DEN}""")
    bf16r(a, 10, "v12")
    a(f"""v_mov_b32 v11, v{R}
          s_lshl_b32 s3, s{sT}, 8
          s_add_u32 s3, s3, {ST1}
          s_cmp_eq_u32 s{sCB}, 0
          s_cselect_b32 s3, s3, {OOB}
          v_lshlrev_b32 v8, 3, v1
          v_and_b32 v8, 0xff, v8
          buffer_store_dwordx2 v[10:11], v8, {s(WD,4)}, s3 offen{SC}""")
    stamp(a, 3)
    pre = {c: [f"s_waitcnt vmcnt({29 - 4*c})", "s_barrier"] for c in range(7)}
    pre[3] += [f"v_add_u32 v{2+t}, {-WB & 0xffffffff}, v{2+t}" for t in range(5)]
    kloop(a, ACC, WF, XR, 2, 5, lambda c: c * 16384 if c < 3 else (c - 3) * 16384, pre, False, ONE, CS)
    stamp(a, 4)
    cs_publish(a, CS, WF, 65536)
    a(f"""v_mov_b32 v8, {CNT}
          v_mov_b32 v12, 0
          v_mov_b32 v13, 0
          ds_write_b64 v8, v[12:13]
          s_waitcnt lgkmcnt(0)
          s_barrier""")
    for t in range(4): a(f"ds_read_b32 v{WF+4*t}, v10 offset:{128*t}")
    a("s_waitcnt lgkmcnt(0)")
    mean_fix(a, ACC, WF, lambda t: WF + 4*t, M0_, M1_)
    a(f"""v_lshrrev_b32 v8, 5, v1
          v_add_u32 v8, -1, v8
          s_cmp_eq_u32 s{sTY}, 3
          s_cbranch_scc1 P1_h
          s_cmp_eq_u32 s{sTY}, 0
          s_cselect_b32 s3, {fb(QSCALE)}, 1.0
          v_mul_f32 v10, s3, v{R}
          s_cmp_eq_u32 s{sTY}, 1
          s_cselect_b32 s27, 0x3f803f80, 0
          s_cselect_b32 s3, 0x3f80, 0
          s_cmp_eq_u32 s{sTY}, 2
          s_cselect_b32 s27, 0x3f80, s27
          v_mov_b32 v12, s27
          v_mov_b32 v13, s3""")
    for t in range(4):
        for i in range(8): a(f"v_pk_mul_f32 {v(ACC+16*t+2*i,2)}, {v(ACC+16*t+2*i,2)}, v[10:11] op_sel_hi:[1,0]")
        for i in range(8): a(f"v_cvt_pk_bf16_f32 v{XR+8*t+i}, v{ACC+16*t+2*i}, v{ACC+16*t+2*i+1}")
        a(f"v_bfi_b32 v{XR+8*t+6}, v8, v{XR+8*t+6}, v12\nv_bfi_b32 v{XR+8*t+7}, v8, v{XR+8*t+7}, v13")
    a(f"s_cmp_eq_u32 s{sTY}, 2\ns_cbranch_scc0 P1_qk")
    VT = 65536 + 1024
    a(f"""s_mul_i32 s3, s{sW}, 9216
          s_add_u32 s3, s3, {VT}
          v_and_b32 v9, 31, v1
          v_mul_u32_u24 v9, 72, v9
          v_lshrrev_b32 v10, 5, v1
          v_lshl_add_u32 v9, v10, 3, v9
          v_add_u32 v9, s3, v9
          v_bfe_u32 v11, v1, 2, 2
          v_lshl_add_u32 v10, v10, 2, v11
          v_mul_u32_u24 v10, 72, v10
          v_bfe_u32 v11, v1, 4, 1
          v_lshl_add_u32 v10, v11, 5, v10
          v_and_b32 v11, 3, v1
          v_lshl_add_u32 v10, v11, 3, v10
          v_add_u32 v10, s3, v10""")
    for t in range(4):
        for j in range(4): a(f"ds_write_b64 v9, {v(XR+8*t+2*j,2)} offset:{t*2304 + 16*j}")
    a("s_waitcnt lgkmcnt(0)")
    for t in range(4):
        for f in range(2):
            for e in range(2): a(f"ds_read_b64_tr_b16 {v(XR+8*t+4*f+2*e,2)}, v10 offset:{t*2304 + (16*f+8*e)*72}")
    a("s_waitcnt lgkmcnt(0)")
    a.label("P1_qk")
    a(f"""s_barrier
          s_lshl_b32 s3, s{sSUB}, 8
          s_add_u32 s3, s3, s{sT}
          s_cmp_eq_u32 s{sTY}, 0
          s_cselect_b32 s27, 11, 12
          s_lshl_b32 s3, s3, s27
          s_lshl_b32 s26, 64, s27
          s_lshl_b32 s27, s{sTY}, 11
          s_add_u32 s27, s27, {KVF - 2048}
          s_cmp_eq_u32 s{sTY}, 0
          s_cselect_b32 s27, {QF}, s27
          s_add_u32 s3, s3, s27""")
    for t in range(4):
        for f in range(2): a(f"buffer_store_dwordx4 {v(XR+8*t+4*f,4)}, v0, {s(WD,4)}, s3 offen offset:{f*1024}{SC}")
        if t < 3: a("s_add_u32 s3, s3, s26")
    a("s_branch P1_done")
    a.label("P1_h")
    a("s_barrier                                 ; barrier 10")
    gelu_consts(a, R, DEN)
    a(f"""s_mul_i32 s3, s{sT}, 28
          s_mul_i32 s27, s{sSUB}, 7
          s_add_u32 s3, s3, s27
          s_lshl_b32 s3, s3, 10
          s_add_u32 s3, s3, {HF}
          s_add_u32 s27, s3, 4096""")
    for f in range(7):
        gelu_pairs(a, [ACC + 8*f + 2*i for i in range(4)], 10, 12, 14, WF)
        for i in range(4): a(f"v_cvt_pk_bf16_f32 v{XR+4*f+i}, v{ACC+8*f+2*i}, v{ACC+8*f+2*i+1}")
        a(f"buffer_store_dwordx4 {v(XR+4*f,4)}, v0, {s(WD,4)}, s{3 if f < 4 else 27} offen offset:{(f&3)*1024}{SC}")
    a.label("P1_done")
    a("v_mov_b32 v10, 0")
    poll(a, 10, 1, WB_)
    a(f"""s_lshl_b32 s3, s{sCB}, 6
          s_add_u32 s3, s3, s{sT}
          s_lshl_b32 s3, s3, 2
          s_add_u32 s3, s3, {FP}""")
    signal(a, 3)
    stamp(a, 5)

O_, Q_, S_, E_, P_, KV = 16, 80, 112, 144, 152, 160
sH, sQB, sKV, sN, sMA, sKB = 44, 45, 50, 51, 47, 52
AR_BASE = 100 * 1024

def unit(a, n, q, extra):
    Sc, Sn = S_ + 16*(q & 1), S_ + 16*((q+1) & 1)
    nn, nq = (n, q+1) if q < 3 else ((n+1) & 3, 0)
    pn, pq = (n, q-1) if q > 0 else ((n-1) & 3, 3)
    K, Vc, Vp = KV + 16*nn, KV + 16*n + 8, KV + 16*pn + 8
    e = lambda i: a(f"v_exp_f32 v{E_+(i&7)}, v{Sc+i}")
    c = lambda k: a(f"v_cvt_pk_bf16_f32 v{P_+k}, v{E_+((2*k)&7)}, v{E_+((2*k+1)&7)}")
    for x in extra.get(0, []): a(x)
    a(f"{MF} {v(Sn,16)}, {v(K,4)}, {v(Q_+8*nq,4)}, 0")
    e(0); c(6); e(1); c(7); e(2); e(3)
    a(f"{MF} {v(O_+16*pq,16)}, {v(Vp+4,4)}, {v(P_+4,4)}, {v(O_+16*pq,16)}")
    for x in extra.get(1, []): a(x)
    e(4); c(0); e(5); c(1); e(6); e(7)
    a(f"{MF} {v(Sn,16)}, {v(K+4,4)}, {v(Q_+8*nq+4,4)}, {v(Sn,16)}")
    for x in extra.get(2, []): a(x)
    e(8); c(2); e(9); c(3); e(10); e(11)
    a(f"{MF} {v(O_+16*q,16)}, {v(Vc,4)}, {v(P_,4)}, {v(O_+16*q,16)}")
    e(12); c(4); e(13); c(5); e(14); e(15)

def kvload(slot, f):
    return f"buffer_load_dwordx4 {v(KV+16*slot+4*f,4)}, v0, {s(WD,4)}, s{sKV} offen offset:{f*1024}{SC}"
def kvnext():
    return [f"s_add_u32 s3, s{sKV}, 4096", "s_and_b32 s3, s3, 0xffff", f"s_or_b32 s{sKV}, s3, s{sKB}"]

def att(a):
    a(f"""s_and_b32 s26, s2, 7
          s_lshr_b32 s27, s2, 3
          s_lshl_b32 s{sH}, s26, 1
          s_and_b32 s3, s27, 1
          s_add_u32 s{sH}, s{sH}, s3
          s_lshr_b32 s{sQB}, s27, 1
          s_mul_i32 s{sMA}, s{sW}, 12288
          s_add_u32 s{sMA}, s{sMA}, {AR_BASE}
          s_lshl_b32 s{sKB}, s{sH}, 2
          s_add_u32 s{sKB}, s{sKB}, s{sW}
          s_lshl_b32 s{sKB}, s{sKB}, 16
          s_add_u32 s{sKB}, s{sKB}, {KVF}
          s_lshl_b32 s3, s{sQB}, 12
          s_or_b32 s{sKV}, s{sKB}, s3
          s_lshr_b32 s3, s{sH}, 2
          s_lshl_b32 s3, s3, 8
          v_and_b32 v10, 15, v1
          s_lshl_b32 s26, s{sW}, 4
          v_add_u32 v10, s26, v10
          v_bfe_u32 v11, v1, 4, 1
          v_lshl_add_u32 v11, v11, 8, v10
          v_add_u32 v11, 256, v11
          v_and_b32 v10, 3, v1
          s_lshl_b32 s26, s{sQB}, 2
          v_add_u32 v10, s26, v10
          v_cmp_gt_u32 vcc, 32, v1
          v_cndmask_b32 v10, v10, v11, vcc
          v_lshlrev_b32 v10, 2, v10
          s_add_u32 s3, s3, {FP}
          v_add_u32 v10, s3, v10""")
    for i in range(64): a(f"v_mov_b32 v{O_+i}, 0")
    for i in range(8): a(f"v_mov_b32 v{E_+i}, 0\nv_mov_b32 v{P_+i}, 0")
    for i in range(4): a(f"v_mov_b32 v{KV+48+12+i}, 0")
    poll(a, 10, 36)
    stamp(a, 8)
    for j in range(4):
        a(f"""s_add_u32 s3, s{sW}, {j}
              s_and_b32 s3, s3, 3
              s_lshl_b32 s26, s{sH}, 4
              s_add_u32 s26, s26, s{sQB}
              s_lshl_b32 s26, s26, 2
              s_add_u32 s3, s3, s26
              s_lshl_b32 s3, s3, 11
              s_add_u32 s3, s3, {QF}""")
        for f in range(2): a(f"buffer_load_dwordx4 {v(Q_+8*j+4*f,4)}, v0, {s(WD,4)}, s3 offen offset:{f*1024}{SC}")
        if j == 0:
            for f in range(4): a(kvload(0, f))
            for x in kvnext(): a(x)
    for n in range(1, 3):
        for f in range(4): a(kvload(n, f))
        for x in kvnext(): a(x)
    a(f"s_mov_b32 s{sN}, 4\ns_waitcnt vmcnt(14)")
    a(f"{MF} {v(S_,16)}, {v(KV,4)}, {v(Q_,4)}, 0")
    a(f"{MF} {v(S_,16)}, {v(KV+4,4)}, {v(Q_+4,4)}, {v(S_,16)}")
    a("s_waitcnt vmcnt(8)")
    stamp(a, 9)
    a(".p2align 3")
    a.label("AT_loop")
    for n in range(4):
        ld = (n + 3) & 3
        unit(a, n, 0, {2: [kvload(ld, 0)]})
        unit(a, n, 1, {1: [kvload(ld, 1)]})
        unit(a, n, 2, {1: [kvload(ld, 2)]})
        ex = {0: ["s_waitcnt vmcnt(7)"], 1: [kvload(ld, 3)], 2: kvnext()}
        if n == 3: ex[2] += [f"s_sub_u32 s{sN}, s{sN}, 1", f"s_cmp_lg_u32 s{sN}, 0"]
        unit(a, n, 3, ex)
    a("s_cbranch_scc1 AT_loop")
    a(f"v_cvt_pk_bf16_f32 v{P_+6}, v{E_+4}, v{E_+5}\nv_cvt_pk_bf16_f32 v{P_+7}, v{E_+6}, v{E_+7}")
    a(f"{MF} {v(O_+48,16)}, {v(KV+48+12,4)}, {v(P_+4,4)}, {v(O_+48,16)}")
    stamp(a, 10)
    gwait(a, 0, B_G3_DONE)
    def region(d, j):
        a(f"""s_sub_u32 s{d}, s{sW}, {j}
              s_and_b32 s{d}, s{d}, 3
              s_mul_i32 s{d}, s{d}, 12288
              s_add_u32 s{d}, s{d}, {AR_BASE}""")
    reduce3(a, O_, sMA, region, 4, 4, False)
    a(f"""v_mov_b32 v10, v{O_+12}
          v_mov_b32 v11, v{O_+12}
          v_permlane32_swap_b32 v11, v10
          v_mov_b32 v12, 0
          v_mov_b32 v13, 0""")
    for i in range(8): a(f"v_pk_fma_f32 v[12:13], {v(O_+2*i,2)}, 0, v[12:13] op_sel_hi:[1,0,1]")
    a(f"""v_add_f32 v12, v12, v13
          v_add_f32 v12, v12, v10                ; NaN if any accumulator is not finite
          v_cmp_le_f32 vcc, {fb(2.0**-80)}, v12
          v_cmp_ge_f32 s[26:27], s59, v12
          s_and_b64 vcc, vcc, s[26:27]
          s_cmp_eq_u64 vcc, -1
          s_cbranch_scc0 AT_slow""".replace("s59", "s59"))
    a.label("AT_norm")
    a(f"""v_rcp_f32 v10, v10
          v_lshrrev_b32 v8, 5, v1
          v_add_u32 v8, -1, v8""")
    for i in range(8): a(f"v_pk_mul_f32 {v(O_+2*i,2)}, {v(O_+2*i,2)}, v[10:11] op_sel_hi:[1,0]")
    for i in range(8): a(f"v_cvt_pk_bf16_f32 v{P_+i}, v{O_+2*i}, v{O_+2*i+1}")
    a(f"""v_and_b32 v{P_+6}, v8, v{P_+6}
          v_and_b32 v{P_+7}, v8, v{P_+7}
          s_lshl_b32 s26, s{sQB}, 2
          s_add_u32 s26, s26, s{sW}
          s_lshl_b32 s26, s26, 4
          s_add_u32 s26, s26, s{sH}
          s_lshl_b32 s3, s26, 11
          s_add_u32 s3, s3, {OF}
          buffer_store_dwordx4 {v(P_,4)}, v0, {s(WD,4)}, s3 offen{SC}
          buffer_store_dwordx4 {v(P_+4,4)}, v0, {s(WD,4)}, s3 offen offset:1024{SC}
          s_lshl_b32 s3, s26, 2
          s_add_u32 s3, s3, {FA}
          s_waitcnt vmcnt(0)""")
    signal(a, 3)
    stamp(a, 11)
    stamp_out2(a)
    a("s_endpgm")
    a.label("AT_slow")
    a(f"""s_waitcnt vmcnt(0)
          s_lshl_b32 s{sKB}, s{sH}, 18
          s_add_u32 s{sKB}, s{sKB}, {KVF}
          s_mov_b32 s{sKV}, s{sKB}
          s_mov_b32 s{sN}, 64
          v_mov_b32 v12, 0xff800000""")
    a.label("AT_s1")
    a(kvload(0, 0)); a(kvload(0, 1))
    a(f"""s_add_u32 s{sKV}, s{sKV}, 4096
          s_waitcnt vmcnt(0)
          {MF} {v(S_,16)}, {v(KV,4)}, {v(Q_,4)}, 0
          {MF} {v(S_,16)}, {v(KV+4,4)}, {v(Q_+4,4)}, {v(S_,16)}""")
    for i in range(8): a(f"v_max3_f32 v12, v12, v{S_+2*i}, v{S_+2*i+1}")
    a(f"""s_sub_u32 s{sN}, s{sN}, 1
          s_cmp_lg_u32 s{sN}, 0
          s_cbranch_scc1 AT_s1
          v_mov_b32 v13, v12
          v_permlane32_swap_b32 v12, v13
          v_max_f32 v12, v12, v13
          v_cvt_pk_bf16_f32 v13, -v12, -v12
          v_and_b32 v13, 0xffff0000, v13
          v_sub_f32 v12, -v12, v13
          v_cvt_pk_bf16_f32 v14, v12, v12
          v_and_b32 v14, 0xffff0000, v14
          v_sub_f32 v12, v12, v14
          v_cvt_pk_bf16_f32 v13, v13, v14
          v_cvt_pk_bf16_f32 v14, v12, 0
          v_lshrrev_b32 v8, 5, v1
          v_add_u32 v8, -1, v8
          v_bfi_b32 v{Q_+6}, v8, v{Q_+6}, v13
          v_bfi_b32 v{Q_+7}, v8, v{Q_+7}, v14
          s_mov_b32 s{sKV}, s{sKB}
          s_mov_b32 s{sN}, 64""")
    for i in range(16): a(f"v_mov_b32 v{O_+i}, 0")
    a.label("AT_s2")
    for f in range(4): a(kvload(0, f))
    a(f"""s_add_u32 s{sKV}, s{sKV}, 4096
          s_waitcnt vmcnt(0)
          {MF} {v(S_,16)}, {v(KV,4)}, {v(Q_,4)}, 0
          {MF} {v(S_,16)}, {v(KV+4,4)}, {v(Q_+4,4)}, {v(S_,16)}""")
    for i in range(16): a(f"v_exp_f32 v{S_+i}, v{S_+i}")
    for i in range(8): a(f"v_cvt_pk_bf16_f32 v{P_+i}, v{S_+2*i}, v{S_+2*i+1}")
    a(f"""{MF} {v(O_,16)}, {v(KV+8,4)}, {v(P_,4)}, {v(O_,16)}
          {MF} {v(O_,16)}, {v(KV+12,4)}, {v(P_+4,4)}, {v(O_,16)}
          s_sub_u32 s{sN}, s{sN}, 1
          s_cmp_lg_u32 s{sN}, 0
          s_cbranch_scc1 AT_s2
          v_mov_b32 v10, v{O_+12}
          v_mov_b32 v11, v{O_+12}
          v_permlane32_swap_b32 v11, v10
          s_branch AT_norm""")

B_G3_DONE = 20
G2_BASE = 100 * 1024
RES = 224

def p1b(a):
    a("s_waitcnt lgkmcnt(0)")
    srd(a, WD, 24, WS_END)
    srd(a, WB_, 22, 256)
    a(f"""s_cmp_lg_u32 s2, 0
          s_cbranch_scc1 PB_noinit
          v_mov_b32 v12, 0
          v_mov_b32 v13, 0
          v_mov_b32 v14, 0
          v_mov_b32 v15, 0
          s_lshl_b32 s3, s{sW}, 12
          s_add_u32 s3, s3, {FLG}""")
    for i in range(4): a(f"buffer_store_dwordx4 v[12:15], v0, {s(WD,4)}, s3 offen offset:{i*1024}{SC}")
    a("s_waitcnt vmcnt(0)")
    a.label("PB_noinit")
    a(f"""s_barrier                              ; barrier 1
          s_or_b32 s3, s2, s{sW}
          s_cmp_lg_u32 s3, 0
          s_cbranch_scc1 PB_noset
          v_mov_b32 v8, 0
          v_mov_b32 v9, 1
          s_mov_b64 exec, 1
          buffer_store_dword v9, v8, {s(WB_,4)}, 0 offen{SC}
          s_mov_b64 exec, -1""")
    a.label("PB_noset")
    for i in range(4): a("s_barrier")
    a("v_mov_b32 v10, 0")
    poll(a, 10, 1, WB_)
    for i in range(NBAR_P1 - 5): a("s_barrier")

def small_setup(a, sRB, sCB, sT):
    a(f"""s_and_b32 s26, s2, 7
          s_lshr_b32 s27, s2, 3
          s_lshl_b32 s{sRB}, s26, 2
          s_and_b32 s3, s27, 3
          s_add_u32 s{sRB}, s{sRB}, s3
          s_lshr_b32 s{sCB}, s27, 2
          s_lshr_b32 s3, s{sW}, 1
          s_lshl_b32 s{sT}, s{sRB}, 1
          s_add_u32 s{sT}, s{sT}, s3""")

def small_addrs(a, sM):
    a(f"""v_lshrrev_b32 v8, 3, v1
          v_bfe_u32 v9, v1, 4, 1
          v_lshlrev_b32 v9, 2, v9
          v_and_b32 v10, 7, v1
          v_xor_b32 v9, v9, v10
          v_mul_u32_u24 v8, 896, v8
          v_lshl_add_u32 v7, v9, 4, v8
          v_lshrrev_b32 v8, 5, v1
          v_bfe_u32 v9, v1, 2, 2
          v_lshl_add_u32 v8, v8, 2, v9
          v_lshlrev_b32 v8, 7, v8
          v_bfe_u32 v10, v1, 4, 1
          v_bfe_u32 v11, v1, 1, 1
          v_lshl_add_u32 v10, v10, 1, v11
          v_bfe_u32 v11, v1, 3, 1
          v_lshl_add_u32 v10, v11, 2, v10
          v_lshl_add_u32 v8, v10, 4, v8
          v_and_b32 v11, 1, v1
          v_lshl_add_u32 v8, v11, 3, v8
          s_and_b32 s3, s{sW}, 1
          s_lshl_b32 s3, s3, 6
          v_xor_b32 v8, s3, v8
          v_add_u32 v2, s{sM}, v8
          v_xor_b32 v8, 64, v8
          v_add_u32 v3, s{sM}, v8""")

def wreads(a, WF, buf, off):
    for b in range(2):
        for e in range(2): a(f"ds_read_b64_tr_b16 {v(WF+8*buf+4*b+2*e,2)}, v{2+b} offset:{off + 8*e*128}")
def mfmas(a, ACC, WF, buf, act0, act1, first):
    for aa, ar in enumerate((act0, act1)):
        for b in range(2):
            j = 2*aa + b
            a(f"{MF} {v(ACC+16*j,16)}, {v(WF+8*buf+4*b,4)}, {v(ar,4)}, {'0' if first else v(ACC+16*j,16)}")

def roleb(a):
    ACC, WF, AR, EP = 16, 80, 96, 160
    sRB, sCB, sT, sM, sWO, sA0, sA1, sX = 44, 45, 48, 47, 50, 51, 52, 53
    sRB3, sCB3, sT3, sW3, sXO = 54, 55, 56, 57, 49
    a("s_cmp_ge_u32 s2, 224\ns_cbranch_scc0 B_go")
    a(f"""s_mov_b64 exec, 1
          v_mov_b32 v8, {CNT}
          v_mov_b32 v9, {B_G3_DONE // 4}
          ds_add_u32 v8, v9
          s_endpgm""")
    a.label("B_go")
    a("s_setprio 1")
    small_setup(a, sRB, sCB, sT)
    a(f"""s_mul_i32 s{sM}, s{sW}, 14336
          s_add_u32 s{sM}, s{sM}, {G2_BASE}
          s_mul_i32 s{sWO}, s{sW}, {112*896}
          s_lshl_b32 s3, s{sCB}, 7
          s_add_u32 s{sWO}, s{sWO}, s3""")
    small_addrs(a, sM)
    srd(a, WA, 14, 448 * 896)
    for u in range(14):
        a(f"s_add_u32 m0, s{sM}, {u*1024}")
        if u: a(f"s_add_u32 s{sWO}, s{sWO}, {8*896}")
        a(f"buffer_load_dwordx4 v7, {s(WA,4)}, s{sWO} offen lds")
    a(f"""s_mul_i32 s{sA0}, s{sT}, 28
          s_mul_i32 s3, s{sW}, 7
          s_add_u32 s{sA0}, s{sA0}, s3
          s_lshl_b32 s{sA0}, s{sA0}, 10
          s_add_u32 s{sA0}, s{sA0}, {HF}
          s_xor_b32 s{sA1}, s{sT}, 1
          s_mul_i32 s{sA1}, s{sA1}, 28
          s_add_u32 s{sA1}, s{sA1}, s3
          s_lshl_b32 s{sA1}, s{sA1}, 10
          s_add_u32 s{sA1}, s{sA1}, {HF}
          s_mul_i32 s{sX}, s{sT}, 28
          s_lshl_b32 s3, s{sCB}, 2
          s_add_u32 s{sX}, s{sX}, s3
          s_and_b32 s3, s{sW}, 1
          s_lshl_b32 s3, s3, 1
          s_add_u32 s{sX}, s{sX}, s3
          s_lshl_b32 s{sX}, s{sX}, 10
          s_add_u32 s{sX}, s{sX}, {XF}
          s_add_u32 s3, s{sW}, 12
          s_lshl_b32 s3, s3, 6
          s_lshl_b32 s26, s{sRB}, 1
          s_add_u32 s3, s3, s26
          v_add_u32 v10, s3, v1
          s_lshl_b32 s3, s{sCB}, 6
          s_add_u32 s3, s3, s{sT}
          v_writelane_b32 v10, s3, 2             ; x copy
          v_writelane_b32 v10, s{sT}, 3
          v_lshlrev_b32 v10, 2, v10
          v_add_u32 v10, {FP}, v10""")
    a(f"""s_and_b32 s26, s2, 7
          s_lshr_b32 s27, s2, 3
          s_lshl_b32 s{sRB3}, s26, 1
          s_and_b32 s3, s27, 1
          s_add_u32 s{sRB3}, s{sRB3}, s3
          s_lshr_b32 s{sCB3}, s27, 1
          s_lshl_b32 s{sT3}, s{sRB3}, 2
          s_add_u32 s{sT3}, s{sT3}, s{sW}
          v_lshrrev_b32 v8, 4, v1
          v_lshlrev_b32 v9, 2, v8
          v_sub_u32 v9, v1, v9
          v_and_b32 v9, 15, v9
          v_mul_u32_u24 v8, 3584, v8
          v_lshl_add_u32 v6, v9, 4, v8           ; W3 voffset
          s_mul_i32 s{sW3}, s{sW}, {16*3584}
          s_lshl_b32 s26, s{sCB3}, 8
          s_add_u32 s{sW3}, s{sW3}, s26""")
    srd(a, WB_, 16, 448 * 3584)
    stamp(a, 2)
    poll(a, 10, 4)
    stamp(a, 3)
    for s_ in range(7):
        a(f"buffer_load_dwordx4 {v(AR+8*s_,4)}, v0, {s(WD,4)}, s{sA0} offen offset:{(s_&3)*1024}{SC}")
        a(f"buffer_load_dwordx4 {v(AR+8*s_+4,4)}, v0, {s(WD,4)}, s{sA1} offen offset:{(s_&3)*1024}{SC}")
        if s_ == 3: a(f"s_add_u32 s{sA0}, s{sA0}, 4096\ns_add_u32 s{sA1}, s{sA1}, 4096")
    a(f"""buffer_load_dwordx4 {v(EP,4)}, v0, {s(WD,4)}, s{sX} offen{SC}
          buffer_load_dwordx4 {v(EP+4,4)}, v0, {s(WD,4)}, s{sX} offen offset:1024{SC}
          v_lshlrev_b32 v8, 3, v1
          v_and_b32 v5, 0xff, v8
          s_lshl_b32 s3, s{sT}, 8
          s_add_u32 s3, s3, {ST1}
          buffer_load_dwordx2 {v(EP+8,2)}, v5, {s(WD,4)}, s3 offen{SC}
          s_lshl_b32 s27, s{sW}, 12""")
    def w3chunk(c):
        for u in range(4):
            a(f"s_add_u32 m0, s27, {c*16384 + u*1024}")
            if u or c: a(f"s_add_u32 s{sW3}, s{sW3}, {4*3584 if u else 52*3584}")
            a(f"buffer_load_dwordx4 v6, {s(WB_,4)}, s{sW3} offen lds")
    for c in range(6): w3chunk(c)
    wreads(a, WF, 0, 0)
    for s_ in range(7):
        if s_ < 6:
            wreads(a, WF, (s_+1) & 1, (s_+1)*2048)
            a(f"s_waitcnt vmcnt({2*(6-s_) + 3 + 24}) lgkmcnt(4)")
        else:
            a("s_waitcnt vmcnt(27) lgkmcnt(0)")
        mfmas(a, ACC, WF, s_ & 1, AR+8*s_, AR+8*s_+4, s_ == 0)
    def region2(d, j):
        a(f"""s_xor_b32 s{d}, s{sW}, {j}
              s_mul_i32 s{d}, s{d}, 14336
              s_add_u32 s{d}, s{d}, {G2_BASE}""")
    reduce3(a, ACC, sM, region2, 0, 4, True)
    garrive(a, 0)
    a("s_waitcnt vmcnt(24)")
    U = ACC + 16
    if DEBUG:
        a(f"""s_mul_i32 s3, s{sT}, 14
              s_lshl_b32 s26, s{sCB}, 1
              s_add_u32 s3, s3, s26
              s_and_b32 s26, s{sW}, 1
              s_add_u32 s3, s3, s26
              s_lshl_b32 s3, s3, 12
              s_add_u32 s3, s3, 0x2000000""")
        for i in range(4): a(f"buffer_store_dwordx4 {v(ACC+4*i,4)}, v0, {s(WD,4)}, s3 offen offset:{i*1024}")
        a("s_waitcnt vmcnt(0)")
    unpack(a, RES, EP, 8)
    for i in range(8): a(f"v_pk_add_f32 {v(U+2*i,2)}, {v(RES+2*i,2)}, {v(EP+8,2)} op_sel_hi:[1,0] neg_lo:[0,1] neg_hi:[0,1]")
    a(f"v_mov_b32 v14, v{EP+9}")
    for i in range(8): a(f"v_pk_fma_f32 {v(U+2*i,2)}, {v(U+2*i,2)}, v[14:15], {v(ACC+2*i,2)} op_sel_hi:[1,0,1]")
    for i in range(8): a(f"v_cvt_pk_bf16_f32 v{EP+i}, v{U+2*i}, v{U+2*i+1}")
    a(f"s_add_u32 s{sX}, s{sX}, {X1F - XF}")
    a(f"buffer_store_dwordx4 {v(EP,4)}, v0, {s(WD,4)}, s{sX} offen{SC}")
    a(f"buffer_store_dwordx4 {v(EP+4,4)}, v0, {s(WD,4)}, s{sX} offen offset:1024{SC}")
    a("v_mov_b32 v12, 0x3f803f80")
    for i in range(8):
        a(f"v_dot2_f32_bf16 v10, v{EP+i}, v12, {'0' if i == 0 else 'v10'}")
        a(f"v_dot2_f32_bf16 v11, v{EP+i}, v{EP+i}, {'0' if i == 0 else 'v11'}")
    half_sum(a, 10, 8); half_sum(a, 11, 9)
    a(f"""s_lshl_b32 s26, s{sCB}, 1
          s_and_b32 s3, s{sW}, 1
          s_add_u32 s26, s26, s3                 ; part
          s_mul_i32 s3, s{sT}, 14
          s_add_u32 s3, s3, s26
          s_lshl_b32 s3, s3, 8
          s_add_u32 s3, s3, {ST3}
          buffer_store_dwordx2 v[10:11], v5, {s(WD,4)}, s3 offen{SC}
          s_lshl_b32 s3, s{sT}, 4
          s_add_u32 s3, s3, s26
          s_lshl_b32 s3, s3, 2
          s_add_u32 s{sX}, s3, {F2}""")
    unpack(a, U, EP, 8)
    for i in range(8): a(f"v_pk_add_f32 {v(RES+2*i,2)}, {v(RES+2*i,2)}, {v(U+2*i,2)}")
    gwait(a, 0, 8)
    w3chunk(6)
    a("s_waitcnt vmcnt(4)")
    signal(a, sX)
    stamp(a, 4)
    ACC, WF, XR, TMP = 16, 80, 112, 240
    CS, ONE = XR, TMP
    tr_addrs(a, 2, 8, 0, perm=True)
    for i in range(4): a(f"v_mov_b32 v{ONE+i}, 0x3f803f80")
    a("s_waitcnt vmcnt(1)")
    gbar(a, 0, 12)
    def csrd(s_):
        if s_ == 16: a("v_add_u32 v6, 0x10000, v6")
        for e in range(2): a(f"ds_read_b64_tr_b16 {v(WF + 4*(s_&3) + 2*e, 2)}, v6 offset:{((s_>>2)&3)*16384 + (16*(s_&3) + 8*e)*256}")
    for s_ in range(3): csrd(s_)
    for s_ in range(28):
        if s_ + 3 < 28: csrd(s_ + 3)
        a(f"s_waitcnt lgkmcnt({2*min(3, 27 - s_)})")
        a(f"{MF} {v(CS,16)}, {v(ONE,4)}, {v(WF+4*(s_&3),4)}, {'0' if s_ == 0 else v(CS,16)}")
    cs_publish(a, CS, WF, 7*16384)
    a(f"""s_lshl_b32 s3, s{sT3}, 6
          s_add_u32 s3, s3, {F2}
          v_lshl_add_u32 v11, v1, 2, s3
          s_mul_i32 s{sXO}, s{sT3}, {28*1024}
          s_add_u32 s{sXO}, s{sXO}, {X1F}
          v_lshrrev_b32 v12, 5, v1
          v_mul_u32_u24 v12, {7*256}, v12
          v_and_b32 v13, 31, v1
          v_lshl_add_u32 v12, v13, 3, v12
          s_mul_i32 s27, s{sT3}, {14*256}
          s_add_u32 s27, s27, {ST3}""")
    gbar(a, 0, 16)
    CSP = TMP
    for t in range(4): a(f"ds_read_b32 v{CSP+t}, v10 offset:{128*t}")
    poll(a, 11, 14)
    stamp(a, 5)
    for i in range(7): a(f"buffer_load_dwordx2 {v(ACC+2*i,2)}, v12, {s(WD,4)}, s27 offen offset:{i*256}{SC}")
    for u in range(28):
        a(f"buffer_load_dwordx4 {v(XR+4*u,4)}, v0, {s(WD,4)}, s{sXO} offen offset:{(u&3)*1024}{SC}")
        if (u & 3) == 3: a(f"s_add_u32 s{sXO}, s{sXO}, 4096")
    a("s_waitcnt vmcnt(28)")
    for i in range(1, 7): a(f"v_pk_add_f32 {v(ACC,2)}, {v(ACC,2)}, {v(ACC+2*i,2)}")
    a(f"v_mov_b32 v12, v{ACC}\nv_mov_b32 v13, v{ACC+1}")
    half_sum(a, 12, 8); half_sum(a, 13, 9)
    M0_, M1_, R, DEN = TMP+4, TMP+5, TMP+6, TMP+7
    a(f"""v_mul_f32 v12, {fb(1/448)}, v12
          v_mul_f32 v13, {fb(1/448)}, v13
          v_fma_f32 v13, -v12, v12, v13
          v_max_f32 v13, 0, v13
          v_add_f32 v13, {fb(EPS)}, v13
          v_sqrt_f32 v{DEN}, v13
          v_rsq_f32 v{R}, v13""")
    mu_frag(a, 12, "-1", M0_, M1_)
    pre = {c: [f"s_waitcnt vmcnt({24 - 4*c})"] for c in range(7)}
    pre[4] += [f"v_add_u32 v{2+t}, 0x10000, v{2+t}" for t in range(4)]
    kloop(a, ACC, WF, XR, 2, 4, lambda c: (c & 3) * 16384, pre, True)
    garrive(a, 0)
    stamp(a, 8)
    mean_fix(a, ACC, WF, lambda t: CSP + t, M0_, M1_)
    sM2 = sM
    a(f"""s_mul_i32 s{sM}, s{sW}, 24576
          s_mul_i32 s{sWO}, s{sW}, {448*896}
          s_lshl_b32 s3, s{sCB}, 7
          s_add_u32 s{sWO}, s{sWO}, s3""")
    small_addrs(a, sM)
    srd(a, WA, 18, 1792 * 896)
    srd(a, WB_, 8, 448 * 896)
    NC, RING = 18, 6
    def wissue(c):
        if c == 14:
            a(f"""s_mul_i32 s{sWO}, s{sW}, {112*896}
                  s_lshl_b32 s3, s{sCB}, 7
                  s_add_u32 s{sWO}, s{sWO}, s3""")
        for u in range(4):
            a(f"s_add_u32 m0, s{sM}, {(c % RING)*4096 + u*1024}")
            if c != 14 and (u or c): a(f"s_add_u32 s{sWO}, s{sWO}, {8*896 if (c <= 14 or u) else 4*896}")
            elif c == 14 and u: a(f"s_add_u32 s{sWO}, s{sWO}, {8*896}")
            a(f"buffer_load_dwordx4 v7, {s(WA if c < 14 else WB_,4)}, s{sWO} offen lds")
    gwait(a, 0, B_G3_DONE)
    for c in range(RING - 1): wissue(c)
    gelu_consts(a, R, DEN)
    a(f"""s_mul_i32 s3, s{sT3}, 112
          s_lshl_b32 s27, s{sCB3}, 3
          s_add_u32 s3, s3, s27
          s_lshl_b32 s3, s3, 10
          s_add_u32 s3, s3, {HHF}
          s_add_u32 s27, s3, 4096""")
    for f in range(8):
        gelu_pairs(a, [ACC + 8*f + 2*i for i in range(4)], 10, 12, 14, WF)
        for i in range(4): a(f"v_cvt_pk_bf16_f32 v{XR+4*f+i}, v{ACC+8*f+2*i}, v{ACC+8*f+2*i+1}")
        a(f"buffer_store_dwordx4 {v(XR+4*f,4)}, v0, {s(WD,4)}, s{3 if f < 4 else 27} offen offset:{(f&3)*1024}{SC}")
    a(f"""s_lshl_b32 s3, s{sT3}, 4
          s_add_u32 s3, s3, s{sCB3}
          s_lshl_b32 s3, s3, 2
          s_add_u32 s{sX}, s3, {F3}
          s_mul_i32 s{sA0}, s{sT}, 112
          s_mul_i32 s3, s{sW}, 28
          s_add_u32 s{sA0}, s{sA0}, s3
          s_lshl_b32 s{sA0}, s{sA0}, 10
          s_add_u32 s{sA0}, s{sA0}, {HHF}
          s_xor_b32 s{sA1}, s{sT}, 1
          s_mul_i32 s{sA1}, s{sA1}, 112
          s_add_u32 s{sA1}, s{sA1}, s3
          s_lshl_b32 s{sA1}, s{sA1}, 10
          s_add_u32 s{sA1}, s{sA1}, {HHF}
          s_mul_i32 s3, s{sW}, 7
          s_lshr_b32 s3, s3, 1
          s_lshl_b32 s26, s{sRB}, 5
          s_add_u32 s3, s3, s26
          v_and_b32 v10, 3, v1
          v_bfe_u32 v11, v1, 2, 1
          v_lshl_add_u32 v11, v11, 4, v10
          v_add_u32 v10, s3, v11
          v_lshlrev_b32 v10, 2, v10
          v_add_u32 v10, {F3}, v10
          s_lshl_b32 s3, s{sW}, 2
          s_add_u32 s3, s3, s26
          v_add_u32 v4, s3, v11
          v_lshlrev_b32 v4, 2, v4
          v_add_u32 v4, {FA}, v4
          s_waitcnt vmcnt(0)""")
    signal(a, sX)
    stamp(a, 9)
    ACC, WF, AR, EP = 16, 80, 96, 160
    poll(a, 10, 8)
    stamp(a, 10)
    def aissue(c):
        sl = c & 3
        if c == 14:
            poll(a, 4, 8)
            a(f"""s_lshl_b32 s{sA0}, s{sT}, 5
                  s_lshl_b32 s3, s{sW}, 3
                  s_add_u32 s{sA0}, s{sA0}, s3
                  s_lshl_b32 s{sA0}, s{sA0}, 10
                  s_add_u32 s{sA0}, s{sA0}, {OF}
                  s_xor_b32 s{sA1}, s{sA0}, {32*1024}""")
        for k in range(2):
            a(f"buffer_load_dwordx4 {v(AR+16*sl+8*k,4)}, v0, {s(WD,4)}, s{sA0} offen offset:{k*1024}{SC}")
            a(f"buffer_load_dwordx4 {v(AR+16*sl+8*k+4,4)}, v0, {s(WD,4)}, s{sA1} offen offset:{k*1024}{SC}")
        a(f"s_add_u32 s{sA0}, s{sA0}, 2048\ns_add_u32 s{sA1}, s{sA1}, 2048")
    q = []
    def A_(c): aissue(c); (q.clear() if c == 14 else None); q.extend([("a", c)] * 4)
    def W_(c): wissue(c); q.extend([("w", c)] * 4)
    for c in range(3): A_(c)
    for c in range(NC):
        sl = c & 3
        idx = [i for i, x in enumerate(q) if x[1] <= c]
        n_after = len(q) - (max(idx) + 1 if idx else 0)
        a(f"s_waitcnt vmcnt({n_after})")
        off = (c % RING) * 4096
        wreads(a, WF, 0, off)
        wreads(a, WF, 1, off + 2048)
        if c + RING - 1 < NC: W_(c + RING - 1)
        if c + 3 < NC and not (c + 3 >= 14 and c < 13): A_(c + 3) if c + 3 < 14 or c + 3 > 16 else None
        a("s_waitcnt lgkmcnt(4)")
        mfmas(a, ACC, WF, 0, AR+16*sl, AR+16*sl+4, c == 0)
        a("s_waitcnt lgkmcnt(0)")
        mfmas(a, ACC, WF, 1, AR+16*sl+8, AR+16*sl+12, False)
        if c == 13:
            stamp(a, 11)
            for cc in (14, 15, 16): A_(cc)
    def region3(d, j):
        a(f"s_xor_b32 s{d}, s{sW}, {j}\ns_mul_i32 s{d}, s{d}, 24576")
    reduce3(a, ACC, sM, region3, 0, B_G3_DONE + 4, True)
    srd(a, XS, 20, 2048 * 896)
    for i in range(8): a(f"v_pk_add_f32 {v(ACC+2*i,2)}, {v(ACC+2*i,2)}, {v(RES+2*i,2)}")
    for i in range(8): a(f"v_cvt_pk_bf16_f32 v{EP+i}, v{ACC+2*i}, v{ACC+2*i+1}")
    a(f"""v_and_b32 v8, 31, v1
          v_mul_u32_u24 v8, 896, v8
          v_lshrrev_b32 v9, 5, v1
          v_lshl_add_u32 v8, v9, 4, v8
          s_mul_i32 s3, s{sT}, {32*896}
          s_lshl_b32 s26, s{sCB}, 7
          s_add_u32 s3, s3, s26
          s_and_b32 s26, s{sW}, 1
          s_lshl_b32 s26, s26, 6
          s_add_u32 s3, s3, s26""")
    for jj in range(2):
        a(f"v_permlane32_swap_b32 v{EP+4*jj}, v{EP+4*jj+2}\nv_permlane32_swap_b32 v{EP+4*jj+1}, v{EP+4*jj+3}")
        a(f"buffer_store_dwordx4 {v(EP+4*jj,4)}, v8, {s(XS,4)}, s3 offen offset:{32*jj}")
    stamp_out2(a)
    a("s_endpgm")

def stamp_out2(a):
    if not common.STAMPS: return
    a("s_waitcnt vmcnt(0)")
    stamp(a, 6); stamp(a, 7, True)
    a("s_waitcnt lgkmcnt(0)")
    for i in range(12): a(f"v_mov_b32 v{16+i}, s{64+2*i}")
    a(f"""s_lshl_b32 s3, s2, 3
          s_add_u32 s3, s3, s60
          s_lshl_b32 s3, s3, 6
          s_add_u32 s3, s3, {TS}
          v_mov_b32 v8, 0""")
    for j in range(3): a(f"buffer_store_dwordx4 v[{16+4*j}:{19+4*j}], v8, {s(WD,4)}, s3 offen offset:{16*j}")

def build(name):
    a = A()
    a("s_cmp_ge_u32 s2, 256\ns_cbranch_scc1 K_end")
    load_args(a)
    a(f"""v_and_b32 v1, 63, v0
          v_lshrrev_b32 v8, 6, v0
          s_mov_b32 s59, {fb(2.0**100)}
          v_readfirstlane_b32 s60, v8
          v_lshlrev_b32 v0, 4, v1
          s_and_b32 s{sW}, s60, 3
          s_cmp_ge_u32 s60, 4
          s_cbranch_scc1 K_roleb""")
    p1a(a)
    att(a)
    a.label("K_roleb")
    p1b(a)
    roleb(a)
    a.label("K_end")
    a("s_endpgm")
    return a

if __name__ == "__main__":
    if "stamp" in sys.argv[1]: common.STAMPS = True
    name = "parallel_sum__mha_block__mixer_s_mlp__prompt_kernel"
    HDR = open("parallel_sum__mha_block__mixer_s_mlp__prompt.s.ref").read().split("; Override launch")[0]
    out = HDR + "; @launch grid=(256,1,1) block=(512,1,1) lds=163840\n" + '.amdgcn_target "amdgcn-amd-amdhsa--gfx950"\n'
    out += kernel_head(name) + build(name).text() + kernel_desc(name, vgpr=256, sgpr=96)
    open(sys.argv[1], "w").write(out)
```

```python
import sys
import common
from common import *

FLG = 0x1550000
FP, F2, F3, FA = FLG, FLG + 0x8000, FLG + 0x10000, FLG + 0x18000
XS, WA, WD, WB_ = 28, 32, 36, 40
sW, sSPIN = 46, 58
SC = " sc1"
CNT = 156 * 1024
C_B, C_A, C_S1, C_S2, C_S3, C_SA, C_W, C_X = 0, 4, 8, 12, 16, 20, 24, 28
SPIN_MAX = 1 << 16
import os
OPT = dict(x.split("=") for x in os.environ.get("MKOPT", "").split(",") if x)
def opt(k, d): return int(OPT.get(k, d))
SLEEP = opt("sleep", 1)
DEBUG = "dbg" in sys.argv[1] if len(sys.argv) > 1 else False
if DEBUG: WS_END = 0x3000000

def poll(a, vaddr, nlanes, srdreg=WD, soff="0"):
    L, D = a.newlabel("PL"), a.newlabel("PD")
    a(f"s_mov_b32 s{sSPIN}, {SPIN_MAX}")
    a(f"s_mov_b64 exec, {(1 << nlanes) - 1}" if nlanes <= 6 else f"s_bfm_b64 exec, {nlanes}, 0")
    a.label(L)
    a(f"""buffer_load_dword v9, v{vaddr}, {s(srdreg,4)}, {soff} offen sc1
          s_waitcnt vmcnt(0)
          v_cmp_eq_u32 vcc, 0, v9
          s_cbranch_vccz {D}
          s_sleep {SLEEP}
          s_sub_u32 s{sSPIN}, s{sSPIN}, 1
          s_cmp_lg_u32 s{sSPIN}, 0
          s_cbranch_scc1 {L}""")
    a.label(D)
    a("s_mov_b64 exec, -1")

SCB = "" if opt("local", 0) else " sc1"
def signal(a, soff, cnt, sc=" sc1"):
    a(f"""s_mov_b64 exec, 1
          v_mov_b32 v8, {CNT + cnt}
          v_mov_b32 v9, 1
          ds_add_rtn_u32 v8, v8, v9
          s_waitcnt lgkmcnt(0)
          v_readfirstlane_b32 s26, v8
          v_mov_b32 v8, 0
          s_cmp_eq_u32 s26, 3
          s_cselect_b32 s26, s{soff}, {OOB}
          buffer_store_dword v9, v8, {s(WD,4)}, s26 offen{sc}
          s_mov_b64 exec, -1""")

def garrive(a, off, field=0):
    a(f"""s_mov_b64 exec, 1
          v_mov_b32 v8, {CNT + off}
          v_mov_b32 v9, {1 << (4*field)}
          ds_add_u32 v8, v9
          s_mov_b64 exec, -1""")

def gwait(a, off, target, va=8, sr=3, field=None):
    L, D = a.newlabel("GL"), a.newlabel("GD")
    a(f"s_mov_b32 s{sSPIN}, {SPIN_MAX * 8}\nv_mov_b32 v{va}, {CNT + off}")
    a.label(L)
    a(f"""ds_read_b32 v{va+1}, v{va}
          s_sub_u32 s{sSPIN}, s{sSPIN}, 1
          s_cbranch_scc1 {D}
          s_waitcnt lgkmcnt(0)
          v_readfirstlane_b32 s{sr}, v{va+1}
          {"" if field is None else f"s_bfe_u32 s{sr}, s{sr}, {0x40000 + 4*field}"}
          s_cmp_lt_u32 s{sr}, {target}
          s_cbranch_scc1 {L}""")
    a.label(D)
    a("s_waitcnt lgkmcnt(0)")

def gbar(a, off, target):
    a("s_waitcnt lgkmcnt(0)")
    garrive(a, off); gwait(a, off, target)

def kloop(a, ACC, WF, XR, vA, tiles, offs, pre, perm, fill=(), R=8, D=6, cs=None):
    ops = [(s_, t) for s_ in range(28) for t in tiles]
    N = len(ops); fill = list(fill); done = 0
    def rd(m):
        s_, t = ops[m]
        if (s_ & 3) == 0 and t == tiles[0]:
            for x in pre.get(s_ >> 2, []): a(x)
        for e in range(2):
            row = 16 * (s_ & 3) + (8 * e if perm else 4 * e)
            a(f"ds_read_b64_tr_b16 {v(WF + 4*(m % R) + 2*e, 2)}, v{vA+t} offset:{offs(s_ >> 2) + row*256}")
    for m in range(D): rd(m)
    f0 = pre.get("fill0", 1)
    per = max(1, -(-len(fill) // (N - f0 - 1)))
    for m, (s_, t) in enumerate(ops):
        if (s_ & 3) == 0 and t == tiles[0]:
            for x in pre.get(("x", s_ >> 2), []): a(x)
        if t == tiles[0]:
            for x in pre.get(("s", s_), []): a(x)
        a(f"s_waitcnt lgkmcnt({2*min(D - 1, N - 1 - m)})")
        if t < 4: a(f"{MF} {v(ACC+16*t,16)}, {v(WF + 4*(m % R), 4)}, {v(XR(s_) if callable(XR) else XR+4*s_,4)}, {'0' if s_ == 0 else v(ACC+16*t,16)}")
        else: a(f"v_mfma_f32_16x16x32_bf16 {v(cs[0],4)}, {v(cs[1],4)}, {v(WF + 4*(m % R), 4)}, {'0' if s_ == 0 else v(cs[0],4)}")
        if m + D < N: rd(m + D)
        if (s_ & 3) == 0 and t == tiles[0]:
            for x in pre.get(("y", s_ >> 2), []): a(x)
        if t == tiles[1]:
            for x in pre.get(("t", s_), []): a(x)
        if m >= f0:
            for x in fill[done:done + per]: a(x)
            done += per
    for x in fill[done:]: a(x)

def kburst(a, ACC, WF, XR, vA, offs, pre, fill=()):
    fill = list(fill); per = -(-len(fill) // 26); done = 0
    def rd(s_):
        if (s_ & 3) == 0:
            for x in pre.get(s_ >> 2, []): a(x)
        for t in range(4):
            for e in range(2):
                a(f"ds_read_b64_tr_b16 {v(WF + 16*(s_ & 1) + 4*t + 2*e, 2)}, v{vA+t} offset:{offs(s_ >> 2) + (16*(s_ & 3) + 8*e)*256}")
    rd(0); rd(1)
    for s_ in range(28):
        if (s_ & 3) == 0:
            for x in pre.get(("x", s_ >> 2), []): a(x)
        a(f"s_waitcnt lgkmcnt({8 if s_ < 27 else 0})")
        for t in range(4):
            a(f"{MF} {v(ACC+16*t,16)}, {v(WF + 16*(s_ & 1) + 4*t, 4)}, {v(XR+4*s_,4)}, {'0' if s_ == 0 else v(ACC+16*t,16)}")
        if s_ + 2 < 28: rd(s_ + 2)
        if s_:
            for x in fill[done:done + per]: a(x)
            done += per

def tr_addrs(a, vA, sTS, base, perm, which=(0, 1, 2, 3, 4)):
    a(f"""v_lshrrev_b32 v8, 5, v1
          v_bfe_u32 v9, v1, 2, 2
          v_bfe_u32 v10, v1, 4, 1
          v_and_b32 v11, 3, v1
          v_lshl_add_u32 v10, v10, 2, v11
          v_lshl_add_u32 v8, v8, {2 if perm else 3}, v9
          v_lshlrev_b32 v8, 8, v8
          v_add_u32 v8, {base}, v8
          v_lshlrev_b32 v9, 2, v9""")
    for t in which:
        a(f"s_mul_i32 s26, {sTS}, {t}" if t < 4 else f"s_mul_i32 s26, {sTS}, s{sW}")
        a(f"""v_add_u32 v11, s26, v10
              v_lshrrev_b32 v12, 1, v11
              v_add_u32 v12, v12, v9
              v_and_b32 v12, 15, v12
              v_and_b32 v11, 1, v11
              v_lshlrev_b32 v11, 3, v11
              v_lshl_add_u32 v11, v12, 4, v11
              v_add_u32 v{vA+t}, v8, v11""")

def cs_publish(a, CS, T, xch):
    a(f"""v_cvt_pk_bf16_f32 v{T}, v{CS}, v{CS}
          v_and_b32 v{T+1}, 0xffff0000, v{T}
          v_sub_f32 v{T+1}, v{CS}, v{T+1}
          v_cvt_pk_bf16_f32 v{T}, v{CS}, v{T+1}
          v_and_b32 v10, 31, v1
          v_lshlrev_b32 v10, 2, v10
          v_add_u32 v10, {xch}, v10
          s_lshl_b32 s26, s{sW}, 7
          v_add_u32 v9, s26, v10
          ds_write_b32 v9, v{T}""")

def mean_fix(a, ACC, T, src, vMU0, vMU1, tiles=(0, 1, 2, 3)):
    n = len(tiles)
    a(f"v_mov_b32 v{T+4*n}, v{vMU0}\nv_mov_b32 v{T+4*n+1}, v{vMU1}\nv_mov_b32 v{T+4*n+2}, 0\nv_mov_b32 v{T+4*n+3}, 0")
    for i, t in enumerate(tiles):
        if src(t) != T + 4*i: a(f"v_mov_b32 v{T+4*i}, v{src(t)}")
        a(f"v_and_b32 v{T+4*i+1}, 0xffff, v{src(t)}\nv_mov_b32 v{T+4*i+2}, 0\nv_mov_b32 v{T+4*i+3}, 0")
    for i, t in enumerate(tiles): a(f"{MF} {v(ACC+16*t,16)}, {v(T+4*i,4)}, {v(T+4*n,4)}, {v(ACC+16*t,16)}")

def mu_frag(a, vmu, lo_en, d0, d1):
    a(f"""v_cvt_pk_bf16_f32 v{d0}, -v{vmu}, -v{vmu}
          v_and_b32 v8, 0xffff0000, v{d0}
          v_sub_f32 v8, -v{vmu}, v8
          v_cvt_pk_bf16_f32 v{d1}, v8, 0
          v_and_b32 v{d1}, {lo_en}, v{d1}
          v_lshrrev_b32 v8, 5, v1
          v_add_u32 v8, -1, v8
          v_and_b32 v{d0}, v8, v{d0}
          v_and_b32 v{d1}, v8, v{d1}""")

def gelu_consts(a, R, DEN):
    a(f"""v_mul_f32 v10, {fb(GK1)}, v{R}
          v_mul_f32 v12, v{R}, v{R}
          v_mul_f32 v12, v12, v{R}
          v_mul_f32 v12, {fb(GK2)}, v12
          v_mov_b32 v14, v{DEN}""")

def gelu8(regs0, K1, K2, IS, T, out):
    L = []
    for i in range(8): L.append(f"v_mul_f32 v{T+i}, v{regs0+i}, v{regs0+i}")
    for i in range(8): L.append(f"v_fma_f32 v{T+i}, v{T+i}, v{K2}, v{K1}")
    for i in range(8): L.append(f"v_mul_f32 v{T+i}, v{T+i}, v{regs0+i}")
    for i in range(8): L.append(f"v_exp_f32 v{T+i}, v{T+i}")
    for i in range(8): L.append(f"v_fma_f32 v{T+i}, v{T+i}, v{IS}, v{IS}")
    for i in range(8): L.append(f"v_rcp_f32 v{T+i}, v{T+i}")
    for i in range(8): L.append(f"v_mul_f32 v{T+i}, v{T+i}, v{regs0+i}")
    for i in range(4): L.append(f"v_cvt_pk_bf16_f32 v{out+i}, v{T+2*i}, v{T+2*i+1}")
    return L

def wrapinc(a, sreg, step, lim):
    a(f"s_add_u32 s{sreg}, s{sreg}, {step}\ns_cmp_eq_u32 s{sreg}, {lim}\ns_cselect_b32 s{sreg}, 0, s{sreg}")

def reduce3(a, ACC, sM, region, cnt_off, target, xor):
    a(f"v_add_u32 v10, s{sM}, v0")
    for j in range(1, 4):
        for i in range(4): a(f"ds_write_b128 v10, {v(ACC+16*j+4*i,4)} offset:{(j-1)*4096 + i*1024}")
    for j in range(1, 4):
        region(26, j)
        a(f"v_add_u32 v{10+j}, s26, v0")
    gbar(a, cnt_off, target)
    for j in range(1, 4):
        for i in range(4): a(f"ds_read_b128 {v(ACC+16*j+4*i,4)}, v{10+j} offset:{(j-1)*4096 + i*1024}")
    for j in range(1, 4):
        a(f"s_waitcnt lgkmcnt({4*(3-j)})")
        for i in range(16): a(f"v_add_f32 v{ACC+i}, v{ACC+i}, v{ACC+16*j+i}")

def unpack(a, dst, src, n):
    for i in range(n):
        a(f"v_lshlrev_b32 v{dst+2*i}, 16, v{src+i}\nv_and_b32 v{dst+2*i+1}, 0xffff0000, v{src+i}")

NBAR_P1 = 10
XB = 112 * 1024
XCH = XB + 16384
def p1a(a):
    a(f"s_setprio {opt('pa1', 2)}")
    ACC, CS, WF, XR, TMP = 16, 80, 96, 136, 248
    sRB, sCB, sTY, sSUB, sTS, sLO, sT = 44, 45, 47, 48, 50, 55, 56
    a(f"""s_and_b32 s26, s2, 7
          s_lshr_b32 s27, s2, 3
          s_lshr_b32 s{sRB}, s26, 1
          s_lshl_b32 s{sRB}, s{sRB}, 2
          s_and_b32 s3, s27, 3
          s_add_u32 s{sRB}, s{sRB}, s3
          s_and_b32 s{sCB}, s26, 1
          s_lshl_b32 s{sCB}, s{sCB}, 3
          s_lshr_b32 s3, s27, 2
          s_add_u32 s{sCB}, s{sCB}, s3
          s_lshr_b32 s{sTY}, s{sCB}, 2
          s_and_b32 s{sSUB}, s{sCB}, 3
          s_cmp_eq_u32 s{sTY}, 3
          s_cselect_b32 s{sTS}, 8, 7
          s_cselect_b32 s{sLO}, -1, 0
          s_lshl_b32 s{sT}, s{sRB}, 2
          s_add_u32 s{sT}, s{sT}, s{sW}""")
    tr_addrs(a, 2, f"s{sTS}", 0, perm=False)
    a(f"""v_and_b32 v8, 15, v1
          v_bfe_u32 v9, v1, 4, 1
          v_cmp_eq_u32 vcc, v8, v9
          v_mov_b32 v8, 0x3f803f80
          v_cndmask_b32 v{CS+4}, 0, v8, vcc
          v_mov_b32 v{CS+5}, v{CS+4}
          v_mov_b32 v{CS+6}, v{CS+4}
          v_mov_b32 v{CS+7}, v{CS+4}
          v_and_b32 v8, 31, v1
          v_lshrrev_b32 v9, 5, v1
          v_bfe_u32 v10, v1, 1, 3
          v_xor_b32 v9, v9, v10
          v_lshlrev_b32 v8, 7, v8
          v_lshl_add_u32 v8, v9, 4, v8
          s_lshl_b32 s3, s{sW}, 12
          s_add_u32 s3, s3, {XB}
          v_add_u32 v{CS+8}, s3, v8
          v_xor_b32 v{CS+9}, 32, v{CS+8}
          v_xor_b32 v{CS+10}, 64, v{CS+8}
          v_xor_b32 v{CS+11}, 96, v{CS+8}
          s_waitcnt lgkmcnt(0)""")
    srd(a, WD, 24, WS_END)
    ONE = TMP
    M0_, M1_, R, DEN = TMP+4, TMP+5, TMP+6, TMP+7
    a(f"""v_and_b32 v10, 31, v1
          v_lshlrev_b32 v10, 2, v10
          v_add_u32 v10, {XCH}, v10
""")
    stamp(a, 12)
    pre = {}
    for c in range(7):
        pre[c] = ["s_barrier"] + [f"ds_read_b128 {v(XR + 16*(c&1) + 4*i, 4)}, v{CS+8+i} offset:{(c % 3)*16384}" for i in range(4)]
        pre[("y", c)] = [f"v_dot2_f32_bf16 v{12+(i&1)}, v{XR+16*(c&1)+i}, v{XR+16*(c&1)+i}, {'0' if c == 0 and i < 2 else 'v%d' % (12+(i&1))}" for i in range(16)]
    if common.STAMPS:
        for c, st in ((0, 2), (1, 13), (3, 3)):
            g = A(); stamp(g, st); pre[c] = pre[c][:1] + g.l + pre[c][1:]
    pre[4] += [f"v_add_u32 v{2+t}, 0x10000, v{2+t}" for t in range(5)]
    kloop(a, ACC, WF, lambda s_: XR + 16*((s_ >> 2) & 1) + 4*(s_ & 3), 2, (0, 4, 1, 2, 3), lambda c: (c & 3) * 16384, pre, False, [], R=8, D=5, cs=(CS, CS+4))
    stamp(a, 4)
    for i in range(2):
        a(f"""v_cvt_pk_bf16_f32 v{WF+i}, v{CS+i}, v{CS+i}
              v_and_b32 v{WF+i}, 0xffff0000, v{WF+i}
              v_sub_f32 v{WF+i}, v{CS+i}, v{WF+i}
              v_cvt_pk_bf16_f32 v{WF+i}, v{CS+i}, v{WF+i}""")
    a(f"""s_lshl_b32 s26, s{sW}, 7
          v_add_u32 v11, s26, v10
          s_mov_b64 exec, 0xffff
          ds_write2_b32 v11, v{WF}, v{WF+1} offset1:16
          s_mov_b64 exec, -1
          v_mov_b32 v14, v{ACC+48+12}
          v_mov_b32 v15, v{ACC+48+12}
          v_add_f32 v13, v12, v13
          v_permlane32_swap_b32 v15, v14
          v_mov_b32 v12, v13
          v_permlane32_swap_b32 v13, v12
          v_add_f32 v13, v13, v12
          s_waitcnt lgkmcnt(0)
          s_barrier                              ; barrier 7""")
    stamp(a, 14)
    for t in range(4): a(f"ds_read_b32 v{WF+4*t}, v10 offset:{128*t}")
    a(f"""v_mul_f32 v12, {fb(1/448)}, v14""")
    mu_frag(a, 12, f"s{sLO}", M0_, M1_)
    bf16r(a, 10, "v12")
    a(f"""s_waitcnt lgkmcnt(0)
          v_mul_f32 v13, {fb(1/448)}, v13
          v_fma_f32 v13, -v12, v12, v13
          v_max_f32 v13, 0, v13""")
    mean_fix(a, ACC, WF, lambda t: WF + 4*t, M0_, M1_)
    bf16r(a, 8, "v13")
    a(f"""v_add_f32 v9, {fb(EPS)}, v13
          v_add_f32 v8, {fb(EPS)}, v8
          v_mov_b32 v14, {fb(EPS)}
          v_fma_f32 v9, v9, v14, v13""")
    bf16r(a, 8, "v8")
    a(f"""v_sqrt_f32 v9, v9
          v_sqrt_f32 v8, v8
          v_mov_b32 v14, s{sLO}""")
    bf16r(a, 8, "v8")
    a(f"""v_bfi_b32 v{DEN}, v14, v9, v8
          v_rcp_f32 v{R}, v{DEN}
          s_lshl_b32 s3, s{sT}, 8
          s_add_u32 s3, s3, {ST1}
          s_cmp_eq_u32 s{sCB}, 0
          s_cselect_b32 s3, s3, {OOB}
          v_lshlrev_b32 v8, 3, v1
          v_and_b32 v8, 0xff, v8
          v_mov_b32 v11, v{R}
          buffer_store_dwordx2 v[10:11], v8, {s(WD,4)}, s3 offen{SC}""")
    a(f"""v_lshrrev_b32 v8, 5, v1
          v_add_u32 v8, -1, v8
          s_cmp_eq_u32 s{sTY}, 3
          s_cbranch_scc1 P1_h
          s_cmp_eq_u32 s{sTY}, 0
          s_cselect_b32 s3, {fb(QSCALE)}, 1.0
          v_mul_f32 v10, s3, v{R}
          s_cmp_eq_u32 s{sTY}, 1
          s_cselect_b32 s27, 0x3f803f80, 0
          s_cselect_b32 s3, 0x3f80, 0
          s_cmp_eq_u32 s{sTY}, 2
          s_cselect_b32 s27, 0x3f80, s27
          v_mov_b32 v12, s27
          v_mov_b32 v13, s3""")
    a(f"""s_lshl_b32 s3, s{sSUB}, 8
          s_add_u32 s3, s3, s{sT}
          s_cmp_eq_u32 s{sTY}, 0
          s_cselect_b32 s27, 11, 12
          s_lshl_b32 s3, s3, s27
          s_lshl_b32 s26, 64, s27
          s_lshl_b32 s27, s{sTY}, 11
          s_add_u32 s27, s27, {KVF - 2048}
          s_cmp_eq_u32 s{sTY}, 0
          s_cselect_b32 s27, {QF}, s27
          s_add_u32 s3, s3, s27
          s_cmp_eq_u32 s{sTY}, 2
          s_cbranch_scc1 P1_v""")
    def pack(t):
        for i in range(8): a(f"v_pk_mul_f32 {v(ACC+16*t+2*i,2)}, {v(ACC+16*t+2*i,2)}, v[10:11] op_sel_hi:[1,0]")
        for i in range(8): a(f"v_cvt_pk_bf16_f32 v{XR+8*t+i}, v{ACC+16*t+2*i}, v{ACC+16*t+2*i+1}")
        a(f"v_bfi_b32 v{XR+8*t+6}, v8, v{XR+8*t+6}, v12\nv_bfi_b32 v{XR+8*t+7}, v8, v{XR+8*t+7}, v13")
    def put(t):
        for f_ in range(2): a(f"buffer_store_dwordx4 {v(XR+8*t+4*f_,4)}, v0, {s(WD,4)}, s3 offen offset:{f_*1024}{SC}")
        if t < 3: a("s_add_u32 s3, s3, s26")
    for t in range(4): pack(t); put(t)
    a("s_branch P1_done")
    a.label("P1_v")
    a(f"""s_mul_i32 s27, s{sW}, 9216
          v_and_b32 v9, 31, v1
          v_mul_u32_u24 v9, 72, v9
          v_lshrrev_b32 v14, 5, v1
          v_lshl_add_u32 v9, v14, 3, v9
          v_add_u32 v9, s27, v9
          v_bfe_u32 v15, v1, 2, 2
          v_lshl_add_u32 v14, v14, 2, v15
          v_mul_u32_u24 v14, 72, v14
          v_bfe_u32 v15, v1, 4, 1
          v_lshl_add_u32 v14, v15, 5, v14
          v_and_b32 v15, 3, v1
          v_lshl_add_u32 v14, v15, 3, v14
          v_add_u32 v14, s27, v14""")
    for t in range(5):
        if t < 4:
            pack(t)
            for j in range(4): a(f"ds_write_b64 v9, {v(XR+8*t+2*j,2)} offset:{t*2304 + 16*j}")
        if t:
            a(f"s_waitcnt lgkmcnt({4 if t < 4 else 0})")
            put(t - 1)
        if t < 4:
            a("s_waitcnt lgkmcnt(0)")
            for f_ in range(2):
                for e in range(2): a(f"ds_read_b64_tr_b16 {v(XR+8*t+4*f_+2*e,2)}, v14 offset:{t*2304 + (16*f_+8*e)*72}")
    a("s_branch P1_done")
    a.label("P1_h")
    gelu_consts(a, R, DEN)
    a(f"""s_mul_i32 s3, s{sT}, 28
          s_mul_i32 s27, s{sSUB}, 7
          s_add_u32 s3, s3, s27
          s_lshl_b32 s3, s3, 10
          s_add_u32 s3, s3, {HF}
          s_add_u32 s27, s3, 4096""")
    for f in range(7):
        gelu_pairs(a, [ACC + 8*f + 2*i for i in range(4)], 10, 12, 14, WF)
        for i in range(4): a(f"v_cvt_pk_bf16_f32 v{XR+4*f+i}, v{ACC+8*f+2*i}, v{ACC+8*f+2*i+1}")
        a(f"buffer_store_dwordx4 {v(XR+4*f,4)}, v0, {s(WD,4)}, s{3 if f < 4 else 27} offen offset:{(f&3)*1024}{SC}")
    a.label("P1_done")
    a("s_barrier")
    stamp(a, 15)
    a(f"""s_waitcnt vmcnt(0)
          s_lshl_b32 s3, s{sCB}, 4
          s_add_u32 s3, s3, s{sRB}
          s_lshl_b32 s3, s3, 7
          s_add_u32 s3, s3, {FP}""")
    signal(a, 3, 8)
    stamp(a, 5)

O_, Q_, S_, E_, P_, KV = 16, 80, 112, 144, 152, 160
sH, sQB, sKV, sN, sMA, sKB = 44, 45, 50, 51, 47, 52
AR_BASE = 100 * 1024

def unit(a, n, q, extra):
    Sc, Sn = S_ + 16*(q & 1), S_ + 16*((q+1) & 1)
    nn, nq = (n, q+1) if q < 3 else ((n+1) & 3, 0)
    pn, pq = (n, q-1) if q > 0 else ((n-1) & 3, 3)
    K, Vc, Vp = KV + 16*nn, KV + 16*n + 8, KV + 16*pn + 8
    e = lambda i: a(f"v_exp_f32 v{E_+(i&7)}, v{Sc+i}")
    c = lambda k: a(f"v_cvt_pk_bf16_f32 v{P_+k}, v{E_+((2*k)&7)}, v{E_+((2*k+1)&7)}")
    for x in extra.get(0, []): a(x)
    a(f"{MF} {v(Sn,16)}, {v(K,4)}, {v(Q_+8*nq,4)}, 0")
    e(0); c(6); e(1); c(7); e(2); e(3)
    a(f"{MF} {v(O_+16*pq,16)}, {v(Vp+4,4)}, {v(P_+4,4)}, {v(O_+16*pq,16)}")
    for x in extra.get(1, []): a(x)
    e(4); c(0); e(5); c(1); e(6); e(7)
    a(f"{MF} {v(Sn,16)}, {v(K+4,4)}, {v(Q_+8*nq+4,4)}, {v(Sn,16)}")
    for x in extra.get(2, []): a(x)
    e(8); c(2); e(9); c(3); e(10); e(11)
    a(f"{MF} {v(O_+16*q,16)}, {v(Vc,4)}, {v(P_,4)}, {v(O_+16*q,16)}")
    e(12); c(4); e(13); c(5); e(14); e(15)

def kvload(slot, f):
    return f"buffer_load_dwordx4 {v(KV+16*slot+4*f,4)}, v0, {s(WD,4)}, s{sKV} offen offset:{f*1024}{SC}"
def kvnext():
    return [f"s_add_u32 s3, s{sKV}, 4096", "s_and_b32 s3, s3, 0xffff", f"s_or_b32 s{sKV}, s3, s{sKB}"]

def att(a):
    if p1stamps():
        global stamp
        stamp = lambda *x: None
    a(f"""s_and_b32 s26, s2, 7
          s_lshr_b32 s27, s2, 3
          s_lshl_b32 s{sH}, s26, 1
          s_and_b32 s3, s27, 1
          s_add_u32 s{sH}, s{sH}, s3
          s_lshr_b32 s{sQB}, s27, 1
          s_mul_i32 s{sMA}, s{sW}, 12288
          s_add_u32 s{sMA}, s{sMA}, {AR_BASE}
          s_lshl_b32 s{sKB}, s{sH}, 2
          s_add_u32 s{sKB}, s{sKB}, s{sW}
          s_lshl_b32 s{sKB}, s{sKB}, 16
          s_add_u32 s{sKB}, s{sKB}, {KVF}
          s_lshl_b32 s3, s{sQB}, 12
          s_or_b32 s{sKV}, s{sKB}, s3
          s_lshr_b32 s3, s{sH}, 2
          s_lshl_b32 s3, s3, 4
          v_and_b32 v10, 3, v1
          s_lshl_b32 s26, s{sW}, 2
          s_add_u32 s26, s26, s3
          s_add_u32 s26, s26, 64
          v_add_u32 v10, s26, v10
          v_bfe_u32 v11, v1, 2, 1
          v_lshl_add_u32 v10, v11, 6, v10
          s_add_u32 s3, s3, s{sQB}
          v_writelane_b32 v10, s3, 8             ; lane 8: Q
          v_lshlrev_b32 v10, 7, v10
          v_add_u32 v10, {FP}, v10""")
    for i in range(64): a(f"v_mov_b32 v{O_+i}, 0")
    for i in range(8): a(f"v_mov_b32 v{E_+i}, 0\nv_mov_b32 v{P_+i}, 0")
    for i in range(4): a(f"v_mov_b32 v{KV+48+12+i}, 0")
    poll(a, 10, 9)
    if opt("ayield", 1): gwait(a, C_X, 4)
    stamp(a, 8)
    for j in range(4):
        a(f"""s_add_u32 s3, s{sW}, {j}
              s_and_b32 s3, s3, 3
              s_lshl_b32 s26, s{sH}, 4
              s_add_u32 s26, s26, s{sQB}
              s_lshl_b32 s26, s26, 2
              s_add_u32 s3, s3, s26
              s_lshl_b32 s3, s3, 11
              s_add_u32 s3, s3, {QF}""")
        for f in range(2): a(f"buffer_load_dwordx4 {v(Q_+8*j+4*f,4)}, v0, {s(WD,4)}, s3 offen offset:{f*1024}{SC}")
        if j == 0:
            for f in range(4): a(kvload(0, f))
            for x in kvnext(): a(x)
    for n in range(1, 3):
        for f in range(4): a(kvload(n, f))
        for x in kvnext(): a(x)
    a(f"s_mov_b32 s{sN}, 4\ns_waitcnt vmcnt(14)")
    a(f"{MF} {v(S_,16)}, {v(KV,4)}, {v(Q_,4)}, 0")
    a(f"{MF} {v(S_,16)}, {v(KV+4,4)}, {v(Q_+4,4)}, {v(S_,16)}")
    a(f"s_setprio {opt('pa2', 0)}\ns_waitcnt vmcnt(8)")
    stamp(a, 9)
    a(".p2align 3")
    a.label("AT_loop")
    for n in range(4):
        ld = (n + 3) & 3
        kvl = kvload if not opt("nokv", 0) else (lambda a_, b_: "s_nop 0")
        if opt("kvprio", 1):
            unit(a, n, 0, {1: ["s_setprio 3", kvl(ld, 0), kvl(ld, 1)], 2: [kvl(ld, 2), kvl(ld, 3), f"s_setprio {opt('pa2', 0)}"]})
            unit(a, n, 1, {1: kvnext()})
            unit(a, n, 2, {})
            ex = {0: ["s_waitcnt vmcnt(8)"], 2: []}
        else:
            unit(a, n, 0, {2: [kvl(ld, 0)]})
            unit(a, n, 1, {1: [kvl(ld, 1)]})
            unit(a, n, 2, {1: [kvl(ld, 2)]})
            ex = {0: ["s_waitcnt vmcnt(7)"], 1: [kvl(ld, 3)], 2: kvnext()}
        if n == 3: ex[2] += [f"s_sub_u32 s{sN}, s{sN}, 1", f"s_cmp_lg_u32 s{sN}, 0"]
        unit(a, n, 3, ex)
    a("s_cbranch_scc1 AT_loop")
    a(f"v_cvt_pk_bf16_f32 v{P_+6}, v{E_+4}, v{E_+5}\nv_cvt_pk_bf16_f32 v{P_+7}, v{E_+6}, v{E_+7}")
    a(f"{MF} {v(O_+48,16)}, {v(KV+48+12,4)}, {v(P_+4,4)}, {v(O_+48,16)}")
    stamp(a, 10)
    a(f"s_setprio {opt('pa1', 2)}")
    gwait(a, 0, B_G3_DONE)
    def region(d, j):
        a(f"""s_sub_u32 s{d}, s{sW}, {j}
              s_and_b32 s{d}, s{d}, 3
              s_mul_i32 s{d}, s{d}, 12288
              s_add_u32 s{d}, s{d}, {AR_BASE}""")
    reduce3(a, O_, sMA, region, C_A, 4, False)
    a(f"""v_mov_b32 v10, v{O_+12}
          v_mov_b32 v11, v{O_+12}
          v_permlane32_swap_b32 v11, v10
          v_mov_b32 v12, v10
          v_mov_b32 v13, 0""")
    for i in range(16): a(f"v_fma_f32 v{12+(i&1)}, v{O_+i}, 0, v{12+(i&1)}")
    a(f"""v_add_f32 v12, v12, v13                ; row sum, or NaN if any accumulator is not finite
          v_cmp_le_f32 vcc, {fb(2.0**-80)}, v12
          v_cmp_ge_f32 s[26:27], s59, v12
          s_and_b64 vcc, vcc, s[26:27]
          s_cmp_eq_u64 vcc, -1
          s_cbranch_scc0 AT_slow""".replace("s59", "s59"))
    a.label("AT_norm")
    a(f"""v_rcp_f32 v10, v10
          v_lshrrev_b32 v8, 5, v1
          v_add_u32 v8, -1, v8""")
    for i in range(16): a(f"v_mul_f32 v{O_+i}, v{O_+i}, v10")
    for i in range(8): a(f"v_cvt_pk_bf16_f32 v{P_+i}, v{O_+2*i}, v{O_+2*i+1}")
    a(f"""v_and_b32 v{P_+6}, v8, v{P_+6}
          v_and_b32 v{P_+7}, v8, v{P_+7}
          s_lshl_b32 s26, s{sQB}, 2
          s_add_u32 s26, s26, s{sW}
          s_lshl_b32 s26, s26, 4
          s_add_u32 s26, s26, s{sH}
          s_lshl_b32 s3, s26, 11
          s_add_u32 s3, s3, {OF}
          buffer_store_dwordx4 {v(P_,4)}, v0, {s(WD,4)}, s3 offen{SC}
          buffer_store_dwordx4 {v(P_+4,4)}, v0, {s(WD,4)}, s3 offen offset:1024{SC}
          s_lshl_b32 s3, s{sQB}, 4
          s_add_u32 s3, s3, s{sH}
          s_lshl_b32 s3, s3, 7
          s_add_u32 s3, s3, {FA}
          s_waitcnt vmcnt(0)""")
    signal(a, 3, 20)
    stamp(a, 11)
    stamp_out2(a)
    a("s_endpgm")
    a.label("AT_slow")
    a(f"""s_waitcnt vmcnt(0)
          s_lshl_b32 s{sKB}, s{sH}, 18
          s_add_u32 s{sKB}, s{sKB}, {KVF}
          s_mov_b32 s{sKV}, s{sKB}
          s_mov_b32 s{sN}, 64
          v_mov_b32 v12, 0xff800000""")
    a.label("AT_s1")
    a(kvload(0, 0)); a(kvload(0, 1))
    a(f"""s_add_u32 s{sKV}, s{sKV}, 4096
          s_waitcnt vmcnt(0)
          {MF} {v(S_,16)}, {v(KV,4)}, {v(Q_,4)}, 0
          {MF} {v(S_,16)}, {v(KV+4,4)}, {v(Q_+4,4)}, {v(S_,16)}""")
    for i in range(8): a(f"v_max3_f32 v12, v12, v{S_+2*i}, v{S_+2*i+1}")
    a(f"""s_sub_u32 s{sN}, s{sN}, 1
          s_cmp_lg_u32 s{sN}, 0
          s_cbranch_scc1 AT_s1
          v_mov_b32 v13, v12
          v_permlane32_swap_b32 v12, v13
          v_max_f32 v12, v12, v13
          v_cvt_pk_bf16_f32 v13, -v12, -v12
          v_and_b32 v13, 0xffff0000, v13
          v_sub_f32 v12, -v12, v13
          v_cvt_pk_bf16_f32 v14, v12, v12
          v_and_b32 v14, 0xffff0000, v14
          v_sub_f32 v12, v12, v14
          v_cvt_pk_bf16_f32 v13, v13, v14
          v_cvt_pk_bf16_f32 v14, v12, 0
          v_lshrrev_b32 v8, 5, v1
          v_add_u32 v8, -1, v8
          v_bfi_b32 v{Q_+6}, v8, v{Q_+6}, v13
          v_bfi_b32 v{Q_+7}, v8, v{Q_+7}, v14
          s_mov_b32 s{sKV}, s{sKB}
          s_mov_b32 s{sN}, 64""")
    for i in range(16): a(f"v_mov_b32 v{O_+i}, 0")
    a.label("AT_s2")
    for f in range(4): a(kvload(0, f))
    a(f"""s_add_u32 s{sKV}, s{sKV}, 4096
          s_waitcnt vmcnt(0)
          {MF} {v(S_,16)}, {v(KV,4)}, {v(Q_,4)}, 0
          {MF} {v(S_,16)}, {v(KV+4,4)}, {v(Q_+4,4)}, {v(S_,16)}""")
    for i in range(16): a(f"v_exp_f32 v{S_+i}, v{S_+i}")
    for i in range(8): a(f"v_cvt_pk_bf16_f32 v{P_+i}, v{S_+2*i}, v{S_+2*i+1}")
    a(f"""{MF} {v(O_,16)}, {v(KV+8,4)}, {v(P_,4)}, {v(O_,16)}
          {MF} {v(O_,16)}, {v(KV+12,4)}, {v(P_+4,4)}, {v(O_,16)}
          s_sub_u32 s{sN}, s{sN}, 1
          s_cmp_lg_u32 s{sN}, 0
          s_cbranch_scc1 AT_s2
          v_mov_b32 v10, v{O_+12}
          v_mov_b32 v11, v{O_+12}
          v_permlane32_swap_b32 v11, v10
          s_branch AT_norm""")

B_G3_DONE = 20
G2_BASE = 100 * 1024
RES = 224

def p1b(a):
    bst = (lambda i: common.stamp(a, i)) if p1stamps() else (lambda i: None)
    sRB, sCB, sT = 44, 45, 48
    sROW, sWO, sK, sCOL = 49, 50, 51, 52
    WB = 0x1C000
    XT = 232
    if opt("codepf", 1):
        nseg = opt("nseg", 5)
        a(f"""s_lshr_b32 s26, s2, 3
              s_cmp_ge_u32 s26, {nseg}
              s_cbranch_scc1 PB_nopf
              s_cmp_lg_u32 s{sW}, 0
              s_cbranch_scc1 PB_nopf
              s_getpc_b64 s[62:63]""")
        a.label("PB_pc")
        a(f"""s_lshl_b32 s26, s26, 13
              s_sub_u32 s62, s62, PB_pc-K_start
              s_subb_u32 s63, s63, 0
              s_add_u32 s62, s62, s26
              s_addc_u32 s63, s63, 0
              v_lshlrev_b32 v8, 7, v1
              v_add_u32 v9, s26, v8
              v_cmp_gt_u32 vcc, K_last-K_start, v9
              v_mov_b32 v11, s63
              v_add_co_u32 v10, s[26:27], s62, v8
              v_addc_co_u32 v11, s[26:27], 0, v11, s[26:27]
              s_and_saveexec_b64 s[26:27], vcc
              s_cbranch_execz PB_pfx
              global_load_dword v16, v[10:11], off""")
        a.label("PB_pfx")
        a("s_mov_b64 exec, -1")
        a.label("PB_nopf")
    a(f"""s_and_b32 s26, s2, 1
          s_lshl_b32 s26, s26, 3
          s_lshr_b32 s3, s2, 5
          s_add_u32 s26, s26, s3
          s_bfe_u32 s{sK}, s2, 0x20003
          s_lshl_b32 s54, s{sK}, 1
          s_add_u32 s54, s54, s3
          s_mul_i32 s3, s54, 37
          s_lshr_b32 s3, s3, 8
          s_mul_i32 s3, s3, 7
          s_sub_u32 s54, s54, s3
          s_mul_i32 s54, s54, {opt("rotw", 1)}
          s_bfe_u32 s3, s2, 0x20001
          s_lshl_b32 s3, s3, 2
          s_add_u32 s3, s3, s{sK}
          s_lshl_b32 s3, s3, 2
          s_add_u32 s3, s3, s{sW}
          s_lshl_b32 s56, s3, 5
          s_and_b32 s27, s26, 3
          s_lshr_b32 s3, s27, 1
          s_add_u32 s3, s3, 1
          s_sub_u32 s57, 0, s3
          s_bitcmp1_b32 s27, 0
          s_cselect_b32 s3, s3, s57
          s_movk_i32 s{sROW}, 2688
          s_cmp_ge_u32 s26, 12
          s_cselect_b32 s3, s3, 0
          s_cselect_b32 s{sROW}, 896, s{sROW}
          s_cselect_b32 s27, s27, s26
          s_add_u32 s56, s56, s3
          s_mul_i32 s{sCOL}, s27, 224
          v_lshrrev_b32 v8, 3, v1
          v_add_u32 v8, s56, v8
          s_movk_i32 s3, 896
          v_mul_i32_i24 v8, s3, v8
          v_bfe_u32 v9, v1, 4, 2
          v_and_b32 v10, 7, v1
          v_xor_b32 v9, v9, v10
          v_lshl_add_u32 v2, v9, 4, v8
          v_xor_b32 v9, 4, v9
          v_lshl_add_u32 v3, v9, 4, v8
          v_add_u32 v3, {8*896}, v3
          v_add_u32 v4, {16*896}, v2
          v_add_u32 v5, {16*896}, v3
          v_lshrrev_b32 v8, 4, v1
          v_lshlrev_b32 v9, 2, v8
          v_sub_u32 v9, v1, v9
          v_and_b32 v9, 15, v9
          v_mul_u32_u24 v8, s{sROW}, v8
          v_lshl_add_u32 v7, v9, 4, v8
          v_cmp_gt_u32 s[62:63], 14, v9
          s_lshl_b32 s{sK}, s54, 6
          s_lshl_b32 s54, s54, 7
          s_lshl_b32 s3, s{sW}, 4
          s_mul_i32 s3, s3, s{sROW}
          s_add_u32 s{sCOL}, s{sCOL}, s3
          s_lshl_b32 s53, s{sROW}, 2
          s_lshl_b32 s55, s{sW}, 12
          s_waitcnt lgkmcnt(0)
          s_cmp_ge_u32 s26, 12
          s_cselect_b32 s{WA}, s12, s6
          s_cselect_b32 s{WA+1}, s13, s7
          s_mul_i32 s{WA+2}, s{sROW}, 448
          s_mov_b32 s{WA+3}, 0x20000""")
    srd(a, XS, 4, 2048 * 896)
    q = []
    gap = []
    def ride(n):
        for x in gap[:n]: a(x)
        del gap[:n]
    def xchunk(c):
        for g in range(4):
            a(f"s_add_u32 m0, s55, {XB + (c % 3)*16384 + g*1024}")
            a(f"s_nop 0\nbuffer_load_dwordx4 v{2+g}, {s(XS,4)}, s54 offen lds")
            ride(9)
        wrapinc(a, 54, 128, 896)
        q.extend([c] * 4)
    def wchunk(c):
        a(f"""s_mul_i32 s{sWO}, s{sK}, s{sROW}
              s_add_u32 s{sWO}, s{sWO}, s{sCOL}""")
        wrapinc(a, sK, 64, 448)
        a("s_mov_b64 exec, s[62:63]")
        for u in range(4):
            a(f"s_add_u32 m0, s55, {c*16384 + u*1024}")
            if u: a(f"s_add_u32 s{sWO}, s{sWO}, s53")
            a(f"buffer_load_dwordx4 v7, {s(WA,4)}, s{sWO} offen lds")
        a("s_mov_b64 exec, -1")
        q.extend([c] * 4)
    xchunk(0); wchunk(0)
    a(f"""v_lshrrev_b32 v8, 1, v1
          v_and_b32 v9, 15, v8
          v_lshrrev_b32 v10, 4, v8
          v_lshlrev_b32 v10, 14, v10
          v_lshl_add_u32 v10, v9, 8, v10
          v_and_b32 v9, 3, v8
          v_lshlrev_b32 v9, 2, v9
          v_and_b32 v8, 1, v1
          v_add3_u32 v9, v9, v8, 14
          v_and_b32 v9, 15, v9
          v_lshl_add_u32 v10, v9, 4, v10
          v_add_u32 v10, s55, v10
          v_add_u32 v11, 0x10000, v10
          v_mov_b32 v12, 0x3f803f80
          v_mov_b32 v13, v12
          v_mov_b32 v14, v12
          v_mov_b32 v15, v12
          ds_write_b128 v10, v[12:15]
          ds_write_b128 v10, v[12:15] offset:32768
          ds_write_b128 v11, v[12:15]
          s_mov_b64 exec, 0xffffffff
          ds_write_b128 v11, v[12:15] offset:32768
          s_mov_b64 exec, -1""")
    srd(a, WD, 24, WS_END)
    srd(a, WB_, 22, 256)
    xchunk(1)
    if opt("w1e", 1): wchunk(1)
    a(f"""s_lshl_b32 s61, s{sW}, 4
          s_or_b32 s61, s61, s2
          v_mov_b32 v12, 0
          s_cmp_ge_u32 s61, 16
          s_cbranch_scc1 PB_noinit
          v_lshlrev_b32 v13, 7, v1
          s_lshl_b32 s3, s2, 13
          s_add_u32 s3, s3, {FLG}
          buffer_store_dword v12, v13, {s(WD,4)}, s3 offen{SC}""")
    a.label("PB_noinit")
    small_setup(a, sRB, sCB, sT)
    tail = A()
    tail(f"""v_lshrrev_b32 v8, 2, v1
          v_mul_u32_u24 v8, 896, v8
          v_bfe_u32 v9, v1, 4, 2
          v_and_b32 v10, 3, v1
          v_xor_b32 v9, v9, v10
          v_lshl_add_u32 v8, v9, 4, v8
          s_mul_i32 s3, s{sT}, {32*896}
          s_lshl_b32 s26, s{sCB}, 7
          s_add_u32 s3, s3, s26
          s_and_b32 s26, s{sW}, 1
          s_lshl_b32 s26, s26, 6
          s_add_u32 s3, s3, s26
          s_add_u32 s26, s3, {16*896}
          buffer_load_dwordx4 {v(XT,4)}, v8, {s(XS,4)}, s3 offen
          buffer_load_dwordx4 {v(XT+4,4)}, v8, {s(XS,4)}, s26 offen""")
    ntail = 2
    if opt("wtouch", 1):
        ntail += 4
        tail(f"""v_lshlrev_b32 v8, 7, v1
              s_lshl_b32 s57, s2, 2
              s_add_u32 s57, s57, s{sW}
              s_mov_b32 s{XS+2}, {448*896}
              s_lshl_b32 s3, s57, 9
              s_mov_b64 exec, 15
              s_mov_b32 s{XS}, s14
              s_mov_b32 s{XS+1}, s15
              buffer_load_dword v16, v8, {s(XS,4)}, s3 offen
              s_mov_b32 s{XS}, s8
              s_mov_b32 s{XS+1}, s9
              buffer_load_dword v17, v8, {s(XS,4)}, s3 offen
              s_mov_b32 s{XS+2}, {448*3584}
              s_mul_i32 s3, s57, {13*128}
              s_bfm_b64 exec, 13, 0
              s_mov_b32 s{XS}, s16
              s_mov_b32 s{XS+1}, s17
              buffer_load_dword v18, v8, {s(XS,4)}, s3 offen
              s_mov_b32 s{XS}, s18
              s_mov_b32 s{XS+1}, s19
              buffer_load_dword v19, v8, {s(XS,4)}, s3 offen
              s_mov_b64 exec, -1""")
    bst(2)
    for c in range(7):
        last = max(i for i, x in enumerate(q) if x == c)
        a(f"s_waitcnt vmcnt({len(q) - 1 - last}) lgkmcnt(0)")
        bst((3, 12, 13, 4, 5, 14, 8)[c])
        a("s_barrier")
        if c == 2:
            a(f"""s_cmp_ge_u32 s61, 16
                  s_cbranch_scc1 PB_noset
                  s_lshl_b32 s3, s2, 2
                  v_mov_b32 v9, 1
                  s_mov_b64 exec, 1
                  buffer_store_dword v9, v12, {s(WB_,4)}, s3 offen{SC}
                  s_mov_b64 exec, -1""")
            a.label("PB_noset")
        if c == 0 and not opt("w1e", 1): wchunk(1)
        if c + 2 < 7: xchunk(c + 2); wchunk(c + 2)
        if c == 4:
            for x in tail.l: a(x)
            q.extend([99] * ntail)
        ride(999)
    a(f"""v_mov_b32 v8, {CNT}
          v_mov_b32 v12, 0
          v_mov_b32 v13, 0
          v_mov_b32 v14, 0
          v_mov_b32 v15, 0
          s_barrier                              ; barrier 7
          ds_write_b128 v8, v[12:15]
          ds_write_b128 v8, v[12:15] offset:16
          v_lshlrev_b32 v10, 2, v1""")
    poll(a, 10, 16, WB_)
    bst(9)
    a("s_waitcnt lgkmcnt(0)\ns_barrier              ; barrier 8")
    bst(10); bst(11); bst(15)

def small_setup(a, sRB, sCB, sT):
    a(f"""s_and_b32 s26, s2, 7
          s_lshr_b32 s27, s2, 3
          s_lshl_b32 s{sRB}, s26, 2
          s_and_b32 s3, s27, 3
          s_add_u32 s{sRB}, s{sRB}, s3
          s_lshr_b32 s{sCB}, s27, 2
          s_lshr_b32 s3, s{sW}, 1
          s_lshl_b32 s{sT}, s{sRB}, 1
          s_add_u32 s{sT}, s{sT}, s3""")

def small_addrs(a, sM):
    a(f"""v_lshrrev_b32 v8, 3, v1
          v_bfe_u32 v9, v1, 4, 1
          v_lshlrev_b32 v9, 2, v9
          v_and_b32 v10, 7, v1
          v_xor_b32 v9, v9, v10
          v_mul_u32_u24 v8, 896, v8
          v_lshl_add_u32 v7, v9, 4, v8
          v_lshrrev_b32 v8, 5, v1
          v_bfe_u32 v9, v1, 2, 2
          v_lshl_add_u32 v8, v8, 2, v9
          v_lshlrev_b32 v8, 7, v8
          v_bfe_u32 v10, v1, 4, 1
          v_bfe_u32 v11, v1, 1, 1
          v_lshl_add_u32 v10, v10, 1, v11
          v_bfe_u32 v11, v1, 3, 1
          v_lshl_add_u32 v10, v11, 2, v10
          v_lshl_add_u32 v8, v10, 4, v8
          v_and_b32 v11, 1, v1
          v_lshl_add_u32 v8, v11, 3, v8
          s_and_b32 s3, s{sW}, 1
          s_lshl_b32 s3, s3, 6
          v_xor_b32 v8, s3, v8
          v_add_u32 v2, s{sM}, v8
          v_xor_b32 v8, 64, v8
          v_add_u32 v3, s{sM}, v8""")

def wreads(a, WF, buf, off):
    for b in range(2):
        for e in range(2): a(f"ds_read_b64_tr_b16 {v(WF+8*buf+4*b+2*e,2)}, v{2+b} offset:{off + 8*e*128}")
def mfmas(a, ACC, WF, buf, act0, act1, first):
    for aa, ar in enumerate((act0, act1)):
        for b in range(2):
            j = 2*aa + b
            a(f"{MF} {v(ACC+16*j,16)}, {v(WF+8*buf+4*b,4)}, {v(ar,4)}, {'0' if first else v(ACC+16*j,16)}")

def roleb(a):
    ACC, WF, AR, EP = 16, 80, 112, 176
    sRB, sCB, sT, sM, sK, sKA, sX = 44, 45, 48, 47, 50, 51, 53
    sRB3, sCB3, sT3, sK3, sL = 54, 55, 56, 57, 49
    ROT = opt("rot", 1)
    a("s_cmp_ge_u32 s2, 224\ns_cbranch_scc0 B_go")
    a(f"""s_mov_b64 exec, 1
          v_mov_b32 v8, {CNT}
          v_mov_b32 v9, {B_G3_DONE // 4}
          ds_add_u32 v8, v9
          s_mov_b64 exec, -1""")
    garrive(a, C_X)
    if opt("idlepf", 1):
        a(f"""s_and_b32 s3, s2, 7
              s_lshl_b32 s3, s3, 12
              s_add_u32 s3, s3, {F2}
              v_mov_b32 v10, s3""")
        poll(a, 10, 1)
        srd(a, WA, 18, 1792 * 896)
        srd(a, WB_, 8, 448 * 896)
        a(f"""s_lshr_b32 s3, s2, 3
              s_sub_u32 s3, s3, 28
              s_lshl_b32 s3, s3, 2
              s_add_u32 s3, s3, s{sW}
              s_lshl_b32 s26, s3, 13
              v_lshlrev_b32 v8, 7, v1
              s_mov_b32 s27, 13""")
        a.label("B_pf")
        a(f"""buffer_load_dword v16, v8, {s(WA,4)}, s26 offen
              s_add_u32 s26, s26, {16*8192}
              s_waitcnt vmcnt(1)
              s_sub_u32 s27, s27, 1
              s_cmp_lg_u32 s27, 0
              s_cbranch_scc1 B_pf
              s_lshl_b32 s26, s3, 13""")
        for i in range(4): a(f"buffer_load_dword v16, v8, {s(WB_,4)}, s26 offen\ns_add_u32 s26, s26, {16*8192}")
    a("s_endpgm")
    a.label("B_go")
    a(f"s_setprio {opt('pb', 1)}")
    a(f"""s_lshl_b32 s{sL}, s{sW}, 12
          v_add_u32 v10, s{sL}, v0
          ds_write_b128 v10, v[232:235]
          ds_write_b128 v10, v[236:239] offset:1024
          v_and_b32 v8, 31, v1
          v_lshlrev_b32 v8, 6, v8
          v_bfe_u32 v9, v1, 2, 2
          v_lshl_add_u32 v8, v9, 4, v8
          v_lshrrev_b32 v9, 5, v1
          v_lshl_add_u32 v8, v9, 3, v8
          v_add_u32 v12, s{sL}, v8
          v_xor_b32 v13, 16, v12
          v_xor_b32 v14, 32, v12
          v_xor_b32 v15, 48, v12
          s_mul_i32 s{sM}, s{sW}, 14336
          s_add_u32 s{sM}, s{sM}, {G2_BASE}""")
    small_addrs(a, sM)
    a("s_waitcnt lgkmcnt(0)")
    for j in range(4): a(f"ds_read_b64 {v(EP+2*j,2)}, v{12+j}")
    srd(a, WA, 14, 448 * 896)
    a(f"""s_mul_i32 s3, s{sW}, {112*896}
          s_lshl_b32 s26, s{sCB}, 7
          s_add_u32 s3, s3, s26
          v_add_u32 v4, s3, v7
          v_add_u32 v5, {8*896}, v4
          s_mul_i32 s{sK}, s{sCB}, {16*896*ROT}""")
    for j in range(7):
        a(f"""s_add_u32 m0, s{sM}, {j*2048}
              s_nop 0
              buffer_load_dwordx4 v4, {s(WA,4)}, s{sK} offen lds
              s_add_u32 m0, s{sM}, {j*2048 + 1024}""")
        a(f"s_nop 0\nbuffer_load_dwordx4 v5, {s(WA,4)}, s{sK} offen lds")
        if j < 6: wrapinc(a, sK, 16*896, 112*896)
    a(f"""s_and_b32 s26, s2, 7
          s_lshr_b32 s27, s2, 3
          s_lshr_b32 s{sRB3}, s26, 1
          s_lshl_b32 s{sRB3}, s{sRB3}, 2
          s_and_b32 s3, s27, 3
          s_add_u32 s{sRB3}, s{sRB3}, s3
          s_and_b32 s{sCB3}, s26, 1
          s_mul_i32 s{sCB3}, s{sCB3}, 7
          s_add_u32 s{sCB3}, s{sCB3}, s{sCB}
          s_lshl_b32 s{sT3}, s{sRB3}, 2
          s_add_u32 s{sT3}, s{sT3}, s{sW}
          v_lshrrev_b32 v8, 4, v1
          v_lshlrev_b32 v9, 2, v8
          v_sub_u32 v9, v1, v9
          v_and_b32 v9, 15, v9
          v_mul_u32_u24 v8, 3584, v8
          v_lshl_add_u32 v6, v9, 4, v8
          s_mul_i32 s3, s{sW}, {16*3584}
          s_lshl_b32 s26, s{sCB3}, 8
          s_add_u32 s3, s3, s26
          v_add_u32 v6, s3, v6                   ; W3 voffset
          s_mul_i32 s{sK3}, s{sCB}, {64*3584*ROT}""")
    srd(a, WB_, 16, 448 * 3584)
    a("s_waitcnt lgkmcnt(0)")
    def w3chunk(c):
        for u in range(4):
            a(f"s_add_u32 m0, s{sL}, {c*16384 + u*1024}")
            a(f"s_add_u32 s3, s{sK3}, {u*4*3584}")
            a(f"buffer_load_dwordx4 v6, {s(WB_,4)}, s3 offen lds")
        wrapinc(a, sK3, 64*3584, 448*3584)
    W3E = opt("w3e", 4)
    gwait(a, C_S1, 4)
    for c in range(W3E): w3chunk(c)
    a(f"""s_mul_i32 s3, s{sT}, 28
          s_mul_i32 s26, s{sW}, 7
          s_add_u32 s3, s3, s26
          s_lshl_b32 s3, s3, 10
          s_add_u32 s3, s3, {HF}
          v_add_u32 v4, s3, v0
          s_xor_b32 s3, s{sT}, 1
          s_mul_i32 s3, s3, 28
          s_add_u32 s3, s3, s26
          s_lshl_b32 s3, s3, 10
          s_add_u32 s3, s3, {HF}
          v_add_u32 v5, s3, v0
          s_mul_i32 s{sKA}, s{sCB}, {1024*ROT}
          s_mul_i32 s{sX}, s{sT}, 28
          s_lshl_b32 s3, s{sCB}, 2
          s_add_u32 s{sX}, s{sX}, s3
          s_and_b32 s3, s{sW}, 1
          s_lshl_b32 s3, s3, 1
          s_add_u32 s{sX}, s{sX}, s3
          s_lshl_b32 s{sX}, s{sX}, 10
          s_add_u32 s{sX}, s{sX}, {X1F}
          s_add_u32 s3, s{sW}, 12
          s_lshl_b32 s3, s3, 4
          s_lshr_b32 s26, s{sRB}, 1
          s_add_u32 s3, s3, s26
          v_mov_b32 v10, s3
          v_writelane_b32 v10, s26, 1
          v_lshlrev_b32 v10, 7, v10
          v_add_u32 v10, {FP}, v10
          v_lshlrev_b32 v8, 3, v1
          v_and_b32 v15, 0xff, v8
          s_lshl_b32 s27, s{sT}, 8
          s_add_u32 s27, s27, {ST1}""")
    unpack(a, RES, EP, 8)
    stamp(a, 2)
    poll(a, 10, 2)
    stamp(a, 3)
    for j in range(7):
        a(f"buffer_load_dwordx4 {v(AR+8*j,4)}, v4, {s(WD,4)}, s{sKA} offen{SC}")
        a(f"buffer_load_dwordx4 {v(AR+8*j+4,4)}, v5, {s(WD,4)}, s{sKA} offen{SC}")
        if j < 6: wrapinc(a, sKA, 1024, 7168)
    a(f"buffer_load_dwordx2 {v(EP+8,2)}, v15, {s(WD,4)}, s27 offen{SC}")
    garrive(a, C_X)
    for s_ in range(3): wreads(a, WF, s_, s_*2048)
    NW3 = 0
    for s_ in range(7):
        a(f"s_waitcnt vmcnt({2*(6-s_) + 1 + NW3}) lgkmcnt({4*min(2, 6 - s_)})")
        mfmas(a, ACC, WF, s_ & 3, AR+8*s_, AR+8*s_+4, s_ == 0)
        if s_ + 3 < 7: wreads(a, WF, (s_+3) & 3, (s_+3)*2048)
    U = AR
    stamp(a, 12)
    a(f"s_waitcnt vmcnt({NW3})")
    for i in range(16): a(f"v_sub_f32 v{U+i}, v{RES+i}, v{EP+8}")
    def region2(d, j):
        a(f"""s_xor_b32 s{d}, s{sW}, {j}
              s_mul_i32 s{d}, s{d}, 14336
              s_add_u32 s{d}, s{d}, {G2_BASE}""")
    reduce3(a, ACC, sM, region2, 0, 4, True)
    stamp(a, 13)
    for i in range(16): a(f"v_fma_f32 v{U+i}, v{U+i}, v{EP+9}, v{ACC+i}")
    for i in range(8): a(f"v_cvt_pk_bf16_f32 v{EP+i}, v{U+2*i}, v{U+2*i+1}")
    a(f"buffer_store_dwordx4 {v(EP,4)}, v0, {s(WD,4)}, s{sX} offen{SC}")
    a(f"buffer_store_dwordx4 {v(EP+4,4)}, v0, {s(WD,4)}, s{sX} offen offset:1024{SC}")
    unpack(a, U, EP, 8)
    for i in range(16):
        a(f"v_add_f32 v{10+(i&1)}, v{U+i}, {'0' if i < 2 else 'v%d' % (10+(i&1))}")
        a(f"v_fma_f32 v{12+(i&1)}, v{U+i}, v{U+i}, {'0' if i < 2 else 'v%d' % (12+(i&1))}")
    a("v_add_f32 v10, v10, v11\nv_add_f32 v11, v12, v13")
    half_sum(a, 10, 8); half_sum(a, 11, 9)
    a(f"""s_lshl_b32 s26, s{sCB}, 1
          s_and_b32 s3, s{sW}, 1
          s_add_u32 s26, s26, s3
          s_mul_i32 s3, s{sT}, 14
          s_add_u32 s3, s3, s26
          s_lshl_b32 s3, s3, 8
          s_add_u32 s3, s3, {ST3}
          buffer_store_dwordx2 v[10:11], v15, {s(WD,4)}, s3 offen{SC}
          s_lshl_b32 s3, s{sRB}, 3
          s_add_u32 s3, s3, s{sCB}
          s_lshl_b32 s3, s3, 7
          s_add_u32 s{sX}, s3, {F2}""")
    garrive(a, 0)
    for i in range(16): a(f"v_add_f32 v{RES+i}, v{RES+i}, v{U+i}")
    for c in range(W3E, 6): w3chunk(c)
    gwait(a, 0, 8)
    w3chunk(6)
    a(f"s_waitcnt vmcnt({4*(7 - W3E)})")
    signal(a, sX, 12)
    stamp(a, 4)
    ACC, WF, XR, TMP = 16, 80, 112, 240
    CS, ONE = XR, TMP
    tr_addrs(a, 2, 8, 0, perm=True)
    for i in range(4): a(f"v_mov_b32 v{ONE+i}, 0x3f803f80")
    a("s_waitcnt vmcnt(1)")
    gbar(a, 0, 12)
    def csrd(s_):
        if s_ == 16: a("v_add_u32 v6, 0x10000, v6")
        for e in range(2): a(f"ds_read_b64_tr_b16 {v(WF + 4*(s_&7) + 2*e, 2)}, v6 offset:{((s_>>2)&3)*16384 + (16*(s_&3) + 8*e)*256}")
    for s_ in range(7): csrd(s_)
    for s_ in range(28):
        a(f"s_waitcnt lgkmcnt({2*min(6, 27 - s_)})")
        a(f"{MF} {v(CS,16)}, {v(ONE,4)}, {v(WF+4*(s_&7),4)}, {'0' if s_ == 0 else v(CS,16)}")
        if s_ + 7 < 28: csrd(s_ + 7)
    cs_publish(a, CS, WF, 7*16384)
    a(f"""s_lshr_b32 s3, s{sT3}, 1
          s_lshl_b32 s3, s3, 10
          s_add_u32 s3, s3, {F2}
          v_lshl_add_u32 v11, v1, 7, s3
          s_mul_i32 s3, s{sT3}, {28*1024}
          s_add_u32 s3, s3, {X1F}
          v_add_u32 v7, s3, v0
          s_mul_i32 s{sKA}, s{sCB}, {4096*ROT}
          v_lshrrev_b32 v12, 5, v1
          v_mul_u32_u24 v12, {7*256}, v12
          v_and_b32 v13, 31, v1
          v_lshl_add_u32 v12, v13, 3, v12
          s_mul_i32 s27, s{sT3}, {14*256}
          s_add_u32 s27, s27, {ST3}""")
    gbar(a, 0, 16)
    CSP = TMP
    for t in range(4): a(f"ds_read_b32 v{CSP+t}, v10 offset:{128*t}")
    a("s_waitcnt lgkmcnt(0)")
    poll(a, 11, 7)
    stamp(a, 5)
    STL = [WF + 24, WF + 26, WF + 28, WF + 30, TMP + 8, TMP + 10, TMP + 12]; ST = STL[0]
    LA = opt("la3", 12)
    def xl(u):
        g = A()
        g(f"buffer_load_dwordx4 {v(XR+4*u,4)}, v7, {s(WD,4)}, s{sKA} offen offset:{(u&3)*1024}{SC}")
        if (u & 3) == 3 and u < 27: wrapinc(g, sKA, 4096, 7*4096)
        return g.l
    for u in range(LA):
        for x in xl(u): a(x)
        if u == 3:
            for i in range(7): a(f"buffer_load_dwordx2 {v(STL[i],2)}, v12, {s(WD,4)}, s27 offen offset:{i*256}{SC}")
    M0_, M1_, R, DEN = TMP+4, TMP+5, TMP+6, TMP+7
    f = A()
    for i in range(1, 7): f(f"v_add_f32 v{ST}, v{ST}, v{STL[i]}\nv_add_f32 v{ST+1}, v{ST+1}, v{STL[i]+1}")
    f(f"v_mov_b32 v12, v{ST}\nv_mov_b32 v13, v{ST+1}")
    half_sum(f, 12, 8); half_sum(f, 13, 9)
    f(f"""v_mul_f32 v12, {fb(1/448)}, v12
          v_mul_f32 v13, {fb(1/448)}, v13
          v_fma_f32 v13, -v12, v12, v13
          v_max_f32 v13, 0, v13
          v_add_f32 v13, {fb(EPS)}, v13
          v_sqrt_f32 v{DEN}, v13
          v_rsq_f32 v{R}, v13""")
    mu_frag(f, 12, "-1", M0_, M1_)
    gelu_consts(f, R, DEN)
    f(f"""s_mul_i32 s{sK}, s{sT3}, 112
          s_lshl_b32 s27, s{sCB3}, 3
          s_add_u32 s{sK}, s{sK}, s27
          s_lshl_b32 s{sK}, s{sK}, 10
          s_add_u32 s{sK}, s{sK}, {HHF}
          s_add_u32 s27, s{sK}, 4096""")
    pre = {4: [f"v_add_u32 v{2+t}, 0x10000, v{2+t}" for t in range(4)], "fill0": 4*4 + 1}
    for s_ in range(28):
        issued = min(28, LA + s_)
        pre[("s", s_)] = [f"s_waitcnt vmcnt({issued - 1 - s_ + (7 if s_ < 4 else 0)})"]
        if LA + s_ < 28: pre[("t", s_)] = xl(LA + s_)
    kloop(a, ACC, WF, XR, 2, (0, 1, 2, 3), lambda c: (c & 3) * 16384, pre, True, f.l, R=6, D=5)
    garrive(a, 0)
    stamp(a, 14)
    mean_fix(a, ACC, WF, lambda t: CSP + t, M0_, M1_)
    for fr in range(8):
        for x in gelu8(ACC + 8*fr, 10, 12, 14, TMP + 8, XR + 4*fr): a(x)
        a(f"buffer_store_dwordx4 {v(XR+4*fr,4)}, v0, {s(WD,4)}, s{sK if fr < 4 else 27} offen offset:{(fr&3)*1024}{SC}")
    stamp(a, 8)
    ACC, WF, AR, EP = 16, 80, 112, 176
    NC, RING = 18, 6
    a(f"s_mul_i32 s{sM}, s{sW}, 24576")
    small_addrs(a, sM)
    srd(a, WA, 18, 1792 * 896)
    srd(a, WB_, 8, 448 * 896)
    a(f"""s_mul_i32 s3, s{sW}, {448*896}
          s_lshl_b32 s26, s{sCB}, 7
          s_add_u32 s3, s3, s26
          v_add_u32 v6, s3, v7
          s_mul_i32 s3, s{sW}, {112*896}
          s_add_u32 s3, s3, s26
          v_add_u32 v7, s3, v7
          s_mul_i32 s{sK}, s{sCB}, {2*32*896*ROT}""")
    def wissue(c):
        if c == 14: a(f"s_and_b32 s{sK}, s{sCB}, {3*ROT}\ns_mul_i32 s{sK}, s{sK}, {28*896}")
        for u in range(4):
            a(f"s_add_u32 m0, s{sM}, {(c % RING)*4096 + u*1024}")
            a(f"s_add_u32 s3, s{sK}, {u*8*896}")
            a(f"buffer_load_dwordx4 v{6 if c < 14 else 7}, {s(WA if c < 14 else WB_,4)}, s3 offen lds")
        if c < 13: wrapinc(a, sK, 32*896, 448*896)
        elif 14 <= c < 17: wrapinc(a, sK, 28*896, 112*896)
    gwait(a, 0, B_G3_DONE)
    for c in range(RING - 1): wissue(c)
    a(f"""s_lshl_b32 s3, s{sRB3}, 4
          s_add_u32 s3, s3, s{sCB3}
          s_lshl_b32 s3, s3, 7
          s_add_u32 s{sX}, s3, {F3}
          s_mul_i32 s3, s{sT}, 112
          s_mul_i32 s26, s{sW}, 28
          s_add_u32 s3, s3, s26
          s_lshl_b32 s3, s3, 10
          s_add_u32 s3, s3, {HHF}
          v_add_u32 v4, s3, v0
          s_xor_b32 s3, s{sT}, 1
          s_mul_i32 s3, s3, 112
          s_add_u32 s3, s3, s26
          s_lshl_b32 s3, s3, 10
          s_add_u32 s3, s3, {HHF}
          v_add_u32 v5, s3, v0
          s_mul_i32 s{sKA}, s{sCB}, {2*2048*ROT}
          s_mul_i32 s3, s{sW}, 7
          s_lshr_b32 s3, s3, 1
          s_lshr_b32 s26, s{sRB}, 1
          s_lshl_b32 s26, s26, 4
          s_add_u32 s3, s3, s26
          v_add_u32 v10, s3, v1
          v_lshlrev_b32 v10, 7, v10
          v_add_u32 v10, {F3}, v10
          s_lshl_b32 s3, s{sW}, 2
          s_add_u32 s3, s3, s26
          v_and_b32 v14, 3, v1
          v_add_u32 v14, s3, v14
          v_lshlrev_b32 v14, 7, v14
          v_add_u32 v14, {FA}, v14
          s_waitcnt vmcnt({4*(RING-1)})""")
    signal(a, sX, 16)
    stamp(a, 9)
    poll(a, 10, 4)
    stamp(a, 10)
    def aissue(c):
        sl = c & 3
        if c == 14:
            a(f"""s_lshl_b32 s3, s{sT}, 5
                  s_lshl_b32 s26, s{sW}, 3
                  s_add_u32 s3, s3, s26
                  s_lshl_b32 s3, s3, 10
                  s_add_u32 s3, s3, {OF}
                  v_add_u32 v4, s3, v0
                  v_xor_b32 v5, {32*1024}, v4
                  s_and_b32 s{sKA}, s{sCB}, {3*ROT}
                  s_lshl_b32 s{sKA}, s{sKA}, 11""")
        for k in range(2):
            a(f"buffer_load_dwordx4 {v(AR+16*sl+8*k,4)}, v4, {s(WD,4)}, s{sKA} offen offset:{k*1024}{SC}")
            a(f"buffer_load_dwordx4 {v(AR+16*sl+8*k+4,4)}, v5, {s(WD,4)}, s{sKA} offen offset:{k*1024}{SC}")
        if c < 13: wrapinc(a, sKA, 2048, 14*2048)
        elif 14 <= c < 17: wrapinc(a, sKA, 2048, 4*2048)
    q = []
    def A_(c): aissue(c); q.extend([("a", c)] * 4)
    def W_(c): wissue(c); q.extend([("w", c)] * 4)
    def after(pred):
        idx = [i for i, x in enumerate(q) if pred(x)]
        return len(q) - (max(idx) + 1 if idx else 0)
    def wrd(c, k): wreads(a, WF, 2*(c & 1) + k, (c % RING) * 4096 + k*2048)
    for c in range(3): A_(c)
    a(f"s_setprio {opt('pf', 1)}")
    wrd(0, 0); wrd(0, 1)
    for c in range(NC):
        sl = c & 3
        a(f"s_waitcnt vmcnt({after(lambda x: x[1] <= c or x == ('w', c + 1))}) lgkmcnt(4)")
        mfmas(a, ACC, WF, 2*(c & 1), AR+16*sl, AR+16*sl+4, c == 0)
        if c + 1 < NC: wrd(c + 1, 0)
        a(f"s_waitcnt lgkmcnt({4 if c + 1 < NC else 0})")
        mfmas(a, ACC, WF, 2*(c & 1) + 1, AR+16*sl+8, AR+16*sl+12, False)
        if c + 1 < NC: wrd(c + 1, 1)
        if c + RING - 1 < NC: W_(c + RING - 1)
        if c == 8:
            a(f"buffer_load_dword v15, v14, {s(WD,4)}, 0 offen sc1"); q.append(("f", 99))
        if c == 11:
            stamp(a, 11)
            a(f"""s_waitcnt vmcnt({after(lambda x: x[0] == 'f')})
                  v_cmp_eq_u32 vcc, 0, v15
                  s_cbranch_vccz B_oready""")
            poll(a, 14, 4)
            a.label("B_oready")
        if c + 3 < NC: A_(c + 3)
    stamp(a, 15)
    a(f"s_setprio {opt('pb', 1)}")
    def region3(d, j):
        a(f"s_xor_b32 s{d}, s{sW}, {j}\ns_mul_i32 s{d}, s{d}, 24576")
    srd(a, XS, 20, 2048 * 896)
    a(f"""v_and_b32 v4, 31, v1
          v_mul_u32_u24 v4, 896, v4
          v_lshrrev_b32 v9, 5, v1
          v_lshl_add_u32 v4, v9, 4, v4
          s_mul_i32 s27, s{sT}, {32*896}
          s_lshl_b32 s26, s{sCB}, 7
          s_add_u32 s27, s27, s26
          s_and_b32 s26, s{sW}, 1
          s_lshl_b32 s26, s26, 6
          s_add_u32 s27, s27, s26""")
    reduce3(a, ACC, sM, region3, 0, B_G3_DONE + 4, True)
    for i in range(16): a(f"v_add_f32 v{ACC+i}, v{ACC+i}, v{RES+i}")
    for i in range(8): a(f"v_cvt_pk_bf16_f32 v{EP+i}, v{ACC+2*i}, v{ACC+2*i+1}")
    for jj in range(2):
        a(f"v_permlane32_swap_b32 v{EP+4*jj}, v{EP+4*jj+2}\nv_permlane32_swap_b32 v{EP+4*jj+1}, v{EP+4*jj+3}")
        a(f"buffer_store_dwordx4 {v(EP+4*jj,4)}, v4, {s(XS,4)}, s27 offen offset:{32*jj}")
    stamp_out2(a)
    a("s_endpgm")

def stamp_out2(a):
    if not common.STAMPS: return
    a("s_waitcnt vmcnt(0)")
    common.stamp(a, 6); common.stamp(a, 7, True)
    a("s_waitcnt lgkmcnt(0)")
    for i in range(16): a(f"v_mov_b32 v{16+i}, s{64+2*i}")
    a(f"""s_lshl_b32 s3, s2, 3
          s_add_u32 s3, s3, s60
          s_lshl_b32 s3, s3, 6
          s_add_u32 s3, s3, {TS}
          v_mov_b32 v8, 0""")
    for j in range(4): a(f"buffer_store_dwordx4 v[{16+4*j}:{19+4*j}], v8, {s(WD,4)}, s3 offen offset:{16*j}")

def p1stamps():
    return common.STAMPS and opt("p1s", 0)

def build(name):
    a = A()
    a.label("K_start")
    a("s_cmp_ge_u32 s2, 256\ns_cbranch_scc1 K_end")
    load_args(a)
    a(f"""v_and_b32 v1, 63, v0
          v_lshrrev_b32 v8, 6, v0
          s_mov_b32 s59, {fb(2.0**100)}
          v_readfirstlane_b32 s60, v8
          v_lshlrev_b32 v0, 4, v1
          s_and_b32 s{sW}, s60, 3
          s_cmp_ge_u32 s60, 4
          s_cbranch_scc1 K_roleb""")
    p1a(a)
    att(a)
    a.label("K_roleb")
    p1b(a)
    roleb(a)
    a.label("K_end")
    a("s_endpgm")
    a.label("K_last")
    return a

if __name__ == "__main__":
    if "stamp" in sys.argv[1]: common.STAMPS = True
    name = "parallel_sum__mha_block__mixer_s_mlp__prompt_kernel"
    HDR = open("parallel_sum__mha_block__mixer_s_mlp__prompt.s.ref").read().split("; Override launch")[0]
    out = HDR + "; @launch grid=(256,1,1) block=(512,1,1) lds=163840\n" + '.amdgcn_target "amdgcn-amd-amdhsa--gfx950"\n'
    out += kernel_head(name) + build(name).text() + kernel_desc(name, vgpr=256, sgpr=98)
    open(sys.argv[1], "w").write(out)
```

```python
import sys
import common
from common import *

FLG = 0x1550000
FP, F2, F3, FA, FQ = FLG, FLG + 0x8000, FLG + 0x10000, FLG + 0x18000, FLG + 0x20000
NINIT = 20
PART = 0x1600000
WS_END = 0x1A00000
sFT = 52
XS, WA, WD, WB_ = 28, 32, 36, 40
sW, sSPIN = 46, 58
SC = " sc1"
CNT = 156 * 1024
C_B, C_A, C_S1, C_S2, C_S3, C_SA, C_W, C_X, C_SQ = 0, 4, 8, 12, 16, 20, 24, 28, 32
SPIN_MAX = 1 << 16
import os
OPT = dict(x.split("=") for x in os.environ.get("MKOPT", "").split(",") if x)
def opt(k, d): return int(OPT.get(k, d))
SLEEP = opt("sleep", 1)
DEBUG = "dbg" in sys.argv[1] if len(sys.argv) > 1 else False


def poll(a, vaddr, nlanes, srdreg=WD, soff="0"):
    L, D = a.newlabel("PL"), a.newlabel("PD")
    a(f"s_mov_b32 s{sSPIN}, {SPIN_MAX}")
    a(f"s_mov_b64 exec, {(1 << nlanes) - 1}" if nlanes <= 6 else f"s_bfm_b64 exec, {nlanes}, 0")
    a.label(L)
    a(f"""buffer_load_dword v9, v{vaddr}, {s(srdreg,4)}, {soff} offen sc1
          s_waitcnt vmcnt(0)
          v_cmp_eq_u32 vcc, 0, v9
          s_cbranch_vccz {D}
          s_sleep {SLEEP}
          s_sub_u32 s{sSPIN}, s{sSPIN}, 1
          s_cmp_lg_u32 s{sSPIN}, 0
          s_cbranch_scc1 {L}""")
    a.label(D)
    a("s_mov_b64 exec, -1")

SCB = "" if opt("local", 0) else " sc1"
def signal(a, soff, cnt, sc=" sc1"):
    a(f"""s_mov_b64 exec, 1
          v_mov_b32 v8, {CNT + cnt}
          v_mov_b32 v9, 1
          ds_add_rtn_u32 v8, v8, v9
          s_waitcnt lgkmcnt(0)
          v_readfirstlane_b32 s26, v8
          v_mov_b32 v8, 0
          s_cmp_eq_u32 s26, 3
          s_cselect_b32 s26, s{soff}, {OOB}
          buffer_store_dword v9, v8, {s(WD,4)}, s26 offen{sc}
          s_mov_b64 exec, -1""")

def garrive(a, off, field=0):
    a(f"""s_mov_b64 exec, 1
          v_mov_b32 v8, {CNT + off}
          v_mov_b32 v9, {1 << (4*field)}
          ds_add_u32 v8, v9
          s_mov_b64 exec, -1""")

def gwait(a, off, target, va=8, sr=3, field=None):
    L, D = a.newlabel("GL"), a.newlabel("GD")
    a(f"s_mov_b32 s{sSPIN}, {SPIN_MAX * 8}\nv_mov_b32 v{va}, {CNT + off}")
    a.label(L)
    a(f"""ds_read_b32 v{va+1}, v{va}
          s_sub_u32 s{sSPIN}, s{sSPIN}, 1
          s_cbranch_scc1 {D}
          s_waitcnt lgkmcnt(0)
          v_readfirstlane_b32 s{sr}, v{va+1}
          {"" if field is None else f"s_bfe_u32 s{sr}, s{sr}, {0x40000 + 4*field}"}
          s_cmp_lt_u32 s{sr}, {target}
          s_cbranch_scc1 {L}""")
    a.label(D)
    a("s_waitcnt lgkmcnt(0)")

def gbar(a, off, target):
    a("s_waitcnt lgkmcnt(0)")
    garrive(a, off); gwait(a, off, target)

def kloop(a, ACC, WF, XR, vA, tiles, offs, pre, perm, fill=(), R=8, D=6, cs=None):
    ops = [(s_, t) for s_ in range(28) for t in tiles]
    N = len(ops); fill = list(fill); done = 0
    def rd(m):
        s_, t = ops[m]
        if (s_ & 3) == 0 and t == tiles[0]:
            for x in pre.get(s_ >> 2, []): a(x)
        for e in range(2):
            row = 16 * (s_ & 3) + (8 * e if perm else 4 * e)
            a(f"ds_read_b64_tr_b16 {v(WF + 4*(m % R) + 2*e, 2)}, v{vA+t} offset:{offs(s_ >> 2) + row*256}")
    for m in range(D): rd(m)
    f0 = pre.get("fill0", 1)
    per = max(1, -(-len(fill) // (N - f0 - 1)))
    for m, (s_, t) in enumerate(ops):
        if (s_ & 3) == 0 and t == tiles[0]:
            for x in pre.get(("x", s_ >> 2), []): a(x)
        if t == tiles[0]:
            for x in pre.get(("s", s_), []): a(x)
        G = pre.get("G", 1)
        if m % G == 0: a(f"s_waitcnt lgkmcnt({2*max(0, min(D - G, N - G - m))})")
        if t < 4: a(f"{MF} {v(ACC+16*t,16)}, {v(WF + 4*(m % R), 4)}, {v(XR(s_) if callable(XR) else XR+4*s_,4)}, {'0' if s_ == 0 else v(ACC+16*t,16)}")
        elif len(cs) == 3: a(f"{MF} {v(cs[0],16)}, {v(cs[1],4)}, {v(WF + 4*(m % R), 4)}, {'0' if s_ == 0 else v(cs[0],16)}")
        else: a(f"v_mfma_f32_16x16x32_bf16 {v(cs[0],4)}, {v(cs[1],4)}, {v(WF + 4*(m % R), 4)}, {'0' if s_ == 0 else v(cs[0],4)}")
        if m + D < N: rd(m + D)
        if (s_ & 3) == 0 and t == tiles[0]:
            for x in pre.get(("y", s_ >> 2), []): a(x)
        if t == tiles[min(1, len(tiles) - 1)]:
            for x in pre.get(("t", s_), []): a(x)
        if m >= f0:
            for x in fill[done:done + per]: a(x)
            done += per
    for x in fill[done:]: a(x)

def kburst(a, ACC, WF, XR, vA, offs, pre, fill=()):
    fill = list(fill); per = -(-len(fill) // 26); done = 0
    def rd(s_):
        if (s_ & 3) == 0:
            for x in pre.get(s_ >> 2, []): a(x)
        for t in range(4):
            for e in range(2):
                a(f"ds_read_b64_tr_b16 {v(WF + 16*(s_ & 1) + 4*t + 2*e, 2)}, v{vA+t} offset:{offs(s_ >> 2) + (16*(s_ & 3) + 8*e)*256}")
    rd(0); rd(1)
    for s_ in range(28):
        if (s_ & 3) == 0:
            for x in pre.get(("x", s_ >> 2), []): a(x)
        a(f"s_waitcnt lgkmcnt({8 if s_ < 27 else 0})")
        for t in range(4):
            a(f"{MF} {v(ACC+16*t,16)}, {v(WF + 16*(s_ & 1) + 4*t, 4)}, {v(XR+4*s_,4)}, {'0' if s_ == 0 else v(ACC+16*t,16)}")
        if s_ + 2 < 28: rd(s_ + 2)
        if s_:
            for x in fill[done:done + per]: a(x)
            done += per

def tr_addrs(a, vA, sTS, base, perm, which=(0, 1, 2, 3, 4)):
    a(f"""v_lshrrev_b32 v8, 5, v1
          v_bfe_u32 v9, v1, 2, 2
          v_bfe_u32 v10, v1, 4, 1
          v_and_b32 v11, 3, v1
          v_lshl_add_u32 v10, v10, 2, v11
          v_lshl_add_u32 v8, v8, {2 if perm else 3}, v9
          v_lshlrev_b32 v8, 8, v8
          v_add_u32 v8, {base}, v8
          v_lshlrev_b32 v9, 2, v9""")
    for t in which:
        a(f"s_mul_i32 s26, {sTS}, {t}" if t < 4 else f"s_mul_i32 s26, {sTS}, s{sW}")
        a(f"""v_add_u32 v11, s26, v10
              v_lshrrev_b32 v12, 1, v11
              v_add_u32 v12, v12, v9
              v_and_b32 v12, 15, v12
              v_and_b32 v11, 1, v11
              v_lshlrev_b32 v11, 3, v11
              v_lshl_add_u32 v11, v12, 4, v11
              v_add_u32 v{vA+t}, v8, v11""")

def cs_publish(a, CS, T, xch):
    a(f"""v_cvt_pk_bf16_f32 v{T}, v{CS}, v{CS}
          v_and_b32 v{T+1}, 0xffff0000, v{T}
          v_sub_f32 v{T+1}, v{CS}, v{T+1}
          v_cvt_pk_bf16_f32 v{T}, v{CS}, v{T+1}
          v_and_b32 v10, 31, v1
          v_lshlrev_b32 v10, 2, v10
          v_add_u32 v10, {xch}, v10
          s_lshl_b32 s26, s{sW}, 7
          v_add_u32 v9, s26, v10
          ds_write_b32 v9, v{T}""")

def mean_fix(a, ACC, T, src, vMU0, vMU1, tiles=(0, 1, 2, 3)):
    n = len(tiles)
    a(f"v_mov_b32 v{T+4*n}, v{vMU0}\nv_mov_b32 v{T+4*n+1}, v{vMU1}\nv_mov_b32 v{T+4*n+2}, 0\nv_mov_b32 v{T+4*n+3}, 0")
    for i, t in enumerate(tiles):
        if src(t) != T + 4*i: a(f"v_mov_b32 v{T+4*i}, v{src(t)}")
        a(f"v_and_b32 v{T+4*i+1}, 0xffff, v{src(t)}\nv_mov_b32 v{T+4*i+2}, 0\nv_mov_b32 v{T+4*i+3}, 0")
    for i, t in enumerate(tiles): a(f"{MF} {v(ACC+16*t,16)}, {v(T+4*i,4)}, {v(T+4*n,4)}, {v(ACC+16*t,16)}")

def mu_frag(a, vmu, lo_en, d0, d1):
    a(f"""v_cvt_pk_bf16_f32 v{d0}, -v{vmu}, -v{vmu}
          v_and_b32 v8, 0xffff0000, v{d0}
          v_sub_f32 v8, -v{vmu}, v8
          v_cvt_pk_bf16_f32 v{d1}, v8, 0
          v_and_b32 v{d1}, {lo_en}, v{d1}
          v_lshrrev_b32 v8, 5, v1
          v_add_u32 v8, -1, v8
          v_and_b32 v{d0}, v8, v{d0}
          v_and_b32 v{d1}, v8, v{d1}""")

def gelu_consts(a, R, DEN):
    a(f"""v_mul_f32 v10, {fb(GK1)}, v{R}
          v_mul_f32 v12, v{R}, v{R}
          v_mul_f32 v12, v12, v{R}
          v_mul_f32 v12, {fb(GK2)}, v12
          v_mov_b32 v14, v{DEN}""")

def gelu8(regs0, K1, K2, IS, T, out):
    L = []
    for i in range(8): L.append(f"v_mul_f32 v{T+i}, v{regs0+i}, v{regs0+i}")
    for i in range(8): L.append(f"v_fma_f32 v{T+i}, v{T+i}, v{K2}, v{K1}")
    for i in range(8): L.append(f"v_mul_f32 v{T+i}, v{T+i}, v{regs0+i}")
    for i in range(8): L.append(f"v_exp_f32 v{T+i}, v{T+i}")
    for i in range(8): L.append(f"v_fma_f32 v{T+i}, v{T+i}, v{IS}, v{IS}")
    for i in range(8): L.append(f"v_rcp_f32 v{T+i}, v{T+i}")
    for i in range(8): L.append(f"v_mul_f32 v{T+i}, v{T+i}, v{regs0+i}")
    for i in range(4): L.append(f"v_cvt_pk_bf16_f32 v{out+i}, v{T+2*i}, v{T+2*i+1}")
    return L

def wrapinc(a, sreg, step, lim):
    a(f"s_add_u32 s{sreg}, s{sreg}, {step}\ns_cmp_eq_u32 s{sreg}, {lim}\ns_cselect_b32 s{sreg}, 0, s{sreg}")

def reduce3(a, ACC, sM, region, cnt_off, target, xor):
    a(f"v_add_u32 v10, s{sM}, v0")
    for j in range(1, 4):
        for i in range(4): a(f"ds_write_b128 v10, {v(ACC+16*j+4*i,4)} offset:{(j-1)*4096 + i*1024}")
    for j in range(1, 4):
        region(26, j)
        a(f"v_add_u32 v{10+j}, s26, v0")
    gbar(a, cnt_off, target)
    for j in range(1, 4):
        for i in range(4): a(f"ds_read_b128 {v(ACC+16*j+4*i,4)}, v{10+j} offset:{(j-1)*4096 + i*1024}")
    for j in range(1, 4):
        a(f"s_waitcnt lgkmcnt({4*(3-j)})")
        for i in range(16): a(f"v_add_f32 v{ACC+i}, v{ACC+i}, v{ACC+16*j+i}")

def reduce3c(a, ACC, sM, region, cnt_off, target):
    BL = 3712
    a(f"""v_add_u32 v10, s{sM}, v0
          v_lshlrev_b32 v14, 2, v1
          v_add_u32 v14, {3584 - 128}, v14
          v_add_u32 v15, s{sM}, v14""")
    for j in range(1, 4):
        for i in range(3): a(f"ds_write_b128 v10, {v(ACC+16*j+4*i,4)} offset:{(j-1)*BL + i*1024}")
    a("s_mov_b64 exec, 0xffffffff")
    for j in range(1, 4): a(f"ds_write_b128 v10, {v(ACC+16*j+12,4)} offset:{(j-1)*BL + 3072}")
    a("s_not_b64 exec, exec")
    for j in range(1, 4): a(f"ds_write_b32 v15, v{ACC+16*j+12} offset:{(j-1)*BL}")
    a("s_mov_b64 exec, -1")
    for j in range(1, 4):
        region(26, j)
        a(f"v_add_u32 v{10+j}, s26, v0\nv_add_u32 v{4+j}, s26, v14")
    gbar(a, cnt_off, target)
    a("s_mov_b64 exec, 0xffffffff")
    for j in range(1, 4): a(f"ds_read_b128 {v(ACC+16*j+12,4)}, v{10+j} offset:{(j-1)*BL + 3072}")
    a("s_not_b64 exec, exec")
    for j in range(1, 4): a(f"ds_read_b32 v{ACC+16*j+12}, v{4+j} offset:{(j-1)*BL}")
    a("s_mov_b64 exec, -1")
    for j in range(1, 4):
        for i in range(3): a(f"ds_read_b128 {v(ACC+16*j+4*i,4)}, v{10+j} offset:{(j-1)*BL + i*1024}")
    for j in range(1, 4):
        a(f"s_waitcnt lgkmcnt({3*(3-j)})")
        for i in range(16): a(f"v_add_f32 v{ACC+i}, v{ACC+i}, v{ACC+16*j+i}")

def unpack(a, dst, src, n):
    for i in range(n):
        a(f"v_lshlrev_b32 v{dst+2*i}, 16, v{src+i}\nv_and_b32 v{dst+2*i+1}, 0xffff0000, v{src+i}")

NBAR_P1 = 10
XB = 112 * 1024
XCH = XB + 16384
def p1a(a):
    a(f"s_setprio {opt('pa1', 2)}")
    ACC, CS, WF, XR, TMP = 16, 80, 96, 136, 248
    sRB, sCB, sTY, sSUB, sTS, sLO, sT = 44, 45, 47, 48, 50, 55, 56
    a(f"""s_and_b32 s26, s2, 7
          s_lshr_b32 s27, s2, 3
          s_lshr_b32 s{sRB}, s26, 1
          s_lshl_b32 s{sRB}, s{sRB}, 2
          s_and_b32 s3, s27, 3
          s_add_u32 s{sRB}, s{sRB}, s3
          s_and_b32 s{sCB}, s26, 1
          s_lshl_b32 s{sCB}, s{sCB}, 3
          s_lshr_b32 s3, s27, 2
          s_add_u32 s{sCB}, s{sCB}, s3
          s_lshr_b32 s{sTY}, s{sCB}, 2
          s_and_b32 s{sSUB}, s{sCB}, 3
          s_cmp_eq_u32 s{sTY}, 3
          s_cselect_b32 s{sTS}, 8, 7
          s_cselect_b32 s{sLO}, -1, 0
          s_lshl_b32 s{sT}, s{sRB}, 2
          s_add_u32 s{sT}, s{sT}, s{sW}""")
    tr_addrs(a, 2, f"s{sTS}", 0, perm=False)
    a(f"""v_and_b32 v8, 15, v1
          v_bfe_u32 v9, v1, 4, 1
          v_cmp_eq_u32 vcc, v8, v9
          v_mov_b32 v8, 0x3f803f80
          v_cndmask_b32 v{CS+4}, 0, v8, vcc
          v_mov_b32 v{CS+5}, v{CS+4}
          v_mov_b32 v{CS+6}, v{CS+4}
          v_mov_b32 v{CS+7}, v{CS+4}
          v_and_b32 v8, 31, v1
          v_lshrrev_b32 v9, 5, v1
          v_bfe_u32 v10, v1, 1, 3
          v_xor_b32 v9, v9, v10
          v_lshlrev_b32 v8, 7, v8
          v_lshl_add_u32 v8, v9, 4, v8
          s_lshl_b32 s3, s{sW}, 12
          s_add_u32 s3, s3, {XB}
          v_add_u32 v{CS+8}, s3, v8
          v_xor_b32 v{CS+9}, 32, v{CS+8}
          v_xor_b32 v{CS+10}, 64, v{CS+8}
          v_xor_b32 v{CS+11}, 96, v{CS+8}
          s_waitcnt lgkmcnt(0)""")
    srd(a, WD, 24, WS_END)
    ONE = TMP
    M0_, M1_, R, DEN = TMP+4, TMP+5, TMP+6, TMP+7
    a(f"""v_and_b32 v10, 31, v1
          v_lshlrev_b32 v10, 2, v10
          v_add_u32 v10, {XCH}, v10
""")
    stamp(a, 12)
    pre = {}
    for c in range(7):
        pre[c] = ["s_barrier"] + [f"ds_read_b128 {v(XR + 16*(c&1) + 4*i, 4)}, v{CS+8+i} offset:{(c % 3)*16384}" for i in range(4)]
        pre[("y", c)] = [f"v_dot2_f32_bf16 v{12+(i&1)}, v{XR+16*(c&1)+i}, v{XR+16*(c&1)+i}, {'0' if c == 0 and i < 2 else 'v%d' % (12+(i&1))}" for i in range(16)]
    if common.STAMPS:
        for c, st in ((0, 2), (1, 13), (3, 3)):
            g = A(); stamp(g, st); pre[c] = pre[c][:1] + g.l + pre[c][1:]
    pre[4] += [f"v_add_u32 v{2+t}, 0x10000, v{2+t}" for t in range(5)]
    pre["G"] = opt("p1g", 1)
    kloop(a, ACC, WF, lambda s_: XR + 16*((s_ >> 2) & 1) + 4*(s_ & 3), 2, (0, 4, 1, 2, 3), lambda c: (c & 3) * 16384, pre, False, [], R=8, D=5, cs=(CS, CS+4))
    stamp(a, 4)
    for i in range(2):
        a(f"""v_cvt_pk_bf16_f32 v{WF+i}, v{CS+i}, v{CS+i}
              v_and_b32 v{WF+i}, 0xffff0000, v{WF+i}
              v_sub_f32 v{WF+i}, v{CS+i}, v{WF+i}
              v_cvt_pk_bf16_f32 v{WF+i}, v{CS+i}, v{WF+i}""")
    a(f"""s_lshl_b32 s26, s{sW}, 7
          v_add_u32 v11, s26, v10
          s_mov_b64 exec, 0xffff
          ds_write2_b32 v11, v{WF}, v{WF+1} offset1:16
          s_mov_b64 exec, -1
          v_mov_b32 v14, v{ACC+48+12}
          v_mov_b32 v15, v{ACC+48+12}
          v_add_f32 v13, v12, v13
          v_permlane32_swap_b32 v15, v14
          v_mov_b32 v12, v13
          v_permlane32_swap_b32 v13, v12
          v_add_f32 v13, v13, v12
          s_waitcnt lgkmcnt(0)
          s_barrier                              ; barrier 7""")
    stamp(a, 14)
    for t in range(4): a(f"ds_read_b32 v{WF+4*t}, v10 offset:{128*t}")
    a(f"""v_mul_f32 v12, {fb(1/448)}, v14""")
    mu_frag(a, 12, f"s{sLO}", M0_, M1_)
    bf16r(a, 10, "v12")
    a(f"""s_waitcnt lgkmcnt(0)
          v_mul_f32 v13, {fb(1/448)}, v13
          v_fma_f32 v13, -v12, v12, v13
          v_max_f32 v13, 0, v13""")
    mean_fix(a, ACC, WF, lambda t: WF + 4*t, M0_, M1_)
    bf16r(a, 8, "v13")
    a(f"""v_add_f32 v9, {fb(EPS)}, v13
          v_add_f32 v8, {fb(EPS)}, v8
          v_mov_b32 v14, {fb(EPS)}
          v_fma_f32 v9, v9, v14, v13""")
    bf16r(a, 8, "v8")
    a(f"""v_sqrt_f32 v9, v9
          v_sqrt_f32 v8, v8
          v_mov_b32 v14, s{sLO}""")
    bf16r(a, 8, "v8")
    a(f"""v_bfi_b32 v{DEN}, v14, v9, v8
          v_rcp_f32 v{R}, v{DEN}
          s_lshl_b32 s3, s{sT}, 8
          s_add_u32 s3, s3, {ST1}
          s_cmp_eq_u32 s{sCB}, 0
          s_cselect_b32 s3, s3, {OOB}
          v_lshlrev_b32 v8, 3, v1
          v_and_b32 v8, 0xff, v8
          v_mov_b32 v11, v{R}
          buffer_store_dwordx2 v[10:11], v8, {s(WD,4)}, s3 offen{SC}""")
    a(f"""v_lshrrev_b32 v8, 5, v1
          v_add_u32 v8, -1, v8
          s_cmp_eq_u32 s{sTY}, 3
          s_cbranch_scc1 P1_h
          s_cmp_eq_u32 s{sTY}, 0
          s_cselect_b32 s3, {fb(QSCALE)}, 1.0
          v_mul_f32 v10, s3, v{R}
          s_cmp_eq_u32 s{sTY}, 1
          s_cselect_b32 s27, 0x3f803f80, 0
          s_cselect_b32 s3, 0x3f80, 0
          s_cmp_eq_u32 s{sTY}, 2
          s_cselect_b32 s27, 0x3f80, s27
          v_mov_b32 v12, s27
          v_mov_b32 v13, s3""")
    a(f"""s_lshl_b32 s3, s{sSUB}, 8
          s_add_u32 s3, s3, s{sT}
          s_cmp_eq_u32 s{sTY}, 0
          s_cselect_b32 s27, 11, 12
          s_lshl_b32 s3, s3, s27
          s_lshl_b32 s26, 64, s27
          s_lshl_b32 s27, s{sTY}, 11
          s_add_u32 s27, s27, {KVF - 2048}
          s_cmp_eq_u32 s{sTY}, 0
          s_cselect_b32 s27, {QF}, s27
          s_add_u32 s3, s3, s27
          s_cmp_eq_u32 s{sTY}, 2
          s_cbranch_scc1 P1_v""")
    def pack(t):
        for i in range(8): a(f"v_pk_mul_f32 {v(ACC+16*t+2*i,2)}, {v(ACC+16*t+2*i,2)}, v[10:11] op_sel_hi:[1,0]")
        for i in range(8): a(f"v_cvt_pk_bf16_f32 v{XR+8*t+i}, v{ACC+16*t+2*i}, v{ACC+16*t+2*i+1}")
        a(f"v_bfi_b32 v{XR+8*t+6}, v8, v{XR+8*t+6}, v12\nv_bfi_b32 v{XR+8*t+7}, v8, v{XR+8*t+7}, v13")
    def put(t):
        for f_ in range(2): a(f"buffer_store_dwordx4 {v(XR+8*t+4*f_,4)}, v0, {s(WD,4)}, s3 offen offset:{f_*1024}{SC}")
        if t < 3: a("s_add_u32 s3, s3, s26")
    for t in range(4): pack(t); put(t)
    a("s_branch P1_done")
    a.label("P1_v")
    a(f"""s_mul_i32 s27, s{sW}, 9216
          s_add_u32 s27, s27, 0x10000
          v_and_b32 v9, 31, v1
          v_mul_u32_u24 v9, 72, v9
          v_lshrrev_b32 v14, 5, v1
          v_lshl_add_u32 v9, v14, 3, v9
          v_add_u32 v9, s27, v9
          v_bfe_u32 v15, v1, 2, 2
          v_lshl_add_u32 v14, v14, 2, v15
          v_mul_u32_u24 v14, 72, v14
          v_bfe_u32 v15, v1, 4, 1
          v_lshl_add_u32 v14, v15, 5, v14
          v_and_b32 v15, 3, v1
          v_lshl_add_u32 v14, v15, 3, v14
          v_add_u32 v14, s27, v14""")
    for t in range(5):
        if t < 4:
            pack(t)
            for j in range(4): a(f"ds_write_b64 v9, {v(XR+8*t+2*j,2)} offset:{t*2304 + 16*j}")
        if t:
            a(f"s_waitcnt lgkmcnt({4 if t < 4 else 0})")
            put(t - 1)
        if t < 4:
            a("s_waitcnt lgkmcnt(0)")
            for f_ in range(2):
                for e in range(2): a(f"ds_read_b64_tr_b16 {v(XR+8*t+4*f_+2*e,2)}, v14 offset:{t*2304 + (16*f_+8*e)*72}")
    a("s_branch P1_done")
    a.label("P1_h")
    gelu_consts(a, R, DEN)
    a(f"""s_mul_i32 s3, s{sT}, 28
          s_mul_i32 s27, s{sSUB}, 7
          s_add_u32 s3, s3, s27
          s_lshl_b32 s3, s3, 10
          s_add_u32 s3, s3, {HF}
          s_add_u32 s27, s3, 4096""")
    for f in range(7):
        gelu_pairs(a, [ACC + 8*f + 2*i for i in range(4)], 10, 12, 14, WF)
        for i in range(4): a(f"v_cvt_pk_bf16_f32 v{XR+4*f+i}, v{ACC+8*f+2*i}, v{ACC+8*f+2*i+1}")
        a(f"buffer_store_dwordx4 {v(XR+4*f,4)}, v0, {s(WD,4)}, s{3 if f < 4 else 27} offen offset:{(f&3)*1024}{SC}")
    a.label("P1_done")
    garrive(a, C_X, 1)
    stamp(a, 15)
    a(f"""s_waitcnt vmcnt(0)
          s_lshl_b32 s3, s{sCB}, 4
          s_add_u32 s3, s3, s{sRB}
          s_lshl_b32 s3, s3, 7
          s_add_u32 s3, s3, {FP}""")
    signal(a, 3, 8)
    stamp(a, 5)

O_, Q_, S_, E_, P_, KV = 16, 80, 112, 144, 152, 160
sH, sQB, sKV, sN, sMA, sKB = 44, 45, 50, 51, 47, 52
AR_BASE = 112 * 1024

def unit(a, n, q, extra):
    Sc, Sn = S_ + 16*(q & 1), S_ + 16*((q+1) & 1)
    nn, nq = (n, q+1) if q < 3 else ((n+1) & 3, 0)
    pn, pq = (n, q-1) if q > 0 else ((n-1) & 3, 3)
    K, Vc, Vp = KV + 16*nn, KV + 16*n + 8, KV + 16*pn + 8
    e = lambda i: a(f"v_exp_f32 v{E_+(i&7)}, v{Sc+i}")
    c = lambda k: a(f"v_cvt_pk_bf16_f32 v{P_+k}, v{E_+((2*k)&7)}, v{E_+((2*k+1)&7)}")
    for x in extra.get(0, []): a(x)
    a(f"{MF} {v(Sn,16)}, {v(K,4)}, {v(Q_+8*nq,4)}, 0")
    e(0); c(6); e(1); c(7); e(2); e(3)
    a(f"{MF} {v(O_+16*pq,16)}, {v(Vp+4,4)}, {v(P_+4,4)}, {v(O_+16*pq,16)}")
    for x in extra.get(1, []): a(x)
    e(4); c(0); e(5); c(1); e(6); e(7)
    a(f"{MF} {v(Sn,16)}, {v(K+4,4)}, {v(Q_+8*nq+4,4)}, {v(Sn,16)}")
    for x in extra.get(2, []): a(x)
    e(8); c(2); e(9); c(3); e(10); e(11)
    a(f"{MF} {v(O_+16*q,16)}, {v(Vc,4)}, {v(P_,4)}, {v(O_+16*q,16)}")
    e(12); c(4); e(13); c(5); e(14); e(15)

def kvload(slot, f):
    return f"buffer_load_dwordx4 {v(KV+16*slot+4*f,4)}, v0, {s(WD,4)}, s{sKV} offen offset:{f*1024}{SC}"
def kvnext():
    return [f"s_add_u32 s3, s{sKV}, 4096", "s_and_b32 s3, s3, 0xffff", f"s_or_b32 s{sKV}, s3, s{sKB}"]

def att(a):
    if p1stamps():
        global stamp
        stamp = lambda *x: None
    a(f"""s_and_b32 s26, s2, 7
          s_lshr_b32 s27, s2, 3
          s_lshl_b32 s{sH}, s26, 1
          s_and_b32 s3, s27, 1
          s_add_u32 s{sH}, s{sH}, s3
          s_lshr_b32 s{sQB}, s27, 1
          s_mul_i32 s{sMA}, s{sW}, 11136
          s_add_u32 s{sMA}, s{sMA}, {AR_BASE}
          s_lshl_b32 s{sKB}, s{sH}, 2
          s_add_u32 s{sKB}, s{sKB}, s{sW}
          s_lshl_b32 s{sKB}, s{sKB}, 16
          s_add_u32 s{sKB}, s{sKB}, {KVF}
          s_lshl_b32 s3, s{sQB}, 12
          s_or_b32 s{sKV}, s{sKB}, s3
          s_lshr_b32 s3, s{sH}, 2
          s_lshl_b32 s3, s3, 4
          v_and_b32 v10, 3, v1
          s_lshl_b32 s26, s{sW}, 2
          s_add_u32 s26, s26, s3
          s_add_u32 s26, s26, 64
          v_add_u32 v10, s26, v10
          v_bfe_u32 v11, v1, 2, 1
          v_lshl_add_u32 v10, v11, 6, v10
          s_add_u32 s3, s3, s{sQB}
          v_writelane_b32 v10, s3, 8             ; lane 8: Q
          v_lshlrev_b32 v10, 7, v10
          v_add_u32 v10, {FP}, v10""")
    for i in range(64): a(f"v_mov_b32 v{O_+i}, 0")
    for i in range(8): a(f"v_mov_b32 v{E_+i}, 0\nv_mov_b32 v{P_+i}, 0")
    for i in range(4): a(f"v_mov_b32 v{KV+48+12+i}, 0")
    poll(a, 10, 9)
    if opt("ayield", 1): gwait(a, C_X, 4, field=0)
    stamp(a, 8)
    for j in range(4):
        a(f"""s_add_u32 s3, s{sW}, {j}
              s_and_b32 s3, s3, 3
              s_lshl_b32 s26, s{sH}, 4
              s_add_u32 s26, s26, s{sQB}
              s_lshl_b32 s26, s26, 2
              s_add_u32 s3, s3, s26
              s_lshl_b32 s3, s3, 11
              s_add_u32 s3, s3, {QF}""")
        for f in range(2): a(f"buffer_load_dwordx4 {v(Q_+8*j+4*f,4)}, v0, {s(WD,4)}, s3 offen offset:{f*1024}{SC}")
        if j == 0:
            for f in range(4): a(kvload(0, f))
            for x in kvnext(): a(x)
    for n in range(1, 3):
        for f in range(4): a(kvload(n, f))
        for x in kvnext(): a(x)
    a(f"s_mov_b32 s{sN}, 4\ns_waitcnt vmcnt(14)")
    a(f"{MF} {v(S_,16)}, {v(KV,4)}, {v(Q_,4)}, 0")
    a(f"{MF} {v(S_,16)}, {v(KV+4,4)}, {v(Q_+4,4)}, {v(S_,16)}")
    a(f"s_setprio {opt('pa2', 0)}\ns_waitcnt vmcnt(8)")
    stamp(a, 9)
    a(".p2align 3")
    a.label("AT_loop")
    for n in range(4):
        ld = (n + 3) & 3
        kvl = kvload if not opt("nokv", 0) else (lambda a_, b_: "s_nop 0")
        if opt("kvprio", 1):
            unit(a, n, 0, {1: ["s_setprio 3", kvl(ld, 0), kvl(ld, 1)], 2: [kvl(ld, 2), kvl(ld, 3), f"s_setprio {opt('pa2', 0)}"]})
            unit(a, n, 1, {1: kvnext()})
            unit(a, n, 2, {})
            ex = {0: ["s_waitcnt vmcnt(8)"], 2: []}
        else:
            unit(a, n, 0, {2: [kvl(ld, 0)]})
            unit(a, n, 1, {1: [kvl(ld, 1)]})
            unit(a, n, 2, {1: [kvl(ld, 2)]})
            ex = {0: ["s_waitcnt vmcnt(7)"], 1: [kvl(ld, 3)], 2: kvnext()}
        if n == 3: ex[2] += [f"s_sub_u32 s{sN}, s{sN}, 1", f"s_cmp_lg_u32 s{sN}, 0"]
        unit(a, n, 3, ex)
    a("s_cbranch_scc1 AT_loop")
    a(f"v_cvt_pk_bf16_f32 v{P_+6}, v{E_+4}, v{E_+5}\nv_cvt_pk_bf16_f32 v{P_+7}, v{E_+6}, v{E_+7}")
    a(f"{MF} {v(O_+48,16)}, {v(KV+48+12,4)}, {v(P_+4,4)}, {v(O_+48,16)}")
    stamp(a, 10)
    a(f"s_setprio {opt('pa1', 2)}")
    gwait(a, C_B, B_G3_DONE)
    def region(d, j):
        a(f"""s_sub_u32 s{d}, s{sW}, {j}
              s_and_b32 s{d}, s{d}, 3
              s_mul_i32 s{d}, s{d}, 11136
              s_add_u32 s{d}, s{d}, {AR_BASE}""")
    reduce3c(a, O_, sMA, region, C_A, 4)
    a(f"""v_mov_b32 v10, v{O_+12}
          v_mov_b32 v11, v{O_+12}
          v_permlane32_swap_b32 v11, v10
          v_mov_b32 v12, v10
          v_mov_b32 v13, 0""")
    for i in range(16): a(f"v_fma_f32 v{12+(i&1)}, v{O_+i}, 0, v{12+(i&1)}")
    a(f"""v_add_f32 v12, v12, v13                ; row sum, or NaN if any accumulator is not finite
          v_cmp_le_f32 vcc, {fb(2.0**-80)}, v12
          v_cmp_ge_f32 s[26:27], s59, v12
          s_and_b64 vcc, vcc, s[26:27]
          s_cmp_eq_u64 vcc, -1
          s_cbranch_scc0 AT_slow""".replace("s59", "s59"))
    a.label("AT_norm")
    a(f"""v_rcp_f32 v10, v10
          v_lshrrev_b32 v8, 5, v1
          v_add_u32 v8, -1, v8""")
    for i in range(16): a(f"v_mul_f32 v{O_+i}, v{O_+i}, v10")
    for i in range(8): a(f"v_cvt_pk_bf16_f32 v{P_+i}, v{O_+2*i}, v{O_+2*i+1}")
    a(f"""v_and_b32 v{P_+6}, v8, v{P_+6}
          v_and_b32 v{P_+7}, v8, v{P_+7}
          s_lshl_b32 s26, s{sQB}, 2
          s_add_u32 s26, s26, s{sW}
          s_lshl_b32 s26, s26, 4
          s_add_u32 s26, s26, s{sH}
          s_lshl_b32 s3, s26, 11
          s_add_u32 s3, s3, {OF}
          buffer_store_dwordx4 {v(P_,4)}, v0, {s(WD,4)}, s3 offen{SC}
          buffer_store_dwordx4 {v(P_+4,4)}, v0, {s(WD,4)}, s3 offen offset:1024{SC}
          s_lshl_b32 s3, s{sQB}, 4
          s_add_u32 s3, s3, s{sH}
          s_lshl_b32 s3, s3, 7
          s_add_u32 s3, s3, {FA}
          s_waitcnt vmcnt(0)""")
    signal(a, 3, 20)
    stamp(a, 11)
    stamp_out2(a)
    a("s_endpgm")
    a.label("AT_slow")
    a(f"""s_waitcnt vmcnt(0)
          s_lshl_b32 s{sKB}, s{sH}, 18
          s_add_u32 s{sKB}, s{sKB}, {KVF}
          s_mov_b32 s{sKV}, s{sKB}
          s_mov_b32 s{sN}, 64
          v_mov_b32 v12, 0xff800000""")
    a.label("AT_s1")
    a(kvload(0, 0)); a(kvload(0, 1))
    a(f"""s_add_u32 s{sKV}, s{sKV}, 4096
          s_waitcnt vmcnt(0)
          {MF} {v(S_,16)}, {v(KV,4)}, {v(Q_,4)}, 0
          {MF} {v(S_,16)}, {v(KV+4,4)}, {v(Q_+4,4)}, {v(S_,16)}""")
    for i in range(8): a(f"v_max3_f32 v12, v12, v{S_+2*i}, v{S_+2*i+1}")
    a(f"""s_sub_u32 s{sN}, s{sN}, 1
          s_cmp_lg_u32 s{sN}, 0
          s_cbranch_scc1 AT_s1
          v_mov_b32 v13, v12
          v_permlane32_swap_b32 v12, v13
          v_max_f32 v12, v12, v13
          v_cvt_pk_bf16_f32 v13, -v12, -v12
          v_and_b32 v13, 0xffff0000, v13
          v_sub_f32 v12, -v12, v13
          v_cvt_pk_bf16_f32 v14, v12, v12
          v_and_b32 v14, 0xffff0000, v14
          v_sub_f32 v12, v12, v14
          v_cvt_pk_bf16_f32 v13, v13, v14
          v_cvt_pk_bf16_f32 v14, v12, 0
          v_lshrrev_b32 v8, 5, v1
          v_add_u32 v8, -1, v8
          v_bfi_b32 v{Q_+6}, v8, v{Q_+6}, v13
          v_bfi_b32 v{Q_+7}, v8, v{Q_+7}, v14
          s_mov_b32 s{sKV}, s{sKB}
          s_mov_b32 s{sN}, 64""")
    for i in range(16): a(f"v_mov_b32 v{O_+i}, 0")
    a.label("AT_s2")
    for f in range(4): a(kvload(0, f))
    a(f"""s_add_u32 s{sKV}, s{sKV}, 4096
          s_waitcnt vmcnt(0)
          {MF} {v(S_,16)}, {v(KV,4)}, {v(Q_,4)}, 0
          {MF} {v(S_,16)}, {v(KV+4,4)}, {v(Q_+4,4)}, {v(S_,16)}""")
    for i in range(16): a(f"v_exp_f32 v{S_+i}, v{S_+i}")
    for i in range(8): a(f"v_cvt_pk_bf16_f32 v{P_+i}, v{S_+2*i}, v{S_+2*i+1}")
    a(f"""{MF} {v(O_,16)}, {v(KV+8,4)}, {v(P_,4)}, {v(O_,16)}
          {MF} {v(O_,16)}, {v(KV+12,4)}, {v(P_+4,4)}, {v(O_,16)}
          s_sub_u32 s{sN}, s{sN}, 1
          s_cmp_lg_u32 s{sN}, 0
          s_cbranch_scc1 AT_s2
          v_mov_b32 v10, v{O_+12}
          v_mov_b32 v11, v{O_+12}
          v_permlane32_swap_b32 v11, v10
          s_branch AT_norm""")

B_G3_DONE = 20
G2_BASE = 0
W3B = 60 * 1024
XCH3 = CNT + 1024
RES = 224

def p1b(a):
    bst = (lambda i: common.stamp(a, i)) if p1stamps() else (lambda i: None)
    sRB, sCB, sT = 44, 45, 48
    sROW, sWO, sK, sCOL = 49, 50, 51, 52
    WB = 0x1C000
    XT = 232
    if opt("codepf", 1):
        nseg = opt("nseg", 5)
        a(f"""s_lshr_b32 s26, s2, 3
              s_cmp_ge_u32 s26, {nseg}
              s_cbranch_scc1 PB_nopf
              s_cmp_lg_u32 s{sW}, 0
              s_cbranch_scc1 PB_nopf
              s_getpc_b64 s[62:63]""")
        a.label("PB_pc")
        a(f"""s_lshl_b32 s26, s26, 13
              s_sub_u32 s62, s62, PB_pc-K_start
              s_subb_u32 s63, s63, 0
              s_add_u32 s62, s62, s26
              s_addc_u32 s63, s63, 0
              v_lshlrev_b32 v8, 7, v1
              v_add_u32 v9, s26, v8
              v_cmp_gt_u32 vcc, K_last-K_start, v9
              v_mov_b32 v11, s63
              v_add_co_u32 v10, s[26:27], s62, v8
              v_addc_co_u32 v11, s[26:27], 0, v11, s[26:27]
              s_and_saveexec_b64 s[26:27], vcc
              s_cbranch_execz PB_pfx
              global_load_dword v16, v[10:11], off""")
        a.label("PB_pfx")
        a("s_mov_b64 exec, -1")
        a.label("PB_nopf")
    a(f"""s_and_b32 s26, s2, 1
          s_lshl_b32 s26, s26, 3
          s_lshr_b32 s3, s2, 5
          s_add_u32 s26, s26, s3
          s_bfe_u32 s{sK}, s2, 0x20003
          s_lshl_b32 s54, s{sK}, 1
          s_add_u32 s54, s54, s3
          s_mul_i32 s3, s54, 37
          s_lshr_b32 s3, s3, 8
          s_mul_i32 s3, s3, 7
          s_sub_u32 s54, s54, s3
          s_mul_i32 s54, s54, {opt("rotw", 1)}
          s_bfe_u32 s3, s2, 0x20001
          s_lshl_b32 s3, s3, 2
          s_add_u32 s3, s3, s{sK}
          s_lshl_b32 s3, s3, 2
          s_add_u32 s3, s3, s{sW}
          s_lshl_b32 s56, s3, 5
          s_and_b32 s27, s26, 3
          s_lshr_b32 s3, s27, 1
          s_add_u32 s3, s3, 1
          s_sub_u32 s57, 0, s3
          s_bitcmp1_b32 s27, 0
          s_cselect_b32 s3, s3, s57
          s_movk_i32 s{sROW}, 2688
          s_cmp_ge_u32 s26, 12
          s_cselect_b32 s3, s3, 0
          s_cselect_b32 s{sROW}, 896, s{sROW}
          s_cselect_b32 s27, s27, s26
          s_add_u32 s56, s56, s3
          s_mul_i32 s{sCOL}, s27, 224
          v_lshrrev_b32 v8, 3, v1
          v_add_u32 v8, s56, v8
          s_movk_i32 s3, 896
          v_mul_i32_i24 v8, s3, v8
          v_bfe_u32 v9, v1, 4, 2
          v_and_b32 v10, 7, v1
          v_xor_b32 v9, v9, v10
          v_lshl_add_u32 v2, v9, 4, v8
          v_xor_b32 v9, 4, v9
          v_lshl_add_u32 v3, v9, 4, v8
          v_add_u32 v3, {8*896}, v3
          v_add_u32 v4, {16*896}, v2
          v_add_u32 v5, {16*896}, v3
          v_lshrrev_b32 v8, 4, v1
          v_lshlrev_b32 v9, 2, v8
          v_sub_u32 v9, v1, v9
          v_and_b32 v9, 15, v9
          v_mul_u32_u24 v8, s{sROW}, v8
          v_lshl_add_u32 v7, v9, 4, v8
          v_cmp_gt_u32 s[62:63], 14, v9
          s_lshl_b32 s{sK}, s54, 6
          s_lshl_b32 s54, s54, 7
          s_lshl_b32 s3, s{sW}, 4
          s_mul_i32 s3, s3, s{sROW}
          s_add_u32 s{sCOL}, s{sCOL}, s3
          s_lshl_b32 s53, s{sROW}, 2
          s_lshl_b32 s55, s{sW}, 12
          s_waitcnt lgkmcnt(0)
          s_cmp_ge_u32 s26, 12
          s_cselect_b32 s{WA}, s12, s6
          s_cselect_b32 s{WA+1}, s13, s7
          s_mul_i32 s{WA+2}, s{sROW}, 448
          s_mov_b32 s{WA+3}, 0x20000""")
    srd(a, XS, 4, 2048 * 896)
    q = []
    gap = []
    def ride(n):
        for x in gap[:n]: a(x)
        del gap[:n]
    def xchunk(c):
        for g in range(4):
            a(f"s_add_u32 m0, s55, {XB + (c % 3)*16384 + g*1024}")
            a(f"s_nop 0\nbuffer_load_dwordx4 v{2+g}, {s(XS,4)}, s54 offen lds")
            ride(9)
        wrapinc(a, 54, 128, 896)
        q.extend([c] * 4)
    def wchunk(c):
        a(f"""s_mul_i32 s{sWO}, s{sK}, s{sROW}
              s_add_u32 s{sWO}, s{sWO}, s{sCOL}""")
        wrapinc(a, sK, 64, 448)
        a("s_mov_b64 exec, s[62:63]")
        for u in range(4):
            a(f"s_add_u32 m0, s55, {c*16384 + u*1024}")
            if u: a(f"s_add_u32 s{sWO}, s{sWO}, s53")
            a(f"buffer_load_dwordx4 v7, {s(WA,4)}, s{sWO} offen lds")
        a("s_mov_b64 exec, -1")
        q.extend([c] * 4)
    srd(a, WD, 24, WS_END)
    a(f"""s_lshl_b32 s61, s{sW}, 8
          s_or_b32 s61, s61, s2
          v_mov_b32 v22, 0
          s_cmp_ge_u32 s61, {NINIT}
          s_cbranch_scc1 PB_noinit
          v_lshlrev_b32 v13, 7, v1
          s_lshl_b32 s3, s2, 13
          s_add_u32 s3, s3, {FLG}
          buffer_store_dword v22, v13, {s(WD,4)}, s3 offen{SC}""")
    a.label("PB_noinit")
    xchunk(0); wchunk(0)
    a(f"""v_lshrrev_b32 v8, 1, v1
          v_and_b32 v9, 15, v8
          v_lshrrev_b32 v10, 4, v8
          v_lshlrev_b32 v10, 14, v10
          v_lshl_add_u32 v10, v9, 8, v10
          v_and_b32 v9, 3, v8
          v_lshlrev_b32 v9, 2, v9
          v_and_b32 v8, 1, v1
          v_add3_u32 v9, v9, v8, 14
          v_and_b32 v9, 15, v9
          v_lshl_add_u32 v10, v9, 4, v10
          v_add_u32 v10, s55, v10
          v_add_u32 v11, 0x10000, v10
          v_mov_b32 v12, 0x3f803f80
          v_mov_b32 v13, v12
          v_mov_b32 v14, v12
          v_mov_b32 v15, v12
          ds_write_b128 v10, v[12:15]
          ds_write_b128 v10, v[12:15] offset:32768
          ds_write_b128 v11, v[12:15]
          s_mov_b64 exec, 0xffffffff
          ds_write_b128 v11, v[12:15] offset:32768
          s_mov_b64 exec, -1""")
    srd(a, WD, 24, WS_END)
    srd(a, WB_, 22, 256)
    xchunk(1)
    if opt("w1e", 1): wchunk(1)
    small_setup(a, sRB, sCB, sT)
    tail = A()
    tail(f"""s_lshr_b32 s{sFT}, s{sW}, 1
          s_xor_b32 s{sFT}, s{sFT}, s2
          s_and_b32 s{sFT}, s{sFT}, 1
          v_lshrrev_b32 v8, 2, v1
          v_mul_u32_u24 v8, 896, v8
          v_bfe_u32 v9, v1, 4, 2
          v_and_b32 v10, 3, v1
          v_xor_b32 v9, v9, v10
          v_lshl_add_u32 v8, v9, 4, v8
          s_mul_i32 s3, s{sT}, {32*896}
          s_lshl_b32 s26, s{sCB}, 7
          s_add_u32 s3, s3, s26
          s_lshl_b32 s26, s{sFT}, 6
          s_add_u32 s3, s3, s26
          s_add_u32 s26, s3, {16*896}
          buffer_load_dwordx4 {v(XT,4)}, v8, {s(XS,4)}, s3 offen
          buffer_load_dwordx4 {v(XT+4,4)}, v8, {s(XS,4)}, s26 offen""")
    t2, t3, t4 = A(), A(), A()
    srd(t2, WB_, 14, 448*896)
    t2(f"""v_lshlrev_b32 v8, 7, v1
           s_lshr_b32 s57, s2, 3
           s_lshl_b32 s57, s57, 2
           s_add_u32 s57, s57, s{sW}
           s_mul_i32 s3, s57, {25*128}
           s_bfm_b64 exec, 25, 0
           buffer_load_dword v16, v8, {s(WB_,4)}, s3 offen
           s_mov_b64 exec, -1""")
    srd(t3, WB_, 16, 448*3584)
    t3(f"""s_lshr_b32 s57, s2, 3
           s_lshl_b32 s57, s57, 2
           s_add_u32 s57, s57, s{sW}
           s_mul_i32 s3, s57, 49
           v_add_u32 v9, s3, v1
           v_mul_u32_u24 v10, 9363, v9
           v_lshrrev_b32 v10, 17, v10
           v_mul_u32_u24 v11, 14, v10
           v_sub_u32 v9, v9, v11
           v_mul_u32_u24 v10, 3584, v10
           v_lshl_add_u32 v9, v9, 7, v10
           s_and_b32 s3, s2, 1
           s_mul_i32 s3, s3, 1792
           s_bfm_b64 exec, 49, 0
           buffer_load_dword v17, v9, {s(WB_,4)}, s3 offen
           s_mov_b64 exec, -1""")
    srd(t4, WB_, 18, 448*3584)
    t4(f"""v_lshlrev_b32 v8, 7, v1
           s_lshl_b32 s57, s2, 2
           s_add_u32 s57, s57, s{sW}
           s_mul_i32 s3, s57, {13*128}
           s_bfm_b64 exec, 13, 0
           buffer_load_dword v18, v8, {s(WB_,4)}, s3 offen""")
    srd(t4, WB_, 8, 448*896)
    t4(f"""s_lshl_b32 s3, s57, 9
           s_mov_b64 exec, 15
           buffer_load_dword v19, v8, {s(WB_,4)}, s3 offen
           s_mov_b64 exec, -1""")
    w2 = A()
    w2(f"s_mul_i32 s47, s{sW}, 14336\ns_add_u32 s47, s47, {G2_BASE}")
    small_addrs(w2, "s47")
    srd(w2, WA, 14, 448 * 896)
    w2(f"""s_mul_i32 s3, s{sW}, {112*896}
           s_lshl_b32 s26, s{sCB}, 7
           s_add_u32 s3, s3, s26
           v_add_u32 v4, s3, v7
           v_add_u32 v5, {8*896}, v4
           s_mul_i32 s50, s{sCB}, {16*896*opt("rot", 1)}""")
    for j in range(7):
        w2(f"""s_add_u32 m0, s47, {j*2048}
               s_nop 0
               buffer_load_dwordx4 v4, {s(WA,4)}, s50 offen lds
               s_add_u32 m0, s47, {j*2048 + 1024}
               s_nop 0
               buffer_load_dwordx4 v5, {s(WA,4)}, s50 offen lds""")
        if j < 6: wrapinc(w2, 50, 16*896, 112*896)
    extras = [(opt("tw2", 2), t2, 1), (opt("tw3", 4), t3, 1), (opt("tw4", 4), t4, 2), (4, tail, 2), (opt("w2c", 7), w2, 14)]
    bst(2)
    for c in range(7):
        last = max(i for i, x in enumerate(q) if x == c)
        a(f"s_waitcnt vmcnt({len(q) - 1 - last}) lgkmcnt(0)")
        bst((3, 12, 13, 4, 5, 14, 8)[c])
        a("s_barrier")
        if c == 0:
            a(f"""s_cmp_ge_u32 s61, {NINIT}
                  s_cbranch_scc1 PB_noset
                  s_lshl_b32 s3, s2, 2
                  v_mov_b32 v9, 1
                  s_mov_b64 exec, 1
                  buffer_store_dword v9, v22, {s(WB_,4)}, s3 offen{SC}
                  s_mov_b64 exec, -1""")
            a.label("PB_noset")
        if c == 0 and not opt("w1e", 1): wchunk(1)
        if c + 2 < 7: xchunk(c + 2); wchunk(c + 2)
        if c == 3:
            srd(a, WB_, 22, 256)
            a(f"v_min_u32 v20, {NINIT - 1}, v1\nv_lshlrev_b32 v20, 2, v20\nbuffer_load_dword v21, v20, {s(WB_,4)}, 0 offen sc1"); q.append(5)
        if c == 5:
            a("v_cmp_eq_u32 vcc, 0, v21\ns_cbranch_vccz PB_clr")
            srd(a, WB_, 22, 256)
            poll(a, 20, NINIT, WB_)
            a.label("PB_clr")
        for when, code, nv in extras:
            if when == c:
                for x in code.l: a(x)
                q.extend([99] * nv)
        ride(999)
    a(f"""v_mov_b32 v8, {CNT}
          v_mov_b32 v12, 0
          v_mov_b32 v13, 0
          v_mov_b32 v14, 0
          v_mov_b32 v15, 0
          ds_write_b128 v8, v[12:15]
          ds_write_b128 v8, v[12:15] offset:16
          ds_write_b128 v8, v[12:15] offset:32
          s_waitcnt lgkmcnt(0)
          s_barrier                              ; barrier 7""")
    for when, code, nv in extras:
        if when == 7:
            for x in code.l: a(x)
    bst(9)
    gwait(a, C_X, 4, field=1)
    for when, code, nv in extras:
        if when == 8:
            for x in code.l: a(x)
    bst(10); bst(11); bst(15)

def small_setup(a, sRB, sCB, sT):
    a(f"""s_bfe_u32 s26, s2, 0x20001
          s_lshl_b32 s26, s26, 2
          s_bfe_u32 s3, s2, 0x20003
          s_add_u32 s26, s26, s3
          s_lshl_b32 s{sRB}, s26, 1
          s_and_b32 s3, s2, 1
          s_add_u32 s{sRB}, s{sRB}, s3
          s_lshr_b32 s{sCB}, s2, 5
          s_and_b32 s3, s{sW}, 1
          s_lshl_b32 s{sT}, s{sRB}, 1
          s_add_u32 s{sT}, s{sT}, s3""")

def small_addrs(a, sM, natural=False):
    a(f"""v_lshrrev_b32 v8, 3, v1
          v_bfe_u32 v9, v1, 4, 1
          v_lshlrev_b32 v9, 2, v9
          v_and_b32 v10, 7, v1
          v_xor_b32 v9, v9, v10
          v_mul_u32_u24 v8, 896, v8
          v_lshl_add_u32 v7, v9, 4, v8
          v_lshrrev_b32 v8, 5, v1
          v_bfe_u32 v9, v1, 2, 2
          v_lshl_add_u32 v8, v8, 2, v9
          v_lshlrev_b32 v8, 7, v8
          v_bfe_u32 v10, v1, 4, 1
          v_bfe_u32 v11, v1, 1, 1
          v_lshl_add_u32 v10, v10, 1, v11
          v_bfe_u32 v11, v1, 3, 1
          v_lshl_add_u32 v10, v11, 2, v10
          v_lshl_add_u32 v8, v10, 4, v8
          v_and_b32 v11, 1, v1
          v_lshl_add_u32 v8, v11, 3, v8
          s_lshl_b32 s3, {"0" if natural else "s%d" % sFT}, 6
          v_xor_b32 v8, s3, v8
          v_add_u32 v2, {sM}, v8
          v_xor_b32 v8, 64, v8
          v_add_u32 v3, {sM}, v8""")

def wreads(a, WF, buf, off, va=2):
    for b in range(2):
        for e in range(2): a(f"ds_read_b64_tr_b16 {v(WF+8*buf+4*b+2*e,2)}, v{va+b} offset:{off + 8*e*128}")
def mfmas(a, ACC, WF, buf, act0, act1, first):
    for aa, ar in enumerate((act0, act1)):
        for b in range(2):
            j = 2*aa + b
            a(f"{MF} {v(ACC+16*j,16)}, {v(WF+8*buf+4*b,4)}, {v(ar,4)}, {'0' if first else v(ACC+16*j,16)}")

def roleb(a):
    ACC, WF, AR, EP = 16, 80, 112, 176
    sRB, sCB, sT, sM, sK, sKA, sX = 44, 45, 48, 47, 50, 51, 53
    sRB3, sCB3, sT3, sK3, sL = 54, 55, 56, 57, 49
    ROT = opt("rot", 1)
    a("s_cmp_ge_u32 s2, 224\ns_cbranch_scc0 B_go")
    a(f"""s_mov_b64 exec, 1
          v_mov_b32 v8, {CNT}
          v_mov_b32 v9, {B_G3_DONE // 4}
          ds_add_u32 v8, v9
          s_mov_b64 exec, -1""")
    garrive(a, C_X)
    if opt("idlepf", 1):
        a(f"""s_lshl_b32 s3, s{sRB}, 10
              s_add_u32 s3, s3, {F2}
              v_mov_b32 v10, s3""")
        poll(a, 10, 1)
        srd(a, WA, 18, 1792 * 896)
        srd(a, WB_, 8, 448 * 896)
        a(f"""s_lshr_b32 s3, s2, 3
              s_sub_u32 s3, s3, 28
              s_lshl_b32 s3, s3, 2
              s_add_u32 s3, s3, s{sW}
              s_lshl_b32 s26, s3, 13
              s_and_b32 s27, s2, 1
              s_mul_i32 s27, s27, {896*896}
              s_add_u32 s26, s26, s27
              v_lshlrev_b32 v8, 7, v1
              s_mov_b32 s27, 7""")
        a.label("B_pf")
        a(f"""buffer_load_dword v16, v8, {s(WA,4)}, s26 offen
              s_add_u32 s26, s26, {16*8192}
              s_waitcnt vmcnt(1)
              s_sub_u32 s27, s27, 1
              s_cmp_lg_u32 s27, 0
              s_cbranch_scc1 B_pf
              s_lshl_b32 s26, s3, 13""")
        for i in range(4): a(f"buffer_load_dword v16, v8, {s(WB_,4)}, s26 offen\ns_add_u32 s26, s26, {16*8192}")
    a("s_endpgm")
    a.label("B_go")
    a(f"s_setprio {opt('pb', 1)}")
    bs2 = (lambda i: common.stamp(a, i)) if opt("g2s", 0) and common.STAMPS else (lambda i: None)
    if opt("g2s", 0):
        global stamp
        keep = stamp
        stamp = lambda a_, i, *x: keep(a_, i, *x) if i in (2, 3) else None
    a(f"s_lshl_b32 s{sL}, s{sW}, 12")
    bs2(13)
    a(f"""s_add_u32 s3, s{sL}, {W3B}
          v_add_u32 v10, s3, v0
          v_and_b32 v8, 31, v1
          v_lshlrev_b32 v8, 6, v8
          v_bfe_u32 v9, v1, 2, 2
          v_lshl_add_u32 v8, v9, 4, v8
          v_lshrrev_b32 v9, 5, v1
          v_lshl_add_u32 v8, v9, 3, v8
          v_add_u32 v12, s3, v8
          v_xor_b32 v13, 16, v12
          v_xor_b32 v14, 32, v12
          v_xor_b32 v15, 48, v12
          s_waitcnt vmcnt(0)
          ds_write_b128 v10, v[232:235]
          ds_write_b128 v10, v[236:239] offset:1024
          s_waitcnt lgkmcnt(0)""")
    for j in range(4): a(f"ds_read_b64 {v(EP+2*j,2)}, v{12+j}")
    a(f"""s_and_b32 s26, s2, 7
          s_lshr_b32 s27, s2, 3
          s_lshr_b32 s{sRB3}, s26, 1
          s_lshl_b32 s{sRB3}, s{sRB3}, 2
          s_and_b32 s3, s27, 3
          s_add_u32 s{sRB3}, s{sRB3}, s3
          s_and_b32 s{sCB3}, s26, 1
          s_mul_i32 s{sCB3}, s{sCB3}, 7
          s_add_u32 s{sCB3}, s{sCB3}, s{sCB}
          s_lshl_b32 s{sT3}, s{sRB3}, 2
          s_add_u32 s{sT3}, s{sT3}, s{sW}
          v_lshrrev_b32 v8, 4, v1
          v_lshlrev_b32 v9, 2, v8
          v_sub_u32 v9, v1, v9
          v_and_b32 v9, 15, v9
          v_mul_u32_u24 v8, 3584, v8
          v_lshl_add_u32 v6, v9, 4, v8
          s_mul_i32 s3, s{sW}, {16*3584}
          s_lshl_b32 s26, s{sCB3}, 8
          s_add_u32 s3, s3, s26
          v_add_u32 v6, s3, v6                   ; W3 voffset
          s_mul_i32 s{sK3}, s{sCB}, {64*3584*ROT}""")
    srd(a, WB_, 16, 448 * 3584)
    a("s_waitcnt lgkmcnt(0)")
    def w3chunk(c):
        for u in range(4):
            a(f"s_add_u32 m0, s{sL}, {(W3B + c*16384 if c < 6 else 0) + u*1024}")
            a(f"s_add_u32 s3, s{sK3}, {u*4*3584}")
            a(f"buffer_load_dwordx4 v6, {s(WB_,4)}, s3 offen lds")
        wrapinc(a, sK3, 64*3584, 448*3584)
    W3A = opt("w3a", 6); W3E = max(W3A, opt("w3e", 2))
    if W3A:
        gwait(a, C_S1, 4)
        for c in range(W3A): w3chunk(c)
    a(f"""s_mul_i32 s3, s{sT}, 28
          s_mul_i32 s26, s{sW}, 7
          s_add_u32 s3, s3, s26
          s_lshl_b32 s3, s3, 10
          s_add_u32 s3, s3, {HF}
          v_add_u32 v4, s3, v0
          s_xor_b32 s3, s{sT}, 1
          s_mul_i32 s3, s3, 28
          s_add_u32 s3, s3, s26
          s_lshl_b32 s3, s3, 10
          s_add_u32 s3, s3, {HF}
          v_add_u32 v5, s3, v0
          s_mul_i32 s{sKA}, s{sCB}, {1024*ROT}
          s_mul_i32 s{sX}, s{sT}, 28
          s_lshl_b32 s3, s{sCB}, 2
          s_add_u32 s{sX}, s{sX}, s3
          s_lshl_b32 s3, s{sFT}, 1
          s_add_u32 s{sX}, s{sX}, s3
          s_lshl_b32 s{sX}, s{sX}, 10
          s_add_u32 s{sX}, s{sX}, {X1F}
          s_add_u32 s3, s{sW}, 12
          s_lshl_b32 s3, s3, 4
          s_lshr_b32 s26, s{sRB}, 1
          s_add_u32 s3, s3, s26
          v_mov_b32 v10, s3
          v_writelane_b32 v10, s26, 1
          v_lshlrev_b32 v10, 7, v10
          v_add_u32 v10, {FP}, v10
          v_lshlrev_b32 v8, 3, v1
          v_and_b32 v15, 0xff, v8
          s_lshl_b32 s27, s{sT}, 8
          s_add_u32 s27, s27, {ST1}""")
    unpack(a, RES, EP, 8)
    stamp(a, 2)
    poll(a, 10, 2)
    stamp(a, 3)
    for j in range(7):
        a(f"buffer_load_dwordx4 {v(AR+8*j,4)}, v4, {s(WD,4)}, s{sKA} offen{SC}")
        a(f"buffer_load_dwordx4 {v(AR+8*j+4,4)}, v5, {s(WD,4)}, s{sKA} offen{SC}")
        if j < 6: wrapinc(a, sKA, 1024, 7168)
    a(f"buffer_load_dwordx2 {v(EP+8,2)}, v15, {s(WD,4)}, s27 offen{SC}")
    garrive(a, C_X)
    for s_ in range(3): wreads(a, WF, s_, s_*2048)
    NW3 = 0
    for s_ in range(7):
        a(f"s_waitcnt vmcnt({2*(6-s_) + 1 + NW3}) lgkmcnt({4*min(2, 6 - s_)})")
        mfmas(a, ACC, WF, s_ & 3, AR+8*s_, AR+8*s_+4, s_ == 0)
        if s_ + 3 < 7: wreads(a, WF, (s_+3) & 3, (s_+3)*2048)
    U = AR
    stamp(a, 12)
    a(f"s_waitcnt vmcnt({NW3})")
    for i in range(16): a(f"v_sub_f32 v{U+i}, v{RES+i}, v{EP+8}")
    def region2(d, j):
        a(f"""s_xor_b32 s{d}, s{sW}, {(j >> 1) + 2*(j & 1)}
              s_mul_i32 s{d}, s{d}, 14336
              s_add_u32 s{d}, s{d}, {G2_BASE}""")
    reduce3(a, ACC, sM, region2, 0, 4, True)
    stamp(a, 13)
    for i in range(16): a(f"v_fma_f32 v{U+i}, v{U+i}, v{EP+9}, v{ACC+i}")
    for i in range(8): a(f"v_cvt_pk_bf16_f32 v{EP+i}, v{U+2*i}, v{U+2*i+1}")
    a(f"buffer_store_dwordx4 {v(EP,4)}, v0, {s(WD,4)}, s{sX} offen{SC}")
    a(f"buffer_store_dwordx4 {v(EP+4,4)}, v0, {s(WD,4)}, s{sX} offen offset:1024{SC}")
    unpack(a, U, EP, 8)
    for i in range(16):
        a(f"v_add_f32 v{10+(i&1)}, v{U+i}, {'0' if i < 2 else 'v%d' % (10+(i&1))}")
        a(f"v_fma_f32 v{12+(i&1)}, v{U+i}, v{U+i}, {'0' if i < 2 else 'v%d' % (12+(i&1))}")
    a("v_add_f32 v10, v10, v11\nv_add_f32 v11, v12, v13")
    half_sum(a, 10, 8); half_sum(a, 11, 9)
    a(f"""s_lshl_b32 s26, s{sCB}, 1
          s_add_u32 s26, s26, s{sFT}
          s_mul_i32 s3, s{sT}, 14
          s_add_u32 s3, s3, s26
          s_lshl_b32 s3, s3, 8
          s_add_u32 s3, s3, {ST3}
          buffer_store_dwordx2 v[10:11], v15, {s(WD,4)}, s3 offen{SC}
          s_lshl_b32 s3, s{sRB}, 3
          s_add_u32 s3, s3, s{sCB}
          s_lshl_b32 s3, s3, 7
          s_add_u32 s{sX}, s3, {F2}""")
    garrive(a, 0)
    for i in range(16): a(f"v_add_f32 v{RES+i}, v{RES+i}, v{U+i}")
    for c in range(W3A, W3E): w3chunk(c)
    a(f"s_waitcnt vmcnt({4*(W3E - W3A)})")
    signal(a, sX, 12)
    stamp(a, 4)
    for c in range(W3E, 6): w3chunk(c)
    gwait(a, 0, 8)
    w3chunk(6)
    ACC, WF, XR, TMP = 16, 80, 112, 240
    CSP, CS = TMP, ACC + 48
    tr_addrs(a, 2, 8, W3B, perm=True)
    for i in range(4): a(f"v_mov_b32 v{CSP+i}, 0x3f803f80")
    a(f"""s_lshr_b32 s3, s{sT3}, 1
          s_lshl_b32 s3, s3, 10
          s_add_u32 s3, s3, {F2}
          v_lshl_add_u32 v11, v1, 7, s3
          s_mul_i32 s3, s{sT3}, {28*1024}
          s_add_u32 s3, s3, {X1F}
          v_add_u32 v7, s3, v0
          s_mul_i32 s{sKA}, s{sCB}, {4096*ROT}
          v_lshrrev_b32 v12, 5, v1
          v_mul_u32_u24 v12, {7*256}, v12
          v_and_b32 v13, 31, v1
          v_lshl_add_u32 v12, v13, 3, v12
          s_mul_i32 s27, s{sT3}, {14*256}
          s_add_u32 s27, s27, {ST3}""")
    a("s_waitcnt vmcnt(0)")
    gbar(a, 0, 12)
    CSG = opt("csg", 1)
    def cs_exchange():
        a(f"""v_cvt_pk_bf16_f32 v{WF}, v{CS}, v{CS}
              v_and_b32 v{WF}, 0xffff0000, v{WF}
              v_sub_f32 v{WF}, v{CS}, v{WF}
              v_cvt_pk_bf16_f32 v{WF}, v{CS}, v{WF}
              v_and_b32 v15, 31, v1
              v_lshlrev_b32 v15, 2, v15
              v_add_u32 v15, {XCH3}, v15
              s_lshl_b32 s26, s{sW}, 7
              v_add_u32 v13, s26, v15
              ds_write_b32 v13, v{WF}""")
        gbar(a, 0, 16)
        for t in range(4): a(f"ds_read_b32 v{CSP+t}, v15 offset:{128*t}")
        a("s_waitcnt lgkmcnt(0)")
    def hops(ts):
        return {4: [f"v_add_u32 v{2+t}, 0x10000, v{2+t}" for t in ts], 6: [f"v_add_u32 v{2+t}, {(-W3B - 0x10000) & 0xffffffff}, v{2+t}" for t in ts]}
    woff = lambda c: (c & 3) * 16384 if c < 6 else 0
    if CSG:
        a(f"s_setprio {opt('pcs', 0)}")
        kloop(a, ACC, WF, XR, 2, (4,), woff, hops((4,)), True, [], R=8, D=7, cs=(CS, CSP, 32))
        a(f"s_setprio {opt('pb', 1)}")
        cs_exchange()
    poll(a, 11, 7)
    stamp(a, 5)
    STL = [WF + 24, WF + 26, WF + 28, WF + 30, TMP + 8, TMP + 10, 14]; ST = STL[0]
    LA = opt("la3", 12)
    def xl(u):
        g = A()
        g(f"buffer_load_dwordx4 {v(XR+4*u,4)}, v7, {s(WD,4)}, s{sKA} offen offset:{(u&3)*1024}{SC}")
        if (u & 3) == 3 and u < 27: wrapinc(g, sKA, 4096, 7*4096)
        return g.l
    for u in range(LA):
        for x in xl(u): a(x)
        if u == 3:
            for i in range(7): a(f"buffer_load_dwordx2 {v(STL[i],2)}, v12, {s(WD,4)}, s27 offen offset:{i*256}{SC}")
    M0_, M1_, R, DEN = TMP+4, TMP+5, TMP+6, TMP+7
    f = A()
    for i in range(1, 7): f(f"v_add_f32 v{ST}, v{ST}, v{STL[i]}\nv_add_f32 v{ST+1}, v{ST+1}, v{STL[i]+1}")
    f(f"v_mov_b32 v12, v{ST}\nv_mov_b32 v13, v{ST+1}")
    half_sum(f, 12, 8); half_sum(f, 13, 9)
    f(f"""v_mul_f32 v12, {fb(1/448)}, v12
          v_mul_f32 v13, {fb(1/448)}, v13
          v_fma_f32 v13, -v12, v12, v13
          v_max_f32 v13, 0, v13
          v_add_f32 v13, {fb(EPS)}, v13
          v_sqrt_f32 v{DEN}, v13
          v_rsq_f32 v{R}, v13""")
    mu_frag(f, 12, "-1", M0_, M1_)
    gelu_consts(f, R, DEN)
    f(f"""s_mul_i32 s{sK}, s{sT3}, 112
          s_lshl_b32 s27, s{sCB3}, 3
          s_add_u32 s{sK}, s{sK}, s27
          s_lshl_b32 s{sK}, s{sK}, 10
          s_add_u32 s{sK}, s{sK}, {HHF}
          s_add_u32 s27, s{sK}, 4096""")
    NA = opt("na", 2)
    t1 = ((0,) if CSG else (0, 4)) + tuple(range(1, NA)); t2_ = tuple(range(NA, 4))
    pre = hops(t1); pre["fill0"] = 4*len(t1) + 1; pre["G"] = opt("g3g", 1)
    for s_ in range(28):
        issued = min(28, LA + s_)
        pre[("s", s_)] = [f"s_waitcnt vmcnt({issued - 1 - s_ + (7 if s_ < 4 else 0)})"]
        if LA + s_ < 28: pre[("t", s_)] = xl(LA + s_)
        if opt("g3s", 0) and common.STAMPS and s_ in (0, 8, 16, 27):
            g = A(); common.stamp(g, {0: 2, 8: 3, 16: 12, 27: 13}[s_]); pre[("s", s_)] += g.l
    a(f"s_setprio {opt('p3a', 1)}")
    kloop(a, ACC, WF, XR, 2, t1, woff, pre, True, f.l, R=6, D=5, cs=(CS, CSP, 32))
    a(f"s_setprio {opt('pb', 1)}")
    if not CSG: cs_exchange()
    stamp(a, 13 if False else 14)
    def gfrag(fr, o):
        return gelu8(ACC + 8*fr, 10, 12, 14, TMP + 8, o) + [f"buffer_store_dwordx4 {v(o,4)}, v0, {s(WD,4)}, s{sK if fr < 4 else 27} offen offset:{(fr&3)*1024}{SC}"]
    nov = 0
    if NA < 4:
        mean_fix(a, ACC, WF, lambda t: CSP + t, M0_, M1_, tuple(range(NA)))
        nov = opt("nov", 2*(4 - NA))
        kloop(a, ACC, WF, XR, 2, t2_, woff, hops(t2_), True,
              sum((gfrag(fr, WF + 24 + 4*(fr & 1)) for fr in range(nov)), []), R=6, D=5)
    garrive(a, 0)
    mean_fix(a, ACC, WF, lambda t: CSP + t, M0_, M1_, tuple(range(NA if NA < 4 else 0, 4)))
    for fr in range(nov, 8):
        for x in gfrag(fr, XR + 4*fr): a(x)
    stamp(a, 8)
    ACC, WF, AR, EP = 16, 80, 112, 176
    WOB = 0
    small_addrs(a, "0", natural=True)
    srd(a, WA, 18, 1792 * 896)
    srd(a, WB_, 8, 448 * 896)
    a(f"""s_and_b32 s27, s2, 1
          s_mul_i32 s3, s27, {896*896}
          s_lshl_b32 s26, s{sCB}, 7
          s_add_u32 s3, s3, s26
          v_add_u32 v6, s3, v7
          v_add_u32 v5, {8*896}, v6
          s_mul_i32 s3, s{sW}, {112*896}
          s_add_u32 s3, s3, s26
          v_add_u32 v7, s3, v7
          s_mul_i32 s{sK}, s{sCB}, {8*ROT}
          s_mul_i32 s3, s{sW}, 14
          s_add_u32 s{sK}, s{sK}, s3
          s_sub_u32 s3, s{sK}, 56
          s_cmp_ge_u32 s{sK}, 56
          s_cselect_b32 s{sK}, s3, s{sK}
          s_mul_i32 s{sK}, s{sK}, {16*896}
          s_mul_i32 s{sM}, s{sW}, {14*2048}""")
    def w4step(j):
        a(f"""s_add_u32 m0, s{sM}, {j*2048}
              s_nop 0
              buffer_load_dwordx4 v6, {s(WA,4)}, s{sK} offen lds
              s_add_u32 m0, s{sM}, {j*2048 + 1024}
              s_nop 0
              buffer_load_dwordx4 v5, {s(WA,4)}, s{sK} offen lds""")
        if j < 13: wrapinc(a, sK, 16*896, 896*896)
    gwait(a, 0, B_G3_DONE)
    NP0 = opt("np0", 4)
    for j in range(NP0): w4step(j)
    a(f"""s_lshl_b32 s3, s{sRB3}, 4
          s_add_u32 s3, s3, s{sCB3}
          s_lshl_b32 s3, s3, 7
          s_add_u32 s{sX}, s3, {F3}
          s_mul_i32 s3, s{sT3}, 112
          s_mul_i32 s26, s27, 56
          s_add_u32 s3, s3, s26
          s_lshl_b32 s3, s3, 10
          s_add_u32 s3, s3, {HHF}
          v_add_u32 v4, s3, v0
          s_mul_i32 s{sKA}, s{sCB}, {8*1024*ROT}
          s_lshl_b32 s26, s{sRB3}, 4
          s_mul_i32 s3, s27, 7
          s_add_u32 s3, s3, s26
          v_add_u32 v10, s3, v1
          v_lshlrev_b32 v10, 7, v10
          v_add_u32 v10, {F3}, v10
          s_lshl_b32 s3, s{sW}, 2
          s_add_u32 s3, s3, s26
          v_and_b32 v14, 3, v1
          v_add_u32 v14, s3, v14
          v_lshlrev_b32 v14, 7, v14
          v_add_u32 v14, {FA}, v14
          s_waitcnt vmcnt({2*NP0})""")
    signal(a, sX, 16)
    stamp(a, 9)
    for j in range(NP0, 14): w4step(j)
    poll(a, 10, 7)
    gbar(a, 0, B_G3_DONE + 4)
    stamp(a, 10)
    LA4, RA = opt("la4", 12), 14
    OR_ = lambda u: 168 + 8*u if u < 7 else 240
    PD, EP = AR, AR + 16
    q = []
    def after(tag):
        return len(q) - 1 - max(i for i, x in enumerate(q) if x == tag)
    def al(u):
        a(f"buffer_load_dwordx4 {v(AR + 4*(u % RA), 4)}, v4, {s(WD,4)}, s{sKA} offen offset:{(u&3)*1024}{SC}"); q.append(("a", u))
        if (u & 3) == 3 and u < 55: wrapinc(a, sKA, 4096, 56*1024)
    def rd(m):
        s_, b = m >> 1, m & 1
        if m == 64: a("v_add_u32 v2, 0x10000, v2\nv_add_u32 v3, 0x10000, v3")
        for e in range(2): a(f"ds_read_b64_tr_b16 {v(WF + 4*(m & 7) + 2*e, 2)}, v{2+b} offset:{(s_ & 31)*2048 + e*1024}")
    def wo(u):
        a(f"s_add_u32 m0, s{sM}, {u*1024}\ns_mov_b32 s3, {u*8*896}\nbuffer_load_dwordx4 v7, {s(WB_,4)}, s3 offen lds"); q.append(("w", u))
    def ol(u):
        for aa in range(2):
            a(f"buffer_load_dwordx4 {v(OR_(u)+4*aa,4)}, v{12+aa}, {s(WD,4)}, {'0' if u < 4 else 's%d' % sL} offen offset:{(u&3)*1024}{SC}"); q.append(("o", u))
    for u in range(LA4): al(u)
    a(f"""s_mul_i32 s{sM}, s{sW}, 15360
          s_movk_i32 s{sL}, 4096
          s_lshl_b32 s3, s{sT}, 5
          s_lshl_b32 s26, s{sW}, 3
          s_add_u32 s3, s3, s26
          s_lshl_b32 s3, s3, 10
          s_add_u32 s3, s3, {OF}
          v_add_u32 v12, s3, v0
          v_xor_b32 v13, {32*1024}, v12
          s_setprio {opt('pf', 0)}""")
    D4 = 6
    S_ARR, S_WO, S_FL, S_CHK = 31, opt("swo", 36), opt("sfl", 52), 99
    for m in range(D4): rd(m)
    for m in range(112):
        s_, b = m >> 1, m & 1
        if b == 0: a(f"s_waitcnt vmcnt({after(('a', s_))}) lgkmcnt({2*max(0, min(D4 - 2, 110 - m))})")
        a(f"{MF} {v(ACC+16*b,16)}, {v(WF + 4*(m & 7), 4)}, {v(AR + 4*(s_ % RA), 4)}, {'0' if s_ == 0 else v(ACC+16*b,16)}")
        if m + D4 < 112: rd(m + D4)
        if b == 1:
            if LA4 + s_ < 56: al(LA4 + s_)
            if s_ == S_ARR: garrive(a, 0)
            if s_ == S_WO: gwait(a, 0, B_G3_DONE + 8)
            if S_WO <= s_ < S_WO + 15: wo(s_ - S_WO)
            if s_ == S_FL:
                a(f"buffer_load_dword v15, v14, {s(WD,4)}, 0 offen sc1"); q.append("f")
    a(f"s_setprio {opt('pb', 1)}")
    stamp(a, 11)
    a(f"""s_lshl_b32 s{sX}, s2, 7
          s_add_u32 s{sX}, s{sX}, {FQ}
          s_lshl_b32 s3, s{sFT}, 6
          s_add_u32 s26, s{sM}, 0xffff0000
          v_xor_b32 v2, s3, v2
          v_xor_b32 v3, s3, v3
          v_add_u32 v2, s26, v2
          v_add_u32 v3, s26, v3
          s_xor_b32 s3, s{sRB}, 1
          s_mul_i32 s3, s3, 7
          s_add_u32 s3, s3, s{sCB}
          s_lshl_b32 s3, s3, 1
          s_and_b32 s26, s{sW}, 1
          s_add_u32 s3, s3, s26
          s_lshl_b32 s3, s3, 13
          s_add_u32 s3, s3, {PART}
          s_cmp_eq_u32 s{sFT}, 0
          s_cselect_b32 s3, {OOB}, s3
          s_add_u32 s26, s3, 4096""")
    woff2 = lambda u: (28*(u >> 1) + 16*(u & 1)) * 128
    for i in range(8): a(f"buffer_store_dwordx4 {v(ACC+4*i,4)}, v0, {s(WD,4)}, s{3 if i < 4 else 26} offen offset:{(i&3)*1024}{SC}")
    a(f"""s_waitcnt vmcnt(8)
          v_cmp_eq_u32 vcc, 0, v15
          s_cbranch_vccz B_oready
          s_waitcnt vmcnt(0)""")
    signal(a, sX, C_SQ)
    poll(a, 14, 4)
    for u in range(8): ol(u)
    a("s_branch B_oissued")
    a.label("B_oready")
    for u in range(8): ol(u)
    a("s_waitcnt vmcnt(16)")
    signal(a, sX, C_SQ)
    a.label("B_oissued")
    stamp(a, 15)
    for u in range(3): wreads(a, WF, u, woff2(u))
    a(f"s_cmp_eq_u32 s{sFT}, 0\ns_cbranch_scc1 B_keep")
    for i in range(32): a(f"v_mov_b32 v{ACC+i}, 0")
    a.label("B_keep")
    for u in range(8):
        a(f"s_waitcnt vmcnt({2*(7 - u)}) lgkmcnt({4*min(2, 7 - u)})")
        for aa in range(2):
            for b in range(2):
                j = 2*aa + b
                a(f"{MF} {v(ACC+16*j,16)}, {v(WF+8*(u&3)+4*b,4)}, {v(OR_(u)+4*aa,4)}, {'0' if (u == 0 and aa) else v(ACC+16*j,16)}")
        if u + 3 < 8: wreads(a, WF, (u+3) & 3, woff2(u+3))
    if opt("ts", 0): stamp(a, 2)
    a(f"""s_mul_i32 s27, s{sRB}, 7
          s_add_u32 s27, s27, s{sCB}
          s_lshl_b32 s27, s27, 1
          s_and_b32 s26, s{sW}, 1
          s_add_u32 s27, s27, s26
          s_lshl_b32 s27, s27, 1
          s_add_u32 s27, s27, s{sFT}
          s_lshl_b32 s27, s27, 12
          s_add_u32 s{sK}, s27, {PART}
          s_xor_b32 s3, s2, 1
          s_lshl_b32 s3, s3, 7
          s_add_u32 s3, s3, {FQ}
          v_mov_b32 v14, s3
          buffer_load_dword v15, v14, {s(WD,4)}, 0 offen sc1""")
    def region3(d, j):
        a(f"s_xor_b32 s{d}, s{sW}, {(j >> 1) + 2*(j & 1)}\ns_mul_i32 s{d}, s{d}, 15360\ns_add_u32 s{d}, s{d}, {WOB}")
    srd(a, XS, 20, 2048 * 896)
    OSC = ["", " sc1", " nt"][opt("osc", 2)]
    OT = WOB + 4*15360
    a(f"""v_and_b32 v4, 31, v1
          s_and_b32 s26, s{sW}, 1
          s_lshl_b32 s26, s26, 5
          v_add_u32 v4, s26, v4
          v_mul_u32_u24 v4, 144, v4
          v_lshrrev_b32 v9, 5, v1
          v_lshl_add_u32 v4, v9, 3, v4
          s_lshl_b32 s26, s{sFT}, 6
          s_add_u32 s26, s26, {OT}
          v_add_u32 v4, s26, v4
          v_lshrrev_b32 v6, 3, v1
          s_lshl_b32 s26, s{sW}, 4
          v_add_u32 v6, s26, v6
          v_and_b32 v9, 7, v1
          v_mul_u32_u24 v5, 144, v6
          v_lshl_add_u32 v5, v9, 4, v5
          v_add_u32 v5, {OT}, v5
          v_mul_u32_u24 v6, 896, v6
          v_lshl_add_u32 v6, v9, 4, v6
          s_mul_i32 s27, s{sRB}, {64*896}
          s_lshl_b32 s26, s{sCB}, 7
          s_add_u32 s27, s27, s26
          s_add_u32 s{sX}, s27, {8*896}""")
    reduce3(a, ACC, sM, region3, 0, B_G3_DONE + 12, True)
    if opt("ts", 0): stamp(a, 3)
    a("s_waitcnt vmcnt(0)\nv_cmp_eq_u32 vcc, 0, v15\ns_cbranch_vccz B_pready")
    poll(a, 14, 1)
    a.label("B_pready")
    for i in range(4): a(f"buffer_load_dwordx4 {v(PD+4*i,4)}, v0, {s(WD,4)}, s{sK} offen offset:{i*1024}{SC}")
    for i in range(16): a(f"v_add_f32 v{ACC+i}, v{ACC+i}, v{RES+i}")
    for i in range(16):
        if (i & 3) == 0: a(f"s_waitcnt vmcnt({3 - (i >> 2)})")
        a(f"v_add_f32 v{ACC+i}, v{ACC+i}, v{PD+i}")
    if opt("ts", 0): stamp(a, 12)
    for i in range(8): a(f"v_cvt_pk_bf16_f32 v{EP+i}, v{ACC+2*i}, v{ACC+2*i+1}")
    for j in range(4): a(f"ds_write_b64 v4, {v(EP+2*j,2)} offset:{16*j}")
    gbar(a, 0, B_G3_DONE + 16)
    if opt("ts", 0): stamp(a, 13)
    a(f"""ds_read_b128 {v(EP,4)}, v5
          ds_read_b128 {v(EP+4,4)}, v5 offset:{8*144}
          s_waitcnt lgkmcnt(1)
          buffer_store_dwordx4 {v(EP,4)}, v6, {s(XS,4)}, s27 offen{OSC}
          s_waitcnt lgkmcnt(0)
          buffer_store_dwordx4 {v(EP+4,4)}, v6, {s(XS,4)}, s{sX} offen{OSC}""")
    stamp_out2(a)
    a("s_endpgm")

def stamp_out2(a):
    if not common.STAMPS: return
    a("s_waitcnt vmcnt(0)")
    common.stamp(a, 6); common.stamp(a, 7, True)
    a("s_waitcnt lgkmcnt(0)")
    for i in range(16): a(f"v_mov_b32 v{16+i}, s{64+2*i}")
    a(f"""s_lshl_b32 s3, s2, 3
          s_add_u32 s3, s3, s60
          s_lshl_b32 s3, s3, 6
          s_add_u32 s3, s3, {TS}
          v_mov_b32 v8, 0""")
    for j in range(4): a(f"buffer_store_dwordx4 v[{16+4*j}:{19+4*j}], v8, {s(WD,4)}, s3 offen offset:{16*j}")

def p1stamps():
    return common.STAMPS and opt("p1s", 0)

def build(name):
    a = A()
    a.label("K_start")
    a("s_cmp_ge_u32 s2, 256\ns_cbranch_scc1 K_end")
    load_args(a)
    a(f"""v_and_b32 v1, 63, v0
          v_lshrrev_b32 v8, 6, v0
          s_mov_b32 s59, {fb(2.0**100)}
          v_readfirstlane_b32 s60, v8
          v_lshlrev_b32 v0, 4, v1
          s_and_b32 s{sW}, s60, 3
          s_cmp_ge_u32 s60, 4
          s_cbranch_scc1 K_roleb""")
    p1a(a)
    att(a)
    a.label("K_roleb")
    p1b(a)
    roleb(a)
    a.label("K_end")
    a("s_endpgm")
    a.label("K_last")
    return a

if __name__ == "__main__":
    if "stamp" in sys.argv[1]: common.STAMPS = True
    name = "parallel_sum__mha_block__mixer_s_mlp__prompt_kernel"
    HDR = open("parallel_sum__mha_block__mixer_s_mlp__prompt.s.ref").read().split("; Override launch")[0]
    out = HDR + "; @launch grid=(256,1,1) block=(512,1,1) lds=163840\n" + '.amdgcn_target "amdgcn-amd-amdhsa--gfx950"\n'
    out += kernel_head(name) + build(name).text() + kernel_desc(name, vgpr=256, sgpr=98)
    open(sys.argv[1], "w").write(out)
```

```python
import sys
import common
from common import *

FLG = 0x1550000
FP, F2, F3, FA, FQ = FLG, FLG + 0x8000, FLG + 0x10000, FLG + 0x18000, FLG + 0x20000
NINIT = 20
PART = 0x1600000
WS_END = 0x1A00000
sFT = 52
CS3P = 0x800000
XS, WA, WD, WB_ = 28, 32, 36, 40
sW, sSPIN = 46, 58
SC = " sc1"
CNT = 156 * 1024
C_B, C_A, C_S1, C_S2, C_S3, C_SA, C_W, C_X, C_SQ = 0, 4, 8, 12, 16, 20, 24, 28, 32
SPIN_MAX = 1 << 16
import os
OPT = dict(x.split("=") for x in os.environ.get("MKOPT", "").split(",") if x)
def opt(k, d): return int(OPT.get(k, d))
SLEEP = opt("sleep", 1)
DEBUG = "dbg" in sys.argv[1] if len(sys.argv) > 1 else False


def poll(a, vaddr, nlanes, srdreg=WD, soff="0"):
    L, D = a.newlabel("PL"), a.newlabel("PD")
    a(f"s_mov_b32 s{sSPIN}, {SPIN_MAX}")
    a(f"s_mov_b64 exec, {(1 << nlanes) - 1}" if nlanes <= 6 else f"s_bfm_b64 exec, {nlanes}, 0")
    a.label(L)
    a(f"""buffer_load_dword v9, v{vaddr}, {s(srdreg,4)}, {soff} offen sc1
          s_waitcnt vmcnt(0)
          v_cmp_eq_u32 vcc, 0, v9
          s_cbranch_vccz {D}
          s_sleep {SLEEP}
          s_sub_u32 s{sSPIN}, s{sSPIN}, 1
          s_cmp_lg_u32 s{sSPIN}, 0
          s_cbranch_scc1 {L}""")
    a.label(D)
    a("s_mov_b64 exec, -1")

SCB = "" if opt("local", 0) else " sc1"
def signal(a, soff, cnt, sc=" sc1"):
    a(f"""s_mov_b64 exec, 1
          v_mov_b32 v8, {CNT + cnt}
          v_mov_b32 v9, 1
          ds_add_rtn_u32 v8, v8, v9
          s_waitcnt lgkmcnt(0)
          v_readfirstlane_b32 s26, v8
          v_mov_b32 v8, 0
          s_cmp_eq_u32 s26, 3
          s_cselect_b32 s26, s{soff}, {OOB}
          buffer_store_dword v9, v8, {s(WD,4)}, s26 offen{sc}
          s_mov_b64 exec, -1""")

def garrive(a, off, field=0):
    a(f"""s_mov_b64 exec, 1
          v_mov_b32 v8, {CNT + off}
          v_mov_b32 v9, {1 << (4*field)}
          ds_add_u32 v8, v9
          s_mov_b64 exec, -1""")

def gwait(a, off, target, va=8, sr=3, field=None):
    L, D = a.newlabel("GL"), a.newlabel("GD")
    a(f"s_mov_b32 s{sSPIN}, {SPIN_MAX * 8}\nv_mov_b32 v{va}, {CNT + off}")
    a.label(L)
    a(f"""ds_read_b32 v{va+1}, v{va}
          s_sub_u32 s{sSPIN}, s{sSPIN}, 1
          s_cbranch_scc1 {D}
          s_waitcnt lgkmcnt(0)
          v_readfirstlane_b32 s{sr}, v{va+1}
          {"" if field is None else f"s_bfe_u32 s{sr}, s{sr}, {0x40000 + 4*field}"}
          s_cmp_lt_u32 s{sr}, {target}
          s_cbranch_scc1 {L}""")
    a.label(D)
    a("s_waitcnt lgkmcnt(0)")

def gbar(a, off, target):
    a("s_waitcnt lgkmcnt(0)")
    garrive(a, off); gwait(a, off, target)

def kloop(a, ACC, WF, XR, vA, tiles, offs, pre, perm, fill=(), R=8, D=6, cs=None):
    ops = [(s_, t) for s_ in range(28) for t in tiles]
    N = len(ops); fill = list(fill); done = 0
    def rd(m):
        s_, t = ops[m]
        if (s_ & 3) == 0 and t == tiles[0]:
            for x in pre.get(s_ >> 2, []): a(x)
        for e in range(2):
            row = 16 * (s_ & 3) + (8 * e if perm else 4 * e)
            a(f"ds_read_b64_tr_b16 {v(WF + 4*(m % R) + 2*e, 2)}, v{vA+t} offset:{offs(s_ >> 2) + row*256 if offs else s_*2048 + e*1024}")
    for m in range(D): rd(m)
    f0 = pre.get("fill0", 1)
    per = max(1, -(-len(fill) // (pre.get("fillend", N - 1) - f0)))
    for m, (s_, t) in enumerate(ops):
        if (s_ & 3) == 0 and t == tiles[0]:
            for x in pre.get(("x", s_ >> 2), []): a(x)
        if t == tiles[0]:
            for x in pre.get(("s", s_), []): a(x)
        G = pre.get("G", 1)
        if m % G == 0: a(f"s_waitcnt lgkmcnt({2*max(0, min(D - G, N - G - m))})")
        if t < 4: a(f"{MF} {v(ACC+16*t,16)}, {v(WF + 4*(m % R), 4)}, {v(XR(s_) if callable(XR) else XR+4*s_,4)}, {'0' if s_ == 0 else v(ACC+16*t,16)}")
        elif len(cs) == 3: a(f"{MF} {v(cs[0],16)}, {v(cs[1],4)}, {v(WF + 4*(m % R), 4)}, {'0' if s_ == 0 else v(cs[0],16)}")
        else: a(f"v_mfma_f32_16x16x32_bf16 {v(cs[0],4)}, {v(cs[1],4)}, {v(WF + 4*(m % R), 4)}, {'0' if s_ == 0 else v(cs[0],4)}")
        if m + D < N: rd(m + D)
        if (s_ & 3) == 0 and t == tiles[0]:
            for x in pre.get(("y", s_ >> 2), []): a(x)
        if t == tiles[min(1, len(tiles) - 1)]:
            for x in pre.get(("t", s_), []): a(x)
        for x in pre.get(("m", m), []): a(x)
        if m >= f0:
            for x in fill[done:done + per]: a(x)
            done += per
    for x in fill[done:]: a(x)

def kburst(a, ACC, WF, XR, vA, offs, pre, fill=()):
    fill = list(fill); per = -(-len(fill) // 26); done = 0
    def rd(s_):
        if (s_ & 3) == 0:
            for x in pre.get(s_ >> 2, []): a(x)
        for t in range(4):
            for e in range(2):
                a(f"ds_read_b64_tr_b16 {v(WF + 16*(s_ & 1) + 4*t + 2*e, 2)}, v{vA+t} offset:{offs(s_ >> 2) + (16*(s_ & 3) + 8*e)*256}")
    rd(0); rd(1)
    for s_ in range(28):
        if (s_ & 3) == 0:
            for x in pre.get(("x", s_ >> 2), []): a(x)
        a(f"s_waitcnt lgkmcnt({8 if s_ < 27 else 0})")
        for t in range(4):
            a(f"{MF} {v(ACC+16*t,16)}, {v(WF + 16*(s_ & 1) + 4*t, 4)}, {v(XR+4*s_,4)}, {'0' if s_ == 0 else v(ACC+16*t,16)}")
        if s_ + 2 < 28: rd(s_ + 2)
        if s_:
            for x in fill[done:done + per]: a(x)
            done += per

def tr_addrs(a, vA, sTS, base, perm, which=(0, 1, 2, 3, 4)):
    a(f"""v_lshrrev_b32 v8, 5, v1
          v_bfe_u32 v9, v1, 2, 2
          v_bfe_u32 v10, v1, 4, 1
          v_and_b32 v11, 3, v1
          v_lshl_add_u32 v10, v10, 2, v11
          v_lshl_add_u32 v8, v8, {2 if perm else 3}, v9
          v_lshlrev_b32 v8, 8, v8
          v_add_u32 v8, {base}, v8
          v_lshlrev_b32 v9, 2, v9""")
    for t in which:
        a(f"s_mul_i32 s26, {sTS}, {t}" if t < 4 else f"s_mul_i32 s26, {sTS}, s{sW}")
        a(f"""v_add_u32 v11, s26, v10
              v_lshrrev_b32 v12, 1, v11
              v_add_u32 v12, v12, v9
              v_and_b32 v12, 15, v12
              v_and_b32 v11, 1, v11
              v_lshlrev_b32 v11, 3, v11
              v_lshl_add_u32 v11, v12, 4, v11
              v_add_u32 v{vA+t}, v8, v11""")

def cs_publish(a, CS, T, xch):
    a(f"""v_cvt_pk_bf16_f32 v{T}, v{CS}, v{CS}
          v_and_b32 v{T+1}, 0xffff0000, v{T}
          v_sub_f32 v{T+1}, v{CS}, v{T+1}
          v_cvt_pk_bf16_f32 v{T}, v{CS}, v{T+1}
          v_and_b32 v10, 31, v1
          v_lshlrev_b32 v10, 2, v10
          v_add_u32 v10, {xch}, v10
          s_lshl_b32 s26, s{sW}, 7
          v_add_u32 v9, s26, v10
          ds_write_b32 v9, v{T}""")

def mean_fix(a, ACC, T, src, vMU0, vMU1, tiles=(0, 1, 2, 3)):
    n = len(tiles)
    a(f"v_mov_b32 v{T+4*n}, v{vMU0}\nv_mov_b32 v{T+4*n+1}, v{vMU1}\nv_mov_b32 v{T+4*n+2}, 0\nv_mov_b32 v{T+4*n+3}, 0")
    for i, t in enumerate(tiles):
        if src(t) != T + 4*i: a(f"v_mov_b32 v{T+4*i}, v{src(t)}")
        a(f"v_and_b32 v{T+4*i+1}, 0xffff, v{src(t)}\nv_mov_b32 v{T+4*i+2}, 0\nv_mov_b32 v{T+4*i+3}, 0")
    for i, t in enumerate(tiles): a(f"{MF} {v(ACC+16*t,16)}, {v(T+4*i,4)}, {v(T+4*n,4)}, {v(ACC+16*t,16)}")

def mu_frag(a, vmu, lo_en, d0, d1):
    a(f"""v_cvt_pk_bf16_f32 v{d0}, -v{vmu}, -v{vmu}
          v_and_b32 v8, 0xffff0000, v{d0}
          v_sub_f32 v8, -v{vmu}, v8
          v_cvt_pk_bf16_f32 v{d1}, v8, 0
          v_and_b32 v{d1}, {lo_en}, v{d1}
          v_lshrrev_b32 v8, 5, v1
          v_add_u32 v8, -1, v8
          v_and_b32 v{d0}, v8, v{d0}
          v_and_b32 v{d1}, v8, v{d1}""")

def gelu_consts(a, R, DEN):
    a(f"""v_mul_f32 v10, {fb(GK1)}, v{R}
          v_mul_f32 v12, v{R}, v{R}
          v_mul_f32 v12, v12, v{R}
          v_mul_f32 v12, {fb(GK2)}, v12
          v_mov_b32 v14, v{DEN}""")

def gelu8(regs0, K1, K2, IS, T, out):
    L = []
    for i in range(8): L.append(f"v_mul_f32 v{T+i}, v{regs0+i}, v{regs0+i}")
    for i in range(8): L.append(f"v_fma_f32 v{T+i}, v{T+i}, v{K2}, v{K1}")
    for i in range(8): L.append(f"v_mul_f32 v{T+i}, v{T+i}, v{regs0+i}")
    for i in range(8): L.append(f"v_exp_f32 v{T+i}, v{T+i}")
    for i in range(8): L.append(f"v_fma_f32 v{T+i}, v{T+i}, v{IS}, v{IS}")
    for i in range(8): L.append(f"v_rcp_f32 v{T+i}, v{T+i}")
    for i in range(8): L.append(f"v_mul_f32 v{T+i}, v{T+i}, v{regs0+i}")
    for i in range(4): L.append(f"v_cvt_pk_bf16_f32 v{out+i}, v{T+2*i}, v{T+2*i+1}")
    return L

def wrapinc(a, sreg, step, lim):
    a(f"s_add_u32 s{sreg}, s{sreg}, {step}\ns_cmp_eq_u32 s{sreg}, {lim}\ns_cselect_b32 s{sreg}, 0, s{sreg}")

def reduce3(a, ACC, sM, region, cnt_off, target, xor, mid=None):
    a(f"v_add_u32 v10, s{sM}, v0")
    for j in range(1, 4):
        for i in range(4): a(f"ds_write_b128 v10, {v(ACC+16*j+4*i,4)} offset:{(j-1)*4096 + i*1024}")
    for j in range(1, 4):
        region(26, j)
        a(f"v_add_u32 v{10+j}, s26, v0")
    gbar(a, cnt_off, target)
    if mid: mid()
    for j in range(1, 4):
        for i in range(4): a(f"ds_read_b128 {v(ACC+16*j+4*i,4)}, v{10+j} offset:{(j-1)*4096 + i*1024}")
    for j in range(1, 4):
        a(f"s_waitcnt lgkmcnt({4*(3-j)})")
        for i in range(16): a(f"v_add_f32 v{ACC+i}, v{ACC+i}, v{ACC+16*j+i}")

def reduce3c(a, ACC, sM, region, cnt_off, target):
    BL = 3712
    a(f"""v_add_u32 v10, s{sM}, v0
          v_lshlrev_b32 v14, 2, v1
          v_add_u32 v14, {3584 - 128}, v14
          v_add_u32 v15, s{sM}, v14""")
    for j in range(1, 4):
        for i in range(3): a(f"ds_write_b128 v10, {v(ACC+16*j+4*i,4)} offset:{(j-1)*BL + i*1024}")
    a("s_mov_b64 exec, 0xffffffff")
    for j in range(1, 4): a(f"ds_write_b128 v10, {v(ACC+16*j+12,4)} offset:{(j-1)*BL + 3072}")
    a("s_not_b64 exec, exec")
    for j in range(1, 4): a(f"ds_write_b32 v15, v{ACC+16*j+12} offset:{(j-1)*BL}")
    a("s_mov_b64 exec, -1")
    for j in range(1, 4):
        region(26, j)
        a(f"v_add_u32 v{10+j}, s26, v0\nv_add_u32 v{4+j}, s26, v14")
    gbar(a, cnt_off, target)
    a("s_mov_b64 exec, 0xffffffff")
    for j in range(1, 4): a(f"ds_read_b128 {v(ACC+16*j+12,4)}, v{10+j} offset:{(j-1)*BL + 3072}")
    a("s_not_b64 exec, exec")
    for j in range(1, 4): a(f"ds_read_b32 v{ACC+16*j+12}, v{4+j} offset:{(j-1)*BL}")
    a("s_mov_b64 exec, -1")
    for j in range(1, 4):
        for i in range(3): a(f"ds_read_b128 {v(ACC+16*j+4*i,4)}, v{10+j} offset:{(j-1)*BL + i*1024}")
    for j in range(1, 4):
        a(f"s_waitcnt lgkmcnt({3*(3-j)})")
        for i in range(16): a(f"v_add_f32 v{ACC+i}, v{ACC+i}, v{ACC+16*j+i}")

def unpack(a, dst, src, n):
    for i in range(n):
        a(f"v_lshlrev_b32 v{dst+2*i}, 16, v{src+i}\nv_and_b32 v{dst+2*i+1}, 0xffff0000, v{src+i}")

NBAR_P1 = 10
XB = 112 * 1024
XCH = XB + 16384
def p1a(a):
    a(f"s_setprio {opt('pa1', 2)}")
    ACC, CS, WF, XR, TMP = 16, 80, 96, 136, 248
    sRB, sCB, sTY, sSUB, sTS, sLO, sT = 44, 45, 47, 48, 50, 55, 56
    a(f"""s_and_b32 s26, s2, 7
          s_lshr_b32 s27, s2, 3
          s_lshr_b32 s{sRB}, s26, 1
          s_lshl_b32 s{sRB}, s{sRB}, 2
          s_and_b32 s3, s27, 3
          s_add_u32 s{sRB}, s{sRB}, s3
          s_and_b32 s{sCB}, s26, 1
          s_lshl_b32 s{sCB}, s{sCB}, 3
          s_lshr_b32 s3, s27, 2
          s_add_u32 s{sCB}, s{sCB}, s3
          s_lshr_b32 s{sTY}, s{sCB}, 2
          s_and_b32 s{sSUB}, s{sCB}, 3
          s_cmp_eq_u32 s{sTY}, 3
          s_cselect_b32 s{sTS}, 8, 7
          s_cselect_b32 s{sLO}, -1, 0
          s_lshl_b32 s{sT}, s{sRB}, 2
          s_add_u32 s{sT}, s{sT}, s{sW}""")
    tr_addrs(a, 2, f"s{sTS}", 0, perm=False)
    a(f"""v_and_b32 v8, 15, v1
          v_bfe_u32 v9, v1, 4, 1
          v_cmp_eq_u32 vcc, v8, v9
          v_mov_b32 v8, 0x3f803f80
          v_cndmask_b32 v{CS+4}, 0, v8, vcc
          v_mov_b32 v{CS+5}, v{CS+4}
          v_mov_b32 v{CS+6}, v{CS+4}
          v_mov_b32 v{CS+7}, v{CS+4}
          v_and_b32 v8, 31, v1
          v_lshrrev_b32 v9, 5, v1
          v_bfe_u32 v10, v1, 1, 3
          v_xor_b32 v9, v9, v10
          v_lshlrev_b32 v8, 7, v8
          v_lshl_add_u32 v8, v9, 4, v8
          s_lshl_b32 s3, s{sW}, 12
          s_add_u32 s3, s3, {XB}
          v_add_u32 v{CS+8}, s3, v8
          v_xor_b32 v{CS+9}, 32, v{CS+8}
          v_xor_b32 v{CS+10}, 64, v{CS+8}
          v_xor_b32 v{CS+11}, 96, v{CS+8}
          s_waitcnt lgkmcnt(0)""")
    srd(a, WD, 24, WS_END)
    ONE = TMP
    M0_, M1_, R, DEN = TMP+4, TMP+5, TMP+6, TMP+7
    a(f"""v_and_b32 v10, 31, v1
          v_lshlrev_b32 v10, 2, v10
          v_add_u32 v10, {XCH}, v10
""")
    stamp(a, 12)
    pre = {}
    for c in range(7):
        pre[c] = ["s_barrier"] + [f"ds_read_b128 {v(XR + 16*(c&1) + 4*i, 4)}, v{CS+8+i} offset:{(c % 3)*16384}" for i in range(4)]
        if opt("sqv", 0) == 0:
            pre[("y", c)] = [f"v_dot2_f32_bf16 v{12+(i&1)}, v{XR+16*(c&1)+i}, v{XR+16*(c&1)+i}, {'0' if c == 0 and i < 2 else 'v%d' % (12+(i&1))}" for i in range(16)]
    sq = []
    if opt("sqv", 0):
        a("v_mov_b32 v12, 0\nv_mov_b32 v13, 0")
        for s_ in range(28):
            for i in range(4):
                r_ = XR + 16*((s_ >> 2) & 1) + 4*(s_ & 3) + i
                pre[("m", 5*s_ + 1 + i)] = [f"v_lshlrev_b32 v14, 16, v{r_}", f"v_and_b32 v15, 0xffff0000, v{r_}", "v_fmac_f32 v12, v14, v14", "v_fmac_f32 v13, v15, v15"]
    if common.STAMPS:
        for c, st in ((0, 2), (1, 13), (3, 3)):
            g = A(); stamp(g, st); pre[c] = pre[c][:1] + g.l + pre[c][1:]
    pre[4] += [f"v_add_u32 v{2+t}, 0x10000, v{2+t}" for t in range(5)]
    pre["G"] = opt("p1g", 1)
    kloop(a, ACC, WF, lambda s_: XR + 16*((s_ >> 2) & 1) + 4*(s_ & 3), 2, (0, 4, 1, 2, 3), lambda c: (c & 3) * 16384, pre, False, [], R=8, D=opt("p1d", 5), cs=(CS, CS+4))
    stamp(a, 4)
    for i in range(2):
        a(f"""v_cvt_pk_bf16_f32 v{WF+i}, v{CS+i}, v{CS+i}
              v_and_b32 v{WF+i}, 0xffff0000, v{WF+i}
              v_sub_f32 v{WF+i}, v{CS+i}, v{WF+i}
              v_cvt_pk_bf16_f32 v{WF+i}, v{CS+i}, v{WF+i}""")
    a(f"""s_lshl_b32 s26, s{sW}, 7
          v_add_u32 v11, s26, v10
          s_mov_b64 exec, 0xffff
          ds_write2_b32 v11, v{WF}, v{WF+1} offset1:16
          s_mov_b64 exec, -1
          v_mov_b32 v14, v{ACC+48+12}
          v_mov_b32 v15, v{ACC+48+12}
          v_add_f32 v13, v12, v13
          v_permlane32_swap_b32 v15, v14
          v_mov_b32 v12, v13
          v_permlane32_swap_b32 v13, v12
          v_add_f32 v13, v13, v12
          s_waitcnt lgkmcnt(0)
          s_barrier                              ; barrier 7""")
    stamp(a, 14)
    for t in range(4): a(f"ds_read_b32 v{WF+4*t}, v10 offset:{128*t}")
    a(f"""v_mul_f32 v12, {fb(1/448)}, v14""")
    mu_frag(a, 12, f"s{sLO}", M0_, M1_)
    bf16r(a, 10, "v12")
    a(f"""s_waitcnt lgkmcnt(0)
          v_mul_f32 v13, {fb(1/448)}, v13
          v_fma_f32 v13, -v12, v12, v13
          v_max_f32 v13, 0, v13""")
    mean_fix(a, ACC, WF, lambda t: WF + 4*t, M0_, M1_)
    bf16r(a, 8, "v13")
    a(f"""v_add_f32 v9, {fb(EPS)}, v13
          v_add_f32 v8, {fb(EPS)}, v8
          v_mov_b32 v14, {fb(EPS)}
          v_fma_f32 v9, v9, v14, v13""")
    bf16r(a, 8, "v8")
    a(f"""v_sqrt_f32 v9, v9
          v_sqrt_f32 v8, v8
          v_mov_b32 v14, s{sLO}""")
    bf16r(a, 8, "v8")
    a(f"""v_bfi_b32 v{DEN}, v14, v9, v8
          v_rcp_f32 v{R}, v{DEN}
          s_lshl_b32 s3, s{sT}, 8
          s_add_u32 s3, s3, {ST1}
          s_cmp_eq_u32 s{sCB}, 0
          s_cselect_b32 s3, s3, {OOB}
          v_lshlrev_b32 v8, 3, v1
          v_and_b32 v8, 0xff, v8
          v_mov_b32 v11, v{R}
          buffer_store_dwordx2 v[10:11], v8, {s(WD,4)}, s3 offen{SC}""")
    a(f"""v_lshrrev_b32 v8, 5, v1
          v_add_u32 v8, -1, v8
          s_cmp_eq_u32 s{sTY}, 3
          s_cbranch_scc1 P1_h
          s_cmp_eq_u32 s{sTY}, 0
          s_cselect_b32 s3, {fb(QSCALE)}, 1.0
          v_mul_f32 v10, s3, v{R}
          s_cmp_eq_u32 s{sTY}, 1
          s_cselect_b32 s27, 0x3f803f80, 0
          s_cselect_b32 s3, 0x3f80, 0
          s_cmp_eq_u32 s{sTY}, 2
          s_cselect_b32 s27, 0x3f80, s27
          v_mov_b32 v12, s27
          v_mov_b32 v13, s3""")
    a(f"""s_lshl_b32 s3, s{sSUB}, 8
          s_add_u32 s3, s3, s{sT}
          s_cmp_eq_u32 s{sTY}, 0
          s_cselect_b32 s27, 11, 12
          s_lshl_b32 s3, s3, s27
          s_lshl_b32 s26, 64, s27
          s_lshl_b32 s27, s{sTY}, 11
          s_add_u32 s27, s27, {KVF - 2048}
          s_cmp_eq_u32 s{sTY}, 0
          s_cselect_b32 s27, {QF}, s27
          s_add_u32 s3, s3, s27""")
    if opt("lin", 0):
        a(f"s_lshl_b32 s3, s2, 2\ns_add_u32 s3, s3, s{sW}\ns_lshl_b32 s3, s3, 13\ns_movk_i32 s26, 2048")
    a(f"""s_cmp_eq_u32 s{sTY}, 2
          s_cbranch_scc1 P1_v""")
    def pack(t):
        for i in range(8): a(f"v_pk_mul_f32 {v(ACC+16*t+2*i,2)}, {v(ACC+16*t+2*i,2)}, v[10:11] op_sel_hi:[1,0]")
        for i in range(8): a(f"v_cvt_pk_bf16_f32 v{XR+8*t+i}, v{ACC+16*t+2*i}, v{ACC+16*t+2*i+1}")
        a(f"v_bfi_b32 v{XR+8*t+6}, v8, v{XR+8*t+6}, v12\nv_bfi_b32 v{XR+8*t+7}, v8, v{XR+8*t+7}, v13")
    def put(t):
        for f_ in range(2): a(f"buffer_store_dwordx4 {v(XR+8*t+4*f_,4)}, v0, {s(WD,4)}, s3 offen offset:{f_*1024}{SC}")
        if t < 3: a("s_add_u32 s3, s3, s26")
    for t in range(4): pack(t); put(t)
    a("s_branch P1_done")
    a.label("P1_v")
    a(f"""s_mul_i32 s27, s{sW}, 9216
          s_add_u32 s27, s27, 0x10000
          v_and_b32 v9, 31, v1
          v_mul_u32_u24 v9, 72, v9
          v_lshrrev_b32 v14, 5, v1
          v_lshl_add_u32 v9, v14, 3, v9
          v_add_u32 v9, s27, v9
          v_bfe_u32 v15, v1, 2, 2
          v_lshl_add_u32 v14, v14, 2, v15
          v_mul_u32_u24 v14, 72, v14
          v_bfe_u32 v15, v1, 4, 1
          v_lshl_add_u32 v14, v15, 5, v14
          v_and_b32 v15, 3, v1
          v_lshl_add_u32 v14, v15, 3, v14
          v_add_u32 v14, s27, v14""")
    for t in range(5):
        if t < 4:
            pack(t)
            for j in range(4): a(f"ds_write_b64 v9, {v(XR+8*t+2*j,2)} offset:{t*2304 + 16*j}")
        if t:
            a(f"s_waitcnt lgkmcnt({4 if t < 4 else 0})")
            put(t - 1)
        if t < 4:
            a("s_waitcnt lgkmcnt(0)")
            for f_ in range(2):
                for e in range(2): a(f"ds_read_b64_tr_b16 {v(XR+8*t+4*f_+2*e,2)}, v14 offset:{t*2304 + (16*f_+8*e)*72}")
    a("s_branch P1_done")
    a.label("P1_h")
    gelu_consts(a, R, DEN)
    a(f"""s_mul_i32 s3, s{sT}, 28
          s_mul_i32 s27, s{sSUB}, 7
          s_add_u32 s3, s3, s27
          s_lshl_b32 s3, s3, 10
          s_add_u32 s3, s3, {HF}
          s_add_u32 s27, s3, 4096""")
    for f in range(7):
        gelu_pairs(a, [ACC + 8*f + 2*i for i in range(4)], 10, 12, 14, WF)
        for i in range(4): a(f"v_cvt_pk_bf16_f32 v{XR+4*f+i}, v{ACC+8*f+2*i}, v{ACC+8*f+2*i+1}")
        a(f"buffer_store_dwordx4 {v(XR+4*f,4)}, v0, {s(WD,4)}, s{3 if f < 4 else 27} offen offset:{(f&3)*1024}{SC}")
    a.label("P1_done")
    garrive(a, C_X, 1)
    stamp(a, 15)
    a(f"""s_waitcnt vmcnt(0)
          s_lshl_b32 s3, s{sCB}, 4
          s_add_u32 s3, s3, s{sRB}
          s_lshl_b32 s3, s3, 7
          s_add_u32 s3, s3, {FP}""")
    signal(a, 3, 8)
    stamp(a, 5)

O_, Q_, S_, E_, P_, KV = 16, 80, 112, 144, 152, 160
sH, sQB, sKV, sN, sMA, sKB = 44, 45, 50, 51, 47, 52
AR_BASE = 112 * 1024

def unit(a, n, q, extra):
    Sc, Sn = S_ + 16*(q & 1), S_ + 16*((q+1) & 1)
    nn, nq = (n, q+1) if q < 3 else ((n+1) & 3, 0)
    pn, pq = (n, q-1) if q > 0 else ((n-1) & 3, 3)
    K, Vc, Vp = KV + 16*nn, KV + 16*n + 8, KV + 16*pn + 8
    e = lambda i: a(f"v_exp_f32 v{E_+(i&7)}, v{Sc+i}")
    c = lambda k: a(f"v_cvt_pk_bf16_f32 v{P_+k}, v{E_+((2*k)&7)}, v{E_+((2*k+1)&7)}")
    for x in extra.get(0, []): a(x)
    a(f"{MF} {v(Sn,16)}, {v(K,4)}, {v(Q_+8*nq,4)}, 0")
    e(0); c(6); e(1); c(7); e(2); e(3)
    a(f"{MF} {v(O_+16*pq,16)}, {v(Vp+4,4)}, {v(P_+4,4)}, {v(O_+16*pq,16)}")
    for x in extra.get(1, []): a(x)
    e(4); c(0); e(5); c(1); e(6); e(7)
    a(f"{MF} {v(Sn,16)}, {v(K+4,4)}, {v(Q_+8*nq+4,4)}, {v(Sn,16)}")
    for x in extra.get(2, []): a(x)
    e(8); c(2); e(9); c(3); e(10); e(11)
    a(f"{MF} {v(O_+16*q,16)}, {v(Vc,4)}, {v(P_,4)}, {v(O_+16*q,16)}")
    e(12); c(4); e(13); c(5); e(14); e(15)

def kvload(slot, f):
    return f"buffer_load_dwordx4 {v(KV+16*slot+4*f,4)}, v0, {s(WD,4)}, s{sKV} offen offset:{f*1024}{SC}"
def kvnext():
    return [f"s_add_u32 s3, s{sKV}, 4096", "s_and_b32 s3, s3, 0xffff", f"s_or_b32 s{sKV}, s3, s{sKB}"]

EARLY = opt("early", 1)
def att(a):
    if p1stamps():
        global stamp
        stamp = lambda *x: None
    a(f"""s_and_b32 s26, s2, 7
          s_lshr_b32 s27, s2, 3
          s_lshl_b32 s{sH}, s26, 1
          s_and_b32 s3, s27, 1
          s_add_u32 s{sH}, s{sH}, s3
          s_lshr_b32 s{sQB}, s27, 1
          s_mul_i32 s{sMA}, s{sW}, 11136
          s_add_u32 s{sMA}, s{sMA}, {AR_BASE}
          s_lshl_b32 s{sKB}, s{sH}, 2
          s_add_u32 s{sKB}, s{sKB}, s{sW}
          s_lshl_b32 s{sKB}, s{sKB}, 16
          s_add_u32 s{sKB}, s{sKB}, {KVF}
          s_and_b32 s27, s{sQB}, {3 if EARLY else 15}
          s_lshl_b32 s3, s27, {14 if EARLY else 12}
          s_or_b32 s{sKV}, s{sKB}, s3
          s_lshr_b32 s3, s{sH}, 2
          s_lshl_b32 s3, s3, 4
          v_and_b32 v10, 3, v1
          s_lshl_b32 s26, s{sW}, 2
          s_add_u32 s26, s26, s3
          s_add_u32 s26, s26, 64
          v_add_u32 v10, s26, v10
          v_bfe_u32 v11, v1, 2, 1
          v_lshl_add_u32 v10, v11, 6, v10
          s_add_u32 s3, s3, s{sQB}
          v_writelane_b32 v10, s3, 8             ; lane 8: Q
          v_lshlrev_b32 v10, 7, v10
          v_add_u32 v10, {FP}, v10""")
    for i in range(64): a(f"v_mov_b32 v{O_+i}, 0")
    for i in range(8): a(f"v_mov_b32 v{E_+i}, 0\nv_mov_b32 v{P_+i}, 0")
    for i in range(4): a(f"v_mov_b32 v{KV+48+12+i}, 0")
    if EARLY:
        a(f"""v_and_b32 v11, 7, v1
              v_lshlrev_b32 v11, 2, v11
              ds_bpermute_b32 v2, v11, v10
              s_lshl_b32 s27, s27, 2
              v_mov_b32 v11, s27
              v_writelane_b32 v11, 32, 2
              s_add_u32 s27, s27, 16
              v_writelane_b32 v11, s27, 1
              ds_bpermute_b32 v10, v11, v10
              s_waitcnt lgkmcnt(0)""")
        poll(a, 10, 3)
    else: poll(a, 10, 9)
    if opt("ayield", 1): gwait(a, C_X, 4, field=0)
    stamp(a, 8)
    for j in range(4):
        a(f"""s_add_u32 s3, s{sW}, {j}
              s_and_b32 s3, s3, 3
              s_lshl_b32 s26, s{sH}, 4
              s_add_u32 s26, s26, s{sQB}
              s_lshl_b32 s26, s26, 2
              s_add_u32 s3, s3, s26
              s_lshl_b32 s3, s3, 11
              s_add_u32 s3, s3, {QF}""")
        for f in range(2): a(f"buffer_load_dwordx4 {v(Q_+8*j+4*f,4)}, v0, {s(WD,4)}, s3 offen offset:{f*1024}{SC}")
        if j == 0:
            for f in range(4): a(kvload(0, f))
            for x in kvnext(): a(x)
    for n in range(1, 3):
        for f in range(4): a(kvload(n, f))
        for x in kvnext(): a(x)
    a(f"s_mov_b32 s{sN}, 4\ns_waitcnt vmcnt(14)")
    a(f"{MF} {v(S_,16)}, {v(KV,4)}, {v(Q_,4)}, 0")
    a(f"{MF} {v(S_,16)}, {v(KV+4,4)}, {v(Q_+4,4)}, {v(S_,16)}")
    a(f"s_setprio {opt('pa2', 0)}\ns_waitcnt vmcnt(8)")
    stamp(a, 9)
    a(".p2align 3")
    a.label("AT_loop")
    for n in range(4):
        ld = (n + 3) & 3
        kvl = kvload if not opt("nokv", 0) else (lambda a_, b_: "s_nop 0")
        if opt("kvprio", 1):
            e0 = {1: ["s_setprio 3", kvl(ld, 0), kvl(ld, 1)], 2: [kvl(ld, 2), kvl(ld, 3), f"s_setprio {opt('pa2', 0)}"]}
            if EARLY and n == 0: e0[1].insert(1, f"buffer_load_dword v3, v2, {s(WD,4)}, 0 offen sc1")
            if EARLY and n == 1:
                e0[0] = ["s_waitcnt vmcnt(4)", "v_cmp_eq_u32 vcc, 0, v3"]
                e0[1] = ["s_cbranch_vccnz AT_late", "AT_ok:"] + e0[1]
            unit(a, n, 0, e0)
            unit(a, n, 1, {1: kvnext()})
            unit(a, n, 2, {})
            ex = {0: ["s_waitcnt vmcnt(8)"], 2: []}
        else:
            unit(a, n, 0, {2: [kvl(ld, 0)]})
            unit(a, n, 1, {1: [kvl(ld, 1)]})
            unit(a, n, 2, {1: [kvl(ld, 2)]})
            ex = {0: ["s_waitcnt vmcnt(7)"], 1: [kvl(ld, 3)], 2: kvnext()}
        if n == 3: ex[2] += [f"s_sub_u32 s{sN}, s{sN}, 1", f"s_cmp_lg_u32 s{sN}, 0"]
        unit(a, n, 3, ex)
    a("s_cbranch_scc1 AT_loop")
    a(f"v_cvt_pk_bf16_f32 v{P_+6}, v{E_+4}, v{E_+5}\nv_cvt_pk_bf16_f32 v{P_+7}, v{E_+6}, v{E_+7}")
    a(f"{MF} {v(O_+48,16)}, {v(KV+48+12,4)}, {v(P_+4,4)}, {v(O_+48,16)}")
    stamp(a, 10)
    a(f"s_setprio {opt('pa1', 2)}")
    gwait(a, C_B, 8)
    def region(d, j):
        a(f"""s_sub_u32 s{d}, s{sW}, {j}
              s_and_b32 s{d}, s{d}, 3
              s_mul_i32 s{d}, s{d}, 11136
              s_add_u32 s{d}, s{d}, {AR_BASE}""")
    reduce3c(a, O_, sMA, region, C_A, 4)
    a(f"""v_mov_b32 v10, v{O_+12}
          v_mov_b32 v11, v{O_+12}
          v_permlane32_swap_b32 v11, v10
          v_mov_b32 v12, v10
          v_mov_b32 v13, 0""")
    for i in range(16): a(f"v_fma_f32 v{12+(i&1)}, v{O_+i}, 0, v{12+(i&1)}")
    a(f"""v_add_f32 v12, v12, v13                ; row sum, or NaN if any accumulator is not finite
          v_cmp_le_f32 vcc, {fb(2.0**-80)}, v12
          v_cmp_ge_f32 s[26:27], s59, v12
          s_and_b64 vcc, vcc, s[26:27]
          s_cmp_eq_u64 vcc, -1
          s_cbranch_scc0 AT_slow""".replace("s59", "s59"))
    a.label("AT_norm")
    a(f"""v_rcp_f32 v10, v10
          v_lshrrev_b32 v8, 5, v1
          v_add_u32 v8, -1, v8""")
    for i in range(16): a(f"v_mul_f32 v{O_+i}, v{O_+i}, v10")
    for i in range(8): a(f"v_cvt_pk_bf16_f32 v{P_+i}, v{O_+2*i}, v{O_+2*i+1}")
    a(f"""v_and_b32 v{P_+6}, v8, v{P_+6}
          v_and_b32 v{P_+7}, v8, v{P_+7}
          s_lshl_b32 s26, s{sQB}, 2
          s_add_u32 s26, s26, s{sW}
          s_lshl_b32 s26, s26, 4
          s_add_u32 s26, s26, s{sH}
          s_lshl_b32 s3, s26, 11
          s_add_u32 s3, s3, {OF}
          buffer_store_dwordx4 {v(P_,4)}, v0, {s(WD,4)}, s3 offen{SC}
          buffer_store_dwordx4 {v(P_+4,4)}, v0, {s(WD,4)}, s3 offen offset:1024{SC}
          s_lshl_b32 s3, s{sQB}, 4
          s_add_u32 s3, s3, s{sH}
          s_lshl_b32 s3, s3, 7
          s_add_u32 s3, s3, {FA}
          s_waitcnt vmcnt(0)""")
    signal(a, 3, 20)
    stamp(a, 11)
    stamp_out2(a)
    a("s_endpgm")
    if EARLY:
        a.label("AT_late")
        poll(a, 2, 8)
        a("s_branch AT_ok")
    a.label("AT_slow")
    a(f"""s_waitcnt vmcnt(0)
          s_lshl_b32 s{sKB}, s{sH}, 18
          s_add_u32 s{sKB}, s{sKB}, {KVF}
          s_mov_b32 s{sKV}, s{sKB}
          s_mov_b32 s{sN}, 64
          v_mov_b32 v12, 0xff800000""")
    a.label("AT_s1")
    a(kvload(0, 0)); a(kvload(0, 1))
    a(f"""s_add_u32 s{sKV}, s{sKV}, 4096
          s_waitcnt vmcnt(0)
          {MF} {v(S_,16)}, {v(KV,4)}, {v(Q_,4)}, 0
          {MF} {v(S_,16)}, {v(KV+4,4)}, {v(Q_+4,4)}, {v(S_,16)}""")
    for i in range(8): a(f"v_max3_f32 v12, v12, v{S_+2*i}, v{S_+2*i+1}")
    a(f"""s_sub_u32 s{sN}, s{sN}, 1
          s_cmp_lg_u32 s{sN}, 0
          s_cbranch_scc1 AT_s1
          v_mov_b32 v13, v12
          v_permlane32_swap_b32 v12, v13
          v_max_f32 v12, v12, v13
          v_cvt_pk_bf16_f32 v13, -v12, -v12
          v_and_b32 v13, 0xffff0000, v13
          v_sub_f32 v12, -v12, v13
          v_cvt_pk_bf16_f32 v14, v12, v12
          v_and_b32 v14, 0xffff0000, v14
          v_sub_f32 v12, v12, v14
          v_cvt_pk_bf16_f32 v13, v13, v14
          v_cvt_pk_bf16_f32 v14, v12, 0
          v_lshrrev_b32 v8, 5, v1
          v_add_u32 v8, -1, v8
          v_bfi_b32 v{Q_+6}, v8, v{Q_+6}, v13
          v_bfi_b32 v{Q_+7}, v8, v{Q_+7}, v14
          s_mov_b32 s{sKV}, s{sKB}
          s_mov_b32 s{sN}, 64""")
    for i in range(16): a(f"v_mov_b32 v{O_+i}, 0")
    a.label("AT_s2")
    for f in range(4): a(kvload(0, f))
    a(f"""s_add_u32 s{sKV}, s{sKV}, 4096
          s_waitcnt vmcnt(0)
          {MF} {v(S_,16)}, {v(KV,4)}, {v(Q_,4)}, 0
          {MF} {v(S_,16)}, {v(KV+4,4)}, {v(Q_+4,4)}, {v(S_,16)}""")
    for i in range(16): a(f"v_exp_f32 v{S_+i}, v{S_+i}")
    for i in range(8): a(f"v_cvt_pk_bf16_f32 v{P_+i}, v{S_+2*i}, v{S_+2*i+1}")
    a(f"""{MF} {v(O_,16)}, {v(KV+8,4)}, {v(P_,4)}, {v(O_,16)}
          {MF} {v(O_,16)}, {v(KV+12,4)}, {v(P_+4,4)}, {v(O_,16)}
          s_sub_u32 s{sN}, s{sN}, 1
          s_cmp_lg_u32 s{sN}, 0
          s_cbranch_scc1 AT_s2
          v_mov_b32 v10, v{O_+12}
          v_mov_b32 v11, v{O_+12}
          v_permlane32_swap_b32 v11, v10
          s_branch AT_norm""")

B_G3_DONE = 24
G2_BASE = 0
H1 = 56 * 1024
W3B = 60 * 1024
XCH3 = CNT + 1024
RES = 224

def p1b(a):
    bst = (lambda i: common.stamp(a, i)) if p1stamps() else (lambda i: None)
    sRB, sCB, sT = 44, 45, 48
    sROW, sWO, sK, sCOL = 49, 50, 51, 52
    WB = 0x1C000
    XT = 232
    if opt("codepf", 1):
        nseg = opt("nseg", 5)
        a(f"""s_lshr_b32 s26, s2, 3
              s_cmp_ge_u32 s26, {nseg}
              s_cbranch_scc1 PB_nopf
              s_cmp_lg_u32 s{sW}, 0
              s_cbranch_scc1 PB_nopf
              s_getpc_b64 s[62:63]""")
        a.label("PB_pc")
        a(f"""s_lshl_b32 s26, s26, 13
              s_sub_u32 s62, s62, PB_pc-K_start
              s_subb_u32 s63, s63, 0
              s_add_u32 s62, s62, s26
              s_addc_u32 s63, s63, 0
              v_lshlrev_b32 v8, 7, v1
              v_add_u32 v9, s26, v8
              v_cmp_gt_u32 vcc, K_last-K_start, v9
              v_mov_b32 v11, s63
              v_add_co_u32 v10, s[26:27], s62, v8
              v_addc_co_u32 v11, s[26:27], 0, v11, s[26:27]
              s_and_saveexec_b64 s[26:27], vcc
              s_cbranch_execz PB_pfx
              global_load_dword v16, v[10:11], off""")
        a.label("PB_pfx")
        a("s_mov_b64 exec, -1")
        a.label("PB_nopf")
    a(f"""s_and_b32 s26, s2, 1
          s_lshl_b32 s26, s26, 3
          s_lshr_b32 s3, s2, 5
          s_add_u32 s26, s26, s3
          s_bfe_u32 s{sK}, s2, 0x20003
          s_lshl_b32 s54, s{sK}, 1
          s_add_u32 s54, s54, s3
          s_mul_i32 s3, s54, 37
          s_lshr_b32 s3, s3, 8
          s_mul_i32 s3, s3, 7
          s_sub_u32 s54, s54, s3
          s_mul_i32 s54, s54, {opt("rotw", 1)}
          s_bfe_u32 s3, s2, 0x20001
          s_lshl_b32 s3, s3, 2
          s_add_u32 s3, s3, s{sK}
          s_lshl_b32 s3, s3, 2
          s_add_u32 s3, s3, s{sW}
          s_lshl_b32 s56, s3, 5
          s_and_b32 s27, s26, 3
          s_lshr_b32 s3, s27, 1
          s_add_u32 s3, s3, 1
          s_sub_u32 s57, 0, s3
          s_bitcmp1_b32 s27, 0
          s_cselect_b32 s3, s3, s57
          s_movk_i32 s{sROW}, 2688
          s_cmp_ge_u32 s26, 12
          s_cselect_b32 s3, s3, 0
          s_cselect_b32 s{sROW}, 896, s{sROW}
          s_cselect_b32 s27, s27, s26
          s_add_u32 s56, s56, s3
          s_mul_i32 s{sCOL}, s27, 224
          v_lshrrev_b32 v8, 3, v1
          v_add_u32 v8, s56, v8
          s_movk_i32 s3, 896
          v_mul_i32_i24 v8, s3, v8
          v_bfe_u32 v9, v1, 4, 2
          v_and_b32 v10, 7, v1
          v_xor_b32 v9, v9, v10
          v_lshl_add_u32 v2, v9, 4, v8
          v_xor_b32 v9, 4, v9
          v_lshl_add_u32 v3, v9, 4, v8
          v_add_u32 v3, {8*896}, v3
          v_add_u32 v4, {16*896}, v2
          v_add_u32 v5, {16*896}, v3
          v_lshrrev_b32 v8, 4, v1
          v_lshlrev_b32 v9, 2, v8
          v_sub_u32 v9, v1, v9
          v_and_b32 v9, 15, v9
          v_mul_u32_u24 v8, s{sROW}, v8
          v_lshl_add_u32 v7, v9, 4, v8
          v_cmp_gt_u32 s[96:97], 14, v9
          s_lshl_b32 s{sK}, s54, 6
          s_lshl_b32 s54, s54, 7
          s_lshl_b32 s3, s{sW}, 4
          s_mul_i32 s3, s3, s{sROW}
          s_add_u32 s{sCOL}, s{sCOL}, s3
          s_lshl_b32 s53, s{sROW}, 2
          s_lshl_b32 s55, s{sW}, 12
          s_waitcnt lgkmcnt(0)
          s_cmp_ge_u32 s26, 12
          s_cselect_b32 s{WA}, s12, s6
          s_cselect_b32 s{WA+1}, s13, s7
          s_mul_i32 s{WA+2}, s{sROW}, 448
          s_mov_b32 s{WA+3}, 0x20000""")
    srd(a, XS, 4, 2048 * 896)
    q = []
    gap = []
    def ride(n):
        for x in gap[:n]: a(x)
        del gap[:n]
    def xchunk(c):
        for g in range(4):
            a(f"s_add_u32 m0, s55, {XB + (c % 3)*16384 + g*1024}")
            a(f"s_nop 0\nbuffer_load_dwordx4 v{2+g}, {s(XS,4)}, s54 offen lds")
            ride(9)
        wrapinc(a, 54, 128, 896)
        q.extend([c] * 4)
    def wchunk(c):
        a(f"""s_mul_i32 s{sWO}, s{sK}, s{sROW}
              s_add_u32 s{sWO}, s{sWO}, s{sCOL}""")
        wrapinc(a, sK, 64, 448)
        a("s_mov_b64 exec, s[96:97]")
        for u in range(4):
            a(f"s_add_u32 m0, s55, {c*16384 + u*1024}")
            if u: a(f"s_add_u32 s{sWO}, s{sWO}, s53")
            a(f"buffer_load_dwordx4 v7, {s(WA,4)}, s{sWO} offen lds")
        a("s_mov_b64 exec, -1")
        q.extend([c] * 4)
    srd(a, WD, 24, WS_END)
    a(f"""s_lshl_b32 s61, s{sW}, 8
          s_or_b32 s61, s61, s2
          v_mov_b32 v22, 0
          s_cmp_ge_u32 s61, {NINIT}
          s_cbranch_scc1 PB_noinit
          v_lshlrev_b32 v13, 7, v1
          s_lshl_b32 s3, s2, 13
          s_add_u32 s3, s3, {FLG}
          buffer_store_dword v22, v13, {s(WD,4)}, s3 offen{SC}""")
    a.label("PB_noinit")
    xchunk(0); wchunk(0)
    if opt("tlb", 0):
        a(f"""v_lshlrev_b32 v23, {opt("tlb", 0)}, v1
              v_add_u32 v23, {0x1fff80 if opt("tlb", 0) == 21 else 0xff80}, v23
              s_lshl_b32 s3, s{sW}, {opt("tlb", 0) + 6}
              buffer_load_dword v24, v23, {s(WD,4)}, s3 offen sc1""")
        q.append(1)
    a(f"""v_lshrrev_b32 v8, 1, v1
          v_and_b32 v9, 15, v8
          v_lshrrev_b32 v10, 4, v8
          v_lshlrev_b32 v10, 14, v10
          v_lshl_add_u32 v10, v9, 8, v10
          v_and_b32 v9, 3, v8
          v_lshlrev_b32 v9, 2, v9
          v_and_b32 v8, 1, v1
          v_add3_u32 v9, v9, v8, 14
          v_and_b32 v9, 15, v9
          v_lshl_add_u32 v10, v9, 4, v10
          v_add_u32 v10, s55, v10
          v_add_u32 v11, 0x10000, v10
          v_mov_b32 v12, 0x3f803f80
          v_mov_b32 v13, v12
          v_mov_b32 v14, v12
          v_mov_b32 v15, v12
          ds_write_b128 v10, v[12:15]
          ds_write_b128 v10, v[12:15] offset:32768
          ds_write_b128 v11, v[12:15]
          s_mov_b64 exec, 0xffffffff
          ds_write_b128 v11, v[12:15] offset:32768
          s_mov_b64 exec, -1""")
    srd(a, WD, 24, WS_END)
    srd(a, WB_, 22, 256)
    xchunk(1)
    if opt("w1e", 1): wchunk(1)
    small_setup(a, sRB, sCB, sT)
    tail = A()
    tail(f"""v_lshrrev_b32 v8, 2, v1
          v_mul_u32_u24 v8, 896, v8
          v_bfe_u32 v9, v1, 4, 2
          v_and_b32 v10, 3, v1
          v_xor_b32 v9, v9, v10
          v_lshl_add_u32 v8, v9, 4, v8
          s_mul_i32 s3, s{sT}, {32*896}
          s_lshl_b32 s26, s{sCB}, 7
          s_add_u32 s3, s3, s26
          s_lshl_b32 s26, s{sFT}, 6
          s_add_u32 s3, s3, s26
          s_add_u32 s26, s3, {16*896}
          buffer_load_dwordx4 {v(XT,4)}, v8, {s(XS,4)}, s3 offen
          buffer_load_dwordx4 {v(XT+4,4)}, v8, {s(XS,4)}, s26 offen""")
    t2, t3, t4 = A(), A(), A()
    srd(t2, WB_, 14, 448*896)
    t2(f"""v_lshlrev_b32 v8, 7, v1
           s_lshr_b32 s57, s2, 3
           s_lshl_b32 s57, s57, 2
           s_add_u32 s57, s57, s{sW}
           s_mul_i32 s3, s57, {25*128}
           s_bfm_b64 exec, 25, 0
           buffer_load_dword v16, v8, {s(WB_,4)}, s3 offen
           s_mov_b64 exec, -1""")
    srd(t3, WB_, 16, 448*3584)
    t3(f"""s_lshr_b32 s57, s2, 3
           s_lshl_b32 s57, s57, 2
           s_add_u32 s57, s57, s{sW}
           s_mul_i32 s3, s57, 49
           v_add_u32 v9, s3, v1
           v_mul_u32_u24 v10, 9363, v9
           v_lshrrev_b32 v10, 17, v10
           v_mul_u32_u24 v11, 14, v10
           v_sub_u32 v9, v9, v11
           v_mul_u32_u24 v10, 3584, v10
           v_lshl_add_u32 v9, v9, 7, v10
           s_and_b32 s3, s2, 1
           s_mul_i32 s3, s3, 1792
           s_bfm_b64 exec, 49, 0
           buffer_load_dword v17, v9, {s(WB_,4)}, s3 offen
           s_mov_b64 exec, -1""")
    srd(t4, WB_, 18, 448*3584)
    t4(f"""v_lshlrev_b32 v8, 7, v1
           s_lshl_b32 s57, s2, 2
           s_add_u32 s57, s57, s{sW}
           s_mul_i32 s3, s57, {13*128}
           s_bfm_b64 exec, 13, 0
           buffer_load_dword v18, v8, {s(WB_,4)}, s3 offen""")
    srd(t4, WB_, 8, 448*896)
    t4(f"""s_lshl_b32 s3, s57, 9
           s_mov_b64 exec, 15
           buffer_load_dword v19, v8, {s(WB_,4)}, s3 offen
           s_mov_b64 exec, -1""")
    w2, w2b = A(), A()
    w2(f"""s_lshr_b32 s{sFT}, s{sW}, 1
           s_xor_b32 s{sFT}, s{sFT}, s2
           s_and_b32 s{sFT}, s{sFT}, 1
           s_lshl_b32 s47, s{sW}, 11""")
    small_addrs(w2, "s47")
    srd(w2, WA, 14, 448 * 896)
    w2(f"""s_mul_i32 s3, s{sW}, {112*896}
           s_lshl_b32 s26, s{sCB}, 7
           s_add_u32 s3, s3, s26
           v_add_u32 v4, s3, v7
           v_add_u32 v5, {8*896}, v4
           s_mul_i32 s50, s{sCB}, {16*896*opt("rot", 1)}""")
    for j in range(7):
        g = w2 if j < 6 else w2b
        g(f"""s_add_u32 m0, s47, {j*8192}
              s_nop 0
              buffer_load_dwordx4 v4, {s(WA,4)}, s50 offen lds
              s_add_u32 m0, s47, {j*8192 + 1024}
              s_nop 0
              buffer_load_dwordx4 v5, {s(WA,4)}, s50 offen lds""")
        if j < 6: wrapinc(g, 50, 16*896, 112*896)
    c3a, c3b = A(), A()
    srd(c3a, WB_, 16, 448*3584)
    c3a(f"""s_mul_i32 s3, s2, 2341
            s_lshr_b32 s3, s3, 16
            s_mul_i32 s57, s3, 28
            s_sub_u32 s57, s2, s57                 ; line = id % 28
            s_lshl_b32 s3, s3, 2
            s_add_u32 s3, s3, s{sW}
            s_mul_i32 s63, s57, 28
            s_add_u32 s63, s63, s3
            s_lshl_b32 s63, s63, 8
            s_add_u32 s63, s63, {CS3P}
            s_cmp_lt_u32 s2, 196
            s_cselect_b32 s63, s63, {OOB}
            s_mul_i32 s3, s3, {16*3584}
            s_lshl_b32 s57, s57, 7
            s_add_u32 s3, s3, s57
            s_add_u32 s57, s3, {8*3584}
            v_lshrrev_b32 v8, 3, v1
            v_mul_u32_u24 v8, 3584, v8
            v_and_b32 v9, 7, v1
            v_lshl_add_u32 v8, v9, 4, v8
            buffer_load_dwordx4 v[32:35], v8, {s(WB_,4)}, s3 offen
            buffer_load_dwordx4 v[36:39], v8, {s(WB_,4)}, s57 offen""")
    unpack(c3b, 40, 32, 8)
    for i in range(8): c3b(f"v_add_f32 v{40+i}, v{40+i}, v{48+i}")
    for i in range(4): c3b(f"v_permlane32_swap_b32 v{40+i}, v{44+i}")
    for i in range(4): c3b(f"v_add_f32 v{40+i}, v{40+i}, v{44+i}")
    for i in range(2): c3b(f"v_permlane16_swap_b32 v{40+i}, v{42+i}")
    for i in range(2): c3b(f"v_add_f32 v{40+i}, v{40+i}, v{42+i}")
    c3b(f"""v_and_b32 v8, 7, v1
            v_lshrrev_b32 v9, 4, v1
            v_lshlrev_b32 v8, 5, v8
            v_lshl_add_u32 v8, v9, 3, v8
            v_add_f32_dpp v40, v40, v40 row_ror:8 row_mask:0xf bank_mask:0xf
            v_add_f32_dpp v41, v41, v41 row_ror:8 row_mask:0xf bank_mask:0xf
            buffer_store_dwordx2 v[40:41], v8, {s(WD,4)}, s63 offen{SC}""")
    extras = [(1, c3a, 2), (3, c3b, 1), (opt("tw2", 2), t2, 1), (opt("w2c", 8), w2, 12), (max(4, opt("w2c", 8)), tail, 2), (opt("tw3", 4), t3, 1), (opt("tw4", 4), t4, 2), (max(opt("w2d", 6), opt("w2c", 8)), w2b, 2)]
    bst(2)
    for c in range(7):
        last = max(i for i, x in enumerate(q) if x == c)
        a(f"s_waitcnt vmcnt({len(q) - 1 - last}) lgkmcnt(0)")
        bst((3, 12, 13, 4, 5, 14, 8)[c])
        a("s_barrier")
        if c == 0:
            a(f"""s_cmp_ge_u32 s61, {NINIT}
                  s_cbranch_scc1 PB_noset
                  s_lshl_b32 s3, s2, 2
                  v_mov_b32 v9, 1
                  s_mov_b64 exec, 1
                  buffer_store_dword v9, v22, {s(WB_,4)}, s3 offen{SC}
                  s_mov_b64 exec, -1""")
            a.label("PB_noset")
        if c == 0 and not opt("w1e", 1): wchunk(1)
        if c + 2 < 7: xchunk(c + 2); wchunk(c + 2)
        if c == 3:
            srd(a, WB_, 22, 256)
            a(f"v_min_u32 v20, {NINIT - 1}, v1\nv_lshlrev_b32 v20, 2, v20\nbuffer_load_dword v21, v20, {s(WB_,4)}, 0 offen sc1"); q.append(5)
        if c == 5:
            a("v_cmp_eq_u32 vcc, 0, v21\ns_cbranch_vccz PB_clr")
            srd(a, WB_, 22, 256)
            poll(a, 20, NINIT, WB_)
            a.label("PB_clr")
        for when, code, nv in extras:
            if when == c:
                for x in code.l: a(x)
                q.extend([3 if code is c3a else 99] * nv)
        ride(999)
    a(f"""v_mov_b32 v8, {CNT}
          v_mov_b32 v12, 0
          v_mov_b32 v13, 0
          v_mov_b32 v14, 0
          v_mov_b32 v15, 0
          ds_write_b128 v8, v[12:15]
          ds_write_b128 v8, v[12:15] offset:16
          ds_write_b128 v8, v[12:15] offset:32
          s_waitcnt lgkmcnt(0)
          s_barrier                              ; barrier 7""")
    for when, code, nv in extras:
        if when == 7:
            for x in code.l: a(x)
    bst(9)
    gwait(a, C_X, 4, field=1)
    for when, code, nv in extras:
        if when == 8:
            for x in code.l: a(x)
    bst(10); bst(11); bst(15)

def small_setup(a, sRB, sCB, sT):
    a(f"""s_bfe_u32 s26, s2, 0x20001
          s_lshl_b32 s26, s26, 2
          s_bfe_u32 s3, s2, 0x20003
          s_add_u32 s26, s26, s3
          s_lshl_b32 s{sRB}, s26, 1
          s_and_b32 s3, s2, 1
          s_add_u32 s{sRB}, s{sRB}, s3
          s_lshr_b32 s{sCB}, s2, 5
          s_and_b32 s3, s{sW}, 1
          s_lshl_b32 s{sT}, s{sRB}, 1
          s_add_u32 s{sT}, s{sT}, s3""")

def small_addrs(a, sM, natural=False):
    a(f"""v_lshrrev_b32 v8, 3, v1
          v_bfe_u32 v9, v1, 4, 1
          v_lshlrev_b32 v9, 2, v9
          v_and_b32 v10, 7, v1
          v_xor_b32 v9, v9, v10
          v_mul_u32_u24 v8, 896, v8
          v_lshl_add_u32 v7, v9, 4, v8
          v_lshrrev_b32 v8, 5, v1
          v_bfe_u32 v9, v1, 2, 2
          v_lshl_add_u32 v8, v8, 2, v9
          v_lshlrev_b32 v8, 7, v8
          v_bfe_u32 v10, v1, 4, 1
          v_bfe_u32 v11, v1, 1, 1
          v_lshl_add_u32 v10, v10, 1, v11
          v_bfe_u32 v11, v1, 3, 1
          v_lshl_add_u32 v10, v11, 2, v10
          v_lshl_add_u32 v8, v10, 4, v8
          v_and_b32 v11, 1, v1
          v_lshl_add_u32 v8, v11, 3, v8
          s_lshl_b32 s3, {"0" if natural else "s%d" % sFT}, 6
          v_xor_b32 v8, s3, v8
          v_add_u32 v2, {sM}, v8
          v_xor_b32 v8, 64, v8
          v_add_u32 v3, {sM}, v8""")

def wreads(a, WF, buf, off, va=2):
    for b in range(2):
        for e in range(2): a(f"ds_read_b64_tr_b16 {v(WF+8*buf+4*b+2*e,2)}, v{va+b} offset:{off + 8*e*128}")
def mfmas(a, ACC, WF, buf, act0, act1, first):
    for aa, ar in enumerate((act0, act1)):
        for b in range(2):
            j = 2*aa + b
            a(f"{MF} {v(ACC+16*j,16)}, {v(WF+8*buf+4*b,4)}, {v(ar,4)}, {'0' if first else v(ACC+16*j,16)}")

def roleb(a):
    ACC, WF, AR, EP = 16, 80, 112, 176
    sRB, sCB, sT, sM, sK, sKA, sX = 44, 45, 48, 47, 50, 51, 53
    sRB3, sCB3, sT3, sK3, sL = 54, 55, 56, 57, 49
    ROT = opt("rot", 1)
    a("s_cmp_ge_u32 s2, 224\ns_cbranch_scc0 B_go")
    a(f"""s_mov_b64 exec, 1
          v_mov_b32 v8, {CNT}
          v_mov_b32 v9, {B_G3_DONE // 4}
          ds_add_u32 v8, v9
          s_mov_b64 exec, -1""")
    garrive(a, C_X)
    if opt("idlepf", 1):
        if opt("idlepf", 1) == 2: gwait(a, C_S1, 4)
        else:
            a(f"""s_lshl_b32 s3, s{sRB}, 10
                  s_add_u32 s3, s3, {F2}
                  v_mov_b32 v10, s3""")
            poll(a, 10, 1)
        srd(a, WA, 18, 1792 * 896)
        srd(a, WB_, 8, 448 * 896)
        a(f"""s_lshr_b32 s3, s2, 3
              s_sub_u32 s3, s3, 28
              s_lshl_b32 s3, s3, 2
              s_add_u32 s3, s3, s{sW}
              s_lshl_b32 s26, s3, 13
              s_and_b32 s27, s2, 1
              s_mul_i32 s27, s27, {896*896}
              s_add_u32 s26, s26, s27
              v_lshlrev_b32 v8, 7, v1
              s_mov_b32 s27, 7""")
        a.label("B_pf")
        a(f"""buffer_load_dword v16, v8, {s(WA,4)}, s26 offen
              s_add_u32 s26, s26, {16*8192}
              s_waitcnt vmcnt(1)
              s_sub_u32 s27, s27, 1
              s_cmp_lg_u32 s27, 0
              s_cbranch_scc1 B_pf
              s_lshl_b32 s26, s3, 13""")
        for i in range(4): a(f"buffer_load_dword v16, v8, {s(WB_,4)}, s26 offen\ns_add_u32 s26, s26, {16*8192}")
    a("s_endpgm")
    a.label("B_go")
    a(f"s_setprio {opt('pb', 1)}")
    bs2 = (lambda i: common.stamp(a, i)) if opt("g2s", 0) and common.STAMPS else (lambda i: None)
    if opt("g2s", 0):
        global stamp
        keep = stamp
        stamp = lambda a_, i, *x: keep(a_, i, *x) if i in (2, 3) else None
    a(f"s_lshl_b32 s{sL}, s{sW}, 11")
    bs2(13)
    a(f"""s_add_u32 s3, s{sL}, {H1 + 8192}
          v_add_u32 v10, s3, v0
          v_and_b32 v8, 31, v1
          v_lshlrev_b32 v8, 6, v8
          v_bfe_u32 v9, v1, 2, 2
          v_lshl_add_u32 v8, v9, 4, v8
          v_lshrrev_b32 v9, 5, v1
          v_lshl_add_u32 v8, v9, 3, v8
          v_add_u32 v12, s3, v8
          v_xor_b32 v13, 16, v12
          v_xor_b32 v14, 32, v12
          v_xor_b32 v15, 48, v12
          s_waitcnt vmcnt(0)
          ds_write_b128 v10, v[232:235]
          ds_write_b128 v10, v[236:239] offset:1024
          s_waitcnt lgkmcnt(0)""")
    for j in range(4): a(f"ds_read_b64 {v(EP+2*j,2)}, v{12+j}")
    a(f"""s_and_b32 s26, s2, 7
          s_lshr_b32 s27, s2, 3
          s_lshr_b32 s{sRB3}, s26, 1
          s_lshl_b32 s{sRB3}, s{sRB3}, 2
          s_and_b32 s3, s27, 3
          s_add_u32 s{sRB3}, s{sRB3}, s3
          s_and_b32 s{sCB3}, s26, 1
          s_mul_i32 s{sCB3}, s{sCB3}, 7
          s_add_u32 s{sCB3}, s{sCB3}, s{sCB}
          s_lshl_b32 s{sT3}, s{sRB3}, 2
          s_add_u32 s{sT3}, s{sT3}, s{sW}
          v_lshrrev_b32 v8, 3, v1
          v_bfe_u32 v9, v1, 4, 1
          v_lshlrev_b32 v9, 2, v9
          v_and_b32 v6, 7, v1
          v_xor_b32 v9, v9, v6
          v_mul_u32_u24 v8, 3584, v8
          v_lshl_add_u32 v6, v9, 4, v8
          s_mul_i32 s3, s{sW}, {16*3584}
          s_lshl_b32 s26, s{sCB3}, 8
          s_add_u32 s3, s3, s26
          v_add_u32 v6, s3, v6                   ; W3 voffset
          s_mul_i32 s{sK3}, s{sCB}, {64*3584*ROT}""")
    srd(a, WB_, 16, 448 * 3584)
    a("s_waitcnt lgkmcnt(0)")
    def w3chunk(c):
        hf, j = (1, c) if c < 7 else (0, c - 7)
        for u in range(2):
            a(f"s_add_u32 m0, s{sL}, {hf*H1 + j*8192 + u*1024}")
            a(f"s_add_u32 s3, s{sK3}, {u*8*3584 + 128*hf}")
            a(f"buffer_load_dwordx4 v6, {s(WB_,4)}, s3 offen lds")
        wrapinc(a, sK3, 64*3584, 448*3584)
    W3A = opt("w3a", 0); W3E = max(W3A, opt("w3e", 6)); assert W3E <= 6
    if W3A:
        gwait(a, C_S1, 4)
        for c in range(W3A): w3chunk(c)
    a(f"""s_mul_i32 s3, s{sT}, 28
          s_mul_i32 s26, s{sW}, 7
          s_add_u32 s3, s3, s26
          s_lshl_b32 s3, s3, 10
          s_add_u32 s3, s3, {HF}
          v_add_u32 v4, s3, v0
          s_xor_b32 s3, s{sT}, 1
          s_mul_i32 s3, s3, 28
          s_add_u32 s3, s3, s26
          s_lshl_b32 s3, s3, 10
          s_add_u32 s3, s3, {HF}
          v_add_u32 v5, s3, v0
          s_mul_i32 s{sKA}, s{sCB}, {1024*ROT}
          s_mul_i32 s{sX}, s{sT}, 28
          s_lshl_b32 s3, s{sCB}, 2
          s_add_u32 s{sX}, s{sX}, s3
          s_lshl_b32 s3, s{sFT}, 1
          s_add_u32 s{sX}, s{sX}, s3
          s_lshl_b32 s{sX}, s{sX}, 10
          s_add_u32 s{sX}, s{sX}, {X1F}
          s_add_u32 s3, s{sW}, 12
          s_lshl_b32 s3, s3, 4
          s_lshr_b32 s26, s{sRB}, 1
          s_add_u32 s3, s3, s26
          v_mov_b32 v10, s3
          v_writelane_b32 v10, s26, 1
          v_lshlrev_b32 v10, 7, v10
          v_add_u32 v10, {FP}, v10
          v_lshlrev_b32 v8, 3, v1
          v_and_b32 v15, 0xff, v8
          s_lshl_b32 s27, s{sT}, 8
          s_add_u32 s27, s27, {ST1}""")
    unpack(a, RES, EP, 8)
    stamp(a, 2)
    poll(a, 10, 2)
    stamp(a, 3)
    for j in range(7):
        a(f"buffer_load_dwordx4 {v(AR+8*j,4)}, v4, {s(WD,4)}, s{sKA} offen{SC}")
        a(f"buffer_load_dwordx4 {v(AR+8*j+4,4)}, v5, {s(WD,4)}, s{sKA} offen{SC}")
        if j < 6: wrapinc(a, sKA, 1024, 7168)
    a(f"buffer_load_dwordx2 {v(EP+8,2)}, v15, {s(WD,4)}, s27 offen{SC}")
    garrive(a, C_X)
    for s_ in range(3): wreads(a, WF, s_, s_*8192)
    NW3 = 0
    for s_ in range(7):
        a(f"s_waitcnt vmcnt({2*(6-s_) + 1 + NW3}) lgkmcnt({4*min(2, 6 - s_)})")
        mfmas(a, ACC, WF, s_ & 3, AR+8*s_, AR+8*s_+4, s_ == 0)
        if s_ + 3 < 7: wreads(a, WF, (s_+3) & 3, (s_+3)*8192)
    U = AR
    stamp(a, 12)
    a(f"s_waitcnt vmcnt({NW3})")
    for i in range(16): a(f"v_sub_f32 v{U+i}, v{RES+i}, v{EP+8}")
    def region2(d, j):
        a(f"""s_xor_b32 s{d}, s{sW}, {(j >> 1) + 2*(j & 1)}
              s_mul_i32 s{d}, s{d}, 12288
              s_add_u32 s{d}, s{d}, {W3B + 48*1024}""")
    region2(sM, 0)
    reduce3(a, ACC, sM, region2, 0, 4, True)
    stamp(a, 13)
    for i in range(16): a(f"v_fma_f32 v{U+i}, v{U+i}, v{EP+9}, v{ACC+i}")
    for i in range(8): a(f"v_cvt_pk_bf16_f32 v{EP+i}, v{U+2*i}, v{U+2*i+1}")
    a(f"buffer_store_dwordx4 {v(EP,4)}, v0, {s(WD,4)}, s{sX} offen{SC}")
    a(f"buffer_store_dwordx4 {v(EP+4,4)}, v0, {s(WD,4)}, s{sX} offen offset:1024{SC}")
    unpack(a, U, EP, 8)
    for i in range(16):
        a(f"v_add_f32 v{10+(i&1)}, v{U+i}, {'0' if i < 2 else 'v%d' % (10+(i&1))}")
        a(f"v_fma_f32 v{12+(i&1)}, v{U+i}, v{U+i}, {'0' if i < 2 else 'v%d' % (12+(i&1))}")
    a("v_add_f32 v10, v10, v11\nv_add_f32 v11, v12, v13")
    half_sum(a, 10, 8); half_sum(a, 11, 9)
    a(f"""s_lshl_b32 s26, s{sCB}, 1
          s_add_u32 s26, s26, s{sFT}
          s_mul_i32 s3, s{sT}, 14
          s_add_u32 s3, s3, s26
          s_lshl_b32 s3, s3, 8
          s_add_u32 s3, s3, {ST3}
          buffer_store_dwordx2 v[10:11], v15, {s(WD,4)}, s3 offen{SC}
          s_lshl_b32 s3, s{sRB}, 3
          s_add_u32 s3, s3, s{sCB}
          s_lshl_b32 s3, s3, 7
          s_add_u32 s{sX}, s3, {F2}""")
    garrive(a, 0)
    for i in range(16): a(f"v_add_f32 v{RES+i}, v{RES+i}, v{U+i}")
    for c in range(W3A, W3E): w3chunk(c)
    a(f"s_waitcnt vmcnt({2*(W3E - W3A)})")
    signal(a, sX, 12)
    stamp(a, 4)
    gwait(a, 0, 8)
    for c in range(W3E, 14): w3chunk(c)
    ACC, WF, XR, TMP = 16, 80, 112, 240
    CSP, CS = TMP, ACC + 48
    a(f"""s_lshl_b32 s3, s{sFT}, 6
          s_sub_u32 s26, 0, s{sL}
          v_add_u32 v2, s26, v2
          v_xor_b32 v2, s3, v2
          v_xor_b32 v3, 64, v2
          v_add_u32 v4, {H1}, v2
          v_add_u32 v5, {H1}, v3""")
    a(f"""s_lshr_b32 s3, s{sT3}, 1
          s_lshl_b32 s3, s3, 10
          s_add_u32 s3, s3, {F2}
          v_lshl_add_u32 v11, v1, 7, s3
          s_lshl_b32 s26, s{sCB3}, 1
          s_lshr_b32 s3, s{sW}, 1
          s_add_u32 s26, s26, s3
          v_add_u32 v8, -7, v1
          v_mul_u32_u24 v8, 28, v8
          v_add_u32 v8, s26, v8
          v_and_b32 v9, 1, v8
          v_lshrrev_b32 v10, 5, v8
          v_lshl_add_u32 v9, v9, 3, v10
          v_bfe_u32 v10, v8, 1, 2
          v_lshl_add_u32 v9, v9, 2, v10
          v_bfe_u32 v10, v8, 3, 2
          v_lshl_add_u32 v9, v9, 2, v10
          v_lshlrev_b32 v9, 7, v9
          v_add_u32 v9, {FP}, v9
          v_cmp_gt_u32 vcc, 7, v1
          v_cndmask_b32 v11, v9, v11, vcc
          s_mul_i32 s{sK3}, s26, {28*256}
          s_and_b32 s3, s{sW}, 1
          s_lshl_b32 s3, s3, 7
          s_add_u32 s{sK3}, s{sK3}, s3
          s_add_u32 s{sK3}, s{sK3}, {CS3P}
          v_lshrrev_b32 v10, 5, v1
          v_mul_u32_u24 v10, {14*256}, v10
          v_and_b32 v9, 31, v1
          v_lshl_add_u32 v6, v9, 2, v10
          s_mul_i32 s3, s{sT3}, {28*1024}
          s_add_u32 s3, s3, {X1F}
          v_add_u32 v7, s3, v0
          s_mul_i32 s{sKA}, s{sCB}, {4096*ROT}
          v_lshrrev_b32 v12, 5, v1
          v_mul_u32_u24 v12, {7*256}, v12
          v_and_b32 v13, 31, v1
          v_lshl_add_u32 v12, v13, 3, v12
          s_mul_i32 s27, s{sT3}, {14*256}
          s_add_u32 s27, s27, {ST3}""")
    a("s_waitcnt vmcnt(0)")
    gbar(a, 0, 12)
    CSG = opt("csg", 1)
    def cs_exchange():
        a(f"""v_cvt_pk_bf16_f32 v{WF}, v{CS}, v{CS}
              v_and_b32 v{WF}, 0xffff0000, v{WF}
              v_sub_f32 v{WF}, v{CS}, v{WF}
              v_cvt_pk_bf16_f32 v{WF}, v{CS}, v{WF}
              v_and_b32 v13, 31, v1
              v_lshlrev_b32 v13, 2, v13
              s_lshl_b32 s26, s{sW}, 7
              s_add_u32 s26, s26, {XCH3}
              v_add_u32 v13, s26, v13
              ds_write_b32 v13, v{WF}""")
        a("s_waitcnt lgkmcnt(0)")
        garrive(a, 0)
    def cs_collect():
        gwait(a, 0, 16)
        a(f"v_and_b32 v15, 31, v1\nv_lshlrev_b32 v15, 2, v15\nv_add_u32 v15, {XCH3}, v15")
        for t in range(4): a(f"ds_read_b32 v{CSP+t}, v15 offset:{128*t}")
        a("s_waitcnt lgkmcnt(0)")
    hops = lambda ts: {}
    woff = None
    poll(a, 11, 14)
    stamp(a, 5)
    STL = [WF + 24, WF + 26, WF + 28, WF + 30, TMP + 8, TMP + 10, 14]; ST = STL[0]
    LA = opt("la3", 12)
    def xl(u):
        g = A()
        g(f"buffer_load_dwordx4 {v(XR+4*u,4)}, v7, {s(WD,4)}, s{sKA} offen offset:{(u&3)*1024}{SC}")
        if (u & 3) == 3 and u < 27: wrapinc(g, sKA, 4096, 7*4096)
        return g.l
    for u in range(LA):
        for x in xl(u): a(x)
        if u == 3:
            for i in range(7): a(f"buffer_load_dwordx2 {v(STL[i],2)}, v12, {s(WD,4)}, s27 offen offset:{i*256}{SC}")
            for i in range(14): a(f"buffer_load_dword v{CS+i}, v6, {s(WD,4)}, s{sK3} offen offset:{i*256}{SC}")
    M0_, M1_, R, DEN = TMP+4, TMP+5, TMP+6, TMP+7
    f = A()
    for i in range(1, 7): f(f"v_add_f32 v{ST}, v{ST}, v{STL[i]}\nv_add_f32 v{ST+1}, v{ST+1}, v{STL[i]+1}")
    f(f"v_mov_b32 v12, v{ST}\nv_mov_b32 v13, v{ST+1}")
    half_sum(f, 12, 8); half_sum(f, 13, 9)
    f(f"""v_mul_f32 v12, {fb(1/448)}, v12
          v_mul_f32 v13, {fb(1/448)}, v13
          v_fma_f32 v13, -v12, v12, v13
          v_max_f32 v13, 0, v13
          v_add_f32 v13, {fb(EPS)}, v13
          v_sqrt_f32 v{DEN}, v13
          v_rsq_f32 v{R}, v13""")
    mu_frag(f, 12, "-1", M0_, M1_)
    gelu_consts(f, R, DEN)
    f(f"""s_mul_i32 s{sK}, s{sT3}, 112
          s_lshl_b32 s27, s{sCB3}, 3
          s_add_u32 s{sK}, s{sK}, s27
          s_lshl_b32 s{sK}, s{sK}, 10
          s_add_u32 s{sK}, s{sK}, {HHF}
          s_add_u32 s27, s{sK}, 4096""")
    for i in range(1, 14): f(f"v_add_f32 v{CS}, v{CS}, v{CS+i}")
    half_sum(f, CS, 8)
    f(f"""v_cvt_pk_bf16_f32 v11, v{CS}, v{CS}
          v_and_b32 v11, 0xffff0000, v11
          v_sub_f32 v11, v{CS}, v11
          v_cvt_pk_bf16_f32 v11, v{CS}, v11
          s_lshl_b32 s26, s{sW}, 7
          s_add_u32 s26, s26, {XCH3}
          v_and_b32 v13, 31, v1
          v_lshl_add_u32 v13, v13, 2, s26""")
    NA = 2
    t1 = ((0,) if CSG else (0, 4)) + tuple(range(1, NA)); t2_ = tuple(range(NA, 4))
    pre = hops(t1); pre["fill0"] = 4*len(t1) + 1; pre["G"] = opt("g3g", 1)
    for s_ in range(28):
        issued = min(28, LA + s_)
        pre[("s", s_)] = [f"s_waitcnt vmcnt({issued - 1 - s_ + (21 if s_ < 4 else 0)})"]
        if LA + s_ < 28: pre[("t", s_)] = xl(LA + s_)
        if opt("g3s", 0) and common.STAMPS and s_ in (0, 8, 16, 27):
            g = A(); common.stamp(g, {0: 2, 8: 3, 16: 12, 27: 13}[s_]); pre[("s", s_)] += g.l
    g = A(); g("ds_write_b32 v13, v11"); garrive(g, 0); pre[("m", 53)] = g.l
    pre["fillend"] = 52
    a(f"s_setprio {opt('p3a', 1)}")
    kloop(a, ACC, WF, XR, 2, t1, woff, pre, True, f.l, R=6, D=5, cs=(CS, CSP, 32))
    a(f"s_setprio {opt('pb', 1)}")
    cs_collect()
    stamp(a, 13 if False else 14)
    def gfrag(fr, o):
        return gelu8(ACC + 8*fr, 10, 12, 14, TMP + 8, o) + [f"buffer_store_dwordx4 {v(o,4)}, v0, {s(WD,4)}, s{sK if fr < 4 else 27} offen offset:{(fr&3)*1024}{SC}"]
    assert NA == 2
    garrive(a, 0)
    mean_fix(a, ACC, WF, lambda t: CSP + t, M0_, M1_, tuple(range(NA)))
    srd(a, WA, 18, 1792 * 896)
    a(f"""v_lshrrev_b32 v8, 3, v1
          v_bfe_u32 v9, v1, 4, 1
          v_lshlrev_b32 v9, 2, v9
          v_and_b32 v7, 7, v1
          v_xor_b32 v9, v9, v7
          v_mul_u32_u24 v8, 896, v8
          v_lshl_add_u32 v7, v9, 4, v8
          s_and_b32 s3, s2, 1
          s_mul_i32 s3, s3, 56
          s_add_u32 s3, s3, s{sW}
          s_mul_i32 s3, s3, {16*896}
          s_lshl_b32 s26, s{sCB}, 7
          s_add_u32 s3, s3, s26
          v_add_u32 v7, s3, v7                   ; W4 voffset
          s_mul_i32 s{sK3}, s{sCB}, {8*16*896*ROT}""")
    def w4step(g, j):
        for u in range(2):
            g(f"s_add_u32 m0, s{sL}, {j*8192 + u*1024}\ns_add_u32 s3, s{sK3}, {u*8*896}\nbuffer_load_dwordx4 v7, {s(WA,4)}, s3 offen lds")
        wrapinc(g, sK3, 4*16*896, 896*896)
    nov = opt("nov", 4)
    pre = {}
    W4S = opt("w4s", 3)
    g = A(); g.uid = 2000; gwait(g, 0, 20); pre[("s", W4S)] = g.l
    for j in range(7):
        g = A(); w4step(g, j); pre[("t", W4S + 3*j)] = g.l
    kloop(a, ACC, WF, XR, 2, t2_, woff, pre, True,
          sum((gfrag(fr, WF + 24 + 4*(fr & 1)) for fr in range(nov)), []), R=6, D=5)
    garrive(a, 0)
    mean_fix(a, ACC, WF, lambda t: CSP + t, M0_, M1_, tuple(range(NA if NA < 4 else 0, 4)))
    for fr in range(nov, 8):
        if opt("pkg", 0):
            gelu_pairs(a, [ACC + 8*fr + 2*i for i in range(4)], 10, 12, 14, TMP + 8)
            for i in range(4): a(f"v_cvt_pk_bf16_f32 v{XR+4*fr+i}, v{ACC+8*fr+2*i}, v{ACC+8*fr+2*i+1}")
            a(gfrag(fr, XR + 4*fr)[-1])
        else:
            for x in gfrag(fr, XR + 4*fr): a(x)
    stamp(a, 8)
    ACC, WF, AR, EP = 16, 80, 112, 176
    WOB = 0
    srd(a, WB_, 8, 448 * 896)
    a("s_and_b32 s27, s2, 1")
    gwait(a, 0, B_G3_DONE)
    NP0 = opt("np0", 3)
    for j in range(7, 7 + NP0): w4step(a, j)
    a(f"""s_lshl_b32 s3, s{sRB3}, 4
          s_add_u32 s3, s3, s{sCB3}
          s_lshl_b32 s3, s3, 7
          s_add_u32 s{sX}, s3, {F3}
          s_mul_i32 s3, s{sT3}, 112
          s_mul_i32 s26, s27, 56
          s_add_u32 s3, s3, s26
          s_lshl_b32 s3, s3, 10
          s_add_u32 s3, s3, {HHF}
          v_add_u32 v4, s3, v0
          s_mul_i32 s{sKA}, s{sCB}, {8*1024*ROT}
          s_lshl_b32 s26, s{sRB3}, 4
          s_mul_i32 s3, s27, 7
          s_add_u32 s3, s3, s26
          v_add_u32 v10, s3, v1
          v_lshlrev_b32 v10, 7, v10
          v_add_u32 v10, {F3}, v10
          s_lshl_b32 s3, s{sW}, 2
          s_add_u32 s3, s3, s26
          v_and_b32 v14, 3, v1
          v_add_u32 v14, s3, v14
          v_lshlrev_b32 v14, 7, v14
          v_add_u32 v14, {FA}, v14
          s_waitcnt vmcnt({2*NP0})""")
    signal(a, sX, 16)
    stamp(a, 9)
    for j in range(7 + NP0, 14): w4step(a, j)
    a(f"""s_mul_i32 s3, s27, {896*896}
          s_mul_i32 s26, s{sW}, {96*896}
          s_sub_u32 s3, s26, s3
          v_add_u32 v7, s3, v7""")
    poll(a, 10, 7)
    gbar(a, 0, B_G3_DONE + 4)
    stamp(a, 10)
    LA4, RA = opt("la4", 12), 14
    PB = opt("pb16", 1); NPS = 8 >> PB
    OR_ = lambda u: 168 + 8*u if u < 7 else 240
    PD, EP = AR, AR + 16
    q = []
    def after(tag):
        return len(q) - 1 - max(i for i, x in enumerate(q) if x == tag)
    def al(u):
        a(f"buffer_load_dwordx4 {v(AR + 4*(u % RA), 4)}, v4, {s(WD,4)}, s{sKA} offen offset:{(u&3)*1024}{SC}"); q.append(("a", u))
        if (u & 3) == 3 and u < 55: wrapinc(a, sKA, 4096, 56*1024)
    def rd(m):
        s_, b = m >> 1, m & 1
        if m == 64: a("v_add_u32 v2, 0x10000, v2\nv_add_u32 v3, 0x10000, v3")
        for e in range(2): a(f"ds_read_b64_tr_b16 {v(WF + 4*(m & 7) + 2*e, 2)}, v{2+b} offset:{(s_ & 31)*2048 + e*1024}")
    def wo(u):
        a(f"s_add_u32 m0, s{sM}, {u*1024}\ns_mov_b32 s3, {u*8*896}\nbuffer_load_dwordx4 v7, {s(WB_,4)}, s3 offen lds"); q.append(("w", u))
    def ol(u):
        for aa in range(2):
            a(f"buffer_load_dwordx4 {v(OR_(u)+4*aa,4)}, v{12+aa}, {s(WD,4)}, {'0' if u < 4 else 's%d' % sL} offen offset:{(u&3)*1024}{SC}"); q.append(("o", u))
    for u in range(LA4): al(u)
    a(f"""s_mul_i32 s{sM}, s{sW}, 15360
          s_movk_i32 s{sL}, 4096
          s_lshl_b32 s3, s{sT}, 5
          s_lshl_b32 s26, s{sW}, 3
          s_add_u32 s3, s3, s26
          s_lshl_b32 s3, s3, 10
          s_add_u32 s3, s3, {OF}
          v_add_u32 v12, s3, v0
          v_xor_b32 v13, {32*1024}, v12
          s_setprio {opt('pf', 0)}""")
    D4 = 6
    S_ARR, S_WO, S_FL, S_CHK = 31, opt("swo", 36), opt("sfl", 52), 99
    for m in range(D4): rd(m)
    for m in range(112):
        s_, b = m >> 1, m & 1
        if b == 0: a(f"s_waitcnt vmcnt({after(('a', s_))}) lgkmcnt({2*max(0, min(D4 - 2, 110 - m))})")
        a(f"{MF} {v(ACC+16*b,16)}, {v(WF + 4*(m & 7), 4)}, {v(AR + 4*(s_ % RA), 4)}, {'0' if s_ == 0 else v(ACC+16*b,16)}")
        if m + D4 < 112: rd(m + D4)
        if b == 1:
            if LA4 + s_ < 56: al(LA4 + s_)
            if s_ == S_ARR: garrive(a, 0)
            if s_ == S_WO: gwait(a, 0, B_G3_DONE + 8)
            if S_WO <= s_ < S_WO + 15: wo(s_ - S_WO)
            if s_ == S_FL:
                a(f"buffer_load_dword v15, v14, {s(WD,4)}, 0 offen sc1"); q.append("f")
    a(f"s_setprio {opt('pb', 1)}")
    stamp(a, 11)
    a(f"""s_lshl_b32 s{sX}, s2, 7
          s_add_u32 s{sX}, s{sX}, {FQ}
          s_lshl_b32 s3, s{sFT}, 6
          s_add_u32 s26, s{sM}, 0xffff0000
          v_xor_b32 v2, s3, v2
          v_xor_b32 v3, s3, v3
          v_add_u32 v2, s26, v2
          v_add_u32 v3, s26, v3
          s_xor_b32 s3, s{sRB}, 1
          s_mul_i32 s3, s3, 7
          s_add_u32 s3, s3, s{sCB}
          s_lshl_b32 s3, s3, 1
          s_and_b32 s26, s{sW}, 1
          s_add_u32 s3, s3, s26
          s_lshl_b32 s3, s3, {13 - PB}
          s_add_u32 s3, s3, {PART}
          s_cmp_eq_u32 s{sFT}, 0
          s_cselect_b32 s3, {OOB}, s3
          s_add_u32 s26, s3, 4096""")
    woff2 = lambda u: (28*(u >> 1) + 16*(u & 1)) * 128
    if PB:
        for i in range(16):
            a(f"v_cvt_pk_bf16_f32 v{AR+i}, v{ACC+2*i}, v{ACC+2*i+1}")
            if (i & 3) == 3: a(f"buffer_store_dwordx4 {v(AR+i-3,4)}, v0, {s(WD,4)}, s3 offen offset:{(i>>2)*1024}{SC}")
    else:
        for i in range(8): a(f"buffer_store_dwordx4 {v(ACC+4*i,4)}, v0, {s(WD,4)}, s{3 if i < 4 else 26} offen offset:{(i&3)*1024}{SC}")
    a(f"""s_mov_b32 s{sKA}, 0
          s_waitcnt vmcnt({NPS})
          v_cmp_eq_u32 vcc, 0, v15
          s_cbranch_vccz B_oready
          s_waitcnt vmcnt(0)""")
    signal(a, sX, C_SQ)
    a(f"s_mov_b32 s{sKA}, 1")
    poll(a, 14, 4)
    a.label("B_oready")
    for u in range(8): ol(u)
    stamp(a, 15)
    for u in range(3): wreads(a, WF, u, woff2(u))
    a(f"""s_mul_i32 s27, s{sRB}, 7
          s_add_u32 s27, s27, s{sCB}
          s_lshl_b32 s27, s27, 1
          s_and_b32 s26, s{sW}, 1
          s_add_u32 s27, s27, s26
          s_lshl_b32 s27, s27, 1
          s_add_u32 s27, s27, s{sFT}
          s_lshl_b32 s27, s27, {12 - PB}
          s_add_u32 s{sK}, s27, {PART}
          s_xor_b32 s3, s2, 1
          s_lshl_b32 s3, s3, 7
          s_add_u32 s3, s3, {FQ}
          v_mov_b32 v14, s3
          s_cmp_eq_u32 s{sFT}, 0
          s_cbranch_scc1 B_keep""")
    for i in range(32): a(f"v_mov_b32 v{ACC+i}, 0")
    a.label("B_keep")
    a(f"s_waitcnt vmcnt(16)\ns_cmp_lg_u32 s{sKA}, 0\ns_cbranch_scc1 B_sigd")
    signal(a, sX, C_SQ)
    a.label("B_sigd")
    for u in range(8):
        a(f"s_waitcnt vmcnt({2*(7 - u)}) lgkmcnt({4*min(2, 7 - u)})")
        for aa in range(2):
            for b in range(2):
                j = 2*aa + b
                a(f"{MF} {v(ACC+16*j,16)}, {v(WF+8*(u&3)+4*b,4)}, {v(OR_(u)+4*aa,4)}, {'0' if (u == 0 and aa) else v(ACC+16*j,16)}")
        if u + 3 < 8: wreads(a, WF, (u+3) & 3, woff2(u+3))
    a(f"buffer_load_dword v15, v14, {s(WD,4)}, 0 offen sc1")
    if opt("ts", 0): stamp(a, 2)
    def region3(d, j):
        a(f"s_xor_b32 s{d}, s{sW}, {(j >> 1) + 2*(j & 1)}\ns_mul_i32 s{d}, s{d}, 15360\ns_add_u32 s{d}, s{d}, {WOB}")
    srd(a, XS, 20, 2048 * 896)
    OSC = ["", " sc1", " nt"][opt("osc", 2)]
    OT = WOB + 4*15360
    a(f"""v_and_b32 v4, 31, v1
          s_and_b32 s26, s{sW}, 1
          s_lshl_b32 s26, s26, 5
          v_add_u32 v4, s26, v4
          v_mul_u32_u24 v4, 144, v4
          v_lshrrev_b32 v9, 5, v1
          v_lshl_add_u32 v4, v9, 3, v4
          s_lshl_b32 s26, s{sFT}, 6
          s_add_u32 s26, s26, {OT}
          v_add_u32 v4, s26, v4
          v_lshrrev_b32 v6, 3, v1
          s_lshl_b32 s26, s{sW}, 4
          v_add_u32 v6, s26, v6
          v_and_b32 v9, 7, v1
          v_mul_u32_u24 v5, 144, v6
          v_lshl_add_u32 v5, v9, 4, v5
          v_add_u32 v5, {OT}, v5
          v_mul_u32_u24 v6, 896, v6
          v_lshl_add_u32 v6, v9, 4, v6
          s_mul_i32 s27, s{sRB}, {64*896}
          s_lshl_b32 s26, s{sCB}, 7
          s_add_u32 s27, s27, s26
          s_add_u32 s{sX}, s27, {8*896}""")
    def fetch_partial():
        a("s_waitcnt vmcnt(0)\nv_cmp_eq_u32 vcc, 0, v15\ns_cbranch_vccz B_pready")
        poll(a, 14, 1)
        a.label("B_pready")
        for i in range(4 >> PB): a(f"buffer_load_dwordx4 {v(PD+16*PB+4*i,4)}, v0, {s(WD,4)}, s{sK} offen offset:{i*1024}{SC}")
    reduce3(a, ACC, sM, region3, 0, B_G3_DONE + 12, True, fetch_partial)
    if opt("ts", 0): stamp(a, 3)
    for i in range(16): a(f"v_add_f32 v{ACC+i}, v{ACC+i}, v{RES+i}")
    a("s_waitcnt vmcnt(0)")
    if PB: unpack(a, PD, PD + 16, 8)
    for i in range(16): a(f"v_add_f32 v{ACC+i}, v{ACC+i}, v{PD+i}")
    if opt("ts", 0): stamp(a, 12)
    for i in range(8): a(f"v_cvt_pk_bf16_f32 v{EP+i}, v{ACC+2*i}, v{ACC+2*i+1}")
    for j in range(4): a(f"ds_write_b64 v4, {v(EP+2*j,2)} offset:{16*j}")
    gbar(a, 0, B_G3_DONE + 16)
    if opt("ts", 0): stamp(a, 13)
    a(f"""ds_read_b128 {v(EP,4)}, v5
          ds_read_b128 {v(EP+4,4)}, v5 offset:{8*144}
          s_waitcnt lgkmcnt(1)
          buffer_store_dwordx4 {v(EP,4)}, v6, {s(XS,4)}, s27 offen{OSC}
          s_waitcnt lgkmcnt(0)
          buffer_store_dwordx4 {v(EP+4,4)}, v6, {s(XS,4)}, s{sX} offen{OSC}""")
    stamp_out2(a)
    a("s_endpgm")

def stamp_out2(a):
    if not common.STAMPS: return
    a("s_waitcnt vmcnt(0)")
    common.stamp(a, 6); common.stamp(a, 7, True)
    a("s_waitcnt lgkmcnt(0)")
    for i in range(16): a(f"v_mov_b32 v{16+i}, s{64+2*i}")
    a(f"""s_lshl_b32 s3, s2, 3
          s_add_u32 s3, s3, s60
          s_lshl_b32 s3, s3, 6
          s_add_u32 s3, s3, {TS}
          v_mov_b32 v8, 0""")
    for j in range(4): a(f"buffer_store_dwordx4 v[{16+4*j}:{19+4*j}], v8, {s(WD,4)}, s3 offen offset:{16*j}")

def p1stamps():
    return common.STAMPS and opt("p1s", 0)

def build(name):
    a = A()
    a.label("K_start")
    a("s_cmp_ge_u32 s2, 256\ns_cbranch_scc1 K_end")
    load_args(a)
    a(f"""v_and_b32 v1, 63, v0
          v_lshrrev_b32 v8, 6, v0
          s_mov_b32 s59, {fb(2.0**100)}
          v_readfirstlane_b32 s60, v8
          v_lshlrev_b32 v0, 4, v1
          s_and_b32 s{sW}, s60, 3
          s_cmp_ge_u32 s60, 4
          s_cbranch_scc1 K_roleb""")
    p1a(a)
    att(a)
    a.label("K_roleb")
    p1b(a)
    roleb(a)
    a.label("K_end")
    a("s_endpgm")
    a.label("K_last")
    return a

if __name__ == "__main__":
    if "stamp" in sys.argv[1]: common.STAMPS = True
    name = "parallel_sum__mha_block__mixer_s_mlp__prompt_kernel"
    HDR = open("parallel_sum__mha_block__mixer_s_mlp__prompt.s.ref").read().split("; Override launch")[0]
    out = HDR + "; @launch grid=(256,1,1) block=(512,1,1) lds=163840\n" + '.amdgcn_target "amdgcn-amd-amdhsa--gfx950"\n'
    out += kernel_head(name) + build(name).text() + kernel_desc(name, vgpr=256, sgpr=100)
    open(sys.argv[1], "w").write(out)
```

```python
import sys
import common
from common import *

FLG = 0x1550000
FP, F2, F3, FA, FQ = FLG, FLG + 0x8000, FLG + 0x10000, FLG + 0x18000, FLG + 0x20000
NINIT = 20
PART = 0x1600000
WS_END = 0x1A00000
sFT = 52
CS3P = 0x800000
XS, WA, WD, WB_ = 28, 32, 36, 40
sW, sSPIN = 46, 58
SC = " sc1"
CNT = 156 * 1024
C_B, C_A, C_S1, C_S2, C_S3, C_SA, C_W, C_X, C_SQ = 0, 4, 8, 12, 16, 20, 24, 28, 32
SPIN_MAX = 1 << 16
import os
OPT = dict(x.split("=") for x in os.environ.get("MKOPT", "").split(",") if x)
def opt(k, d): return int(OPT.get(k, d))
SLEEP = opt("sleep", 1)
DEBUG = "dbg" in sys.argv[1] if len(sys.argv) > 1 else False


def poll(a, vaddr, nlanes, srdreg=WD, soff="0"):
    L, D = a.newlabel("PL"), a.newlabel("PD")
    a(f"s_mov_b32 s{sSPIN}, {SPIN_MAX}")
    a(f"s_mov_b64 exec, {(1 << nlanes) - 1}" if nlanes <= 6 else f"s_bfm_b64 exec, {nlanes}, 0")
    a.label(L)
    a(f"""buffer_load_dword v9, v{vaddr}, {s(srdreg,4)}, {soff} offen sc1
          s_waitcnt vmcnt(0)
          v_cmp_eq_u32 vcc, 0, v9
          s_cbranch_vccz {D}
          s_sleep {SLEEP}
          s_sub_u32 s{sSPIN}, s{sSPIN}, 1
          s_cmp_lg_u32 s{sSPIN}, 0
          s_cbranch_scc1 {L}""")
    a.label(D)
    a("s_mov_b64 exec, -1")

SCB = "" if opt("local", 0) else " sc1"
def signal(a, soff, cnt, sc=" sc1"):
    a(f"""s_mov_b64 exec, 1
          v_mov_b32 v8, {CNT + cnt}
          v_mov_b32 v9, 1
          ds_add_rtn_u32 v8, v8, v9
          s_waitcnt lgkmcnt(0)
          v_readfirstlane_b32 s26, v8
          v_mov_b32 v8, 0
          s_cmp_eq_u32 s26, 3
          s_cselect_b32 s26, s{soff}, {OOB}
          buffer_store_dword v9, v8, {s(WD,4)}, s26 offen{sc}
          s_mov_b64 exec, -1""")

def garrive(a, off, field=0):
    a(f"""s_mov_b64 exec, 1
          v_mov_b32 v8, {CNT + off}
          v_mov_b32 v9, {1 << (4*field)}
          ds_add_u32 v8, v9
          s_mov_b64 exec, -1""")

def gwait(a, off, target, va=8, sr=3, field=None):
    L, D = a.newlabel("GL"), a.newlabel("GD")
    a(f"s_mov_b32 s{sSPIN}, {SPIN_MAX * 8}\nv_mov_b32 v{va}, {CNT + off}")
    a.label(L)
    a(f"""ds_read_b32 v{va+1}, v{va}
          s_sub_u32 s{sSPIN}, s{sSPIN}, 1
          s_cbranch_scc1 {D}
          s_waitcnt lgkmcnt(0)
          v_readfirstlane_b32 s{sr}, v{va+1}
          {"" if field is None else f"s_bfe_u32 s{sr}, s{sr}, {0x40000 + 4*field}"}
          s_cmp_lt_u32 s{sr}, {target}
          s_cbranch_scc1 {L}""")
    a.label(D)
    a("s_waitcnt lgkmcnt(0)")

def gbar(a, off, target):
    a("s_waitcnt lgkmcnt(0)")
    garrive(a, off); gwait(a, off, target)

def kloop(a, ACC, WF, XR, vA, tiles, offs, pre, perm, fill=(), R=8, D=6, cs=None):
    ops = [(s_, t) for s_ in range(28) for t in tiles]
    N = len(ops); fill = list(fill); done = 0
    def rd(m):
        s_, t = ops[m]
        if (s_ & 3) == 0 and t == tiles[0]:
            for x in pre.get(s_ >> 2, []): a(x)
        for e in range(2):
            row = 16 * (s_ & 3) + (8 * e if perm else 4 * e)
            a(f"ds_read_b64_tr_b16 {v(WF + 4*(m % R) + 2*e, 2)}, v{vA+t} offset:{offs(s_ >> 2) + row*256 if offs else s_*2048 + e*1024}")
    for m in range(D): rd(m)
    f0 = pre.get("fill0", 1)
    per = max(1, -(-len(fill) // (pre.get("fillend", N - 1) - f0)))
    for m, (s_, t) in enumerate(ops):
        if (s_ & 3) == 0 and t == tiles[0]:
            for x in pre.get(("x", s_ >> 2), []): a(x)
        if t == tiles[0]:
            for x in pre.get(("s", s_), []): a(x)
        G = pre.get("G", 1)
        if m % G == 0: a(f"s_waitcnt lgkmcnt({2*max(0, min(D - G, N - G - m))})")
        if t < 4: a(f"{MF} {v(ACC+16*t,16)}, {v(WF + 4*(m % R), 4)}, {v(XR(s_) if callable(XR) else XR+4*s_,4)}, {'0' if s_ == 0 else v(ACC+16*t,16)}")
        elif len(cs) == 3: a(f"{MF} {v(cs[0],16)}, {v(cs[1],4)}, {v(WF + 4*(m % R), 4)}, {'0' if s_ == 0 else v(cs[0],16)}")
        else: a(f"v_mfma_f32_16x16x32_bf16 {v(cs[0],4)}, {v(cs[1],4)}, {v(WF + 4*(m % R), 4)}, {'0' if s_ == 0 else v(cs[0],4)}")
        if m + D < N: rd(m + D)
        if (s_ & 3) == 0 and t == tiles[0]:
            for x in pre.get(("y", s_ >> 2), []): a(x)
        if t == tiles[min(1, len(tiles) - 1)]:
            for x in pre.get(("t", s_), []): a(x)
        for x in pre.get(("m", m), []): a(x)
        if m >= f0:
            for x in fill[done:done + per]: a(x)
            done += per
    for x in fill[done:]: a(x)

def kburst(a, ACC, WF, XR, vA, offs, pre, fill=()):
    fill = list(fill); per = -(-len(fill) // 26); done = 0
    def rd(s_):
        if (s_ & 3) == 0:
            for x in pre.get(s_ >> 2, []): a(x)
        for t in range(4):
            for e in range(2):
                a(f"ds_read_b64_tr_b16 {v(WF + 16*(s_ & 1) + 4*t + 2*e, 2)}, v{vA+t} offset:{offs(s_ >> 2) + (16*(s_ & 3) + 8*e)*256}")
    rd(0); rd(1)
    for s_ in range(28):
        if (s_ & 3) == 0:
            for x in pre.get(("x", s_ >> 2), []): a(x)
        a(f"s_waitcnt lgkmcnt({8 if s_ < 27 else 0})")
        for t in range(4):
            a(f"{MF} {v(ACC+16*t,16)}, {v(WF + 16*(s_ & 1) + 4*t, 4)}, {v(XR+4*s_,4)}, {'0' if s_ == 0 else v(ACC+16*t,16)}")
        if s_ + 2 < 28: rd(s_ + 2)
        if s_:
            for x in fill[done:done + per]: a(x)
            done += per

def tr_addrs(a, vA, sTS, base, perm, which=(0, 1, 2, 3, 4)):
    a(f"""v_lshrrev_b32 v8, 5, v1
          v_bfe_u32 v9, v1, 2, 2
          v_bfe_u32 v10, v1, 4, 1
          v_and_b32 v11, 3, v1
          v_lshl_add_u32 v10, v10, 2, v11
          v_lshl_add_u32 v8, v8, {2 if perm else 3}, v9
          v_lshlrev_b32 v8, 8, v8
          v_add_u32 v8, {base}, v8
          v_lshlrev_b32 v9, 2, v9""")
    for t in which:
        a(f"s_mul_i32 s26, {sTS}, {t}" if t < 4 else f"s_mul_i32 s26, {sTS}, s{sW}")
        a(f"""v_add_u32 v11, s26, v10
              v_lshrrev_b32 v12, 1, v11
              v_add_u32 v12, v12, v9
              v_and_b32 v12, 15, v12
              v_and_b32 v11, 1, v11
              v_lshlrev_b32 v11, 3, v11
              v_lshl_add_u32 v11, v12, 4, v11
              v_add_u32 v{vA+t}, v8, v11""")

def cs_publish(a, CS, T, xch):
    a(f"""v_cvt_pk_bf16_f32 v{T}, v{CS}, v{CS}
          v_and_b32 v{T+1}, 0xffff0000, v{T}
          v_sub_f32 v{T+1}, v{CS}, v{T+1}
          v_cvt_pk_bf16_f32 v{T}, v{CS}, v{T+1}
          v_and_b32 v10, 31, v1
          v_lshlrev_b32 v10, 2, v10
          v_add_u32 v10, {xch}, v10
          s_lshl_b32 s26, s{sW}, 7
          v_add_u32 v9, s26, v10
          ds_write_b32 v9, v{T}""")

def mean_fix(a, ACC, T, src, vMU0, vMU1, tiles=(0, 1, 2, 3)):
    n = len(tiles)
    a(f"v_mov_b32 v{T+4*n}, v{vMU0}\nv_mov_b32 v{T+4*n+1}, v{vMU1}\nv_mov_b32 v{T+4*n+2}, 0\nv_mov_b32 v{T+4*n+3}, 0")
    for i, t in enumerate(tiles):
        if src(t) != T + 4*i: a(f"v_mov_b32 v{T+4*i}, v{src(t)}")
        a(f"v_and_b32 v{T+4*i+1}, 0xffff, v{src(t)}\nv_mov_b32 v{T+4*i+2}, 0\nv_mov_b32 v{T+4*i+3}, 0")
    for i, t in enumerate(tiles): a(f"{MF} {v(ACC+16*t,16)}, {v(T+4*i,4)}, {v(T+4*n,4)}, {v(ACC+16*t,16)}")

def mu_frag(a, vmu, lo_en, d0, d1):
    a(f"""v_cvt_pk_bf16_f32 v{d0}, -v{vmu}, -v{vmu}
          v_and_b32 v8, 0xffff0000, v{d0}
          v_sub_f32 v8, -v{vmu}, v8
          v_cvt_pk_bf16_f32 v{d1}, v8, 0
          v_and_b32 v{d1}, {lo_en}, v{d1}
          v_lshrrev_b32 v8, 5, v1
          v_add_u32 v8, -1, v8
          v_and_b32 v{d0}, v8, v{d0}
          v_and_b32 v{d1}, v8, v{d1}""")

def gelu_consts(a, R, DEN):
    a(f"""v_mul_f32 v10, {fb(GK1)}, v{R}
          v_mul_f32 v12, v{R}, v{R}
          v_mul_f32 v12, v12, v{R}
          v_mul_f32 v12, {fb(GK2)}, v12
          v_mov_b32 v14, v{DEN}""")

def gelu8(regs0, K1, K2, IS, T, out):
    L = []
    for i in range(8): L.append(f"v_mul_f32 v{T+i}, v{regs0+i}, v{regs0+i}")
    for i in range(8): L.append(f"v_fma_f32 v{T+i}, v{T+i}, v{K2}, v{K1}")
    for i in range(8): L.append(f"v_mul_f32 v{T+i}, v{T+i}, v{regs0+i}")
    for i in range(8): L.append(f"v_exp_f32 v{T+i}, v{T+i}")
    for i in range(8): L.append(f"v_fma_f32 v{T+i}, v{T+i}, v{IS}, v{IS}")
    for i in range(8): L.append(f"v_rcp_f32 v{T+i}, v{T+i}")
    for i in range(8): L.append(f"v_mul_f32 v{T+i}, v{T+i}, v{regs0+i}")
    for i in range(4): L.append(f"v_cvt_pk_bf16_f32 v{out+i}, v{T+2*i}, v{T+2*i+1}")
    return L

def wrapinc(a, sreg, step, lim):
    a(f"s_add_u32 s{sreg}, s{sreg}, {step}\ns_cmp_eq_u32 s{sreg}, {lim}\ns_cselect_b32 s{sreg}, 0, s{sreg}")

def reduce3(a, ACC, sM, region, cnt_off, target, xor, mid=None):
    a(f"v_add_u32 v10, s{sM}, v0")
    for j in range(1, 4):
        for i in range(4): a(f"ds_write_b128 v10, {v(ACC+16*j+4*i,4)} offset:{(j-1)*4096 + i*1024}")
    for j in range(1, 4):
        region(26, j)
        a(f"v_add_u32 v{10+j}, s26, v0")
    gbar(a, cnt_off, target)
    if mid: mid()
    for j in range(1, 4):
        for i in range(4): a(f"ds_read_b128 {v(ACC+16*j+4*i,4)}, v{10+j} offset:{(j-1)*4096 + i*1024}")
    for j in range(1, 4):
        a(f"s_waitcnt lgkmcnt({4*(3-j)})")
        for i in range(16): a(f"v_add_f32 v{ACC+i}, v{ACC+i}, v{ACC+16*j+i}")

def reduce3c(a, ACC, sM, region, cnt_off, target):
    BL = 3712
    a(f"""v_add_u32 v10, s{sM}, v0
          v_lshlrev_b32 v14, 2, v1
          v_add_u32 v14, {3584 - 128}, v14
          v_add_u32 v15, s{sM}, v14""")
    for j in range(1, 4):
        for i in range(3): a(f"ds_write_b128 v10, {v(ACC+16*j+4*i,4)} offset:{(j-1)*BL + i*1024}")
    a("s_mov_b64 exec, 0xffffffff")
    for j in range(1, 4): a(f"ds_write_b128 v10, {v(ACC+16*j+12,4)} offset:{(j-1)*BL + 3072}")
    a("s_not_b64 exec, exec")
    for j in range(1, 4): a(f"ds_write_b32 v15, v{ACC+16*j+12} offset:{(j-1)*BL}")
    a("s_mov_b64 exec, -1")
    for j in range(1, 4):
        region(26, j)
        a(f"v_add_u32 v{10+j}, s26, v0\nv_add_u32 v{4+j}, s26, v14")
    gbar(a, cnt_off, target)
    a("s_mov_b64 exec, 0xffffffff")
    for j in range(1, 4): a(f"ds_read_b128 {v(ACC+16*j+12,4)}, v{10+j} offset:{(j-1)*BL + 3072}")
    a("s_not_b64 exec, exec")
    for j in range(1, 4): a(f"ds_read_b32 v{ACC+16*j+12}, v{4+j} offset:{(j-1)*BL}")
    a("s_mov_b64 exec, -1")
    for j in range(1, 4):
        for i in range(3): a(f"ds_read_b128 {v(ACC+16*j+4*i,4)}, v{10+j} offset:{(j-1)*BL + i*1024}")
    for j in range(1, 4):
        a(f"s_waitcnt lgkmcnt({3*(3-j)})")
        for i in range(16): a(f"v_add_f32 v{ACC+i}, v{ACC+i}, v{ACC+16*j+i}")

def unpack(a, dst, src, n):
    for i in range(n):
        a(f"v_lshlrev_b32 v{dst+2*i}, 16, v{src+i}\nv_and_b32 v{dst+2*i+1}, 0xffff0000, v{src+i}")

NBAR_P1 = 10
XB = 112 * 1024
XCH = XB + 16384
def p1a(a):
    a(f"s_setprio {opt('pa1', 2)}")
    ACC, CS, WF, XR, TMP = 16, 80, 96, 136, 248
    sRB, sCB, sTY, sSUB, sTS, sLO, sT = 44, 45, 47, 48, 50, 55, 56
    a(f"""s_and_b32 s26, s2, 7
          s_lshr_b32 s27, s2, 3
          s_lshr_b32 s{sRB}, s26, 1
          s_lshl_b32 s{sRB}, s{sRB}, 2
          s_and_b32 s3, s27, 3
          s_add_u32 s{sRB}, s{sRB}, s3
          s_and_b32 s{sCB}, s26, 1
          s_lshl_b32 s{sCB}, s{sCB}, 3
          s_lshr_b32 s3, s27, 2
          s_add_u32 s{sCB}, s{sCB}, s3
          s_lshr_b32 s{sTY}, s{sCB}, 2
          s_and_b32 s{sSUB}, s{sCB}, 3
          s_cmp_eq_u32 s{sTY}, 3
          s_cselect_b32 s{sTS}, 8, 7
          s_cselect_b32 s{sLO}, -1, 0
          s_lshl_b32 s{sT}, s{sRB}, 2
          s_add_u32 s{sT}, s{sT}, s{sW}""")
    tr_addrs(a, 2, f"s{sTS}", 0, perm=False)
    a(f"""v_and_b32 v8, 15, v1
          v_bfe_u32 v9, v1, 4, 1
          v_cmp_eq_u32 vcc, v8, v9
          v_mov_b32 v8, 0x3f803f80
          v_cndmask_b32 v{CS+4}, 0, v8, vcc
          v_mov_b32 v{CS+5}, v{CS+4}
          v_mov_b32 v{CS+6}, v{CS+4}
          v_mov_b32 v{CS+7}, v{CS+4}
          v_and_b32 v8, 31, v1
          v_lshrrev_b32 v9, 5, v1
          v_bfe_u32 v10, v1, 1, 3
          v_xor_b32 v9, v9, v10
          v_lshlrev_b32 v8, 7, v8
          v_lshl_add_u32 v8, v9, 4, v8
          s_lshl_b32 s3, s{sW}, 12
          s_add_u32 s3, s3, {XB}
          v_add_u32 v{CS+8}, s3, v8
          v_xor_b32 v{CS+9}, 32, v{CS+8}
          v_xor_b32 v{CS+10}, 64, v{CS+8}
          v_xor_b32 v{CS+11}, 96, v{CS+8}
          s_waitcnt lgkmcnt(0)""")
    srd(a, WD, 24, WS_END)
    ONE = TMP
    M0_, M1_, R, DEN = TMP+4, TMP+5, TMP+6, TMP+7
    a(f"""v_and_b32 v10, 31, v1
          v_lshlrev_b32 v10, 2, v10
          v_add_u32 v10, {XCH}, v10
""")
    stamp(a, 12)
    pre = {}
    for c in range(7):
        pre[c] = ["s_barrier"] + [f"ds_read_b128 {v(XR + 16*(c&1) + 4*i, 4)}, v{CS+8+i} offset:{(c % 3)*16384}" for i in range(4)]
        if opt("sqv", 0) == 0:
            pre[("y", c)] = [f"v_dot2_f32_bf16 v{12+(i&1)}, v{XR+16*(c&1)+i}, v{XR+16*(c&1)+i}, {'0' if c == 0 and i < 2 else 'v%d' % (12+(i&1))}" for i in range(16)]
    sq = []
    if opt("sqv", 0):
        a("v_mov_b32 v12, 0\nv_mov_b32 v13, 0")
        for s_ in range(28):
            for i in range(4):
                r_ = XR + 16*((s_ >> 2) & 1) + 4*(s_ & 3) + i
                pre[("m", 5*s_ + 1 + i)] = [f"v_lshlrev_b32 v14, 16, v{r_}", f"v_and_b32 v15, 0xffff0000, v{r_}", "v_fmac_f32 v12, v14, v14", "v_fmac_f32 v13, v15, v15"]
    if common.STAMPS:
        for c, st in ((0, 2), (1, 13), (3, 3)):
            g = A(); stamp(g, st); pre[c] = pre[c][:1] + g.l + pre[c][1:]
    pre[4] += [f"v_add_u32 v{2+t}, 0x10000, v{2+t}" for t in range(5)]
    pre["G"] = opt("p1g", 1)
    kloop(a, ACC, WF, lambda s_: XR + 16*((s_ >> 2) & 1) + 4*(s_ & 3), 2, (0, 4, 1, 2, 3), lambda c: (c & 3) * 16384, pre, False, [], R=8, D=opt("p1d", 5), cs=(CS, CS+4))
    stamp(a, 4)
    for i in range(2):
        a(f"""v_cvt_pk_bf16_f32 v{WF+i}, v{CS+i}, v{CS+i}
              v_and_b32 v{WF+i}, 0xffff0000, v{WF+i}
              v_sub_f32 v{WF+i}, v{CS+i}, v{WF+i}
              v_cvt_pk_bf16_f32 v{WF+i}, v{CS+i}, v{WF+i}""")
    a(f"""s_lshl_b32 s26, s{sW}, 7
          v_add_u32 v11, s26, v10
          s_mov_b64 exec, 0xffff
          ds_write2_b32 v11, v{WF}, v{WF+1} offset1:16
          s_mov_b64 exec, -1
          v_mov_b32 v14, v{ACC+48+12}
          v_mov_b32 v15, v{ACC+48+12}
          v_add_f32 v13, v12, v13
          v_permlane32_swap_b32 v15, v14
          v_mov_b32 v12, v13
          v_permlane32_swap_b32 v13, v12
          v_add_f32 v13, v13, v12
          s_waitcnt lgkmcnt(0)
          s_barrier                              ; barrier 7""")
    stamp(a, 14)
    for t in range(4): a(f"ds_read_b32 v{WF+4*t}, v10 offset:{128*t}")
    a(f"""v_mul_f32 v12, {fb(1/448)}, v14""")
    mu_frag(a, 12, f"s{sLO}", M0_, M1_)
    bf16r(a, 10, "v12")
    a(f"""s_waitcnt lgkmcnt(0)
          v_mul_f32 v13, {fb(1/448)}, v13
          v_fma_f32 v13, -v12, v12, v13
          v_max_f32 v13, 0, v13""")
    mean_fix(a, ACC, WF, lambda t: WF + 4*t, M0_, M1_)
    bf16r(a, 8, "v13")
    a(f"""v_add_f32 v9, {fb(EPS)}, v13
          v_add_f32 v8, {fb(EPS)}, v8
          v_mov_b32 v14, {fb(EPS)}
          v_fma_f32 v9, v9, v14, v13""")
    bf16r(a, 8, "v8")
    a(f"""v_sqrt_f32 v9, v9
          v_sqrt_f32 v8, v8
          v_mov_b32 v14, s{sLO}""")
    bf16r(a, 8, "v8")
    a(f"""v_bfi_b32 v{DEN}, v14, v9, v8
          v_rcp_f32 v{R}, v{DEN}
          s_lshl_b32 s3, s{sT}, 8
          s_add_u32 s3, s3, {ST1}
          s_cmp_eq_u32 s{sCB}, 0
          s_cselect_b32 s3, s3, {OOB}
          v_lshlrev_b32 v8, 3, v1
          v_and_b32 v8, 0xff, v8
          v_mov_b32 v11, v{R}
          buffer_store_dwordx2 v[10:11], v8, {s(WD,4)}, s3 offen{SC}""")
    a(f"""v_lshrrev_b32 v8, 5, v1
          v_add_u32 v8, -1, v8
          s_cmp_eq_u32 s{sTY}, 3
          s_cbranch_scc1 P1_h
          s_cmp_eq_u32 s{sTY}, 0
          s_cselect_b32 s3, {fb(QSCALE)}, 1.0
          v_mul_f32 v10, s3, v{R}
          s_cmp_eq_u32 s{sTY}, 1
          s_cselect_b32 s27, 0x3f803f80, 0
          s_cselect_b32 s3, 0x3f80, 0
          s_cmp_eq_u32 s{sTY}, 2
          s_cselect_b32 s27, 0x3f80, s27
          v_mov_b32 v12, s27
          v_mov_b32 v13, s3""")
    a(f"""s_lshl_b32 s3, s{sSUB}, 8
          s_add_u32 s3, s3, s{sT}
          s_cmp_eq_u32 s{sTY}, 0
          s_cselect_b32 s27, 11, 12
          s_lshl_b32 s3, s3, s27
          s_lshl_b32 s26, 64, s27
          s_lshl_b32 s27, s{sTY}, 11
          s_add_u32 s27, s27, {KVF - 2048}
          s_cmp_eq_u32 s{sTY}, 0
          s_cselect_b32 s27, {QF}, s27
          s_add_u32 s3, s3, s27""")
    if opt("lin", 0):
        a(f"s_lshl_b32 s3, s2, 2\ns_add_u32 s3, s3, s{sW}\ns_lshl_b32 s3, s3, 13\ns_movk_i32 s26, 2048")
    a(f"""s_cmp_eq_u32 s{sTY}, 2
          s_cbranch_scc1 P1_v""")
    def pack(t):
        for i in range(8): a(f"v_pk_mul_f32 {v(ACC+16*t+2*i,2)}, {v(ACC+16*t+2*i,2)}, v[10:11] op_sel_hi:[1,0]")
        for i in range(8): a(f"v_cvt_pk_bf16_f32 v{XR+8*t+i}, v{ACC+16*t+2*i}, v{ACC+16*t+2*i+1}")
        a(f"v_bfi_b32 v{XR+8*t+6}, v8, v{XR+8*t+6}, v12\nv_bfi_b32 v{XR+8*t+7}, v8, v{XR+8*t+7}, v13")
    def put(t):
        for f_ in range(2): a(f"buffer_store_dwordx4 {v(XR+8*t+4*f_,4)}, v0, {s(WD,4)}, s3 offen offset:{f_*1024}{SC}")
        if t < 3: a("s_add_u32 s3, s3, s26")
    for t in range(4): pack(t); put(t)
    a("s_branch P1_done")
    a.label("P1_v")
    a(f"""s_mul_i32 s27, s{sW}, 9216
          s_add_u32 s27, s27, 0x10000
          v_and_b32 v9, 31, v1
          v_mul_u32_u24 v9, 72, v9
          v_lshrrev_b32 v14, 5, v1
          v_lshl_add_u32 v9, v14, 3, v9
          v_add_u32 v9, s27, v9
          v_bfe_u32 v15, v1, 2, 2
          v_lshl_add_u32 v14, v14, 2, v15
          v_mul_u32_u24 v14, 72, v14
          v_bfe_u32 v15, v1, 4, 1
          v_lshl_add_u32 v14, v15, 5, v14
          v_and_b32 v15, 3, v1
          v_lshl_add_u32 v14, v15, 3, v14
          v_add_u32 v14, s27, v14""")
    for t in range(5):
        if t < 4:
            pack(t)
            for j in range(4): a(f"ds_write_b64 v9, {v(XR+8*t+2*j,2)} offset:{t*2304 + 16*j}")
        if t:
            a(f"s_waitcnt lgkmcnt({4 if t < 4 else 0})")
            put(t - 1)
        if t < 4:
            a("s_waitcnt lgkmcnt(0)")
            for f_ in range(2):
                for e in range(2): a(f"ds_read_b64_tr_b16 {v(XR+8*t+4*f_+2*e,2)}, v14 offset:{t*2304 + (16*f_+8*e)*72}")
    a("s_branch P1_done")
    a.label("P1_h")
    gelu_consts(a, R, DEN)
    a(f"""s_mul_i32 s3, s{sT}, 28
          s_mul_i32 s27, s{sSUB}, 7
          s_add_u32 s3, s3, s27
          s_lshl_b32 s3, s3, 10
          s_add_u32 s3, s3, {HF}
          s_add_u32 s27, s3, 4096""")
    for f in range(7):
        gelu_pairs(a, [ACC + 8*f + 2*i for i in range(4)], 10, 12, 14, WF)
        for i in range(4): a(f"v_cvt_pk_bf16_f32 v{XR+4*f+i}, v{ACC+8*f+2*i}, v{ACC+8*f+2*i+1}")
        a(f"buffer_store_dwordx4 {v(XR+4*f,4)}, v0, {s(WD,4)}, s{3 if f < 4 else 27} offen offset:{(f&3)*1024}{SC}")
    a.label("P1_done")
    garrive(a, C_X, 1)
    stamp(a, 15)
    a(f"""s_waitcnt vmcnt(0)
          s_lshl_b32 s3, s{sCB}, 4
          s_add_u32 s3, s3, s{sRB}
          s_lshl_b32 s3, s3, 7
          s_add_u32 s3, s3, {FP}""")
    signal(a, 3, 8)
    stamp(a, 5)

O_, Q_, S_, E_, P_, KV = 16, 80, 112, 144, 152, 160
sH, sQB, sKV, sN, sMA, sKB = 44, 45, 50, 51, 47, 52
AR_BASE = 112 * 1024

def unit(a, n, q, extra):
    Sc, Sn = S_ + 16*(q & 1), S_ + 16*((q+1) & 1)
    nn, nq = (n, q+1) if q < 3 else ((n+1) & 3, 0)
    pn, pq = (n, q-1) if q > 0 else ((n-1) & 3, 3)
    K, Vc, Vp = KV + 16*nn, KV + 16*n + 8, KV + 16*pn + 8
    e = lambda i: a(f"v_exp_f32 v{E_+(i&7)}, v{Sc+i}")
    c = lambda k: a(f"v_cvt_pk_bf16_f32 v{P_+k}, v{E_+((2*k)&7)}, v{E_+((2*k+1)&7)}")
    for x in extra.get(0, []): a(x)
    a(f"{MF} {v(Sn,16)}, {v(K,4)}, {v(Q_+8*nq,4)}, 0")
    e(0); c(6); e(1); c(7); e(2); e(3)
    a(f"{MF} {v(O_+16*pq,16)}, {v(Vp+4,4)}, {v(P_+4,4)}, {v(O_+16*pq,16)}")
    for x in extra.get(1, []): a(x)
    e(4); c(0); e(5); c(1); e(6); e(7)
    a(f"{MF} {v(Sn,16)}, {v(K+4,4)}, {v(Q_+8*nq+4,4)}, {v(Sn,16)}")
    for x in extra.get(2, []): a(x)
    e(8); c(2); e(9); c(3); e(10); e(11)
    a(f"{MF} {v(O_+16*q,16)}, {v(Vc,4)}, {v(P_,4)}, {v(O_+16*q,16)}")
    e(12); c(4); e(13); c(5); e(14); e(15)

def kvload(slot, f):
    return f"buffer_load_dwordx4 {v(KV+16*slot+4*f,4)}, v0, {s(WD,4)}, s{sKV} offen offset:{f*1024}{SC}"
def kvnext():
    return [f"s_add_u32 s3, s{sKV}, 4096", "s_and_b32 s3, s3, 0xffff", f"s_or_b32 s{sKV}, s3, s{sKB}"]

EARLY = opt("early", 1)
def att(a):
    if p1stamps():
        global stamp
        stamp = lambda *x: None
    a(f"""s_and_b32 s26, s2, 7
          s_lshr_b32 s27, s2, 3
          s_lshl_b32 s{sH}, s26, 1
          s_and_b32 s3, s27, 1
          s_add_u32 s{sH}, s{sH}, s3
          s_lshr_b32 s{sQB}, s27, 1
          s_mul_i32 s{sMA}, s{sW}, 11136
          s_add_u32 s{sMA}, s{sMA}, {AR_BASE}
          s_lshl_b32 s{sKB}, s{sH}, 2
          s_add_u32 s{sKB}, s{sKB}, s{sW}
          s_lshl_b32 s{sKB}, s{sKB}, 16
          s_add_u32 s{sKB}, s{sKB}, {KVF}
          s_and_b32 s27, s{sQB}, {3 if EARLY else 15}
          s_lshl_b32 s3, s27, {14 if EARLY else 12}
          s_or_b32 s{sKV}, s{sKB}, s3
          s_lshr_b32 s3, s{sH}, 2
          s_lshl_b32 s3, s3, 4
          v_and_b32 v10, 3, v1
          s_lshl_b32 s26, s{sW}, 2
          s_add_u32 s26, s26, s3
          s_add_u32 s26, s26, 64
          v_add_u32 v10, s26, v10
          v_bfe_u32 v11, v1, 2, 1
          v_lshl_add_u32 v10, v11, 6, v10
          s_add_u32 s3, s3, s{sQB}
          v_writelane_b32 v10, s3, 8             ; lane 8: Q
          v_lshlrev_b32 v10, 7, v10
          v_add_u32 v10, {FP}, v10""")
    for i in range(64): a(f"v_mov_b32 v{O_+i}, 0")
    for i in range(8): a(f"v_mov_b32 v{E_+i}, 0\nv_mov_b32 v{P_+i}, 0")
    for i in range(4): a(f"v_mov_b32 v{KV+48+12+i}, 0")
    if EARLY:
        a(f"""v_and_b32 v11, 7, v1
              v_lshlrev_b32 v11, 2, v11
              ds_bpermute_b32 v2, v11, v10
              s_lshl_b32 s27, s27, 2
              v_mov_b32 v11, s27
              v_writelane_b32 v11, 32, 2
              s_add_u32 s27, s27, 16
              v_writelane_b32 v11, s27, 1
              ds_bpermute_b32 v10, v11, v10
              s_waitcnt lgkmcnt(0)""")
        poll(a, 10, 3)
    else: poll(a, 10, 9)
    if opt("ayield", 1): gwait(a, C_X, 4, field=0)
    stamp(a, 8)
    for j in range(4):
        a(f"""s_add_u32 s3, s{sW}, {j}
              s_and_b32 s3, s3, 3
              s_lshl_b32 s26, s{sH}, 4
              s_add_u32 s26, s26, s{sQB}
              s_lshl_b32 s26, s26, 2
              s_add_u32 s3, s3, s26
              s_lshl_b32 s3, s3, 11
              s_add_u32 s3, s3, {QF}""")
        for f in range(2): a(f"buffer_load_dwordx4 {v(Q_+8*j+4*f,4)}, v0, {s(WD,4)}, s3 offen offset:{f*1024}{SC}")
        if j == 0:
            for f in range(4): a(kvload(0, f))
            for x in kvnext(): a(x)
    for n in range(1, 3):
        for f in range(4): a(kvload(n, f))
        for x in kvnext(): a(x)
    a(f"s_mov_b32 s{sN}, 4\ns_waitcnt vmcnt(14)")
    a(f"{MF} {v(S_,16)}, {v(KV,4)}, {v(Q_,4)}, 0")
    a(f"{MF} {v(S_,16)}, {v(KV+4,4)}, {v(Q_+4,4)}, {v(S_,16)}")
    a(f"s_setprio {opt('pa2', 0)}\ns_waitcnt vmcnt(8)")
    stamp(a, 9)
    a(".p2align 3")
    a.label("AT_loop")
    for n in range(4):
        ld = (n + 3) & 3
        kvl = kvload if not opt("nokv", 0) else (lambda a_, b_: "s_nop 0")
        if opt("kvprio", 1):
            e0 = {1: ["s_setprio 3", kvl(ld, 0), kvl(ld, 1)], 2: [kvl(ld, 2), kvl(ld, 3), f"s_setprio {opt('pa2', 0)}"]}
            if EARLY and n == 0: e0[1].insert(1, f"buffer_load_dword v3, v2, {s(WD,4)}, 0 offen sc1")
            if EARLY and n == 1:
                e0[0] = ["s_waitcnt vmcnt(4)", "v_cmp_eq_u32 vcc, 0, v3"]
                e0[1] = ["s_cbranch_vccnz AT_late", "AT_ok:"] + e0[1]
            unit(a, n, 0, e0)
            unit(a, n, 1, {1: kvnext()})
            unit(a, n, 2, {})
            ex = {0: ["s_waitcnt vmcnt(8)"], 2: []}
        else:
            unit(a, n, 0, {2: [kvl(ld, 0)]})
            unit(a, n, 1, {1: [kvl(ld, 1)]})
            unit(a, n, 2, {1: [kvl(ld, 2)]})
            ex = {0: ["s_waitcnt vmcnt(7)"], 1: [kvl(ld, 3)], 2: kvnext()}
        if n == 3: ex[2] += [f"s_sub_u32 s{sN}, s{sN}, 1", f"s_cmp_lg_u32 s{sN}, 0"]
        unit(a, n, 3, ex)
    a("s_cbranch_scc1 AT_loop")
    a(f"v_cvt_pk_bf16_f32 v{P_+6}, v{E_+4}, v{E_+5}\nv_cvt_pk_bf16_f32 v{P_+7}, v{E_+6}, v{E_+7}")
    a(f"{MF} {v(O_+48,16)}, {v(KV+48+12,4)}, {v(P_+4,4)}, {v(O_+48,16)}")
    stamp(a, 10)
    a(f"s_setprio {opt('pa1', 2)}")
    gwait(a, C_B, 8)
    def region(d, j):
        a(f"""s_sub_u32 s{d}, s{sW}, {j}
              s_and_b32 s{d}, s{d}, 3
              s_mul_i32 s{d}, s{d}, 11136
              s_add_u32 s{d}, s{d}, {AR_BASE}""")
    reduce3c(a, O_, sMA, region, C_A, 4)
    a(f"""v_mov_b32 v10, v{O_+12}
          v_mov_b32 v11, v{O_+12}
          v_permlane32_swap_b32 v11, v10
          v_mov_b32 v12, v10
          v_mov_b32 v13, 0""")
    for i in range(16): a(f"v_fma_f32 v{12+(i&1)}, v{O_+i}, 0, v{12+(i&1)}")
    a(f"""v_add_f32 v12, v12, v13                ; row sum, or NaN if any accumulator is not finite
          v_cmp_le_f32 vcc, {fb(2.0**-80)}, v12
          v_cmp_ge_f32 s[26:27], s59, v12
          s_and_b64 vcc, vcc, s[26:27]
          s_cmp_eq_u64 vcc, -1
          s_cbranch_scc0 AT_slow""".replace("s59", "s59"))
    a.label("AT_norm")
    a(f"""v_rcp_f32 v10, v10
          v_lshrrev_b32 v8, 5, v1
          v_add_u32 v8, -1, v8""")
    for i in range(16): a(f"v_mul_f32 v{O_+i}, v{O_+i}, v10")
    for i in range(8): a(f"v_cvt_pk_bf16_f32 v{P_+i}, v{O_+2*i}, v{O_+2*i+1}")
    a(f"""v_and_b32 v{P_+6}, v8, v{P_+6}
          v_and_b32 v{P_+7}, v8, v{P_+7}
          s_lshl_b32 s26, s{sQB}, 2
          s_add_u32 s26, s26, s{sW}
          s_lshl_b32 s26, s26, 4
          s_add_u32 s26, s26, s{sH}
          s_lshl_b32 s3, s26, 11
          s_add_u32 s3, s3, {OF}
          buffer_store_dwordx4 {v(P_,4)}, v0, {s(WD,4)}, s3 offen{SC}
          buffer_store_dwordx4 {v(P_+4,4)}, v0, {s(WD,4)}, s3 offen offset:1024{SC}
          s_lshl_b32 s3, s{sQB}, 4
          s_add_u32 s3, s3, s{sH}
          s_lshl_b32 s3, s3, 7
          s_add_u32 s3, s3, {FA}
          s_waitcnt vmcnt(0)""")
    signal(a, 3, 20)
    stamp(a, 11)
    stamp_out2(a)
    a("s_endpgm")
    if EARLY:
        a.label("AT_late")
        poll(a, 2, 8)
        a("s_branch AT_ok")
    a.label("AT_slow")
    a(f"""s_waitcnt vmcnt(0)
          s_lshl_b32 s{sKB}, s{sH}, 18
          s_add_u32 s{sKB}, s{sKB}, {KVF}
          s_mov_b32 s{sKV}, s{sKB}
          s_mov_b32 s{sN}, 64
          v_mov_b32 v12, 0xff800000""")
    a.label("AT_s1")
    a(kvload(0, 0)); a(kvload(0, 1))
    a(f"""s_add_u32 s{sKV}, s{sKV}, 4096
          s_waitcnt vmcnt(0)
          {MF} {v(S_,16)}, {v(KV,4)}, {v(Q_,4)}, 0
          {MF} {v(S_,16)}, {v(KV+4,4)}, {v(Q_+4,4)}, {v(S_,16)}""")
    for i in range(8): a(f"v_max3_f32 v12, v12, v{S_+2*i}, v{S_+2*i+1}")
    a(f"""s_sub_u32 s{sN}, s{sN}, 1
          s_cmp_lg_u32 s{sN}, 0
          s_cbranch_scc1 AT_s1
          v_mov_b32 v13, v12
          v_permlane32_swap_b32 v12, v13
          v_max_f32 v12, v12, v13
          v_cvt_pk_bf16_f32 v13, -v12, -v12
          v_and_b32 v13, 0xffff0000, v13
          v_sub_f32 v12, -v12, v13
          v_cvt_pk_bf16_f32 v14, v12, v12
          v_and_b32 v14, 0xffff0000, v14
          v_sub_f32 v12, v12, v14
          v_cvt_pk_bf16_f32 v13, v13, v14
          v_cvt_pk_bf16_f32 v14, v12, 0
          v_lshrrev_b32 v8, 5, v1
          v_add_u32 v8, -1, v8
          v_bfi_b32 v{Q_+6}, v8, v{Q_+6}, v13
          v_bfi_b32 v{Q_+7}, v8, v{Q_+7}, v14
          s_mov_b32 s{sKV}, s{sKB}
          s_mov_b32 s{sN}, 64""")
    for i in range(16): a(f"v_mov_b32 v{O_+i}, 0")
    a.label("AT_s2")
    for f in range(4): a(kvload(0, f))
    a(f"""s_add_u32 s{sKV}, s{sKV}, 4096
          s_waitcnt vmcnt(0)
          {MF} {v(S_,16)}, {v(KV,4)}, {v(Q_,4)}, 0
          {MF} {v(S_,16)}, {v(KV+4,4)}, {v(Q_+4,4)}, {v(S_,16)}""")
    for i in range(16): a(f"v_exp_f32 v{S_+i}, v{S_+i}")
    for i in range(8): a(f"v_cvt_pk_bf16_f32 v{P_+i}, v{S_+2*i}, v{S_+2*i+1}")
    a(f"""{MF} {v(O_,16)}, {v(KV+8,4)}, {v(P_,4)}, {v(O_,16)}
          {MF} {v(O_,16)}, {v(KV+12,4)}, {v(P_+4,4)}, {v(O_,16)}
          s_sub_u32 s{sN}, s{sN}, 1
          s_cmp_lg_u32 s{sN}, 0
          s_cbranch_scc1 AT_s2
          v_mov_b32 v10, v{O_+12}
          v_mov_b32 v11, v{O_+12}
          v_permlane32_swap_b32 v11, v10
          s_branch AT_norm""")

B_G3_DONE = 24
G2_BASE = 0
H1 = 56 * 1024
W3B = 60 * 1024
XCH3 = CNT + 1024
RES = 224

def p1b(a):
    bst = (lambda i: common.stamp(a, i)) if p1stamps() else (lambda i: None)
    sRB, sCB, sT = 44, 45, 48
    sROW, sWO, sK, sCOL = 49, 50, 51, 52
    WB = 0x1C000
    XT = 232
    if opt("codepf", 1):
        nseg = opt("nseg", 5)
        a(f"""s_lshr_b32 s26, s2, 3
              s_cmp_ge_u32 s26, {nseg}
              s_cbranch_scc1 PB_nopf
              s_cmp_lg_u32 s{sW}, 0
              s_cbranch_scc1 PB_nopf
              s_getpc_b64 s[62:63]""")
        a.label("PB_pc")
        a(f"""s_lshl_b32 s26, s26, 13
              s_sub_u32 s62, s62, PB_pc-K_start
              s_subb_u32 s63, s63, 0
              s_add_u32 s62, s62, s26
              s_addc_u32 s63, s63, 0
              v_lshlrev_b32 v8, 7, v1
              v_add_u32 v9, s26, v8
              v_cmp_gt_u32 vcc, K_last-K_start, v9
              v_mov_b32 v11, s63
              v_add_co_u32 v10, s[26:27], s62, v8
              v_addc_co_u32 v11, s[26:27], 0, v11, s[26:27]
              s_and_saveexec_b64 s[26:27], vcc
              s_cbranch_execz PB_pfx
              global_load_dword v16, v[10:11], off""")
        a.label("PB_pfx")
        a("s_mov_b64 exec, -1")
        a.label("PB_nopf")
    a(f"""s_and_b32 s26, s2, 1
          s_lshl_b32 s26, s26, 3
          s_lshr_b32 s3, s2, 5
          s_add_u32 s26, s26, s3
          s_bfe_u32 s{sK}, s2, 0x20003
          s_lshl_b32 s54, s{sK}, 1
          s_add_u32 s54, s54, s3
          s_mul_i32 s3, s54, 37
          s_lshr_b32 s3, s3, 8
          s_mul_i32 s3, s3, 7
          s_sub_u32 s54, s54, s3
          s_mul_i32 s54, s54, {opt("rotw", 1)}
          s_bfe_u32 s3, s2, 0x20001
          s_lshl_b32 s3, s3, 2
          s_add_u32 s3, s3, s{sK}
          s_lshl_b32 s3, s3, 2
          s_add_u32 s3, s3, s{sW}
          s_lshl_b32 s56, s3, 5
          s_and_b32 s27, s26, 3
          s_lshr_b32 s3, s27, 1
          s_add_u32 s3, s3, 1
          s_sub_u32 s57, 0, s3
          s_bitcmp1_b32 s27, 0
          s_cselect_b32 s3, s3, s57
          s_movk_i32 s{sROW}, 2688
          s_cmp_ge_u32 s26, 12
          s_cselect_b32 s3, s3, 0
          s_cselect_b32 s{sROW}, 896, s{sROW}
          s_cselect_b32 s27, s27, s26
          s_add_u32 s56, s56, s3
          s_mul_i32 s{sCOL}, s27, 224
          v_lshrrev_b32 v8, 3, v1
          v_add_u32 v8, s56, v8
          s_movk_i32 s3, 896
          v_mul_i32_i24 v8, s3, v8
          v_bfe_u32 v9, v1, 4, 2
          v_and_b32 v10, 7, v1
          v_xor_b32 v9, v9, v10
          v_lshl_add_u32 v2, v9, 4, v8
          v_xor_b32 v9, 4, v9
          v_lshl_add_u32 v3, v9, 4, v8
          v_add_u32 v3, {8*896}, v3
          v_add_u32 v4, {16*896}, v2
          v_add_u32 v5, {16*896}, v3
          v_lshrrev_b32 v8, 4, v1
          v_lshlrev_b32 v9, 2, v8
          v_sub_u32 v9, v1, v9
          v_and_b32 v9, 15, v9
          v_mul_u32_u24 v8, s{sROW}, v8
          v_lshl_add_u32 v7, v9, 4, v8
          v_cmp_gt_u32 s[96:97], 14, v9
          s_lshl_b32 s{sK}, s54, 6
          s_lshl_b32 s54, s54, 7
          s_lshl_b32 s3, s{sW}, 4
          s_mul_i32 s3, s3, s{sROW}
          s_add_u32 s{sCOL}, s{sCOL}, s3
          s_lshl_b32 s53, s{sROW}, 2
          s_lshl_b32 s55, s{sW}, 12
          s_waitcnt lgkmcnt(0)
          s_cmp_ge_u32 s26, 12
          s_cselect_b32 s{WA}, s12, s6
          s_cselect_b32 s{WA+1}, s13, s7
          s_mul_i32 s{WA+2}, s{sROW}, 448
          s_mov_b32 s{WA+3}, 0x20000""")
    srd(a, XS, 4, 2048 * 896)
    q = []
    gap = []
    def ride(n):
        for x in gap[:n]: a(x)
        del gap[:n]
    def xchunk(c):
        for g in range(4):
            a(f"s_add_u32 m0, s55, {XB + (c % 3)*16384 + g*1024}")
            a(f"s_nop 0\nbuffer_load_dwordx4 v{2+g}, {s(XS,4)}, s54 offen lds")
            ride(9)
        wrapinc(a, 54, 128, 896)
        q.extend([c] * 4)
    def wchunk(c):
        a(f"""s_mul_i32 s{sWO}, s{sK}, s{sROW}
              s_add_u32 s{sWO}, s{sWO}, s{sCOL}""")
        wrapinc(a, sK, 64, 448)
        a("s_mov_b64 exec, s[96:97]")
        for u in range(4):
            a(f"s_add_u32 m0, s55, {c*16384 + u*1024}")
            if u: a(f"s_add_u32 s{sWO}, s{sWO}, s53")
            a(f"buffer_load_dwordx4 v7, {s(WA,4)}, s{sWO} offen lds")
        a("s_mov_b64 exec, -1")
        q.extend([c] * 4)
    srd(a, WD, 24, WS_END)
    a(f"""s_lshl_b32 s61, s{sW}, 8
          s_or_b32 s61, s61, s2
          v_mov_b32 v22, 0
          s_cmp_ge_u32 s61, {NINIT}
          s_cbranch_scc1 PB_noinit
          v_lshlrev_b32 v13, 7, v1
          s_lshl_b32 s3, s2, 13
          s_add_u32 s3, s3, {FLG}
          buffer_store_dword v22, v13, {s(WD,4)}, s3 offen{SC}""")
    a.label("PB_noinit")
    xchunk(0); wchunk(0)
    if opt("tlb", 0):
        a(f"""v_lshlrev_b32 v23, {opt("tlb", 0)}, v1
              v_add_u32 v23, {0x1fff80 if opt("tlb", 0) == 21 else 0xff80}, v23
              s_lshl_b32 s3, s{sW}, {opt("tlb", 0) + 6}
              buffer_load_dword v24, v23, {s(WD,4)}, s3 offen sc1""")
        q.append(1)
    a(f"""v_lshrrev_b32 v8, 1, v1
          v_and_b32 v9, 15, v8
          v_lshrrev_b32 v10, 4, v8
          v_lshlrev_b32 v10, 14, v10
          v_lshl_add_u32 v10, v9, 8, v10
          v_and_b32 v9, 3, v8
          v_lshlrev_b32 v9, 2, v9
          v_and_b32 v8, 1, v1
          v_add3_u32 v9, v9, v8, 14
          v_and_b32 v9, 15, v9
          v_lshl_add_u32 v10, v9, 4, v10
          v_add_u32 v10, s55, v10
          v_add_u32 v11, 0x10000, v10
          v_mov_b32 v12, 0x3f803f80
          v_mov_b32 v13, v12
          v_mov_b32 v14, v12
          v_mov_b32 v15, v12
          ds_write_b128 v10, v[12:15]
          ds_write_b128 v10, v[12:15] offset:32768
          ds_write_b128 v11, v[12:15]
          s_mov_b64 exec, 0xffffffff
          ds_write_b128 v11, v[12:15] offset:32768
          s_mov_b64 exec, -1""")
    srd(a, WD, 24, WS_END)
    srd(a, WB_, 22, 256)
    xchunk(1)
    if opt("w1e", 1): wchunk(1)
    small_setup(a, sRB, sCB, sT)
    tail = A()
    tail(f"""v_lshrrev_b32 v8, 2, v1
          v_mul_u32_u24 v8, 896, v8
          v_bfe_u32 v9, v1, 4, 2
          v_and_b32 v10, 3, v1
          v_xor_b32 v9, v9, v10
          v_lshl_add_u32 v8, v9, 4, v8
          s_mul_i32 s3, s{sT}, {32*896}
          s_lshl_b32 s26, s{sCB}, 7
          s_add_u32 s3, s3, s26
          s_lshl_b32 s26, s{sFT}, 6
          s_add_u32 s3, s3, s26
          s_add_u32 s26, s3, {16*896}
          buffer_load_dwordx4 {v(XT,4)}, v8, {s(XS,4)}, s3 offen
          buffer_load_dwordx4 {v(XT+4,4)}, v8, {s(XS,4)}, s26 offen""")
    t2, t3, t4 = A(), A(), A()
    srd(t2, WB_, 14, 448*896)
    t2(f"""v_lshlrev_b32 v8, 7, v1
           s_lshr_b32 s57, s2, 3
           s_lshl_b32 s57, s57, 2
           s_add_u32 s57, s57, s{sW}
           s_mul_i32 s3, s57, {25*128}
           s_bfm_b64 exec, 25, 0
           buffer_load_dword v16, v8, {s(WB_,4)}, s3 offen
           s_mov_b64 exec, -1""")
    srd(t3, WB_, 16, 448*3584)
    t3(f"""s_lshr_b32 s57, s2, 3
           s_lshl_b32 s57, s57, 2
           s_add_u32 s57, s57, s{sW}
           s_mul_i32 s3, s57, 49
           v_add_u32 v9, s3, v1
           v_mul_u32_u24 v10, 9363, v9
           v_lshrrev_b32 v10, 17, v10
           v_mul_u32_u24 v11, 14, v10
           v_sub_u32 v9, v9, v11
           v_mul_u32_u24 v10, 3584, v10
           v_lshl_add_u32 v9, v9, 7, v10
           s_and_b32 s3, s2, 1
           s_mul_i32 s3, s3, 1792
           s_bfm_b64 exec, 49, 0
           buffer_load_dword v17, v9, {s(WB_,4)}, s3 offen
           s_mov_b64 exec, -1""")
    srd(t4, WB_, 18, 448*3584)
    t4(f"""v_lshlrev_b32 v8, 7, v1
           s_lshl_b32 s57, s2, 2
           s_add_u32 s57, s57, s{sW}
           s_mul_i32 s3, s57, {13*128}
           s_bfm_b64 exec, 13, 0
           buffer_load_dword v18, v8, {s(WB_,4)}, s3 offen""")
    srd(t4, WB_, 8, 448*896)
    t4(f"""s_lshl_b32 s3, s57, 9
           s_mov_b64 exec, 15
           buffer_load_dword v19, v8, {s(WB_,4)}, s3 offen
           s_mov_b64 exec, -1""")
    w2, w2b = A(), A()
    w2(f"""s_lshr_b32 s{sFT}, s{sW}, 1
           s_xor_b32 s{sFT}, s{sFT}, s2
           s_and_b32 s{sFT}, s{sFT}, 1
           s_lshl_b32 s47, s{sW}, 11""")
    small_addrs(w2, "s47")
    srd(w2, WA, 14, 448 * 896)
    w2(f"""s_mul_i32 s3, s{sW}, {112*896}
           s_lshl_b32 s26, s{sCB}, 7
           s_add_u32 s3, s3, s26
           v_add_u32 v4, s3, v7
           v_add_u32 v5, {8*896}, v4
           s_mul_i32 s50, s{sCB}, {16*896*opt("rot", 1)}""")
    for j in range(7):
        g = w2 if j < 6 else w2b
        g(f"""s_add_u32 m0, s47, {j*8192}
              s_nop 0
              buffer_load_dwordx4 v4, {s(WA,4)}, s50 offen lds
              s_add_u32 m0, s47, {j*8192 + 1024}
              s_nop 0
              buffer_load_dwordx4 v5, {s(WA,4)}, s50 offen lds""")
        if j < 6: wrapinc(g, 50, 16*896, 112*896)
    c3a, c3b = A(), A()
    srd(c3a, WB_, 16, 448*3584)
    c3a(f"""s_mul_i32 s3, s2, 2341
            s_lshr_b32 s3, s3, 16
            s_mul_i32 s57, s3, 28
            s_sub_u32 s57, s2, s57                 ; line = id % 28
            s_lshl_b32 s3, s3, 2
            s_add_u32 s3, s3, s{sW}
            s_mul_i32 s63, s57, 28
            s_add_u32 s63, s63, s3
            s_lshl_b32 s63, s63, 8
            s_add_u32 s63, s63, {CS3P}
            s_cmp_lt_u32 s2, 196
            s_cselect_b32 s63, s63, {OOB}
            s_mul_i32 s3, s3, {16*3584}
            s_lshl_b32 s57, s57, 7
            s_add_u32 s3, s3, s57
            s_add_u32 s57, s3, {8*3584}
            v_lshrrev_b32 v8, 3, v1
            v_mul_u32_u24 v8, 3584, v8
            v_and_b32 v9, 7, v1
            v_lshl_add_u32 v8, v9, 4, v8
            buffer_load_dwordx4 v[32:35], v8, {s(WB_,4)}, s3 offen
            buffer_load_dwordx4 v[36:39], v8, {s(WB_,4)}, s57 offen""")
    unpack(c3b, 40, 32, 8)
    for i in range(8): c3b(f"v_add_f32 v{40+i}, v{40+i}, v{48+i}")
    for i in range(4): c3b(f"v_permlane32_swap_b32 v{40+i}, v{44+i}")
    for i in range(4): c3b(f"v_add_f32 v{40+i}, v{40+i}, v{44+i}")
    for i in range(2): c3b(f"v_permlane16_swap_b32 v{40+i}, v{42+i}")
    for i in range(2): c3b(f"v_add_f32 v{40+i}, v{40+i}, v{42+i}")
    c3b(f"""v_and_b32 v8, 7, v1
            v_lshrrev_b32 v9, 4, v1
            v_lshlrev_b32 v8, 5, v8
            v_lshl_add_u32 v8, v9, 3, v8
            v_add_f32_dpp v40, v40, v40 row_ror:8 row_mask:0xf bank_mask:0xf
            v_add_f32_dpp v41, v41, v41 row_ror:8 row_mask:0xf bank_mask:0xf
            buffer_store_dwordx2 v[40:41], v8, {s(WD,4)}, s63 offen{SC}""")
    extras = [(opt("c3a", 1), c3a, 2), (opt("c3a", 1) + 2, c3b, 1), (opt("tw2", 2), t2, 1), (opt("w2c", 8), w2, 12), (max(4, opt("w2c", 8)), tail, 2), (opt("tw3", 4), t3, 1), (opt("tw4", 4), t4, 2), (max(opt("w2d", 6), opt("w2c", 8)), w2b, 2)]
    bst(2)
    for c in range(7):
        last = max(i for i, x in enumerate(q) if x == c)
        a(f"s_waitcnt vmcnt({len(q) - 1 - last}) lgkmcnt(0)")
        bst((3, 12, 13, 4, 5, 14, 8)[c])
        a("s_barrier")
        if c == 0:
            a(f"""s_cmp_ge_u32 s61, {NINIT}
                  s_cbranch_scc1 PB_noset
                  s_lshl_b32 s3, s2, 2
                  v_mov_b32 v9, 1
                  s_mov_b64 exec, 1
                  buffer_store_dword v9, v22, {s(WB_,4)}, s3 offen{SC}
                  s_mov_b64 exec, -1""")
            a.label("PB_noset")
        if c == 0 and not opt("w1e", 1): wchunk(1)
        if c + 2 < 7: xchunk(c + 2); wchunk(c + 2)
        if c == 3:
            srd(a, WB_, 22, 256)
            a(f"v_min_u32 v20, {NINIT - 1}, v1\nv_lshlrev_b32 v20, 2, v20\nbuffer_load_dword v21, v20, {s(WB_,4)}, 0 offen sc1"); q.append(5)
        if c == 5:
            a("v_cmp_eq_u32 vcc, 0, v21\ns_cbranch_vccz PB_clr")
            srd(a, WB_, 22, 256)
            poll(a, 20, NINIT, WB_)
            a.label("PB_clr")
        for when, code, nv in extras:
            if when == c:
                for x in code.l: a(x)
                q.extend([c + 2 if code is c3a else 99] * nv)
        ride(999)
    a(f"""v_mov_b32 v8, {CNT}
          v_mov_b32 v12, 0
          v_mov_b32 v13, 0
          v_mov_b32 v14, 0
          v_mov_b32 v15, 0
          ds_write_b128 v8, v[12:15]
          ds_write_b128 v8, v[12:15] offset:16
          ds_write_b128 v8, v[12:15] offset:32
          s_waitcnt lgkmcnt(0)
          s_barrier                              ; barrier 7""")
    for when, code, nv in extras:
        if when == 7:
            for x in code.l: a(x)
    bst(9)
    gwait(a, C_X, 4, field=1)
    for when, code, nv in extras:
        if when == 8:
            for x in code.l: a(x)
    bst(10); bst(11); bst(15)

def small_setup(a, sRB, sCB, sT):
    a(f"""s_bfe_u32 s26, s2, 0x20001
          s_lshl_b32 s26, s26, 2
          s_bfe_u32 s3, s2, 0x20003
          s_add_u32 s26, s26, s3
          s_lshl_b32 s{sRB}, s26, 1
          s_and_b32 s3, s2, 1
          s_add_u32 s{sRB}, s{sRB}, s3
          s_lshr_b32 s{sCB}, s2, 5
          s_and_b32 s3, s{sW}, 1
          s_lshl_b32 s{sT}, s{sRB}, 1
          s_add_u32 s{sT}, s{sT}, s3""")

def small_addrs(a, sM, natural=False):
    a(f"""v_lshrrev_b32 v8, 3, v1
          v_bfe_u32 v9, v1, 4, 1
          v_lshlrev_b32 v9, 2, v9
          v_and_b32 v10, 7, v1
          v_xor_b32 v9, v9, v10
          v_mul_u32_u24 v8, 896, v8
          v_lshl_add_u32 v7, v9, 4, v8
          v_lshrrev_b32 v8, 5, v1
          v_bfe_u32 v9, v1, 2, 2
          v_lshl_add_u32 v8, v8, 2, v9
          v_lshlrev_b32 v8, 7, v8
          v_bfe_u32 v10, v1, 4, 1
          v_bfe_u32 v11, v1, 1, 1
          v_lshl_add_u32 v10, v10, 1, v11
          v_bfe_u32 v11, v1, 3, 1
          v_lshl_add_u32 v10, v11, 2, v10
          v_lshl_add_u32 v8, v10, 4, v8
          v_and_b32 v11, 1, v1
          v_lshl_add_u32 v8, v11, 3, v8
          s_lshl_b32 s3, {"0" if natural else "s%d" % sFT}, 6
          v_xor_b32 v8, s3, v8
          v_add_u32 v2, {sM}, v8
          v_xor_b32 v8, 64, v8
          v_add_u32 v3, {sM}, v8""")

def wreads(a, WF, buf, off, va=2):
    for b in range(2):
        for e in range(2): a(f"ds_read_b64_tr_b16 {v(WF+8*buf+4*b+2*e,2)}, v{va+b} offset:{off + 8*e*128}")
def mfmas(a, ACC, WF, buf, act0, act1, first):
    for aa, ar in enumerate((act0, act1)):
        for b in range(2):
            j = 2*aa + b
            a(f"{MF} {v(ACC+16*j,16)}, {v(WF+8*buf+4*b,4)}, {v(ar,4)}, {'0' if first else v(ACC+16*j,16)}")

def roleb(a):
    ACC, WF, AR, EP = 16, 80, 112, 176
    sRB, sCB, sT, sM, sK, sKA, sX = 44, 45, 48, 47, 50, 51, 53
    sRB3, sCB3, sT3, sK3, sL = 54, 55, 56, 57, 49
    ROT = opt("rot", 1)
    a("s_cmp_ge_u32 s2, 224\ns_cbranch_scc0 B_go")
    a(f"""s_mov_b64 exec, 1
          v_mov_b32 v8, {CNT}
          v_mov_b32 v9, {B_G3_DONE // 4}
          ds_add_u32 v8, v9
          s_mov_b64 exec, -1""")
    garrive(a, C_X)
    if opt("idlepf", 1):
        if opt("idlepf", 1) == 2: gwait(a, C_S1, 4)
        else:
            a(f"""s_lshl_b32 s3, s{sRB}, 10
                  s_add_u32 s3, s3, {F2}
                  v_mov_b32 v10, s3""")
            poll(a, 10, 1)
        srd(a, WA, 18, 1792 * 896)
        srd(a, WB_, 8, 448 * 896)
        a(f"""s_lshr_b32 s3, s2, 3
              s_sub_u32 s3, s3, 28
              s_lshl_b32 s3, s3, 2
              s_add_u32 s3, s3, s{sW}
              s_lshl_b32 s26, s3, 13
              s_and_b32 s27, s2, 1
              s_mul_i32 s27, s27, {896*896}
              s_add_u32 s26, s26, s27
              v_lshlrev_b32 v8, 7, v1
              s_mov_b32 s27, 7""")
        a.label("B_pf")
        a(f"""buffer_load_dword v16, v8, {s(WA,4)}, s26 offen
              s_add_u32 s26, s26, {16*8192}
              s_waitcnt vmcnt(1)
              s_sub_u32 s27, s27, 1
              s_cmp_lg_u32 s27, 0
              s_cbranch_scc1 B_pf
              s_lshl_b32 s26, s3, 13""")
        for i in range(4): a(f"buffer_load_dword v16, v8, {s(WB_,4)}, s26 offen\ns_add_u32 s26, s26, {16*8192}")
    a("s_endpgm")
    a.label("B_go")
    a(f"s_setprio {opt('pb', 1)}")
    bs2 = (lambda i: common.stamp(a, i)) if opt("g2s", 0) and common.STAMPS else (lambda i: None)
    if opt("g2s", 0):
        global stamp
        keep = stamp
        stamp = lambda a_, i, *x: keep(a_, i, *x) if i in (2, 3) else None
    a(f"s_lshl_b32 s{sL}, s{sW}, 11")
    bs2(13)
    a(f"""s_add_u32 s3, s{sL}, {H1 + 8192}
          v_add_u32 v10, s3, v0
          v_and_b32 v8, 31, v1
          v_lshlrev_b32 v8, 6, v8
          v_bfe_u32 v9, v1, 2, 2
          v_lshl_add_u32 v8, v9, 4, v8
          v_lshrrev_b32 v9, 5, v1
          v_lshl_add_u32 v8, v9, 3, v8
          v_add_u32 v12, s3, v8
          v_xor_b32 v13, 16, v12
          v_xor_b32 v14, 32, v12
          v_xor_b32 v15, 48, v12
          s_waitcnt vmcnt(0)
          ds_write_b128 v10, v[232:235]
          ds_write_b128 v10, v[236:239] offset:1024
          s_waitcnt lgkmcnt(0)""")
    for j in range(4): a(f"ds_read_b64 {v(EP+2*j,2)}, v{12+j}")
    a(f"""s_and_b32 s26, s2, 7
          s_lshr_b32 s27, s2, 3
          s_lshr_b32 s{sRB3}, s26, 1
          s_lshl_b32 s{sRB3}, s{sRB3}, 2
          s_and_b32 s3, s27, 3
          s_add_u32 s{sRB3}, s{sRB3}, s3
          s_and_b32 s{sCB3}, s26, 1
          s_mul_i32 s{sCB3}, s{sCB3}, 7
          s_add_u32 s{sCB3}, s{sCB3}, s{sCB}
          s_lshl_b32 s{sT3}, s{sRB3}, 2
          s_add_u32 s{sT3}, s{sT3}, s{sW}
          v_lshrrev_b32 v8, 3, v1
          v_bfe_u32 v9, v1, 4, 1
          v_lshlrev_b32 v9, 2, v9
          v_and_b32 v6, 7, v1
          v_xor_b32 v9, v9, v6
          v_mul_u32_u24 v8, 3584, v8
          v_lshl_add_u32 v6, v9, 4, v8
          s_mul_i32 s3, s{sW}, {16*3584}
          s_lshl_b32 s26, s{sCB3}, 8
          s_add_u32 s3, s3, s26
          v_add_u32 v6, s3, v6                   ; W3 voffset
          s_mul_i32 s{sK3}, s{sCB}, {64*3584*ROT}""")
    srd(a, WB_, 16, 448 * 3584)
    a("s_waitcnt lgkmcnt(0)")
    def w3chunk(c):
        hf, j = (1, c) if c < 7 else (0, c - 7)
        for u in range(2):
            a(f"s_add_u32 m0, s{sL}, {hf*H1 + j*8192 + u*1024}")
            a(f"s_add_u32 s3, s{sK3}, {u*8*3584 + 128*hf}")
            a(f"buffer_load_dwordx4 v6, {s(WB_,4)}, s3 offen lds")
        wrapinc(a, sK3, 64*3584, 448*3584)
    W3A = opt("w3a", 0); W3E = max(W3A, opt("w3e", 6)); assert W3E <= 6
    if W3A:
        gwait(a, C_S1, 4)
        for c in range(W3A): w3chunk(c)
    a(f"""s_mul_i32 s3, s{sT}, 28
          s_mul_i32 s26, s{sW}, 7
          s_add_u32 s3, s3, s26
          s_lshl_b32 s3, s3, 10
          s_add_u32 s3, s3, {HF}
          v_add_u32 v4, s3, v0
          s_xor_b32 s3, s{sT}, 1
          s_mul_i32 s3, s3, 28
          s_add_u32 s3, s3, s26
          s_lshl_b32 s3, s3, 10
          s_add_u32 s3, s3, {HF}
          v_add_u32 v5, s3, v0
          s_mul_i32 s{sKA}, s{sCB}, {1024*ROT}
          s_mul_i32 s{sX}, s{sT}, 28
          s_lshl_b32 s3, s{sCB}, 2
          s_add_u32 s{sX}, s{sX}, s3
          s_lshl_b32 s3, s{sFT}, 1
          s_add_u32 s{sX}, s{sX}, s3
          s_lshl_b32 s{sX}, s{sX}, 10
          s_add_u32 s{sX}, s{sX}, {X1F}
          s_add_u32 s3, s{sW}, 12
          s_lshl_b32 s3, s3, 4
          s_lshr_b32 s26, s{sRB}, 1
          s_add_u32 s3, s3, s26
          v_mov_b32 v10, s3
          v_writelane_b32 v10, s26, 1
          v_lshlrev_b32 v10, 7, v10
          v_add_u32 v10, {FP}, v10
          v_lshlrev_b32 v8, 3, v1
          v_and_b32 v15, 0xff, v8
          s_lshl_b32 s27, s{sT}, 8
          s_add_u32 s27, s27, {ST1}""")
    unpack(a, RES, EP, 8)
    stamp(a, 2)
    poll(a, 10, 2)
    stamp(a, 3)
    for j in range(7):
        a(f"buffer_load_dwordx4 {v(AR+8*j,4)}, v4, {s(WD,4)}, s{sKA} offen{SC}")
        a(f"buffer_load_dwordx4 {v(AR+8*j+4,4)}, v5, {s(WD,4)}, s{sKA} offen{SC}")
        if j < 6: wrapinc(a, sKA, 1024, 7168)
    a(f"buffer_load_dwordx2 {v(EP+8,2)}, v15, {s(WD,4)}, s27 offen{SC}")
    garrive(a, C_X)
    for s_ in range(3): wreads(a, WF, s_, s_*8192)
    NW3 = 0
    for s_ in range(7):
        a(f"s_waitcnt vmcnt({2*(6-s_) + 1 + NW3}) lgkmcnt({4*min(2, 6 - s_)})")
        mfmas(a, ACC, WF, s_ & 3, AR+8*s_, AR+8*s_+4, s_ == 0)
        if s_ + 3 < 7: wreads(a, WF, (s_+3) & 3, (s_+3)*8192)
    U = AR
    stamp(a, 12)
    a(f"s_waitcnt vmcnt({NW3})")
    for i in range(16): a(f"v_sub_f32 v{U+i}, v{RES+i}, v{EP+8}")
    def region2(d, j):
        a(f"""s_xor_b32 s{d}, s{sW}, {(j >> 1) + 2*(j & 1)}
              s_mul_i32 s{d}, s{d}, 12288
              s_add_u32 s{d}, s{d}, {W3B + 48*1024}""")
    region2(sM, 0)
    reduce3(a, ACC, sM, region2, 0, 4, True)
    stamp(a, 13)
    for i in range(16): a(f"v_fma_f32 v{U+i}, v{U+i}, v{EP+9}, v{ACC+i}")
    for i in range(8): a(f"v_cvt_pk_bf16_f32 v{EP+i}, v{U+2*i}, v{U+2*i+1}")
    a(f"buffer_store_dwordx4 {v(EP,4)}, v0, {s(WD,4)}, s{sX} offen{SC}")
    a(f"buffer_store_dwordx4 {v(EP+4,4)}, v0, {s(WD,4)}, s{sX} offen offset:1024{SC}")
    unpack(a, U, EP, 8)
    for i in range(16):
        a(f"v_add_f32 v{10+(i&1)}, v{U+i}, {'0' if i < 2 else 'v%d' % (10+(i&1))}")
        a(f"v_fma_f32 v{12+(i&1)}, v{U+i}, v{U+i}, {'0' if i < 2 else 'v%d' % (12+(i&1))}")
    a("v_add_f32 v10, v10, v11\nv_add_f32 v11, v12, v13")
    half_sum(a, 10, 8); half_sum(a, 11, 9)
    a(f"""s_lshl_b32 s26, s{sCB}, 1
          s_add_u32 s26, s26, s{sFT}
          s_mul_i32 s3, s{sT}, 14
          s_add_u32 s3, s3, s26
          s_lshl_b32 s3, s3, 8
          s_add_u32 s3, s3, {ST3}
          buffer_store_dwordx2 v[10:11], v15, {s(WD,4)}, s3 offen{SC}
          s_lshl_b32 s3, s{sRB}, 3
          s_add_u32 s3, s3, s{sCB}
          s_lshl_b32 s3, s3, 7
          s_add_u32 s{sX}, s3, {F2}""")
    garrive(a, 0)
    for i in range(16): a(f"v_add_f32 v{RES+i}, v{RES+i}, v{U+i}")
    for c in range(W3A, W3E): w3chunk(c)
    a(f"s_waitcnt vmcnt({2*(W3E - W3A)})")
    signal(a, sX, 12)
    stamp(a, 4)
    gwait(a, 0, 8)
    for c in range(W3E, 14): w3chunk(c)
    ACC, WF, XR, TMP = 16, 80, 112, 240
    CSP, CS = TMP, ACC + 48
    a(f"""s_lshl_b32 s3, s{sFT}, 6
          s_sub_u32 s26, 0, s{sL}
          v_add_u32 v2, s26, v2
          v_xor_b32 v2, s3, v2
          v_xor_b32 v3, 64, v2
          v_add_u32 v4, {H1}, v2
          v_add_u32 v5, {H1}, v3""")
    a(f"""s_lshr_b32 s3, s{sT3}, 1
          s_lshl_b32 s3, s3, 10
          s_add_u32 s3, s3, {F2}
          v_lshl_add_u32 v11, v1, 7, s3
          s_lshl_b32 s26, s{sCB3}, 1
          s_lshr_b32 s3, s{sW}, 1
          s_add_u32 s26, s26, s3
          v_add_u32 v8, -7, v1
          v_mul_u32_u24 v8, 28, v8
          v_add_u32 v8, s26, v8
          v_and_b32 v9, 1, v8
          v_lshrrev_b32 v10, 5, v8
          v_lshl_add_u32 v9, v9, 3, v10
          v_bfe_u32 v10, v8, 1, 2
          v_lshl_add_u32 v9, v9, 2, v10
          v_bfe_u32 v10, v8, 3, 2
          v_lshl_add_u32 v9, v9, 2, v10
          v_lshlrev_b32 v9, 7, v9
          v_add_u32 v9, {FP}, v9
          v_cmp_gt_u32 vcc, 7, v1
          v_cndmask_b32 v11, v9, v11, vcc
          s_mul_i32 s{sK3}, s26, {28*256}
          s_and_b32 s3, s{sW}, 1
          s_lshl_b32 s3, s3, 7
          s_add_u32 s{sK3}, s{sK3}, s3
          s_add_u32 s{sK3}, s{sK3}, {CS3P}
          v_lshrrev_b32 v10, 5, v1
          v_mul_u32_u24 v10, {14*256}, v10
          v_and_b32 v9, 31, v1
          v_lshl_add_u32 v6, v9, 2, v10
          s_mul_i32 s3, s{sT3}, {28*1024}
          s_add_u32 s3, s3, {X1F}
          v_add_u32 v7, s3, v0
          s_mul_i32 s{sKA}, s{sCB}, {4096*ROT}
          v_lshrrev_b32 v12, 5, v1
          v_mul_u32_u24 v12, {7*256}, v12
          v_and_b32 v13, 31, v1
          v_lshl_add_u32 v12, v13, 3, v12
          s_mul_i32 s27, s{sT3}, {14*256}
          s_add_u32 s27, s27, {ST3}""")
    a("s_waitcnt vmcnt(0)")
    gbar(a, 0, 12)
    CSG = opt("csg", 1)
    def cs_exchange():
        a(f"""v_cvt_pk_bf16_f32 v{WF}, v{CS}, v{CS}
              v_and_b32 v{WF}, 0xffff0000, v{WF}
              v_sub_f32 v{WF}, v{CS}, v{WF}
              v_cvt_pk_bf16_f32 v{WF}, v{CS}, v{WF}
              v_and_b32 v13, 31, v1
              v_lshlrev_b32 v13, 2, v13
              s_lshl_b32 s26, s{sW}, 7
              s_add_u32 s26, s26, {XCH3}
              v_add_u32 v13, s26, v13
              ds_write_b32 v13, v{WF}""")
        a("s_waitcnt lgkmcnt(0)")
        garrive(a, 0)
    def cs_collect():
        gwait(a, 0, 16)
        a(f"v_and_b32 v15, 31, v1\nv_lshlrev_b32 v15, 2, v15\nv_add_u32 v15, {XCH3}, v15")
        for t in range(4): a(f"ds_read_b32 v{CSP+t}, v15 offset:{128*t}")
        a("s_waitcnt lgkmcnt(0)")
    hops = lambda ts: {}
    woff = None
    poll(a, 11, 14)
    stamp(a, 5)
    STL = [WF + 24, WF + 26, WF + 28, WF + 30, TMP + 8, TMP + 10, 14]; ST = STL[0]
    LA = opt("la3", 12)
    def xl(u):
        g = A()
        g(f"buffer_load_dwordx4 {v(XR+4*u,4)}, v7, {s(WD,4)}, s{sKA} offen offset:{(u&3)*1024}{SC}")
        if (u & 3) == 3 and u < 27: wrapinc(g, sKA, 4096, 7*4096)
        return g.l
    for u in range(LA):
        for x in xl(u): a(x)
        if u == 3:
            for i in range(7): a(f"buffer_load_dwordx2 {v(STL[i],2)}, v12, {s(WD,4)}, s27 offen offset:{i*256}{SC}")
            for i in range(14): a(f"buffer_load_dword v{CS+i}, v6, {s(WD,4)}, s{sK3} offen offset:{i*256}{SC}")
    M0_, M1_, R, DEN = TMP+4, TMP+5, TMP+6, TMP+7
    f = A()
    for i in range(1, 7): f(f"v_add_f32 v{ST}, v{ST}, v{STL[i]}\nv_add_f32 v{ST+1}, v{ST+1}, v{STL[i]+1}")
    f(f"v_mov_b32 v12, v{ST}\nv_mov_b32 v13, v{ST+1}")
    half_sum(f, 12, 8); half_sum(f, 13, 9)
    f(f"""v_mul_f32 v12, {fb(1/448)}, v12
          v_mul_f32 v13, {fb(1/448)}, v13
          v_fma_f32 v13, -v12, v12, v13
          v_max_f32 v13, 0, v13
          v_add_f32 v13, {fb(EPS)}, v13
          v_sqrt_f32 v{DEN}, v13
          v_rsq_f32 v{R}, v13""")
    mu_frag(f, 12, "-1", M0_, M1_)
    gelu_consts(f, R, DEN)
    f(f"""s_mul_i32 s{sK}, s{sT3}, 112
          s_lshl_b32 s27, s{sCB3}, 3
          s_add_u32 s{sK}, s{sK}, s27
          s_lshl_b32 s{sK}, s{sK}, 10
          s_add_u32 s{sK}, s{sK}, {HHF}
          s_add_u32 s27, s{sK}, 4096""")
    for i in range(1, 14): f(f"v_add_f32 v{CS}, v{CS}, v{CS+i}")
    half_sum(f, CS, 8)
    f(f"""v_cvt_pk_bf16_f32 v11, v{CS}, v{CS}
          v_and_b32 v11, 0xffff0000, v11
          v_sub_f32 v11, v{CS}, v11
          v_cvt_pk_bf16_f32 v11, v{CS}, v11
          s_lshl_b32 s26, s{sW}, 7
          s_add_u32 s26, s26, {XCH3}
          v_and_b32 v13, 31, v1
          v_lshl_add_u32 v13, v13, 2, s26""")
    NA = 2
    t1 = ((0,) if CSG else (0, 4)) + tuple(range(1, NA)); t2_ = tuple(range(NA, 4))
    pre = hops(t1); pre["fill0"] = 4*len(t1) + 1; pre["G"] = opt("g3g", 1)
    for s_ in range(28):
        issued = min(28, LA + s_)
        pre[("s", s_)] = [f"s_waitcnt vmcnt({issued - 1 - s_ + (21 if s_ < 4 else 0)})"]
        if LA + s_ < 28: pre[("t", s_)] = xl(LA + s_)
        if opt("g3s", 0) and common.STAMPS and s_ in (0, 8, 16, 27):
            g = A(); common.stamp(g, {0: 2, 8: 3, 16: 12, 27: 13}[s_]); pre[("s", s_)] += g.l
    g = A(); g("ds_write_b32 v13, v11"); garrive(g, 0); pre[("m", 53)] = g.l
    pre["fillend"] = 52
    a(f"s_setprio {opt('p3a', 1)}")
    kloop(a, ACC, WF, XR, 2, t1, woff, pre, True, f.l, R=6, D=5, cs=(CS, CSP, 32))
    a(f"s_setprio {opt('pb', 1)}")
    cs_collect()
    stamp(a, 13 if False else 14)
    def gfrag(fr, o):
        return gelu8(ACC + 8*fr, 10, 12, 14, TMP + 8, o) + [f"buffer_store_dwordx4 {v(o,4)}, v0, {s(WD,4)}, s{sK if fr < 4 else 27} offen offset:{(fr&3)*1024}{SC}"]
    assert NA == 2
    garrive(a, 0)
    mean_fix(a, ACC, WF, lambda t: CSP + t, M0_, M1_, tuple(range(NA)))
    srd(a, WA, 18, 1792 * 896)
    a(f"""v_lshrrev_b32 v8, 3, v1
          v_bfe_u32 v9, v1, 4, 1
          v_lshlrev_b32 v9, 2, v9
          v_and_b32 v7, 7, v1
          v_xor_b32 v9, v9, v7
          v_mul_u32_u24 v8, 896, v8
          v_lshl_add_u32 v7, v9, 4, v8
          s_and_b32 s3, s2, 1
          s_mul_i32 s3, s3, 56
          s_add_u32 s3, s3, s{sW}
          s_mul_i32 s3, s3, {16*896}
          s_lshl_b32 s26, s{sCB}, 7
          s_add_u32 s3, s3, s26
          v_add_u32 v7, s3, v7                   ; W4 voffset
          s_mul_i32 s{sK3}, s{sCB}, {8*16*896*ROT}""")
    def w4step(g, j):
        for u in range(2):
            g(f"s_add_u32 m0, s{sL}, {j*8192 + u*1024}\ns_add_u32 s3, s{sK3}, {u*8*896}\nbuffer_load_dwordx4 v7, {s(WA,4)}, s3 offen lds")
        wrapinc(g, sK3, 4*16*896, 896*896)
    nov = opt("nov", 4)
    pre = {}
    W4S = opt("w4s", 3)
    W4E = opt("w4e", 0)
    g = A(); g.uid = 2000; gwait(g, 0, 20); pre[("s", W4S if W4E else 26)] = g.l
    for j in range(W4E):
        g = A(); w4step(g, j); pre[("t", W4S + (21 // W4E)*j)] = g.l
    kloop(a, ACC, WF, XR, 2, t2_, woff, pre, True,
          sum((gfrag(fr, WF + 24 + 4*(fr & 1)) for fr in range(nov)), []), R=6, D=5)
    garrive(a, 0)
    mean_fix(a, ACC, WF, lambda t: CSP + t, M0_, M1_, tuple(range(NA if NA < 4 else 0, 4)))
    for fr in range(nov, 8):
        if opt("pkg", 0):
            gelu_pairs(a, [ACC + 8*fr + 2*i for i in range(4)], 10, 12, 14, TMP + 8)
            for i in range(4): a(f"v_cvt_pk_bf16_f32 v{XR+4*fr+i}, v{ACC+8*fr+2*i}, v{ACC+8*fr+2*i+1}")
            a(gfrag(fr, XR + 4*fr)[-1])
        else:
            for x in gfrag(fr, XR + 4*fr): a(x)
    stamp(a, 8)
    ACC, WF, AR, EP = 16, 80, 112, 176
    WOB = 0
    srd(a, WB_, 8, 448 * 896)
    a("s_and_b32 s27, s2, 1")
    gwait(a, 0, B_G3_DONE)
    NP0 = opt("np0", 3)
    for j in range(W4E, W4E + NP0): w4step(a, j)
    a(f"""s_lshl_b32 s3, s{sRB3}, 4
          s_add_u32 s3, s3, s{sCB3}
          s_lshl_b32 s3, s3, 7
          s_add_u32 s{sX}, s3, {F3}
          s_mul_i32 s3, s{sT3}, 112
          s_mul_i32 s26, s27, 56
          s_add_u32 s3, s3, s26
          s_lshl_b32 s3, s3, 10
          s_add_u32 s3, s3, {HHF}
          v_add_u32 v4, s3, v0
          s_mul_i32 s{sKA}, s{sCB}, {8*1024*ROT}
          s_lshl_b32 s26, s{sRB3}, 4
          s_mul_i32 s3, s27, 7
          s_add_u32 s3, s3, s26
          v_add_u32 v10, s3, v1
          v_lshlrev_b32 v10, 7, v10
          v_add_u32 v10, {F3}, v10
          s_lshl_b32 s3, s{sW}, 2
          s_add_u32 s3, s3, s26
          v_and_b32 v14, 3, v1
          v_add_u32 v14, s3, v14
          v_lshlrev_b32 v14, 7, v14
          v_add_u32 v14, {FA}, v14
          s_waitcnt vmcnt({2*NP0})""")
    signal(a, sX, 16)
    stamp(a, 9)
    for j in range(W4E + NP0, 14): w4step(a, j)
    a(f"""s_mul_i32 s3, s27, {896*896}
          s_mul_i32 s26, s{sW}, {96*896}
          s_sub_u32 s3, s26, s3
          v_add_u32 v7, s3, v7""")
    poll(a, 10, 7)
    gbar(a, 0, B_G3_DONE + 4)
    stamp(a, 10)
    LA4, RA = opt("la4", 12), 14
    PB = opt("pb16", 1); NPS = 8 >> PB
    OR_ = lambda u: 168 + 8*u if u < 7 else 240
    PD, EP = AR, AR + 16
    q = []
    def after(tag):
        return len(q) - 1 - max(i for i, x in enumerate(q) if x == tag)
    def al(u):
        a(f"buffer_load_dwordx4 {v(AR + 4*(u % RA), 4)}, v4, {s(WD,4)}, s{sKA} offen offset:{(u&3)*1024}{SC}"); q.append(("a", u))
        if (u & 3) == 3 and u < 55: wrapinc(a, sKA, 4096, 56*1024)
    def rd(m):
        s_, b = m >> 1, m & 1
        if m == 64: a("v_add_u32 v2, 0x10000, v2\nv_add_u32 v3, 0x10000, v3")
        for e in range(2): a(f"ds_read_b64_tr_b16 {v(WF + 4*(m & 7) + 2*e, 2)}, v{2+b} offset:{(s_ & 31)*2048 + e*1024}")
    def wo(u):
        a(f"s_add_u32 m0, s{sM}, {u*1024}\ns_mov_b32 s3, {u*8*896}\nbuffer_load_dwordx4 v7, {s(WB_,4)}, s3 offen lds"); q.append(("w", u))
    def ol(u):
        for aa in range(2):
            a(f"buffer_load_dwordx4 {v(OR_(u)+4*aa,4)}, v{12+aa}, {s(WD,4)}, {'0' if u < 4 else 's%d' % sL} offen offset:{(u&3)*1024}{SC}"); q.append(("o", u))
    for u in range(LA4): al(u)
    a(f"""s_mul_i32 s{sM}, s{sW}, 15360
          s_movk_i32 s{sL}, 4096
          s_lshl_b32 s3, s{sT}, 5
          s_lshl_b32 s26, s{sW}, 3
          s_add_u32 s3, s3, s26
          s_lshl_b32 s3, s3, 10
          s_add_u32 s3, s3, {OF}
          v_add_u32 v12, s3, v0
          v_xor_b32 v13, {32*1024}, v12
          s_setprio {opt('pf', 0)}""")
    D4 = 6
    S_ARR, S_WO, S_FL, S_CHK = 31, opt("swo", 36), opt("sfl", 52), 99
    for m in range(D4): rd(m)
    for m in range(112):
        s_, b = m >> 1, m & 1
        if b == 0: a(f"s_waitcnt vmcnt({after(('a', s_))}) lgkmcnt({2*max(0, min(D4 - 2, 110 - m))})")
        a(f"{MF} {v(ACC+16*b,16)}, {v(WF + 4*(m & 7), 4)}, {v(AR + 4*(s_ % RA), 4)}, {'0' if s_ == 0 else v(ACC+16*b,16)}")
        if m + D4 < 112: rd(m + D4)
        if b == 1:
            if LA4 + s_ < 56: al(LA4 + s_)
            if s_ == S_ARR: garrive(a, 0)
            if s_ == S_WO: gwait(a, 0, B_G3_DONE + 8)
            if S_WO <= s_ < S_WO + 15: wo(s_ - S_WO)
            if s_ == S_FL:
                a(f"buffer_load_dword v15, v14, {s(WD,4)}, 0 offen sc1"); q.append("f")
    a(f"s_setprio {opt('pb', 1)}")
    stamp(a, 11)
    a(f"""s_lshl_b32 s{sX}, s2, 7
          s_add_u32 s{sX}, s{sX}, {FQ}
          s_lshl_b32 s3, s{sFT}, 6
          s_add_u32 s26, s{sM}, 0xffff0000
          v_xor_b32 v2, s3, v2
          v_xor_b32 v3, s3, v3
          v_add_u32 v2, s26, v2
          v_add_u32 v3, s26, v3
          s_xor_b32 s3, s{sRB}, 1
          s_mul_i32 s3, s3, 7
          s_add_u32 s3, s3, s{sCB}
          s_lshl_b32 s3, s3, 1
          s_and_b32 s26, s{sW}, 1
          s_add_u32 s3, s3, s26
          s_lshl_b32 s3, s3, {13 - PB}
          s_add_u32 s3, s3, {PART}
          s_cmp_eq_u32 s{sFT}, 0
          s_cselect_b32 s3, {OOB}, s3
          s_add_u32 s26, s3, 4096""")
    woff2 = lambda u: (28*(u >> 1) + 16*(u & 1)) * 128
    if PB:
        for i in range(16):
            a(f"v_cvt_pk_bf16_f32 v{AR+i}, v{ACC+2*i}, v{ACC+2*i+1}")
            if (i & 3) == 3: a(f"buffer_store_dwordx4 {v(AR+i-3,4)}, v0, {s(WD,4)}, s3 offen offset:{(i>>2)*1024}{SC}")
    else:
        for i in range(8): a(f"buffer_store_dwordx4 {v(ACC+4*i,4)}, v0, {s(WD,4)}, s{3 if i < 4 else 26} offen offset:{(i&3)*1024}{SC}")
    a(f"""s_mov_b32 s{sKA}, 0
          s_waitcnt vmcnt({NPS})
          v_cmp_eq_u32 vcc, 0, v15
          s_cbranch_vccz B_oready
          s_waitcnt vmcnt(0)""")
    signal(a, sX, C_SQ)
    a(f"s_mov_b32 s{sKA}, 1")
    poll(a, 14, 4)
    a.label("B_oready")
    for u in range(8): ol(u)
    stamp(a, 15)
    for u in range(3): wreads(a, WF, u, woff2(u))
    a(f"""s_mul_i32 s27, s{sRB}, 7
          s_add_u32 s27, s27, s{sCB}
          s_lshl_b32 s27, s27, 1
          s_and_b32 s26, s{sW}, 1
          s_add_u32 s27, s27, s26
          s_lshl_b32 s27, s27, 1
          s_add_u32 s27, s27, s{sFT}
          s_lshl_b32 s27, s27, {12 - PB}
          s_add_u32 s{sK}, s27, {PART}
          s_xor_b32 s3, s2, 1
          s_lshl_b32 s3, s3, 7
          s_add_u32 s3, s3, {FQ}
          v_mov_b32 v14, s3
          s_cmp_eq_u32 s{sFT}, 0
          s_cbranch_scc1 B_keep""")
    for i in range(32): a(f"v_mov_b32 v{ACC+i}, 0")
    a.label("B_keep")
    a(f"s_waitcnt vmcnt(16)\ns_cmp_lg_u32 s{sKA}, 0\ns_cbranch_scc1 B_sigd")
    signal(a, sX, C_SQ)
    a.label("B_sigd")
    for u in range(8):
        a(f"s_waitcnt vmcnt({2*(7 - u)}) lgkmcnt({4*min(2, 7 - u)})")
        for aa in range(2):
            for b in range(2):
                j = 2*aa + b
                a(f"{MF} {v(ACC+16*j,16)}, {v(WF+8*(u&3)+4*b,4)}, {v(OR_(u)+4*aa,4)}, {'0' if (u == 0 and aa) else v(ACC+16*j,16)}")
        if u + 3 < 8: wreads(a, WF, (u+3) & 3, woff2(u+3))
    a(f"buffer_load_dword v15, v14, {s(WD,4)}, 0 offen sc1")
    if opt("ts", 0): stamp(a, 2)
    def region3(d, j):
        a(f"s_xor_b32 s{d}, s{sW}, {(j >> 1) + 2*(j & 1)}\ns_mul_i32 s{d}, s{d}, 15360\ns_add_u32 s{d}, s{d}, {WOB}")
    srd(a, XS, 20, 2048 * 896)
    OSC = ["", " sc1", " nt"][opt("osc", 2)]
    OT = WOB + 4*15360
    a(f"""v_and_b32 v4, 31, v1
          s_and_b32 s26, s{sW}, 1
          s_lshl_b32 s26, s26, 5
          v_add_u32 v4, s26, v4
          v_mul_u32_u24 v4, 144, v4
          v_lshrrev_b32 v9, 5, v1
          v_lshl_add_u32 v4, v9, 3, v4
          s_lshl_b32 s26, s{sFT}, 6
          s_add_u32 s26, s26, {OT}
          v_add_u32 v4, s26, v4
          v_lshrrev_b32 v6, 3, v1
          s_lshl_b32 s26, s{sW}, 4
          v_add_u32 v6, s26, v6
          v_and_b32 v9, 7, v1
          v_mul_u32_u24 v5, 144, v6
          v_lshl_add_u32 v5, v9, 4, v5
          v_add_u32 v5, {OT}, v5
          v_mul_u32_u24 v6, 896, v6
          v_lshl_add_u32 v6, v9, 4, v6
          s_mul_i32 s27, s{sRB}, {64*896}
          s_lshl_b32 s26, s{sCB}, 7
          s_add_u32 s27, s27, s26
          s_add_u32 s{sX}, s27, {8*896}""")
    def fetch_partial():
        a("s_waitcnt vmcnt(0)\nv_cmp_eq_u32 vcc, 0, v15\ns_cbranch_vccz B_pready")
        poll(a, 14, 1)
        a.label("B_pready")
        for i in range(4 >> PB): a(f"buffer_load_dwordx4 {v(PD+16*PB+4*i,4)}, v0, {s(WD,4)}, s{sK} offen offset:{i*1024}{SC}")
    reduce3(a, ACC, sM, region3, 0, B_G3_DONE + 12, True, fetch_partial)
    if opt("ts", 0): stamp(a, 3)
    for i in range(16): a(f"v_add_f32 v{ACC+i}, v{ACC+i}, v{RES+i}")
    a("s_waitcnt vmcnt(0)")
    if PB: unpack(a, PD, PD + 16, 8)
    for i in range(16): a(f"v_add_f32 v{ACC+i}, v{ACC+i}, v{PD+i}")
    if opt("ts", 0): stamp(a, 12)
    for i in range(8): a(f"v_cvt_pk_bf16_f32 v{EP+i}, v{ACC+2*i}, v{ACC+2*i+1}")
    for j in range(4): a(f"ds_write_b64 v4, {v(EP+2*j,2)} offset:{16*j}")
    gbar(a, 0, B_G3_DONE + 16)
    if opt("ts", 0): stamp(a, 13)
    a(f"""ds_read_b128 {v(EP,4)}, v5
          ds_read_b128 {v(EP+4,4)}, v5 offset:{8*144}
          s_waitcnt lgkmcnt(1)
          buffer_store_dwordx4 {v(EP,4)}, v6, {s(XS,4)}, s27 offen{OSC}
          s_waitcnt lgkmcnt(0)
          buffer_store_dwordx4 {v(EP+4,4)}, v6, {s(XS,4)}, s{sX} offen{OSC}""")
    stamp_out2(a)
    a("s_endpgm")

def stamp_out2(a):
    if not common.STAMPS: return
    a("s_waitcnt vmcnt(0)")
    common.stamp(a, 6); common.stamp(a, 7, True)
    a("s_waitcnt lgkmcnt(0)")
    for i in range(16): a(f"v_mov_b32 v{16+i}, s{64+2*i}")
    a(f"""s_lshl_b32 s3, s2, 3
          s_add_u32 s3, s3, s60
          s_lshl_b32 s3, s3, 6
          s_add_u32 s3, s3, {TS}
          v_mov_b32 v8, 0""")
    for j in range(4): a(f"buffer_store_dwordx4 v[{16+4*j}:{19+4*j}], v8, {s(WD,4)}, s3 offen offset:{16*j}")

def p1stamps():
    return common.STAMPS and opt("p1s", 0)

def build(name):
    a = A()
    a.label("K_start")
    a("s_cmp_ge_u32 s2, 256\ns_cbranch_scc1 K_end")
    load_args(a)
    a(f"""v_and_b32 v1, 63, v0
          v_lshrrev_b32 v8, 6, v0
          s_mov_b32 s59, {fb(2.0**100)}
          v_readfirstlane_b32 s60, v8
          v_lshlrev_b32 v0, 4, v1
          s_and_b32 s{sW}, s60, 3
          s_cmp_ge_u32 s60, 4
          s_cbranch_scc1 K_roleb""")
    p1a(a)
    att(a)
    a.label("K_roleb")
    p1b(a)
    roleb(a)
    a.label("K_end")
    a("s_endpgm")
    a.label("K_last")
    return a

if __name__ == "__main__":
    if "stamp" in sys.argv[1]: common.STAMPS = True
    name = "parallel_sum__mha_block__mixer_s_mlp__prompt_kernel"
    HDR = open("parallel_sum__mha_block__mixer_s_mlp__prompt.s.ref").read().split("; Override launch")[0]
    out = HDR + "; @launch grid=(256,1,1) block=(512,1,1) lds=163840\n" + '.amdgcn_target "amdgcn-amd-amdhsa--gfx950"\n'
    out += kernel_head(name) + build(name).text() + kernel_desc(name, vgpr=256, sgpr=100)
    open(sys.argv[1], "w").write(out)
```

```python
import sys
import common
from common import *

FLG = 0x1550000
FP, F2, F3, FA, FQ = FLG, FLG + 0x8000, FLG + 0x10000, FLG + 0x18000, FLG + 0x20000
NINIT = 20
PART = 0x1600000
WS_END = 0x1A00000
sFT = 52
CS3P = 0x800000
XS, WA, WD, WB_ = 28, 32, 36, 40
sW, sSPIN = 46, 58
SC = " sc1"
CNT = 156 * 1024
C_B, C_A, C_S1, C_S2, C_S3, C_SA, C_W, C_X, C_SQ = 0, 4, 8, 12, 16, 20, 24, 28, 32
SPIN_MAX = 1 << 16
import os
OPT = dict(x.split("=") for x in os.environ.get("MKOPT", "").split(",") if x)
def opt(k, d): return int(OPT.get(k, d))
SLEEP = opt("sleep", 1)
DEBUG = "dbg" in sys.argv[1] if len(sys.argv) > 1 else False


def poll(a, vaddr, nlanes, srdreg=WD, soff="0"):
    L, D = a.newlabel("PL"), a.newlabel("PD")
    a(f"s_mov_b32 s{sSPIN}, {SPIN_MAX}")
    a(f"s_mov_b64 exec, {(1 << nlanes) - 1}" if nlanes <= 6 else f"s_bfm_b64 exec, {nlanes}, 0")
    a.label(L)
    a(f"""buffer_load_dword v9, v{vaddr}, {s(srdreg,4)}, {soff} offen sc1
          s_waitcnt vmcnt(0)
          v_cmp_eq_u32 vcc, 0, v9
          s_cbranch_vccz {D}
          s_sleep {SLEEP}
          s_sub_u32 s{sSPIN}, s{sSPIN}, 1
          s_cmp_lg_u32 s{sSPIN}, 0
          s_cbranch_scc1 {L}""")
    a.label(D)
    a("s_mov_b64 exec, -1")

SCB = "" if opt("local", 0) else " sc1"
def signal(a, soff, cnt, sc=" sc1", last=3):
    a(f"""s_mov_b64 exec, 1
          v_mov_b32 v8, {CNT + cnt}
          v_mov_b32 v9, 1
          ds_add_rtn_u32 v8, v8, v9
          s_waitcnt lgkmcnt(0)
          v_readfirstlane_b32 s26, v8
          v_mov_b32 v8, 0
          s_cmp_eq_u32 s26, {last}
          s_cselect_b32 s26, s{soff}, {OOB}
          buffer_store_dword v9, v8, {s(WD,4)}, s26 offen{sc}
          s_mov_b64 exec, -1""")

def garrive(a, off, field=0):
    a(f"""s_mov_b64 exec, 1
          v_mov_b32 v8, {CNT + off}
          v_mov_b32 v9, {1 << (4*field)}
          ds_add_u32 v8, v9
          s_mov_b64 exec, -1""")

def gwait(a, off, target, va=8, sr=3, field=None):
    L, D = a.newlabel("GL"), a.newlabel("GD")
    a(f"s_mov_b32 s{sSPIN}, {SPIN_MAX * 8}\nv_mov_b32 v{va}, {CNT + off}")
    a.label(L)
    a(f"""ds_read_b32 v{va+1}, v{va}
          s_sub_u32 s{sSPIN}, s{sSPIN}, 1
          s_cbranch_scc1 {D}
          s_waitcnt lgkmcnt(0)
          v_readfirstlane_b32 s{sr}, v{va+1}
          {"" if field is None else f"s_bfe_u32 s{sr}, s{sr}, {0x40000 + 4*field}"}
          s_cmp_lt_u32 s{sr}, {target}
          s_cbranch_scc1 {L}""")
    a.label(D)
    a("s_waitcnt lgkmcnt(0)")

def gbar(a, off, target):
    a("s_waitcnt lgkmcnt(0)")
    garrive(a, off); gwait(a, off, target)

def kloop(a, ACC, WF, XR, vA, tiles, offs, pre, perm, fill=(), R=8, D=6, cs=None):
    ops = [(s_, t) for s_ in range(28) for t in (tiles if s_ < 27 else pre.get("lastorder", tiles))]
    N = len(ops); fill = list(fill); done = 0
    def rd(m):
        s_, t = ops[m]
        if (s_ & 3) == 0 and t == tiles[0]:
            for x in pre.get(s_ >> 2, []): a(x)
        for e in range(2):
            row = 16 * (s_ & 3) + (8 * e if perm else 4 * e)
            a(f"ds_read_b64_tr_b16 {v(WF + 4*(m % R) + 2*e, 2)}, v{vA+t} offset:{offs(s_ >> 2) + row*256 if offs else s_*2048 + e*1024}")
    for m in range(D): rd(m)
    f0 = pre.get("fill0", 1)
    per = max(1, -(-len(fill) // (pre.get("fillend", N - 1) - f0)))
    for m, (s_, t) in enumerate(ops):
        if (s_ & 3) == 0 and t == tiles[0]:
            for x in pre.get(("x", s_ >> 2), []): a(x)
        if t == tiles[0]:
            for x in pre.get(("s", s_), []): a(x)
        G = pre.get("G", 1)
        if m % G == 0: a(f"s_waitcnt lgkmcnt({2*max(0, min(D - G, N - G - m))})")
        if t < 4: a(f"{MF} {v(ACC+16*t,16)}, {v(WF + 4*(m % R), 4)}, {v(XR(s_) if callable(XR) else XR+4*s_,4)}, {'0' if s_ == 0 else v(ACC+16*t,16)}")
        elif len(cs) == 3: a(f"{MF} {v(cs[0],16)}, {v(cs[1],4)}, {v(WF + 4*(m % R), 4)}, {'0' if s_ == 0 else v(cs[0],16)}")
        else: a(f"v_mfma_f32_16x16x32_bf16 {v(cs[0],4)}, {v(cs[1],4)}, {v(WF + 4*(m % R), 4)}, {'0' if s_ == 0 else v(cs[0],4)}")
        if m + D < N: rd(m + D)
        if (s_ & 3) == 0 and t == tiles[0]:
            for x in pre.get(("y", s_ >> 2), []): a(x)
        if t == tiles[min(1, len(tiles) - 1)]:
            for x in pre.get(("t", s_), []): a(x)
        for x in pre.get(("m", m), []): a(x)
        if m >= f0:
            for x in fill[done:done + per]: a(x)
            done += per
    for x in fill[done:]: a(x)

def kburst(a, ACC, WF, XR, vA, offs, pre, fill=()):
    fill = list(fill); per = -(-len(fill) // 26); done = 0
    def rd(s_):
        if (s_ & 3) == 0:
            for x in pre.get(s_ >> 2, []): a(x)
        for t in range(4):
            for e in range(2):
                a(f"ds_read_b64_tr_b16 {v(WF + 16*(s_ & 1) + 4*t + 2*e, 2)}, v{vA+t} offset:{offs(s_ >> 2) + (16*(s_ & 3) + 8*e)*256}")
    rd(0); rd(1)
    for s_ in range(28):
        if (s_ & 3) == 0:
            for x in pre.get(("x", s_ >> 2), []): a(x)
        a(f"s_waitcnt lgkmcnt({8 if s_ < 27 else 0})")
        for t in range(4):
            a(f"{MF} {v(ACC+16*t,16)}, {v(WF + 16*(s_ & 1) + 4*t, 4)}, {v(XR+4*s_,4)}, {'0' if s_ == 0 else v(ACC+16*t,16)}")
        if s_ + 2 < 28: rd(s_ + 2)
        if s_:
            for x in fill[done:done + per]: a(x)
            done += per

def tr_addrs(a, vA, sTS, base, perm, which=(0, 1, 2, 3, 4)):
    a(f"""v_lshrrev_b32 v8, 5, v1
          v_bfe_u32 v9, v1, 2, 2
          v_bfe_u32 v10, v1, 4, 1
          v_and_b32 v11, 3, v1
          v_lshl_add_u32 v10, v10, 2, v11
          v_lshl_add_u32 v8, v8, {2 if perm else 3}, v9
          v_lshlrev_b32 v8, 8, v8
          v_add_u32 v8, {base}, v8
          v_lshlrev_b32 v9, 2, v9""")
    for t in which:
        a(f"s_mul_i32 s26, {sTS}, {t}" if t < 4 else f"s_mul_i32 s26, {sTS}, s{sW}")
        a(f"""v_add_u32 v11, s26, v10
              v_lshrrev_b32 v12, 1, v11
              v_add_u32 v12, v12, v9
              v_and_b32 v12, 15, v12
              v_and_b32 v11, 1, v11
              v_lshlrev_b32 v11, 3, v11
              v_lshl_add_u32 v11, v12, 4, v11
              v_add_u32 v{vA+t}, v8, v11""")

def cs_publish(a, CS, T, xch):
    a(f"""v_cvt_pk_bf16_f32 v{T}, v{CS}, v{CS}
          v_and_b32 v{T+1}, 0xffff0000, v{T}
          v_sub_f32 v{T+1}, v{CS}, v{T+1}
          v_cvt_pk_bf16_f32 v{T}, v{CS}, v{T+1}
          v_and_b32 v10, 31, v1
          v_lshlrev_b32 v10, 2, v10
          v_add_u32 v10, {xch}, v10
          s_lshl_b32 s26, s{sW}, 7
          v_add_u32 v9, s26, v10
          ds_write_b32 v9, v{T}""")

def mean_fix(a, ACC, T, src, vMU0, vMU1, tiles=(0, 1, 2, 3)):
    n = len(tiles)
    a(f"v_mov_b32 v{T+4*n}, v{vMU0}\nv_mov_b32 v{T+4*n+1}, v{vMU1}\nv_mov_b32 v{T+4*n+2}, 0\nv_mov_b32 v{T+4*n+3}, 0")
    for i, t in enumerate(tiles):
        if src(t) != T + 4*i: a(f"v_mov_b32 v{T+4*i}, v{src(t)}")
        a(f"v_and_b32 v{T+4*i+1}, 0xffff, v{src(t)}\nv_mov_b32 v{T+4*i+2}, 0\nv_mov_b32 v{T+4*i+3}, 0")
    for i, t in enumerate(tiles): a(f"{MF} {v(ACC+16*t,16)}, {v(T+4*i,4)}, {v(T+4*n,4)}, {v(ACC+16*t,16)}")

def mu_frag(a, vmu, lo_en, d0, d1):
    a(f"""v_cvt_pk_bf16_f32 v{d0}, -v{vmu}, -v{vmu}
          v_and_b32 v8, 0xffff0000, v{d0}
          v_sub_f32 v8, -v{vmu}, v8
          v_cvt_pk_bf16_f32 v{d1}, v8, 0
          v_and_b32 v{d1}, {lo_en}, v{d1}
          v_lshrrev_b32 v8, 5, v1
          v_add_u32 v8, -1, v8
          v_and_b32 v{d0}, v8, v{d0}
          v_and_b32 v{d1}, v8, v{d1}""")

def gelu_consts(a, R, DEN):
    a(f"""v_mul_f32 v10, {fb(GK1)}, v{R}
          v_mul_f32 v12, v{R}, v{R}
          v_mul_f32 v12, v12, v{R}
          v_mul_f32 v12, {fb(GK2)}, v12
          v_mov_b32 v14, v{DEN}""")

def gelu8(regs0, K1, K2, IS, T, out):
    L = []
    for i in range(8): L.append(f"v_mul_f32 v{T+i}, v{regs0+i}, v{regs0+i}")
    for i in range(8): L.append(f"v_fma_f32 v{T+i}, v{T+i}, v{K2}, v{K1}")
    for i in range(8): L.append(f"v_mul_f32 v{T+i}, v{T+i}, v{regs0+i}")
    for i in range(8): L.append(f"v_exp_f32 v{T+i}, v{T+i}")
    for i in range(8): L.append(f"v_fma_f32 v{T+i}, v{T+i}, v{IS}, v{IS}")
    for i in range(8): L.append(f"v_rcp_f32 v{T+i}, v{T+i}")
    for i in range(8): L.append(f"v_mul_f32 v{T+i}, v{T+i}, v{regs0+i}")
    for i in range(4): L.append(f"v_cvt_pk_bf16_f32 v{out+i}, v{T+2*i}, v{T+2*i+1}")
    return L

def wrapinc(a, sreg, step, lim):
    a(f"s_add_u32 s{sreg}, s{sreg}, {step}\ns_cmp_eq_u32 s{sreg}, {lim}\ns_cselect_b32 s{sreg}, 0, s{sreg}")

def reduce3(a, ACC, sM, region, cnt_off, target, xor, mid=None):
    a(f"v_add_u32 v10, s{sM}, v0")
    for j in range(1, 4):
        for i in range(4): a(f"ds_write_b128 v10, {v(ACC+16*j+4*i,4)} offset:{(j-1)*4096 + i*1024}")
    for j in range(1, 4):
        region(26, j)
        a(f"v_add_u32 v{10+j}, s26, v0")
    gbar(a, cnt_off, target)
    if mid: mid()
    for j in range(1, 4):
        for i in range(4): a(f"ds_read_b128 {v(ACC+16*j+4*i,4)}, v{10+j} offset:{(j-1)*4096 + i*1024}")
    for j in range(1, 4):
        a(f"s_waitcnt lgkmcnt({4*(3-j)})")
        for i in range(16): a(f"v_add_f32 v{ACC+i}, v{ACC+i}, v{ACC+16*j+i}")

def reduce3c(a, ACC, sM, region, cnt_off, target):
    BL = 3712
    a(f"""v_add_u32 v10, s{sM}, v0
          v_lshlrev_b32 v14, 2, v1
          v_add_u32 v14, {3584 - 128}, v14
          v_add_u32 v15, s{sM}, v14""")
    for j in range(1, 4):
        for i in range(3): a(f"ds_write_b128 v10, {v(ACC+16*j+4*i,4)} offset:{(j-1)*BL + i*1024}")
    a("s_mov_b64 exec, 0xffffffff")
    for j in range(1, 4): a(f"ds_write_b128 v10, {v(ACC+16*j+12,4)} offset:{(j-1)*BL + 3072}")
    a("s_not_b64 exec, exec")
    for j in range(1, 4): a(f"ds_write_b32 v15, v{ACC+16*j+12} offset:{(j-1)*BL}")
    a("s_mov_b64 exec, -1")
    for j in range(1, 4):
        region(26, j)
        a(f"v_add_u32 v{10+j}, s26, v0\nv_add_u32 v{4+j}, s26, v14")
    gbar(a, cnt_off, target)
    a("s_mov_b64 exec, 0xffffffff")
    for j in range(1, 4): a(f"ds_read_b128 {v(ACC+16*j+12,4)}, v{10+j} offset:{(j-1)*BL + 3072}")
    a("s_not_b64 exec, exec")
    for j in range(1, 4): a(f"ds_read_b32 v{ACC+16*j+12}, v{4+j} offset:{(j-1)*BL}")
    a("s_mov_b64 exec, -1")
    for j in range(1, 4):
        for i in range(3): a(f"ds_read_b128 {v(ACC+16*j+4*i,4)}, v{10+j} offset:{(j-1)*BL + i*1024}")
    for j in range(1, 4):
        a(f"s_waitcnt lgkmcnt({3*(3-j)})")
        for i in range(16): a(f"v_add_f32 v{ACC+i}, v{ACC+i}, v{ACC+16*j+i}")

def unpack(a, dst, src, n):
    for i in range(n):
        a(f"v_lshlrev_b32 v{dst+2*i}, 16, v{src+i}\nv_and_b32 v{dst+2*i+1}, 0xffff0000, v{src+i}")

NBAR_P1 = 10
XB = 112 * 1024
XCH = XB + 16384
def p1a(a):
    a(f"s_setprio {opt('pa1', 2)}")
    ACC, CS, WF, XR, TMP = 16, 80, 96, 136, 248
    sRB, sCB, sTY, sSUB, sTS, sLO, sT = 44, 45, 47, 48, 50, 55, 56
    a(f"""s_and_b32 s26, s2, 7
          s_lshr_b32 s27, s2, 3
          s_lshr_b32 s{sRB}, s26, 1
          s_lshl_b32 s{sRB}, s{sRB}, 2
          s_and_b32 s3, s27, 3
          s_add_u32 s{sRB}, s{sRB}, s3
          s_and_b32 s{sCB}, s26, 1
          s_lshl_b32 s{sCB}, s{sCB}, 3
          s_lshr_b32 s3, s27, 2
          s_add_u32 s{sCB}, s{sCB}, s3
          s_lshr_b32 s{sTY}, s{sCB}, 2
          s_and_b32 s{sSUB}, s{sCB}, 3
          s_cmp_eq_u32 s{sTY}, 3
          s_cselect_b32 s{sTS}, 8, 7
          s_cselect_b32 s{sLO}, -1, 0
          s_lshl_b32 s{sT}, s{sRB}, 2
          s_add_u32 s{sT}, s{sT}, s{sW}""")
    tr_addrs(a, 2, f"s{sTS}", 0, perm=False)
    a(f"""v_and_b32 v8, 15, v1
          v_bfe_u32 v9, v1, 4, 1
          v_cmp_eq_u32 vcc, v8, v9
          v_mov_b32 v8, 0x3f803f80
          v_cndmask_b32 v{CS+4}, 0, v8, vcc
          v_mov_b32 v{CS+5}, v{CS+4}
          v_mov_b32 v{CS+6}, v{CS+4}
          v_mov_b32 v{CS+7}, v{CS+4}
          v_and_b32 v8, 31, v1
          v_lshrrev_b32 v9, 5, v1
          v_bfe_u32 v10, v1, 1, 3
          v_xor_b32 v9, v9, v10
          v_lshlrev_b32 v8, 7, v8
          v_lshl_add_u32 v8, v9, 4, v8
          s_lshl_b32 s3, s{sW}, 12
          s_add_u32 s3, s3, {XB}
          v_add_u32 v{CS+8}, s3, v8
          v_xor_b32 v{CS+9}, 32, v{CS+8}
          v_xor_b32 v{CS+10}, 64, v{CS+8}
          v_xor_b32 v{CS+11}, 96, v{CS+8}
          s_waitcnt lgkmcnt(0)""")
    srd(a, WD, 24, WS_END)
    ONE = TMP
    M0_, M1_, R, DEN = TMP+4, TMP+5, TMP+6, TMP+7
    a(f"""v_and_b32 v10, 31, v1
          v_lshlrev_b32 v10, 2, v10
          v_add_u32 v10, {XCH}, v10
""")
    stamp(a, 12)
    pre = {}
    for c in range(7):
        pre[c] = ["s_barrier"] + [f"ds_read_b128 {v(XR + 16*(c&1) + 4*i, 4)}, v{CS+8+i} offset:{(c % 3)*16384}" for i in range(4)]
        if opt("sqv", 0) == 0:
            pre[("y", c)] = [f"v_dot2_f32_bf16 v{12+(i&1)}, v{XR+16*(c&1)+i}, v{XR+16*(c&1)+i}, {'0' if c == 0 and i < 2 else 'v%d' % (12+(i&1))}" for i in range(16)]
    sq = []
    if opt("sqv", 0):
        a("v_mov_b32 v12, 0\nv_mov_b32 v13, 0")
        for s_ in range(28):
            for i in range(4):
                r_ = XR + 16*((s_ >> 2) & 1) + 4*(s_ & 3) + i
                pre[("m", 5*s_ + 1 + i)] = [f"v_lshlrev_b32 v14, 16, v{r_}", f"v_and_b32 v15, 0xffff0000, v{r_}", "v_fmac_f32 v12, v14, v14", "v_fmac_f32 v13, v15, v15"]
    if common.STAMPS:
        for c, st in ((0, 2), (1, 13), (3, 3)):
            g = A(); stamp(g, st); pre[c] = pre[c][:1] + g.l + pre[c][1:]
    pre[4] += [f"v_add_u32 v{2+t}, 0x10000, v{2+t}" for t in range(5)]
    pre["G"] = opt("p1g", 1); pre["lastorder"] = (3, 4, 0, 1, 2)
    kloop(a, ACC, WF, lambda s_: XR + 16*((s_ >> 2) & 1) + 4*(s_ & 3), 2, (0, 4, 1, 2, 3), lambda c: (c & 3) * 16384, pre, False, [], R=8, D=opt("p1d", 5), cs=(CS, CS+4))
    stamp(a, 4)
    for i in range(2):
        a(f"""v_cvt_pk_bf16_f32 v{WF+i}, v{CS+i}, v{CS+i}
              v_and_b32 v{WF+i}, 0xffff0000, v{WF+i}
              v_sub_f32 v{WF+i}, v{CS+i}, v{WF+i}
              v_cvt_pk_bf16_f32 v{WF+i}, v{CS+i}, v{WF+i}""")
    a(f"""s_lshl_b32 s26, s{sW}, 7
          v_add_u32 v11, s26, v10
          s_mov_b64 exec, 0xffff
          ds_write2_b32 v11, v{WF}, v{WF+1} offset1:16
          s_mov_b64 exec, -1
          v_mov_b32 v14, v{ACC+48+12}
          v_mov_b32 v15, v{ACC+48+12}
          v_add_f32 v13, v12, v13
          v_permlane32_swap_b32 v15, v14
          v_mov_b32 v12, v13
          v_permlane32_swap_b32 v13, v12
          v_add_f32 v13, v13, v12
          v_mul_f32 v12, {fb(1/448)}, v14
          v_mul_f32 v13, {fb(1/448)}, v13
          v_fma_f32 v13, -v12, v12, v13
          v_max_f32 v13, 0, v13""")
    bf16r(a, 15, "v13")
    a(f"""v_add_f32 v9, {fb(EPS)}, v13
          v_add_f32 v15, {fb(EPS)}, v15
          v_mov_b32 v14, {fb(EPS)}
          v_fma_f32 v9, v9, v14, v13""")
    bf16r(a, 15, "v15")
    a(f"""v_sqrt_f32 v9, v9
          v_sqrt_f32 v15, v15
          s_waitcnt lgkmcnt(0)
          s_barrier                              ; barrier 7""")
    stamp(a, 14)
    for t in range(4): a(f"ds_read_b32 v{WF+4*t}, v10 offset:{128*t}")
    mu_frag(a, 12, f"s{sLO}", M0_, M1_)
    a(f"v_mov_b32 v14, s{sLO}")
    bf16r(a, 15, "v15")
    bf16r(a, 10, "v12")
    a(f"""v_bfi_b32 v{DEN}, v14, v9, v15
          v_rcp_f32 v{R}, v{DEN}
          s_waitcnt lgkmcnt(0)""")
    mean_fix(a, ACC, WF, lambda t: WF + 4*t, M0_, M1_)
    a(f"""
          s_lshl_b32 s3, s{sT}, 8
          s_add_u32 s3, s3, {ST1}
          s_cmp_eq_u32 s{sCB}, 0
          s_cselect_b32 s3, s3, {OOB}
          v_lshlrev_b32 v8, 3, v1
          v_and_b32 v8, 0xff, v8
          v_mov_b32 v11, v{R}
          buffer_store_dwordx2 v[10:11], v8, {s(WD,4)}, s3 offen{SC}""")
    a(f"""v_lshrrev_b32 v8, 5, v1
          v_add_u32 v8, -1, v8
          s_cmp_eq_u32 s{sTY}, 3
          s_cbranch_scc1 P1_h
          s_cmp_eq_u32 s{sTY}, 0
          s_cselect_b32 s3, {fb(QSCALE)}, 1.0
          v_mul_f32 v10, s3, v{R}
          s_cmp_eq_u32 s{sTY}, 1
          s_cselect_b32 s27, 0x3f803f80, 0
          s_cselect_b32 s3, 0x3f80, 0
          s_cmp_eq_u32 s{sTY}, 2
          s_cselect_b32 s27, 0x3f80, s27
          v_mov_b32 v12, s27
          v_mov_b32 v13, s3""")
    a(f"""s_lshl_b32 s3, s{sSUB}, 8
          s_add_u32 s3, s3, s{sT}
          s_cmp_eq_u32 s{sTY}, 0
          s_cselect_b32 s27, 11, 12
          s_lshl_b32 s3, s3, s27
          s_lshl_b32 s26, 64, s27
          s_lshl_b32 s27, s{sTY}, 11
          s_add_u32 s27, s27, {KVF - 2048}
          s_cmp_eq_u32 s{sTY}, 0
          s_cselect_b32 s27, {QF}, s27
          s_add_u32 s3, s3, s27""")
    if opt("lin", 0):
        a(f"s_lshl_b32 s3, s2, 2\ns_add_u32 s3, s3, s{sW}\ns_lshl_b32 s3, s3, 13\ns_movk_i32 s26, 2048")
    a(f"""s_cmp_eq_u32 s{sTY}, 2
          s_cbranch_scc1 P1_v""")
    def pack(t):
        for i in range(8): a(f"v_pk_mul_f32 {v(ACC+16*t+2*i,2)}, {v(ACC+16*t+2*i,2)}, v[10:11] op_sel_hi:[1,0]")
        for i in range(8): a(f"v_cvt_pk_bf16_f32 v{XR+8*t+i}, v{ACC+16*t+2*i}, v{ACC+16*t+2*i+1}")
        a(f"v_bfi_b32 v{XR+8*t+6}, v8, v{XR+8*t+6}, v12\nv_bfi_b32 v{XR+8*t+7}, v8, v{XR+8*t+7}, v13")
    def put(t):
        for f_ in range(2): a(f"buffer_store_dwordx4 {v(XR+8*t+4*f_,4)}, v0, {s(WD,4)}, s3 offen offset:{f_*1024}{SC}")
        if t < 3: a("s_add_u32 s3, s3, s26")
    for t in range(4): pack(t); put(t)
    a("s_branch P1_done")
    a.label("P1_v")
    a(f"""s_mul_i32 s27, s{sW}, 9216
          s_add_u32 s27, s27, 0x10000
          v_and_b32 v9, 31, v1
          v_mul_u32_u24 v9, 72, v9
          v_lshrrev_b32 v14, 5, v1
          v_lshl_add_u32 v9, v14, 3, v9
          v_add_u32 v9, s27, v9
          v_bfe_u32 v15, v1, 2, 2
          v_lshl_add_u32 v14, v14, 2, v15
          v_mul_u32_u24 v14, 72, v14
          v_bfe_u32 v15, v1, 4, 1
          v_lshl_add_u32 v14, v15, 5, v14
          v_and_b32 v15, 3, v1
          v_lshl_add_u32 v14, v15, 3, v14
          v_add_u32 v14, s27, v14""")
    for t in range(5):
        if t < 4:
            pack(t)
            for j in range(4): a(f"ds_write_b64 v9, {v(XR+8*t+2*j,2)} offset:{t*2304 + 16*j}")
        if t:
            a(f"s_waitcnt lgkmcnt({4 if t < 4 else 0})")
            put(t - 1)
        if t < 4:
            a("s_waitcnt lgkmcnt(0)")
            for f_ in range(2):
                for e in range(2): a(f"ds_read_b64_tr_b16 {v(XR+8*t+4*f_+2*e,2)}, v14 offset:{t*2304 + (16*f_+8*e)*72}")
    a("s_branch P1_done")
    a.label("P1_h")
    gelu_consts(a, R, DEN)
    a(f"""s_mul_i32 s3, s{sT}, 28
          s_mul_i32 s27, s{sSUB}, 7
          s_add_u32 s3, s3, s27
          s_lshl_b32 s3, s3, 10
          s_add_u32 s3, s3, {HF}
          s_add_u32 s27, s3, 4096""")
    for f in range(7):
        gelu_pairs(a, [ACC + 8*f + 2*i for i in range(4)], 10, 12, 14, WF)
        for i in range(4): a(f"v_cvt_pk_bf16_f32 v{XR+4*f+i}, v{ACC+8*f+2*i}, v{ACC+8*f+2*i+1}")
        a(f"buffer_store_dwordx4 {v(XR+4*f,4)}, v0, {s(WD,4)}, s{3 if f < 4 else 27} offen offset:{(f&3)*1024}{SC}")
    a.label("P1_done")
    garrive(a, C_X, 1)
    stamp(a, 15)
    a(f"""s_waitcnt vmcnt(0)
          s_lshl_b32 s3, s{sCB}, 4
          s_add_u32 s3, s3, s{sRB}
          s_lshl_b32 s3, s3, 7
          s_add_u32 s3, s3, {FP}""")
    signal(a, 3, C_S1, last=7)
    stamp(a, 5)

O_, Q_, S_, E_, P_, KV = 16, 80, 112, 144, 152, 160
sH, sQB, sKV, sN, sMA, sKB = 44, 45, 50, 51, 47, 52
AR_BASE = 112 * 1024

def unit(a, n, q, extra):
    Sc, Sn = S_ + 16*(q & 1), S_ + 16*((q+1) & 1)
    nn, nq = (n, q+1) if q < 3 else ((n+1) & 3, 0)
    pn, pq = (n, q-1) if q > 0 else ((n-1) & 3, 3)
    K, Vc, Vp = KV + 16*nn, KV + 16*n + 8, KV + 16*pn + 8
    e = lambda i: a(f"v_exp_f32 v{E_+(i&7)}, v{Sc+i}")
    c = lambda k: a(f"v_cvt_pk_bf16_f32 v{P_+k}, v{E_+((2*k)&7)}, v{E_+((2*k+1)&7)}")
    for x in extra.get(0, []): a(x)
    a(f"{MF} {v(Sn,16)}, {v(K,4)}, {v(Q_+8*nq,4)}, 0")
    e(0); c(6); e(1); c(7); e(2); e(3)
    a(f"{MF} {v(O_+16*pq,16)}, {v(Vp+4,4)}, {v(P_+4,4)}, {v(O_+16*pq,16)}")
    for x in extra.get(1, []): a(x)
    e(4); c(0); e(5); c(1); e(6); e(7)
    a(f"{MF} {v(Sn,16)}, {v(K+4,4)}, {v(Q_+8*nq+4,4)}, {v(Sn,16)}")
    for x in extra.get(2, []): a(x)
    e(8); c(2); e(9); c(3); e(10); e(11)
    a(f"{MF} {v(O_+16*q,16)}, {v(Vc,4)}, {v(P_,4)}, {v(O_+16*q,16)}")
    e(12); c(4); e(13); c(5); e(14); e(15)

def kvload(slot, f):
    return f"buffer_load_dwordx4 {v(KV+16*slot+4*f,4)}, v0, {s(WD,4)}, s{sKV} offen offset:{f*1024}{SC}"
def kvnext():
    return [f"s_add_u32 s3, s{sKV}, 4096", "s_and_b32 s3, s3, 0xffff", f"s_or_b32 s{sKV}, s3, s{sKB}"]

EARLY = opt("early", 1)
def att(a):
    if p1stamps():
        global stamp
        stamp = lambda *x: None
    a(f"""s_and_b32 s26, s2, 7
          s_lshr_b32 s27, s2, 3
          s_lshl_b32 s{sH}, s26, 1
          s_and_b32 s3, s27, 1
          s_add_u32 s{sH}, s{sH}, s3
          s_lshr_b32 s{sQB}, s27, 1
          s_mul_i32 s{sMA}, s{sW}, 11136
          s_add_u32 s{sMA}, s{sMA}, {AR_BASE}
          s_lshl_b32 s{sKB}, s{sH}, 2
          s_add_u32 s{sKB}, s{sKB}, s{sW}
          s_lshl_b32 s{sKB}, s{sKB}, 16
          s_add_u32 s{sKB}, s{sKB}, {KVF}
          s_and_b32 s27, s{sQB}, {3 if EARLY else 15}
          s_lshl_b32 s3, s27, {14 if EARLY else 12}
          s_or_b32 s{sKV}, s{sKB}, s3
          s_lshr_b32 s3, s{sH}, 2
          s_lshl_b32 s3, s3, 4
          v_and_b32 v10, 3, v1
          s_lshl_b32 s26, s{sW}, 2
          s_add_u32 s26, s26, s3
          s_add_u32 s26, s26, 64
          v_add_u32 v10, s26, v10
          v_bfe_u32 v11, v1, 2, 1
          v_lshl_add_u32 v10, v11, 6, v10
          s_add_u32 s3, s3, s{sQB}
          v_writelane_b32 v10, s3, 8             ; lane 8: Q
          v_lshlrev_b32 v10, 7, v10
          v_add_u32 v10, {FP}, v10""")
    for i in range(64): a(f"v_mov_b32 v{O_+i}, 0")
    for i in range(8): a(f"v_mov_b32 v{E_+i}, 0\nv_mov_b32 v{P_+i}, 0")
    for i in range(4): a(f"v_mov_b32 v{KV+48+12+i}, 0")
    if EARLY:
        a(f"""v_and_b32 v11, 7, v1
              v_lshlrev_b32 v11, 2, v11
              ds_bpermute_b32 v2, v11, v10
              s_lshl_b32 s27, s27, 2
              v_mov_b32 v11, s27
              v_writelane_b32 v11, 32, 2
              s_add_u32 s27, s27, 16
              v_writelane_b32 v11, s27, 1
              ds_bpermute_b32 v10, v11, v10
              s_waitcnt lgkmcnt(0)""")
        poll(a, 10, 3)
    else: poll(a, 10, 9)
    if opt("ayield", 1): gwait(a, C_X, 4, field=0)
    stamp(a, 8)
    for j in range(4):
        a(f"""s_add_u32 s3, s{sW}, {j}
              s_and_b32 s3, s3, 3
              s_lshl_b32 s26, s{sH}, 4
              s_add_u32 s26, s26, s{sQB}
              s_lshl_b32 s26, s26, 2
              s_add_u32 s3, s3, s26
              s_lshl_b32 s3, s3, 11
              s_add_u32 s3, s3, {QF}""")
        for f in range(2): a(f"buffer_load_dwordx4 {v(Q_+8*j+4*f,4)}, v0, {s(WD,4)}, s3 offen offset:{f*1024}{SC}")
        if j == 0:
            for f in range(4): a(kvload(0, f))
            for x in kvnext(): a(x)
    for n in range(1, 3):
        for f in range(4): a(kvload(n, f))
        for x in kvnext(): a(x)
    a(f"s_mov_b32 s{sN}, 4\ns_waitcnt vmcnt(14)")
    a(f"{MF} {v(S_,16)}, {v(KV,4)}, {v(Q_,4)}, 0")
    a(f"{MF} {v(S_,16)}, {v(KV+4,4)}, {v(Q_+4,4)}, {v(S_,16)}")
    a(f"s_setprio {opt('pa2', 0)}\ns_waitcnt vmcnt(8)")
    stamp(a, 9)
    a(".p2align 3")
    a.label("AT_loop")
    for n in range(4):
        ld = (n + 3) & 3
        kvl = kvload if not opt("nokv", 0) else (lambda a_, b_: "s_nop 0")
        if opt("kvprio", 1):
            e0 = {1: ["s_setprio 3", kvl(ld, 0), kvl(ld, 1)], 2: [kvl(ld, 2), kvl(ld, 3), f"s_setprio {opt('pa2', 0)}"]}
            if EARLY and n == 0: e0[1].insert(1, f"buffer_load_dword v3, v2, {s(WD,4)}, 0 offen sc1")
            if EARLY and n == 1:
                e0[0] = ["s_waitcnt vmcnt(4)", "v_cmp_eq_u32 vcc, 0, v3"]
                e0[1] = ["s_cbranch_vccnz AT_late", "AT_ok:"] + e0[1]
            unit(a, n, 0, e0)
            unit(a, n, 1, {1: kvnext()})
            unit(a, n, 2, {})
            ex = {0: ["s_waitcnt vmcnt(8)"], 2: []}
        else:
            unit(a, n, 0, {2: [kvl(ld, 0)]})
            unit(a, n, 1, {1: [kvl(ld, 1)]})
            unit(a, n, 2, {1: [kvl(ld, 2)]})
            ex = {0: ["s_waitcnt vmcnt(7)"], 1: [kvl(ld, 3)], 2: kvnext()}
        if n == 3: ex[2] += [f"s_sub_u32 s{sN}, s{sN}, 1", f"s_cmp_lg_u32 s{sN}, 0"]
        unit(a, n, 3, ex)
    a("s_cbranch_scc1 AT_loop")
    a(f"v_cvt_pk_bf16_f32 v{P_+6}, v{E_+4}, v{E_+5}\nv_cvt_pk_bf16_f32 v{P_+7}, v{E_+6}, v{E_+7}")
    a(f"{MF} {v(O_+48,16)}, {v(KV+48+12,4)}, {v(P_+4,4)}, {v(O_+48,16)}")
    stamp(a, 10)
    a(f"s_setprio {opt('pa1', 2)}")
    gwait(a, C_B, 8)
    def region(d, j):
        a(f"""s_sub_u32 s{d}, s{sW}, {j}
              s_and_b32 s{d}, s{d}, 3
              s_mul_i32 s{d}, s{d}, 11136
              s_add_u32 s{d}, s{d}, {AR_BASE}""")
    reduce3c(a, O_, sMA, region, C_A, 4)
    a(f"""v_mov_b32 v10, v{O_+12}
          v_mov_b32 v11, v{O_+12}
          v_permlane32_swap_b32 v11, v10
          v_mov_b32 v12, v10
          v_mov_b32 v13, 0""")
    for i in range(16): a(f"v_fma_f32 v{12+(i&1)}, v{O_+i}, 0, v{12+(i&1)}")
    a(f"""v_add_f32 v12, v12, v13                ; row sum, or NaN if any accumulator is not finite
          v_cmp_le_f32 vcc, {fb(2.0**-80)}, v12
          v_cmp_ge_f32 s[26:27], s59, v12
          s_and_b64 vcc, vcc, s[26:27]
          s_cmp_eq_u64 vcc, -1
          s_cbranch_scc0 AT_slow""".replace("s59", "s59"))
    a.label("AT_norm")
    a(f"""v_rcp_f32 v10, v10
          v_lshrrev_b32 v8, 5, v1
          v_add_u32 v8, -1, v8""")
    for i in range(16): a(f"v_mul_f32 v{O_+i}, v{O_+i}, v10")
    for i in range(8): a(f"v_cvt_pk_bf16_f32 v{P_+i}, v{O_+2*i}, v{O_+2*i+1}")
    a(f"""v_and_b32 v{P_+6}, v8, v{P_+6}
          v_and_b32 v{P_+7}, v8, v{P_+7}
          s_lshl_b32 s26, s{sQB}, 2
          s_add_u32 s26, s26, s{sW}
          s_lshl_b32 s26, s26, 4
          s_add_u32 s26, s26, s{sH}
          s_lshl_b32 s3, s26, 11
          s_add_u32 s3, s3, {OF}
          buffer_store_dwordx4 {v(P_,4)}, v0, {s(WD,4)}, s3 offen{SC}
          buffer_store_dwordx4 {v(P_+4,4)}, v0, {s(WD,4)}, s3 offen offset:1024{SC}
          s_lshl_b32 s3, s{sQB}, 4
          s_add_u32 s3, s3, s{sH}
          s_lshl_b32 s3, s3, 7
          s_add_u32 s3, s3, {FA}
          s_waitcnt vmcnt(0)""")
    signal(a, 3, 20)
    stamp(a, 11)
    stamp_out2(a)
    a("s_endpgm")
    if EARLY:
        a.label("AT_late")
        poll(a, 2, 8)
        a("s_branch AT_ok")
    a.label("AT_slow")
    a(f"""s_waitcnt vmcnt(0)
          s_lshl_b32 s{sKB}, s{sH}, 18
          s_add_u32 s{sKB}, s{sKB}, {KVF}
          s_mov_b32 s{sKV}, s{sKB}
          s_mov_b32 s{sN}, 64
          v_mov_b32 v12, 0xff800000""")
    a.label("AT_s1")
    a(kvload(0, 0)); a(kvload(0, 1))
    a(f"""s_add_u32 s{sKV}, s{sKV}, 4096
          s_waitcnt vmcnt(0)
          {MF} {v(S_,16)}, {v(KV,4)}, {v(Q_,4)}, 0
          {MF} {v(S_,16)}, {v(KV+4,4)}, {v(Q_+4,4)}, {v(S_,16)}""")
    for i in range(8): a(f"v_max3_f32 v12, v12, v{S_+2*i}, v{S_+2*i+1}")
    a(f"""s_sub_u32 s{sN}, s{sN}, 1
          s_cmp_lg_u32 s{sN}, 0
          s_cbranch_scc1 AT_s1
          v_mov_b32 v13, v12
          v_permlane32_swap_b32 v12, v13
          v_max_f32 v12, v12, v13
          v_cvt_pk_bf16_f32 v13, -v12, -v12
          v_and_b32 v13, 0xffff0000, v13
          v_sub_f32 v12, -v12, v13
          v_cvt_pk_bf16_f32 v14, v12, v12
          v_and_b32 v14, 0xffff0000, v14
          v_sub_f32 v12, v12, v14
          v_cvt_pk_bf16_f32 v13, v13, v14
          v_cvt_pk_bf16_f32 v14, v12, 0
          v_lshrrev_b32 v8, 5, v1
          v_add_u32 v8, -1, v8
          v_bfi_b32 v{Q_+6}, v8, v{Q_+6}, v13
          v_bfi_b32 v{Q_+7}, v8, v{Q_+7}, v14
          s_mov_b32 s{sKV}, s{sKB}
          s_mov_b32 s{sN}, 64""")
    for i in range(16): a(f"v_mov_b32 v{O_+i}, 0")
    a.label("AT_s2")
    for f in range(4): a(kvload(0, f))
    a(f"""s_add_u32 s{sKV}, s{sKV}, 4096
          s_waitcnt vmcnt(0)
          {MF} {v(S_,16)}, {v(KV,4)}, {v(Q_,4)}, 0
          {MF} {v(S_,16)}, {v(KV+4,4)}, {v(Q_+4,4)}, {v(S_,16)}""")
    for i in range(16): a(f"v_exp_f32 v{S_+i}, v{S_+i}")
    for i in range(8): a(f"v_cvt_pk_bf16_f32 v{P_+i}, v{S_+2*i}, v{S_+2*i+1}")
    a(f"""{MF} {v(O_,16)}, {v(KV+8,4)}, {v(P_,4)}, {v(O_,16)}
          {MF} {v(O_,16)}, {v(KV+12,4)}, {v(P_+4,4)}, {v(O_,16)}
          s_sub_u32 s{sN}, s{sN}, 1
          s_cmp_lg_u32 s{sN}, 0
          s_cbranch_scc1 AT_s2
          v_mov_b32 v10, v{O_+12}
          v_mov_b32 v11, v{O_+12}
          v_permlane32_swap_b32 v11, v10
          s_branch AT_norm""")

B_G3_DONE = 24
G2_BASE = 0
H1 = 56 * 1024
W3B = 60 * 1024
XCH3 = CNT + 1024
RES = 224

def p1b(a):
    bst = (lambda i: common.stamp(a, i)) if p1stamps() else (lambda i: None)
    sRB, sCB, sT = 44, 45, 48
    sROW, sWO, sK, sCOL = 49, 50, 51, 52
    WB = 0x1C000
    XT = 232
    def codepf():
        nseg = opt("nseg", 5)
        a(f"""s_lshr_b32 s57, s2, 3
              s_cmp_ge_u32 s57, {nseg}
              s_cbranch_scc1 PB_nopf
              s_cmp_lg_u32 s{sW}, 0
              s_cbranch_scc1 PB_nopf
              s_getpc_b64 s[62:63]""")
        a.label("PB_pc")
        a(f"""s_lshl_b32 s57, s57, 13
              s_sub_u32 s62, s62, PB_pc-K_start
              s_subb_u32 s63, s63, 0
              s_add_u32 s62, s62, s57
              s_addc_u32 s63, s63, 0
              v_lshlrev_b32 v8, 7, v1
              v_add_u32 v9, s57, v8
              v_cmp_gt_u32 vcc, K_last-K_start, v9
              v_mov_b32 v11, s63
              v_add_co_u32 v10, s[98:99], s62, v8
              v_addc_co_u32 v11, s[98:99], 0, v11, s[98:99]
              s_and_saveexec_b64 s[98:99], vcc
              s_cbranch_execz PB_pfx
              global_load_dword v16, v[10:11], off""")
        a.label("PB_pfx")
        a("s_mov_b64 exec, -1")
        a.label("PB_nopf")
    if opt("codepf", 1) == 1: codepf()
    a(f"""s_and_b32 s26, s2, 1
          s_lshl_b32 s26, s26, 3
          s_lshr_b32 s3, s2, 5
          s_add_u32 s26, s26, s3
          s_bfe_u32 s{sK}, s2, 0x20003
          s_lshl_b32 s54, s{sK}, 1
          s_add_u32 s54, s54, s3
          s_mul_i32 s3, s54, 37
          s_lshr_b32 s3, s3, 8
          s_mul_i32 s3, s3, 7
          s_sub_u32 s54, s54, s3
          s_mul_i32 s54, s54, {opt("rotw", 1)}
          s_bfe_u32 s3, s2, 0x20001
          s_lshl_b32 s3, s3, 2
          s_add_u32 s3, s3, s{sK}
          s_lshl_b32 s3, s3, 2
          s_add_u32 s3, s3, s{sW}
          s_lshl_b32 s56, s3, 5
          s_and_b32 s27, s26, 3
          s_lshr_b32 s3, s27, 1
          s_add_u32 s3, s3, 1
          s_sub_u32 s57, 0, s3
          s_bitcmp1_b32 s27, 0
          s_cselect_b32 s3, s3, s57
          s_movk_i32 s{sROW}, 2688
          s_cmp_ge_u32 s26, 12
          s_cselect_b32 s3, s3, 0
          s_cselect_b32 s{sROW}, 896, s{sROW}
          s_cselect_b32 s27, s27, s26
          s_add_u32 s56, s56, s3
          s_mul_i32 s{sCOL}, s27, 224
          v_lshrrev_b32 v8, 3, v1
          v_add_u32 v8, s56, v8
          s_movk_i32 s3, 896
          v_mul_i32_i24 v8, s3, v8
          v_bfe_u32 v9, v1, 4, 2
          v_and_b32 v10, 7, v1
          v_xor_b32 v9, v9, v10
          v_lshl_add_u32 v2, v9, 4, v8
          v_xor_b32 v9, 4, v9
          v_lshl_add_u32 v3, v9, 4, v8
          v_add_u32 v3, {8*896}, v3
          v_add_u32 v4, {16*896}, v2
          v_add_u32 v5, {16*896}, v3
          v_lshrrev_b32 v8, 4, v1
          v_lshlrev_b32 v9, 2, v8
          v_sub_u32 v9, v1, v9
          v_and_b32 v9, 15, v9
          v_mul_u32_u24 v8, s{sROW}, v8
          v_lshl_add_u32 v7, v9, 4, v8
          v_cmp_gt_u32 s[96:97], 14, v9
          s_lshl_b32 s{sK}, s54, 6
          s_lshl_b32 s54, s54, 7
          s_lshl_b32 s3, s{sW}, 4
          s_mul_i32 s3, s3, s{sROW}
          s_add_u32 s{sCOL}, s{sCOL}, s3
          s_lshl_b32 s53, s{sROW}, 2
          s_lshl_b32 s55, s{sW}, 12
          s_waitcnt lgkmcnt(0)
          s_cmp_ge_u32 s26, 12
          s_cselect_b32 s{WA}, s12, s6
          s_cselect_b32 s{WA+1}, s13, s7
          s_mul_i32 s{WA+2}, s{sROW}, 448
          s_mov_b32 s{WA+3}, 0x20000""")
    srd(a, XS, 4, 2048 * 896)
    q = []
    gap = []
    def ride(n):
        for x in gap[:n]: a(x)
        del gap[:n]
    def xchunk(c):
        for g in range(4):
            a(f"s_add_u32 m0, s55, {XB + (c % 3)*16384 + g*1024}")
            a(f"s_nop 0\nbuffer_load_dwordx4 v{2+g}, {s(XS,4)}, s54 offen lds")
            ride(9)
        wrapinc(a, 54, 128, 896)
        q.extend([c] * 4)
    def wchunk(c):
        a(f"""s_mul_i32 s{sWO}, s{sK}, s{sROW}
              s_add_u32 s{sWO}, s{sWO}, s{sCOL}""")
        wrapinc(a, sK, 64, 448)
        a("s_mov_b64 exec, s[96:97]")
        for u in range(4):
            a(f"s_add_u32 m0, s55, {c*16384 + u*1024}")
            if u: a(f"s_add_u32 s{sWO}, s{sWO}, s53")
            a(f"buffer_load_dwordx4 v7, {s(WA,4)}, s{sWO} offen lds")
        a("s_mov_b64 exec, -1")
        q.extend([c] * 4)
    srd(a, WD, 24, WS_END)
    a(f"""s_lshl_b32 s61, s{sW}, 8
          s_or_b32 s61, s61, s2
          v_mov_b32 v22, 0
          s_cmp_ge_u32 s61, {NINIT}
          s_cbranch_scc1 PB_noinit
          v_lshlrev_b32 v13, 7, v1
          s_lshl_b32 s3, s2, 13
          s_add_u32 s3, s3, {FLG}
          buffer_store_dword v22, v13, {s(WD,4)}, s3 offen{SC}""")
    a.label("PB_noinit")
    bst(11)
    xchunk(0); wchunk(0)
    if opt("codepf", 1) == 2: codepf()
    if opt("tlb", 0):
        a(f"""v_lshlrev_b32 v23, {opt("tlb", 0)}, v1
              v_add_u32 v23, {0x1fff80 if opt("tlb", 0) == 21 else 0xff80}, v23
              s_lshl_b32 s3, s{sW}, {opt("tlb", 0) + 6}
              buffer_load_dword v24, v23, {s(WD,4)}, s3 offen sc1""")
        q.append(1)
    a(f"""v_lshrrev_b32 v8, 1, v1
          v_and_b32 v9, 15, v8
          v_lshrrev_b32 v10, 4, v8
          v_lshlrev_b32 v10, 14, v10
          v_lshl_add_u32 v10, v9, 8, v10
          v_and_b32 v9, 3, v8
          v_lshlrev_b32 v9, 2, v9
          v_and_b32 v8, 1, v1
          v_add3_u32 v9, v9, v8, 14
          v_and_b32 v9, 15, v9
          v_lshl_add_u32 v10, v9, 4, v10
          v_add_u32 v10, s55, v10
          v_add_u32 v11, 0x10000, v10
          v_mov_b32 v12, 0x3f803f80
          v_mov_b32 v13, v12
          v_mov_b32 v14, v12
          v_mov_b32 v15, v12
          ds_write_b128 v10, v[12:15]
          ds_write_b128 v10, v[12:15] offset:32768
          ds_write_b128 v11, v[12:15]
          s_mov_b64 exec, 0xffffffff
          ds_write_b128 v11, v[12:15] offset:32768
          s_mov_b64 exec, -1""")
    srd(a, WD, 24, WS_END)
    srd(a, WB_, 22, 256)
    xchunk(1)
    if opt("w1e", 1): wchunk(1)
    small_setup(a, sRB, sCB, sT)
    tail = A()
    tail(f"""v_lshrrev_b32 v8, 2, v1
          v_mul_u32_u24 v8, 896, v8
          v_bfe_u32 v9, v1, 4, 2
          v_and_b32 v10, 3, v1
          v_xor_b32 v9, v9, v10
          v_lshl_add_u32 v8, v9, 4, v8
          s_mul_i32 s3, s{sT}, {32*896}
          s_lshl_b32 s26, s{sCB}, 7
          s_add_u32 s3, s3, s26
          s_lshl_b32 s26, s{sFT}, 6
          s_add_u32 s3, s3, s26
          s_add_u32 s26, s3, {16*896}
          buffer_load_dwordx4 {v(XT,4)}, v8, {s(XS,4)}, s3 offen
          buffer_load_dwordx4 {v(XT+4,4)}, v8, {s(XS,4)}, s26 offen""")
    t2, t3, t4 = A(), A(), A()
    srd(t2, WB_, 14, 448*896)
    t2(f"""v_lshlrev_b32 v8, 7, v1
           s_lshr_b32 s57, s2, 3
           s_lshl_b32 s57, s57, 2
           s_add_u32 s57, s57, s{sW}
           s_mul_i32 s3, s57, {25*128}
           s_bfm_b64 exec, 25, 0
           buffer_load_dword v16, v8, {s(WB_,4)}, s3 offen
           s_mov_b64 exec, -1""")
    srd(t3, WB_, 16, 448*3584)
    t3(f"""s_lshr_b32 s57, s2, 3
           s_lshl_b32 s57, s57, 2
           s_add_u32 s57, s57, s{sW}
           s_mul_i32 s3, s57, 49
           v_add_u32 v9, s3, v1
           v_mul_u32_u24 v10, 9363, v9
           v_lshrrev_b32 v10, 17, v10
           v_mul_u32_u24 v11, 14, v10
           v_sub_u32 v9, v9, v11
           v_mul_u32_u24 v10, 3584, v10
           v_lshl_add_u32 v9, v9, 7, v10
           s_and_b32 s3, s2, 1
           s_mul_i32 s3, s3, 1792
           s_bfm_b64 exec, 49, 0
           buffer_load_dword v17, v9, {s(WB_,4)}, s3 offen
           s_mov_b64 exec, -1""")
    srd(t4, WB_, 18, 448*3584)
    t4(f"""v_lshlrev_b32 v8, 7, v1
           s_lshl_b32 s57, s2, 2
           s_add_u32 s57, s57, s{sW}
           s_mul_i32 s3, s57, {13*128}
           s_bfm_b64 exec, 13, 0
           buffer_load_dword v18, v8, {s(WB_,4)}, s3 offen""")
    srd(t4, WB_, 8, 448*896)
    t4(f"""s_lshl_b32 s3, s57, 9
           s_mov_b64 exec, 15
           buffer_load_dword v19, v8, {s(WB_,4)}, s3 offen
           s_mov_b64 exec, -1""")
    w2, w2b = A(), A()
    w2(f"""s_lshr_b32 s{sFT}, s{sW}, 1
           s_xor_b32 s{sFT}, s{sFT}, s2
           s_and_b32 s{sFT}, s{sFT}, 1
           s_lshl_b32 s47, s{sW}, 11""")
    small_addrs(w2, "s47")
    srd(w2, WA, 14, 448 * 896)
    w2(f"""s_mul_i32 s3, s{sW}, {112*896}
           s_lshl_b32 s26, s{sCB}, 7
           s_add_u32 s3, s3, s26
           v_add_u32 v4, s3, v7
           v_add_u32 v5, {8*896}, v4
           s_mul_i32 s50, s{sCB}, {16*896*opt("rot", 1)}""")
    for j in range(7):
        g = w2 if j < 6 else w2b
        g(f"""s_add_u32 m0, s47, {j*8192}
              s_nop 0
              buffer_load_dwordx4 v4, {s(WA,4)}, s50 offen lds
              s_add_u32 m0, s47, {j*8192 + 1024}
              s_nop 0
              buffer_load_dwordx4 v5, {s(WA,4)}, s50 offen lds""")
        if j < 6: wrapinc(g, 50, 16*896, 112*896)
    c3a, c3b = A(), A()
    srd(c3a, WB_, 16, 448*3584)
    c3a(f"""s_mul_i32 s3, s2, 2341
            s_lshr_b32 s3, s3, 16
            s_mul_i32 s57, s3, 28
            s_sub_u32 s57, s2, s57                 ; line = id % 28
            s_lshl_b32 s3, s3, 2
            s_add_u32 s3, s3, s{sW}
            s_mul_i32 s63, s57, 28
            s_add_u32 s63, s63, s3
            s_lshl_b32 s63, s63, 8
            s_add_u32 s63, s63, {CS3P}
            s_cmp_lt_u32 s2, 196
            s_cselect_b32 s63, s63, {OOB}
            s_mul_i32 s3, s3, {16*3584}
            s_lshl_b32 s57, s57, 7
            s_add_u32 s3, s3, s57
            s_add_u32 s57, s3, {8*3584}
            v_lshrrev_b32 v8, 3, v1
            v_mul_u32_u24 v8, 3584, v8
            v_and_b32 v9, 7, v1
            v_lshl_add_u32 v8, v9, 4, v8
            buffer_load_dwordx4 v[32:35], v8, {s(WB_,4)}, s3 offen
            buffer_load_dwordx4 v[36:39], v8, {s(WB_,4)}, s57 offen""")
    unpack(c3b, 40, 32, 8)
    for i in range(8): c3b(f"v_add_f32 v{40+i}, v{40+i}, v{48+i}")
    for i in range(4): c3b(f"v_permlane32_swap_b32 v{40+i}, v{44+i}")
    for i in range(4): c3b(f"v_add_f32 v{40+i}, v{40+i}, v{44+i}")
    for i in range(2): c3b(f"v_permlane16_swap_b32 v{40+i}, v{42+i}")
    for i in range(2): c3b(f"v_add_f32 v{40+i}, v{40+i}, v{42+i}")
    c3b(f"""v_and_b32 v8, 7, v1
            v_lshrrev_b32 v9, 4, v1
            v_lshlrev_b32 v8, 5, v8
            v_lshl_add_u32 v8, v9, 3, v8
            v_add_f32_dpp v40, v40, v40 row_ror:8 row_mask:0xf bank_mask:0xf
            v_add_f32_dpp v41, v41, v41 row_ror:8 row_mask:0xf bank_mask:0xf
            buffer_store_dwordx2 v[40:41], v8, {s(WD,4)}, s63 offen{SC}""")
    extras = [(opt("c3a", 4), c3a, 2), (opt("tw2", 2), t2, 1), (opt("w2c", 8), w2, 12), (max(4, opt("w2c", 8)), tail, 2), (opt("tw3", 4), t3, 1), (opt("tw4", 4), t4, 2), (max(opt("w2d", 6), opt("w2c", 8)), w2b, 2)]
    bst(2)
    for c in range(7):
        last = max(i for i, x in enumerate(q) if x == c)
        a(f"s_waitcnt vmcnt({len(q) - 1 - last}) lgkmcnt(0)")
        bst((3, 12, 13, 4, 5, 14, 8)[c])
        a("s_barrier")
        if c == 0:
            a(f"""s_cmp_ge_u32 s61, {NINIT}
                  s_cbranch_scc1 PB_noset
                  s_lshl_b32 s3, s2, 2
                  v_mov_b32 v9, 1
                  s_mov_b64 exec, 1
                  buffer_store_dword v9, v22, {s(WB_,4)}, s3 offen{SC}
                  s_mov_b64 exec, -1""")
            a.label("PB_noset")
        if c == 0 and not opt("w1e", 1): wchunk(1)
        if c + 2 < 7: xchunk(c + 2); wchunk(c + 2)
        if c == 3:
            srd(a, WB_, 22, 256)
            a(f"v_min_u32 v20, {NINIT - 1}, v1\nv_lshlrev_b32 v20, 2, v20\nbuffer_load_dword v21, v20, {s(WB_,4)}, 0 offen sc1"); q.append(5)
        if c == 5:
            a("v_cmp_eq_u32 vcc, 0, v21\ns_cbranch_vccz PB_clr")
            srd(a, WB_, 22, 256)
            poll(a, 20, NINIT, WB_)
            a.label("PB_clr")
        for when, code, nv in extras:
            if when == c:
                for x in code.l: a(x)
                q.extend(["c3" if code is c3a else 99] * nv)
        ride(999)
    a(f"""v_mov_b32 v8, {CNT}
          v_mov_b32 v12, 0
          v_mov_b32 v13, 0
          v_mov_b32 v14, 0
          v_mov_b32 v15, 0
          ds_write_b128 v8, v[12:15]
          ds_write_b128 v8, v[12:15] offset:16
          ds_write_b128 v8, v[12:15] offset:32
          s_waitcnt lgkmcnt(0)
          s_barrier                              ; barrier 7
          s_waitcnt vmcnt({len(q) - 1 - max(i for i, x in enumerate(q) if x == "c3")})""")
    for x in c3b.l: a(x)
    a(f"""s_and_b32 s3, s2, 1
          s_lshl_b32 s3, s3, 3
          s_lshr_b32 s26, s2, 5
          s_add_u32 s3, s3, s26
          s_lshl_b32 s3, s3, 4
          s_lshr_b32 s26, s{sRB}, 1
          s_add_u32 s3, s3, s26
          s_lshl_b32 s3, s3, 7
          s_add_u32 s3, s3, {FP}
          s_waitcnt vmcnt(0)""")
    signal(a, 3, C_S1, last=7)
    for when, code, nv in extras:
        if when == 7:
            for x in code.l: a(x)
    bst(9)
    gwait(a, C_X, 4, field=1)
    for when, code, nv in extras:
        if when == 8:
            for x in code.l: a(x)
    bst(10); bst(15)

def small_setup(a, sRB, sCB, sT):
    a(f"""s_bfe_u32 s26, s2, 0x20001
          s_lshl_b32 s26, s26, 2
          s_bfe_u32 s3, s2, 0x20003
          s_add_u32 s26, s26, s3
          s_lshl_b32 s{sRB}, s26, 1
          s_and_b32 s3, s2, 1
          s_add_u32 s{sRB}, s{sRB}, s3
          s_lshr_b32 s{sCB}, s2, 5
          s_and_b32 s3, s{sW}, 1
          s_lshl_b32 s{sT}, s{sRB}, 1
          s_add_u32 s{sT}, s{sT}, s3""")

def small_addrs(a, sM, natural=False):
    a(f"""v_lshrrev_b32 v8, 3, v1
          v_bfe_u32 v9, v1, 4, 1
          v_lshlrev_b32 v9, 2, v9
          v_and_b32 v10, 7, v1
          v_xor_b32 v9, v9, v10
          v_mul_u32_u24 v8, 896, v8
          v_lshl_add_u32 v7, v9, 4, v8
          v_lshrrev_b32 v8, 5, v1
          v_bfe_u32 v9, v1, 2, 2
          v_lshl_add_u32 v8, v8, 2, v9
          v_lshlrev_b32 v8, 7, v8
          v_bfe_u32 v10, v1, 4, 1
          v_bfe_u32 v11, v1, 1, 1
          v_lshl_add_u32 v10, v10, 1, v11
          v_bfe_u32 v11, v1, 3, 1
          v_lshl_add_u32 v10, v11, 2, v10
          v_lshl_add_u32 v8, v10, 4, v8
          v_and_b32 v11, 1, v1
          v_lshl_add_u32 v8, v11, 3, v8
          s_lshl_b32 s3, {"0" if natural else "s%d" % sFT}, 6
          v_xor_b32 v8, s3, v8
          v_add_u32 v2, {sM}, v8
          v_xor_b32 v8, 64, v8
          v_add_u32 v3, {sM}, v8""")

def wreads(a, WF, buf, off, va=2):
    for b in range(2):
        for e in range(2): a(f"ds_read_b64_tr_b16 {v(WF+8*buf+4*b+2*e,2)}, v{va+b} offset:{off + 8*e*128}")
def mfmas(a, ACC, WF, buf, act0, act1, first):
    for aa, ar in enumerate((act0, act1)):
        for b in range(2):
            j = 2*aa + b
            a(f"{MF} {v(ACC+16*j,16)}, {v(WF+8*buf+4*b,4)}, {v(ar,4)}, {'0' if first else v(ACC+16*j,16)}")

def roleb(a):
    ACC, WF, AR, EP = 16, 80, 112, 176
    sRB, sCB, sT, sM, sK, sKA, sX = 44, 45, 48, 47, 50, 51, 53
    sRB3, sCB3, sT3, sK3, sL = 54, 55, 56, 57, 49
    ROT = opt("rot", 1)
    a("s_cmp_ge_u32 s2, 224\ns_cbranch_scc0 B_go")
    a(f"""s_mov_b64 exec, 1
          v_mov_b32 v8, {CNT}
          v_mov_b32 v9, {B_G3_DONE // 4}
          ds_add_u32 v8, v9
          s_mov_b64 exec, -1""")
    garrive(a, C_X)
    if opt("idlepf", 1):
        if opt("idlepf", 1) == 2: gwait(a, C_S1, 8)
        else:
            a(f"""s_lshl_b32 s3, s{sRB}, 10
                  s_add_u32 s3, s3, {F2}
                  v_mov_b32 v10, s3""")
            poll(a, 10, 1)
        srd(a, WA, 18, 1792 * 896)
        srd(a, WB_, 8, 448 * 896)
        a(f"""s_lshr_b32 s3, s2, 3
              s_sub_u32 s3, s3, 28
              s_lshl_b32 s3, s3, 2
              s_add_u32 s3, s3, s{sW}
              s_lshl_b32 s26, s3, 13
              s_and_b32 s27, s2, 1
              s_mul_i32 s27, s27, {896*896}
              s_add_u32 s26, s26, s27
              v_lshlrev_b32 v8, 7, v1
              s_mov_b32 s27, 7""")
        a.label("B_pf")
        a(f"""buffer_load_dword v16, v8, {s(WA,4)}, s26 offen
              s_add_u32 s26, s26, {16*8192}
              s_waitcnt vmcnt(1)
              s_sub_u32 s27, s27, 1
              s_cmp_lg_u32 s27, 0
              s_cbranch_scc1 B_pf
              s_lshl_b32 s26, s3, 13""")
        for i in range(4): a(f"buffer_load_dword v16, v8, {s(WB_,4)}, s26 offen\ns_add_u32 s26, s26, {16*8192}")
    a("s_endpgm")
    a.label("B_go")
    a(f"s_setprio {opt('pb', 1)}")
    bs2 = (lambda i: common.stamp(a, i)) if opt("g2s", 0) and common.STAMPS else (lambda i: None)
    if opt("g2s", 0):
        global stamp
        keep = stamp
        stamp = lambda a_, i, *x: keep(a_, i, *x) if i in (2, 3) else None
    a(f"s_lshl_b32 s{sL}, s{sW}, 11")
    bs2(13)
    a(f"""s_add_u32 s3, s{sL}, {H1 + 8192}
          v_add_u32 v10, s3, v0
          v_and_b32 v8, 31, v1
          v_lshlrev_b32 v8, 6, v8
          v_bfe_u32 v9, v1, 2, 2
          v_lshl_add_u32 v8, v9, 4, v8
          v_lshrrev_b32 v9, 5, v1
          v_lshl_add_u32 v8, v9, 3, v8
          v_add_u32 v12, s3, v8
          v_xor_b32 v13, 16, v12
          v_xor_b32 v14, 32, v12
          v_xor_b32 v15, 48, v12
          s_waitcnt vmcnt(0)
          ds_write_b128 v10, v[232:235]
          ds_write_b128 v10, v[236:239] offset:1024
          s_waitcnt lgkmcnt(0)""")
    for j in range(4): a(f"ds_read_b64 {v(EP+2*j,2)}, v{12+j}")
    a(f"""s_and_b32 s26, s2, 7
          s_lshr_b32 s27, s2, 3
          s_lshr_b32 s{sRB3}, s26, 1
          s_lshl_b32 s{sRB3}, s{sRB3}, 2
          s_and_b32 s3, s27, 3
          s_add_u32 s{sRB3}, s{sRB3}, s3
          s_and_b32 s{sCB3}, s26, 1
          s_mul_i32 s{sCB3}, s{sCB3}, 7
          s_add_u32 s{sCB3}, s{sCB3}, s{sCB}
          s_lshl_b32 s{sT3}, s{sRB3}, 2
          s_add_u32 s{sT3}, s{sT3}, s{sW}
          v_lshrrev_b32 v8, 3, v1
          v_bfe_u32 v9, v1, 4, 1
          v_lshlrev_b32 v9, 2, v9
          v_and_b32 v6, 7, v1
          v_xor_b32 v9, v9, v6
          v_mul_u32_u24 v8, 3584, v8
          v_lshl_add_u32 v6, v9, 4, v8
          s_mul_i32 s3, s{sW}, {16*3584}
          s_lshl_b32 s26, s{sCB3}, 8
          s_add_u32 s3, s3, s26
          v_add_u32 v6, s3, v6                   ; W3 voffset
          s_mul_i32 s{sK3}, s{sCB}, {64*3584*ROT}""")
    srd(a, WB_, 16, 448 * 3584)
    a("s_waitcnt lgkmcnt(0)")
    def w3chunk(c):
        hf, j = (1, c) if c < 7 else (0, c - 7)
        for u in range(2):
            a(f"s_add_u32 m0, s{sL}, {hf*H1 + j*8192 + u*1024}")
            a(f"s_add_u32 s3, s{sK3}, {u*8*3584 + 128*hf}")
            a(f"buffer_load_dwordx4 v6, {s(WB_,4)}, s3 offen lds")
        wrapinc(a, sK3, 64*3584, 448*3584)
    W3A = opt("w3a", 0); W3E = max(W3A, opt("w3e", 6)); assert W3E <= 6
    if W3A:
        gwait(a, C_S1, 8)
        for c in range(W3A): w3chunk(c)
    a(f"""s_mul_i32 s3, s{sT}, 28
          s_mul_i32 s26, s{sW}, 7
          s_add_u32 s3, s3, s26
          s_lshl_b32 s3, s3, 10
          s_add_u32 s3, s3, {HF}
          v_add_u32 v4, s3, v0
          s_xor_b32 s3, s{sT}, 1
          s_mul_i32 s3, s3, 28
          s_add_u32 s3, s3, s26
          s_lshl_b32 s3, s3, 10
          s_add_u32 s3, s3, {HF}
          v_add_u32 v5, s3, v0
          s_mul_i32 s{sKA}, s{sCB}, {1024*ROT}
          s_mul_i32 s{sX}, s{sT}, 28
          s_lshl_b32 s3, s{sCB}, 2
          s_add_u32 s{sX}, s{sX}, s3
          s_lshl_b32 s3, s{sFT}, 1
          s_add_u32 s{sX}, s{sX}, s3
          s_lshl_b32 s{sX}, s{sX}, 10
          s_add_u32 s{sX}, s{sX}, {X1F}
          s_add_u32 s3, s{sW}, 12
          s_lshl_b32 s3, s3, 4
          s_lshr_b32 s26, s{sRB}, 1
          s_add_u32 s3, s3, s26
          s_lshl_b32 s3, s3, 7
          s_add_u32 s3, s3, {FP}
          v_mov_b32 v10, s3
          s_lshl_b32 s3, s26, 7
          s_add_u32 s3, s3, {FP}
          v_mov_b32 v11, s3
          v_lshlrev_b32 v8, 3, v1
          v_and_b32 v15, 0xff, v8
          s_lshl_b32 s27, s{sT}, 8
          s_add_u32 s27, s27, {ST1}""")
    unpack(a, RES, EP, 8)
    stamp(a, 2)
    poll(a, 10, 1)
    a(f"buffer_load_dword v12, v11, {s(WD,4)}, 0 offen sc1")
    stamp(a, 3)
    for j in range(7):
        a(f"buffer_load_dwordx4 {v(AR+8*j,4)}, v4, {s(WD,4)}, s{sKA} offen{SC}")
        a(f"buffer_load_dwordx4 {v(AR+8*j+4,4)}, v5, {s(WD,4)}, s{sKA} offen{SC}")
        if j < 6: wrapinc(a, sKA, 1024, 7168)
    a("s_waitcnt vmcnt(14)\nv_cmp_eq_u32 vcc, 0, v12\ns_cbranch_vccz B_st1")
    poll(a, 11, 1)
    a.label("B_st1")
    a(f"buffer_load_dwordx2 {v(EP+8,2)}, v15, {s(WD,4)}, s27 offen{SC}")
    garrive(a, C_X)
    for s_ in range(3): wreads(a, WF, s_, s_*8192)
    NW3 = 0
    for s_ in range(7):
        a(f"s_waitcnt vmcnt({2*(6-s_) + 1 + NW3}) lgkmcnt({4*min(2, 6 - s_)})")
        mfmas(a, ACC, WF, s_ & 3, AR+8*s_, AR+8*s_+4, s_ == 0)
        if s_ + 3 < 7: wreads(a, WF, (s_+3) & 3, (s_+3)*8192)
    U = AR
    stamp(a, 12)
    a(f"s_waitcnt vmcnt({NW3})")
    for i in range(16): a(f"v_sub_f32 v{U+i}, v{RES+i}, v{EP+8}")
    def region2(d, j):
        a(f"""s_xor_b32 s{d}, s{sW}, {(j >> 1) + 2*(j & 1)}
              s_mul_i32 s{d}, s{d}, 12288
              s_add_u32 s{d}, s{d}, {W3B + 48*1024}""")
    region2(sM, 0)
    reduce3(a, ACC, sM, region2, 0, 4, True)
    stamp(a, 13)
    for i in range(16): a(f"v_fma_f32 v{U+i}, v{U+i}, v{EP+9}, v{ACC+i}")
    for i in range(8): a(f"v_cvt_pk_bf16_f32 v{EP+i}, v{U+2*i}, v{U+2*i+1}")
    a(f"buffer_store_dwordx4 {v(EP,4)}, v0, {s(WD,4)}, s{sX} offen{SC}")
    a(f"buffer_store_dwordx4 {v(EP+4,4)}, v0, {s(WD,4)}, s{sX} offen offset:1024{SC}")
    unpack(a, U, EP, 8)
    for i in range(16):
        a(f"v_add_f32 v{10+(i&1)}, v{U+i}, {'0' if i < 2 else 'v%d' % (10+(i&1))}")
        a(f"v_fma_f32 v{12+(i&1)}, v{U+i}, v{U+i}, {'0' if i < 2 else 'v%d' % (12+(i&1))}")
    a("v_add_f32 v10, v10, v11\nv_add_f32 v11, v12, v13")
    half_sum(a, 10, 8); half_sum(a, 11, 9)
    a(f"""s_lshl_b32 s26, s{sCB}, 1
          s_add_u32 s26, s26, s{sFT}
          s_mul_i32 s3, s{sT}, 14
          s_add_u32 s3, s3, s26
          s_lshl_b32 s3, s3, 8
          s_add_u32 s3, s3, {ST3}
          buffer_store_dwordx2 v[10:11], v15, {s(WD,4)}, s3 offen{SC}
          s_lshl_b32 s3, s{sRB}, 3
          s_add_u32 s3, s3, s{sCB}
          s_lshl_b32 s3, s3, 7
          s_add_u32 s{sX}, s3, {F2}""")
    garrive(a, 0)
    for i in range(16): a(f"v_add_f32 v{RES+i}, v{RES+i}, v{U+i}")
    for c in range(W3A, W3E): w3chunk(c)
    a(f"s_waitcnt vmcnt({2*(W3E - W3A)})")
    signal(a, sX, 12)
    stamp(a, 4)
    gwait(a, 0, 8)
    for c in range(W3E, 14): w3chunk(c)
    ACC, WF, XR, TMP = 16, 80, 112, 240
    CSP, CS = TMP, ACC + 48
    a(f"""s_lshl_b32 s3, s{sFT}, 6
          s_sub_u32 s26, 0, s{sL}
          v_add_u32 v2, s26, v2
          v_xor_b32 v2, s3, v2
          v_xor_b32 v3, 64, v2
          v_add_u32 v4, {H1}, v2
          v_add_u32 v5, {H1}, v3""")
    a(f"""s_lshr_b32 s3, s{sT3}, 1
          s_lshl_b32 s3, s3, 10
          s_add_u32 s3, s3, {F2}
          v_lshl_add_u32 v11, v1, 7, s3
          s_lshl_b32 s26, s{sCB3}, 1
          s_lshr_b32 s3, s{sW}, 1
          s_add_u32 s26, s26, s3
          v_add_u32 v8, -7, v1
          v_mul_u32_u24 v8, 28, v8
          v_add_u32 v8, s26, v8
          v_and_b32 v9, 1, v8
          v_lshrrev_b32 v10, 5, v8
          v_lshl_add_u32 v9, v9, 3, v10
          v_bfe_u32 v10, v8, 1, 2
          v_lshl_add_u32 v9, v9, 2, v10
          v_bfe_u32 v10, v8, 3, 2
          v_lshl_add_u32 v9, v9, 2, v10
          v_lshlrev_b32 v9, 7, v9
          v_add_u32 v9, {FP}, v9
          v_cmp_gt_u32 vcc, 7, v1
          v_cndmask_b32 v11, v9, v11, vcc
          s_mul_i32 s{sK3}, s26, {28*256}
          s_and_b32 s3, s{sW}, 1
          s_lshl_b32 s3, s3, 7
          s_add_u32 s{sK3}, s{sK3}, s3
          s_add_u32 s{sK3}, s{sK3}, {CS3P}
          v_lshrrev_b32 v10, 5, v1
          v_mul_u32_u24 v10, {14*256}, v10
          v_and_b32 v9, 31, v1
          v_lshl_add_u32 v6, v9, 2, v10
          s_mul_i32 s3, s{sT3}, {28*1024}
          s_add_u32 s3, s3, {X1F}
          v_add_u32 v7, s3, v0
          s_mul_i32 s{sKA}, s{sCB}, {4096*ROT}
          v_lshrrev_b32 v12, 5, v1
          v_mul_u32_u24 v12, {7*256}, v12
          v_and_b32 v13, 31, v1
          v_lshl_add_u32 v12, v13, 3, v12
          s_mul_i32 s27, s{sT3}, {14*256}
          s_add_u32 s27, s27, {ST3}""")
    a("s_waitcnt vmcnt(0)")
    gbar(a, 0, 12)
    CSG = opt("csg", 1)
    def cs_exchange():
        a(f"""v_cvt_pk_bf16_f32 v{WF}, v{CS}, v{CS}
              v_and_b32 v{WF}, 0xffff0000, v{WF}
              v_sub_f32 v{WF}, v{CS}, v{WF}
              v_cvt_pk_bf16_f32 v{WF}, v{CS}, v{WF}
              v_and_b32 v13, 31, v1
              v_lshlrev_b32 v13, 2, v13
              s_lshl_b32 s26, s{sW}, 7
              s_add_u32 s26, s26, {XCH3}
              v_add_u32 v13, s26, v13
              ds_write_b32 v13, v{WF}""")
        a("s_waitcnt lgkmcnt(0)")
        garrive(a, 0)
    def cs_collect():
        gwait(a, 0, 16)
        a(f"v_and_b32 v15, 31, v1\nv_lshlrev_b32 v15, 2, v15\nv_add_u32 v15, {XCH3}, v15")
        for t in range(4): a(f"ds_read_b32 v{CSP+t}, v15 offset:{128*t}")
        a("s_waitcnt lgkmcnt(0)")
    hops = lambda ts: {}
    woff = None
    poll(a, 11, 14)
    stamp(a, 5)
    STL = [WF + 24, WF + 26, WF + 28, WF + 30, TMP + 8, TMP + 10, 14]; ST = STL[0]
    LA = opt("la3", 12)
    def xl(u):
        g = A()
        g(f"buffer_load_dwordx4 {v(XR+4*u,4)}, v7, {s(WD,4)}, s{sKA} offen offset:{(u&3)*1024}{SC}")
        if (u & 3) == 3 and u < 27: wrapinc(g, sKA, 4096, 7*4096)
        return g.l
    L0 = opt("l0", LA)
    for u in range(L0):
        for x in xl(u): a(x)
        if u == 3:
            for i in range(7): a(f"buffer_load_dwordx2 {v(STL[i],2)}, v12, {s(WD,4)}, s27 offen offset:{i*256}{SC}")
            for i in range(14): a(f"buffer_load_dword v{CS+i}, v6, {s(WD,4)}, s{sK3} offen offset:{i*256}{SC}")
    M0_, M1_, R, DEN = TMP+4, TMP+5, TMP+6, TMP+7
    f = A()
    for i in range(1, 7): f(f"v_add_f32 v{ST}, v{ST}, v{STL[i]}\nv_add_f32 v{ST+1}, v{ST+1}, v{STL[i]+1}")
    f(f"v_mov_b32 v12, v{ST}\nv_mov_b32 v13, v{ST+1}")
    half_sum(f, 12, 8); half_sum(f, 13, 9)
    f(f"""v_mul_f32 v12, {fb(1/448)}, v12
          v_mul_f32 v13, {fb(1/448)}, v13
          v_fma_f32 v13, -v12, v12, v13
          v_max_f32 v13, 0, v13
          v_add_f32 v13, {fb(EPS)}, v13
          v_sqrt_f32 v{DEN}, v13
          v_rsq_f32 v{R}, v13""")
    mu_frag(f, 12, "-1", M0_, M1_)
    gelu_consts(f, R, DEN)
    f(f"""s_mul_i32 s{sK}, s{sT3}, 112
          s_lshl_b32 s27, s{sCB3}, 3
          s_add_u32 s{sK}, s{sK}, s27
          s_lshl_b32 s{sK}, s{sK}, 10
          s_add_u32 s{sK}, s{sK}, {HHF}
          s_add_u32 s27, s{sK}, 4096""")
    for i in range(1, 14): f(f"v_add_f32 v{CS}, v{CS}, v{CS+i}")
    half_sum(f, CS, 8)
    f(f"""v_cvt_pk_bf16_f32 v11, v{CS}, v{CS}
          v_and_b32 v11, 0xffff0000, v11
          v_sub_f32 v11, v{CS}, v11
          v_cvt_pk_bf16_f32 v11, v{CS}, v11
          s_lshl_b32 s26, s{sW}, 7
          s_add_u32 s26, s26, {XCH3}
          v_and_b32 v13, 31, v1
          v_lshl_add_u32 v13, v13, 2, s26""")
    NA = 2
    t1 = ((0,) if CSG else (0, 4)) + tuple(range(1, NA)); t2_ = tuple(range(NA, 4))
    pre = hops(t1); pre["fill0"] = 4*len(t1) + 1; pre["G"] = opt("g3g", 1)
    issued = L0
    for s_ in range(28):
        pre[("s", s_)] = [f"s_waitcnt vmcnt({issued - 1 - s_ + (21 if s_ < 4 else 0)})"]
        pre[("t", s_)] = []
        for _ in range(2):
            if issued < min(28, s_ + 1 + LA): pre[("t", s_)] += xl(issued); issued += 1
        if opt("g3s", 0) and common.STAMPS and s_ in (0, 8, 16, 27):
            g = A(); common.stamp(g, {0: 2, 8: 3, 16: 12, 27: 13}[s_]); pre[("s", s_)] += g.l
    g = A(); g("ds_write_b32 v13, v11"); garrive(g, 0); pre[("m", 53)] = g.l
    pre["fillend"] = 52
    a(f"s_setprio {opt('p3a', 1)}")
    kloop(a, ACC, WF, XR, 2, t1, woff, pre, True, f.l, R=6, D=5, cs=(CS, CSP, 32))
    a(f"s_setprio {opt('pb', 1)}")
    cs_collect()
    stamp(a, 13 if False else 14)
    def gfrag(fr, o):
        return gelu8(ACC + 8*fr, 10, 12, 14, TMP + 8, o) + [f"buffer_store_dwordx4 {v(o,4)}, v0, {s(WD,4)}, s{sK if fr < 4 else 27} offen offset:{(fr&3)*1024}{SC}"]
    assert NA == 2
    garrive(a, 0)
    mean_fix(a, ACC, WF, lambda t: CSP + t, M0_, M1_, tuple(range(NA)))
    srd(a, WA, 18, 1792 * 896)
    a(f"""v_lshrrev_b32 v8, 3, v1
          v_bfe_u32 v9, v1, 4, 1
          v_lshlrev_b32 v9, 2, v9
          v_and_b32 v7, 7, v1
          v_xor_b32 v9, v9, v7
          v_mul_u32_u24 v8, 896, v8
          v_lshl_add_u32 v7, v9, 4, v8
          s_and_b32 s3, s2, 1
          s_mul_i32 s3, s3, 56
          s_add_u32 s3, s3, s{sW}
          s_mul_i32 s3, s3, {16*896}
          s_lshl_b32 s26, s{sCB}, 7
          s_add_u32 s3, s3, s26
          v_add_u32 v7, s3, v7                   ; W4 voffset
          s_mul_i32 s{sK3}, s{sCB}, {8*16*896*ROT}""")
    def w4step(g, j):
        for u in range(2):
            g(f"s_add_u32 m0, s{sL}, {j*8192 + u*1024}\ns_add_u32 s3, s{sK3}, {u*8*896}\nbuffer_load_dwordx4 v7, {s(WA,4)}, s3 offen lds")
        wrapinc(g, sK3, 4*16*896, 896*896)
    nov = opt("nov", 4)
    pre = {}
    W4S = opt("w4s", 3)
    W4E = opt("w4e", 0)
    g = A(); g.uid = 2000; gwait(g, 0, 20); pre[("s", W4S if W4E else 26)] = g.l
    for j in range(W4E):
        g = A(); w4step(g, j); pre[("t", W4S + (21 // W4E)*j)] = g.l
    kloop(a, ACC, WF, XR, 2, t2_, woff, pre, True,
          sum((gfrag(fr, ACC + 8*fr) for fr in range(nov)), []), R=6, D=5)
    garrive(a, 0)
    OWN = 168
    for fr in range(nov):
        for i in range(4): a(f"v_mov_b32 v{OWN+4*fr+i}, v{ACC+8*fr+i}")
    mean_fix(a, ACC, WF, lambda t: CSP + t, M0_, M1_, tuple(range(NA if NA < 4 else 0, 4)))
    for fr in range(nov, 8):
        if opt("pkg", 0):
            gelu_pairs(a, [ACC + 8*fr + 2*i for i in range(4)], 10, 12, 14, TMP + 8)
            for i in range(4): a(f"v_cvt_pk_bf16_f32 v{XR+4*fr+i}, v{ACC+8*fr+2*i}, v{ACC+8*fr+2*i+1}")
            a(gfrag(fr, XR + 4*fr)[-1])
        else:
            for x in gfrag(fr, OWN + 4*fr): a(x)
    stamp(a, 8)
    ACC, WF, AR, EP = 16, 80, 112, 176
    WOB = 0
    srd(a, WB_, 8, 448 * 896)
    a("s_and_b32 s27, s2, 1")
    gwait(a, 0, B_G3_DONE)
    NP0 = opt("np0", 4)
    for j in range(W4E, W4E + NP0): w4step(a, j)
    a(f"""s_lshl_b32 s3, s{sRB3}, 4
          s_add_u32 s3, s3, s{sCB3}
          s_lshl_b32 s3, s3, 7
          s_add_u32 s{sX}, s3, {F3}
          s_mul_i32 s3, s{sT3}, 112
          s_mul_i32 s26, s27, 56
          s_add_u32 s3, s3, s26
          s_lshl_b32 s3, s3, 10
          s_add_u32 s3, s3, {HHF}
          v_add_u32 v4, s3, v0
          s_add_u32 s{sKA}, s{sCB}, 1
          s_cmp_eq_u32 s{sKA}, 7
          s_cselect_b32 s{sKA}, 0, s{sKA}
          s_lshl_b32 s{sKA}, s{sKA}, 13
          s_lshl_b32 s26, s{sRB3}, 4
          s_mul_i32 s3, s27, 7
          s_add_u32 s3, s3, s26
          v_add_u32 v10, s3, v1
          v_lshlrev_b32 v10, 7, v10
          v_add_u32 v10, {F3}, v10
          s_lshl_b32 s3, s{sW}, 2
          s_add_u32 s3, s3, s26
          v_and_b32 v14, 3, v1
          v_add_u32 v14, s3, v14
          v_lshlrev_b32 v14, 7, v14
          v_add_u32 v14, {FA}, v14
          s_waitcnt vmcnt({2*NP0})""")
    signal(a, sX, 16)
    stamp(a, 9)
    for j in range(W4E + NP0, 14): w4step(a, j)
    a(f"""s_mul_i32 s3, s27, {896*896}
          s_mul_i32 s26, s{sW}, {96*896}
          s_sub_u32 s3, s26, s3
          v_add_u32 v7, s3, v7""")
    poll(a, 10, 7)
    gbar(a, 0, B_G3_DONE + 4)
    stamp(a, 10)
    LA4, RA = opt("la4", 12), 14
    PB = opt("pb16", 1); NPS = 8 >> PB
    OR_ = lambda u: 168 + 8*u if u < 7 else 240
    PD, EP = AR, AR + 16
    q = []
    def after(tag):
        return len(q) - 1 - max(i for i, x in enumerate(q) if x == tag)
    def al(u):
        a(f"buffer_load_dwordx4 {v(AR + 4*(u % RA), 4)}, v4, {s(WD,4)}, s{sKA} offen offset:{(u&3)*1024}{SC}"); q.append(("a", u))
        if (u & 3) == 3 and u < 55: wrapinc(a, sKA, 4096, 56*1024)
    def rd(m):
        s_, b = m >> 1, m & 1
        if m == 64: a("v_add_u32 v2, 0x10000, v2\nv_add_u32 v3, 0x10000, v3")
        for e in range(2): a(f"ds_read_b64_tr_b16 {v(WF + 4*(m & 7) + 2*e, 2)}, v{2+b} offset:{(s_ & 31)*2048 + e*1024}")
    def wo(u):
        a(f"s_add_u32 m0, s{sM}, {u*1024}\ns_mov_b32 s3, {u*8*896}\nbuffer_load_dwordx4 v7, {s(WB_,4)}, s3 offen lds"); q.append(("w", u))
    def ol(u):
        for aa in range(2):
            a(f"buffer_load_dwordx4 {v(OR_(u)+4*aa,4)}, v{12+aa}, {s(WD,4)}, {'0' if u < 4 else 's%d' % sL} offen offset:{(u&3)*1024}{SC}"); q.append(("o", u))
    assert ROT
    I0 = opt("i0", 4); nxt = [8 + I0]
    for u in range(8, 8 + I0): al(u)
    a(f"""s_mul_i32 s{sM}, s{sW}, 15360
          s_movk_i32 s{sL}, 4096
          s_lshl_b32 s3, s{sT}, 5
          s_lshl_b32 s26, s{sW}, 3
          s_add_u32 s3, s3, s26
          s_lshl_b32 s3, s3, 10
          s_add_u32 s3, s3, {OF}
          v_add_u32 v12, s3, v0
          v_xor_b32 v13, {32*1024}, v12
          s_setprio {opt('pf', 0)}""")
    D4 = 6
    S_ARR, S_WO, S_FL, S_CHK = 31, opt("swo", 36), opt("sfl", 52), 99
    for m in range(D4): rd(m)
    for m in range(112):
        s_, b = m >> 1, m & 1
        if b == 0: a("s_waitcnt " + (f"vmcnt({after(('a', s_))}) " if s_ >= 8 else "") + f"lgkmcnt({2*max(0, min(D4 - 2, 110 - m))})")
        a(f"{MF} {v(ACC+16*b,16)}, {v(WF + 4*(m & 7), 4)}, {v(AR + 4*(s_ % RA) if s_ >= 8 else OWN + 4*s_, 4)}, {'0' if s_ == 0 else v(ACC+16*b,16)}")
        if m + D4 < 112: rd(m + D4)
        if b == 1:
            if opt("g4s", 0) and s_ in (7, 8, 30, 36, 51): stamp(a, {7: 2, 8: 3, 30: 12, 36: 13, 51: 4}[s_])
            for _ in range(opt("i1", 1) if s_ < 8 else 1):
                if nxt[0] < min(56, max(s_, 7) + 1 + LA4): al(nxt[0]); nxt[0] += 1
            if s_ == S_ARR: garrive(a, 0)
            if s_ == S_WO: gwait(a, 0, B_G3_DONE + 8)
            if S_WO <= s_ < S_WO + 15: wo(s_ - S_WO)
            if s_ == S_FL:
                a(f"buffer_load_dword v15, v14, {s(WD,4)}, 0 offen sc1"); q.append("f")
    a(f"s_setprio {opt('pb', 1)}")
    stamp(a, 11)
    a(f"""s_lshl_b32 s{sX}, s2, 7
          s_add_u32 s{sX}, s{sX}, {FQ}
          s_lshl_b32 s3, s{sFT}, 6
          s_add_u32 s26, s{sM}, 0xffff0000
          v_xor_b32 v2, s3, v2
          v_xor_b32 v3, s3, v3
          v_add_u32 v2, s26, v2
          v_add_u32 v3, s26, v3
          s_xor_b32 s3, s{sRB}, 1
          s_mul_i32 s3, s3, 7
          s_add_u32 s3, s3, s{sCB}
          s_lshl_b32 s3, s3, 1
          s_and_b32 s26, s{sW}, 1
          s_add_u32 s3, s3, s26
          s_lshl_b32 s3, s3, {13 - PB}
          s_add_u32 s3, s3, {PART}
          s_cmp_eq_u32 s{sFT}, 0
          s_cselect_b32 s3, {OOB}, s3
          s_add_u32 s26, s3, 4096""")
    woff2 = lambda u: (28*(u >> 1) + 16*(u & 1)) * 128
    if PB:
        for i in range(16):
            a(f"v_cvt_pk_bf16_f32 v{AR+i}, v{ACC+2*i}, v{ACC+2*i+1}")
            if (i & 3) == 3: a(f"buffer_store_dwordx4 {v(AR+i-3,4)}, v0, {s(WD,4)}, s3 offen offset:{(i>>2)*1024}{SC}")
    else:
        for i in range(8): a(f"buffer_store_dwordx4 {v(ACC+4*i,4)}, v0, {s(WD,4)}, s{3 if i < 4 else 26} offen offset:{(i&3)*1024}{SC}")
    a(f"""s_mov_b32 s{sKA}, 0
          s_waitcnt vmcnt({NPS})
          v_cmp_eq_u32 vcc, 0, v15
          s_cbranch_vccz B_oready
          s_waitcnt vmcnt(0)""")
    signal(a, sX, C_SQ)
    a(f"s_mov_b32 s{sKA}, 1")
    poll(a, 14, 4)
    a.label("B_oready")
    for u in range(8): ol(u)
    stamp(a, 15)
    for u in range(3): wreads(a, WF, u, woff2(u))
    a(f"""s_mul_i32 s27, s{sRB}, 7
          s_add_u32 s27, s27, s{sCB}
          s_lshl_b32 s27, s27, 1
          s_and_b32 s26, s{sW}, 1
          s_add_u32 s27, s27, s26
          s_lshl_b32 s27, s27, 1
          s_add_u32 s27, s27, s{sFT}
          s_lshl_b32 s27, s27, {12 - PB}
          s_add_u32 s{sK}, s27, {PART}
          s_xor_b32 s3, s2, 1
          s_lshl_b32 s3, s3, 7
          s_add_u32 s3, s3, {FQ}
          v_mov_b32 v14, s3
          s_cmp_eq_u32 s{sFT}, 0
          s_cbranch_scc1 B_keep""")
    for i in range(32): a(f"v_mov_b32 v{ACC+i}, 0")
    a.label("B_keep")
    a(f"s_waitcnt vmcnt(16)\ns_cmp_lg_u32 s{sKA}, 0\ns_cbranch_scc1 B_sigd")
    signal(a, sX, C_SQ)
    a.label("B_sigd")
    for u in range(8):
        a(f"s_waitcnt vmcnt({2*(7 - u)}) lgkmcnt({4*min(2, 7 - u)})")
        for aa in range(2):
            for b in range(2):
                j = 2*aa + b
                a(f"{MF} {v(ACC+16*j,16)}, {v(WF+8*(u&3)+4*b,4)}, {v(OR_(u)+4*aa,4)}, {'0' if (u == 0 and aa) else v(ACC+16*j,16)}")
        if u + 3 < 8: wreads(a, WF, (u+3) & 3, woff2(u+3))
    a(f"buffer_load_dword v15, v14, {s(WD,4)}, 0 offen sc1")
    if opt("ts", 0): stamp(a, 2)
    def region3(d, j):
        a(f"s_xor_b32 s{d}, s{sW}, {(j >> 1) + 2*(j & 1)}\ns_mul_i32 s{d}, s{d}, 15360\ns_add_u32 s{d}, s{d}, {WOB}")
    srd(a, XS, 20, 2048 * 896)
    OSC = ["", " sc1", " nt"][opt("osc", 2)]
    OT = WOB + 4*15360
    a(f"""v_and_b32 v4, 31, v1
          s_and_b32 s26, s{sW}, 1
          s_lshl_b32 s26, s26, 5
          v_add_u32 v4, s26, v4
          v_mul_u32_u24 v4, 144, v4
          v_lshrrev_b32 v9, 5, v1
          v_lshl_add_u32 v4, v9, 3, v4
          s_lshl_b32 s26, s{sFT}, 6
          s_add_u32 s26, s26, {OT}
          v_add_u32 v4, s26, v4
          v_lshrrev_b32 v6, 3, v1
          s_lshl_b32 s26, s{sW}, 4
          v_add_u32 v6, s26, v6
          v_and_b32 v9, 7, v1
          v_mul_u32_u24 v5, 144, v6
          v_lshl_add_u32 v5, v9, 4, v5
          v_add_u32 v5, {OT}, v5
          v_mul_u32_u24 v6, 896, v6
          v_lshl_add_u32 v6, v9, 4, v6
          s_mul_i32 s27, s{sRB}, {64*896}
          s_lshl_b32 s26, s{sCB}, 7
          s_add_u32 s27, s27, s26
          s_add_u32 s{sX}, s27, {8*896}""")
    def fetch_partial():
        a("s_waitcnt vmcnt(0)\nv_cmp_eq_u32 vcc, 0, v15\ns_cbranch_vccz B_pready")
        poll(a, 14, 1)
        a.label("B_pready")
        for i in range(4 >> PB): a(f"buffer_load_dwordx4 {v(PD+16*PB+4*i,4)}, v0, {s(WD,4)}, s{sK} offen offset:{i*1024}{SC}")
    reduce3(a, ACC, sM, region3, 0, B_G3_DONE + 12, True, fetch_partial)
    if opt("ts", 0): stamp(a, 3)
    for i in range(16): a(f"v_add_f32 v{ACC+i}, v{ACC+i}, v{RES+i}")
    a("s_waitcnt vmcnt(0)")
    if PB: unpack(a, PD, PD + 16, 8)
    for i in range(16): a(f"v_add_f32 v{ACC+i}, v{ACC+i}, v{PD+i}")
    if opt("ts", 0): stamp(a, 12)
    for i in range(8): a(f"v_cvt_pk_bf16_f32 v{EP+i}, v{ACC+2*i}, v{ACC+2*i+1}")
    for j in range(4): a(f"ds_write_b64 v4, {v(EP+2*j,2)} offset:{16*j}")
    gbar(a, 0, B_G3_DONE + 16)
    if opt("ts", 0): stamp(a, 13)
    a(f"""ds_read_b128 {v(EP,4)}, v5
          ds_read_b128 {v(EP+4,4)}, v5 offset:{8*144}
          s_waitcnt lgkmcnt(1)
          buffer_store_dwordx4 {v(EP,4)}, v6, {s(XS,4)}, s27 offen{OSC}
          s_waitcnt lgkmcnt(0)
          buffer_store_dwordx4 {v(EP+4,4)}, v6, {s(XS,4)}, s{sX} offen{OSC}""")
    stamp_out2(a)
    a("s_endpgm")

def stamp_out2(a):
    if not common.STAMPS: return
    a("s_waitcnt vmcnt(0)")
    common.stamp(a, 6); common.stamp(a, 7, True)
    a("s_waitcnt lgkmcnt(0)")
    for i in range(16): a(f"v_mov_b32 v{16+i}, s{64+2*i}")
    a(f"""s_lshl_b32 s3, s2, 3
          s_add_u32 s3, s3, s60
          s_lshl_b32 s3, s3, 6
          s_add_u32 s3, s3, {TS}
          v_mov_b32 v8, 0""")
    for j in range(4): a(f"buffer_store_dwordx4 v[{16+4*j}:{19+4*j}], v8, {s(WD,4)}, s3 offen offset:{16*j}")

def p1stamps():
    return common.STAMPS and opt("p1s", 0)

def build(name):
    a = A()
    a.label("K_start")
    a("s_cmp_ge_u32 s2, 256\ns_cbranch_scc1 K_end")
    load_args(a)
    a(f"""v_and_b32 v1, 63, v0
          v_lshrrev_b32 v8, 6, v0
          s_mov_b32 s59, {fb(2.0**100)}
          v_readfirstlane_b32 s60, v8
          v_lshlrev_b32 v0, 4, v1
          s_and_b32 s{sW}, s60, 3
          s_cmp_ge_u32 s60, 4""")
    if opt("bfirst", 1):
        a("s_cbranch_scc0 K_rolea")
        p1b(a)
        a("s_branch K_roleb")
        a.label("K_rolea")
        p1a(a)
        att(a)
        a.label("K_roleb")
        roleb(a)
    else:
        a("s_cbranch_scc1 K_roleb")
        p1a(a)
        att(a)
        a.label("K_roleb")
        p1b(a)
        roleb(a)
    a.label("K_end")
    a("s_endpgm")
    a.label("K_last")
    return a

if __name__ == "__main__":
    if "stamp" in sys.argv[1]: common.STAMPS = True
    name = "parallel_sum__mha_block__mixer_s_mlp__prompt_kernel"
    HDR = open("parallel_sum__mha_block__mixer_s_mlp__prompt.s.ref").read().split("; Override launch")[0]
    out = HDR + "; @launch grid=(256,1,1) block=(512,1,1) lds=163840\n" + '.amdgcn_target "amdgcn-amd-amdhsa--gfx950"\n'
    out += kernel_head(name) + build(name).text() + kernel_desc(name, vgpr=256, sgpr=102)
    open(sys.argv[1], "w").write(out)
```

```python
import sys
import common
from common import *

FLG = 0x1550000
FP, F2, F3, FA, FQ = FLG, FLG + 0x8000, FLG + 0x10000, FLG + 0x18000, FLG + 0x20000
NINIT = 20
PART = 0x1600000
WS_END = 0x1A00000
sFT = 52
CS3P = 0x800000
XS, WA, WD, WB_ = 28, 32, 36, 40
sW, sSPIN = 46, 58
SC = " sc1"
CNT = 156 * 1024
C_B, C_A, C_S1, C_S2, C_S3, C_SA, C_W, C_X, C_SQ = 0, 4, 8, 12, 16, 20, 24, 28, 32
SPIN_MAX = 1 << 16
import os
OPT = dict(x.split("=") for x in os.environ.get("MKOPT", "").split(",") if x)
def opt(k, d): return int(OPT.get(k, d))
SLEEP = opt("sleep", 2)
DEBUG = "dbg" in sys.argv[1] if len(sys.argv) > 1 else False


def poll(a, vaddr, nlanes, srdreg=WD, soff="0"):
    L, D = a.newlabel("PL"), a.newlabel("PD")
    a(f"s_mov_b32 s{sSPIN}, {SPIN_MAX}")
    a(f"s_mov_b64 exec, {(1 << nlanes) - 1}" if nlanes <= 6 else f"s_bfm_b64 exec, {nlanes}, 0")
    a.label(L)
    a(f"""buffer_load_dword v9, v{vaddr}, {s(srdreg,4)}, {soff} offen sc1
          s_waitcnt vmcnt(0)
          v_cmp_eq_u32 vcc, 0, v9
          s_cbranch_vccz {D}
          s_sleep {SLEEP}
          s_sub_u32 s{sSPIN}, s{sSPIN}, 1
          s_cmp_lg_u32 s{sSPIN}, 0
          s_cbranch_scc1 {L}""")
    a.label(D)
    a("s_mov_b64 exec, -1")

SCB = "" if opt("local", 0) else " sc1"
def signal(a, soff, cnt, sc=" sc1", last=3):
    a(f"""s_mov_b64 exec, 1
          v_mov_b32 v8, {CNT + cnt}
          v_mov_b32 v9, 1
          ds_add_rtn_u32 v8, v8, v9
          s_waitcnt lgkmcnt(0)
          v_readfirstlane_b32 s26, v8
          v_mov_b32 v8, 0
          s_cmp_eq_u32 s26, {last}
          s_cselect_b32 s26, s{soff}, {OOB}
          buffer_store_dword v9, v8, {s(WD,4)}, s26 offen{sc}
          s_mov_b64 exec, -1""")

def garrive(a, off, field=0):
    a(f"""s_mov_b64 exec, 1
          v_mov_b32 v8, {CNT + off}
          v_mov_b32 v9, {1 << (4*field)}
          ds_add_u32 v8, v9
          s_mov_b64 exec, -1""")

def gwait(a, off, target, va=8, sr=3, field=None):
    L, D = a.newlabel("GL"), a.newlabel("GD")
    a(f"s_mov_b32 s{sSPIN}, {SPIN_MAX * 8}\nv_mov_b32 v{va}, {CNT + off}")
    a.label(L)
    a(f"""ds_read_b32 v{va+1}, v{va}
          s_sub_u32 s{sSPIN}, s{sSPIN}, 1
          s_cbranch_scc1 {D}
          s_waitcnt lgkmcnt(0)
          v_readfirstlane_b32 s{sr}, v{va+1}
          {"" if field is None else f"s_bfe_u32 s{sr}, s{sr}, {0x40000 + 4*field}"}
          s_cmp_lt_u32 s{sr}, {target}
          s_cbranch_scc1 {L}""")
    a.label(D)
    a("s_waitcnt lgkmcnt(0)")

def gbar(a, off, target):
    a("s_waitcnt lgkmcnt(0)")
    garrive(a, off); gwait(a, off, target)

def kloop(a, ACC, WF, XR, vA, tiles, offs, pre, perm, fill=(), R=8, D=6, cs=None):
    ops = [(s_, t) for s_ in range(28) for t in (tiles if s_ < 27 else pre.get("lastorder", tiles))]
    N = len(ops); fill = list(fill); done = 0
    def rd(m):
        s_, t = ops[m]
        if (s_ & 3) == 0 and t == tiles[0]:
            for x in pre.get(s_ >> 2, []): a(x)
        for e in range(2):
            row = 16 * (s_ & 3) + (8 * e if perm else 4 * e)
            a(f"ds_read_b64_tr_b16 {v(WF + 4*(m % R) + 2*e, 2)}, v{vA+t} offset:{offs(s_ >> 2) + row*256 if offs else s_*2048 + e*1024}")
    for m in range(D): rd(m)
    f0 = pre.get("fill0", 1)
    per = max(1, -(-len(fill) // (pre.get("fillend", N - 1) - f0)))
    for m, (s_, t) in enumerate(ops):
        if (s_ & 3) == 0 and t == tiles[0]:
            for x in pre.get(("x", s_ >> 2), []): a(x)
        if t == tiles[0]:
            for x in pre.get(("s", s_), []): a(x)
        G = pre.get("G", 1)
        if m % G == 0: a(f"s_waitcnt lgkmcnt({2*max(0, min(D - G, N - G - m))})")
        if t < 4: a(f"{MF} {v(ACC+16*t,16)}, {v(WF + 4*(m % R), 4)}, {v(XR(s_) if callable(XR) else XR+4*s_,4)}, {'0' if s_ == 0 else v(ACC+16*t,16)}")
        elif len(cs) == 3: a(f"{MF} {v(cs[0],16)}, {v(cs[1],4)}, {v(WF + 4*(m % R), 4)}, {'0' if s_ == 0 else v(cs[0],16)}")
        else: a(f"v_mfma_f32_16x16x32_bf16 {v(cs[0],4)}, {v(cs[1],4)}, {v(WF + 4*(m % R), 4)}, {'0' if s_ == 0 else v(cs[0],4)}")
        if m + D < N: rd(m + D)
        if (s_ & 3) == 0 and t == tiles[0]:
            for x in pre.get(("y", s_ >> 2), []): a(x)
        if t == tiles[min(1, len(tiles) - 1)]:
            for x in pre.get(("t", s_), []): a(x)
        for x in pre.get(("m", m), []): a(x)
        if m >= f0:
            for x in fill[done:done + per]: a(x)
            done += per
    for x in fill[done:]: a(x)

def kburst(a, ACC, WF, XR, vA, offs, pre, fill=()):
    fill = list(fill); per = -(-len(fill) // 26); done = 0
    def rd(s_):
        if (s_ & 3) == 0:
            for x in pre.get(s_ >> 2, []): a(x)
        for t in range(4):
            for e in range(2):
                a(f"ds_read_b64_tr_b16 {v(WF + 16*(s_ & 1) + 4*t + 2*e, 2)}, v{vA+t} offset:{offs(s_ >> 2) + (16*(s_ & 3) + 8*e)*256}")
    rd(0); rd(1)
    for s_ in range(28):
        if (s_ & 3) == 0:
            for x in pre.get(("x", s_ >> 2), []): a(x)
        a(f"s_waitcnt lgkmcnt({8 if s_ < 27 else 0})")
        for t in range(4):
            a(f"{MF} {v(ACC+16*t,16)}, {v(WF + 16*(s_ & 1) + 4*t, 4)}, {v(XR+4*s_,4)}, {'0' if s_ == 0 else v(ACC+16*t,16)}")
        if s_ + 2 < 28: rd(s_ + 2)
        if s_:
            for x in fill[done:done + per]: a(x)
            done += per

def tr_addrs(a, vA, sTS, base, perm, which=(0, 1, 2, 3, 4)):
    a(f"""v_lshrrev_b32 v8, 5, v1
          v_bfe_u32 v9, v1, 2, 2
          v_bfe_u32 v10, v1, 4, 1
          v_and_b32 v11, 3, v1
          v_lshl_add_u32 v10, v10, 2, v11
          v_lshl_add_u32 v8, v8, {2 if perm else 3}, v9
          v_lshlrev_b32 v8, 8, v8
          v_add_u32 v8, {base}, v8
          v_lshlrev_b32 v9, 2, v9""")
    for t in which:
        a(f"s_mul_i32 s26, {sTS}, {t}" if t < 4 else f"s_mul_i32 s26, {sTS}, s{sW}")
        a(f"""v_add_u32 v11, s26, v10
              v_lshrrev_b32 v12, 1, v11
              v_add_u32 v12, v12, v9
              v_and_b32 v12, 15, v12
              v_and_b32 v11, 1, v11
              v_lshlrev_b32 v11, 3, v11
              v_lshl_add_u32 v11, v12, 4, v11
              v_add_u32 v{vA+t}, v8, v11""")

def cs_publish(a, CS, T, xch):
    a(f"""v_cvt_pk_bf16_f32 v{T}, v{CS}, v{CS}
          v_and_b32 v{T+1}, 0xffff0000, v{T}
          v_sub_f32 v{T+1}, v{CS}, v{T+1}
          v_cvt_pk_bf16_f32 v{T}, v{CS}, v{T+1}
          v_and_b32 v10, 31, v1
          v_lshlrev_b32 v10, 2, v10
          v_add_u32 v10, {xch}, v10
          s_lshl_b32 s26, s{sW}, 7
          v_add_u32 v9, s26, v10
          ds_write_b32 v9, v{T}""")

def mean_fix(a, ACC, T, src, vMU0, vMU1, tiles=(0, 1, 2, 3)):
    n = len(tiles)
    a(f"v_mov_b32 v{T+4*n}, v{vMU0}\nv_mov_b32 v{T+4*n+1}, v{vMU1}\nv_mov_b32 v{T+4*n+2}, 0\nv_mov_b32 v{T+4*n+3}, 0")
    for i, t in enumerate(tiles):
        if src(t) != T + 4*i: a(f"v_mov_b32 v{T+4*i}, v{src(t)}")
        a(f"v_and_b32 v{T+4*i+1}, 0xffff, v{src(t)}\nv_mov_b32 v{T+4*i+2}, 0\nv_mov_b32 v{T+4*i+3}, 0")
    for i, t in enumerate(tiles): a(f"{MF} {v(ACC+16*t,16)}, {v(T+4*i,4)}, {v(T+4*n,4)}, {v(ACC+16*t,16)}")

def mu_frag(a, vmu, lo_en, d0, d1):
    a(f"""v_cvt_pk_bf16_f32 v{d0}, -v{vmu}, -v{vmu}
          v_and_b32 v8, 0xffff0000, v{d0}
          v_sub_f32 v8, -v{vmu}, v8
          v_cvt_pk_bf16_f32 v{d1}, v8, 0
          v_and_b32 v{d1}, {lo_en}, v{d1}
          v_lshrrev_b32 v8, 5, v1
          v_add_u32 v8, -1, v8
          v_and_b32 v{d0}, v8, v{d0}
          v_and_b32 v{d1}, v8, v{d1}""")

def gelu_consts(a, R, DEN):
    a(f"""v_mul_f32 v10, {fb(GK1)}, v{R}
          v_mul_f32 v12, v{R}, v{R}
          v_mul_f32 v12, v12, v{R}
          v_mul_f32 v12, {fb(GK2)}, v12
          v_mov_b32 v14, v{DEN}""")

def gelu8(regs0, K1, K2, IS, T, out):
    L = []
    for i in range(8): L.append(f"v_mul_f32 v{T+i}, v{regs0+i}, v{regs0+i}")
    for i in range(8): L.append(f"v_fma_f32 v{T+i}, v{T+i}, v{K2}, v{K1}")
    for i in range(8): L.append(f"v_mul_f32 v{T+i}, v{T+i}, v{regs0+i}")
    for i in range(8): L.append(f"v_exp_f32 v{T+i}, v{T+i}")
    for i in range(8): L.append(f"v_fma_f32 v{T+i}, v{T+i}, v{IS}, v{IS}")
    for i in range(8): L.append(f"v_rcp_f32 v{T+i}, v{T+i}")
    for i in range(8): L.append(f"v_mul_f32 v{T+i}, v{T+i}, v{regs0+i}")
    for i in range(4): L.append(f"v_cvt_pk_bf16_f32 v{out+i}, v{T+2*i}, v{T+2*i+1}")
    return L

def wrapinc(a, sreg, step, lim):
    a(f"s_add_u32 s{sreg}, s{sreg}, {step}\ns_cmp_eq_u32 s{sreg}, {lim}\ns_cselect_b32 s{sreg}, 0, s{sreg}")

def reduce3(a, ACC, sM, region, cnt_off, target, xor, mid=None):
    a(f"v_add_u32 v10, s{sM}, v0")
    for j in range(1, 4):
        for i in range(4): a(f"ds_write_b128 v10, {v(ACC+16*j+4*i,4)} offset:{(j-1)*4096 + i*1024}")
    for j in range(1, 4):
        region(26, j)
        a(f"v_add_u32 v{10+j}, s26, v0")
    gbar(a, cnt_off, target)
    if mid: mid()
    for j in range(1, 4):
        for i in range(4): a(f"ds_read_b128 {v(ACC+16*j+4*i,4)}, v{10+j} offset:{(j-1)*4096 + i*1024}")
    for j in range(1, 4):
        a(f"s_waitcnt lgkmcnt({4*(3-j)})")
        for i in range(16): a(f"v_add_f32 v{ACC+i}, v{ACC+i}, v{ACC+16*j+i}")

def reduce3c(a, ACC, sM, region, cnt_off, target):
    BL = 3712
    a(f"""v_add_u32 v10, s{sM}, v0
          v_lshlrev_b32 v14, 2, v1
          v_add_u32 v14, {3584 - 128}, v14
          v_add_u32 v15, s{sM}, v14""")
    for j in range(1, 4):
        for i in range(3): a(f"ds_write_b128 v10, {v(ACC+16*j+4*i,4)} offset:{(j-1)*BL + i*1024}")
    a("s_mov_b64 exec, 0xffffffff")
    for j in range(1, 4): a(f"ds_write_b128 v10, {v(ACC+16*j+12,4)} offset:{(j-1)*BL + 3072}")
    a("s_not_b64 exec, exec")
    for j in range(1, 4): a(f"ds_write_b32 v15, v{ACC+16*j+12} offset:{(j-1)*BL}")
    a("s_mov_b64 exec, -1")
    for j in range(1, 4):
        region(26, j)
        a(f"v_add_u32 v{10+j}, s26, v0\nv_add_u32 v{4+j}, s26, v14")
    gbar(a, cnt_off, target)
    a("s_mov_b64 exec, 0xffffffff")
    for j in range(1, 4): a(f"ds_read_b128 {v(ACC+16*j+12,4)}, v{10+j} offset:{(j-1)*BL + 3072}")
    a("s_not_b64 exec, exec")
    for j in range(1, 4): a(f"ds_read_b32 v{ACC+16*j+12}, v{4+j} offset:{(j-1)*BL}")
    a("s_mov_b64 exec, -1")
    for j in range(1, 4):
        for i in range(3): a(f"ds_read_b128 {v(ACC+16*j+4*i,4)}, v{10+j} offset:{(j-1)*BL + i*1024}")
    for j in range(1, 4):
        a(f"s_waitcnt lgkmcnt({3*(3-j)})")
        for i in range(16): a(f"v_add_f32 v{ACC+i}, v{ACC+i}, v{ACC+16*j+i}")

def unpack(a, dst, src, n):
    for i in range(n):
        a(f"v_lshlrev_b32 v{dst+2*i}, 16, v{src+i}\nv_and_b32 v{dst+2*i+1}, 0xffff0000, v{src+i}")

NBAR_P1 = 10
XB = 112 * 1024
XCH = XB + 16384
def p1a(a):
    a(f"s_setprio {opt('pa1', 2)}")
    ACC, CS, WF, XR, TMP = 16, 80, 96, 136, 248
    sRB, sCB, sTY, sSUB, sTS, sLO, sT = 44, 45, 47, 48, 50, 55, 56
    a(f"""s_and_b32 s26, s2, 7
          s_lshr_b32 s27, s2, 3
          s_lshr_b32 s{sRB}, s26, 1
          s_lshl_b32 s{sRB}, s{sRB}, 2
          s_and_b32 s3, s27, 3
          s_add_u32 s{sRB}, s{sRB}, s3
          s_and_b32 s{sCB}, s26, 1
          s_lshl_b32 s{sCB}, s{sCB}, 3
          s_lshr_b32 s3, s27, 2
          s_add_u32 s{sCB}, s{sCB}, s3
          s_lshr_b32 s{sTY}, s{sCB}, 2
          s_and_b32 s{sSUB}, s{sCB}, 3
          s_cmp_eq_u32 s{sTY}, 3
          s_cselect_b32 s{sTS}, 8, 7
          s_cselect_b32 s{sLO}, -1, 0
          s_lshl_b32 s{sT}, s{sRB}, 2
          s_add_u32 s{sT}, s{sT}, s{sW}""")
    tr_addrs(a, 2, f"s{sTS}", 0, perm=False)
    a(f"""v_and_b32 v8, 15, v1
          v_bfe_u32 v9, v1, 4, 1
          v_cmp_eq_u32 vcc, v8, v9
          v_mov_b32 v8, 0x3f803f80
          v_cndmask_b32 v{CS+4}, 0, v8, vcc
          v_mov_b32 v{CS+5}, v{CS+4}
          v_mov_b32 v{CS+6}, v{CS+4}
          v_mov_b32 v{CS+7}, v{CS+4}
          v_and_b32 v8, 31, v1
          v_lshrrev_b32 v9, 5, v1
          v_bfe_u32 v10, v1, 1, 3
          v_xor_b32 v9, v9, v10
          v_lshlrev_b32 v8, 7, v8
          v_lshl_add_u32 v8, v9, 4, v8
          s_lshl_b32 s3, s{sW}, 12
          s_add_u32 s3, s3, {XB}
          v_add_u32 v{CS+8}, s3, v8
          v_xor_b32 v{CS+9}, 32, v{CS+8}
          v_xor_b32 v{CS+10}, 64, v{CS+8}
          v_xor_b32 v{CS+11}, 96, v{CS+8}
          s_waitcnt lgkmcnt(0)""")
    srd(a, WD, 24, WS_END)
    ONE = TMP
    M0_, M1_, R, DEN = TMP+4, TMP+5, TMP+6, TMP+7
    a(f"""v_and_b32 v10, 31, v1
          v_lshlrev_b32 v10, 2, v10
          v_add_u32 v10, {XCH}, v10
""")
    stamp(a, 12)
    pre = {}
    for c in range(7):
        pre[c] = ["s_barrier"] + [f"ds_read_b128 {v(XR + 16*(c&1) + 4*i, 4)}, v{CS+8+i} offset:{(c % 3)*16384}" for i in range(4)]
        if opt("sqv", 0) == 0:
            pre[("y", c)] = [f"v_dot2_f32_bf16 v{12+(i&1)}, v{XR+16*(c&1)+i}, v{XR+16*(c&1)+i}, {'0' if c == 0 and i < 2 else 'v%d' % (12+(i&1))}" for i in range(16)]
    sq = []
    if opt("sqv", 0):
        a("v_mov_b32 v12, 0\nv_mov_b32 v13, 0")
        for s_ in range(28):
            for i in range(4):
                r_ = XR + 16*((s_ >> 2) & 1) + 4*(s_ & 3) + i
                pre[("m", 5*s_ + 1 + i)] = [f"v_lshlrev_b32 v14, 16, v{r_}", f"v_and_b32 v15, 0xffff0000, v{r_}", "v_fmac_f32 v12, v14, v14", "v_fmac_f32 v13, v15, v15"]
    if common.STAMPS:
        for c, st in ((0, 2), (1, 13), (3, 3)):
            g = A(); stamp(g, st); pre[c] = pre[c][:1] + g.l + pre[c][1:]
    pre[4] += [f"v_add_u32 v{2+t}, 0x10000, v{2+t}" for t in range(5)]
    pre["G"] = opt("p1g", 1); pre["lastorder"] = (3, 4, 0, 1, 2)
    kloop(a, ACC, WF, lambda s_: XR + 16*((s_ >> 2) & 1) + 4*(s_ & 3), 2, (0, 4, 1, 2, 3), lambda c: (c & 3) * 16384, pre, False, [], R=8, D=opt("p1d", 5), cs=(CS, CS+4))
    stamp(a, 4)
    for i in range(2):
        a(f"""v_cvt_pk_bf16_f32 v{WF+i}, v{CS+i}, v{CS+i}
              v_and_b32 v{WF+i}, 0xffff0000, v{WF+i}
              v_sub_f32 v{WF+i}, v{CS+i}, v{WF+i}
              v_cvt_pk_bf16_f32 v{WF+i}, v{CS+i}, v{WF+i}""")
    a(f"""s_lshl_b32 s26, s{sW}, 7
          v_add_u32 v11, s26, v10
          s_mov_b64 exec, 0xffff
          ds_write2_b32 v11, v{WF}, v{WF+1} offset1:16
          s_mov_b64 exec, -1
          v_mov_b32 v14, v{ACC+48+12}
          v_mov_b32 v15, v{ACC+48+12}
          v_add_f32 v13, v12, v13
          v_permlane32_swap_b32 v15, v14
          v_mov_b32 v12, v13
          v_permlane32_swap_b32 v13, v12
          v_add_f32 v13, v13, v12
          v_mul_f32 v12, {fb(1/448)}, v14
          v_mul_f32 v13, {fb(1/448)}, v13
          v_fma_f32 v13, -v12, v12, v13
          v_max_f32 v13, 0, v13""")
    bf16r(a, 15, "v13")
    a(f"""v_add_f32 v9, {fb(EPS)}, v13
          v_add_f32 v15, {fb(EPS)}, v15
          v_mov_b32 v14, {fb(EPS)}
          v_fma_f32 v9, v9, v14, v13""")
    bf16r(a, 15, "v15")
    a(f"""v_sqrt_f32 v9, v9
          v_sqrt_f32 v15, v15
          s_waitcnt lgkmcnt(0)
          s_barrier                              ; barrier 7""")
    stamp(a, 14)
    for t in range(4): a(f"ds_read_b32 v{WF+4*t}, v10 offset:{128*t}")
    mu_frag(a, 12, f"s{sLO}", M0_, M1_)
    a(f"v_mov_b32 v14, s{sLO}")
    bf16r(a, 15, "v15")
    bf16r(a, 10, "v12")
    a(f"""v_bfi_b32 v{DEN}, v14, v9, v15
          v_rcp_f32 v{R}, v{DEN}
          s_waitcnt lgkmcnt(0)""")
    mean_fix(a, ACC, WF, lambda t: WF + 4*t, M0_, M1_)
    a(f"""
          s_lshl_b32 s3, s{sT}, 8
          s_add_u32 s3, s3, {ST1}
          s_cmp_eq_u32 s{sCB}, 0
          s_cselect_b32 s3, s3, {OOB}
          v_lshlrev_b32 v8, 3, v1
          v_and_b32 v8, 0xff, v8
          v_mov_b32 v11, v{R}
          buffer_store_dwordx2 v[10:11], v8, {s(WD,4)}, s3 offen{SC}""")
    a(f"""v_lshrrev_b32 v8, 5, v1
          v_add_u32 v8, -1, v8
          s_cmp_eq_u32 s{sTY}, 3
          s_cbranch_scc1 P1_h
          s_cmp_eq_u32 s{sTY}, 0
          s_cselect_b32 s3, {fb(QSCALE)}, 1.0
          v_mul_f32 v10, s3, v{R}
          s_cmp_eq_u32 s{sTY}, 1
          s_cselect_b32 s27, 0x3f803f80, 0
          s_cselect_b32 s3, 0x3f80, 0
          s_cmp_eq_u32 s{sTY}, 2
          s_cselect_b32 s27, 0x3f80, s27
          v_mov_b32 v12, s27
          v_mov_b32 v13, s3""")
    a(f"""s_lshl_b32 s3, s{sSUB}, 8
          s_add_u32 s3, s3, s{sT}
          s_cmp_eq_u32 s{sTY}, 0
          s_cselect_b32 s27, 11, 12
          s_lshl_b32 s3, s3, s27
          s_lshl_b32 s26, 64, s27
          s_lshl_b32 s27, s{sTY}, 11
          s_add_u32 s27, s27, {KVF - 2048}
          s_cmp_eq_u32 s{sTY}, 0
          s_cselect_b32 s27, {QF}, s27
          s_add_u32 s3, s3, s27""")
    if opt("lin", 0):
        a(f"s_lshl_b32 s3, s2, 2\ns_add_u32 s3, s3, s{sW}\ns_lshl_b32 s3, s3, 13\ns_movk_i32 s26, 2048")
    a(f"""s_cmp_eq_u32 s{sTY}, 2
          s_cbranch_scc1 P1_v""")
    def pack(t):
        for i in range(8): a(f"v_pk_mul_f32 {v(ACC+16*t+2*i,2)}, {v(ACC+16*t+2*i,2)}, v[10:11] op_sel_hi:[1,0]")
        for i in range(8): a(f"v_cvt_pk_bf16_f32 v{XR+8*t+i}, v{ACC+16*t+2*i}, v{ACC+16*t+2*i+1}")
        a(f"v_bfi_b32 v{XR+8*t+6}, v8, v{XR+8*t+6}, v12\nv_bfi_b32 v{XR+8*t+7}, v8, v{XR+8*t+7}, v13")
    def put(t):
        for f_ in range(2): a(f"buffer_store_dwordx4 {v(XR+8*t+4*f_,4)}, v0, {s(WD,4)}, s3 offen offset:{f_*1024}{SC}")
        if t < 3: a("s_add_u32 s3, s3, s26")
    for t in range(4): pack(t); put(t)
    a("s_branch P1_done")
    a.label("P1_v")
    a(f"""s_mul_i32 s27, s{sW}, 9216
          s_add_u32 s27, s27, 0x10000
          v_and_b32 v9, 31, v1
          v_mul_u32_u24 v9, 72, v9
          v_lshrrev_b32 v14, 5, v1
          v_lshl_add_u32 v9, v14, 3, v9
          v_add_u32 v9, s27, v9
          v_bfe_u32 v15, v1, 2, 2
          v_lshl_add_u32 v14, v14, 2, v15
          v_mul_u32_u24 v14, 72, v14
          v_bfe_u32 v15, v1, 4, 1
          v_lshl_add_u32 v14, v15, 5, v14
          v_and_b32 v15, 3, v1
          v_lshl_add_u32 v14, v15, 3, v14
          v_add_u32 v14, s27, v14""")
    for t in range(5):
        if t < 4:
            pack(t)
            for j in range(4): a(f"ds_write_b64 v9, {v(XR+8*t+2*j,2)} offset:{t*2304 + 16*j}")
        if t:
            a(f"s_waitcnt lgkmcnt({4 if t < 4 else 0})")
            put(t - 1)
        if t < 4:
            a("s_waitcnt lgkmcnt(0)")
            for f_ in range(2):
                for e in range(2): a(f"ds_read_b64_tr_b16 {v(XR+8*t+4*f_+2*e,2)}, v14 offset:{t*2304 + (16*f_+8*e)*72}")
    a("s_branch P1_done")
    a.label("P1_h")
    gelu_consts(a, R, DEN)
    a(f"""s_mul_i32 s3, s{sT}, 28
          s_mul_i32 s27, s{sSUB}, 7
          s_add_u32 s3, s3, s27
          s_lshl_b32 s3, s3, 10
          s_add_u32 s3, s3, {HF}
          s_add_u32 s27, s3, 4096""")
    for f in range(7):
        gelu_pairs(a, [ACC + 8*f + 2*i for i in range(4)], 10, 12, 14, WF)
        for i in range(4): a(f"v_cvt_pk_bf16_f32 v{XR+4*f+i}, v{ACC+8*f+2*i}, v{ACC+8*f+2*i+1}")
        a(f"buffer_store_dwordx4 {v(XR+4*f,4)}, v0, {s(WD,4)}, s{3 if f < 4 else 27} offen offset:{(f&3)*1024}{SC}")
    a.label("P1_done")
    garrive(a, C_X, 1)
    stamp(a, 15)
    a(f"""s_waitcnt vmcnt(0)
          s_lshl_b32 s3, s{sCB}, 4
          s_add_u32 s3, s3, s{sRB}
          s_lshl_b32 s3, s3, 7
          s_add_u32 s3, s3, {FP}""")
    signal(a, 3, C_S1, last=7)
    stamp(a, 5)

O_, Q_, S_, E_, P_, KV = 16, 80, 112, 144, 152, 160
sH, sQB, sKV, sN, sMA, sKB = 44, 45, 50, 51, 47, 52
AR_BASE = 112 * 1024

def unit(a, n, q, extra, qk=True):
    Sc, Sn = S_ + 16*(q & 1), S_ + 16*((q+1) & 1)
    nn, nq = (n, q+1) if q < 3 else ((n+1) & 3, 0)
    pn, pq = (n, q-1) if q > 0 else ((n-1) & 3, 3)
    K, Vc, Vp = KV + 16*nn, KV + 16*n + 8, KV + 16*pn + 8
    e = lambda i: a(f"v_exp_f32 v{E_+(i&7)}, v{Sc+i}")
    c = lambda k: a(f"v_cvt_pk_bf16_f32 v{P_+k}, v{E_+((2*k)&7)}, v{E_+((2*k+1)&7)}")
    for x in extra.get(0, []): a(x)
    if qk: a(f"{MF} {v(Sn,16)}, {v(K,4)}, {v(Q_+8*nq,4)}, 0")
    e(0); c(6); e(1); c(7); e(2); e(3)
    a(f"{MF} {v(O_+16*pq,16)}, {v(Vp+4,4)}, {v(P_+4,4)}, {v(O_+16*pq,16)}")
    for x in extra.get(1, []): a(x)
    e(4); c(0); e(5); c(1); e(6); e(7)
    if qk: a(f"{MF} {v(Sn,16)}, {v(K+4,4)}, {v(Q_+8*nq+4,4)}, {v(Sn,16)}")
    for x in extra.get(2, []): a(x)
    e(8); c(2); e(9); c(3); e(10); e(11)
    a(f"{MF} {v(O_+16*q,16)}, {v(Vc,4)}, {v(P_,4)}, {v(O_+16*q,16)}")
    e(12); c(4); e(13); c(5); e(14); e(15)

def kvload(slot, f):
    return f"buffer_load_dwordx4 {v(KV+16*slot+4*f,4)}, v0, {s(WD,4)}, s{sKV} offen offset:{f*1024}{SC}"
def kvnext():
    return [f"s_add_u32 s3, s{sKV}, 4096", "s_and_b32 s3, s3, 0xffff", f"s_or_b32 s{sKV}, s3, s{sKB}"]

EARLY = opt("early", 1)
def att(a):
    if p1stamps():
        global stamp
        stamp = lambda *x: None
    a(f"""s_and_b32 s26, s2, 7
          s_lshr_b32 s27, s2, 3
          s_lshl_b32 s{sH}, s26, 1
          s_and_b32 s3, s27, 1
          s_add_u32 s{sH}, s{sH}, s3
          s_lshr_b32 s{sQB}, s27, 1
          s_mul_i32 s{sMA}, s{sW}, 11136
          s_add_u32 s{sMA}, s{sMA}, {AR_BASE}
          s_lshl_b32 s{sKB}, s{sH}, 2
          s_add_u32 s{sKB}, s{sKB}, s{sW}
          s_lshl_b32 s{sKB}, s{sKB}, 16
          s_add_u32 s{sKB}, s{sKB}, {KVF}
          s_and_b32 s27, s{sQB}, {3 if EARLY else 15}
          s_lshl_b32 s3, s27, {14 if EARLY else 12}
          s_or_b32 s{sKV}, s{sKB}, s3
          s_lshr_b32 s3, s{sH}, 2
          s_lshl_b32 s3, s3, 4
          v_and_b32 v10, 3, v1
          s_lshl_b32 s26, s{sW}, 2
          s_add_u32 s26, s26, s3
          s_add_u32 s26, s26, 64
          v_add_u32 v10, s26, v10
          v_bfe_u32 v11, v1, 2, 1
          v_lshl_add_u32 v10, v11, 6, v10
          s_add_u32 s3, s3, s{sQB}
          v_writelane_b32 v10, s3, 8             ; lane 8: Q
          v_lshlrev_b32 v10, 7, v10
          v_add_u32 v10, {FP}, v10""")
    for i in range(64): a(f"v_mov_b32 v{O_+i}, 0")
    for i in range(8): a(f"v_mov_b32 v{E_+i}, 0\nv_mov_b32 v{P_+i}, 0")
    for i in range(4): a(f"v_mov_b32 v{KV+48+12+i}, 0")
    if EARLY:
        a(f"""v_and_b32 v11, 7, v1
              v_lshlrev_b32 v11, 2, v11
              ds_bpermute_b32 v2, v11, v10
              s_lshl_b32 s27, s27, 2
              v_mov_b32 v11, s27
              v_writelane_b32 v11, 32, 2
              s_add_u32 s27, s27, 16
              v_writelane_b32 v11, s27, 1
              ds_bpermute_b32 v10, v11, v10
              s_waitcnt lgkmcnt(0)""")
        poll(a, 10, 3)
    else: poll(a, 10, 9)
    if opt("ayield", 1): gwait(a, C_X, 4, field=0)
    stamp(a, 8)
    for j in range(4):
        a(f"""s_add_u32 s3, s{sW}, {j + 1}
              s_and_b32 s3, s3, 3
              s_lshl_b32 s26, s{sH}, 4
              s_add_u32 s26, s26, s{sQB}
              s_lshl_b32 s26, s26, 2
              s_add_u32 s3, s3, s26
              s_lshl_b32 s3, s3, 11
              s_add_u32 s3, s3, {QF}""")
        for f in range(2): a(f"buffer_load_dwordx4 {v(Q_+8*j+4*f,4)}, v0, {s(WD,4)}, s3 offen offset:{f*1024}{SC}")
        if j == 0:
            for f in range(4): a(kvload(0, f))
            for x in kvnext(): a(x)
    for n in range(1, 3):
        for f in range(4): a(kvload(n, f))
        for x in kvnext(): a(x)
    a(f"""v_add_u32 v10, s{sMA}, v0
          v_lshlrev_b32 v14, 2, v1
          v_add_u32 v14, {3584 - 128}, v14
          v_add_u32 v15, s{sMA}, v14
          v_mov_b32 v8, {CNT + C_B}""")
    for j in range(3):
        a(f"""s_sub_u32 s26, s{sW}, {j + 1}
              s_and_b32 s26, s26, 3
              s_mul_i32 s26, s26, 11136
              s_add_u32 s26, s26, {AR_BASE}
              v_add_u32 v{11+j}, s26, v0
              v_add_u32 v{5+j}, s26, v14""")
    a(f"s_mov_b32 s{sN}, 4\ns_waitcnt vmcnt(14)")
    a(f"{MF} {v(S_,16)}, {v(KV,4)}, {v(Q_,4)}, 0")
    a(f"{MF} {v(S_,16)}, {v(KV+4,4)}, {v(Q_+4,4)}, {v(S_,16)}")
    a(f"s_setprio {opt('pa2', 0)}\ns_waitcnt vmcnt(8)")
    stamp(a, 9)
    a(".p2align 3")
    a.label("AT_loop")
    for n in range(4):
        ld = (n + 3) & 3
        kvl = kvload if not opt("nokv", 0) else (lambda a_, b_: "s_nop 0")
        if opt("kvprio", 1):
            e0 = {1: ["s_setprio 3", kvl(ld, 0), kvl(ld, 1)], 2: [kvl(ld, 2), kvl(ld, 3), f"s_setprio {opt('pa2', 0)}"]}
            if EARLY and n == 0: e0[1].insert(1, f"buffer_load_dword v3, v2, {s(WD,4)}, 0 offen sc1")
            if EARLY and n == 1:
                e0[0] = ["s_waitcnt vmcnt(4)", "v_cmp_eq_u32 vcc, 0, v3"]
                e0[1] = ["s_cbranch_vccnz AT_late", "AT_ok:"] + e0[1]
            unit(a, n, 0, e0)
            e1 = {1: kvnext()}
            if n == 0: e1[0] = [f"s_cmp_eq_u32 s{sN}, 1", f"s_cselect_b32 s{sKB}, {OOB}, s{sKB}"]
            if n == 3: e1[0] = ["ds_read_b32 v9, v8"]; e1[2] = [f"s_cmp_eq_u32 s{sN}, 1"]
            unit(a, n, 1, e1)
            if n == 3: a("s_cbranch_scc1 AT_tail")
            unit(a, n, 2, {})
            ex = {0: ["s_waitcnt vmcnt(8)"], 2: []}
        else:
            unit(a, n, 0, {2: [kvl(ld, 0)]})
            unit(a, n, 1, {1: [kvl(ld, 1)]})
            unit(a, n, 2, {1: [kvl(ld, 2)]})
            ex = {0: ["s_waitcnt vmcnt(7)"], 1: [kvl(ld, 3)], 2: kvnext()}
        if n == 3: ex[2] += [f"s_sub_u32 s{sN}, s{sN}, 1"]
        unit(a, n, 3, ex)
    a("s_branch AT_loop")
    a.label("AT_tail")
    BL = 3712
    a(f"""s_setprio {opt('pa1', 2)}
          s_waitcnt lgkmcnt(0)
          v_readfirstlane_b32 s3, v9
          s_cmp_ge_u32 s3, 8
          s_cbranch_scc1 AT_free""")
    gwait(a, C_B, 8)
    a.label("AT_free")
    wr = lambda j, i: f"ds_write_b128 v10, {v(O_+16*j+4*i,4)} offset:{j*BL + i*1024}"
    unit(a, 3, 2, {0: [wr(0, 0)], 1: [wr(0, 1)], 2: [wr(0, 2)]})
    unit(a, 3, 3, {0: [wr(1, 0)], 1: [wr(1, 1)], 2: [wr(1, 2)]}, qk=False)
    a(f"v_cvt_pk_bf16_f32 v{P_+6}, v{E_+4}, v{E_+5}\nv_cvt_pk_bf16_f32 v{P_+7}, v{E_+6}, v{E_+7}")
    for i in range(3): a(wr(2, i))
    a(f"{MF} {v(O_+48,16)}, {v(KV+48+12,4)}, {v(P_+4,4)}, {v(O_+48,16)}")
    stamp(a, 10)
    a("s_mov_b64 exec, 0xffffffff")
    for j in range(3): a(wr(j, 3))
    a("s_not_b64 exec, exec")
    for j in range(3): a(f"ds_write_b32 v15, v{O_+16*j+12} offset:{j*BL}")
    a("s_mov_b64 exec, -1")
    gbar(a, C_A, 4)
    a("s_mov_b64 exec, 0xffffffff")
    for j in range(3): a(f"ds_read_b128 {v(O_+16*j+12,4)}, v{11+j} offset:{j*BL + 3072}")
    a("s_not_b64 exec, exec")
    for j in range(3): a(f"ds_read_b32 v{O_+16*j+12}, v{5+j} offset:{j*BL}")
    a("s_mov_b64 exec, -1")
    for j in range(3):
        for i in range(3): a(f"ds_read_b128 {v(O_+16*j+4*i,4)}, v{11+j} offset:{j*BL + i*1024}")
    OT_, QT_ = O_ + 48, Q_ + 24
    for j in range(3):
        a(f"s_waitcnt lgkmcnt({3*(2-j)})")
        for i in range(16): a(f"v_add_f32 v{OT_+i}, v{OT_+i}, v{O_+16*j+i}")
    a(f"""v_mov_b32 v10, v{OT_+12}
          v_mov_b32 v11, v{OT_+12}
          v_permlane32_swap_b32 v11, v10
          v_mov_b32 v12, v10
          v_mov_b32 v13, 0""")
    for i in range(16): a(f"v_fma_f32 v{12+(i&1)}, v{OT_+i}, 0, v{12+(i&1)}")
    a(f"""v_add_f32 v12, v12, v13                ; row sum, or NaN if any accumulator is not finite
          v_cmp_le_f32 vcc, {fb(2.0**-80)}, v12
          v_cmp_ge_f32 s[26:27], s59, v12
          s_and_b64 vcc, vcc, s[26:27]
          s_cmp_eq_u64 vcc, -1
          s_cbranch_scc0 AT_slow""".replace("s59", "s59"))
    a.label("AT_norm")
    a(f"""v_rcp_f32 v10, v10
          v_lshrrev_b32 v8, 5, v1
          v_add_u32 v8, -1, v8""")
    for i in range(16): a(f"v_mul_f32 v{OT_+i}, v{OT_+i}, v10")
    for i in range(8): a(f"v_cvt_pk_bf16_f32 v{P_+i}, v{OT_+2*i}, v{OT_+2*i+1}")
    a(f"""v_and_b32 v{P_+6}, v8, v{P_+6}
          v_and_b32 v{P_+7}, v8, v{P_+7}
          s_lshl_b32 s26, s{sQB}, 2
          s_add_u32 s26, s26, s{sW}
          s_lshl_b32 s26, s26, 4
          s_add_u32 s26, s26, s{sH}
          s_lshl_b32 s3, s26, 11
          s_add_u32 s3, s3, {OF}
          buffer_store_dwordx4 {v(P_,4)}, v0, {s(WD,4)}, s3 offen{SC}
          buffer_store_dwordx4 {v(P_+4,4)}, v0, {s(WD,4)}, s3 offen offset:1024{SC}
          s_lshl_b32 s3, s{sQB}, 4
          s_add_u32 s3, s3, s{sH}
          s_lshl_b32 s3, s3, 7
          s_add_u32 s3, s3, {FA}
          s_waitcnt vmcnt(0)""")
    signal(a, 3, 20)
    stamp(a, 11)
    stamp_out2(a)
    a("s_endpgm")
    if EARLY:
        a.label("AT_late")
        poll(a, 2, 8)
        a("s_branch AT_ok")
    a.label("AT_slow")
    a(f"""s_waitcnt vmcnt(0)
          s_lshl_b32 s{sKB}, s{sH}, 18
          s_add_u32 s{sKB}, s{sKB}, {KVF}
          s_mov_b32 s{sKV}, s{sKB}
          s_mov_b32 s{sN}, 64
          v_mov_b32 v12, 0xff800000""")
    a.label("AT_s1")
    a(kvload(0, 0)); a(kvload(0, 1))
    a(f"""s_add_u32 s{sKV}, s{sKV}, 4096
          s_waitcnt vmcnt(0)
          {MF} {v(S_,16)}, {v(KV,4)}, {v(QT_,4)}, 0
          {MF} {v(S_,16)}, {v(KV+4,4)}, {v(QT_+4,4)}, {v(S_,16)}""")
    for i in range(8): a(f"v_max3_f32 v12, v12, v{S_+2*i}, v{S_+2*i+1}")
    a(f"""s_sub_u32 s{sN}, s{sN}, 1
          s_cmp_lg_u32 s{sN}, 0
          s_cbranch_scc1 AT_s1
          v_mov_b32 v13, v12
          v_permlane32_swap_b32 v12, v13
          v_max_f32 v12, v12, v13
          v_cvt_pk_bf16_f32 v13, -v12, -v12
          v_and_b32 v13, 0xffff0000, v13
          v_sub_f32 v12, -v12, v13
          v_cvt_pk_bf16_f32 v14, v12, v12
          v_and_b32 v14, 0xffff0000, v14
          v_sub_f32 v12, v12, v14
          v_cvt_pk_bf16_f32 v13, v13, v14
          v_cvt_pk_bf16_f32 v14, v12, 0
          v_lshrrev_b32 v8, 5, v1
          v_add_u32 v8, -1, v8
          v_bfi_b32 v{QT_+6}, v8, v{QT_+6}, v13
          v_bfi_b32 v{QT_+7}, v8, v{QT_+7}, v14
          s_mov_b32 s{sKV}, s{sKB}
          s_mov_b32 s{sN}, 64""")
    for i in range(16): a(f"v_mov_b32 v{OT_+i}, 0")
    a.label("AT_s2")
    for f in range(4): a(kvload(0, f))
    a(f"""s_add_u32 s{sKV}, s{sKV}, 4096
          s_waitcnt vmcnt(0)
          {MF} {v(S_,16)}, {v(KV,4)}, {v(QT_,4)}, 0
          {MF} {v(S_,16)}, {v(KV+4,4)}, {v(QT_+4,4)}, {v(S_,16)}""")
    for i in range(16): a(f"v_exp_f32 v{S_+i}, v{S_+i}")
    for i in range(8): a(f"v_cvt_pk_bf16_f32 v{P_+i}, v{S_+2*i}, v{S_+2*i+1}")
    a(f"""{MF} {v(OT_,16)}, {v(KV+8,4)}, {v(P_,4)}, {v(OT_,16)}
          {MF} {v(OT_,16)}, {v(KV+12,4)}, {v(P_+4,4)}, {v(OT_,16)}
          s_sub_u32 s{sN}, s{sN}, 1
          s_cmp_lg_u32 s{sN}, 0
          s_cbranch_scc1 AT_s2
          v_mov_b32 v10, v{OT_+12}
          v_mov_b32 v11, v{OT_+12}
          v_permlane32_swap_b32 v11, v10
          s_branch AT_norm""")

B_G3_DONE = 24
G2_BASE = 0
H1 = 56 * 1024
W3B = 60 * 1024
XCH3 = CNT + 1024
RES = 224

def p1b(a):
    bst = (lambda i: common.stamp(a, i)) if p1stamps() else (lambda i: None)
    sRB, sCB, sT = 44, 45, 48
    sROW, sWO, sK, sCOL = 49, 50, 51, 52
    WB = 0x1C000
    XT = 232
    def codepf():
        nseg = opt("nseg", 5)
        a(f"""s_lshr_b32 s57, s2, 3
              s_cmp_ge_u32 s57, {nseg}
              s_cbranch_scc1 PB_nopf
              s_cmp_lg_u32 s{sW}, 0
              s_cbranch_scc1 PB_nopf
              s_getpc_b64 s[62:63]""")
        a.label("PB_pc")
        a(f"""s_lshl_b32 s57, s57, 13
              s_sub_u32 s62, s62, PB_pc-K_start
              s_subb_u32 s63, s63, 0
              s_add_u32 s62, s62, s57
              s_addc_u32 s63, s63, 0
              v_lshlrev_b32 v8, 7, v1
              v_add_u32 v9, s57, v8
              v_cmp_gt_u32 vcc, K_last-K_start, v9
              v_mov_b32 v11, s63
              v_add_co_u32 v10, s[98:99], s62, v8
              v_addc_co_u32 v11, s[98:99], 0, v11, s[98:99]
              s_and_saveexec_b64 s[98:99], vcc
              s_cbranch_execz PB_pfx
              global_load_dword v16, v[10:11], off""")
        a.label("PB_pfx")
        a("s_mov_b64 exec, -1")
        a.label("PB_nopf")
    if opt("codepf", 1) == 1: codepf()
    a(f"""s_and_b32 s26, s2, 1
          s_lshl_b32 s26, s26, 3
          s_lshr_b32 s3, s2, 5
          s_add_u32 s26, s26, s3
          s_bfe_u32 s{sK}, s2, 0x20003
          s_lshl_b32 s54, s{sK}, 1
          s_add_u32 s54, s54, s3
          s_mul_i32 s3, s54, 37
          s_lshr_b32 s3, s3, 8
          s_mul_i32 s3, s3, 7
          s_sub_u32 s54, s54, s3
          s_mul_i32 s54, s54, {opt("rotw", 1)}
          s_bfe_u32 s3, s2, 0x20001
          s_lshl_b32 s3, s3, 2
          s_add_u32 s3, s3, s{sK}
          s_lshl_b32 s3, s3, 2
          s_add_u32 s3, s3, s{sW}
          s_lshl_b32 s56, s3, 5
          s_and_b32 s27, s26, 3
          s_lshr_b32 s3, s27, 1
          s_add_u32 s3, s3, 1
          s_sub_u32 s57, 0, s3
          s_bitcmp1_b32 s27, 0
          s_cselect_b32 s3, s3, s57
          s_movk_i32 s{sROW}, 2688
          s_cmp_ge_u32 s26, 12
          s_cselect_b32 s3, s3, 0
          s_cselect_b32 s{sROW}, 896, s{sROW}
          s_cselect_b32 s27, s27, s26
          s_add_u32 s56, s56, s3
          s_mul_i32 s{sCOL}, s27, 224
          v_lshrrev_b32 v8, 3, v1
          v_add_u32 v8, s56, v8
          s_movk_i32 s3, 896
          v_mul_i32_i24 v8, s3, v8
          v_bfe_u32 v9, v1, 4, 2
          v_and_b32 v10, 7, v1
          v_xor_b32 v9, v9, v10
          v_lshl_add_u32 v2, v9, 4, v8
          v_xor_b32 v9, 4, v9
          v_lshl_add_u32 v3, v9, 4, v8
          v_add_u32 v3, {8*896}, v3
          v_add_u32 v4, {16*896}, v2
          v_add_u32 v5, {16*896}, v3
          v_lshrrev_b32 v8, 4, v1
          v_lshlrev_b32 v9, 2, v8
          v_sub_u32 v9, v1, v9
          v_and_b32 v9, 15, v9
          v_mul_u32_u24 v8, s{sROW}, v8
          v_lshl_add_u32 v7, v9, 4, v8
          v_cmp_gt_u32 s[96:97], 14, v9
          s_lshl_b32 s{sK}, s54, 6
          s_lshl_b32 s54, s54, 7
          s_lshl_b32 s3, s{sW}, 4
          s_mul_i32 s3, s3, s{sROW}
          s_add_u32 s{sCOL}, s{sCOL}, s3
          s_lshl_b32 s53, s{sROW}, 2
          s_lshl_b32 s55, s{sW}, 12
          s_waitcnt lgkmcnt(0)
          s_cmp_ge_u32 s26, 12
          s_cselect_b32 s{WA}, s12, s6
          s_cselect_b32 s{WA+1}, s13, s7
          s_mul_i32 s{WA+2}, s{sROW}, 448
          s_mov_b32 s{WA+3}, 0x20000""")
    srd(a, XS, 4, 2048 * 896)
    q = []
    gap = []
    def ride(n):
        for x in gap[:n]: a(x)
        del gap[:n]
    def xchunk(c):
        for g in range(4):
            a(f"s_add_u32 m0, s55, {XB + (c % 3)*16384 + g*1024}")
            a(f"s_nop 0\nbuffer_load_dwordx4 v{2+g}, {s(XS,4)}, s54 offen lds")
            ride(9)
        wrapinc(a, 54, 128, 896)
        q.extend([c] * 4)
    def wchunk(c):
        a(f"""s_mul_i32 s{sWO}, s{sK}, s{sROW}
              s_add_u32 s{sWO}, s{sWO}, s{sCOL}""")
        wrapinc(a, sK, 64, 448)
        a("s_mov_b64 exec, s[96:97]")
        for u in range(4):
            a(f"s_add_u32 m0, s55, {c*16384 + u*1024}")
            if u: a(f"s_add_u32 s{sWO}, s{sWO}, s53")
            a(f"buffer_load_dwordx4 v7, {s(WA,4)}, s{sWO} offen lds")
        a("s_mov_b64 exec, -1")
        q.extend([c] * 4)
    srd(a, WD, 24, WS_END)
    a(f"""s_lshl_b32 s61, s{sW}, 8
          s_or_b32 s61, s61, s2
          v_mov_b32 v22, 0
          s_cmp_ge_u32 s61, {NINIT}
          s_cbranch_scc1 PB_noinit
          v_lshlrev_b32 v13, 7, v1
          s_lshl_b32 s3, s2, 13
          s_add_u32 s3, s3, {FLG}
          buffer_store_dword v22, v13, {s(WD,4)}, s3 offen{SC}""")
    a.label("PB_noinit")
    bst(11)
    xchunk(0); wchunk(0)
    if opt("codepf", 1) == 2: codepf()
    if opt("tlb", 0):
        a(f"""v_lshlrev_b32 v23, {opt("tlb", 0)}, v1
              v_add_u32 v23, {0x1fff80 if opt("tlb", 0) == 21 else 0xff80}, v23
              s_lshl_b32 s3, s{sW}, {opt("tlb", 0) + 6}
              buffer_load_dword v24, v23, {s(WD,4)}, s3 offen sc1""")
        q.append(1)
    a(f"""v_lshrrev_b32 v8, 1, v1
          v_and_b32 v9, 15, v8
          v_lshrrev_b32 v10, 4, v8
          v_lshlrev_b32 v10, 14, v10
          v_lshl_add_u32 v10, v9, 8, v10
          v_and_b32 v9, 3, v8
          v_lshlrev_b32 v9, 2, v9
          v_and_b32 v8, 1, v1
          v_add3_u32 v9, v9, v8, 14
          v_and_b32 v9, 15, v9
          v_lshl_add_u32 v10, v9, 4, v10
          v_add_u32 v10, s55, v10
          v_add_u32 v11, 0x10000, v10
          v_mov_b32 v12, 0x3f803f80
          v_mov_b32 v13, v12
          v_mov_b32 v14, v12
          v_mov_b32 v15, v12
          ds_write_b128 v10, v[12:15]
          ds_write_b128 v10, v[12:15] offset:32768
          ds_write_b128 v11, v[12:15]
          s_mov_b64 exec, 0xffffffff
          ds_write_b128 v11, v[12:15] offset:32768
          s_mov_b64 exec, -1""")
    srd(a, WD, 24, WS_END)
    srd(a, WB_, 22, 256)
    xchunk(1)
    if opt("w1e", 1): wchunk(1)
    small_setup(a, sRB, sCB, sT)
    tail = A()
    tail(f"""s_lshr_b32 s{sFT}, s{sW}, 1
          s_xor_b32 s{sFT}, s{sFT}, s2
          s_and_b32 s{sFT}, s{sFT}, 1
          v_lshrrev_b32 v8, 2, v1
          v_mul_u32_u24 v8, 896, v8
          v_bfe_u32 v9, v1, 4, 2
          v_and_b32 v10, 3, v1
          v_xor_b32 v9, v9, v10
          v_lshl_add_u32 v8, v9, 4, v8
          s_mul_i32 s3, s{sT}, {32*896}
          s_lshl_b32 s26, s{sCB}, 7
          s_add_u32 s3, s3, s26
          s_lshl_b32 s26, s{sFT}, 6
          s_add_u32 s3, s3, s26
          s_add_u32 s26, s3, {16*896}
          buffer_load_dwordx4 {v(XT,4)}, v8, {s(XS,4)}, s3 offen
          buffer_load_dwordx4 {v(XT+4,4)}, v8, {s(XS,4)}, s26 offen""")
    t2, t3, t4 = A(), A(), A()
    srd(t2, WB_, 14, 448*896)
    t2(f"""v_lshlrev_b32 v8, 7, v1
           s_lshr_b32 s57, s2, 3
           s_lshl_b32 s57, s57, 2
           s_add_u32 s57, s57, s{sW}
           s_mul_i32 s3, s57, {25*128}
           s_bfm_b64 exec, 25, 0
           buffer_load_dword v16, v8, {s(WB_,4)}, s3 offen
           s_mov_b64 exec, -1""")
    srd(t3, WB_, 16, 448*3584)
    t3(f"""s_lshr_b32 s57, s2, 3
           s_lshl_b32 s57, s57, 2
           s_add_u32 s57, s57, s{sW}
           s_mul_i32 s3, s57, 49
           v_add_u32 v9, s3, v1
           v_mul_u32_u24 v10, 9363, v9
           v_lshrrev_b32 v10, 17, v10
           v_mul_u32_u24 v11, 14, v10
           v_sub_u32 v9, v9, v11
           v_mul_u32_u24 v10, 3584, v10
           v_lshl_add_u32 v9, v9, 7, v10
           s_and_b32 s3, s2, 1
           s_mul_i32 s3, s3, 1792
           s_bfm_b64 exec, 49, 0
           buffer_load_dword v17, v9, {s(WB_,4)}, s3 offen
           s_mov_b64 exec, -1""")
    srd(t4, WB_, 18, 448*3584)
    t4(f"""v_lshlrev_b32 v8, 7, v1
           s_lshl_b32 s57, s2, 2
           s_add_u32 s57, s57, s{sW}
           s_mul_i32 s3, s57, {13*128}
           s_bfm_b64 exec, 13, 0
           buffer_load_dword v18, v8, {s(WB_,4)}, s3 offen""")
    srd(t4, WB_, 8, 448*896)
    t4(f"""s_lshl_b32 s3, s57, 9
           s_mov_b64 exec, 15
           buffer_load_dword v19, v8, {s(WB_,4)}, s3 offen
           s_mov_b64 exec, -1""")
    w2, w2b = A(), A()
    w2(f"s_lshl_b32 s47, s{sW}, 11")
    small_addrs(w2, "s47")
    srd(w2, WA, 14, 448 * 896)
    w2(f"""s_mul_i32 s3, s{sW}, {112*896}
           s_lshl_b32 s26, s{sCB}, 7
           s_add_u32 s3, s3, s26
           v_add_u32 v4, s3, v7
           v_add_u32 v5, {8*896}, v4
           s_mul_i32 s50, s{sCB}, {16*896*opt("rot", 1)}""")
    for j in range(7):
        g = w2 if j < 6 else w2b
        g(f"""s_add_u32 m0, s47, {j*8192}
              s_nop 0
              buffer_load_dwordx4 v4, {s(WA,4)}, s50 offen lds
              s_add_u32 m0, s47, {j*8192 + 1024}
              s_nop 0
              buffer_load_dwordx4 v5, {s(WA,4)}, s50 offen lds""")
        if j < 6: wrapinc(g, 50, 16*896, 112*896)
    c3a, c3b = A(), A()
    srd(c3a, WB_, 16, 448*3584)
    c3a(f"""s_mul_i32 s3, s2, 2341
            s_lshr_b32 s3, s3, 16
            s_mul_i32 s57, s3, 28
            s_sub_u32 s57, s2, s57                 ; line = id % 28
            s_lshl_b32 s3, s3, 2
            s_add_u32 s3, s3, s{sW}
            s_mul_i32 s63, s57, 28
            s_add_u32 s63, s63, s3
            s_lshl_b32 s63, s63, 8
            s_add_u32 s63, s63, {CS3P}
            s_cmp_lt_u32 s2, 196
            s_cselect_b32 s63, s63, {OOB}
            s_mul_i32 s3, s3, {16*3584}
            s_lshl_b32 s57, s57, 7
            s_add_u32 s3, s3, s57
            s_add_u32 s57, s3, {8*3584}
            v_lshrrev_b32 v8, 3, v1
            v_mul_u32_u24 v8, 3584, v8
            v_and_b32 v9, 7, v1
            v_lshl_add_u32 v8, v9, 4, v8
            buffer_load_dwordx4 v[32:35], v8, {s(WB_,4)}, s3 offen
            buffer_load_dwordx4 v[36:39], v8, {s(WB_,4)}, s57 offen""")
    unpack(c3b, 40, 32, 8)
    for i in range(8): c3b(f"v_add_f32 v{40+i}, v{40+i}, v{48+i}")
    for i in range(4): c3b(f"v_permlane32_swap_b32 v{40+i}, v{44+i}")
    for i in range(4): c3b(f"v_add_f32 v{40+i}, v{40+i}, v{44+i}")
    for i in range(2): c3b(f"v_permlane16_swap_b32 v{40+i}, v{42+i}")
    for i in range(2): c3b(f"v_add_f32 v{40+i}, v{40+i}, v{42+i}")
    c3b(f"""v_and_b32 v8, 7, v1
            v_lshrrev_b32 v9, 4, v1
            v_lshlrev_b32 v8, 5, v8
            v_lshl_add_u32 v8, v9, 3, v8
            v_add_f32_dpp v40, v40, v40 row_ror:8 row_mask:0xf bank_mask:0xf
            v_add_f32_dpp v41, v41, v41 row_ror:8 row_mask:0xf bank_mask:0xf
            buffer_store_dwordx2 v[40:41], v8, {s(WD,4)}, s63 offen{SC}""")
    extras = [(4, tail, 2), (opt("c3a", 4), c3a, 2), (opt("tw2", 2), t2, 1), (opt("w2c", 8), w2, 12), (opt("tw3", 4), t3, 1), (opt("tw4", 4), t4, 2), (max(opt("w2d", 6), opt("w2c", 8)), w2b, 2)]
    bst(2)
    for c in range(7):
        last = max(i for i, x in enumerate(q) if x == c)
        a(f"s_waitcnt vmcnt({len(q) - 1 - last}) lgkmcnt(0)")
        bst((3, 12, 13, 4, 5, 14, 8)[c])
        a("s_barrier")
        if c == 0:
            a(f"""s_cmp_ge_u32 s61, {NINIT}
                  s_cbranch_scc1 PB_noset
                  s_lshl_b32 s3, s2, 2
                  v_mov_b32 v9, 1
                  s_mov_b64 exec, 1
                  buffer_store_dword v9, v22, {s(WB_,4)}, s3 offen{SC}
                  s_mov_b64 exec, -1""")
            a.label("PB_noset")
        if c == 0 and not opt("w1e", 1): wchunk(1)
        if c + 2 < 7: xchunk(c + 2); wchunk(c + 2)
        if c == 3:
            srd(a, WB_, 22, 256)
            a(f"v_min_u32 v20, {NINIT - 1}, v1\nv_lshlrev_b32 v20, 2, v20\nbuffer_load_dword v21, v20, {s(WB_,4)}, 0 offen sc1"); q.append(5)
        if c == 5:
            a("v_cmp_eq_u32 vcc, 0, v21\ns_cbranch_vccz PB_clr")
            srd(a, WB_, 22, 256)
            poll(a, 20, NINIT, WB_)
            a.label("PB_clr")
        for when, code, nv in extras:
            if when == c:
                for x in code.l: a(x)
                q.extend(["c3" if code is c3a else 99] * nv)
        ride(999)
    a(f"""v_mov_b32 v8, {CNT}
          v_mov_b32 v12, 0
          v_mov_b32 v13, 0
          v_mov_b32 v14, 0
          v_mov_b32 v15, 0
          ds_write_b128 v8, v[12:15]
          ds_write_b128 v8, v[12:15] offset:16
          ds_write_b128 v8, v[12:15] offset:32
          s_waitcnt lgkmcnt(0)
          s_barrier                              ; barrier 7""")
    for when, code, nv in extras:
        if when == 67:
            for x in code.l: a(x)
            q.extend([99] * nv)
    a(f"""s_waitcnt vmcnt({len(q) - 1 - max(i for i, x in enumerate(q) if x == "c3")})""")
    for x in c3b.l: a(x)
    g2_setup(a)
    a(f"""s_and_b32 s3, s2, 1
          s_lshl_b32 s3, s3, 3
          s_lshr_b32 s26, s2, 5
          s_add_u32 s3, s3, s26
          s_lshl_b32 s3, s3, 4
          s_lshr_b32 s26, s{sRB}, 1
          s_add_u32 s3, s3, s26
          s_lshl_b32 s3, s3, 7
          s_add_u32 s3, s3, {FP}
          s_waitcnt vmcnt(0)""")
    signal(a, 3, C_S1, last=7)
    for when, code, nv in extras:
        if when == 7:
            for x in code.l: a(x)
    bst(9)
    gwait(a, C_X, 4, field=1)
    for when, code, nv in extras:
        if when == 8:
            for x in code.l: a(x)
    bst(10); bst(15)

def small_setup(a, sRB, sCB, sT):
    a(f"""s_bfe_u32 s26, s2, 0x20001
          s_lshl_b32 s26, s26, 2
          s_bfe_u32 s3, s2, 0x20003
          s_add_u32 s26, s26, s3
          s_lshl_b32 s{sRB}, s26, 1
          s_and_b32 s3, s2, 1
          s_add_u32 s{sRB}, s{sRB}, s3
          s_lshr_b32 s{sCB}, s2, 5
          s_and_b32 s3, s{sW}, 1
          s_lshl_b32 s{sT}, s{sRB}, 1
          s_add_u32 s{sT}, s{sT}, s3""")

def small_addrs(a, sM, natural=False):
    a(f"""v_lshrrev_b32 v8, 3, v1
          v_bfe_u32 v9, v1, 4, 1
          v_lshlrev_b32 v9, 2, v9
          v_and_b32 v10, 7, v1
          v_xor_b32 v9, v9, v10
          v_mul_u32_u24 v8, 896, v8
          v_lshl_add_u32 v7, v9, 4, v8
          v_lshrrev_b32 v8, 5, v1
          v_bfe_u32 v9, v1, 2, 2
          v_lshl_add_u32 v8, v8, 2, v9
          v_lshlrev_b32 v8, 7, v8
          v_bfe_u32 v10, v1, 4, 1
          v_bfe_u32 v11, v1, 1, 1
          v_lshl_add_u32 v10, v10, 1, v11
          v_bfe_u32 v11, v1, 3, 1
          v_lshl_add_u32 v10, v11, 2, v10
          v_lshl_add_u32 v8, v10, 4, v8
          v_and_b32 v11, 1, v1
          v_lshl_add_u32 v8, v11, 3, v8
          s_lshl_b32 s3, {"0" if natural else "s%d" % sFT}, 6
          v_xor_b32 v8, s3, v8
          v_add_u32 v2, {sM}, v8
          v_xor_b32 v8, 64, v8
          v_add_u32 v3, {sM}, v8""")

def wreads(a, WF, buf, off, va=2):
    for b in range(2):
        for e in range(2): a(f"ds_read_b64_tr_b16 {v(WF+8*buf+4*b+2*e,2)}, v{va+b} offset:{off + 8*e*128}")
def mfmas(a, ACC, WF, buf, act0, act1, first):
    for aa, ar in enumerate((act0, act1)):
        for b in range(2):
            j = 2*aa + b
            a(f"{MF} {v(ACC+16*j,16)}, {v(WF+8*buf+4*b,4)}, {v(ar,4)}, {'0' if first else v(ACC+16*j,16)}")

def g2_setup(a):
    EP = 176
    sRB, sCB, sT, sM, sK, sKA, sX = 44, 45, 48, 47, 50, 51, 53
    sRB3, sCB3, sT3, sK3, sL = 54, 55, 56, 57, 49
    ROT = opt("rot", 1)
    a(f"s_lshl_b32 s{sL}, s{sW}, 11")
    a(f"""s_add_u32 s3, s{sL}, {H1}
          v_add_u32 v10, s3, v0
          v_and_b32 v8, 31, v1
          v_lshlrev_b32 v8, 6, v8
          v_bfe_u32 v9, v1, 2, 2
          v_lshl_add_u32 v8, v9, 4, v8
          v_lshrrev_b32 v9, 5, v1
          v_lshl_add_u32 v8, v9, 3, v8
          v_add_u32 v12, s3, v8
          v_xor_b32 v13, 16, v12
          v_xor_b32 v14, 32, v12
          v_xor_b32 v15, 48, v12
          ds_write_b128 v10, v[232:235]
          ds_write_b128 v10, v[236:239] offset:1024
          s_waitcnt lgkmcnt(0)""")
    for j in range(4): a(f"ds_read_b64 {v(EP+2*j,2)}, v{12+j}")
    a(f"""s_and_b32 s26, s2, 7
          s_lshr_b32 s27, s2, 3
          s_lshr_b32 s{sRB3}, s26, 1
          s_lshl_b32 s{sRB3}, s{sRB3}, 2
          s_and_b32 s3, s27, 3
          s_add_u32 s{sRB3}, s{sRB3}, s3
          s_and_b32 s{sCB3}, s26, 1
          s_mul_i32 s{sCB3}, s{sCB3}, 7
          s_add_u32 s{sCB3}, s{sCB3}, s{sCB}
          s_lshl_b32 s{sT3}, s{sRB3}, 2
          s_add_u32 s{sT3}, s{sT3}, s{sW}
          v_lshrrev_b32 v8, 3, v1
          v_bfe_u32 v9, v1, 4, 1
          v_lshlrev_b32 v9, 2, v9
          v_and_b32 v6, 7, v1
          v_xor_b32 v9, v9, v6
          v_mul_u32_u24 v8, 3584, v8
          v_lshl_add_u32 v6, v9, 4, v8
          s_mul_i32 s3, s{sW}, {16*3584}
          s_lshl_b32 s26, s{sCB3}, 8
          s_add_u32 s3, s3, s26
          v_add_u32 v6, s3, v6                   ; W3 voffset
          s_mul_i32 s{sK3}, s{sCB}, {64*3584*ROT}""")
    srd(a, WB_, 16, 448 * 3584)
    a("s_waitcnt lgkmcnt(0)")
    a(f"""s_mul_i32 s3, s{sT}, 28
          s_mul_i32 s26, s{sW}, 7
          s_add_u32 s3, s3, s26
          s_lshl_b32 s3, s3, 10
          s_add_u32 s3, s3, {HF}
          v_add_u32 v186, s3, v0
          s_xor_b32 s3, s{sT}, 1
          s_mul_i32 s3, s3, 28
          s_add_u32 s3, s3, s26
          s_lshl_b32 s3, s3, 10
          s_add_u32 s3, s3, {HF}
          v_add_u32 v187, s3, v0
          s_mul_i32 s{sKA}, s{sCB}, {1024*ROT}
          s_mul_i32 s{sX}, s{sT}, 28
          s_lshl_b32 s3, s{sCB}, 2
          s_add_u32 s{sX}, s{sX}, s3
          s_lshl_b32 s3, s{sFT}, 1
          s_add_u32 s{sX}, s{sX}, s3
          s_lshl_b32 s{sX}, s{sX}, 10
          s_add_u32 s{sX}, s{sX}, {X1F}
          s_add_u32 s3, s{sW}, 12
          s_lshl_b32 s3, s3, 4
          s_lshr_b32 s26, s{sRB}, 1
          s_add_u32 s3, s3, s26
          s_lshl_b32 s3, s3, 7
          s_add_u32 s3, s3, {FP}
          v_mov_b32 v188, s3
          s_lshl_b32 s3, s26, 7
          s_add_u32 s3, s3, {FP}
          v_mov_b32 v189, s3
          v_lshlrev_b32 v8, 3, v1
          v_and_b32 v15, 0xff, v8
          s_lshl_b32 s27, s{sT}, 8
          s_add_u32 s27, s27, {ST1}""")
    unpack(a, RES, EP, 8)

def roleb(a):
    ACC, WF, AR, EP = 16, 80, 112, 176
    sRB, sCB, sT, sM, sK, sKA, sX = 44, 45, 48, 47, 50, 51, 53
    sRB3, sCB3, sT3, sK3, sL = 54, 55, 56, 57, 49
    ROT = opt("rot", 1)
    a("s_cmp_ge_u32 s2, 224\ns_cbranch_scc0 B_go")
    a(f"""s_mov_b64 exec, 1
          v_mov_b32 v8, {CNT}
          v_mov_b32 v9, {B_G3_DONE // 4}
          ds_add_u32 v8, v9
          s_mov_b64 exec, -1""")
    garrive(a, C_X)
    if opt("idlepf", 1):
        if opt("idlepf", 1) == 2: gwait(a, C_S1, 8)
        else:
            a(f"""s_lshl_b32 s3, s{sRB}, 10
                  s_add_u32 s3, s3, {F2}
                  v_mov_b32 v10, s3""")
            poll(a, 10, 1)
        srd(a, WA, 18, 1792 * 896)
        srd(a, WB_, 8, 448 * 896)
        a(f"""s_lshr_b32 s3, s2, 3
              s_sub_u32 s3, s3, 28
              s_lshl_b32 s3, s3, 2
              s_add_u32 s3, s3, s{sW}
              s_lshl_b32 s26, s3, 13
              s_and_b32 s27, s2, 1
              s_mul_i32 s27, s27, {896*896}
              s_add_u32 s26, s26, s27
              v_lshlrev_b32 v8, 7, v1
              s_mov_b32 s27, 7""")
        a.label("B_pf")
        a(f"""buffer_load_dword v16, v8, {s(WA,4)}, s26 offen
              s_add_u32 s26, s26, {16*8192}
              s_waitcnt vmcnt(1)
              s_sub_u32 s27, s27, 1
              s_cmp_lg_u32 s27, 0
              s_cbranch_scc1 B_pf
              s_lshl_b32 s26, s3, 13""")
        for i in range(4): a(f"buffer_load_dword v16, v8, {s(WB_,4)}, s26 offen\ns_add_u32 s26, s26, {16*8192}")
    a("s_endpgm")
    a.label("B_go")
    a(f"s_setprio {opt('pb', 1)}")
    bs2 = (lambda i: common.stamp(a, i)) if opt("g2s", 0) and common.STAMPS else (lambda i: None)
    if opt("g2s", 0):
        global stamp
        keep = stamp
        stamp = lambda a_, i, *x: keep(a_, i, *x) if i in (2, 3) else None
    def w3chunk(c):
        hf, j = (1, c) if c < 7 else (0, c - 7)
        for u in range(2):
            a(f"s_add_u32 m0, s{sL}, {hf*H1 + j*8192 + u*1024}")
            a(f"s_add_u32 s3, s{sK3}, {u*8*3584 + 128*hf}")
            a(f"buffer_load_dwordx4 v6, {s(WB_,4)}, s3 offen lds")
        wrapinc(a, sK3, 64*3584, 448*3584)
    W3A = opt("w3a", 0); W3E = max(W3A, opt("w3e", 6)); assert W3E <= 6
    if W3A:
        gwait(a, C_S1, 8)
        for c in range(W3A): w3chunk(c)
    stamp(a, 2)
    poll(a, 188, 1)
    a(f"buffer_load_dword v12, v189, {s(WD,4)}, 0 offen sc1")
    stamp(a, 3)
    for j in range(7):
        a(f"buffer_load_dwordx4 {v(AR+8*j,4)}, v186, {s(WD,4)}, s{sKA} offen{SC}")
        a(f"buffer_load_dwordx4 {v(AR+8*j+4,4)}, v187, {s(WD,4)}, s{sKA} offen{SC}")
        if j < 6: wrapinc(a, sKA, 1024, 7168)
    a("s_waitcnt vmcnt(14)\nv_cmp_eq_u32 vcc, 0, v12\ns_cbranch_vccz B_st1")
    poll(a, 189, 1)
    a.label("B_st1")
    a(f"buffer_load_dwordx2 {v(EP+8,2)}, v15, {s(WD,4)}, s27 offen{SC}")
    garrive(a, C_X)
    for s_ in range(3): wreads(a, WF, s_, s_*8192)
    NW3 = 0
    for s_ in range(7):
        a(f"s_waitcnt vmcnt({2*(6-s_) + 1 + NW3}) lgkmcnt({4*min(2, 6 - s_)})")
        mfmas(a, ACC, WF, s_ & 3, AR+8*s_, AR+8*s_+4, s_ == 0)
        if s_ + 3 < 7: wreads(a, WF, (s_+3) & 3, (s_+3)*8192)
    U = AR
    stamp(a, 12)
    a(f"s_waitcnt vmcnt({NW3})")
    for i in range(16): a(f"v_sub_f32 v{U+i}, v{RES+i}, v{EP+8}")
    def region2(d, j):
        a(f"""s_xor_b32 s{d}, s{sW}, {(j >> 1) + 2*(j & 1)}
              s_mul_i32 s{d}, s{d}, 12288
              s_add_u32 s{d}, s{d}, {W3B + 48*1024}""")
    region2(sM, 0)
    reduce3(a, ACC, sM, region2, 0, 4, True)
    stamp(a, 13)
    for i in range(16): a(f"v_fma_f32 v{U+i}, v{U+i}, v{EP+9}, v{ACC+i}")
    for i in range(8): a(f"v_cvt_pk_bf16_f32 v{EP+i}, v{U+2*i}, v{U+2*i+1}")
    a(f"buffer_store_dwordx4 {v(EP,4)}, v0, {s(WD,4)}, s{sX} offen{SC}")
    a(f"buffer_store_dwordx4 {v(EP+4,4)}, v0, {s(WD,4)}, s{sX} offen offset:1024{SC}")
    unpack(a, U, EP, 8)
    for i in range(16):
        a(f"v_add_f32 v{10+(i&1)}, v{U+i}, {'0' if i < 2 else 'v%d' % (10+(i&1))}")
        a(f"v_fma_f32 v{12+(i&1)}, v{U+i}, v{U+i}, {'0' if i < 2 else 'v%d' % (12+(i&1))}")
    a("v_add_f32 v10, v10, v11\nv_add_f32 v11, v12, v13")
    half_sum(a, 10, 8); half_sum(a, 11, 9)
    a(f"""s_lshl_b32 s26, s{sCB}, 1
          s_add_u32 s26, s26, s{sFT}
          s_mul_i32 s3, s{sT}, 14
          s_add_u32 s3, s3, s26
          s_lshl_b32 s3, s3, 8
          s_add_u32 s3, s3, {ST3}
          buffer_store_dwordx2 v[10:11], v15, {s(WD,4)}, s3 offen{SC}
          s_lshl_b32 s3, s{sRB}, 3
          s_add_u32 s3, s3, s{sCB}
          s_lshl_b32 s3, s3, 7
          s_add_u32 s{sX}, s3, {F2}""")
    garrive(a, 0)
    for i in range(16): a(f"v_add_f32 v{RES+i}, v{RES+i}, v{U+i}")
    for c in range(W3A, W3E): w3chunk(c)
    a(f"s_waitcnt vmcnt({2*(W3E - W3A)})")
    signal(a, sX, 12)
    stamp(a, 4)
    gwait(a, 0, 8)
    for c in range(W3E, 14): w3chunk(c)
    ACC, WF, XR, TMP = 16, 80, 112, 240
    CSP, CS = TMP, ACC + 48
    a(f"""s_lshl_b32 s3, s{sFT}, 6
          s_sub_u32 s26, 0, s{sL}
          v_add_u32 v2, s26, v2
          v_xor_b32 v2, s3, v2
          v_xor_b32 v3, 64, v2
          v_add_u32 v4, {H1}, v2
          v_add_u32 v5, {H1}, v3""")
    a(f"""s_lshr_b32 s3, s{sT3}, 1
          s_lshl_b32 s3, s3, 10
          s_add_u32 s3, s3, {F2}
          v_lshl_add_u32 v11, v1, 7, s3
          s_lshl_b32 s26, s{sCB3}, 1
          s_lshr_b32 s3, s{sW}, 1
          s_add_u32 s26, s26, s3
          v_add_u32 v8, -7, v1
          v_mul_u32_u24 v8, 28, v8
          v_add_u32 v8, s26, v8
          v_and_b32 v9, 1, v8
          v_lshrrev_b32 v10, 5, v8
          v_lshl_add_u32 v9, v9, 3, v10
          v_bfe_u32 v10, v8, 1, 2
          v_lshl_add_u32 v9, v9, 2, v10
          v_bfe_u32 v10, v8, 3, 2
          v_lshl_add_u32 v9, v9, 2, v10
          v_lshlrev_b32 v9, 7, v9
          v_add_u32 v9, {FP}, v9
          v_cmp_gt_u32 vcc, 7, v1
          v_cndmask_b32 v11, v9, v11, vcc
          s_mul_i32 s{sK3}, s26, {28*256}
          s_and_b32 s3, s{sW}, 1
          s_lshl_b32 s3, s3, 7
          s_add_u32 s{sK3}, s{sK3}, s3
          s_add_u32 s{sK3}, s{sK3}, {CS3P}
          v_lshrrev_b32 v10, 5, v1
          v_mul_u32_u24 v10, {14*256}, v10
          v_and_b32 v9, 31, v1
          v_lshl_add_u32 v6, v9, 2, v10
          s_mul_i32 s3, s{sT3}, {28*1024}
          s_add_u32 s3, s3, {X1F}
          v_add_u32 v7, s3, v0
          s_mul_i32 s{sKA}, s{sCB}, {4096*ROT}
          v_lshrrev_b32 v12, 5, v1
          v_mul_u32_u24 v12, {7*256}, v12
          v_and_b32 v13, 31, v1
          v_lshl_add_u32 v12, v13, 3, v12
          s_mul_i32 s27, s{sT3}, {14*256}
          s_add_u32 s27, s27, {ST3}""")
    a("s_waitcnt vmcnt(0)")
    gbar(a, 0, 12)
    CSG = opt("csg", 1)
    def cs_exchange():
        a(f"""v_cvt_pk_bf16_f32 v{WF}, v{CS}, v{CS}
              v_and_b32 v{WF}, 0xffff0000, v{WF}
              v_sub_f32 v{WF}, v{CS}, v{WF}
              v_cvt_pk_bf16_f32 v{WF}, v{CS}, v{WF}
              v_and_b32 v13, 31, v1
              v_lshlrev_b32 v13, 2, v13
              s_lshl_b32 s26, s{sW}, 7
              s_add_u32 s26, s26, {XCH3}
              v_add_u32 v13, s26, v13
              ds_write_b32 v13, v{WF}""")
        a("s_waitcnt lgkmcnt(0)")
        garrive(a, 0)
    def cs_collect():
        gwait(a, 0, 16)
        a(f"v_and_b32 v15, 31, v1\nv_lshlrev_b32 v15, 2, v15\nv_add_u32 v15, {XCH3}, v15")
        for t in range(4): a(f"ds_read_b32 v{CSP+t}, v15 offset:{128*t}")
        a("s_waitcnt lgkmcnt(0)")
    hops = lambda ts: {}
    woff = None
    poll(a, 11, 14)
    stamp(a, 5)
    STL = [WF + 24, WF + 26, WF + 28, WF + 30, TMP + 8, TMP + 10, 14]; ST = STL[0]
    LA = opt("la3", 10)
    def xl(u):
        g = A()
        g(f"buffer_load_dwordx4 {v(XR+4*u,4)}, v7, {s(WD,4)}, s{sKA} offen offset:{(u&3)*1024}{SC}")
        if (u & 3) == 3 and u < 27: wrapinc(g, sKA, 4096, 7*4096)
        return g.l
    L0 = opt("l0", 4)
    for u in range(L0):
        for x in xl(u): a(x)
        if u == 3:
            for i in range(7): a(f"buffer_load_dwordx2 {v(STL[i],2)}, v12, {s(WD,4)}, s27 offen offset:{i*256}{SC}")
            for i in range(14): a(f"buffer_load_dword v{CS+i}, v6, {s(WD,4)}, s{sK3} offen offset:{i*256}{SC}")
    M0_, M1_, R, DEN = TMP+4, TMP+5, TMP+6, TMP+7
    f = A()
    for i in range(1, 7): f(f"v_add_f32 v{ST}, v{ST}, v{STL[i]}\nv_add_f32 v{ST+1}, v{ST+1}, v{STL[i]+1}")
    f(f"v_mov_b32 v12, v{ST}\nv_mov_b32 v13, v{ST+1}")
    half_sum(f, 12, 8); half_sum(f, 13, 9)
    f(f"""v_mul_f32 v12, {fb(1/448)}, v12
          v_mul_f32 v13, {fb(1/448)}, v13
          v_fma_f32 v13, -v12, v12, v13
          v_max_f32 v13, 0, v13
          v_add_f32 v13, {fb(EPS)}, v13
          v_sqrt_f32 v{DEN}, v13
          v_rsq_f32 v{R}, v13""")
    mu_frag(f, 12, "-1", M0_, M1_)
    gelu_consts(f, R, DEN)
    f(f"""s_mul_i32 s{sK}, s{sT3}, 112
          s_lshl_b32 s27, s{sCB3}, 3
          s_add_u32 s{sK}, s{sK}, s27
          s_lshl_b32 s{sK}, s{sK}, 10
          s_add_u32 s{sK}, s{sK}, {HHF}
          s_add_u32 s27, s{sK}, 4096""")
    for i in range(1, 14): f(f"v_add_f32 v{CS}, v{CS}, v{CS+i}")
    half_sum(f, CS, 8)
    f(f"""v_cvt_pk_bf16_f32 v11, v{CS}, v{CS}
          v_and_b32 v11, 0xffff0000, v11
          v_sub_f32 v11, v{CS}, v11
          v_cvt_pk_bf16_f32 v11, v{CS}, v11
          s_lshl_b32 s26, s{sW}, 7
          s_add_u32 s26, s26, {XCH3}
          v_and_b32 v13, 31, v1
          v_lshl_add_u32 v13, v13, 2, s26""")
    NA = 2
    t1 = ((0,) if CSG else (0, 4)) + tuple(range(1, NA)); t2_ = tuple(range(NA, 4))
    pre = hops(t1); pre["fill0"] = 4*len(t1) + 1; pre["G"] = opt("g3g", 2)
    issued = L0
    for s_ in range(28):
        pre[("s", s_)] = [f"s_waitcnt vmcnt({issued - 1 - s_ + (21 if s_ < 4 else 0)})"]
        pre[("t", s_)] = []
        for _ in range(2):
            if issued < min(28, s_ + 1 + LA): pre[("t", s_)] += xl(issued); issued += 1
        if opt("g3s", 0) and common.STAMPS and s_ in (0, 8, 16, 27):
            g = A(); common.stamp(g, {0: 2, 8: 3, 16: 12, 27: 13}[s_]); pre[("s", s_)] += g.l
    g = A(); g("ds_write_b32 v13, v11"); garrive(g, 0); pre[("m", 53)] = g.l
    pre["fillend"] = 52
    a(f"s_setprio {opt('p3a', 1)}")
    kloop(a, ACC, WF, XR, 2, t1, woff, pre, True, f.l, R=6, D=5, cs=(CS, CSP, 32))
    a(f"s_setprio {opt('pb', 1)}")
    cs_collect()
    stamp(a, 13 if False else 14)
    def gfrag(fr, o):
        return gelu8(ACC + 8*fr, 10, 12, 14, TMP + 8, o) + [f"buffer_store_dwordx4 {v(o,4)}, v0, {s(WD,4)}, s{sK if fr < 4 else 27} offen offset:{(fr&3)*1024}{SC}"]
    assert NA == 2
    garrive(a, 0)
    mean_fix(a, ACC, WF, lambda t: CSP + t, M0_, M1_, tuple(range(NA)))
    srd(a, WA, 18, 1792 * 896)
    a(f"""v_lshrrev_b32 v8, 3, v1
          v_bfe_u32 v9, v1, 4, 1
          v_lshlrev_b32 v9, 2, v9
          v_and_b32 v7, 7, v1
          v_xor_b32 v9, v9, v7
          v_mul_u32_u24 v8, 896, v8
          v_lshl_add_u32 v7, v9, 4, v8
          s_and_b32 s3, s2, 1
          s_mul_i32 s3, s3, 56
          s_add_u32 s3, s3, s{sW}
          s_mul_i32 s3, s3, {16*896}
          s_lshl_b32 s26, s{sCB}, 7
          s_add_u32 s3, s3, s26
          v_add_u32 v7, s3, v7                   ; W4 voffset
          s_mul_i32 s{sK3}, s{sCB}, {8*16*896*ROT}""")
    def w4step(g, j):
        for u in range(2):
            g(f"s_add_u32 m0, s{sL}, {j*8192 + u*1024}\ns_add_u32 s3, s{sK3}, {u*8*896}\nbuffer_load_dwordx4 v7, {s(WA,4)}, s3 offen lds")
        wrapinc(g, sK3, 4*16*896, 896*896)
    nov = opt("nov", 4)
    pre = {"G": opt("g3b", 2)}
    W4S = opt("w4s", 3)
    W4E = opt("w4e", 0)
    g = A(); g.uid = 2000; gwait(g, 0, 20); pre[("s", W4S if W4E else 26)] = g.l
    for j in range(W4E):
        g = A(); w4step(g, j); pre[("t", W4S + (21 // W4E)*j)] = g.l
    kloop(a, ACC, WF, XR, 2, t2_, woff, pre, True,
          sum((gfrag(fr, ACC + 8*fr) for fr in range(nov)), []), R=6, D=5)
    garrive(a, 0)
    OWN = 168
    for fr in range(nov):
        for i in range(4): a(f"v_mov_b32 v{OWN+4*fr+i}, v{ACC+8*fr+i}")
    mean_fix(a, ACC, WF, lambda t: CSP + t, M0_, M1_, tuple(range(NA if NA < 4 else 0, 4)))
    for fr in range(nov, 8):
        if opt("pkg", 0):
            gelu_pairs(a, [ACC + 8*fr + 2*i for i in range(4)], 10, 12, 14, TMP + 8)
            for i in range(4): a(f"v_cvt_pk_bf16_f32 v{XR+4*fr+i}, v{ACC+8*fr+2*i}, v{ACC+8*fr+2*i+1}")
            a(gfrag(fr, XR + 4*fr)[-1])
        else:
            for x in gfrag(fr, OWN + 4*fr): a(x)
    stamp(a, 8)
    ACC, WF, AR, EP = 16, 80, 112, 176
    WOB = 0
    srd(a, WB_, 8, 448 * 896)
    a("s_and_b32 s27, s2, 1")
    gwait(a, 0, B_G3_DONE)
    NP0 = opt("np0", 4)
    for j in range(W4E, W4E + NP0): w4step(a, j)
    a(f"""s_lshl_b32 s3, s{sRB3}, 4
          s_add_u32 s3, s3, s{sCB3}
          s_lshl_b32 s3, s3, 7
          s_add_u32 s{sX}, s3, {F3}
          s_mul_i32 s3, s{sT3}, 112
          s_mul_i32 s26, s27, 56
          s_add_u32 s3, s3, s26
          s_lshl_b32 s3, s3, 10
          s_add_u32 s3, s3, {HHF}
          v_add_u32 v4, s3, v0
          s_add_u32 s{sKA}, s{sCB}, 1
          s_cmp_eq_u32 s{sKA}, 7
          s_cselect_b32 s{sKA}, 0, s{sKA}
          s_lshl_b32 s{sKA}, s{sKA}, 13
          s_lshl_b32 s26, s{sRB3}, 4
          s_mul_i32 s3, s27, 7
          s_add_u32 s3, s3, s26
          v_add_u32 v10, s3, v1
          v_lshlrev_b32 v10, 7, v10
          v_add_u32 v10, {F3}, v10
          s_lshl_b32 s3, s{sW}, 2
          s_add_u32 s3, s3, s26
          v_and_b32 v14, 3, v1
          v_add_u32 v14, s3, v14
          v_lshlrev_b32 v14, 7, v14
          v_add_u32 v14, {FA}, v14
          s_waitcnt vmcnt({2*NP0})""")
    signal(a, sX, 16)
    stamp(a, 9)
    for j in range(W4E + NP0, 14): w4step(a, j)
    a(f"""s_mul_i32 s3, s27, {896*896}
          s_mul_i32 s26, s{sW}, {96*896}
          s_sub_u32 s3, s26, s3
          v_add_u32 v7, s3, v7""")
    poll(a, 10, 7)
    gbar(a, 0, B_G3_DONE + 4)
    stamp(a, 10)
    LA4, RA = opt("la4", 12), 14
    PB = opt("pb16", 1); NPS = 8 >> PB
    OR_ = lambda u: 168 + 8*u if u < 7 else 240
    PD, EP = AR, AR + 16
    q = []
    def after(tag):
        return len(q) - 1 - max(i for i, x in enumerate(q) if x == tag)
    def al(u):
        a(f"buffer_load_dwordx4 {v(AR + 4*(u % RA), 4)}, v4, {s(WD,4)}, s{sKA} offen offset:{(u&3)*1024}{SC}"); q.append(("a", u))
        if (u & 3) == 3 and u < 55: wrapinc(a, sKA, 4096, 56*1024)
    def rd(m):
        s_, b = m >> 1, m & 1
        if m == 64: a("v_add_u32 v2, 0x10000, v2\nv_add_u32 v3, 0x10000, v3")
        for e in range(2): a(f"ds_read_b64_tr_b16 {v(WF + 4*(m & 7) + 2*e, 2)}, v{2+b} offset:{(s_ & 31)*2048 + e*1024}")
    def wo(u):
        a(f"s_add_u32 m0, s{sM}, {u*1024}\ns_mov_b32 s3, {u*8*896}\nbuffer_load_dwordx4 v7, {s(WB_,4)}, s3 offen lds"); q.append(("w", u))
    def ol(u):
        for aa in range(2):
            a(f"buffer_load_dwordx4 {v(OR_(u)+4*aa,4)}, v{12+aa}, {s(WD,4)}, {'0' if u < 4 else 's%d' % sL} offen offset:{(u&3)*1024}{SC}"); q.append(("o", u))
    assert ROT
    I0 = opt("i0", 4); nxt = [8 + I0]
    for u in range(8, 8 + I0): al(u)
    a(f"""s_mul_i32 s{sM}, s{sW}, 15360
          s_movk_i32 s{sL}, 4096
          s_lshl_b32 s3, s{sT}, 5
          s_lshl_b32 s26, s{sW}, 3
          s_add_u32 s3, s3, s26
          s_lshl_b32 s3, s3, 10
          s_add_u32 s3, s3, {OF}
          v_add_u32 v12, s3, v0
          v_xor_b32 v13, {32*1024}, v12
          s_setprio {opt('pf', 0)}""")
    D4 = 6
    S_ARR, S_WO, S_FL, S_CHK = 31, opt("swo", 36), opt("sfl", 52), 99
    for m in range(D4): rd(m)
    for m in range(112):
        s_, b = m >> 1, m & 1
        if b == 0: a("s_waitcnt " + (f"vmcnt({after(('a', s_))}) " if s_ >= 8 else "") + f"lgkmcnt({2*max(0, min(D4 - 2, 110 - m))})")
        a(f"{MF} {v(ACC+16*b,16)}, {v(WF + 4*(m & 7), 4)}, {v(AR + 4*(s_ % RA) if s_ >= 8 else OWN + 4*s_, 4)}, {'0' if s_ == 0 else v(ACC+16*b,16)}")
        if m + D4 < 112: rd(m + D4)
        if b == 1:
            if opt("g4s", 0) and s_ in (7, 8, 30, 36, 51): stamp(a, {7: 2, 8: 3, 30: 12, 36: 13, 51: 4}[s_])
            for _ in range(opt("i1", 1) if s_ < 8 else 1):
                if nxt[0] < min(56, max(s_, 7) + 1 + LA4): al(nxt[0]); nxt[0] += 1
            if s_ == S_ARR: garrive(a, 0)
            if s_ == S_WO: gwait(a, 0, B_G3_DONE + 8)
            if S_WO <= s_ < S_WO + 15: wo(s_ - S_WO)
            if s_ == S_FL:
                a(f"buffer_load_dword v15, v14, {s(WD,4)}, 0 offen sc1"); q.append("f")
    a(f"s_setprio {opt('pb', 1)}")
    stamp(a, 11)
    a(f"""s_lshl_b32 s{sX}, s2, 7
          s_add_u32 s{sX}, s{sX}, {FQ}
          s_lshl_b32 s3, s{sFT}, 6
          s_add_u32 s26, s{sM}, 0xffff0000
          v_xor_b32 v2, s3, v2
          v_xor_b32 v3, s3, v3
          v_add_u32 v2, s26, v2
          v_add_u32 v3, s26, v3
          s_xor_b32 s3, s{sRB}, 1
          s_mul_i32 s3, s3, 7
          s_add_u32 s3, s3, s{sCB}
          s_lshl_b32 s3, s3, 1
          s_and_b32 s26, s{sW}, 1
          s_add_u32 s3, s3, s26
          s_lshl_b32 s3, s3, {13 - PB}
          s_add_u32 s3, s3, {PART}
          s_cmp_eq_u32 s{sFT}, 0
          s_cselect_b32 s3, {OOB}, s3
          s_add_u32 s26, s3, 4096""")
    woff2 = lambda u: (28*(u >> 1) + 16*(u & 1)) * 128
    if PB:
        for i in range(16):
            a(f"v_cvt_pk_bf16_f32 v{AR+i}, v{ACC+2*i}, v{ACC+2*i+1}")
            if (i & 3) == 3: a(f"buffer_store_dwordx4 {v(AR+i-3,4)}, v0, {s(WD,4)}, s3 offen offset:{(i>>2)*1024}{SC}")
    else:
        for i in range(8): a(f"buffer_store_dwordx4 {v(ACC+4*i,4)}, v0, {s(WD,4)}, s{3 if i < 4 else 26} offen offset:{(i&3)*1024}{SC}")
    a(f"""s_mov_b32 s{sKA}, 0
          s_waitcnt vmcnt({NPS})
          v_cmp_eq_u32 vcc, 0, v15
          s_cbranch_vccz B_oready
          s_waitcnt vmcnt(0)""")
    signal(a, sX, C_SQ)
    a(f"s_mov_b32 s{sKA}, 1")
    poll(a, 14, 4)
    a.label("B_oready")
    for u in range(8): ol(u)
    stamp(a, 15)
    for u in range(3): wreads(a, WF, u, woff2(u))
    a(f"""s_mul_i32 s27, s{sRB}, 7
          s_add_u32 s27, s27, s{sCB}
          s_lshl_b32 s27, s27, 1
          s_and_b32 s26, s{sW}, 1
          s_add_u32 s27, s27, s26
          s_lshl_b32 s27, s27, 1
          s_add_u32 s27, s27, s{sFT}
          s_lshl_b32 s27, s27, {12 - PB}
          s_add_u32 s{sK}, s27, {PART}
          s_xor_b32 s3, s2, 1
          s_lshl_b32 s3, s3, 7
          s_add_u32 s3, s3, {FQ}
          v_mov_b32 v14, s3
          s_cmp_eq_u32 s{sFT}, 0
          s_cbranch_scc1 B_keep""")
    for i in range(32): a(f"v_mov_b32 v{ACC+i}, 0")
    a.label("B_keep")
    a(f"s_waitcnt vmcnt(16)\ns_cmp_lg_u32 s{sKA}, 0\ns_cbranch_scc1 B_sigd")
    signal(a, sX, C_SQ)
    a.label("B_sigd")
    for u in range(8):
        a(f"s_waitcnt vmcnt({2*(7 - u)}) lgkmcnt({4*min(2, 7 - u)})")
        for aa in range(2):
            for b in range(2):
                j = 2*aa + b
                a(f"{MF} {v(ACC+16*j,16)}, {v(WF+8*(u&3)+4*b,4)}, {v(OR_(u)+4*aa,4)}, {'0' if (u == 0 and aa) else v(ACC+16*j,16)}")
        if u + 3 < 8: wreads(a, WF, (u+3) & 3, woff2(u+3))
    a(f"buffer_load_dword v15, v14, {s(WD,4)}, 0 offen sc1")
    if opt("ts", 0): stamp(a, 2)
    def region3(d, j):
        a(f"s_xor_b32 s{d}, s{sW}, {(j >> 1) + 2*(j & 1)}\ns_mul_i32 s{d}, s{d}, 15360\ns_add_u32 s{d}, s{d}, {WOB}")
    srd(a, XS, 20, 2048 * 896)
    OSC = ["", " sc1", " nt"][opt("osc", 2)]
    OT = WOB + 4*15360
    a(f"""v_and_b32 v4, 31, v1
          s_and_b32 s26, s{sW}, 1
          s_lshl_b32 s26, s26, 5
          v_add_u32 v4, s26, v4
          v_mul_u32_u24 v4, 144, v4
          v_lshrrev_b32 v9, 5, v1
          v_lshl_add_u32 v4, v9, 3, v4
          s_lshl_b32 s26, s{sFT}, 6
          s_add_u32 s26, s26, {OT}
          v_add_u32 v4, s26, v4
          v_lshrrev_b32 v6, 3, v1
          s_lshl_b32 s26, s{sW}, 4
          v_add_u32 v6, s26, v6
          v_and_b32 v9, 7, v1
          v_mul_u32_u24 v5, 144, v6
          v_lshl_add_u32 v5, v9, 4, v5
          v_add_u32 v5, {OT}, v5
          v_mul_u32_u24 v6, 896, v6
          v_lshl_add_u32 v6, v9, 4, v6
          s_mul_i32 s27, s{sRB}, {64*896}
          s_lshl_b32 s26, s{sCB}, 7
          s_add_u32 s27, s27, s26
          s_add_u32 s{sX}, s27, {8*896}""")
    def fetch_partial():
        a("s_waitcnt vmcnt(0)\nv_cmp_eq_u32 vcc, 0, v15\ns_cbranch_vccz B_pready")
        poll(a, 14, 1)
        a.label("B_pready")
        for i in range(4 >> PB): a(f"buffer_load_dwordx4 {v(PD+16*PB+4*i,4)}, v0, {s(WD,4)}, s{sK} offen offset:{i*1024}{SC}")
    reduce3(a, ACC, sM, region3, 0, B_G3_DONE + 12, True, fetch_partial)
    if opt("ts", 0): stamp(a, 3)
    for i in range(16): a(f"v_add_f32 v{ACC+i}, v{ACC+i}, v{RES+i}")
    a("s_waitcnt vmcnt(0)")
    if PB: unpack(a, PD, PD + 16, 8)
    for i in range(16): a(f"v_add_f32 v{ACC+i}, v{ACC+i}, v{PD+i}")
    if opt("ts", 0): stamp(a, 12)
    for i in range(8): a(f"v_cvt_pk_bf16_f32 v{EP+i}, v{ACC+2*i}, v{ACC+2*i+1}")
    for j in range(4): a(f"ds_write_b64 v4, {v(EP+2*j,2)} offset:{16*j}")
    gbar(a, 0, B_G3_DONE + 16)
    if opt("ts", 0): stamp(a, 13)
    a(f"""ds_read_b128 {v(EP,4)}, v5
          ds_read_b128 {v(EP+4,4)}, v5 offset:{8*144}
          s_waitcnt lgkmcnt(1)
          buffer_store_dwordx4 {v(EP,4)}, v6, {s(XS,4)}, s27 offen{OSC}
          s_waitcnt lgkmcnt(0)
          buffer_store_dwordx4 {v(EP+4,4)}, v6, {s(XS,4)}, s{sX} offen{OSC}""")
    stamp_out2(a)
    a("s_endpgm")

def stamp_out2(a):
    if not common.STAMPS: return
    a("s_waitcnt vmcnt(0)")
    common.stamp(a, 6); common.stamp(a, 7, True)
    a("s_waitcnt lgkmcnt(0)")
    for i in range(16): a(f"v_mov_b32 v{16+i}, s{64+2*i}")
    a(f"""s_lshl_b32 s3, s2, 3
          s_add_u32 s3, s3, s60
          s_lshl_b32 s3, s3, 6
          s_add_u32 s3, s3, {TS}
          v_mov_b32 v8, 0""")
    for j in range(4): a(f"buffer_store_dwordx4 v[{16+4*j}:{19+4*j}], v8, {s(WD,4)}, s3 offen offset:{16*j}")

def p1stamps():
    return common.STAMPS and opt("p1s", 0)

def build(name):
    a = A()
    a.label("K_start")
    a("s_cmp_ge_u32 s2, 256\ns_cbranch_scc1 K_end")
    load_args(a)
    a(f"""v_and_b32 v1, 63, v0
          v_lshrrev_b32 v8, 6, v0
          s_mov_b32 s59, {fb(2.0**100)}
          v_readfirstlane_b32 s60, v8
          v_lshlrev_b32 v0, 4, v1
          s_and_b32 s{sW}, s60, 3
          s_cmp_ge_u32 s60, 4""")
    if opt("bfirst", 1):
        a("s_cbranch_scc0 K_rolea")
        p1b(a)
        a("s_branch K_roleb")
        a.label("K_rolea")
        p1a(a)
        att(a)
        a.label("K_roleb")
        roleb(a)
    else:
        a("s_cbranch_scc1 K_roleb")
        p1a(a)
        att(a)
        a.label("K_roleb")
        p1b(a)
        roleb(a)
    a.label("K_end")
    a("s_endpgm")
    a.label("K_last")
    return a

if __name__ == "__main__":
    if "stamp" in sys.argv[1]: common.STAMPS = True
    name = "parallel_sum__mha_block__mixer_s_mlp__prompt_kernel"
    HDR = open("parallel_sum__mha_block__mixer_s_mlp__prompt.s.ref").read().split("; Override launch")[0]
    out = HDR + "; @launch grid=(256,1,1) block=(512,1,1) lds=163840\n" + '.amdgcn_target "amdgcn-amd-amdhsa--gfx950"\n'
    out += kernel_head(name) + build(name).text() + kernel_desc(name, vgpr=256, sgpr=102)
    open(sys.argv[1], "w").write(out)
```

```python
import sys
import common
from common import *

FLG = 0x1550000
FP, F2, F3, FA, FQ = FLG, FLG + 0x8000, FLG + 0x10000, FLG + 0x18000, FLG + 0x20000
NINIT = 20
PART = 0x1600000
WS_END = 0x1A00000
sFT = 52
CS3P = 0x800000
XS, WA, WD, WB_ = 28, 32, 36, 40
sW, sSPIN = 46, 58
SC = " sc1"
CNT = 156 * 1024
C_B, C_A, C_S1, C_S2, C_S3, C_SA, C_W, C_X, C_SQ = 0, 4, 8, 12, 16, 20, 24, 28, 32
SPIN_MAX = 1 << 16
import os
OPT = dict(x.split("=") for x in os.environ.get("MKOPT", "").split(",") if x)
def opt(k, d): return int(OPT.get(k, d))
SLEEP = opt("sleep", 1)
DEBUG = "dbg" in sys.argv[1] if len(sys.argv) > 1 else False


def poll(a, vaddr, nlanes, srdreg=WD, soff="0"):
    L, D = a.newlabel("PL"), a.newlabel("PD")
    a(f"s_mov_b32 s{sSPIN}, {SPIN_MAX}")
    a(f"s_mov_b64 exec, {(1 << nlanes) - 1}" if nlanes <= 6 else f"s_bfm_b64 exec, {nlanes}, 0")
    a.label(L)
    a(f"""buffer_load_dword v9, v{vaddr}, {s(srdreg,4)}, {soff} offen sc1
          s_waitcnt vmcnt(0)
          v_cmp_eq_u32 vcc, 0, v9
          s_cbranch_vccz {D}
          s_sleep {SLEEP}
          s_sub_u32 s{sSPIN}, s{sSPIN}, 1
          s_cmp_lg_u32 s{sSPIN}, 0
          s_cbranch_scc1 {L}""")
    a.label(D)
    a("s_mov_b64 exec, -1")

SCB = "" if opt("local", 0) else " sc1"
def signal(a, soff, cnt, sc=" sc1", last=3):
    a(f"""s_mov_b64 exec, 1
          v_mov_b32 v8, {CNT + cnt}
          v_mov_b32 v9, 1
          ds_add_rtn_u32 v8, v8, v9
          s_waitcnt lgkmcnt(0)
          v_readfirstlane_b32 s26, v8
          v_mov_b32 v8, 0
          s_cmp_eq_u32 s26, {last}
          s_cselect_b32 s26, s{soff}, {OOB}
          buffer_store_dword v9, v8, {s(WD,4)}, s26 offen{sc}
          s_mov_b64 exec, -1""")

def garrive(a, off, field=0):
    a(f"""s_mov_b64 exec, 1
          v_mov_b32 v8, {CNT + off}
          v_mov_b32 v9, {1 << (4*field)}
          ds_add_u32 v8, v9
          s_mov_b64 exec, -1""")

def gwait(a, off, target, va=8, sr=3, field=None):
    L, D = a.newlabel("GL"), a.newlabel("GD")
    a(f"s_mov_b32 s{sSPIN}, {SPIN_MAX * 8}\nv_mov_b32 v{va}, {CNT + off}")
    a.label(L)
    a(f"""ds_read_b32 v{va+1}, v{va}
          s_sub_u32 s{sSPIN}, s{sSPIN}, 1
          s_cbranch_scc1 {D}
          s_waitcnt lgkmcnt(0)
          v_readfirstlane_b32 s{sr}, v{va+1}
          {"" if field is None else f"s_bfe_u32 s{sr}, s{sr}, {0x40000 + 4*field}"}
          s_cmp_lt_u32 s{sr}, {target}
          s_cbranch_scc1 {L}""")
    a.label(D)
    a("s_waitcnt lgkmcnt(0)")

def gbar(a, off, target):
    a("s_waitcnt lgkmcnt(0)")
    garrive(a, off); gwait(a, off, target)

def kloop(a, ACC, WF, XR, vA, tiles, offs, pre, perm, fill=(), R=8, D=6, cs=None):
    ops = [(s_, t) for s_ in range(28) for t in (tiles if s_ < 27 else pre.get("lastorder", tiles))]
    N = len(ops); fill = list(fill); done = 0
    def rd(m):
        s_, t = ops[m]
        if (s_ & 3) == 0 and t == tiles[0]:
            for x in pre.get(s_ >> 2, []): a(x)
        for e in range(2):
            row = 16 * (s_ & 3) + (8 * e if perm else 4 * e)
            a(f"ds_read_b64_tr_b16 {v(WF + 4*(m % R) + 2*e, 2)}, v{vA+t} offset:{offs(s_ >> 2) + row*256 if offs else s_*2048 + e*1024}")
    for m in range(D): rd(m)
    f0 = pre.get("fill0", 1)
    per = max(1, -(-len(fill) // (pre.get("fillend", N - 1) - f0)))
    for m, (s_, t) in enumerate(ops):
        if (s_ & 3) == 0 and t == tiles[0]:
            for x in pre.get(("x", s_ >> 2), []): a(x)
        if t == tiles[0]:
            for x in pre.get(("s", s_), []): a(x)
        G = pre.get("G", 1)
        if m % G == 0: a(f"s_waitcnt lgkmcnt({2*max(0, min(D - G, N - G - m))})")
        if t < 4: a(f"{MF} {v(ACC+16*t,16)}, {v(WF + 4*(m % R), 4)}, {v(XR(s_) if callable(XR) else XR+4*s_,4)}, {'0' if s_ == 0 else v(ACC+16*t,16)}")
        elif len(cs) == 3: a(f"{MF} {v(cs[0],16)}, {v(cs[1],4)}, {v(WF + 4*(m % R), 4)}, {'0' if s_ == 0 else v(cs[0],16)}")
        else: a(f"v_mfma_f32_16x16x32_bf16 {v(cs[0],4)}, {v(cs[1],4)}, {v(WF + 4*(m % R), 4)}, {'0' if s_ == 0 else v(cs[0],4)}")
        if m + D < N: rd(m + D)
        if (s_ & 3) == 0 and t == tiles[0]:
            for x in pre.get(("y", s_ >> 2), []): a(x)
        if t == tiles[min(1, len(tiles) - 1)]:
            for x in pre.get(("t", s_), []): a(x)
        for x in pre.get(("m", m), []): a(x)
        if m >= f0:
            for x in fill[done:done + per]: a(x)
            done += per
    for x in fill[done:]: a(x)

def kburst(a, ACC, WF, XR, vA, offs, pre, fill=()):
    fill = list(fill); per = -(-len(fill) // 26); done = 0
    def rd(s_):
        if (s_ & 3) == 0:
            for x in pre.get(s_ >> 2, []): a(x)
        for t in range(4):
            for e in range(2):
                a(f"ds_read_b64_tr_b16 {v(WF + 16*(s_ & 1) + 4*t + 2*e, 2)}, v{vA+t} offset:{offs(s_ >> 2) + (16*(s_ & 3) + 8*e)*256}")
    rd(0); rd(1)
    for s_ in range(28):
        if (s_ & 3) == 0:
            for x in pre.get(("x", s_ >> 2), []): a(x)
        a(f"s_waitcnt lgkmcnt({8 if s_ < 27 else 0})")
        for t in range(4):
            a(f"{MF} {v(ACC+16*t,16)}, {v(WF + 16*(s_ & 1) + 4*t, 4)}, {v(XR+4*s_,4)}, {'0' if s_ == 0 else v(ACC+16*t,16)}")
        if s_ + 2 < 28: rd(s_ + 2)
        if s_:
            for x in fill[done:done + per]: a(x)
            done += per

def tr_addrs(a, vA, sTS, base, perm, which=(0, 1, 2, 3, 4)):
    a(f"""v_lshrrev_b32 v8, 5, v1
          v_bfe_u32 v9, v1, 2, 2
          v_bfe_u32 v10, v1, 4, 1
          v_and_b32 v11, 3, v1
          v_lshl_add_u32 v10, v10, 2, v11
          v_lshl_add_u32 v8, v8, {2 if perm else 3}, v9
          v_lshlrev_b32 v8, 8, v8
          v_add_u32 v8, {base}, v8
          v_lshlrev_b32 v9, 2, v9""")
    for t in which:
        a(f"s_mul_i32 s26, {sTS}, {t}" if t < 4 else f"s_mul_i32 s26, {sTS}, s{sW}")
        a(f"""v_add_u32 v11, s26, v10
              v_lshrrev_b32 v12, 1, v11
              v_add_u32 v12, v12, v9
              v_and_b32 v12, 15, v12
              v_and_b32 v11, 1, v11
              v_lshlrev_b32 v11, 3, v11
              v_lshl_add_u32 v11, v12, 4, v11
              v_add_u32 v{vA+t}, v8, v11""")

def cs_publish(a, CS, T, xch):
    a(f"""v_cvt_pk_bf16_f32 v{T}, v{CS}, v{CS}
          v_and_b32 v{T+1}, 0xffff0000, v{T}
          v_sub_f32 v{T+1}, v{CS}, v{T+1}
          v_cvt_pk_bf16_f32 v{T}, v{CS}, v{T+1}
          v_and_b32 v10, 31, v1
          v_lshlrev_b32 v10, 2, v10
          v_add_u32 v10, {xch}, v10
          s_lshl_b32 s26, s{sW}, 7
          v_add_u32 v9, s26, v10
          ds_write_b32 v9, v{T}""")

def mean_fix(a, ACC, T, src, vMU0, vMU1, tiles=(0, 1, 2, 3)):
    n = len(tiles)
    a(f"v_mov_b32 v{T+4*n}, v{vMU0}\nv_mov_b32 v{T+4*n+1}, v{vMU1}\nv_mov_b32 v{T+4*n+2}, 0\nv_mov_b32 v{T+4*n+3}, 0")
    for i, t in enumerate(tiles):
        if src(t) != T + 4*i: a(f"v_mov_b32 v{T+4*i}, v{src(t)}")
        a(f"v_and_b32 v{T+4*i+1}, 0xffff, v{src(t)}\nv_mov_b32 v{T+4*i+2}, 0\nv_mov_b32 v{T+4*i+3}, 0")
    for i, t in enumerate(tiles): a(f"{MF} {v(ACC+16*t,16)}, {v(T+4*i,4)}, {v(T+4*n,4)}, {v(ACC+16*t,16)}")

def mu_frag(a, vmu, lo_en, d0, d1):
    a(f"""v_cvt_pk_bf16_f32 v{d0}, -v{vmu}, -v{vmu}
          v_and_b32 v8, 0xffff0000, v{d0}
          v_sub_f32 v8, -v{vmu}, v8
          v_cvt_pk_bf16_f32 v{d1}, v8, 0
          v_and_b32 v{d1}, {lo_en}, v{d1}
          v_lshrrev_b32 v8, 5, v1
          v_add_u32 v8, -1, v8
          v_and_b32 v{d0}, v8, v{d0}
          v_and_b32 v{d1}, v8, v{d1}""")

def gelu_consts(a, R, DEN):
    a(f"""v_mul_f32 v10, {fb(GK1)}, v{R}
          v_mul_f32 v12, v{R}, v{R}
          v_mul_f32 v12, v12, v{R}
          v_mul_f32 v12, {fb(GK2)}, v12
          v_mov_b32 v14, v{DEN}""")

def gelu8(regs0, K1, K2, IS, T, out):
    L = []
    for i in range(8): L.append(f"v_mul_f32 v{T+i}, v{regs0+i}, v{regs0+i}")
    for i in range(8): L.append(f"v_fma_f32 v{T+i}, v{T+i}, v{K2}, v{K1}")
    for i in range(8): L.append(f"v_mul_f32 v{T+i}, v{T+i}, v{regs0+i}")
    for i in range(8): L.append(f"v_exp_f32 v{T+i}, v{T+i}")
    for i in range(8): L.append(f"v_fma_f32 v{T+i}, v{T+i}, v{IS}, v{IS}")
    for i in range(8): L.append(f"v_rcp_f32 v{T+i}, v{T+i}")
    for i in range(8): L.append(f"v_mul_f32 v{T+i}, v{T+i}, v{regs0+i}")
    for i in range(4): L.append(f"v_cvt_pk_bf16_f32 v{out+i}, v{T+2*i}, v{T+2*i+1}")
    return L

def wrapinc(a, sreg, step, lim):
    a(f"s_add_u32 s{sreg}, s{sreg}, {step}\ns_cmp_eq_u32 s{sreg}, {lim}\ns_cselect_b32 s{sreg}, 0, s{sreg}")

def reduce3(a, ACC, sM, region, cnt_off, target, xor, mid=None):
    a(f"v_add_u32 v10, s{sM}, v0")
    for j in range(1, 4):
        for i in range(4): a(f"ds_write_b128 v10, {v(ACC+16*j+4*i,4)} offset:{(j-1)*4096 + i*1024}")
    for j in range(1, 4):
        region(26, j)
        a(f"v_add_u32 v{10+j}, s26, v0")
    gbar(a, cnt_off, target)
    if mid: mid()
    for j in range(1, 4):
        for i in range(4): a(f"ds_read_b128 {v(ACC+16*j+4*i,4)}, v{10+j} offset:{(j-1)*4096 + i*1024}")
    for j in range(1, 4):
        a(f"s_waitcnt lgkmcnt({4*(3-j)})")
        for i in range(16): a(f"v_add_f32 v{ACC+i}, v{ACC+i}, v{ACC+16*j+i}")

def reduce3c(a, ACC, sM, region, cnt_off, target):
    BL = 3712
    a(f"""v_add_u32 v10, s{sM}, v0
          v_lshlrev_b32 v14, 2, v1
          v_add_u32 v14, {3584 - 128}, v14
          v_add_u32 v15, s{sM}, v14""")
    for j in range(1, 4):
        for i in range(3): a(f"ds_write_b128 v10, {v(ACC+16*j+4*i,4)} offset:{(j-1)*BL + i*1024}")
    a("s_mov_b64 exec, 0xffffffff")
    for j in range(1, 4): a(f"ds_write_b128 v10, {v(ACC+16*j+12,4)} offset:{(j-1)*BL + 3072}")
    a("s_not_b64 exec, exec")
    for j in range(1, 4): a(f"ds_write_b32 v15, v{ACC+16*j+12} offset:{(j-1)*BL}")
    a("s_mov_b64 exec, -1")
    for j in range(1, 4):
        region(26, j)
        a(f"v_add_u32 v{10+j}, s26, v0\nv_add_u32 v{4+j}, s26, v14")
    gbar(a, cnt_off, target)
    a("s_mov_b64 exec, 0xffffffff")
    for j in range(1, 4): a(f"ds_read_b128 {v(ACC+16*j+12,4)}, v{10+j} offset:{(j-1)*BL + 3072}")
    a("s_not_b64 exec, exec")
    for j in range(1, 4): a(f"ds_read_b32 v{ACC+16*j+12}, v{4+j} offset:{(j-1)*BL}")
    a("s_mov_b64 exec, -1")
    for j in range(1, 4):
        for i in range(3): a(f"ds_read_b128 {v(ACC+16*j+4*i,4)}, v{10+j} offset:{(j-1)*BL + i*1024}")
    for j in range(1, 4):
        a(f"s_waitcnt lgkmcnt({3*(3-j)})")
        for i in range(16): a(f"v_add_f32 v{ACC+i}, v{ACC+i}, v{ACC+16*j+i}")

def unpack(a, dst, src, n):
    for i in range(n):
        a(f"v_lshlrev_b32 v{dst+2*i}, 16, v{src+i}\nv_and_b32 v{dst+2*i+1}, 0xffff0000, v{src+i}")

NBAR_P1 = 10
XB = 112 * 1024
XCH = XB + 16384
def p1a(a):
    a(f"s_setprio {opt('pa1', 1)}")
    ACC, CS, WF, XR, TMP = 16, 80, 96, 136, 248
    sRB, sCB, sTY, sSUB, sTS, sLO, sT = 44, 45, 47, 48, 50, 55, 56
    a(f"""s_and_b32 s26, s2, 7
          s_lshr_b32 s27, s2, 3
          s_lshr_b32 s{sRB}, s26, 1
          s_lshl_b32 s{sRB}, s{sRB}, 2
          s_and_b32 s3, s27, 3
          s_add_u32 s{sRB}, s{sRB}, s3
          s_and_b32 s{sCB}, s26, 1
          s_lshl_b32 s{sCB}, s{sCB}, 3
          s_lshr_b32 s3, s27, 2
          s_add_u32 s{sCB}, s{sCB}, s3
          s_lshr_b32 s{sTY}, s{sCB}, 2
          s_and_b32 s{sSUB}, s{sCB}, 3
          s_cmp_eq_u32 s{sTY}, 3
          s_cselect_b32 s{sTS}, 8, 7
          s_cselect_b32 s{sLO}, -1, 0
          s_lshl_b32 s{sT}, s{sRB}, 2
          s_add_u32 s{sT}, s{sT}, s{sW}""")
    tr_addrs(a, 2, f"s{sTS}", 0, perm=False)
    a(f"""v_and_b32 v8, 15, v1
          v_bfe_u32 v9, v1, 4, 1
          v_cmp_eq_u32 vcc, v8, v9
          v_mov_b32 v8, 0x3f803f80
          v_cndmask_b32 v{CS+4}, 0, v8, vcc
          v_mov_b32 v{CS+5}, v{CS+4}
          v_mov_b32 v{CS+6}, v{CS+4}
          v_mov_b32 v{CS+7}, v{CS+4}
          v_and_b32 v8, 31, v1
          v_lshrrev_b32 v9, 5, v1
          v_bfe_u32 v10, v1, 1, 3
          v_xor_b32 v9, v9, v10
          v_lshlrev_b32 v8, 7, v8
          v_lshl_add_u32 v8, v9, 4, v8
          s_lshl_b32 s3, s{sW}, 12
          s_add_u32 s3, s3, {XB}
          v_add_u32 v{CS+8}, s3, v8
          v_xor_b32 v{CS+9}, 32, v{CS+8}
          v_xor_b32 v{CS+10}, 64, v{CS+8}
          v_xor_b32 v{CS+11}, 96, v{CS+8}
          s_waitcnt lgkmcnt(0)""")
    srd(a, WD, 24, WS_END)
    ONE = TMP
    M0_, M1_, R, DEN = TMP+4, TMP+5, TMP+6, TMP+7
    a(f"""v_and_b32 v10, 31, v1
          v_lshlrev_b32 v10, 2, v10
          v_add_u32 v10, {XCH}, v10
""")
    stamp(a, 12)
    pre = {}
    for c in range(7):
        pre[c] = ["s_barrier"] + [f"ds_read_b128 {v(XR + 16*(c&1) + 4*i, 4)}, v{CS+8+i} offset:{(c % 3)*16384}" for i in range(4)]
        if opt("sqv", 0) == 0:
            pre[("y", c)] = [f"v_dot2_f32_bf16 v{12+(i&1)}, v{XR+16*(c&1)+i}, v{XR+16*(c&1)+i}, {'0' if c == 0 and i < 2 else 'v%d' % (12+(i&1))}" for i in range(16)]
    sq = []
    if opt("sqv", 0):
        a("v_mov_b32 v12, 0\nv_mov_b32 v13, 0")
        for s_ in range(28):
            for i in range(4):
                r_ = XR + 16*((s_ >> 2) & 1) + 4*(s_ & 3) + i
                pre[("m", 5*s_ + 1 + i)] = [f"v_lshlrev_b32 v14, 16, v{r_}", f"v_and_b32 v15, 0xffff0000, v{r_}", "v_fmac_f32 v12, v14, v14", "v_fmac_f32 v13, v15, v15"]
    if common.STAMPS:
        for c, st in ((0, 2), (1, 13), (3, 3)):
            g = A(); stamp(g, st); pre[c] = pre[c][:1] + g.l + pre[c][1:]
    pre[4] += [f"v_add_u32 v{2+t}, 0x10000, v{2+t}" for t in range(5)]
    pre["G"] = opt("p1g", 1); pre["lastorder"] = (3, 4, 0, 1, 2)
    kloop(a, ACC, WF, lambda s_: XR + 16*((s_ >> 2) & 1) + 4*(s_ & 3), 2, (0, 4, 1, 2, 3), lambda c: (c & 3) * 16384, pre, False, [], R=8, D=opt("p1d", 5), cs=(CS, CS+4))
    stamp(a, 4)
    for i in range(2):
        a(f"""v_cvt_pk_bf16_f32 v{WF+i}, v{CS+i}, v{CS+i}
              v_and_b32 v{WF+i}, 0xffff0000, v{WF+i}
              v_sub_f32 v{WF+i}, v{CS+i}, v{WF+i}
              v_cvt_pk_bf16_f32 v{WF+i}, v{CS+i}, v{WF+i}""")
    a(f"""s_lshl_b32 s26, s{sW}, 7
          v_add_u32 v11, s26, v10
          s_mov_b64 exec, 0xffff
          ds_write2_b32 v11, v{WF}, v{WF+1} offset1:16
          s_mov_b64 exec, -1
          v_mov_b32 v14, v{ACC+48+12}
          v_mov_b32 v15, v{ACC+48+12}
          v_add_f32 v13, v12, v13
          v_permlane32_swap_b32 v15, v14
          v_mov_b32 v12, v13
          v_permlane32_swap_b32 v13, v12
          v_add_f32 v13, v13, v12
          v_mul_f32 v12, {fb(1/448)}, v14
          v_mul_f32 v13, {fb(1/448)}, v13
          v_fma_f32 v13, -v12, v12, v13
          v_max_f32 v13, 0, v13""")
    bf16r(a, 15, "v13")
    a(f"""v_add_f32 v9, {fb(EPS)}, v13
          v_add_f32 v15, {fb(EPS)}, v15
          v_mov_b32 v14, {fb(EPS)}
          v_fma_f32 v9, v9, v14, v13""")
    bf16r(a, 15, "v15")
    a(f"""v_sqrt_f32 v9, v9
          v_sqrt_f32 v15, v15
          s_waitcnt lgkmcnt(0)
          s_barrier                              ; barrier 7""")
    stamp(a, 14)
    for t in range(4): a(f"ds_read_b32 v{WF+4*t}, v10 offset:{128*t}")
    mu_frag(a, 12, f"s{sLO}", M0_, M1_)
    a(f"v_mov_b32 v14, s{sLO}")
    bf16r(a, 15, "v15")
    bf16r(a, 10, "v12")
    a(f"""v_bfi_b32 v{DEN}, v14, v9, v15
          v_rcp_f32 v{R}, v{DEN}
          s_waitcnt lgkmcnt(0)""")
    mean_fix(a, ACC, WF, lambda t: WF + 4*t, M0_, M1_)
    a(f"""
          s_lshl_b32 s3, s{sT}, 8
          s_add_u32 s3, s3, {ST1}
          s_cmp_eq_u32 s{sCB}, 0
          s_cselect_b32 s3, s3, {OOB}
          v_lshlrev_b32 v8, 3, v1
          v_and_b32 v8, 0xff, v8
          v_mov_b32 v11, v{R}
          buffer_store_dwordx2 v[10:11], v8, {s(WD,4)}, s3 offen{SC}""")
    a(f"""v_lshrrev_b32 v8, 5, v1
          v_add_u32 v8, -1, v8
          s_cmp_eq_u32 s{sTY}, 3
          s_cbranch_scc1 P1_h
          s_cmp_eq_u32 s{sTY}, 0
          s_cselect_b32 s3, {fb(QSCALE)}, 1.0
          v_mul_f32 v10, s3, v{R}
          v_mul_u32_u24 v12, 12, v1
          s_lshl_b32 s3, s{sSUB}, 8
          s_add_u32 s3, s3, s{sT}
          s_movk_i32 s27, 3584
          s_cmp_eq_u32 s{sTY}, 0
          s_cselect_b32 s27, 1792, s27
          s_mul_i32 s3, s3, s27
          s_lshl_b32 s26, s27, 6
          s_cselect_b32 s27, {QF}, {KVF}
          s_add_u32 s3, s3, s27
          s_cmp_eq_u32 s{sTY}, 2
          s_cbranch_scc1 P1_v""".replace("s_lshl_b32 s26, s27, 6", f"s_lshl_b32 s26, s27, 6\ns_mov_b32 s27, {KVF}\ns_cmp_eq_u32 s{sTY}, 0").replace(f"s_cselect_b32 s27, {QF}, {KVF}", f"s_cselect_b32 s27, {QF}, s27"))
    def pack(t):
        for i in range(8): a(f"v_pk_mul_f32 {v(ACC+16*t+2*i,2)}, {v(ACC+16*t+2*i,2)}, v[10:11] op_sel_hi:[1,0]")
        for i in range(8): a(f"v_cvt_pk_bf16_f32 v{XR+8*t+i}, v{ACC+16*t+2*i}, v{ACC+16*t+2*i+1}")
    def put(t, isv=False):
        if isv:
            for f_ in range(2): a(f"buffer_store_dwordx4 {v(XR+8*t+4*f_,4)}, v13, {s(WD,4)}, s3 offen offset:{1792 + f_*896}{SC}")
        else:
            a(f"buffer_store_dwordx4 {v(XR+8*t,4)}, v0, {s(WD,4)}, s3 offen{SC}")
            a(f"v_permlane32_swap_b32 v{XR+8*t+6}, v{XR+8*t+7}")
            a(f"buffer_store_dwordx3 {v(XR+8*t+4,3)}, v12, {s(WD,4)}, s3 offen offset:1024{SC}")
        if t < 3: a("s_add_u32 s3, s3, s26")
    for t in range(4): pack(t); put(t)
    a("s_branch P1_done")
    a.label("P1_v")
    a(f"""s_mul_i32 s27, s{sW}, 9216
          s_add_u32 s27, s27, 0x10000
          v_and_b32 v9, 31, v1
          v_mul_u32_u24 v9, 72, v9
          v_lshrrev_b32 v14, 5, v1
          v_lshl_add_u32 v9, v14, 3, v9
          v_add_u32 v9, s27, v9
          v_bfe_u32 v15, v1, 2, 2
          v_lshl_add_u32 v14, v14, 2, v15
          v_mul_u32_u24 v14, 72, v14
          v_bfe_u32 v15, v1, 4, 1
          v_lshl_add_u32 v14, v15, 5, v14
          v_and_b32 v15, 3, v1
          v_lshl_add_u32 v14, v15, 3, v14
          v_add_u32 v14, s27, v14
          v_lshrrev_b32 v15, 5, v1
          v_lshlrev_b32 v15, 6, v15
          v_sub_u32 v13, v0, v15
          v_and_b32 v15, 31, v1
          v_cmp_gt_u32 vcc, 28, v15
          v_mov_b32 v15, {OOB}
          v_cndmask_b32 v13, v15, v13, vcc""")
    for t in range(5):
        if t < 4:
            pack(t)
            for j in range(4): a(f"ds_write_b64 v9, {v(XR+8*t+2*j,2)} offset:{t*2304 + 16*j}")
        if t:
            a(f"s_waitcnt lgkmcnt({4 if t < 4 else 0})")
            put(t - 1, True)
        if t < 4:
            a("s_waitcnt lgkmcnt(0)")
            for f_ in range(2):
                for e in range(2): a(f"ds_read_b64_tr_b16 {v(XR+8*t+4*f_+2*e,2)}, v14 offset:{t*2304 + (16*f_+8*e)*72}")
    a("s_branch P1_done")
    a.label("P1_h")
    gelu_consts(a, R, DEN)
    a(f"""s_mul_i32 s3, s{sT}, 28
          s_mul_i32 s27, s{sSUB}, 7
          s_add_u32 s3, s3, s27
          s_lshl_b32 s3, s3, 10
          s_add_u32 s3, s3, {HF}
          s_add_u32 s27, s3, 4096""")
    for f in range(7):
        gelu_pairs(a, [ACC + 8*f + 2*i for i in range(4)], 10, 12, 14, WF)
        for i in range(4): a(f"v_cvt_pk_bf16_f32 v{XR+4*f+i}, v{ACC+8*f+2*i}, v{ACC+8*f+2*i+1}")
        a(f"buffer_store_dwordx4 {v(XR+4*f,4)}, v0, {s(WD,4)}, s{3 if f < 4 else 27} offen offset:{(f&3)*1024}{SC}")
    a.label("P1_done")
    garrive(a, C_X, 1)
    stamp(a, 15)
    a(f"""s_waitcnt vmcnt(0)
          s_lshl_b32 s3, s{sCB}, 4
          s_add_u32 s3, s3, s{sRB}
          s_lshl_b32 s3, s3, 7
          s_add_u32 s3, s3, {FP}""")
    signal(a, 3, C_S1, last=7)
    stamp(a, 5)

O_, Q_, S_, E_, P_, KV = 16, 80, 112, 144, 152, 160
sH, sQB, sKV, sN, sMA, sKB = 44, 45, 50, 51, 47, 52
AR_BASE = 112 * 1024

def unit(a, n, q, extra, qk=True):
    Sc, Sn = S_ + 16*(q & 1), S_ + 16*((q+1) & 1)
    nn, nq = (n, q+1) if q < 3 else ((n+1) & 3, 0)
    pn, pq = (n, q-1) if q > 0 else ((n-1) & 3, 3)
    K, Vc, Vp = KV + 16*nn, KV + 16*n + 8, KV + 16*pn + 8
    e = lambda i: a(f"v_exp_f32 v{E_+(i&7)}, v{Sc+i}")
    c = lambda k: a(f"v_cvt_pk_bf16_f32 v{P_+k}, v{E_+((2*k)&7)}, v{E_+((2*k+1)&7)}")
    for x in extra.get(0, []): a(x)
    if qk: a(f"{MF} {v(Sn,16)}, {v(K,4)}, {v(Q_+8*nq,4)}, 0")
    e(0); c(6); e(1); c(7); e(2); e(3)
    a(f"{MF} {v(O_+16*pq,16)}, {v(Vp+4,4)}, {v(P_+4,4)}, {v(O_+16*pq,16)}")
    for x in extra.get(1, []): a(x)
    e(4); c(0); e(5); c(1); e(6); e(7)
    if qk: a(f"{MF} {v(Sn,16)}, {v(K+4,4)}, {v(Q_+8*nq+4,4)}, {v(Sn,16)}")
    for x in extra.get(2, []): a(x)
    e(8); c(2); e(9); c(3); e(10); e(11)
    a(f"{MF} {v(O_+16*q,16)}, {v(Vc,4)}, {v(P_,4)}, {v(O_+16*q,16)}")
    e(12); c(4); e(13); c(5); e(14); e(15)

sKE, sVM, VV = 53, 54, 224
def kvload(slot, f):
    r = KV + 16*slot + 4*f
    if f == 0: return f"buffer_load_dwordx4 {v(r,4)}, v0, {s(WD,4)}, s{sKV} offen{SC}"
    if f == 1: return f"buffer_load_dwordx3 {v(r,3)}, v4, {s(WD,4)}, s{sKV} offen offset:1024{SC}"
    L = f"buffer_load_dwordx4 {v(r,4)}, v{VV}, {s(WD,4)}, s{sKV} offen offset:{1792 + 896*(f - 2)}{SC}"
    return f"s_mov_b64 exec, {s(sVM,2)}\n" + L if f == 2 else L + "\ns_mov_b64 exec, -1"
def kvnext():
    return [f"s_add_u32 s{sKV}, s{sKV}, 3584", f"s_cmp_eq_u32 s{sKV}, s{sKE}", f"s_cselect_b32 s{sKV}, s{sKB}, s{sKV}"]

EARLY = opt("early", 1)
def att(a):
    if p1stamps():
        global stamp
        stamp = lambda *x: None
    a(f"""s_and_b32 s26, s2, 7
          s_lshr_b32 s27, s2, 3
          s_lshl_b32 s{sH}, s26, 1
          s_and_b32 s3, s27, 1
          s_add_u32 s{sH}, s{sH}, s3
          s_lshr_b32 s{sQB}, s27, 1
          s_mul_i32 s{sMA}, s{sW}, 11136
          s_add_u32 s{sMA}, s{sMA}, {AR_BASE}
          s_lshl_b32 s{sKB}, s{sH}, 2
          s_add_u32 s{sKB}, s{sKB}, s{sW}
          s_mul_i32 s{sKB}, s{sKB}, {16*3584}
          s_add_u32 s{sKB}, s{sKB}, {KVF}
          s_add_u32 s{sKE}, s{sKB}, {16*3584}
          s_and_b32 s27, s{sQB}, {3 if EARLY else 15}
          s_mul_i32 s3, s27, {4*3584 if EARLY else 3584}
          s_add_u32 s{sKV}, s{sKB}, s3
          s_mov_b32 s{sVM}, 0x0fffffff
          s_mov_b32 s{sVM+1}, 0x0fffffff
          v_mul_u32_u24 v4, 12, v1
          v_lshrrev_b32 v11, 5, v1
          v_lshlrev_b32 v12, 6, v11
          v_sub_u32 v{VV}, v0, v12
          v_lshlrev_b32 v11, 4, v11
          v_mov_b32 v12, 0x3f803f80
          v_lshrrev_b32 v13, v11, v12
          v_and_b32 v11, 31, v1
          v_cmp_eq_u32 vcc, 28, v11
          v_cndmask_b32 v12, 0, v12, vcc
          s_lshr_b32 s3, s{sH}, 2
          s_lshl_b32 s3, s3, 4
          v_and_b32 v10, 3, v1
          s_lshl_b32 s26, s{sW}, 2
          s_add_u32 s26, s26, s3
          s_add_u32 s26, s26, 64
          v_add_u32 v10, s26, v10
          v_bfe_u32 v11, v1, 2, 1
          v_lshl_add_u32 v10, v11, 6, v10
          s_add_u32 s3, s3, s{sQB}
          v_writelane_b32 v10, s3, 8             ; lane 8: Q
          v_lshlrev_b32 v10, 7, v10
          v_add_u32 v10, {FP}, v10""")
    for i in range(64): a(f"v_mov_b32 v{O_+i}, 0")
    for i in range(8): a(f"v_mov_b32 v{E_+i}, 0\nv_mov_b32 v{P_+i}, 0")
    for n in range(4):
        a(f"v_mov_b32 v{KV+16*n+7}, v13\nv_mov_b32 v{Q_+8*n+7}, 0")
        for i in range(8): a(f"v_mov_b32 v{KV+16*n+8+i}, v12")
    if EARLY:
        a(f"""v_and_b32 v11, 7, v1
              v_lshlrev_b32 v11, 2, v11
              ds_bpermute_b32 v2, v11, v10
              s_lshl_b32 s27, s27, 2
              v_mov_b32 v11, s27
              v_writelane_b32 v11, 32, 2
              s_add_u32 s27, s27, 16
              v_writelane_b32 v11, s27, 1
              ds_bpermute_b32 v10, v11, v10
              s_waitcnt lgkmcnt(0)""")
        poll(a, 10, 3)
    else: poll(a, 10, 9)
    if opt("ayield", 1): gwait(a, C_X, 4, field=0)
    stamp(a, 8)
    for j in range(4):
        a(f"""s_add_u32 s3, s{sW}, {j + 1}
              s_and_b32 s3, s3, 3
              s_lshl_b32 s26, s{sH}, 4
              s_add_u32 s26, s26, s{sQB}
              s_lshl_b32 s26, s26, 2
              s_add_u32 s3, s3, s26
              s_mul_i32 s3, s3, 1792
              s_add_u32 s3, s3, {QF}
              buffer_load_dwordx4 {v(Q_+8*j,4)}, v0, {s(WD,4)}, s3 offen{SC}
              buffer_load_dwordx3 {v(Q_+8*j+4,3)}, v4, {s(WD,4)}, s3 offen offset:1024{SC}""")
        if j == 0:
            for f in range(4): a(kvload(0, f))
            for x in kvnext(): a(x)
    for n in range(1, 3):
        for f in range(4): a(kvload(n, f))
        for x in kvnext(): a(x)
    a(f"""v_add_u32 v10, s{sMA}, v0
          v_lshlrev_b32 v14, 2, v1
          v_add_u32 v14, {3584 - 128}, v14
          v_add_u32 v15, s{sMA}, v14
          v_mov_b32 v8, {CNT + C_B}""")
    for j in range(3):
        a(f"""s_sub_u32 s26, s{sW}, {j + 1}
              s_and_b32 s26, s26, 3
              s_mul_i32 s26, s26, 11136
              s_add_u32 s26, s26, {AR_BASE}
              v_add_u32 v{11+j}, s26, v0
              v_add_u32 v{5+j}, s26, v14""")
    a(f"s_mov_b32 s{sN}, 4\ns_waitcnt vmcnt(14)")
    a(f"{MF} {v(S_,16)}, {v(KV,4)}, {v(Q_,4)}, 0")
    a(f"{MF} {v(S_,16)}, {v(KV+4,4)}, {v(Q_+4,4)}, {v(S_,16)}")
    a(f"s_setprio {opt('pa2', 0)}\ns_waitcnt vmcnt(8)")
    stamp(a, 9)
    a(".p2align 3")
    a.label("AT_loop")
    for n in range(4):
        ld = (n + 3) & 3
        kvl = kvload if not opt("nokv", 0) else (lambda a_, b_: "s_nop 0")
        if opt("kvprio", 1):
            e0 = {1: ["s_setprio 3", kvl(ld, 0), kvl(ld, 1)], 2: [kvl(ld, 2), kvl(ld, 3), f"s_setprio {opt('pa2', 0)}"]}
            if EARLY and n == 0: e0[1].insert(1, f"buffer_load_dword v3, v2, {s(WD,4)}, 0 offen sc1")
            if EARLY and n == 1:
                e0[0] = ["s_waitcnt vmcnt(4)", "v_cmp_eq_u32 vcc, 0, v3"]
                e0[1] = ["s_cbranch_vccnz AT_late", "AT_ok:"] + e0[1]
            unit(a, n, 0, e0)
            e1 = {1: kvnext()}
            if n == 0: e1[2] = [f"s_cmp_eq_u32 s{sN}, 1", f"s_cselect_b32 s{sKV}, {OOB}, s{sKV}"]
            if n == 3: e1[0] = ["ds_read_b32 v9, v8"]; e1[2] = [f"s_cmp_eq_u32 s{sN}, 1"]
            unit(a, n, 1, e1)
            if n == 3: a("s_cbranch_scc1 AT_tail")
            unit(a, n, 2, {})
            ex = {0: ["s_waitcnt vmcnt(8)"], 2: []}
        else:
            unit(a, n, 0, {2: [kvl(ld, 0)]})
            unit(a, n, 1, {1: [kvl(ld, 1)]})
            unit(a, n, 2, {1: [kvl(ld, 2)]})
            ex = {0: ["s_waitcnt vmcnt(7)"], 1: [kvl(ld, 3)], 2: kvnext()}
        if n == 3: ex[2] += [f"s_sub_u32 s{sN}, s{sN}, 1"]
        unit(a, n, 3, ex)
    a("s_branch AT_loop")
    a.label("AT_tail")
    BL = 3712
    a(f"""s_setprio {opt('pa1', 1)}
          s_waitcnt lgkmcnt(0)
          v_readfirstlane_b32 s3, v9
          s_cmp_ge_u32 s3, 8
          s_cbranch_scc1 AT_free""")
    gwait(a, C_B, 8)
    a.label("AT_free")
    wr = lambda j, i: f"ds_write_b128 v10, {v(O_+16*j+4*i,4)} offset:{j*BL + i*1024}"
    unit(a, 3, 2, {0: [wr(0, 0)], 1: [wr(0, 1)], 2: [wr(0, 2)]})
    unit(a, 3, 3, {0: [wr(1, 0)], 1: [wr(1, 1)], 2: [wr(1, 2)]}, qk=False)
    a(f"v_cvt_pk_bf16_f32 v{P_+6}, v{E_+4}, v{E_+5}\nv_cvt_pk_bf16_f32 v{P_+7}, v{E_+6}, v{E_+7}")
    for i in range(3): a(wr(2, i))
    a(f"{MF} {v(O_+48,16)}, {v(KV+48+12,4)}, {v(P_+4,4)}, {v(O_+48,16)}")
    stamp(a, 10)
    a("s_mov_b64 exec, 0xffffffff")
    for j in range(3): a(wr(j, 3))
    a("s_not_b64 exec, exec")
    for j in range(3): a(f"ds_write_b32 v15, v{O_+16*j+12} offset:{j*BL}")
    a("s_mov_b64 exec, -1")
    gbar(a, C_A, 4)
    a("s_mov_b64 exec, 0xffffffff")
    for j in range(3): a(f"ds_read_b128 {v(O_+16*j+12,4)}, v{11+j} offset:{j*BL + 3072}")
    a("s_not_b64 exec, exec")
    for j in range(3): a(f"ds_read_b32 v{O_+16*j+12}, v{5+j} offset:{j*BL}")
    a("s_mov_b64 exec, -1")
    for j in range(3):
        for i in range(3): a(f"ds_read_b128 {v(O_+16*j+4*i,4)}, v{11+j} offset:{j*BL + i*1024}")
    OT_, QT_ = O_ + 48, Q_ + 24
    for j in range(3):
        a(f"s_waitcnt lgkmcnt({3*(2-j)})")
        for i in range(16): a(f"v_add_f32 v{OT_+i}, v{OT_+i}, v{O_+16*j+i}")
    a(f"""v_mov_b32 v10, v{OT_+12}
          v_mov_b32 v11, v{OT_+12}
          v_permlane32_swap_b32 v11, v10
          v_mov_b32 v12, v10
          v_mov_b32 v13, 0""")
    for i in range(16): a(f"v_fma_f32 v{12+(i&1)}, v{OT_+i}, 0, v{12+(i&1)}")
    a(f"""v_add_f32 v12, v12, v13                ; row sum, or NaN if any accumulator is not finite
          v_cmp_le_f32 vcc, {fb(2.0**-80)}, v12
          v_cmp_ge_f32 s[26:27], s59, v12
          s_and_b64 vcc, vcc, s[26:27]
          s_cmp_eq_u64 vcc, -1
          s_cbranch_scc0 AT_slow""".replace("s59", "s59"))
    a.label("AT_norm")
    a(f"""v_rcp_f32 v10, v10
          v_lshrrev_b32 v8, 5, v1
          v_add_u32 v8, -1, v8""")
    for i in range(16): a(f"v_mul_f32 v{OT_+i}, v{OT_+i}, v10")
    for i in range(8): a(f"v_cvt_pk_bf16_f32 v{P_+i}, v{OT_+2*i}, v{OT_+2*i+1}")
    a(f"""v_and_b32 v{P_+6}, v8, v{P_+6}
          v_and_b32 v{P_+7}, v8, v{P_+7}
          s_lshl_b32 s26, s{sQB}, 2
          s_add_u32 s26, s26, s{sW}
          s_lshl_b32 s26, s26, 4
          s_add_u32 s26, s26, s{sH}
          s_lshl_b32 s3, s26, 11
          s_add_u32 s3, s3, {OF}
          buffer_store_dwordx4 {v(P_,4)}, v0, {s(WD,4)}, s3 offen{SC}
          buffer_store_dwordx4 {v(P_+4,4)}, v0, {s(WD,4)}, s3 offen offset:1024{SC}
          s_lshl_b32 s3, s{sQB}, 4
          s_add_u32 s3, s3, s{sH}
          s_lshl_b32 s3, s3, 7
          s_add_u32 s3, s3, {FA}
          s_waitcnt vmcnt(0)""")
    signal(a, 3, 20)
    stamp(a, 11)
    stamp_out2(a)
    a("s_endpgm")
    if EARLY:
        a.label("AT_late")
        poll(a, 2, 8)
        a("s_branch AT_ok")
    a.label("AT_slow")
    a(f"""s_waitcnt vmcnt(0)
          s_mul_i32 s{sKB}, s{sH}, {64*3584}
          s_add_u32 s{sKB}, s{sKB}, {KVF}
          s_mov_b32 s{sKV}, s{sKB}
          s_mov_b32 s{sN}, 64
          v_mov_b32 v12, 0xff800000""")
    a.label("AT_s1")
    a(kvload(0, 0)); a(kvload(0, 1))
    a(f"""s_add_u32 s{sKV}, s{sKV}, 3584
          s_waitcnt vmcnt(0)
          {MF} {v(S_,16)}, {v(KV,4)}, {v(QT_,4)}, 0
          {MF} {v(S_,16)}, {v(KV+4,4)}, {v(QT_+4,4)}, {v(S_,16)}""")
    for i in range(8): a(f"v_max3_f32 v12, v12, v{S_+2*i}, v{S_+2*i+1}")
    a(f"""s_sub_u32 s{sN}, s{sN}, 1
          s_cmp_lg_u32 s{sN}, 0
          s_cbranch_scc1 AT_s1
          v_mov_b32 v13, v12
          v_permlane32_swap_b32 v12, v13
          v_max_f32 v12, v12, v13
          v_cvt_pk_bf16_f32 v13, -v12, -v12
          v_and_b32 v13, 0xffff0000, v13
          v_sub_f32 v12, -v12, v13
          v_cvt_pk_bf16_f32 v14, v12, v12
          v_and_b32 v14, 0xffff0000, v14
          v_sub_f32 v12, v12, v14
          v_cvt_pk_bf16_f32 v13, v13, v14
          v_cvt_pk_bf16_f32 v14, v12, 0
          v_lshrrev_b32 v8, 5, v1
          v_add_u32 v8, -1, v8
          v_bfi_b32 v{QT_+7}, v8, v13, v14
          s_mov_b32 s{sKV}, s{sKB}
          s_mov_b32 s{sN}, 64""")
    for i in range(16): a(f"v_mov_b32 v{OT_+i}, 0")
    a.label("AT_s2")
    for f in range(4): a(kvload(0, f))
    a(f"""s_add_u32 s{sKV}, s{sKV}, 3584
          s_waitcnt vmcnt(0)
          {MF} {v(S_,16)}, {v(KV,4)}, {v(QT_,4)}, 0
          {MF} {v(S_,16)}, {v(KV+4,4)}, {v(QT_+4,4)}, {v(S_,16)}""")
    for i in range(16): a(f"v_exp_f32 v{S_+i}, v{S_+i}")
    for i in range(8): a(f"v_cvt_pk_bf16_f32 v{P_+i}, v{S_+2*i}, v{S_+2*i+1}")
    a(f"""{MF} {v(OT_,16)}, {v(KV+8,4)}, {v(P_,4)}, {v(OT_,16)}
          {MF} {v(OT_,16)}, {v(KV+12,4)}, {v(P_+4,4)}, {v(OT_,16)}
          s_sub_u32 s{sN}, s{sN}, 1
          s_cmp_lg_u32 s{sN}, 0
          s_cbranch_scc1 AT_s2
          v_mov_b32 v10, v{OT_+12}
          v_mov_b32 v11, v{OT_+12}
          v_permlane32_swap_b32 v11, v10
          s_branch AT_norm""")

B_G3_DONE = 24
G2_BASE = 0
H1 = 56 * 1024
W3B = 60 * 1024
XCH3 = CNT + 1024
RES = 224

def p1b(a):
    bst = (lambda i: common.stamp(a, i)) if p1stamps() else (lambda i: None)
    sRB, sCB, sT = 44, 45, 48
    sROW, sWO, sK, sCOL = 49, 50, 51, 52
    WB = 0x1C000
    XT = 232
    def codepf():
        nseg = opt("nseg", 5)
        a(f"""s_lshr_b32 s57, s2, 3
              s_cmp_ge_u32 s57, {nseg}
              s_cbranch_scc1 PB_nopf
              s_cmp_lg_u32 s{sW}, 0
              s_cbranch_scc1 PB_nopf
              s_getpc_b64 s[62:63]""")
        a.label("PB_pc")
        a(f"""s_lshl_b32 s57, s57, 13
              s_sub_u32 s62, s62, PB_pc-K_start
              s_subb_u32 s63, s63, 0
              s_add_u32 s62, s62, s57
              s_addc_u32 s63, s63, 0
              v_lshlrev_b32 v8, 7, v1
              v_add_u32 v9, s57, v8
              v_cmp_gt_u32 vcc, K_last-K_start, v9
              v_mov_b32 v11, s63
              v_add_co_u32 v10, s[98:99], s62, v8
              v_addc_co_u32 v11, s[98:99], 0, v11, s[98:99]
              s_and_saveexec_b64 s[98:99], vcc
              s_cbranch_execz PB_pfx
              global_load_dword v16, v[10:11], off""")
        a.label("PB_pfx")
        a("s_mov_b64 exec, -1")
        a.label("PB_nopf")
    if opt("codepf", 1) == 1: codepf()
    a(f"""s_and_b32 s26, s2, 1
          s_lshl_b32 s26, s26, 3
          s_lshr_b32 s3, s2, 5
          s_add_u32 s26, s26, s3
          s_bfe_u32 s{sK}, s2, 0x20003
          s_lshl_b32 s54, s{sK}, 1
          s_add_u32 s54, s54, s3
          s_mul_i32 s3, s54, 37
          s_lshr_b32 s3, s3, 8
          s_mul_i32 s3, s3, 7
          s_sub_u32 s54, s54, s3
          s_mul_i32 s54, s54, {opt("rotw", 1)}
          s_bfe_u32 s3, s2, 0x20001
          s_lshl_b32 s3, s3, 2
          s_add_u32 s3, s3, s{sK}
          s_lshl_b32 s3, s3, 2
          s_add_u32 s3, s3, s{sW}
          s_lshl_b32 s56, s3, 5
          s_and_b32 s27, s26, 3
          s_lshr_b32 s3, s27, 1
          s_add_u32 s3, s3, 1
          s_sub_u32 s57, 0, s3
          s_bitcmp1_b32 s27, 0
          s_cselect_b32 s3, s3, s57
          s_movk_i32 s{sROW}, 2688
          s_cmp_ge_u32 s26, 12
          s_cselect_b32 s3, s3, 0
          s_cselect_b32 s{sROW}, 896, s{sROW}
          s_cselect_b32 s27, s27, s26
          s_add_u32 s56, s56, s3
          s_mul_i32 s{sCOL}, s27, 224
          v_lshrrev_b32 v8, 3, v1
          v_add_u32 v8, s56, v8
          s_movk_i32 s3, 896
          v_mul_i32_i24 v8, s3, v8
          v_bfe_u32 v9, v1, 4, 2
          v_and_b32 v10, 7, v1
          v_xor_b32 v9, v9, v10
          v_lshl_add_u32 v2, v9, 4, v8
          v_xor_b32 v9, 4, v9
          v_lshl_add_u32 v3, v9, 4, v8
          v_add_u32 v3, {8*896}, v3
          v_add_u32 v4, {16*896}, v2
          v_add_u32 v5, {16*896}, v3
          v_lshrrev_b32 v8, 4, v1
          v_lshlrev_b32 v9, 2, v8
          v_sub_u32 v9, v1, v9
          v_and_b32 v9, 15, v9
          v_mul_u32_u24 v8, s{sROW}, v8
          v_lshl_add_u32 v7, v9, 4, v8
          v_cmp_gt_u32 s[96:97], 14, v9
          s_lshl_b32 s{sK}, s54, 6
          s_lshl_b32 s54, s54, 7
          s_lshl_b32 s3, s{sW}, 4
          s_mul_i32 s3, s3, s{sROW}
          s_add_u32 s{sCOL}, s{sCOL}, s3
          s_lshl_b32 s53, s{sROW}, 2
          s_lshl_b32 s55, s{sW}, 12
          s_waitcnt lgkmcnt(0)
          s_cmp_ge_u32 s26, 12
          s_cselect_b32 s{WA}, s12, s6
          s_cselect_b32 s{WA+1}, s13, s7
          s_mul_i32 s{WA+2}, s{sROW}, 448
          s_mov_b32 s{WA+3}, 0x20000""")
    srd(a, XS, 4, 2048 * 896)
    q = []
    gap = []
    def ride(n):
        for x in gap[:n]: a(x)
        del gap[:n]
    def xchunk(c):
        for g in range(4):
            a(f"s_add_u32 m0, s55, {XB + (c % 3)*16384 + g*1024}")
            a(f"s_nop 0\nbuffer_load_dwordx4 v{2+g}, {s(XS,4)}, s54 offen lds")
            ride(9)
        wrapinc(a, 54, 128, 896)
        q.extend([c] * 4)
    def wchunk(c):
        a(f"""s_mul_i32 s{sWO}, s{sK}, s{sROW}
              s_add_u32 s{sWO}, s{sWO}, s{sCOL}""")
        wrapinc(a, sK, 64, 448)
        a("s_mov_b64 exec, s[96:97]")
        for u in range(4):
            a(f"s_add_u32 m0, s55, {c*16384 + u*1024}")
            if u: a(f"s_add_u32 s{sWO}, s{sWO}, s53")
            a(f"buffer_load_dwordx4 v7, {s(WA,4)}, s{sWO} offen lds")
        a("s_mov_b64 exec, -1")
        q.extend([c] * 4)
    srd(a, WD, 24, WS_END)
    a(f"""s_lshl_b32 s61, s{sW}, 8
          s_or_b32 s61, s61, s2
          v_mov_b32 v22, 0
          s_cmp_ge_u32 s61, {NINIT}
          s_cbranch_scc1 PB_noinit
          v_lshlrev_b32 v13, 7, v1
          s_lshl_b32 s3, s2, 13
          s_add_u32 s3, s3, {FLG}
          buffer_store_dword v22, v13, {s(WD,4)}, s3 offen{SC}""")
    a.label("PB_noinit")
    bst(11)
    xchunk(0); wchunk(0)
    if opt("codepf", 1) == 2: codepf()
    if opt("tlb", 0):
        a(f"""v_lshlrev_b32 v23, {opt("tlb", 0)}, v1
              v_add_u32 v23, {0x1fff80 if opt("tlb", 0) == 21 else 0xff80}, v23
              s_lshl_b32 s3, s{sW}, {opt("tlb", 0) + 6}
              buffer_load_dword v24, v23, {s(WD,4)}, s3 offen sc1""")
        q.append(1)
    a(f"""v_lshrrev_b32 v8, 1, v1
          v_and_b32 v9, 15, v8
          v_lshrrev_b32 v10, 4, v8
          v_lshlrev_b32 v10, 14, v10
          v_lshl_add_u32 v10, v9, 8, v10
          v_and_b32 v9, 3, v8
          v_lshlrev_b32 v9, 2, v9
          v_and_b32 v8, 1, v1
          v_add3_u32 v9, v9, v8, 14
          v_and_b32 v9, 15, v9
          v_lshl_add_u32 v10, v9, 4, v10
          v_add_u32 v10, s55, v10
          v_add_u32 v11, 0x10000, v10
          v_mov_b32 v12, 0x3f803f80
          v_mov_b32 v13, v12
          v_mov_b32 v14, v12
          v_mov_b32 v15, v12
          ds_write_b128 v10, v[12:15]
          ds_write_b128 v10, v[12:15] offset:32768
          ds_write_b128 v11, v[12:15]
          s_mov_b64 exec, 0xffffffff
          ds_write_b128 v11, v[12:15] offset:32768
          s_mov_b64 exec, -1""")
    srd(a, WD, 24, WS_END)
    srd(a, WB_, 22, 256)
    xchunk(1)
    if opt("w1e", 1): wchunk(1)
    small_setup(a, sRB, sCB, sT)
    tail = A()
    tail(f"""s_lshr_b32 s{sFT}, s{sW}, 1
          s_xor_b32 s{sFT}, s{sFT}, s2
          s_and_b32 s{sFT}, s{sFT}, 1
          v_lshrrev_b32 v8, 2, v1
          v_mul_u32_u24 v8, 896, v8
          v_bfe_u32 v9, v1, 4, 2
          v_and_b32 v10, 3, v1
          v_xor_b32 v9, v9, v10
          v_lshl_add_u32 v8, v9, 4, v8
          s_mul_i32 s3, s{sT}, {32*896}
          s_lshl_b32 s26, s{sCB}, 7
          s_add_u32 s3, s3, s26
          s_lshl_b32 s26, s{sFT}, 6
          s_add_u32 s3, s3, s26
          s_add_u32 s26, s3, {16*896}
          buffer_load_dwordx4 {v(XT,4)}, v8, {s(XS,4)}, s3 offen
          buffer_load_dwordx4 {v(XT+4,4)}, v8, {s(XS,4)}, s26 offen""")
    t2, t3, t4 = A(), A(), A()
    srd(t2, WB_, 14, 448*896)
    t2(f"""v_lshlrev_b32 v8, 7, v1
           s_lshr_b32 s57, s2, 3
           s_lshl_b32 s57, s57, 2
           s_add_u32 s57, s57, s{sW}
           s_mul_i32 s3, s57, {25*128}
           s_bfm_b64 exec, 25, 0
           buffer_load_dword v16, v8, {s(WB_,4)}, s3 offen
           s_mov_b64 exec, -1""")
    srd(t3, WB_, 16, 448*3584)
    t3(f"""s_lshr_b32 s57, s2, 3
           s_lshl_b32 s57, s57, 2
           s_add_u32 s57, s57, s{sW}
           s_mul_i32 s3, s57, 49
           v_add_u32 v9, s3, v1
           v_mul_u32_u24 v10, 9363, v9
           v_lshrrev_b32 v10, 17, v10
           v_mul_u32_u24 v11, 14, v10
           v_sub_u32 v9, v9, v11
           v_mul_u32_u24 v10, 3584, v10
           v_lshl_add_u32 v9, v9, 7, v10
           s_and_b32 s3, s2, 1
           s_mul_i32 s3, s3, 1792
           s_bfm_b64 exec, 49, 0
           buffer_load_dword v17, v9, {s(WB_,4)}, s3 offen
           s_mov_b64 exec, -1""")
    srd(t4, WB_, 18, 448*3584)
    t4(f"""v_lshlrev_b32 v8, 7, v1
           s_lshl_b32 s57, s2, 2
           s_add_u32 s57, s57, s{sW}
           s_mul_i32 s3, s57, {13*128}
           s_bfm_b64 exec, 13, 0
           buffer_load_dword v18, v8, {s(WB_,4)}, s3 offen""")
    srd(t4, WB_, 8, 448*896)
    t4(f"""s_lshl_b32 s3, s57, 9
           s_mov_b64 exec, 15
           buffer_load_dword v19, v8, {s(WB_,4)}, s3 offen
           s_mov_b64 exec, -1""")
    w2, w2b = A(), A()
    w2(f"s_lshl_b32 s47, s{sW}, 11")
    small_addrs(w2, "s47")
    srd(w2, WA, 14, 448 * 896)
    w2(f"""s_mul_i32 s3, s{sW}, {112*896}
           s_lshl_b32 s26, s{sCB}, 7
           s_add_u32 s3, s3, s26
           v_add_u32 v4, s3, v7
           v_add_u32 v5, {8*896}, v4
           s_mul_i32 s50, s{sCB}, {16*896*opt("rot", 1)}""")
    for j in range(7):
        g = w2 if j < 6 else w2b
        g(f"""s_add_u32 m0, s47, {j*8192}
              s_nop 0
              buffer_load_dwordx4 v4, {s(WA,4)}, s50 offen lds
              s_add_u32 m0, s47, {j*8192 + 1024}
              s_nop 0
              buffer_load_dwordx4 v5, {s(WA,4)}, s50 offen lds""")
        if j < 6: wrapinc(g, 50, 16*896, 112*896)
    c3a, c3b = A(), A()
    srd(c3a, WB_, 16, 448*3584)
    c3a(f"""s_mul_i32 s3, s2, 2341
            s_lshr_b32 s3, s3, 16
            s_mul_i32 s57, s3, 28
            s_sub_u32 s57, s2, s57                 ; line = id % 28
            s_lshl_b32 s3, s3, 2
            s_add_u32 s3, s3, s{sW}
            s_mul_i32 s63, s57, 28
            s_add_u32 s63, s63, s3
            s_lshl_b32 s63, s63, 8
            s_add_u32 s63, s63, {CS3P}
            s_cmp_lt_u32 s2, 196
            s_cselect_b32 s63, s63, {OOB}
            s_mul_i32 s3, s3, {16*3584}
            s_lshl_b32 s57, s57, 7
            s_add_u32 s3, s3, s57
            s_add_u32 s57, s3, {8*3584}
            v_lshrrev_b32 v8, 3, v1
            v_mul_u32_u24 v8, 3584, v8
            v_and_b32 v9, 7, v1
            v_lshl_add_u32 v8, v9, 4, v8
            buffer_load_dwordx4 v[32:35], v8, {s(WB_,4)}, s3 offen
            buffer_load_dwordx4 v[36:39], v8, {s(WB_,4)}, s57 offen""")
    unpack(c3b, 40, 32, 8)
    for i in range(8): c3b(f"v_add_f32 v{40+i}, v{40+i}, v{48+i}")
    for i in range(4): c3b(f"v_permlane32_swap_b32 v{40+i}, v{44+i}")
    for i in range(4): c3b(f"v_add_f32 v{40+i}, v{40+i}, v{44+i}")
    for i in range(2): c3b(f"v_permlane16_swap_b32 v{40+i}, v{42+i}")
    for i in range(2): c3b(f"v_add_f32 v{40+i}, v{40+i}, v{42+i}")
    c3b(f"""v_and_b32 v8, 7, v1
            v_lshrrev_b32 v9, 4, v1
            v_lshlrev_b32 v8, 5, v8
            v_lshl_add_u32 v8, v9, 3, v8
            v_add_f32_dpp v40, v40, v40 row_ror:8 row_mask:0xf bank_mask:0xf
            v_add_f32_dpp v41, v41, v41 row_ror:8 row_mask:0xf bank_mask:0xf
            buffer_store_dwordx2 v[40:41], v8, {s(WD,4)}, s63 offen{SC}""")
    extras = [(4, tail, 2), (opt("c3a", 4), c3a, 2), (opt("tw2", 2), t2, 1), (opt("w2c", 8), w2, 12), (opt("tw3", 4), t3, 1), (opt("tw4", 4), t4, 2), (max(opt("w2d", 6), opt("w2c", 8)), w2b, 2)]
    bst(2)
    for c in range(7):
        last = max(i for i, x in enumerate(q) if x == c)
        a(f"s_waitcnt vmcnt({len(q) - 1 - last}) lgkmcnt(0)")
        bst((3, 12, 13, 4, 5, 14, 8)[c])
        a("s_barrier")
        if c == 0:
            a(f"""s_cmp_ge_u32 s61, {NINIT}
                  s_cbranch_scc1 PB_noset
                  s_lshl_b32 s3, s2, 2
                  v_mov_b32 v9, 1
                  s_mov_b64 exec, 1
                  buffer_store_dword v9, v22, {s(WB_,4)}, s3 offen{SC}
                  s_mov_b64 exec, -1""")
            a.label("PB_noset")
        if c == 0 and not opt("w1e", 1): wchunk(1)
        if c + 2 < 7: xchunk(c + 2); wchunk(c + 2)
        if c == 3:
            srd(a, WB_, 22, 256)
            a(f"v_min_u32 v20, {NINIT - 1}, v1\nv_lshlrev_b32 v20, 2, v20\nbuffer_load_dword v21, v20, {s(WB_,4)}, 0 offen sc1"); q.append(5)
        if c == 5:
            a("v_cmp_eq_u32 vcc, 0, v21\ns_cbranch_vccz PB_clr")
            srd(a, WB_, 22, 256)
            poll(a, 20, NINIT, WB_)
            a.label("PB_clr")
        for when, code, nv in extras:
            if when == c:
                for x in code.l: a(x)
                q.extend(["c3" if code is c3a else 99] * nv)
        ride(999)
    a(f"""v_mov_b32 v8, {CNT}
          v_mov_b32 v12, 0
          v_mov_b32 v13, 0
          v_mov_b32 v14, 0
          v_mov_b32 v15, 0
          ds_write_b128 v8, v[12:15]
          ds_write_b128 v8, v[12:15] offset:16
          ds_write_b128 v8, v[12:15] offset:32
          s_waitcnt lgkmcnt(0)
          s_barrier                              ; barrier 7""")
    for when, code, nv in extras:
        if when == 67:
            for x in code.l: a(x)
            q.extend([99] * nv)
    a(f"""s_waitcnt vmcnt({len(q) - 1 - max(i for i, x in enumerate(q) if x == "c3")})""")
    for x in c3b.l: a(x)
    g2_setup(a)
    a(f"""s_and_b32 s3, s2, 1
          s_lshl_b32 s3, s3, 3
          s_lshr_b32 s26, s2, 5
          s_add_u32 s3, s3, s26
          s_lshl_b32 s3, s3, 4
          s_lshr_b32 s26, s{sRB}, 1
          s_add_u32 s3, s3, s26
          s_lshl_b32 s3, s3, 7
          s_add_u32 s3, s3, {FP}
          s_waitcnt vmcnt(0)""")
    signal(a, 3, C_S1, last=7)
    for when, code, nv in extras:
        if when == 7:
            for x in code.l: a(x)
    bst(9)
    gwait(a, C_X, 4, field=1)
    for when, code, nv in extras:
        if when == 8:
            for x in code.l: a(x)
    bst(10); bst(15)

def small_setup(a, sRB, sCB, sT):
    a(f"""s_bfe_u32 s26, s2, 0x20001
          s_lshl_b32 s26, s26, 2
          s_bfe_u32 s3, s2, 0x20003
          s_add_u32 s26, s26, s3
          s_lshl_b32 s{sRB}, s26, 1
          s_and_b32 s3, s2, 1
          s_add_u32 s{sRB}, s{sRB}, s3
          s_lshr_b32 s{sCB}, s2, 5
          s_and_b32 s3, s{sW}, 1
          s_lshl_b32 s{sT}, s{sRB}, 1
          s_add_u32 s{sT}, s{sT}, s3""")

def small_addrs(a, sM, natural=False):
    a(f"""v_lshrrev_b32 v8, 3, v1
          v_bfe_u32 v9, v1, 4, 1
          v_lshlrev_b32 v9, 2, v9
          v_and_b32 v10, 7, v1
          v_xor_b32 v9, v9, v10
          v_mul_u32_u24 v8, 896, v8
          v_lshl_add_u32 v7, v9, 4, v8
          v_lshrrev_b32 v8, 5, v1
          v_bfe_u32 v9, v1, 2, 2
          v_lshl_add_u32 v8, v8, 2, v9
          v_lshlrev_b32 v8, 7, v8
          v_bfe_u32 v10, v1, 4, 1
          v_bfe_u32 v11, v1, 1, 1
          v_lshl_add_u32 v10, v10, 1, v11
          v_bfe_u32 v11, v1, 3, 1
          v_lshl_add_u32 v10, v11, 2, v10
          v_lshl_add_u32 v8, v10, 4, v8
          v_and_b32 v11, 1, v1
          v_lshl_add_u32 v8, v11, 3, v8
          s_lshl_b32 s3, {"0" if natural else "s%d" % sFT}, 6
          v_xor_b32 v8, s3, v8
          v_add_u32 v2, {sM}, v8
          v_xor_b32 v8, 64, v8
          v_add_u32 v3, {sM}, v8""")

def wreads(a, WF, buf, off, va=2):
    for b in range(2):
        for e in range(2): a(f"ds_read_b64_tr_b16 {v(WF+8*buf+4*b+2*e,2)}, v{va+b} offset:{off + 8*e*128}")
def mfmas(a, ACC, WF, buf, act0, act1, first):
    for aa, ar in enumerate((act0, act1)):
        for b in range(2):
            j = 2*aa + b
            a(f"{MF} {v(ACC+16*j,16)}, {v(WF+8*buf+4*b,4)}, {v(ar,4)}, {'0' if first else v(ACC+16*j,16)}")

def g2_setup(a):
    EP = 176
    sRB, sCB, sT, sM, sK, sKA, sX = 44, 45, 48, 47, 50, 51, 53
    sRB3, sCB3, sT3, sK3, sL = 54, 55, 56, 57, 49
    ROT = opt("rot", 1)
    a(f"s_lshl_b32 s{sL}, s{sW}, 11")
    a(f"""s_add_u32 s3, s{sL}, {H1}
          v_add_u32 v10, s3, v0
          v_and_b32 v8, 31, v1
          v_lshlrev_b32 v8, 6, v8
          v_bfe_u32 v9, v1, 2, 2
          v_lshl_add_u32 v8, v9, 4, v8
          v_lshrrev_b32 v9, 5, v1
          v_lshl_add_u32 v8, v9, 3, v8
          v_add_u32 v12, s3, v8
          v_xor_b32 v13, 16, v12
          v_xor_b32 v14, 32, v12
          v_xor_b32 v15, 48, v12
          ds_write_b128 v10, v[232:235]
          ds_write_b128 v10, v[236:239] offset:1024
          s_waitcnt lgkmcnt(0)""")
    for j in range(4): a(f"ds_read_b64 {v(EP+2*j,2)}, v{12+j}")
    a(f"""s_and_b32 s26, s2, 7
          s_lshr_b32 s27, s2, 3
          s_lshr_b32 s{sRB3}, s26, 1
          s_lshl_b32 s{sRB3}, s{sRB3}, 2
          s_and_b32 s3, s27, 3
          s_add_u32 s{sRB3}, s{sRB3}, s3
          s_and_b32 s{sCB3}, s26, 1
          s_mul_i32 s{sCB3}, s{sCB3}, 7
          s_add_u32 s{sCB3}, s{sCB3}, s{sCB}
          s_lshl_b32 s{sT3}, s{sRB3}, 2
          s_add_u32 s{sT3}, s{sT3}, s{sW}
          v_lshrrev_b32 v8, 3, v1
          v_bfe_u32 v9, v1, 4, 1
          v_lshlrev_b32 v9, 2, v9
          v_and_b32 v6, 7, v1
          v_xor_b32 v9, v9, v6
          v_mul_u32_u24 v8, 3584, v8
          v_lshl_add_u32 v6, v9, 4, v8
          s_mul_i32 s3, s{sW}, {16*3584}
          s_lshl_b32 s26, s{sCB3}, 8
          s_add_u32 s3, s3, s26
          v_add_u32 v6, s3, v6                   ; W3 voffset
          s_mul_i32 s{sK3}, s{sCB}, {64*3584*ROT}""")
    srd(a, WB_, 16, 448 * 3584)
    a("s_waitcnt lgkmcnt(0)")
    a(f"""s_mul_i32 s3, s{sT}, 28
          s_mul_i32 s26, s{sW}, 7
          s_add_u32 s3, s3, s26
          s_lshl_b32 s3, s3, 10
          s_add_u32 s3, s3, {HF}
          v_add_u32 v186, s3, v0
          s_xor_b32 s3, s{sT}, 1
          s_mul_i32 s3, s3, 28
          s_add_u32 s3, s3, s26
          s_lshl_b32 s3, s3, 10
          s_add_u32 s3, s3, {HF}
          v_add_u32 v187, s3, v0
          s_mul_i32 s{sKA}, s{sCB}, {1024*ROT}
          s_mul_i32 s{sX}, s{sT}, 28
          s_lshl_b32 s3, s{sCB}, 2
          s_add_u32 s{sX}, s{sX}, s3
          s_lshl_b32 s3, s{sFT}, 1
          s_add_u32 s{sX}, s{sX}, s3
          s_lshl_b32 s{sX}, s{sX}, 10
          s_add_u32 s{sX}, s{sX}, {X1F}
          s_add_u32 s3, s{sW}, 12
          s_lshl_b32 s3, s3, 4
          s_lshr_b32 s26, s{sRB}, 1
          s_add_u32 s3, s3, s26
          s_lshl_b32 s3, s3, 7
          s_add_u32 s3, s3, {FP}
          v_mov_b32 v188, s3
          s_lshl_b32 s3, s26, 7
          s_add_u32 s3, s3, {FP}
          v_mov_b32 v189, s3
          v_lshlrev_b32 v8, 3, v1
          v_and_b32 v15, 0xff, v8
          s_lshl_b32 s27, s{sT}, 8
          s_add_u32 s27, s27, {ST1}""")
    unpack(a, RES, EP, 8)

def roleb(a):
    ACC, WF, AR, EP = 16, 80, 112, 176
    sRB, sCB, sT, sM, sK, sKA, sX = 44, 45, 48, 47, 50, 51, 53
    sRB3, sCB3, sT3, sK3, sL = 54, 55, 56, 57, 49
    ROT = opt("rot", 1)
    a("s_cmp_ge_u32 s2, 224\ns_cbranch_scc0 B_go")
    a(f"""s_mov_b64 exec, 1
          v_mov_b32 v8, {CNT}
          v_mov_b32 v9, {B_G3_DONE // 4}
          ds_add_u32 v8, v9
          s_mov_b64 exec, -1""")
    garrive(a, C_X)
    if opt("idlepf", 1):
        if opt("idlepf", 1) == 2: gwait(a, C_S1, 8)
        else:
            a(f"""s_lshl_b32 s3, s{sRB}, 10
                  s_add_u32 s3, s3, {F2}
                  v_mov_b32 v10, s3""")
            poll(a, 10, 1)
        srd(a, WA, 18, 1792 * 896)
        srd(a, WB_, 8, 448 * 896)
        a(f"""s_lshr_b32 s3, s2, 3
              s_sub_u32 s3, s3, 28
              s_lshl_b32 s3, s3, 2
              s_add_u32 s3, s3, s{sW}
              s_lshl_b32 s26, s3, 13
              s_and_b32 s27, s2, 1
              s_mul_i32 s27, s27, {896*896}
              s_add_u32 s26, s26, s27
              v_lshlrev_b32 v8, 7, v1
              s_mov_b32 s27, 7""")
        a.label("B_pf")
        a(f"""buffer_load_dword v16, v8, {s(WA,4)}, s26 offen
              s_add_u32 s26, s26, {16*8192}
              s_waitcnt vmcnt(1)
              s_sub_u32 s27, s27, 1
              s_cmp_lg_u32 s27, 0
              s_cbranch_scc1 B_pf
              s_lshl_b32 s26, s3, 13""")
        for i in range(4): a(f"buffer_load_dword v16, v8, {s(WB_,4)}, s26 offen\ns_add_u32 s26, s26, {16*8192}")
    a("s_endpgm")
    a.label("B_go")
    a(f"s_setprio {opt('pb', 1)}")
    bs2 = (lambda i: common.stamp(a, i)) if opt("g2s", 0) and common.STAMPS else (lambda i: None)
    if opt("g2s", 0):
        global stamp
        keep = stamp
        stamp = lambda a_, i, *x: keep(a_, i, *x) if i in (2, 3) else None
    def w3chunk(c):
        hf, j = (1, c) if c < 7 else (0, c - 7)
        for u in range(2):
            a(f"s_add_u32 m0, s{sL}, {hf*H1 + j*8192 + u*1024}")
            a(f"s_add_u32 s3, s{sK3}, {u*8*3584 + 128*hf}")
            a(f"buffer_load_dwordx4 v6, {s(WB_,4)}, s3 offen lds")
        wrapinc(a, sK3, 64*3584, 448*3584)
    W3A = opt("w3a", 2); W3E = max(W3A, opt("w3e", 6)); assert W3E <= 6
    if W3A:
        gwait(a, C_S1, 8)
        for c in range(W3A): w3chunk(c)
    stamp(a, 2)
    poll(a, 188, 1)
    a(f"buffer_load_dword v12, v189, {s(WD,4)}, 0 offen sc1")
    stamp(a, 3)
    for j in range(7):
        a(f"buffer_load_dwordx4 {v(AR+8*j,4)}, v186, {s(WD,4)}, s{sKA} offen{SC}")
        a(f"buffer_load_dwordx4 {v(AR+8*j+4,4)}, v187, {s(WD,4)}, s{sKA} offen{SC}")
        if j < 6: wrapinc(a, sKA, 1024, 7168)
    a("s_waitcnt vmcnt(14)\nv_cmp_eq_u32 vcc, 0, v12\ns_cbranch_vccz B_st1")
    poll(a, 189, 1)
    a.label("B_st1")
    a(f"buffer_load_dwordx2 {v(EP+8,2)}, v15, {s(WD,4)}, s27 offen{SC}")
    garrive(a, C_X)
    for s_ in range(3): wreads(a, WF, s_, s_*8192)
    NW3 = 0
    for s_ in range(7):
        a(f"s_waitcnt vmcnt({2*(6-s_) + 1 + NW3}) lgkmcnt({4*min(2, 6 - s_)})")
        mfmas(a, ACC, WF, s_ & 3, AR+8*s_, AR+8*s_+4, s_ == 0)
        if s_ + 3 < 7: wreads(a, WF, (s_+3) & 3, (s_+3)*8192)
    U = AR
    stamp(a, 12)
    a(f"s_waitcnt vmcnt({NW3})")
    for i in range(16): a(f"v_sub_f32 v{U+i}, v{RES+i}, v{EP+8}")
    def region2(d, j):
        a(f"""s_xor_b32 s{d}, s{sW}, {(j >> 1) + 2*(j & 1)}
              s_mul_i32 s{d}, s{d}, 12288
              s_add_u32 s{d}, s{d}, {W3B + 48*1024}""")
    region2(sM, 0)
    reduce3(a, ACC, sM, region2, 0, 4, True)
    stamp(a, 13)
    for i in range(16): a(f"v_fma_f32 v{U+i}, v{U+i}, v{EP+9}, v{ACC+i}")
    for i in range(8): a(f"v_cvt_pk_bf16_f32 v{EP+i}, v{U+2*i}, v{U+2*i+1}")
    a(f"buffer_store_dwordx4 {v(EP,4)}, v0, {s(WD,4)}, s{sX} offen{SC}")
    a(f"buffer_store_dwordx4 {v(EP+4,4)}, v0, {s(WD,4)}, s{sX} offen offset:1024{SC}")
    unpack(a, U, EP, 8)
    for i in range(16):
        a(f"v_add_f32 v{10+(i&1)}, v{U+i}, {'0' if i < 2 else 'v%d' % (10+(i&1))}")
        a(f"v_fma_f32 v{12+(i&1)}, v{U+i}, v{U+i}, {'0' if i < 2 else 'v%d' % (12+(i&1))}")
    a("v_add_f32 v10, v10, v11\nv_add_f32 v11, v12, v13")
    half_sum(a, 10, 8); half_sum(a, 11, 9)
    a(f"""s_lshl_b32 s26, s{sCB}, 1
          s_add_u32 s26, s26, s{sFT}
          s_mul_i32 s3, s{sT}, 14
          s_add_u32 s3, s3, s26
          s_lshl_b32 s3, s3, 8
          s_add_u32 s3, s3, {ST3}
          buffer_store_dwordx2 v[10:11], v15, {s(WD,4)}, s3 offen{SC}
          s_lshl_b32 s3, s{sRB}, 3
          s_add_u32 s3, s3, s{sCB}
          s_lshl_b32 s3, s3, 7
          s_add_u32 s{sX}, s3, {F2}""")
    garrive(a, 0)
    for i in range(16): a(f"v_add_f32 v{RES+i}, v{RES+i}, v{U+i}")
    for c in range(W3A, W3E): w3chunk(c)
    a(f"s_waitcnt vmcnt({2*(W3E - W3A)})")
    signal(a, sX, 12)
    stamp(a, 4)
    gwait(a, 0, 8)
    for c in range(W3E, 14): w3chunk(c)
    ACC, WF, XR, TMP = 16, 80, 112, 240
    CSP, CS = TMP, ACC + 48
    a(f"""s_lshl_b32 s3, s{sFT}, 6
          s_sub_u32 s26, 0, s{sL}
          v_add_u32 v2, s26, v2
          v_xor_b32 v2, s3, v2
          v_xor_b32 v3, 64, v2
          v_add_u32 v4, {H1}, v2
          v_add_u32 v5, {H1}, v3""")
    a(f"""s_lshr_b32 s3, s{sT3}, 1
          s_lshl_b32 s3, s3, 10
          s_add_u32 s3, s3, {F2}
          v_lshl_add_u32 v11, v1, 7, s3
          s_lshl_b32 s26, s{sCB3}, 1
          s_lshr_b32 s3, s{sW}, 1
          s_add_u32 s26, s26, s3
          v_add_u32 v8, -7, v1
          v_mul_u32_u24 v8, 28, v8
          v_add_u32 v8, s26, v8
          v_and_b32 v9, 1, v8
          v_lshrrev_b32 v10, 5, v8
          v_lshl_add_u32 v9, v9, 3, v10
          v_bfe_u32 v10, v8, 1, 2
          v_lshl_add_u32 v9, v9, 2, v10
          v_bfe_u32 v10, v8, 3, 2
          v_lshl_add_u32 v9, v9, 2, v10
          v_lshlrev_b32 v9, 7, v9
          v_add_u32 v9, {FP}, v9
          v_cmp_gt_u32 vcc, 7, v1
          v_cndmask_b32 v11, v9, v11, vcc
          s_mul_i32 s{sK3}, s26, {28*256}
          s_and_b32 s3, s{sW}, 1
          s_lshl_b32 s3, s3, 7
          s_add_u32 s{sK3}, s{sK3}, s3
          s_add_u32 s{sK3}, s{sK3}, {CS3P}
          v_lshrrev_b32 v10, 5, v1
          v_mul_u32_u24 v10, {14*256}, v10
          v_and_b32 v9, 31, v1
          v_lshl_add_u32 v6, v9, 2, v10
          s_mul_i32 s3, s{sT3}, {28*1024}
          s_add_u32 s3, s3, {X1F}
          v_add_u32 v7, s3, v0
          s_mul_i32 s{sKA}, s{sCB}, {4096*ROT}
          v_lshrrev_b32 v12, 5, v1
          v_mul_u32_u24 v12, {7*256}, v12
          v_and_b32 v13, 31, v1
          v_lshl_add_u32 v12, v13, 3, v12
          s_mul_i32 s27, s{sT3}, {14*256}
          s_add_u32 s27, s27, {ST3}""")
    a("s_waitcnt vmcnt(0)")
    gbar(a, 0, 12)
    CSG = opt("csg", 1)
    def cs_exchange():
        a(f"""v_cvt_pk_bf16_f32 v{WF}, v{CS}, v{CS}
              v_and_b32 v{WF}, 0xffff0000, v{WF}
              v_sub_f32 v{WF}, v{CS}, v{WF}
              v_cvt_pk_bf16_f32 v{WF}, v{CS}, v{WF}
              v_and_b32 v13, 31, v1
              v_lshlrev_b32 v13, 2, v13
              s_lshl_b32 s26, s{sW}, 7
              s_add_u32 s26, s26, {XCH3}
              v_add_u32 v13, s26, v13
              ds_write_b32 v13, v{WF}""")
        a("s_waitcnt lgkmcnt(0)")
        garrive(a, 0)
    def cs_collect():
        gwait(a, 0, 16)
        a(f"v_and_b32 v15, 31, v1\nv_lshlrev_b32 v15, 2, v15\nv_add_u32 v15, {XCH3}, v15")
        for t in range(4): a(f"ds_read_b32 v{CSP+t}, v15 offset:{128*t}")
        a("s_waitcnt lgkmcnt(0)")
    hops = lambda ts: {}
    woff = None
    poll(a, 11, 14)
    stamp(a, 5)
    STL = [WF + 24, WF + 26, WF + 28, WF + 30, TMP + 8, TMP + 10, 14]; ST = STL[0]
    LA = opt("la3", 10)
    def xl(u):
        g = A()
        g(f"buffer_load_dwordx4 {v(XR+4*u,4)}, v7, {s(WD,4)}, s{sKA} offen offset:{(u&3)*1024}{SC}")
        if (u & 3) == 3 and u < 27: wrapinc(g, sKA, 4096, 7*4096)
        return g.l
    L0 = opt("l0", 4)
    for u in range(L0):
        for x in xl(u): a(x)
        if u == 3:
            for i in range(7): a(f"buffer_load_dwordx2 {v(STL[i],2)}, v12, {s(WD,4)}, s27 offen offset:{i*256}{SC}")
            for i in range(14): a(f"buffer_load_dword v{CS+i}, v6, {s(WD,4)}, s{sK3} offen offset:{i*256}{SC}")
    M0_, M1_, R, DEN = TMP+4, TMP+5, TMP+6, TMP+7
    f = A()
    for i in range(1, 7): f(f"v_add_f32 v{ST}, v{ST}, v{STL[i]}\nv_add_f32 v{ST+1}, v{ST+1}, v{STL[i]+1}")
    f(f"v_mov_b32 v12, v{ST}\nv_mov_b32 v13, v{ST+1}")
    half_sum(f, 12, 8); half_sum(f, 13, 9)
    f(f"""v_mul_f32 v12, {fb(1/448)}, v12
          v_mul_f32 v13, {fb(1/448)}, v13
          v_fma_f32 v13, -v12, v12, v13
          v_max_f32 v13, 0, v13
          v_add_f32 v13, {fb(EPS)}, v13
          v_sqrt_f32 v{DEN}, v13
          v_rsq_f32 v{R}, v13""")
    mu_frag(f, 12, "-1", M0_, M1_)
    gelu_consts(f, R, DEN)
    f(f"""s_mul_i32 s{sK}, s{sT3}, 112
          s_lshl_b32 s27, s{sCB3}, 3
          s_add_u32 s{sK}, s{sK}, s27
          s_lshl_b32 s{sK}, s{sK}, 10
          s_add_u32 s{sK}, s{sK}, {HHF}
          s_add_u32 s27, s{sK}, 4096""")
    for i in range(1, 14): f(f"v_add_f32 v{CS}, v{CS}, v{CS+i}")
    half_sum(f, CS, 8)
    f(f"""v_cvt_pk_bf16_f32 v11, v{CS}, v{CS}
          v_and_b32 v11, 0xffff0000, v11
          v_sub_f32 v11, v{CS}, v11
          v_cvt_pk_bf16_f32 v11, v{CS}, v11
          s_lshl_b32 s26, s{sW}, 7
          s_add_u32 s26, s26, {XCH3}
          v_and_b32 v13, 31, v1
          v_lshl_add_u32 v13, v13, 2, s26""")
    NA = 2
    t1 = ((0,) if CSG else (0, 4)) + tuple(range(1, NA)); t2_ = tuple(range(NA, 4))
    pre = hops(t1); pre["fill0"] = 4*len(t1) + 1; pre["G"] = opt("g3g", 2)
    issued = L0
    for s_ in range(28):
        pre[("s", s_)] = [f"s_waitcnt vmcnt({issued - 1 - s_ + (21 if s_ < 4 else 0)})"]
        pre[("t", s_)] = []
        for _ in range(2):
            if issued < min(28, s_ + 1 + LA): pre[("t", s_)] += xl(issued); issued += 1
        if opt("g3s", 0) and common.STAMPS and s_ in (0, 8, 16, 27):
            g = A(); common.stamp(g, {0: 2, 8: 3, 16: 12, 27: 13}[s_]); pre[("s", s_)] += g.l
    g = A(); g("ds_write_b32 v13, v11"); garrive(g, 0); pre[("m", 53)] = g.l
    pre["fillend"] = 52
    a(f"s_setprio {opt('p3a', 1)}")
    kloop(a, ACC, WF, XR, 2, t1, woff, pre, True, f.l, R=6, D=5, cs=(CS, CSP, 32))
    a(f"s_setprio {opt('pb', 1)}")
    cs_collect()
    stamp(a, 13 if False else 14)
    def gfrag(fr, o):
        return gelu8(ACC + 8*fr, 10, 12, 14, TMP + 8, o) + [f"buffer_store_dwordx4 {v(o,4)}, v0, {s(WD,4)}, s{sK if fr < 4 else 27} offen offset:{(fr&3)*1024}{SC}"]
    assert NA == 2
    garrive(a, 0)
    mean_fix(a, ACC, WF, lambda t: CSP + t, M0_, M1_, tuple(range(NA)))
    srd(a, WA, 18, 1792 * 896)
    a(f"""v_lshrrev_b32 v8, 3, v1
          v_bfe_u32 v9, v1, 4, 1
          v_lshlrev_b32 v9, 2, v9
          v_and_b32 v7, 7, v1
          v_xor_b32 v9, v9, v7
          v_mul_u32_u24 v8, 896, v8
          v_lshl_add_u32 v7, v9, 4, v8
          s_and_b32 s3, s2, 1
          s_mul_i32 s3, s3, 56
          s_add_u32 s3, s3, s{sW}
          s_mul_i32 s3, s3, {16*896}
          s_lshl_b32 s26, s{sCB}, 7
          s_add_u32 s3, s3, s26
          v_add_u32 v7, s3, v7                   ; W4 voffset
          s_mul_i32 s{sK3}, s{sCB}, {8*16*896*ROT}""")
    def w4step(g, j):
        for u in range(2):
            g(f"s_add_u32 m0, s{sL}, {j*8192 + u*1024}\ns_add_u32 s3, s{sK3}, {u*8*896}\nbuffer_load_dwordx4 v7, {s(WA,4)}, s3 offen lds")
        wrapinc(g, sK3, 4*16*896, 896*896)
    nov = opt("nov", 4)
    pre = {"G": opt("g3b", 2)}
    W4S = opt("w4s", 3)
    W4E = opt("w4e", 0)
    g = A(); g.uid = 2000; gwait(g, 0, 20); pre[("s", W4S if W4E else 26)] = g.l
    for j in range(W4E):
        g = A(); w4step(g, j); pre[("t", W4S + (21 // W4E)*j)] = g.l
    kloop(a, ACC, WF, XR, 2, t2_, woff, pre, True,
          sum((gfrag(fr, ACC + 8*fr) for fr in range(nov)), []), R=6, D=5)
    garrive(a, 0)
    OWN = 168
    for fr in range(nov):
        for i in range(4): a(f"v_mov_b32 v{OWN+4*fr+i}, v{ACC+8*fr+i}")
    mean_fix(a, ACC, WF, lambda t: CSP + t, M0_, M1_, tuple(range(NA if NA < 4 else 0, 4)))
    for fr in range(nov, 8):
        if opt("pkg", 0):
            gelu_pairs(a, [ACC + 8*fr + 2*i for i in range(4)], 10, 12, 14, TMP + 8)
            for i in range(4): a(f"v_cvt_pk_bf16_f32 v{XR+4*fr+i}, v{ACC+8*fr+2*i}, v{ACC+8*fr+2*i+1}")
            a(gfrag(fr, XR + 4*fr)[-1])
        else:
            for x in gfrag(fr, OWN + 4*fr): a(x)
    stamp(a, 8)
    ACC, WF, AR, EP = 16, 80, 112, 176
    WOB = 0
    srd(a, WB_, 8, 448 * 896)
    a("s_and_b32 s27, s2, 1")
    gwait(a, 0, B_G3_DONE)
    NP0 = opt("np0", 4)
    for j in range(W4E, W4E + NP0): w4step(a, j)
    a(f"""s_lshl_b32 s3, s{sRB3}, 4
          s_add_u32 s3, s3, s{sCB3}
          s_lshl_b32 s3, s3, 7
          s_add_u32 s{sX}, s3, {F3}
          s_mul_i32 s3, s{sT3}, 112
          s_mul_i32 s26, s27, 56
          s_add_u32 s3, s3, s26
          s_lshl_b32 s3, s3, 10
          s_add_u32 s3, s3, {HHF}
          v_add_u32 v4, s3, v0
          s_add_u32 s{sKA}, s{sCB}, 1
          s_cmp_eq_u32 s{sKA}, 7
          s_cselect_b32 s{sKA}, 0, s{sKA}
          s_lshl_b32 s{sKA}, s{sKA}, 13
          s_lshl_b32 s26, s{sRB3}, 4
          s_mul_i32 s3, s27, 7
          s_add_u32 s3, s3, s26
          v_add_u32 v10, s3, v1
          v_lshlrev_b32 v10, 7, v10
          v_add_u32 v10, {F3}, v10
          s_lshl_b32 s3, s{sW}, 2
          s_add_u32 s3, s3, s26
          v_and_b32 v14, 3, v1
          v_add_u32 v14, s3, v14
          v_lshlrev_b32 v14, 7, v14
          v_add_u32 v14, {FA}, v14
          s_waitcnt vmcnt({2*NP0})""")
    signal(a, sX, 16)
    stamp(a, 9)
    for j in range(W4E + NP0, 14): w4step(a, j)
    a(f"""s_mul_i32 s3, s27, {896*896}
          s_mul_i32 s26, s{sW}, {96*896}
          s_sub_u32 s3, s26, s3
          v_add_u32 v7, s3, v7""")
    poll(a, 10, 7)
    gbar(a, 0, B_G3_DONE + 4)
    stamp(a, 10)
    LA4, RA = opt("la4", 12), 14
    PB = opt("pb16", 1); NPS = 8 >> PB
    OR_ = lambda u: 168 + 8*u if u < 7 else 240
    PD, EP = AR, AR + 16
    q = []
    def after(tag):
        return len(q) - 1 - max(i for i, x in enumerate(q) if x == tag)
    def al(u):
        a(f"buffer_load_dwordx4 {v(AR + 4*(u % RA), 4)}, v4, {s(WD,4)}, s{sKA} offen offset:{(u&3)*1024}{SC}"); q.append(("a", u))
        if (u & 3) == 3 and u < 55: wrapinc(a, sKA, 4096, 56*1024)
    def rd(m):
        s_, b = m >> 1, m & 1
        if m == 64: a("v_add_u32 v2, 0x10000, v2\nv_add_u32 v3, 0x10000, v3")
        for e in range(2): a(f"ds_read_b64_tr_b16 {v(WF + 4*(m & 7) + 2*e, 2)}, v{2+b} offset:{(s_ & 31)*2048 + e*1024}")
    def wo(u):
        a(f"s_add_u32 m0, s{sM}, {u*1024}\ns_mov_b32 s3, {u*8*896}\nbuffer_load_dwordx4 v7, {s(WB_,4)}, s3 offen lds"); q.append(("w", u))
    def ol(u):
        for aa in range(2):
            a(f"buffer_load_dwordx4 {v(OR_(u)+4*aa,4)}, v{12+aa}, {s(WD,4)}, {'0' if u < 4 else 's%d' % sL} offen offset:{(u&3)*1024}{SC}"); q.append(("o", u))
    assert ROT
    I0 = opt("i0", 2); nxt = [8 + I0]
    for u in range(8, 8 + I0): al(u)
    a(f"""s_mul_i32 s{sM}, s{sW}, 15360
          s_movk_i32 s{sL}, 4096
          s_lshl_b32 s3, s{sT}, 5
          s_lshl_b32 s26, s{sW}, 3
          s_add_u32 s3, s3, s26
          s_lshl_b32 s3, s3, 10
          s_add_u32 s3, s3, {OF}
          v_add_u32 v12, s3, v0
          v_xor_b32 v13, {32*1024}, v12
          s_setprio {opt('pf', 0)}""")
    D4 = 6
    S_ARR, S_WO, S_FL, S_CHK = 31, opt("swo", 40), opt("sfl", 54), 99
    for m in range(D4): rd(m)
    for m in range(112):
        s_, b = m >> 1, m & 1
        if b == 0: a("s_waitcnt " + (f"vmcnt({after(('a', s_))}) " if s_ >= 8 else "") + f"lgkmcnt({2*max(0, min(D4 - 2, 110 - m))})")
        a(f"{MF} {v(ACC+16*b,16)}, {v(WF + 4*(m & 7), 4)}, {v(AR + 4*(s_ % RA) if s_ >= 8 else OWN + 4*s_, 4)}, {'0' if s_ == 0 else v(ACC+16*b,16)}")
        if m + D4 < 112: rd(m + D4)
        if b == 1:
            if opt("g4s", 0) and s_ in (7, 8, 30, 36, 51): stamp(a, {7: 2, 8: 3, 30: 12, 36: 13, 51: 4}[s_])
            for _ in range(opt("i1", 2) if s_ < 8 else 1):
                if nxt[0] < min(56, max(s_, 7) + 1 + LA4): al(nxt[0]); nxt[0] += 1
            if s_ == S_ARR: garrive(a, 0)
            if s_ == S_WO: gwait(a, 0, B_G3_DONE + 8)
            if S_WO <= s_ < S_WO + 15: wo(s_ - S_WO)
            if s_ == S_FL:
                a(f"buffer_load_dword v15, v14, {s(WD,4)}, 0 offen sc1"); q.append("f")
    a(f"s_setprio {opt('pb', 1)}")
    stamp(a, 11)
    a(f"""s_lshl_b32 s{sX}, s2, 7
          s_add_u32 s{sX}, s{sX}, {FQ}
          s_lshl_b32 s3, s{sFT}, 6
          s_add_u32 s26, s{sM}, 0xffff0000
          v_xor_b32 v2, s3, v2
          v_xor_b32 v3, s3, v3
          v_add_u32 v2, s26, v2
          v_add_u32 v3, s26, v3
          s_xor_b32 s3, s{sRB}, 1
          s_mul_i32 s3, s3, 7
          s_add_u32 s3, s3, s{sCB}
          s_lshl_b32 s3, s3, 1
          s_and_b32 s26, s{sW}, 1
          s_add_u32 s3, s3, s26
          s_lshl_b32 s3, s3, {13 - PB}
          s_add_u32 s3, s3, {PART}
          s_cmp_eq_u32 s{sFT}, 0
          s_cselect_b32 s3, {OOB}, s3
          s_add_u32 s26, s3, 4096""")
    woff2 = lambda u: (28*(u >> 1) + 16*(u & 1)) * 128
    if PB:
        for i in range(16):
            a(f"v_cvt_pk_bf16_f32 v{AR+i}, v{ACC+2*i}, v{ACC+2*i+1}")
            if (i & 3) == 3: a(f"buffer_store_dwordx4 {v(AR+i-3,4)}, v0, {s(WD,4)}, s3 offen offset:{(i>>2)*1024}{SC}")
    else:
        for i in range(8): a(f"buffer_store_dwordx4 {v(ACC+4*i,4)}, v0, {s(WD,4)}, s{3 if i < 4 else 26} offen offset:{(i&3)*1024}{SC}")
    a(f"""s_mov_b32 s{sKA}, 0
          s_waitcnt vmcnt({NPS})
          v_cmp_eq_u32 vcc, 0, v15
          s_cbranch_vccz B_oready
          s_waitcnt vmcnt(0)""")
    signal(a, sX, C_SQ)
    a(f"s_mov_b32 s{sKA}, 1")
    poll(a, 14, 4)
    a.label("B_oready")
    for u in range(8): ol(u)
    stamp(a, 15)
    for u in range(3): wreads(a, WF, u, woff2(u))
    a(f"""s_mul_i32 s27, s{sRB}, 7
          s_add_u32 s27, s27, s{sCB}
          s_lshl_b32 s27, s27, 1
          s_and_b32 s26, s{sW}, 1
          s_add_u32 s27, s27, s26
          s_lshl_b32 s27, s27, 1
          s_add_u32 s27, s27, s{sFT}
          s_lshl_b32 s27, s27, {12 - PB}
          s_add_u32 s{sK}, s27, {PART}
          s_xor_b32 s3, s2, 1
          s_lshl_b32 s3, s3, 7
          s_add_u32 s3, s3, {FQ}
          v_mov_b32 v14, s3
          s_cmp_eq_u32 s{sFT}, 0
          s_cbranch_scc1 B_keep""")
    for i in range(32): a(f"v_mov_b32 v{ACC+i}, 0")
    a.label("B_keep")
    a(f"s_waitcnt vmcnt(16)\ns_cmp_lg_u32 s{sKA}, 0\ns_cbranch_scc1 B_sigd")
    signal(a, sX, C_SQ)
    a.label("B_sigd")
    for u in range(8):
        a(f"s_waitcnt vmcnt({2*(7 - u)}) lgkmcnt({4*min(2, 7 - u)})")
        for aa in range(2):
            for b in range(2):
                j = 2*aa + b
                a(f"{MF} {v(ACC+16*j,16)}, {v(WF+8*(u&3)+4*b,4)}, {v(OR_(u)+4*aa,4)}, {'0' if (u == 0 and aa) else v(ACC+16*j,16)}")
        if u + 3 < 8: wreads(a, WF, (u+3) & 3, woff2(u+3))
    a(f"buffer_load_dword v15, v14, {s(WD,4)}, 0 offen sc1")
    if opt("ts", 0): stamp(a, 2)
    def region3(d, j):
        a(f"s_xor_b32 s{d}, s{sW}, {(j >> 1) + 2*(j & 1)}\ns_mul_i32 s{d}, s{d}, 15360\ns_add_u32 s{d}, s{d}, {WOB}")
    srd(a, XS, 20, 2048 * 896)
    OSC = ["", " sc1", " nt"][opt("osc", 2)]
    OT = WOB + 4*15360
    a(f"""v_and_b32 v4, 31, v1
          s_and_b32 s26, s{sW}, 1
          s_lshl_b32 s26, s26, 5
          v_add_u32 v4, s26, v4
          v_mul_u32_u24 v4, 144, v4
          v_lshrrev_b32 v9, 5, v1
          v_lshl_add_u32 v4, v9, 3, v4
          s_lshl_b32 s26, s{sFT}, 6
          s_add_u32 s26, s26, {OT}
          v_add_u32 v4, s26, v4
          v_lshrrev_b32 v6, 3, v1
          s_lshl_b32 s26, s{sW}, 4
          v_add_u32 v6, s26, v6
          v_and_b32 v9, 7, v1
          v_mul_u32_u24 v5, 144, v6
          v_lshl_add_u32 v5, v9, 4, v5
          v_add_u32 v5, {OT}, v5
          v_mul_u32_u24 v6, 896, v6
          v_lshl_add_u32 v6, v9, 4, v6
          s_mul_i32 s27, s{sRB}, {64*896}
          s_lshl_b32 s26, s{sCB}, 7
          s_add_u32 s27, s27, s26
          s_add_u32 s{sX}, s27, {8*896}""")
    def fetch_partial():
        a("s_waitcnt vmcnt(0)\nv_cmp_eq_u32 vcc, 0, v15\ns_cbranch_vccz B_pready")
        poll(a, 14, 1)
        a.label("B_pready")
        for i in range(4 >> PB): a(f"buffer_load_dwordx4 {v(PD+16*PB+4*i,4)}, v0, {s(WD,4)}, s{sK} offen offset:{i*1024}{SC}")
    reduce3(a, ACC, sM, region3, 0, B_G3_DONE + 12, True, fetch_partial)
    if opt("ts", 0): stamp(a, 3)
    for i in range(16): a(f"v_add_f32 v{ACC+i}, v{ACC+i}, v{RES+i}")
    a("s_waitcnt vmcnt(0)")
    if PB: unpack(a, PD, PD + 16, 8)
    for i in range(16): a(f"v_add_f32 v{ACC+i}, v{ACC+i}, v{PD+i}")
    if opt("ts", 0): stamp(a, 12)
    for i in range(8): a(f"v_cvt_pk_bf16_f32 v{EP+i}, v{ACC+2*i}, v{ACC+2*i+1}")
    for j in range(4): a(f"ds_write_b64 v4, {v(EP+2*j,2)} offset:{16*j}")
    gbar(a, 0, B_G3_DONE + 16)
    if opt("ts", 0): stamp(a, 13)
    a(f"""ds_read_b128 {v(EP,4)}, v5
          ds_read_b128 {v(EP+4,4)}, v5 offset:{8*144}
          s_waitcnt lgkmcnt(1)
          buffer_store_dwordx4 {v(EP,4)}, v6, {s(XS,4)}, s27 offen{OSC}
          s_waitcnt lgkmcnt(0)
          buffer_store_dwordx4 {v(EP+4,4)}, v6, {s(XS,4)}, s{sX} offen{OSC}""")
    stamp_out2(a)
    a("s_endpgm")

def stamp_out2(a):
    if not common.STAMPS: return
    a("s_waitcnt vmcnt(0)")
    common.stamp(a, 6); common.stamp(a, 7, True)
    a("s_waitcnt lgkmcnt(0)")
    for i in range(16): a(f"v_mov_b32 v{16+i}, s{64+2*i}")
    a(f"""s_lshl_b32 s3, s2, 3
          s_add_u32 s3, s3, s60
          s_lshl_b32 s3, s3, 6
          s_add_u32 s3, s3, {TS}
          v_mov_b32 v8, 0""")
    for j in range(4): a(f"buffer_store_dwordx4 v[{16+4*j}:{19+4*j}], v8, {s(WD,4)}, s3 offen offset:{16*j}")

def p1stamps():
    return common.STAMPS and opt("p1s", 0)

def build(name):
    a = A()
    a.label("K_start")
    a("s_cmp_ge_u32 s2, 256\ns_cbranch_scc1 K_end")
    load_args(a)
    a(f"""v_and_b32 v1, 63, v0
          v_lshrrev_b32 v8, 6, v0
          s_mov_b32 s59, {fb(2.0**100)}
          v_readfirstlane_b32 s60, v8
          v_lshlrev_b32 v0, 4, v1
          s_and_b32 s{sW}, s60, 3
          s_cmp_ge_u32 s60, 4""")
    if opt("bfirst", 1):
        a("s_cbranch_scc0 K_rolea")
        p1b(a)
        a("s_branch K_roleb")
        a.label("K_rolea")
        p1a(a)
        att(a)
        a.label("K_roleb")
        roleb(a)
    else:
        a("s_cbranch_scc1 K_roleb")
        p1a(a)
        att(a)
        a.label("K_roleb")
        p1b(a)
        roleb(a)
    a.label("K_end")
    a("s_endpgm")
    a.label("K_last")
    return a

if __name__ == "__main__":
    if "stamp" in sys.argv[1]: common.STAMPS = True
    name = "parallel_sum__mha_block__mixer_s_mlp__prompt_kernel"
    HDR = open("parallel_sum__mha_block__mixer_s_mlp__prompt.s.ref").read().split("; Override launch")[0]
    out = HDR + "; @launch grid=(256,1,1) block=(512,1,1) lds=163840\n" + '.amdgcn_target "amdgcn-amd-amdhsa--gfx950"\n'
    out += kernel_head(name) + build(name).text() + kernel_desc(name, vgpr=256, sgpr=102)
    open(sys.argv[1], "w").write(out)
```

```python
import sys
import common
from common import *

FLG = 0x1550000
FP, F2, F3, FA, FQ = FLG, FLG + 0x8000, FLG + 0x10000, FLG + 0x18000, FLG + 0x20000
NINIT = 20
PART = 0x1600000
WS_END = 0x1A00000
sFT = 52
CS3P = 0x800000
XS, WA, WD, WB_ = 28, 32, 36, 40
sW, sSPIN = 46, 58
SC = " sc1"
CNT = 156 * 1024
C_B, C_A, C_S1, C_S2, C_S3, C_SA, C_W, C_X, C_SQ = 0, 4, 8, 12, 16, 20, 24, 28, 32
SPIN_MAX = 1 << 16
import os
OPT = dict(x.split("=") for x in os.environ.get("MKOPT", "").split(",") if x)
def opt(k, d): return int(OPT.get(k, d))
SLEEP = opt("sleep", 1)
DEBUG = "dbg" in sys.argv[1] if len(sys.argv) > 1 else False


def poll(a, vaddr, nlanes, srdreg=WD, soff="0"):
    L, D = a.newlabel("PL"), a.newlabel("PD")
    a(f"s_mov_b32 s{sSPIN}, {SPIN_MAX}")
    a(f"s_mov_b64 exec, {(1 << nlanes) - 1}" if nlanes <= 6 else f"s_bfm_b64 exec, {nlanes}, 0")
    a.label(L)
    a(f"""buffer_load_dword v9, v{vaddr}, {s(srdreg,4)}, {soff} offen sc1
          s_waitcnt vmcnt(0)
          v_cmp_eq_u32 vcc, 0, v9
          s_cbranch_vccz {D}
          s_sleep {SLEEP}
          s_sub_u32 s{sSPIN}, s{sSPIN}, 1
          s_cmp_lg_u32 s{sSPIN}, 0
          s_cbranch_scc1 {L}""")
    a.label(D)
    a("s_mov_b64 exec, -1")

TF = ["", " sc1", " nt", " sc0 sc1"][opt("tf", 0)]
SCB = "" if opt("local", 0) else " sc1"
def signal(a, soff, cnt, sc=" sc1", last=3):
    a(f"""s_mov_b64 exec, 1
          v_mov_b32 v8, {CNT + cnt}
          v_mov_b32 v9, 1
          ds_add_rtn_u32 v8, v8, v9
          s_waitcnt lgkmcnt(0)
          v_readfirstlane_b32 s26, v8
          v_mov_b32 v8, 0
          s_cmp_eq_u32 s26, {last}
          s_cselect_b32 s26, s{soff}, {OOB}
          buffer_store_dword v9, v8, {s(WD,4)}, s26 offen{sc}
          s_mov_b64 exec, -1""")

def garrive(a, off, field=0):
    a(f"""s_mov_b64 exec, 1
          v_mov_b32 v8, {CNT + off}
          v_mov_b32 v9, {1 << (4*field)}
          ds_add_u32 v8, v9
          s_mov_b64 exec, -1""")

def gwait(a, off, target, va=8, sr=3, field=None):
    L, D = a.newlabel("GL"), a.newlabel("GD")
    a(f"s_mov_b32 s{sSPIN}, {SPIN_MAX * 8}\nv_mov_b32 v{va}, {CNT + off}")
    a.label(L)
    a(f"""ds_read_b32 v{va+1}, v{va}
          s_sub_u32 s{sSPIN}, s{sSPIN}, 1
          s_cbranch_scc1 {D}
          s_waitcnt lgkmcnt(0)
          v_readfirstlane_b32 s{sr}, v{va+1}
          {"" if field is None else f"s_bfe_u32 s{sr}, s{sr}, {0x40000 + 4*field}"}
          s_cmp_lt_u32 s{sr}, {target}
          s_cbranch_scc1 {L}""")
    a.label(D)
    a("s_waitcnt lgkmcnt(0)")

def gbar(a, off, target):
    a("s_waitcnt lgkmcnt(0)")
    garrive(a, off); gwait(a, off, target)

def kloop(a, ACC, WF, XR, vA, tiles, offs, pre, perm, fill=(), R=8, D=6, cs=None):
    ops = [(s_, t) for s_ in range(28) for t in (tiles if s_ < 27 else pre.get("lastorder", tiles))]
    N = len(ops); fill = list(fill); done = 0
    def rd(m):
        s_, t = ops[m]
        if (s_ & 3) == 0 and t == tiles[0]:
            for x in pre.get(s_ >> 2, []): a(x)
        for e in range(2):
            row = 16 * (s_ & 3) + (8 * e if perm else 4 * e)
            a(f"ds_read_b64_tr_b16 {v(WF + 4*(m % R) + 2*e, 2)}, v{vA+t} offset:{offs(s_ >> 2) + row*256 if offs else s_*2048 + e*1024}")
    for m in range(D): rd(m)
    f0 = pre.get("fill0", 1)
    per = max(1, -(-len(fill) // (pre.get("fillend", N - 1) - f0)))
    for m, (s_, t) in enumerate(ops):
        if (s_ & 3) == 0 and t == tiles[0]:
            for x in pre.get(("x", s_ >> 2), []): a(x)
        if t == tiles[0]:
            for x in pre.get(("s", s_), []): a(x)
        G = pre.get("G", 1)
        if m % G == 0: a(f"s_waitcnt lgkmcnt({2*max(0, min(D - G, N - G - m))})")
        if t < 4: a(f"{MF} {v(ACC+16*t,16)}, {v(WF + 4*(m % R), 4)}, {v(XR(s_) if callable(XR) else XR+4*s_,4)}, {'0' if s_ == 0 else v(ACC+16*t,16)}")
        elif len(cs) == 3: a(f"{MF} {v(cs[0],16)}, {v(cs[1],4)}, {v(WF + 4*(m % R), 4)}, {'0' if s_ == 0 else v(cs[0],16)}")
        else: a(f"v_mfma_f32_16x16x32_bf16 {v(cs[0],4)}, {v(cs[1],4)}, {v(WF + 4*(m % R), 4)}, {'0' if s_ == 0 else v(cs[0],4)}")
        if m + D < N: rd(m + D)
        if (s_ & 3) == 0 and t == tiles[0]:
            for x in pre.get(("y", s_ >> 2), []): a(x)
        if t == tiles[min(1, len(tiles) - 1)]:
            for x in pre.get(("t", s_), []): a(x)
        for x in pre.get(("m", m), []): a(x)
        if m >= f0:
            for x in fill[done:done + per]: a(x)
            done += per
    for x in fill[done:]: a(x)

def kburst(a, ACC, WF, XR, vA, offs, pre, fill=()):
    fill = list(fill); per = -(-len(fill) // 26); done = 0
    def rd(s_):
        if (s_ & 3) == 0:
            for x in pre.get(s_ >> 2, []): a(x)
        for t in range(4):
            for e in range(2):
                a(f"ds_read_b64_tr_b16 {v(WF + 16*(s_ & 1) + 4*t + 2*e, 2)}, v{vA+t} offset:{offs(s_ >> 2) + (16*(s_ & 3) + 8*e)*256}")
    rd(0); rd(1)
    for s_ in range(28):
        if (s_ & 3) == 0:
            for x in pre.get(("x", s_ >> 2), []): a(x)
        a(f"s_waitcnt lgkmcnt({8 if s_ < 27 else 0})")
        for t in range(4):
            a(f"{MF} {v(ACC+16*t,16)}, {v(WF + 16*(s_ & 1) + 4*t, 4)}, {v(XR+4*s_,4)}, {'0' if s_ == 0 else v(ACC+16*t,16)}")
        if s_ + 2 < 28: rd(s_ + 2)
        if s_:
            for x in fill[done:done + per]: a(x)
            done += per

def tr_addrs(a, vA, sTS, base, perm, which=(0, 1, 2, 3, 4)):
    a(f"""v_lshrrev_b32 v8, 5, v1
          v_bfe_u32 v9, v1, 2, 2
          v_bfe_u32 v10, v1, 4, 1
          v_and_b32 v11, 3, v1
          v_lshl_add_u32 v10, v10, 2, v11
          v_lshl_add_u32 v8, v8, {2 if perm else 3}, v9
          v_lshlrev_b32 v8, 8, v8
          v_add_u32 v8, {base}, v8
          v_lshlrev_b32 v9, 2, v9""")
    for t in which:
        a(f"s_mul_i32 s26, {sTS}, {t}" if t < 4 else f"s_mul_i32 s26, {sTS}, s{sW}")
        a(f"""v_add_u32 v11, s26, v10
              v_lshrrev_b32 v12, 1, v11
              v_add_u32 v12, v12, v9
              v_and_b32 v12, 15, v12
              v_and_b32 v11, 1, v11
              v_lshlrev_b32 v11, 3, v11
              v_lshl_add_u32 v11, v12, 4, v11
              v_add_u32 v{vA+t}, v8, v11""")

def cs_publish(a, CS, T, xch):
    a(f"""v_cvt_pk_bf16_f32 v{T}, v{CS}, v{CS}
          v_and_b32 v{T+1}, 0xffff0000, v{T}
          v_sub_f32 v{T+1}, v{CS}, v{T+1}
          v_cvt_pk_bf16_f32 v{T}, v{CS}, v{T+1}
          v_and_b32 v10, 31, v1
          v_lshlrev_b32 v10, 2, v10
          v_add_u32 v10, {xch}, v10
          s_lshl_b32 s26, s{sW}, 7
          v_add_u32 v9, s26, v10
          ds_write_b32 v9, v{T}""")

def mean_fix(a, ACC, T, src, vMU0, vMU1, tiles=(0, 1, 2, 3)):
    n = len(tiles)
    a(f"v_mov_b32 v{T+4*n}, v{vMU0}\nv_mov_b32 v{T+4*n+1}, v{vMU1}\nv_mov_b32 v{T+4*n+2}, 0\nv_mov_b32 v{T+4*n+3}, 0")
    for i, t in enumerate(tiles):
        if src(t) != T + 4*i: a(f"v_mov_b32 v{T+4*i}, v{src(t)}")
        a(f"v_and_b32 v{T+4*i+1}, 0xffff, v{src(t)}\nv_mov_b32 v{T+4*i+2}, 0\nv_mov_b32 v{T+4*i+3}, 0")
    for i, t in enumerate(tiles): a(f"{MF} {v(ACC+16*t,16)}, {v(T+4*i,4)}, {v(T+4*n,4)}, {v(ACC+16*t,16)}")

def mu_frag(a, vmu, lo_en, d0, d1):
    a(f"""v_cvt_pk_bf16_f32 v{d0}, -v{vmu}, -v{vmu}
          v_and_b32 v8, 0xffff0000, v{d0}
          v_sub_f32 v8, -v{vmu}, v8
          v_cvt_pk_bf16_f32 v{d1}, v8, 0
          v_and_b32 v{d1}, {lo_en}, v{d1}
          v_lshrrev_b32 v8, 5, v1
          v_add_u32 v8, -1, v8
          v_and_b32 v{d0}, v8, v{d0}
          v_and_b32 v{d1}, v8, v{d1}""")

def gelu_consts(a, R, DEN):
    a(f"""v_mul_f32 v10, {fb(GK1)}, v{R}
          v_mul_f32 v12, v{R}, v{R}
          v_mul_f32 v12, v12, v{R}
          v_mul_f32 v12, {fb(GK2)}, v12
          v_mov_b32 v14, v{DEN}""")

def gelu8(regs0, K1, K2, IS, T, out):
    L = []
    for i in range(8): L.append(f"v_mul_f32 v{T+i}, v{regs0+i}, v{regs0+i}")
    for i in range(8): L.append(f"v_fma_f32 v{T+i}, v{T+i}, v{K2}, v{K1}")
    for i in range(8): L.append(f"v_mul_f32 v{T+i}, v{T+i}, v{regs0+i}")
    for i in range(8): L.append(f"v_exp_f32 v{T+i}, v{T+i}")
    for i in range(8): L.append(f"v_fma_f32 v{T+i}, v{T+i}, v{IS}, v{IS}")
    for i in range(8): L.append(f"v_rcp_f32 v{T+i}, v{T+i}")
    for i in range(8): L.append(f"v_mul_f32 v{T+i}, v{T+i}, v{regs0+i}")
    for i in range(4): L.append(f"v_cvt_pk_bf16_f32 v{out+i}, v{T+2*i}, v{T+2*i+1}")
    return L

def wrapinc(a, sreg, step, lim):
    a(f"s_add_u32 s{sreg}, s{sreg}, {step}\ns_cmp_eq_u32 s{sreg}, {lim}\ns_cselect_b32 s{sreg}, 0, s{sreg}")

def reduce3(a, ACC, sM, region, cnt_off, target, xor, mid=None):
    a(f"v_add_u32 v10, s{sM}, v0")
    for j in range(1, 4):
        for i in range(4): a(f"ds_write_b128 v10, {v(ACC+16*j+4*i,4)} offset:{(j-1)*4096 + i*1024}")
    for j in range(1, 4):
        region(26, j)
        a(f"v_add_u32 v{10+j}, s26, v0")
    gbar(a, cnt_off, target)
    if mid: mid()
    for j in range(1, 4):
        for i in range(4): a(f"ds_read_b128 {v(ACC+16*j+4*i,4)}, v{10+j} offset:{(j-1)*4096 + i*1024}")
    for j in range(1, 4):
        a(f"s_waitcnt lgkmcnt({4*(3-j)})")
        for i in range(16): a(f"v_add_f32 v{ACC+i}, v{ACC+i}, v{ACC+16*j+i}")

def reduce3c(a, ACC, sM, region, cnt_off, target):
    BL = 3712
    a(f"""v_add_u32 v10, s{sM}, v0
          v_lshlrev_b32 v14, 2, v1
          v_add_u32 v14, {3584 - 128}, v14
          v_add_u32 v15, s{sM}, v14""")
    for j in range(1, 4):
        for i in range(3): a(f"ds_write_b128 v10, {v(ACC+16*j+4*i,4)} offset:{(j-1)*BL + i*1024}")
    a("s_mov_b64 exec, 0xffffffff")
    for j in range(1, 4): a(f"ds_write_b128 v10, {v(ACC+16*j+12,4)} offset:{(j-1)*BL + 3072}")
    a("s_not_b64 exec, exec")
    for j in range(1, 4): a(f"ds_write_b32 v15, v{ACC+16*j+12} offset:{(j-1)*BL}")
    a("s_mov_b64 exec, -1")
    for j in range(1, 4):
        region(26, j)
        a(f"v_add_u32 v{10+j}, s26, v0\nv_add_u32 v{4+j}, s26, v14")
    gbar(a, cnt_off, target)
    a("s_mov_b64 exec, 0xffffffff")
    for j in range(1, 4): a(f"ds_read_b128 {v(ACC+16*j+12,4)}, v{10+j} offset:{(j-1)*BL + 3072}")
    a("s_not_b64 exec, exec")
    for j in range(1, 4): a(f"ds_read_b32 v{ACC+16*j+12}, v{4+j} offset:{(j-1)*BL}")
    a("s_mov_b64 exec, -1")
    for j in range(1, 4):
        for i in range(3): a(f"ds_read_b128 {v(ACC+16*j+4*i,4)}, v{10+j} offset:{(j-1)*BL + i*1024}")
    for j in range(1, 4):
        a(f"s_waitcnt lgkmcnt({3*(3-j)})")
        for i in range(16): a(f"v_add_f32 v{ACC+i}, v{ACC+i}, v{ACC+16*j+i}")

def unpack(a, dst, src, n):
    for i in range(n):
        a(f"v_lshlrev_b32 v{dst+2*i}, 16, v{src+i}\nv_and_b32 v{dst+2*i+1}, 0xffff0000, v{src+i}")

NBAR_P1 = 10
XB = 112 * 1024
XCH = XB + 16384
def p1a(a):
    a(f"s_setprio {opt('pa1', 2)}")
    ACC, CS, WF, XR, TMP = 16, 80, 96, 136, 248
    sRB, sCB, sTY, sSUB, sTS, sLO, sT = 44, 45, 47, 48, 50, 55, 56
    a(f"""s_and_b32 s26, s2, 7
          s_lshr_b32 s27, s2, 3
          s_lshr_b32 s{sRB}, s26, 1
          s_lshl_b32 s{sRB}, s{sRB}, 2
          s_and_b32 s3, s27, 3
          s_add_u32 s{sRB}, s{sRB}, s3
          s_and_b32 s{sCB}, s26, 1
          s_lshl_b32 s{sCB}, s{sCB}, 3
          s_lshr_b32 s3, s27, 2
          s_add_u32 s{sCB}, s{sCB}, s3
          s_lshr_b32 s{sTY}, s{sCB}, 2
          s_and_b32 s{sSUB}, s{sCB}, 3
          s_cmp_eq_u32 s{sTY}, 3
          s_cselect_b32 s{sTS}, 8, 7
          s_cselect_b32 s{sLO}, -1, 0
          s_lshl_b32 s{sT}, s{sRB}, 2
          s_add_u32 s{sT}, s{sT}, s{sW}""")
    tr_addrs(a, 2, f"s{sTS}", 0, perm=False)
    a(f"""v_and_b32 v8, 15, v1
          v_bfe_u32 v9, v1, 4, 1
          v_cmp_eq_u32 vcc, v8, v9
          v_mov_b32 v8, 0x3f803f80
          v_cndmask_b32 v{CS+4}, 0, v8, vcc
          v_mov_b32 v{CS+5}, v{CS+4}
          v_mov_b32 v{CS+6}, v{CS+4}
          v_mov_b32 v{CS+7}, v{CS+4}
          v_and_b32 v8, 31, v1
          v_lshrrev_b32 v9, 5, v1
          v_bfe_u32 v10, v1, 1, 3
          v_xor_b32 v9, v9, v10
          v_lshlrev_b32 v8, 7, v8
          v_lshl_add_u32 v8, v9, 4, v8
          s_lshl_b32 s3, s{sW}, 12
          s_add_u32 s3, s3, {XB}
          v_add_u32 v{CS+8}, s3, v8
          v_xor_b32 v{CS+9}, 32, v{CS+8}
          v_xor_b32 v{CS+10}, 64, v{CS+8}
          v_xor_b32 v{CS+11}, 96, v{CS+8}
          s_waitcnt lgkmcnt(0)""")
    srd(a, WD, 24, WS_END)
    ONE = TMP
    M0_, M1_, R, DEN = TMP+4, TMP+5, TMP+6, TMP+7
    a(f"""v_and_b32 v10, 31, v1
          v_lshlrev_b32 v10, 2, v10
          v_add_u32 v10, {XCH}, v10
""")
    stamp(a, 12)
    pre = {}
    for c in range(7):
        pre[c] = ["s_barrier"] + [f"ds_read_b128 {v(XR + 16*(c&1) + 4*i, 4)}, v{CS+8+i} offset:{(c % 3)*16384}" for i in range(4)]
        if opt("sqv", 0) == 0:
            pre[("y", c)] = [f"v_dot2_f32_bf16 v{12+(i&1)}, v{XR+16*(c&1)+i}, v{XR+16*(c&1)+i}, {'0' if c == 0 and i < 2 else 'v%d' % (12+(i&1))}" for i in range(16)]
    sq = []
    if opt("sqv", 0):
        a("v_mov_b32 v12, 0\nv_mov_b32 v13, 0")
        for s_ in range(28):
            for i in range(4):
                r_ = XR + 16*((s_ >> 2) & 1) + 4*(s_ & 3) + i
                pre[("m", 5*s_ + 1 + i)] = [f"v_lshlrev_b32 v14, 16, v{r_}", f"v_and_b32 v15, 0xffff0000, v{r_}", "v_fmac_f32 v12, v14, v14", "v_fmac_f32 v13, v15, v15"]
    if common.STAMPS:
        for c, st in ((0, 2), (1, 13), (3, 3)):
            g = A(); stamp(g, st); pre[c] = pre[c][:1] + g.l + pre[c][1:]
    pre[4] += [f"v_add_u32 v{2+t}, 0x10000, v{2+t}" for t in range(5)]
    CSB = opt("csb", 0)
    pre["G"] = opt("p1g", 1); pre["lastorder"] = (3, 0, 1, 2) if CSB else (3, 4, 0, 1, 2)
    kloop(a, ACC, WF, lambda s_: XR + 16*((s_ >> 2) & 1) + 4*(s_ & 3), 2, (0, 1, 2, 3) if CSB else (0, 4, 1, 2, 3), lambda c: (c & 3) * 16384, pre, False, [], R=8, D=opt("p1d", 5), cs=(CS, CS+4))
    stamp(a, 4)
    for i in range(0 if CSB else 2):
        a(f"""v_cvt_pk_bf16_f32 v{WF+i}, v{CS+i}, v{CS+i}
              v_and_b32 v{WF+i}, 0xffff0000, v{WF+i}
              v_sub_f32 v{WF+i}, v{CS+i}, v{WF+i}
              v_cvt_pk_bf16_f32 v{WF+i}, v{CS+i}, v{WF+i}""")
    if not CSB:
        a(f"""s_lshl_b32 s26, s{sW}, 7
              v_add_u32 v11, s26, v10
              s_mov_b64 exec, 0xffff
              ds_write2_b32 v11, v{WF}, v{WF+1} offset1:16
              s_mov_b64 exec, -1""")
    a(f"""v_mov_b32 v14, v{ACC+48+12}
          v_mov_b32 v15, v{ACC+48+12}
          v_add_f32 v13, v12, v13
          v_permlane32_swap_b32 v15, v14
          v_mov_b32 v12, v13
          v_permlane32_swap_b32 v13, v12
          v_add_f32 v13, v13, v12
          v_mul_f32 v12, {fb(1/448)}, v14
          v_mul_f32 v13, {fb(1/448)}, v13
          v_fma_f32 v13, -v12, v12, v13
          v_max_f32 v13, 0, v13""")
    bf16r(a, 15, "v13")
    a(f"""v_add_f32 v9, {fb(EPS)}, v13
          v_add_f32 v15, {fb(EPS)}, v15
          v_mov_b32 v14, {fb(EPS)}
          v_fma_f32 v9, v9, v14, v13""")
    bf16r(a, 15, "v15")
    a(f"""v_sqrt_f32 v9, v9
          v_sqrt_f32 v15, v15
          s_waitcnt lgkmcnt(0)
          s_barrier                              ; barrier 7""")
    stamp(a, 14)
    for t in range(4): a(f"ds_read_b32 v{WF+4*t}, v10 offset:{128*t}")
    mu_frag(a, 12, f"s{sLO}", M0_, M1_)
    a(f"v_mov_b32 v14, s{sLO}")
    bf16r(a, 15, "v15")
    bf16r(a, 10, "v12")
    a(f"""v_bfi_b32 v{DEN}, v14, v9, v15
          v_rcp_f32 v{R}, v{DEN}
          s_waitcnt lgkmcnt(0)""")
    mean_fix(a, ACC, WF, lambda t: WF + 4*t, M0_, M1_)
    a(f"""
          s_lshl_b32 s3, s{sT}, 8
          s_add_u32 s3, s3, {ST1}
          s_cmp_eq_u32 s{sCB}, 0
          s_cselect_b32 s3, s3, {OOB}
          v_lshlrev_b32 v8, 3, v1
          v_and_b32 v8, 0xff, v8
          v_mov_b32 v11, v{R}
          buffer_store_dwordx2 v[10:11], v8, {s(WD,4)}, s3 offen{SC}""")
    a(f"""v_lshrrev_b32 v8, 5, v1
          v_add_u32 v8, -1, v8
          s_cmp_eq_u32 s{sTY}, 3
          s_cbranch_scc1 P1_h
          s_cmp_eq_u32 s{sTY}, 0
          s_cselect_b32 s3, {fb(QSCALE)}, 1.0
          v_mul_f32 v10, s3, v{R}
          v_mul_u32_u24 v12, 12, v1
          s_lshl_b32 s3, s{sSUB}, 8
          s_add_u32 s3, s3, s{sT}
          s_movk_i32 s27, 3584
          s_cmp_eq_u32 s{sTY}, 0
          s_cselect_b32 s27, 1792, s27
          s_mul_i32 s3, s3, s27
          s_lshl_b32 s26, s27, 6
          s_cselect_b32 s27, {QF}, {KVF}
          s_add_u32 s3, s3, s27
          s_cmp_eq_u32 s{sTY}, 2
          s_cbranch_scc1 P1_v""".replace("s_lshl_b32 s26, s27, 6", f"s_lshl_b32 s26, s27, 6\ns_mov_b32 s27, {KVF}\ns_cmp_eq_u32 s{sTY}, 0").replace(f"s_cselect_b32 s27, {QF}, {KVF}", f"s_cselect_b32 s27, {QF}, s27"))
    def pack(t):
        for i in range(8): a(f"v_pk_mul_f32 {v(ACC+16*t+2*i,2)}, {v(ACC+16*t+2*i,2)}, v[10:11] op_sel_hi:[1,0]")
        for i in range(8): a(f"v_cvt_pk_bf16_f32 v{XR+8*t+i}, v{ACC+16*t+2*i}, v{ACC+16*t+2*i+1}")
    def put(t, isv=False):
        if isv:
            for f_ in range(2): a(f"buffer_store_dwordx4 {v(XR+8*t+4*f_,4)}, v13, {s(WD,4)}, s3 offen offset:{1792 + f_*896}{SC}")
        else:
            a(f"buffer_store_dwordx4 {v(XR+8*t,4)}, v0, {s(WD,4)}, s3 offen{SC}")
            a(f"v_permlane32_swap_b32 v{XR+8*t+6}, v{XR+8*t+7}")
            a(f"buffer_store_dwordx3 {v(XR+8*t+4,3)}, v12, {s(WD,4)}, s3 offen offset:1024{SC}")
        if t < 3: a("s_add_u32 s3, s3, s26")
    for t in range(4): pack(t); put(t)
    a("s_branch P1_done")
    a.label("P1_v")
    a(f"""s_mul_i32 s27, s{sW}, 9216
          s_add_u32 s27, s27, 0x10000
          v_and_b32 v9, 31, v1
          v_mul_u32_u24 v9, 72, v9
          v_lshrrev_b32 v14, 5, v1
          v_lshl_add_u32 v9, v14, 3, v9
          v_add_u32 v9, s27, v9
          v_bfe_u32 v15, v1, 2, 2
          v_lshl_add_u32 v14, v14, 2, v15
          v_mul_u32_u24 v14, 72, v14
          v_bfe_u32 v15, v1, 4, 1
          v_lshl_add_u32 v14, v15, 5, v14
          v_and_b32 v15, 3, v1
          v_lshl_add_u32 v14, v15, 3, v14
          v_add_u32 v14, s27, v14
          v_lshrrev_b32 v15, 5, v1
          v_lshlrev_b32 v15, 6, v15
          v_sub_u32 v13, v0, v15
          v_and_b32 v15, 31, v1
          v_cmp_gt_u32 vcc, 28, v15
          v_mov_b32 v15, {OOB}
          v_cndmask_b32 v13, v15, v13, vcc""")
    for t in range(5):
        if t < 4:
            pack(t)
            for j in range(4): a(f"ds_write_b64 v9, {v(XR+8*t+2*j,2)} offset:{t*2304 + 16*j}")
        if t:
            a(f"s_waitcnt lgkmcnt({4 if t < 4 else 0})")
            put(t - 1, True)
        if t < 4:
            a("s_waitcnt lgkmcnt(0)")
            for f_ in range(2):
                for e in range(2): a(f"ds_read_b64_tr_b16 {v(XR+8*t+4*f_+2*e,2)}, v14 offset:{t*2304 + (16*f_+8*e)*72}")
    a("s_branch P1_done")
    a.label("P1_h")
    gelu_consts(a, R, DEN)
    a(f"""s_mul_i32 s3, s{sT}, 28
          s_mul_i32 s27, s{sSUB}, 7
          s_add_u32 s3, s3, s27
          s_lshl_b32 s3, s3, 10
          s_add_u32 s3, s3, {HF}
          s_add_u32 s27, s3, 4096""")
    for f in range(7):
        gelu_pairs(a, [ACC + 8*f + 2*i for i in range(4)], 10, 12, 14, WF)
        for i in range(4): a(f"v_cvt_pk_bf16_f32 v{XR+4*f+i}, v{ACC+8*f+2*i}, v{ACC+8*f+2*i+1}")
        a(f"buffer_store_dwordx4 {v(XR+4*f,4)}, v0, {s(WD,4)}, s{3 if f < 4 else 27} offen offset:{(f&3)*1024}{SC}")
    a.label("P1_done")
    garrive(a, C_X, 1)
    stamp(a, 15)
    a(f"""s_waitcnt vmcnt(0)
          s_lshl_b32 s3, s{sCB}, 4
          s_add_u32 s3, s3, s{sRB}
          s_lshl_b32 s3, s3, 7
          s_add_u32 s3, s3, {FP}""")
    signal(a, 3, C_S1, last=7)
    stamp(a, 5)

O_, Q_, S_, E_, P_, KV = 16, 80, 112, 144, 152, 160
sH, sQB, sKV, sN, sMA, sKB = 44, 45, 50, 51, 47, 52
AR_BASE = 112 * 1024

def unit(a, n, q, extra, qk=True):
    Sc, Sn = S_ + 16*(q & 1), S_ + 16*((q+1) & 1)
    nn, nq = (n, q+1) if q < 3 else ((n+1) & 3, 0)
    pn, pq = (n, q-1) if q > 0 else ((n-1) & 3, 3)
    K, Vc, Vp = KV + 16*nn, KV + 16*n + 8, KV + 16*pn + 8
    e = lambda i: a(f"v_exp_f32 v{E_+(i&7)}, v{Sc+i}")
    c = lambda k: a(f"v_cvt_pk_bf16_f32 v{P_+k}, v{E_+((2*k)&7)}, v{E_+((2*k+1)&7)}")
    for x in extra.get(0, []): a(x)
    if qk: a(f"{MF} {v(Sn,16)}, {v(K,4)}, {v(Q_+8*nq,4)}, 0")
    e(0); c(6); e(1); c(7); e(2); e(3)
    a(f"{MF} {v(O_+16*pq,16)}, {v(Vp+4,4)}, {v(P_+4,4)}, {v(O_+16*pq,16)}")
    for x in extra.get(1, []): a(x)
    e(4); c(0); e(5); c(1); e(6); e(7)
    if qk: a(f"{MF} {v(Sn,16)}, {v(K+4,4)}, {v(Q_+8*nq+4,4)}, {v(Sn,16)}")
    for x in extra.get(2, []): a(x)
    e(8); c(2); e(9); c(3); e(10); e(11)
    a(f"{MF} {v(O_+16*q,16)}, {v(Vc,4)}, {v(P_,4)}, {v(O_+16*q,16)}")
    e(12); c(4); e(13); c(5); e(14); e(15)

sKE, sVM, VV = 53, 54, 224
def kvload(slot, f):
    r = KV + 16*slot + 4*f
    if f == 0: return f"buffer_load_dwordx4 {v(r,4)}, v0, {s(WD,4)}, s{sKV} offen{SC}"
    if f == 1: return f"buffer_load_dwordx3 {v(r,3)}, v4, {s(WD,4)}, s{sKV} offen offset:1024{SC}"
    L = f"buffer_load_dwordx4 {v(r,4)}, v{VV}, {s(WD,4)}, s{sKV} offen offset:{1792 + 896*(f - 2)}{SC}"
    return f"s_mov_b64 exec, {s(sVM,2)}\n" + L if f == 2 else L + "\ns_mov_b64 exec, -1"
def kvnext():
    return [f"s_add_u32 s{sKV}, s{sKV}, 3584", f"s_cmp_eq_u32 s{sKV}, s{sKE}", f"s_cselect_b32 s{sKV}, s{sKB}, s{sKV}"]

EARLY = opt("early", 1)
def att(a):
    if p1stamps():
        global stamp
        stamp = lambda *x: None
    a(f"""s_and_b32 s26, s2, 7
          s_lshr_b32 s27, s2, 3
          s_lshl_b32 s{sH}, s26, 1
          s_and_b32 s3, s27, 1
          s_add_u32 s{sH}, s{sH}, s3
          s_lshr_b32 s{sQB}, s27, 1
          s_mul_i32 s{sMA}, s{sW}, 11136
          s_add_u32 s{sMA}, s{sMA}, {AR_BASE}
          s_lshl_b32 s{sKB}, s{sH}, 2
          s_add_u32 s{sKB}, s{sKB}, s{sW}
          s_mul_i32 s{sKB}, s{sKB}, {16*3584}
          s_add_u32 s{sKB}, s{sKB}, {KVF}
          s_add_u32 s{sKE}, s{sKB}, {16*3584}
          s_and_b32 s27, s{sQB}, {3 if EARLY else 15}
          s_mul_i32 s3, s27, {4*3584 if EARLY else 3584}
          s_add_u32 s{sKV}, s{sKB}, s3
          s_mov_b32 s{sVM}, 0x0fffffff
          s_mov_b32 s{sVM+1}, 0x0fffffff
          v_mul_u32_u24 v4, 12, v1
          v_lshrrev_b32 v11, 5, v1
          v_lshlrev_b32 v12, 6, v11
          v_sub_u32 v{VV}, v0, v12
          v_lshlrev_b32 v11, 4, v11
          v_mov_b32 v12, 0x3f803f80
          v_lshrrev_b32 v13, v11, v12
          v_and_b32 v11, 31, v1
          v_cmp_eq_u32 vcc, 28, v11
          v_cndmask_b32 v12, 0, v12, vcc
          s_lshr_b32 s3, s{sH}, 2
          s_lshl_b32 s3, s3, 4
          v_and_b32 v10, 3, v1
          s_lshl_b32 s26, s{sW}, 2
          s_add_u32 s26, s26, s3
          s_add_u32 s26, s26, 64
          v_add_u32 v10, s26, v10
          v_bfe_u32 v11, v1, 2, 1
          v_lshl_add_u32 v10, v11, 6, v10
          s_add_u32 s3, s3, s{sQB}
          v_writelane_b32 v10, s3, 8             ; lane 8: Q
          v_lshlrev_b32 v10, 7, v10
          v_add_u32 v10, {FP}, v10""")
    for i in range(64): a(f"v_mov_b32 v{O_+i}, 0")
    for i in range(8): a(f"v_mov_b32 v{E_+i}, 0\nv_mov_b32 v{P_+i}, 0")
    for n in range(4):
        a(f"v_mov_b32 v{KV+16*n+7}, v13\nv_mov_b32 v{Q_+8*n+7}, 0")
        for i in range(8): a(f"v_mov_b32 v{KV+16*n+8+i}, v12")
    if EARLY:
        a(f"""v_and_b32 v11, 7, v1
              v_lshlrev_b32 v11, 2, v11
              ds_bpermute_b32 v2, v11, v10
              s_lshl_b32 s27, s27, 2
              v_mov_b32 v11, s27
              v_writelane_b32 v11, 32, 2
              s_add_u32 s27, s27, 16
              v_writelane_b32 v11, s27, 1
              ds_bpermute_b32 v10, v11, v10
              s_waitcnt lgkmcnt(0)""")
        poll(a, 10, 3)
    else: poll(a, 10, 9)
    if opt("ayield", 1): gwait(a, C_X, 4, field=0)
    stamp(a, 8)
    for j in range(4):
        a(f"""s_add_u32 s3, s{sW}, {j + 1}
              s_and_b32 s3, s3, 3
              s_lshl_b32 s26, s{sH}, 4
              s_add_u32 s26, s26, s{sQB}
              s_lshl_b32 s26, s26, 2
              s_add_u32 s3, s3, s26
              s_mul_i32 s3, s3, 1792
              s_add_u32 s3, s3, {QF}
              buffer_load_dwordx4 {v(Q_+8*j,4)}, v0, {s(WD,4)}, s3 offen{SC}
              buffer_load_dwordx3 {v(Q_+8*j+4,3)}, v4, {s(WD,4)}, s3 offen offset:1024{SC}""")
        if j == 0:
            for f in range(4): a(kvload(0, f))
            for x in kvnext(): a(x)
    for n in range(1, 3):
        for f in range(4): a(kvload(n, f))
        for x in kvnext(): a(x)
    a(f"""v_add_u32 v10, s{sMA}, v0
          v_lshlrev_b32 v14, 2, v1
          v_add_u32 v14, {3584 - 128}, v14
          v_add_u32 v15, s{sMA}, v14
          v_mov_b32 v8, {CNT + C_B}""")
    for j in range(3):
        a(f"""s_sub_u32 s26, s{sW}, {j + 1}
              s_and_b32 s26, s26, 3
              s_mul_i32 s26, s26, 11136
              s_add_u32 s26, s26, {AR_BASE}
              v_add_u32 v{11+j}, s26, v0
              v_add_u32 v{5+j}, s26, v14""")
    a(f"s_mov_b32 s{sN}, 4\ns_waitcnt vmcnt(14)")
    a(f"{MF} {v(S_,16)}, {v(KV,4)}, {v(Q_,4)}, 0")
    a(f"{MF} {v(S_,16)}, {v(KV+4,4)}, {v(Q_+4,4)}, {v(S_,16)}")
    a(f"s_setprio {opt('pa2', 0)}\ns_waitcnt vmcnt(8)")
    stamp(a, 9)
    a(".p2align 3")
    a.label("AT_loop")
    for n in range(4):
        ld = (n + 3) & 3
        kvl = kvload if not opt("nokv", 0) else (lambda a_, b_: "s_nop 0")
        if opt("kvprio", 1):
            e0 = {1: ["s_setprio 3", kvl(ld, 0), kvl(ld, 1)], 2: [kvl(ld, 2), kvl(ld, 3), f"s_setprio {opt('pa2', 0)}"]}
            if opt("kvprio", 1) == 2: e0 = {1: [kvl(ld, 0), kvl(ld, 1)], 2: [kvl(ld, 2), kvl(ld, 3)]}
            if EARLY and n == 0: e0[1].insert(1 if opt("kvprio", 1) == 1 else 0, f"buffer_load_dword v3, v2, {s(WD,4)}, 0 offen sc1")
            if EARLY and n == 1:
                e0[0] = ["s_waitcnt vmcnt(4)", "v_cmp_eq_u32 vcc, 0, v3"]
                e0[1] = ["s_cbranch_vccnz AT_late", "AT_ok:"] + e0[1]
            unit(a, n, 0, e0)
            e1 = {1: kvnext() if n == 0 or not EARLY else kvnext()[:1]}
            if n == 0: e1[2] = [f"s_cmp_eq_u32 s{sN}, 1", f"s_cselect_b32 s{sKV}, {OOB}, s{sKV}"]
            if n == 3: e1[0] = ["ds_read_b32 v9, v8"]; e1[2] = [f"s_cmp_eq_u32 s{sN}, 1"]
            unit(a, n, 1, e1)
            if n == 3: a("s_cbranch_scc1 AT_tail")
            unit(a, n, 2, {})
            ex = {0: ["s_waitcnt vmcnt(8)"], 2: []}
        else:
            unit(a, n, 0, {2: [kvl(ld, 0)]})
            unit(a, n, 1, {1: [kvl(ld, 1)]})
            unit(a, n, 2, {1: [kvl(ld, 2)]})
            ex = {0: ["s_waitcnt vmcnt(7)"], 1: [kvl(ld, 3)], 2: kvnext()}
        if n == 3: ex[2] += [f"s_sub_u32 s{sN}, s{sN}, 1"]
        unit(a, n, 3, ex)
    a("s_branch AT_loop")
    a.label("AT_tail")
    BL = 3712
    a(f"""s_setprio {opt('pa1', 2)}
          s_waitcnt lgkmcnt(0)
          v_readfirstlane_b32 s3, v9
          s_cmp_ge_u32 s3, 8
          s_cbranch_scc1 AT_free""")
    gwait(a, C_B, 8)
    a.label("AT_free")
    wr = lambda j, i: f"ds_write_b128 v10, {v(O_+16*j+4*i,4)} offset:{j*BL + i*1024}"
    unit(a, 3, 2, {0: [wr(0, 0)], 1: [wr(0, 1)], 2: [wr(0, 2)]})
    unit(a, 3, 3, {0: [wr(1, 0)], 1: [wr(1, 1)], 2: [wr(1, 2)]}, qk=False)
    a(f"v_cvt_pk_bf16_f32 v{P_+6}, v{E_+4}, v{E_+5}\nv_cvt_pk_bf16_f32 v{P_+7}, v{E_+6}, v{E_+7}")
    for i in range(3): a(wr(2, i))
    a(f"{MF} {v(O_+48,16)}, {v(KV+48+12,4)}, {v(P_+4,4)}, {v(O_+48,16)}")
    stamp(a, 10)
    a("s_mov_b64 exec, 0xffffffff")
    for j in range(3): a(wr(j, 3))
    a("s_not_b64 exec, exec")
    for j in range(3): a(f"ds_write_b32 v15, v{O_+16*j+12} offset:{j*BL}")
    a("s_mov_b64 exec, -1")
    gbar(a, C_A, 4)
    a("s_mov_b64 exec, 0xffffffff")
    for j in range(3): a(f"ds_read_b128 {v(O_+16*j+12,4)}, v{11+j} offset:{j*BL + 3072}")
    a("s_not_b64 exec, exec")
    for j in range(3): a(f"ds_read_b32 v{O_+16*j+12}, v{5+j} offset:{j*BL}")
    a("s_mov_b64 exec, -1")
    for j in range(3):
        for i in range(3): a(f"ds_read_b128 {v(O_+16*j+4*i,4)}, v{11+j} offset:{j*BL + i*1024}")
    OT_, QT_ = O_ + 48, Q_ + 24
    for j in range(3):
        a(f"s_waitcnt lgkmcnt({3*(2-j)})")
        for i in range(16): a(f"v_add_f32 v{OT_+i}, v{OT_+i}, v{O_+16*j+i}")
    a(f"""v_mov_b32 v10, v{OT_+12}
          v_mov_b32 v11, v{OT_+12}
          v_permlane32_swap_b32 v11, v10
          v_mov_b32 v12, v10
          v_mov_b32 v13, 0""")
    for i in range(16): a(f"v_fma_f32 v{12+(i&1)}, v{OT_+i}, 0, v{12+(i&1)}")
    a(f"""v_add_f32 v12, v12, v13                ; row sum, or NaN if any accumulator is not finite
          v_cmp_le_f32 vcc, {fb(2.0**-80)}, v12
          v_cmp_ge_f32 s[26:27], s59, v12
          s_and_b64 vcc, vcc, s[26:27]
          s_cmp_eq_u64 vcc, -1
          s_cbranch_scc0 AT_slow""".replace("s59", "s59"))
    a.label("AT_norm")
    a(f"""v_rcp_f32 v10, v10
          v_lshrrev_b32 v8, 5, v1
          v_add_u32 v8, -1, v8""")
    for i in range(16): a(f"v_mul_f32 v{OT_+i}, v{OT_+i}, v10")
    for i in range(8): a(f"v_cvt_pk_bf16_f32 v{P_+i}, v{OT_+2*i}, v{OT_+2*i+1}")
    a(f"""v_and_b32 v{P_+6}, v8, v{P_+6}
          v_and_b32 v{P_+7}, v8, v{P_+7}
          s_lshl_b32 s26, s{sQB}, 2
          s_add_u32 s26, s26, s{sW}
          s_lshl_b32 s26, s26, 4
          s_add_u32 s26, s26, s{sH}
          s_lshl_b32 s3, s26, 11
          s_add_u32 s3, s3, {OF}
          buffer_store_dwordx4 {v(P_,4)}, v0, {s(WD,4)}, s3 offen{SC}
          buffer_store_dwordx4 {v(P_+4,4)}, v0, {s(WD,4)}, s3 offen offset:1024{SC}
          s_lshl_b32 s3, s{sQB}, 4
          s_add_u32 s3, s3, s{sH}
          s_lshl_b32 s3, s3, 7
          s_add_u32 s3, s3, {FA}
          s_waitcnt vmcnt(0)""")
    signal(a, 3, 20)
    stamp(a, 11)
    stamp_out2(a)
    a("s_endpgm")
    if EARLY:
        a.label("AT_late")
        poll(a, 2, 8)
        a("s_branch AT_ok")
    a.label("AT_slow")
    a(f"""s_waitcnt vmcnt(0)
          s_mul_i32 s{sKB}, s{sH}, {64*3584}
          s_add_u32 s{sKB}, s{sKB}, {KVF}
          s_mov_b32 s{sKV}, s{sKB}
          s_mov_b32 s{sN}, 64
          v_mov_b32 v12, 0xff800000""")
    a.label("AT_s1")
    a(kvload(0, 0)); a(kvload(0, 1))
    a(f"""s_add_u32 s{sKV}, s{sKV}, 3584
          s_waitcnt vmcnt(0)
          {MF} {v(S_,16)}, {v(KV,4)}, {v(QT_,4)}, 0
          {MF} {v(S_,16)}, {v(KV+4,4)}, {v(QT_+4,4)}, {v(S_,16)}""")
    for i in range(8): a(f"v_max3_f32 v12, v12, v{S_+2*i}, v{S_+2*i+1}")
    a(f"""s_sub_u32 s{sN}, s{sN}, 1
          s_cmp_lg_u32 s{sN}, 0
          s_cbranch_scc1 AT_s1
          v_mov_b32 v13, v12
          v_permlane32_swap_b32 v12, v13
          v_max_f32 v12, v12, v13
          v_cvt_pk_bf16_f32 v13, -v12, -v12
          v_and_b32 v13, 0xffff0000, v13
          v_sub_f32 v12, -v12, v13
          v_cvt_pk_bf16_f32 v14, v12, v12
          v_and_b32 v14, 0xffff0000, v14
          v_sub_f32 v12, v12, v14
          v_cvt_pk_bf16_f32 v13, v13, v14
          v_cvt_pk_bf16_f32 v14, v12, 0
          v_lshrrev_b32 v8, 5, v1
          v_add_u32 v8, -1, v8
          v_bfi_b32 v{QT_+7}, v8, v13, v14
          s_mov_b32 s{sKV}, s{sKB}
          s_mov_b32 s{sN}, 64""")
    for i in range(16): a(f"v_mov_b32 v{OT_+i}, 0")
    a.label("AT_s2")
    for f in range(4): a(kvload(0, f))
    a(f"""s_add_u32 s{sKV}, s{sKV}, 3584
          s_waitcnt vmcnt(0)
          {MF} {v(S_,16)}, {v(KV,4)}, {v(QT_,4)}, 0
          {MF} {v(S_,16)}, {v(KV+4,4)}, {v(QT_+4,4)}, {v(S_,16)}""")
    for i in range(16): a(f"v_exp_f32 v{S_+i}, v{S_+i}")
    for i in range(8): a(f"v_cvt_pk_bf16_f32 v{P_+i}, v{S_+2*i}, v{S_+2*i+1}")
    a(f"""{MF} {v(OT_,16)}, {v(KV+8,4)}, {v(P_,4)}, {v(OT_,16)}
          {MF} {v(OT_,16)}, {v(KV+12,4)}, {v(P_+4,4)}, {v(OT_,16)}
          s_sub_u32 s{sN}, s{sN}, 1
          s_cmp_lg_u32 s{sN}, 0
          s_cbranch_scc1 AT_s2
          v_mov_b32 v10, v{OT_+12}
          v_mov_b32 v11, v{OT_+12}
          v_permlane32_swap_b32 v11, v10
          s_branch AT_norm""")

B_G3_DONE = 24
G2_BASE = 0
H1 = 56 * 1024
W3B = 60 * 1024
XCH3 = CNT + 1024
RES = 224

def p1b(a):
    bst = (lambda i: common.stamp(a, i)) if p1stamps() else (lambda i: None)
    sRB, sCB, sT = 44, 45, 48
    sROW, sWO, sK, sCOL = 49, 50, 51, 52
    WB = 0x1C000
    XT = 232
    def codepf():
        nseg = opt("nseg", 5)
        a(f"""s_lshr_b32 s57, s2, 3
              s_cmp_ge_u32 s57, {nseg}
              s_cbranch_scc1 PB_nopf
              s_cmp_lg_u32 s{sW}, 0
              s_cbranch_scc1 PB_nopf
              s_getpc_b64 s[62:63]""")
        a.label("PB_pc")
        a(f"""s_lshl_b32 s57, s57, 13
              s_sub_u32 s62, s62, PB_pc-K_start
              s_subb_u32 s63, s63, 0
              s_add_u32 s62, s62, s57
              s_addc_u32 s63, s63, 0
              v_lshlrev_b32 v8, 7, v1
              v_add_u32 v9, s57, v8
              v_cmp_gt_u32 vcc, K_last-K_start, v9
              v_mov_b32 v11, s63
              v_add_co_u32 v10, s[98:99], s62, v8
              v_addc_co_u32 v11, s[98:99], 0, v11, s[98:99]
              s_and_saveexec_b64 s[98:99], vcc
              s_cbranch_execz PB_pfx
              global_load_dword v16, v[10:11], off""")
        a.label("PB_pfx")
        a("s_mov_b64 exec, -1")
        a.label("PB_nopf")
    if opt("codepf", 1) == 1: codepf()
    a(f"""s_and_b32 s26, s2, 1
          s_lshl_b32 s26, s26, 3
          s_lshr_b32 s3, s2, 5
          s_add_u32 s26, s26, s3
          s_bfe_u32 s{sK}, s2, 0x20003
          s_lshl_b32 s54, s{sK}, 1
          s_add_u32 s54, s54, s3
          s_mul_i32 s3, s54, 37
          s_lshr_b32 s3, s3, 8
          s_mul_i32 s3, s3, 7
          s_sub_u32 s54, s54, s3
          s_mul_i32 s54, s54, {opt("rotw", 1)}
          s_bfe_u32 s3, s2, 0x20001
          s_lshl_b32 s3, s3, 2
          s_add_u32 s3, s3, s{sK}
          s_lshl_b32 s3, s3, 2
          s_add_u32 s3, s3, s{sW}
          s_lshl_b32 s56, s3, 5
          s_and_b32 s27, s26, 3
          s_lshr_b32 s3, s27, 1
          s_add_u32 s3, s3, 1
          s_sub_u32 s57, 0, s3
          s_bitcmp1_b32 s27, 0
          s_cselect_b32 s3, s3, s57
          s_movk_i32 s{sROW}, 2688
          s_cmp_ge_u32 s26, 12
          s_cselect_b32 s3, s3, 0
          s_cselect_b32 s{sROW}, 896, s{sROW}
          s_cselect_b32 s27, s27, s26
          s_add_u32 s56, s56, s3
          s_mul_i32 s{sCOL}, s27, 224
          v_lshrrev_b32 v8, 3, v1
          v_add_u32 v8, s56, v8
          s_movk_i32 s3, 896
          v_mul_i32_i24 v8, s3, v8
          v_bfe_u32 v9, v1, 4, 2
          v_and_b32 v10, 7, v1
          v_xor_b32 v9, v9, v10
          v_lshl_add_u32 v2, v9, 4, v8
          v_xor_b32 v9, 4, v9
          v_lshl_add_u32 v3, v9, 4, v8
          v_add_u32 v3, {8*896}, v3
          v_add_u32 v4, {16*896}, v2
          v_add_u32 v5, {16*896}, v3
          v_lshrrev_b32 v8, 4, v1
          v_lshlrev_b32 v9, 2, v8
          v_sub_u32 v9, v1, v9
          v_and_b32 v9, 15, v9
          v_mul_u32_u24 v8, s{sROW}, v8
          v_lshl_add_u32 v7, v9, 4, v8
          v_cmp_gt_u32 s[96:97], 14, v9
          s_lshl_b32 s{sK}, s54, 6
          s_lshl_b32 s54, s54, 7
          s_lshl_b32 s3, s{sW}, 4
          s_mul_i32 s3, s3, s{sROW}
          s_add_u32 s{sCOL}, s{sCOL}, s3
          s_lshl_b32 s53, s{sROW}, 2
          s_lshl_b32 s55, s{sW}, 12
          s_waitcnt lgkmcnt(0)
          s_cmp_ge_u32 s26, 12
          s_cselect_b32 s{WA}, s12, s6
          s_cselect_b32 s{WA+1}, s13, s7
          s_mul_i32 s{WA+2}, s{sROW}, 448
          s_mov_b32 s{WA+3}, 0x20000""")
    srd(a, XS, 4, 2048 * 896)
    q = []
    gap = []
    def ride(n):
        for x in gap[:n]: a(x)
        del gap[:n]
    def xchunk(c):
        for g in range(4):
            a(f"s_add_u32 m0, s55, {XB + (c % 3)*16384 + g*1024}")
            a(f"s_nop 0\nbuffer_load_dwordx4 v{2+g}, {s(XS,4)}, s54 offen lds")
            ride(9)
        wrapinc(a, 54, 128, 896)
        q.extend([c] * 4)
    def wchunk(c):
        a(f"""s_mul_i32 s{sWO}, s{sK}, s{sROW}
              s_add_u32 s{sWO}, s{sWO}, s{sCOL}""")
        wrapinc(a, sK, 64, 448)
        a("s_mov_b64 exec, s[96:97]")
        for u in range(4):
            a(f"s_add_u32 m0, s55, {c*16384 + u*1024}")
            if u: a(f"s_add_u32 s{sWO}, s{sWO}, s53")
            a(f"buffer_load_dwordx4 v7, {s(WA,4)}, s{sWO} offen lds")
        a("s_mov_b64 exec, -1")
        q.extend([c] * 4)
    srd(a, WD, 24, WS_END)
    a(f"""s_lshl_b32 s61, s{sW}, 8
          s_or_b32 s61, s61, s2
          v_mov_b32 v22, 0
          s_cmp_ge_u32 s61, {NINIT}
          s_cbranch_scc1 PB_noinit
          v_lshlrev_b32 v13, 7, v1
          s_lshl_b32 s3, s2, 13
          s_add_u32 s3, s3, {FLG}
          buffer_store_dword v22, v13, {s(WD,4)}, s3 offen{SC}""")
    a.label("PB_noinit")
    bst(11)
    xchunk(0); wchunk(0)
    if opt("codepf", 1) == 2: codepf()
    if opt("tlb", 0):
        a(f"""v_lshlrev_b32 v23, {opt("tlb", 0)}, v1
              v_add_u32 v23, {0x1fff80 if opt("tlb", 0) == 21 else 0xff80}, v23
              s_lshl_b32 s3, s{sW}, {opt("tlb", 0) + 6}
              buffer_load_dword v24, v23, {s(WD,4)}, s3 offen sc1""")
        q.append(1)
    a(f"""v_lshrrev_b32 v8, 1, v1
          v_and_b32 v9, 15, v8
          v_lshrrev_b32 v10, 4, v8
          v_lshlrev_b32 v10, 14, v10
          v_lshl_add_u32 v10, v9, 8, v10
          v_and_b32 v9, 3, v8
          v_lshlrev_b32 v9, 2, v9
          v_and_b32 v8, 1, v1
          v_add3_u32 v9, v9, v8, 14
          v_and_b32 v9, 15, v9
          v_lshl_add_u32 v10, v9, 4, v10
          v_add_u32 v10, s55, v10
          v_add_u32 v11, 0x10000, v10
          v_mov_b32 v12, 0x3f803f80
          v_mov_b32 v13, v12
          v_mov_b32 v14, v12
          v_mov_b32 v15, v12
          ds_write_b128 v10, v[12:15]
          ds_write_b128 v10, v[12:15] offset:32768
          ds_write_b128 v11, v[12:15]
          s_mov_b64 exec, 0xffffffff
          ds_write_b128 v11, v[12:15] offset:32768
          s_mov_b64 exec, -1""")
    srd(a, WD, 24, WS_END)
    srd(a, WB_, 22, 256)
    xchunk(1)
    if opt("w1e", 1): wchunk(1)
    CSB = opt("csb", 0)
    if CSB:
        a("s_cmp_ge_u32 s26, 12\ns_cselect_b32 s57, 8, 7")
        tr_addrs(a, 21, "s57", 0, perm=False, which=(4,))
        a("v_mov_b32 v26, 0\nv_mov_b32 v27, 0")
    small_setup(a, sRB, sCB, sT)
    tail = A()
    tail(f"""s_lshr_b32 s{sFT}, s{sW}, 1
          s_xor_b32 s{sFT}, s{sFT}, s2
          s_and_b32 s{sFT}, s{sFT}, 1
          v_lshrrev_b32 v8, 2, v1
          v_mul_u32_u24 v8, 896, v8
          v_bfe_u32 v9, v1, 4, 2
          v_and_b32 v10, 3, v1
          v_xor_b32 v9, v9, v10
          v_lshl_add_u32 v8, v9, 4, v8
          s_mul_i32 s3, s{sT}, {32*896}
          s_lshl_b32 s26, s{sCB}, 7
          s_add_u32 s3, s3, s26
          s_lshl_b32 s26, s{sFT}, 6
          s_add_u32 s3, s3, s26
          s_add_u32 s26, s3, {16*896}
          buffer_load_dwordx4 {v(XT,4)}, v8, {s(XS,4)}, s3 offen
          buffer_load_dwordx4 {v(XT+4,4)}, v8, {s(XS,4)}, s26 offen""")
    t2, t3, t4 = A(), A(), A()
    srd(t2, WB_, 14, 448*896)
    t2(f"""v_lshlrev_b32 v8, 7, v1
           s_lshr_b32 s57, s2, 3
           s_lshl_b32 s57, s57, 2
           s_add_u32 s57, s57, s{sW}
           s_mul_i32 s3, s57, {25*128}
           s_bfm_b64 exec, 25, 0
           buffer_load_dword v16, v8, {s(WB_,4)}, s3 offen{TF}
           s_mov_b64 exec, -1""")
    srd(t3, WB_, 16, 448*3584)
    t3(f"""s_lshr_b32 s57, s2, 3
           s_lshl_b32 s57, s57, 2
           s_add_u32 s57, s57, s{sW}
           s_mul_i32 s3, s57, 49
           v_add_u32 v9, s3, v1
           v_mul_u32_u24 v10, 9363, v9
           v_lshrrev_b32 v10, 17, v10
           v_mul_u32_u24 v11, 14, v10
           v_sub_u32 v9, v9, v11
           v_mul_u32_u24 v10, 3584, v10
           v_lshl_add_u32 v9, v9, 7, v10
           s_and_b32 s3, s2, 1
           s_mul_i32 s3, s3, 1792
           s_bfm_b64 exec, 49, 0
           buffer_load_dword v17, v9, {s(WB_,4)}, s3 offen{TF}
           s_mov_b64 exec, -1""")
    srd(t4, WB_, 18, 448*3584)
    t4(f"""v_lshlrev_b32 v8, 7, v1
           s_lshl_b32 s57, s2, 2
           s_add_u32 s57, s57, s{sW}
           s_mul_i32 s3, s57, {13*128}
           s_bfm_b64 exec, 13, 0
           buffer_load_dword v18, v8, {s(WB_,4)}, s3 offen{TF}""")
    srd(t4, WB_, 8, 448*896)
    t4(f"""s_lshl_b32 s3, s57, 9
           s_mov_b64 exec, 15
           buffer_load_dword v19, v8, {s(WB_,4)}, s3 offen{TF}
           s_mov_b64 exec, -1""")
    w2, w2b = A(), A()
    w2(f"s_lshl_b32 s47, s{sW}, 11")
    small_addrs(w2, "s47")
    srd(w2, WA, 14, 448 * 896)
    w2(f"""s_mul_i32 s3, s{sW}, {112*896}
           s_lshl_b32 s26, s{sCB}, 7
           s_add_u32 s3, s3, s26
           v_add_u32 v4, s3, v7
           v_add_u32 v5, {8*896}, v4
           s_mul_i32 s50, s{sCB}, {16*896*opt("rot", 1)}""")
    for j in range(7):
        g = w2 if j < 6 else w2b
        g(f"""s_add_u32 m0, s47, {j*8192}
              s_nop 0
              buffer_load_dwordx4 v4, {s(WA,4)}, s50 offen lds
              s_add_u32 m0, s47, {j*8192 + 1024}
              s_nop 0
              buffer_load_dwordx4 v5, {s(WA,4)}, s50 offen lds""")
        if j < 6: wrapinc(g, 50, 16*896, 112*896)
    c3a, c3b = A(), A()
    srd(c3a, WB_, 16, 448*3584)
    c3a(f"""s_mul_i32 s3, s2, 2341
            s_lshr_b32 s3, s3, 16
            s_mul_i32 s57, s3, 28
            s_sub_u32 s57, s2, s57                 ; line = id % 28
            s_lshl_b32 s3, s3, 2
            s_add_u32 s3, s3, s{sW}
            s_mul_i32 s63, s57, 28
            s_add_u32 s63, s63, s3
            s_lshl_b32 s63, s63, 8
            s_add_u32 s63, s63, {CS3P}
            s_cmp_lt_u32 s2, 196
            s_cselect_b32 s63, s63, {OOB}
            s_mul_i32 s3, s3, {16*3584}
            s_lshl_b32 s57, s57, 7
            s_add_u32 s3, s3, s57
            s_add_u32 s57, s3, {8*3584}
            v_lshrrev_b32 v8, 3, v1
            v_mul_u32_u24 v8, 3584, v8
            v_and_b32 v9, 7, v1
            v_lshl_add_u32 v8, v9, 4, v8
            buffer_load_dwordx4 v[32:35], v8, {s(WB_,4)}, s3 offen
            buffer_load_dwordx4 v[36:39], v8, {s(WB_,4)}, s57 offen""")
    unpack(c3b, 40, 32, 8)
    for i in range(8): c3b(f"v_add_f32 v{40+i}, v{40+i}, v{48+i}")
    for i in range(4): c3b(f"v_permlane32_swap_b32 v{40+i}, v{44+i}")
    for i in range(4): c3b(f"v_add_f32 v{40+i}, v{40+i}, v{44+i}")
    for i in range(2): c3b(f"v_permlane16_swap_b32 v{40+i}, v{42+i}")
    for i in range(2): c3b(f"v_add_f32 v{40+i}, v{40+i}, v{42+i}")
    c3b(f"""v_and_b32 v8, 7, v1
            v_lshrrev_b32 v9, 4, v1
            v_lshlrev_b32 v8, 5, v8
            v_lshl_add_u32 v8, v9, 3, v8
            v_add_f32_dpp v40, v40, v40 row_ror:8 row_mask:0xf bank_mask:0xf
            v_add_f32_dpp v41, v41, v41 row_ror:8 row_mask:0xf bank_mask:0xf
            buffer_store_dwordx2 v[40:41], v8, {s(WD,4)}, s63 offen{SC}""")
    extras = [(4, tail, 2), (opt("c3a", 4), c3a, 2), (opt("tw2", 2), t2, 1), (opt("w2c", 8), w2, 12), (opt("tw3", 4), t3, 1), (opt("tw4", 4), t4, 2), (max(opt("w2d", 6), opt("w2c", 8)), w2b, 2)]
    bst(2)
    for c in range(7):
        last = max(i for i, x in enumerate(q) if x == c)
        a(f"s_waitcnt vmcnt({len(q) - 1 - last}) lgkmcnt(0)")
        bst((3, 12, 13, 4, 5, 14, 8)[c])
        a("s_barrier")
        if CSB:
            if c == 4: a("v_add_u32 v25, 0x10000, v25")
            for i in range(8): a(f"ds_read_b64_tr_b16 {v(56+2*i,2)}, v25 offset:{(c & 3)*16384 + (16*(i>>1) + 4*(i&1))*256}")
            gap.append("s_waitcnt lgkmcnt(0)")
            for i in range(16):
                lo = 28 + 2*(i & 1)
                gap += [f"v_lshlrev_b32 v{lo}, 16, v{56+i}", f"v_and_b32 v{lo+1}, 0xffff0000, v{56+i}",
                        f"v_add_f32 v26, v26, v{lo}", f"v_add_f32 v27, v27, v{lo+1}"]
        if c == 0:
            a(f"""s_cmp_ge_u32 s61, {NINIT}
                  s_cbranch_scc1 PB_noset
                  s_lshl_b32 s3, s2, 2
                  v_mov_b32 v9, 1
                  s_mov_b64 exec, 1
                  buffer_store_dword v9, v22, {s(WB_,4)}, s3 offen{SC}
                  s_mov_b64 exec, -1""")
            a.label("PB_noset")
        if c == 0 and not opt("w1e", 1): wchunk(1)
        if c + 2 < 7: xchunk(c + 2); wchunk(c + 2)
        if c == 3:
            srd(a, WB_, 22, 256)
            a(f"v_min_u32 v20, {NINIT - 1}, v1\nv_lshlrev_b32 v20, 2, v20\nbuffer_load_dword v21, v20, {s(WB_,4)}, 0 offen sc1"); q.append(5)
        if c == 5:
            a("v_cmp_eq_u32 vcc, 0, v21\ns_cbranch_vccz PB_clr")
            srd(a, WB_, 22, 256)
            poll(a, 20, NINIT, WB_)
            a.label("PB_clr")
        for when, code, nv in extras:
            if when == c:
                for x in code.l: a(x)
                q.extend(["c3" if code is c3a else 99] * nv)
        ride(999)
    if CSB:
        a("v_add_f32 v26, v26, v27")
        half_sum(a, 26, 27)
        cs_publish(a, 26, 28, XCH)
    a(f"""v_mov_b32 v8, {CNT}
          v_mov_b32 v12, 0
          v_mov_b32 v13, 0
          v_mov_b32 v14, 0
          v_mov_b32 v15, 0
          ds_write_b128 v8, v[12:15]
          ds_write_b128 v8, v[12:15] offset:16
          ds_write_b128 v8, v[12:15] offset:32
          s_waitcnt lgkmcnt(0)
          s_barrier                              ; barrier 7""")
    for when, code, nv in extras:
        if when == 67:
            for x in code.l: a(x)
            q.extend([99] * nv)
    a(f"""s_waitcnt vmcnt({len(q) - 1 - max(i for i, x in enumerate(q) if x == "c3")})""")
    for x in c3b.l: a(x)
    g2_setup(a)
    a(f"""s_and_b32 s3, s2, 1
          s_lshl_b32 s3, s3, 3
          s_lshr_b32 s26, s2, 5
          s_add_u32 s3, s3, s26
          s_lshl_b32 s3, s3, 4
          s_lshr_b32 s26, s{sRB}, 1
          s_add_u32 s3, s3, s26
          s_lshl_b32 s3, s3, 7
          s_add_u32 s3, s3, {FP}
          s_waitcnt vmcnt(0)""")
    signal(a, 3, C_S1, last=7)
    for when, code, nv in extras:
        if when == 7:
            for x in code.l: a(x)
    bst(9)
    gwait(a, C_X, 4, field=1)
    for when, code, nv in extras:
        if when == 8:
            for x in code.l: a(x)
    bst(10); bst(15)

def small_setup(a, sRB, sCB, sT):
    a(f"""s_bfe_u32 s26, s2, 0x20001
          s_lshl_b32 s26, s26, 2
          s_bfe_u32 s3, s2, 0x20003
          s_add_u32 s26, s26, s3
          s_lshl_b32 s{sRB}, s26, 1
          s_and_b32 s3, s2, 1
          s_add_u32 s{sRB}, s{sRB}, s3
          s_lshr_b32 s{sCB}, s2, 5
          s_and_b32 s3, s{sW}, 1
          s_lshl_b32 s{sT}, s{sRB}, 1
          s_add_u32 s{sT}, s{sT}, s3""")

def small_addrs(a, sM, natural=False):
    a(f"""v_lshrrev_b32 v8, 3, v1
          v_bfe_u32 v9, v1, 4, 1
          v_lshlrev_b32 v9, 2, v9
          v_and_b32 v10, 7, v1
          v_xor_b32 v9, v9, v10
          v_mul_u32_u24 v8, 896, v8
          v_lshl_add_u32 v7, v9, 4, v8
          v_lshrrev_b32 v8, 5, v1
          v_bfe_u32 v9, v1, 2, 2
          v_lshl_add_u32 v8, v8, 2, v9
          v_lshlrev_b32 v8, 7, v8
          v_bfe_u32 v10, v1, 4, 1
          v_bfe_u32 v11, v1, 1, 1
          v_lshl_add_u32 v10, v10, 1, v11
          v_bfe_u32 v11, v1, 3, 1
          v_lshl_add_u32 v10, v11, 2, v10
          v_lshl_add_u32 v8, v10, 4, v8
          v_and_b32 v11, 1, v1
          v_lshl_add_u32 v8, v11, 3, v8
          s_lshl_b32 s3, {"0" if natural else "s%d" % sFT}, 6
          v_xor_b32 v8, s3, v8
          v_add_u32 v2, {sM}, v8
          v_xor_b32 v8, 64, v8
          v_add_u32 v3, {sM}, v8""")

def wreads(a, WF, buf, off, va=2):
    for b in range(2):
        for e in range(2): a(f"ds_read_b64_tr_b16 {v(WF+8*buf+4*b+2*e,2)}, v{va+b} offset:{off + 8*e*128}")
def mfmas(a, ACC, WF, buf, act0, act1, first):
    for aa, ar in enumerate((act0, act1)):
        for b in range(2):
            j = 2*aa + b
            a(f"{MF} {v(ACC+16*j,16)}, {v(WF+8*buf+4*b,4)}, {v(ar,4)}, {'0' if first else v(ACC+16*j,16)}")

def g2_setup(a):
    EP = 176
    sRB, sCB, sT, sM, sK, sKA, sX = 44, 45, 48, 47, 50, 51, 53
    sRB3, sCB3, sT3, sK3, sL = 54, 55, 56, 57, 49
    ROT = opt("rot", 1)
    a(f"s_lshl_b32 s{sL}, s{sW}, 11")
    a(f"""s_add_u32 s3, s{sL}, {H1}
          v_add_u32 v10, s3, v0
          v_and_b32 v8, 31, v1
          v_lshlrev_b32 v8, 6, v8
          v_bfe_u32 v9, v1, 2, 2
          v_lshl_add_u32 v8, v9, 4, v8
          v_lshrrev_b32 v9, 5, v1
          v_lshl_add_u32 v8, v9, 3, v8
          v_add_u32 v12, s3, v8
          v_xor_b32 v13, 16, v12
          v_xor_b32 v14, 32, v12
          v_xor_b32 v15, 48, v12
          ds_write_b128 v10, v[232:235]
          ds_write_b128 v10, v[236:239] offset:1024
          s_waitcnt lgkmcnt(0)""")
    for j in range(4): a(f"ds_read_b64 {v(EP+2*j,2)}, v{12+j}")
    a(f"""s_and_b32 s26, s2, 7
          s_lshr_b32 s27, s2, 3
          s_lshr_b32 s{sRB3}, s26, 1
          s_lshl_b32 s{sRB3}, s{sRB3}, 2
          s_and_b32 s3, s27, 3
          s_add_u32 s{sRB3}, s{sRB3}, s3
          s_and_b32 s{sCB3}, s26, 1
          s_mul_i32 s{sCB3}, s{sCB3}, 7
          s_add_u32 s{sCB3}, s{sCB3}, s{sCB}
          s_lshl_b32 s{sT3}, s{sRB3}, 2
          s_add_u32 s{sT3}, s{sT3}, s{sW}
          v_lshrrev_b32 v8, 3, v1
          v_bfe_u32 v9, v1, 4, 1
          v_lshlrev_b32 v9, 2, v9
          v_and_b32 v6, 7, v1
          v_xor_b32 v9, v9, v6
          v_mul_u32_u24 v8, 3584, v8
          v_lshl_add_u32 v6, v9, 4, v8
          s_mul_i32 s3, s{sW}, {16*3584}
          s_lshl_b32 s26, s{sCB3}, 8
          s_add_u32 s3, s3, s26
          v_add_u32 v6, s3, v6                   ; W3 voffset
          s_mul_i32 s{sK3}, s{sCB}, {64*3584*ROT}""")
    srd(a, WB_, 16, 448 * 3584)
    a("s_waitcnt lgkmcnt(0)")
    a(f"""s_mul_i32 s3, s{sT}, 28
          s_mul_i32 s26, s{sW}, 7
          s_add_u32 s3, s3, s26
          s_lshl_b32 s3, s3, 10
          s_add_u32 s3, s3, {HF}
          v_add_u32 v186, s3, v0
          s_xor_b32 s3, s{sT}, 1
          s_mul_i32 s3, s3, 28
          s_add_u32 s3, s3, s26
          s_lshl_b32 s3, s3, 10
          s_add_u32 s3, s3, {HF}
          v_add_u32 v187, s3, v0
          s_mul_i32 s{sKA}, s{sCB}, {1024*ROT}
          s_mul_i32 s{sX}, s{sT}, 28
          s_lshl_b32 s3, s{sCB}, 2
          s_add_u32 s{sX}, s{sX}, s3
          s_lshl_b32 s3, s{sFT}, 1
          s_add_u32 s{sX}, s{sX}, s3
          s_lshl_b32 s{sX}, s{sX}, 10
          s_add_u32 s{sX}, s{sX}, {X1F}
          s_add_u32 s3, s{sW}, 12
          s_lshl_b32 s3, s3, 4
          s_lshr_b32 s26, s{sRB}, 1
          s_add_u32 s3, s3, s26
          s_lshl_b32 s3, s3, 7
          s_add_u32 s3, s3, {FP}
          v_mov_b32 v188, s3
          s_lshl_b32 s3, s26, 7
          s_add_u32 s3, s3, {FP}
          v_mov_b32 v189, s3
          v_lshlrev_b32 v8, 3, v1
          v_and_b32 v15, 0xff, v8
          s_lshl_b32 s27, s{sT}, 8
          s_add_u32 s27, s27, {ST1}""")
    unpack(a, RES, EP, 8)

def roleb(a):
    ACC, WF, AR, EP = 16, 80, 112, 176
    sRB, sCB, sT, sM, sK, sKA, sX = 44, 45, 48, 47, 50, 51, 53
    sRB3, sCB3, sT3, sK3, sL = 54, 55, 56, 57, 49
    ROT = opt("rot", 1)
    a("s_cmp_ge_u32 s2, 224\ns_cbranch_scc0 B_go")
    a(f"""s_mov_b64 exec, 1
          v_mov_b32 v8, {CNT}
          v_mov_b32 v9, {B_G3_DONE // 4}
          ds_add_u32 v8, v9
          s_mov_b64 exec, -1""")
    garrive(a, C_X)
    if opt("idlepf", 1):
        if opt("idlepf", 1) == 2: gwait(a, C_S1, 8)
        else:
            a(f"""s_lshl_b32 s3, s{sRB}, 10
                  s_add_u32 s3, s3, {F2}
                  v_mov_b32 v10, s3""")
            poll(a, 10, 1)
        srd(a, WA, 18, 1792 * 896)
        srd(a, WB_, 8, 448 * 896)
        a(f"""s_lshr_b32 s3, s2, 3
              s_sub_u32 s3, s3, 28
              s_lshl_b32 s3, s3, 2
              s_add_u32 s3, s3, s{sW}
              s_lshl_b32 s26, s3, 13
              s_and_b32 s27, s2, 1
              s_mul_i32 s27, s27, {896*896}
              s_add_u32 s26, s26, s27
              v_lshlrev_b32 v8, 7, v1
              s_mov_b32 s27, 7""")
        a.label("B_pf")
        a(f"""buffer_load_dword v16, v8, {s(WA,4)}, s26 offen{TF}
              s_add_u32 s26, s26, {16*8192}
              s_waitcnt vmcnt(1)
              s_sub_u32 s27, s27, 1
              s_cmp_lg_u32 s27, 0
              s_cbranch_scc1 B_pf
              s_lshl_b32 s26, s3, 13""")
        for i in range(4): a(f"buffer_load_dword v16, v8, {s(WB_,4)}, s26 offen{TF}\ns_add_u32 s26, s26, {16*8192}")
    a("s_endpgm")
    a.label("B_go")
    a(f"s_setprio {opt('pb', 1)}")
    bs2 = (lambda i: common.stamp(a, i)) if opt("g2s", 0) and common.STAMPS else (lambda i: None)
    if opt("g2s", 0):
        global stamp
        keep = stamp
        stamp = lambda a_, i, *x: keep(a_, i, *x) if i in (2, 3) else None
    def w3chunk(c):
        hf, j = (1, c) if c < 7 else (0, c - 7)
        for u in range(2):
            a(f"s_add_u32 m0, s{sL}, {hf*H1 + j*8192 + u*1024}")
            a(f"s_add_u32 s3, s{sK3}, {u*8*3584 + 128*hf}")
            a(f"buffer_load_dwordx4 v6, {s(WB_,4)}, s3 offen lds")
        wrapinc(a, sK3, 64*3584, 448*3584)
    W3A = opt("w3a", 2); W3E = max(W3A, opt("w3e", 6)); assert W3E <= 6
    if W3A:
        gwait(a, C_S1, 8)
        for c in range(W3A): w3chunk(c)
    stamp(a, 2)
    poll(a, 188, 1)
    a(f"buffer_load_dword v12, v189, {s(WD,4)}, 0 offen sc1")
    stamp(a, 3)
    for j in range(7):
        a(f"buffer_load_dwordx4 {v(AR+8*j,4)}, v186, {s(WD,4)}, s{sKA} offen{SC}")
        a(f"buffer_load_dwordx4 {v(AR+8*j+4,4)}, v187, {s(WD,4)}, s{sKA} offen{SC}")
        if j < 6: wrapinc(a, sKA, 1024, 7168)
    a("s_waitcnt vmcnt(14)\nv_cmp_eq_u32 vcc, 0, v12\ns_cbranch_vccz B_st1")
    poll(a, 189, 1)
    a.label("B_st1")
    a(f"buffer_load_dwordx2 {v(EP+8,2)}, v15, {s(WD,4)}, s27 offen{SC}")
    garrive(a, C_X)
    a(f"s_setprio {opt('pg2', 0)}")
    for s_ in range(3): wreads(a, WF, s_, s_*8192)
    NW3 = 0
    for s_ in range(7):
        a(f"s_waitcnt vmcnt({2*(6-s_) + 1 + NW3}) lgkmcnt({4*min(2, 6 - s_)})")
        mfmas(a, ACC, WF, s_ & 3, AR+8*s_, AR+8*s_+4, s_ == 0)
        if s_ + 3 < 7: wreads(a, WF, (s_+3) & 3, (s_+3)*8192)
    U = AR
    a(f"s_setprio {opt('pb', 1)}")
    stamp(a, 12)
    a(f"s_waitcnt vmcnt({NW3})")
    for i in range(16): a(f"v_sub_f32 v{U+i}, v{RES+i}, v{EP+8}")
    def region2(d, j):
        a(f"""s_xor_b32 s{d}, s{sW}, {(j >> 1) + 2*(j & 1)}
              s_mul_i32 s{d}, s{d}, 12288
              s_add_u32 s{d}, s{d}, {W3B + 48*1024}""")
    region2(sM, 0)
    reduce3(a, ACC, sM, region2, 0, 4, True)
    stamp(a, 13)
    for i in range(16): a(f"v_fma_f32 v{U+i}, v{U+i}, v{EP+9}, v{ACC+i}")
    for i in range(8): a(f"v_cvt_pk_bf16_f32 v{EP+i}, v{U+2*i}, v{U+2*i+1}")
    a(f"buffer_store_dwordx4 {v(EP,4)}, v0, {s(WD,4)}, s{sX} offen{SC}")
    a(f"buffer_store_dwordx4 {v(EP+4,4)}, v0, {s(WD,4)}, s{sX} offen offset:1024{SC}")
    unpack(a, U, EP, 8)
    for i in range(16):
        a(f"v_add_f32 v{10+(i&1)}, v{U+i}, {'0' if i < 2 else 'v%d' % (10+(i&1))}")
        a(f"v_fma_f32 v{12+(i&1)}, v{U+i}, v{U+i}, {'0' if i < 2 else 'v%d' % (12+(i&1))}")
    a("v_add_f32 v10, v10, v11\nv_add_f32 v11, v12, v13")
    half_sum(a, 10, 8); half_sum(a, 11, 9)
    a(f"""s_lshl_b32 s26, s{sCB}, 1
          s_add_u32 s26, s26, s{sFT}
          s_mul_i32 s3, s{sT}, 14
          s_add_u32 s3, s3, s26
          s_lshl_b32 s3, s3, 8
          s_add_u32 s3, s3, {ST3}
          buffer_store_dwordx2 v[10:11], v15, {s(WD,4)}, s3 offen{SC}
          s_lshl_b32 s3, s{sRB}, 3
          s_add_u32 s3, s3, s{sCB}
          s_lshl_b32 s3, s3, 7
          s_add_u32 s{sX}, s3, {F2}""")
    garrive(a, 0)
    for i in range(16): a(f"v_add_f32 v{RES+i}, v{RES+i}, v{U+i}")
    lo = lambda: a("s_setprio 0") if opt("kvprio", 1) == 2 else None
    hi = lambda: a(f"s_setprio {opt('pb', 1)}") if opt("kvprio", 1) == 2 else None
    lo()
    for c in range(W3A, W3E): w3chunk(c)
    hi()
    a(f"s_waitcnt vmcnt({2*(W3E - W3A)})")
    signal(a, sX, 12)
    stamp(a, 4)
    gwait(a, 0, 8)
    lo()
    for c in range(W3E, 14): w3chunk(c)
    hi()
    ACC, WF, XR, TMP = 16, 80, 112, 240
    CSP, CS = TMP, ACC + 48
    a(f"""s_lshl_b32 s3, s{sFT}, 6
          s_sub_u32 s26, 0, s{sL}
          v_add_u32 v2, s26, v2
          v_xor_b32 v2, s3, v2
          v_xor_b32 v3, 64, v2
          v_add_u32 v4, {H1}, v2
          v_add_u32 v5, {H1}, v3""")
    a(f"""s_lshr_b32 s3, s{sT3}, 1
          s_lshl_b32 s3, s3, 10
          s_add_u32 s3, s3, {F2}
          v_lshl_add_u32 v11, v1, 7, s3
          s_lshl_b32 s26, s{sCB3}, 1
          s_lshr_b32 s3, s{sW}, 1
          s_add_u32 s26, s26, s3
          v_add_u32 v8, -7, v1
          v_mul_u32_u24 v8, 28, v8
          v_add_u32 v8, s26, v8
          v_and_b32 v9, 1, v8
          v_lshrrev_b32 v10, 5, v8
          v_lshl_add_u32 v9, v9, 3, v10
          v_bfe_u32 v10, v8, 1, 2
          v_lshl_add_u32 v9, v9, 2, v10
          v_bfe_u32 v10, v8, 3, 2
          v_lshl_add_u32 v9, v9, 2, v10
          v_lshlrev_b32 v9, 7, v9
          v_add_u32 v9, {FP}, v9
          v_cmp_gt_u32 vcc, 7, v1
          v_cndmask_b32 v11, v9, v11, vcc
          s_mul_i32 s{sK3}, s26, {28*256}
          s_and_b32 s3, s{sW}, 1
          s_lshl_b32 s3, s3, 7
          s_add_u32 s{sK3}, s{sK3}, s3
          s_add_u32 s{sK3}, s{sK3}, {CS3P}
          v_lshrrev_b32 v10, 5, v1
          v_mul_u32_u24 v10, {14*256}, v10
          v_and_b32 v9, 31, v1
          v_lshl_add_u32 v6, v9, 2, v10
          s_mul_i32 s3, s{sT3}, {28*1024}
          s_add_u32 s3, s3, {X1F}
          v_add_u32 v7, s3, v0
          s_mul_i32 s{sKA}, s{sCB}, {4096*ROT}
          v_lshrrev_b32 v12, 5, v1
          v_mul_u32_u24 v12, {7*256}, v12
          v_and_b32 v13, 31, v1
          v_lshl_add_u32 v12, v13, 3, v12
          s_mul_i32 s27, s{sT3}, {14*256}
          s_add_u32 s27, s27, {ST3}""")
    a("s_waitcnt vmcnt(0)")
    gbar(a, 0, 12)
    CSG = opt("csg", 1)
    def cs_exchange():
        a(f"""v_cvt_pk_bf16_f32 v{WF}, v{CS}, v{CS}
              v_and_b32 v{WF}, 0xffff0000, v{WF}
              v_sub_f32 v{WF}, v{CS}, v{WF}
              v_cvt_pk_bf16_f32 v{WF}, v{CS}, v{WF}
              v_and_b32 v13, 31, v1
              v_lshlrev_b32 v13, 2, v13
              s_lshl_b32 s26, s{sW}, 7
              s_add_u32 s26, s26, {XCH3}
              v_add_u32 v13, s26, v13
              ds_write_b32 v13, v{WF}""")
        a("s_waitcnt lgkmcnt(0)")
        garrive(a, 0)
    def cs_collect():
        gwait(a, 0, 16)
        a(f"v_and_b32 v15, 31, v1\nv_lshlrev_b32 v15, 2, v15\nv_add_u32 v15, {XCH3}, v15")
        for t in range(4): a(f"ds_read_b32 v{CSP+t}, v15 offset:{128*t}")
        a("s_waitcnt lgkmcnt(0)")
    hops = lambda ts: {}
    woff = None
    poll(a, 11, 14)
    stamp(a, 5)
    STL = [WF + 24, WF + 26, WF + 28, WF + 30, TMP + 8, TMP + 10, 14]; ST = STL[0]
    LA = opt("la3", 10)
    def xl(u):
        g = A()
        g(f"buffer_load_dwordx4 {v(XR+4*u,4)}, v7, {s(WD,4)}, s{sKA} offen offset:{(u&3)*1024}{SC}")
        if (u & 3) == 3 and u < 27: wrapinc(g, sKA, 4096, 7*4096)
        return g.l
    L0 = opt("l0", 4)
    for u in range(L0):
        for x in xl(u): a(x)
        if u == 3:
            for i in range(7): a(f"buffer_load_dwordx2 {v(STL[i],2)}, v12, {s(WD,4)}, s27 offen offset:{i*256}{SC}")
            for i in range(14): a(f"buffer_load_dword v{CS+i}, v6, {s(WD,4)}, s{sK3} offen offset:{i*256}{SC}")
    M0_, M1_, R, DEN = TMP+4, TMP+5, TMP+6, TMP+7
    f = A()
    for i in range(1, 7): f(f"v_add_f32 v{ST}, v{ST}, v{STL[i]}\nv_add_f32 v{ST+1}, v{ST+1}, v{STL[i]+1}")
    f(f"v_mov_b32 v12, v{ST}\nv_mov_b32 v13, v{ST+1}")
    half_sum(f, 12, 8); half_sum(f, 13, 9)
    f(f"""v_mul_f32 v12, {fb(1/448)}, v12
          v_mul_f32 v13, {fb(1/448)}, v13
          v_fma_f32 v13, -v12, v12, v13
          v_max_f32 v13, 0, v13
          v_add_f32 v13, {fb(EPS)}, v13
          v_sqrt_f32 v{DEN}, v13
          v_rsq_f32 v{R}, v13""")
    mu_frag(f, 12, "-1", M0_, M1_)
    gelu_consts(f, R, DEN)
    f(f"""s_mul_i32 s{sK}, s{sT3}, 112
          s_lshl_b32 s27, s{sCB3}, 3
          s_add_u32 s{sK}, s{sK}, s27
          s_lshl_b32 s{sK}, s{sK}, 10
          s_add_u32 s{sK}, s{sK}, {HHF}
          s_add_u32 s27, s{sK}, 4096""")
    for i in range(1, 14): f(f"v_add_f32 v{CS}, v{CS}, v{CS+i}")
    half_sum(f, CS, 8)
    f(f"""v_cvt_pk_bf16_f32 v11, v{CS}, v{CS}
          v_and_b32 v11, 0xffff0000, v11
          v_sub_f32 v11, v{CS}, v11
          v_cvt_pk_bf16_f32 v11, v{CS}, v11
          s_lshl_b32 s26, s{sW}, 7
          s_add_u32 s26, s26, {XCH3}
          v_and_b32 v13, 31, v1
          v_lshl_add_u32 v13, v13, 2, s26""")
    NA = opt("na", 2)
    t1 = ((0,) if CSG else (0, 4)) + tuple(range(1, NA)); t2_ = tuple(range(NA, 4))
    pre = hops(t1); pre["fill0"] = 4*len(t1) + 1; pre["G"] = opt("g3g", NA)
    issued = L0
    for s_ in range(28):
        pre[("s", s_)] = [f"s_waitcnt vmcnt({issued - 1 - s_ + (21 if s_ < 4 else 0)})"]
        pre[("t", s_)] = []
        for _ in range(2):
            if issued < min(28, s_ + 1 + LA): pre[("t", s_)] += xl(issued); issued += 1
        if opt("g3s", 0) and common.STAMPS and s_ in (0, 8, 16, 27):
            g = A(); common.stamp(g, {0: 2, 8: 3, 16: 12, 27: 13}[s_]); pre[("s", s_)] += g.l
    g = A(); g("ds_write_b32 v13, v11"); garrive(g, 0); pre[("m", 28*NA - 3)] = g.l
    pre["fillend"] = 28*NA - 4
    if opt("p3h", 8): pre[("s", opt("p3h", 8))] = pre[("s", opt("p3h", 8))] + [f"s_setprio {opt('pb', 1)}"]
    a(f"s_setprio {0 if opt('p3h', 8) else opt('p3a', 1)}")
    kloop(a, ACC, WF, XR, 2, t1, woff, pre, True, f.l, R=6, D=5, cs=(CS, CSP, 32))
    a(f"s_setprio {opt('pb', 1)}")
    cs_collect()
    stamp(a, 13 if False else 14)
    def gfrag(fr, o):
        return gelu8(ACC + 8*fr, 10, 12, 14, TMP + 8, o) + [f"buffer_store_dwordx4 {v(o,4)}, v0, {s(WD,4)}, s{sK if fr < 4 else 27} offen offset:{(fr&3)*1024}{SC}"]
    assert NA == 2 or not opt("w4e", 0)
    garrive(a, 0)
    mean_fix(a, ACC, WF, lambda t: CSP + t, M0_, M1_, tuple(range(NA)))
    srd(a, WA, 18, 1792 * 896)
    a(f"""v_lshrrev_b32 v8, 3, v1
          v_bfe_u32 v9, v1, 4, 1
          v_lshlrev_b32 v9, 2, v9
          v_and_b32 v7, 7, v1
          v_xor_b32 v9, v9, v7
          v_mul_u32_u24 v8, 896, v8
          v_lshl_add_u32 v7, v9, 4, v8
          s_and_b32 s3, s2, 1
          s_mul_i32 s3, s3, 56
          s_add_u32 s3, s3, s{sW}
          s_mul_i32 s3, s3, {16*896}
          s_lshl_b32 s26, s{sCB}, 7
          s_add_u32 s3, s3, s26
          v_add_u32 v7, s3, v7                   ; W4 voffset
          s_mul_i32 s{sK3}, s{sCB}, {8*16*896*ROT}""")
    def w4step(g, j):
        for u in range(2):
            g(f"s_add_u32 m0, s{sL}, {j*8192 + u*1024}\ns_add_u32 s3, s{sK3}, {u*8*896}\nbuffer_load_dwordx4 v7, {s(WA,4)}, s3 offen lds")
        wrapinc(g, sK3, 4*16*896, 896*896)
    nov = opt("nov", 2*NA)
    pre = {"G": opt("g3b", 4 - NA)}
    W4S = opt("w4s", 3)
    W4E = opt("w4e", 0)
    g = A(); g.uid = 2000; gwait(g, 0, 20); pre[("s", W4S if W4E else 26)] = g.l
    for j in range(W4E):
        g = A(); w4step(g, j); pre[("t", W4S + (21 // W4E)*j)] = g.l
    kloop(a, ACC, WF, XR, 2, t2_, woff, pre, True,
          sum((gfrag(fr, ACC + 8*fr) for fr in range(nov)), []), R=6, D=5)
    garrive(a, 0)
    OWN = 168
    for fr in range(nov):
        for i in range(4): a(f"v_mov_b32 v{OWN+4*fr+i}, v{ACC+8*fr+i}")
    mean_fix(a, ACC, WF, lambda t: CSP + t, M0_, M1_, tuple(range(NA if NA < 4 else 0, 4)))
    for fr in range(nov, 8):
        if opt("pkg", 0):
            gelu_pairs(a, [ACC + 8*fr + 2*i for i in range(4)], 10, 12, 14, TMP + 8)
            for i in range(4): a(f"v_cvt_pk_bf16_f32 v{XR+4*fr+i}, v{ACC+8*fr+2*i}, v{ACC+8*fr+2*i+1}")
            a(gfrag(fr, XR + 4*fr)[-1])
        else:
            for x in gfrag(fr, OWN + 4*fr): a(x)
    stamp(a, 8)
    ACC, WF, AR, EP = 16, 80, 112, 176
    WOB = 0
    srd(a, WB_, 8, 448 * 896)
    a("s_and_b32 s27, s2, 1")
    gwait(a, 0, B_G3_DONE)
    NP0 = opt("np0", 4)
    lo()
    for j in range(W4E, W4E + NP0): w4step(a, j)
    hi()
    a(f"""s_lshl_b32 s3, s{sRB3}, 4
          s_add_u32 s3, s3, s{sCB3}
          s_lshl_b32 s3, s3, 7
          s_add_u32 s{sX}, s3, {F3}
          s_mul_i32 s3, s{sT3}, 112
          s_mul_i32 s26, s27, 56
          s_add_u32 s3, s3, s26
          s_lshl_b32 s3, s3, 10
          s_add_u32 s3, s3, {HHF}
          v_add_u32 v4, s3, v0
          s_add_u32 s{sKA}, s{sCB}, 1
          s_cmp_eq_u32 s{sKA}, 7
          s_cselect_b32 s{sKA}, 0, s{sKA}
          s_lshl_b32 s{sKA}, s{sKA}, 13
          s_lshl_b32 s26, s{sRB3}, 4
          s_mul_i32 s3, s27, 7
          s_add_u32 s3, s3, s26
          v_add_u32 v10, s3, v1
          v_lshlrev_b32 v10, 7, v10
          v_add_u32 v10, {F3}, v10
          s_lshl_b32 s3, s{sW}, 2
          s_add_u32 s3, s3, s26
          v_and_b32 v14, 3, v1
          v_add_u32 v14, s3, v14
          v_lshlrev_b32 v14, 7, v14
          v_add_u32 v14, {FA}, v14
          s_waitcnt vmcnt({2*NP0})""")
    signal(a, sX, 16)
    stamp(a, 9)
    lo()
    for j in range(W4E + NP0, 14): w4step(a, j)
    hi()
    a(f"""s_mul_i32 s3, s27, {896*896}
          s_mul_i32 s26, s{sW}, {96*896}
          s_sub_u32 s3, s26, s3
          v_add_u32 v7, s3, v7""")
    poll(a, 10, 7)
    gbar(a, 0, B_G3_DONE + 4)
    stamp(a, 10)
    LA4, RA = opt("la4", 12), 14
    PB = opt("pb16", 1); NPS = 8 >> PB
    OR_ = lambda u: 168 + 8*u if u < 7 else 240
    PD, EP = AR, AR + 16
    q = []
    def after(tag):
        return len(q) - 1 - max(i for i, x in enumerate(q) if x == tag)
    def al(u):
        a(f"buffer_load_dwordx4 {v(AR + 4*(u % RA), 4)}, v4, {s(WD,4)}, s{sKA} offen offset:{(u&3)*1024}{SC}"); q.append(("a", u))
        if (u & 3) == 3 and u < 55: wrapinc(a, sKA, 4096, 56*1024)
    def rd(m):
        s_, b = m >> 1, m & 1
        if m == 64: a("v_add_u32 v2, 0x10000, v2\nv_add_u32 v3, 0x10000, v3")
        for e in range(2): a(f"ds_read_b64_tr_b16 {v(WF + 4*(m & 7) + 2*e, 2)}, v{2+b} offset:{(s_ & 31)*2048 + e*1024}")
    def wo(u):
        a(f"s_add_u32 m0, s{sM}, {u*1024}\ns_mov_b32 s3, {u*8*896}\nbuffer_load_dwordx4 v7, {s(WB_,4)}, s3 offen lds"); q.append(("w", u))
    def ol(u):
        for aa in range(2):
            a(f"buffer_load_dwordx4 {v(OR_(u)+4*aa,4)}, v{12+aa}, {s(WD,4)}, {'0' if u < 4 else 's%d' % sL} offen offset:{(u&3)*1024}{SC}"); q.append(("o", u))
    assert ROT
    I0 = opt("i0", 2); nxt = [8 + I0]
    for u in range(8, 8 + I0): al(u)
    a(f"""s_mul_i32 s{sM}, s{sW}, 15360
          s_movk_i32 s{sL}, 4096
          s_lshl_b32 s3, s{sT}, 5
          s_lshl_b32 s26, s{sW}, 3
          s_add_u32 s3, s3, s26
          s_lshl_b32 s3, s3, 10
          s_add_u32 s3, s3, {OF}
          v_add_u32 v12, s3, v0
          v_xor_b32 v13, {32*1024}, v12
          s_setprio {opt('pf', 0)}""")
    D4 = 6
    S_ARR, S_WO, S_FL, S_CHK = 31, opt("swo", 40), opt("sfl", 54), 99
    for m in range(D4): rd(m)
    for m in range(112):
        s_, b = m >> 1, m & 1
        if b == 0: a("s_waitcnt " + (f"vmcnt({after(('a', s_))}) " if s_ >= 8 else "") + f"lgkmcnt({2*max(0, min(D4 - 2, 110 - m))})")
        a(f"{MF} {v(ACC+16*b,16)}, {v(WF + 4*(m & 7), 4)}, {v(AR + 4*(s_ % RA) if s_ >= 8 else OWN + 4*s_, 4)}, {'0' if s_ == 0 else v(ACC+16*b,16)}")
        if m + D4 < 112: rd(m + D4)
        if b == 1:
            if opt("g4s", 0) and s_ in (7, 8, 30, 36, 51): stamp(a, {7: 2, 8: 3, 30: 12, 36: 13, 51: 4}[s_])
            for _ in range(opt("i1", 2) if s_ < 8 else 1):
                if nxt[0] < min(56, max(s_, 7) + 1 + LA4): al(nxt[0]); nxt[0] += 1
            if s_ == S_ARR: garrive(a, 0)
            if s_ == S_WO: gwait(a, 0, B_G3_DONE + 8)
            if S_WO <= s_ < S_WO + 15: wo(s_ - S_WO)
            if s_ == S_FL:
                a(f"buffer_load_dword v15, v14, {s(WD,4)}, 0 offen sc1"); q.append("f")
    a(f"s_setprio {opt('pb', 1)}")
    stamp(a, 11)
    a(f"""s_lshl_b32 s{sX}, s2, 7
          s_add_u32 s{sX}, s{sX}, {FQ}
          s_lshl_b32 s3, s{sFT}, 6
          s_add_u32 s26, s{sM}, 0xffff0000
          v_xor_b32 v2, s3, v2
          v_xor_b32 v3, s3, v3
          v_add_u32 v2, s26, v2
          v_add_u32 v3, s26, v3
          s_xor_b32 s3, s{sRB}, 1
          s_mul_i32 s3, s3, 7
          s_add_u32 s3, s3, s{sCB}
          s_lshl_b32 s3, s3, 1
          s_and_b32 s26, s{sW}, 1
          s_add_u32 s3, s3, s26
          s_lshl_b32 s3, s3, {13 - PB}
          s_add_u32 s3, s3, {PART}
          s_cmp_eq_u32 s{sFT}, 0
          s_cselect_b32 s3, {OOB}, s3
          s_add_u32 s26, s3, 4096""")
    woff2 = lambda u: (28*(u >> 1) + 16*(u & 1)) * 128
    if PB:
        for i in range(16):
            a(f"v_cvt_pk_bf16_f32 v{AR+i}, v{ACC+2*i}, v{ACC+2*i+1}")
            if (i & 3) == 3: a(f"buffer_store_dwordx4 {v(AR+i-3,4)}, v0, {s(WD,4)}, s3 offen offset:{(i>>2)*1024}{SC}")
    else:
        for i in range(8): a(f"buffer_store_dwordx4 {v(ACC+4*i,4)}, v0, {s(WD,4)}, s{3 if i < 4 else 26} offen offset:{(i&3)*1024}{SC}")
    a(f"""s_mov_b32 s{sKA}, 0
          s_waitcnt vmcnt({NPS})
          v_cmp_eq_u32 vcc, 0, v15
          s_cbranch_vccz B_oready
          s_waitcnt vmcnt(0)""")
    signal(a, sX, C_SQ)
    a(f"s_mov_b32 s{sKA}, 1")
    poll(a, 14, 4)
    a.label("B_oready")
    for u in range(8): ol(u)
    stamp(a, 15)
    for u in range(3): wreads(a, WF, u, woff2(u))
    a(f"""s_mul_i32 s27, s{sRB}, 7
          s_add_u32 s27, s27, s{sCB}
          s_lshl_b32 s27, s27, 1
          s_and_b32 s26, s{sW}, 1
          s_add_u32 s27, s27, s26
          s_lshl_b32 s27, s27, 1
          s_add_u32 s27, s27, s{sFT}
          s_lshl_b32 s27, s27, {12 - PB}
          s_add_u32 s{sK}, s27, {PART}
          s_xor_b32 s3, s2, 1
          s_lshl_b32 s3, s3, 7
          s_add_u32 s3, s3, {FQ}
          v_mov_b32 v14, s3
          s_cmp_eq_u32 s{sFT}, 0
          s_cbranch_scc1 B_keep""")
    for i in range(32): a(f"v_mov_b32 v{ACC+i}, 0")
    a.label("B_keep")
    a(f"s_waitcnt vmcnt(16)\ns_cmp_lg_u32 s{sKA}, 0\ns_cbranch_scc1 B_sigd")
    signal(a, sX, C_SQ)
    a.label("B_sigd")
    for u in range(8):
        a(f"s_waitcnt vmcnt({2*(7 - u)}) lgkmcnt({4*min(2, 7 - u)})")
        for aa in range(2):
            for b in range(2):
                j = 2*aa + b
                a(f"{MF} {v(ACC+16*j,16)}, {v(WF+8*(u&3)+4*b,4)}, {v(OR_(u)+4*aa,4)}, {'0' if (u == 0 and aa) else v(ACC+16*j,16)}")
        if u + 3 < 8: wreads(a, WF, (u+3) & 3, woff2(u+3))
    a(f"buffer_load_dword v15, v14, {s(WD,4)}, 0 offen sc1")
    if opt("ts", 0): stamp(a, 2)
    def region3(d, j):
        a(f"s_xor_b32 s{d}, s{sW}, {(j >> 1) + 2*(j & 1)}\ns_mul_i32 s{d}, s{d}, 15360\ns_add_u32 s{d}, s{d}, {WOB}")
    srd(a, XS, 20, 2048 * 896)
    OSC = ["", " sc1", " nt"][opt("osc", 2)]
    OT = WOB + 4*15360
    a(f"""v_and_b32 v4, 31, v1
          s_and_b32 s26, s{sW}, 1
          s_lshl_b32 s26, s26, 5
          v_add_u32 v4, s26, v4
          v_mul_u32_u24 v4, 144, v4
          v_lshrrev_b32 v9, 5, v1
          v_lshl_add_u32 v4, v9, 3, v4
          s_lshl_b32 s26, s{sFT}, 6
          s_add_u32 s26, s26, {OT}
          v_add_u32 v4, s26, v4
          v_lshrrev_b32 v6, 3, v1
          s_lshl_b32 s26, s{sW}, 4
          v_add_u32 v6, s26, v6
          v_and_b32 v9, 7, v1
          v_mul_u32_u24 v5, 144, v6
          v_lshl_add_u32 v5, v9, 4, v5
          v_add_u32 v5, {OT}, v5
          v_mul_u32_u24 v6, 896, v6
          v_lshl_add_u32 v6, v9, 4, v6
          s_mul_i32 s27, s{sRB}, {64*896}
          s_lshl_b32 s26, s{sCB}, 7
          s_add_u32 s27, s27, s26
          s_add_u32 s{sX}, s27, {8*896}""")
    def fetch_partial():
        a("s_waitcnt vmcnt(0)\nv_cmp_eq_u32 vcc, 0, v15\ns_cbranch_vccz B_pready")
        poll(a, 14, 1)
        a.label("B_pready")
        for i in range(4 >> PB): a(f"buffer_load_dwordx4 {v(PD+16*PB+4*i,4)}, v0, {s(WD,4)}, s{sK} offen offset:{i*1024}{SC}")
    reduce3(a, ACC, sM, region3, 0, B_G3_DONE + 12, True, fetch_partial)
    if opt("ts", 0): stamp(a, 3)
    for i in range(16): a(f"v_add_f32 v{ACC+i}, v{ACC+i}, v{RES+i}")
    a("s_waitcnt vmcnt(0)")
    if PB: unpack(a, PD, PD + 16, 8)
    for i in range(16): a(f"v_add_f32 v{ACC+i}, v{ACC+i}, v{PD+i}")
    if opt("ts", 0): stamp(a, 12)
    for i in range(8): a(f"v_cvt_pk_bf16_f32 v{EP+i}, v{ACC+2*i}, v{ACC+2*i+1}")
    for j in range(4): a(f"ds_write_b64 v4, {v(EP+2*j,2)} offset:{16*j}")
    gbar(a, 0, B_G3_DONE + 16)
    if opt("ts", 0): stamp(a, 13)
    a(f"""ds_read_b128 {v(EP,4)}, v5
          ds_read_b128 {v(EP+4,4)}, v5 offset:{8*144}
          s_waitcnt lgkmcnt(1)
          buffer_store_dwordx4 {v(EP,4)}, v6, {s(XS,4)}, s27 offen{OSC}
          s_waitcnt lgkmcnt(0)
          buffer_store_dwordx4 {v(EP+4,4)}, v6, {s(XS,4)}, s{sX} offen{OSC}""")
    stamp_out2(a)
    a("s_endpgm")

def stamp_out2(a):
    if not common.STAMPS: return
    a("s_waitcnt vmcnt(0)")
    common.stamp(a, 6); common.stamp(a, 7, True)
    a("s_waitcnt lgkmcnt(0)")
    for i in range(16): a(f"v_mov_b32 v{16+i}, s{64+2*i}")
    a(f"""s_lshl_b32 s3, s2, 3
          s_add_u32 s3, s3, s60
          s_lshl_b32 s3, s3, 6
          s_add_u32 s3, s3, {TS}
          v_mov_b32 v8, 0""")
    for j in range(4): a(f"buffer_store_dwordx4 v[{16+4*j}:{19+4*j}], v8, {s(WD,4)}, s3 offen offset:{16*j}")

def p1stamps():
    return common.STAMPS and opt("p1s", 0)

def build(name):
    a = A()
    a.label("K_start")
    a("s_cmp_ge_u32 s2, 256\ns_cbranch_scc1 K_end")
    load_args(a)
    a(f"""v_and_b32 v1, 63, v0
          v_lshrrev_b32 v8, 6, v0
          s_mov_b32 s59, {fb(2.0**100)}
          v_readfirstlane_b32 s60, v8
          v_lshlrev_b32 v0, 4, v1
          s_and_b32 s{sW}, s60, 3
          s_cmp_ge_u32 s60, 4""")
    if opt("bfirst", 1):
        a("s_cbranch_scc0 K_rolea")
        p1b(a)
        a("s_branch K_roleb")
        a.label("K_rolea")
        p1a(a)
        att(a)
        a.label("K_roleb")
        roleb(a)
    else:
        a("s_cbranch_scc1 K_roleb")
        p1a(a)
        att(a)
        a.label("K_roleb")
        p1b(a)
        roleb(a)
    a.label("K_end")
    a("s_endpgm")
    a.label("K_last")
    return a

if __name__ == "__main__":
    if "stamp" in sys.argv[1]: common.STAMPS = True
    if "mini" in sys.argv[1]: common.STAMPS = common.MINI = True
    name = "parallel_sum__mha_block__mixer_s_mlp__prompt_kernel"
    HDR = open("parallel_sum__mha_block__mixer_s_mlp__prompt.s.ref").read().split("; Override launch")[0]
    DOC = """;
"""
    out = HDR + "; @launch grid=(256,1,1) block=(512,1,1) lds=163840\n" + DOC + '.amdgcn_target "amdgcn-amd-amdhsa--gfx950"\n'
    out += kernel_head(name) + build(name).text() + kernel_desc(name, vgpr=256, sgpr=102)
    open(sys.argv[1], "w").write(out)
```

```python
import sys
import common
from common import *

FLG = 0x1550000
FP, F2, F3, FA, FQ = FLG, FLG + 0x8000, FLG + 0x10000, FLG + 0x18000, FLG + 0x20000
NINIT = 20
PART = 0x1600000
WS_END = 0x1A00000
sFT = 52
CS3P = 0x800000
XS, WA, WD, WB_ = 28, 32, 36, 40
sW, sSPIN = 46, 58
SC = " sc1"
CNT = 156 * 1024
C_B, C_A, C_S1, C_S2, C_S3, C_SA, C_W, C_X, C_SQ = 0, 4, 8, 12, 16, 20, 24, 28, 32
SPIN_MAX = 1 << 16
import os
OPT = dict(x.split("=") for x in os.environ.get("MKOPT", "").split(",") if x)
def opt(k, d): return int(OPT.get(k, d))
SLEEP = opt("sleep", 1)
DEBUG = "dbg" in sys.argv[1] if len(sys.argv) > 1 else False


def poll(a, vaddr, nlanes, srdreg=WD, soff="0"):
    L, D = a.newlabel("PL"), a.newlabel("PD")
    a(f"s_mov_b32 s{sSPIN}, {SPIN_MAX}")
    a(f"s_mov_b64 exec, {(1 << nlanes) - 1}" if nlanes <= 6 else f"s_bfm_b64 exec, {nlanes}, 0")
    a.label(L)
    a(f"""buffer_load_dword v9, v{vaddr}, {s(srdreg,4)}, {soff} offen sc1
          s_waitcnt vmcnt(0)
          v_cmp_eq_u32 vcc, 0, v9
          s_cbranch_vccz {D}
          s_sleep {SLEEP}
          s_sub_u32 s{sSPIN}, s{sSPIN}, 1
          s_cmp_lg_u32 s{sSPIN}, 0
          s_cbranch_scc1 {L}""")
    a.label(D)
    a("s_mov_b64 exec, -1")

TF = ["", " sc1", " nt", " sc0 sc1"][opt("tf", 0)]
SCB = "" if opt("local", 0) else " sc1"
def signal(a, soff, cnt, sc=" sc1", last=3):
    a(f"""s_mov_b64 exec, 1
          v_mov_b32 v8, {CNT + cnt}
          v_mov_b32 v9, 1
          ds_add_rtn_u32 v8, v8, v9
          s_waitcnt lgkmcnt(0)
          v_readfirstlane_b32 s26, v8
          v_mov_b32 v8, 0
          s_cmp_eq_u32 s26, {last}
          s_cselect_b32 s26, s{soff}, {OOB}
          buffer_store_dword v9, v8, {s(WD,4)}, s26 offen{sc}
          s_mov_b64 exec, -1""")

def garrive(a, off, field=0):
    a(f"""s_mov_b64 exec, 1
          v_mov_b32 v8, {CNT + off}
          v_mov_b32 v9, {1 << (4*field)}
          ds_add_u32 v8, v9
          s_mov_b64 exec, -1""")

def gwait(a, off, target, va=8, sr=3, field=None):
    L, D = a.newlabel("GL"), a.newlabel("GD")
    a(f"s_mov_b32 s{sSPIN}, {SPIN_MAX * 8}\nv_mov_b32 v{va}, {CNT + off}")
    a.label(L)
    a(f"""ds_read_b32 v{va+1}, v{va}
          s_sub_u32 s{sSPIN}, s{sSPIN}, 1
          s_cbranch_scc1 {D}
          s_waitcnt lgkmcnt(0)
          v_readfirstlane_b32 s{sr}, v{va+1}
          {"" if field is None else f"s_bfe_u32 s{sr}, s{sr}, {0x40000 + 4*field}"}
          s_cmp_lt_u32 s{sr}, {target}
          s_cbranch_scc1 {L}""")
    a.label(D)
    a("s_waitcnt lgkmcnt(0)")

def gbar(a, off, target):
    a("s_waitcnt lgkmcnt(0)")
    garrive(a, off); gwait(a, off, target)

def kloop(a, ACC, WF, XR, vA, tiles, offs, pre, perm, fill=(), R=8, D=6, cs=None):
    ops = [(s_, t) for s_ in range(28) for t in (tiles if s_ < 27 else pre.get("lastorder", tiles))]
    N = len(ops); fill = list(fill); done = 0
    def rd(m):
        s_, t = ops[m]
        if (s_ & 3) == 0 and t == tiles[0]:
            for x in pre.get(s_ >> 2, []): a(x)
        for e in range(2):
            row = 16 * (s_ & 3) + (8 * e if perm else 4 * e)
            a(f"ds_read_b64_tr_b16 {v(WF + 4*(m % R) + 2*e, 2)}, v{vA+t} offset:{offs(s_ >> 2) + row*256 if offs else s_*2048 + e*1024}")
    for m in range(D): rd(m)
    f0 = pre.get("fill0", 1)
    per = max(1, -(-len(fill) // (pre.get("fillend", N - 1) - f0)))
    for m, (s_, t) in enumerate(ops):
        if (s_ & 3) == 0 and t == tiles[0]:
            for x in pre.get(("x", s_ >> 2), []): a(x)
        if t == tiles[0]:
            for x in pre.get(("s", s_), []): a(x)
        G = pre.get("G", 1)
        if m % G == 0: a(f"s_waitcnt lgkmcnt({2*max(0, min(D - G, N - G - m))})")
        if t < 4: a(f"{MF} {v(ACC+16*t,16)}, {v(WF + 4*(m % R), 4)}, {v(XR(s_) if callable(XR) else XR+4*s_,4)}, {'0' if s_ == 0 else v(ACC+16*t,16)}")
        elif len(cs) == 3: a(f"{MF} {v(cs[0],16)}, {v(cs[1],4)}, {v(WF + 4*(m % R), 4)}, {'0' if s_ == 0 else v(cs[0],16)}")
        else: a(f"v_mfma_f32_16x16x32_bf16 {v(cs[0],4)}, {v(cs[1],4)}, {v(WF + 4*(m % R), 4)}, {'0' if s_ == 0 else v(cs[0],4)}")
        if m + D < N: rd(m + D)
        if (s_ & 3) == 0 and t == tiles[0]:
            for x in pre.get(("y", s_ >> 2), []): a(x)
        if t == tiles[min(1, len(tiles) - 1)]:
            for x in pre.get(("t", s_), []): a(x)
        for x in pre.get(("m", m), []): a(x)
        if m >= f0:
            for x in fill[done:done + per]: a(x)
            done += per
    for x in fill[done:]: a(x)

def kburst(a, ACC, WF, XR, vA, offs, pre, fill=()):
    fill = list(fill); per = -(-len(fill) // 26); done = 0
    def rd(s_):
        if (s_ & 3) == 0:
            for x in pre.get(s_ >> 2, []): a(x)
        for t in range(4):
            for e in range(2):
                a(f"ds_read_b64_tr_b16 {v(WF + 16*(s_ & 1) + 4*t + 2*e, 2)}, v{vA+t} offset:{offs(s_ >> 2) + (16*(s_ & 3) + 8*e)*256}")
    rd(0); rd(1)
    for s_ in range(28):
        if (s_ & 3) == 0:
            for x in pre.get(("x", s_ >> 2), []): a(x)
        a(f"s_waitcnt lgkmcnt({8 if s_ < 27 else 0})")
        for t in range(4):
            a(f"{MF} {v(ACC+16*t,16)}, {v(WF + 16*(s_ & 1) + 4*t, 4)}, {v(XR+4*s_,4)}, {'0' if s_ == 0 else v(ACC+16*t,16)}")
        if s_ + 2 < 28: rd(s_ + 2)
        if s_:
            for x in fill[done:done + per]: a(x)
            done += per

def tr_addrs(a, vA, sTS, base, perm, which=(0, 1, 2, 3, 4)):
    a(f"""v_lshrrev_b32 v8, 5, v1
          v_bfe_u32 v9, v1, 2, 2
          v_bfe_u32 v10, v1, 4, 1
          v_and_b32 v11, 3, v1
          v_lshl_add_u32 v10, v10, 2, v11
          v_lshl_add_u32 v8, v8, {2 if perm else 3}, v9
          v_lshlrev_b32 v8, 8, v8
          v_add_u32 v8, {base}, v8
          v_lshlrev_b32 v9, 2, v9""")
    for t in which:
        a(f"s_mul_i32 s26, {sTS}, {t}" if t < 4 else f"s_mul_i32 s26, {sTS}, s{sW}")
        a(f"""v_add_u32 v11, s26, v10
              v_lshrrev_b32 v12, 1, v11
              v_add_u32 v12, v12, v9
              v_and_b32 v12, 15, v12
              v_and_b32 v11, 1, v11
              v_lshlrev_b32 v11, 3, v11
              v_lshl_add_u32 v11, v12, 4, v11
              v_add_u32 v{vA+t}, v8, v11""")

def cs_publish(a, CS, T, xch):
    a(f"""v_cvt_pk_bf16_f32 v{T}, v{CS}, v{CS}
          v_and_b32 v{T+1}, 0xffff0000, v{T}
          v_sub_f32 v{T+1}, v{CS}, v{T+1}
          v_cvt_pk_bf16_f32 v{T}, v{CS}, v{T+1}
          v_and_b32 v10, 31, v1
          v_lshlrev_b32 v10, 2, v10
          v_add_u32 v10, {xch}, v10
          s_lshl_b32 s26, s{sW}, 7
          v_add_u32 v9, s26, v10
          ds_write_b32 v9, v{T}""")

def mean_fix(a, ACC, T, src, vMU0, vMU1, tiles=(0, 1, 2, 3)):
    n = len(tiles)
    a(f"v_mov_b32 v{T+4*n}, v{vMU0}\nv_mov_b32 v{T+4*n+1}, v{vMU1}\nv_mov_b32 v{T+4*n+2}, 0\nv_mov_b32 v{T+4*n+3}, 0")
    for i, t in enumerate(tiles):
        if src(t) != T + 4*i: a(f"v_mov_b32 v{T+4*i}, v{src(t)}")
        a(f"v_and_b32 v{T+4*i+1}, 0xffff, v{src(t)}\nv_mov_b32 v{T+4*i+2}, 0\nv_mov_b32 v{T+4*i+3}, 0")
    for i, t in enumerate(tiles): a(f"{MF} {v(ACC+16*t,16)}, {v(T+4*i,4)}, {v(T+4*n,4)}, {v(ACC+16*t,16)}")

def mu_frag(a, vmu, lo_en, d0, d1):
    a(f"""v_cvt_pk_bf16_f32 v{d0}, -v{vmu}, -v{vmu}
          v_and_b32 v8, 0xffff0000, v{d0}
          v_sub_f32 v8, -v{vmu}, v8
          v_cvt_pk_bf16_f32 v{d1}, v8, 0
          v_and_b32 v{d1}, {lo_en}, v{d1}
          v_lshrrev_b32 v8, 5, v1
          v_add_u32 v8, -1, v8
          v_and_b32 v{d0}, v8, v{d0}
          v_and_b32 v{d1}, v8, v{d1}""")

def gelu_consts(a, R, DEN):
    a(f"""v_mul_f32 v10, {fb(GK1)}, v{R}
          v_mul_f32 v12, v{R}, v{R}
          v_mul_f32 v12, v12, v{R}
          v_mul_f32 v12, {fb(GK2)}, v12
          v_mov_b32 v14, v{DEN}""")

def gelu8(regs0, K1, K2, IS, T, out):
    L = []
    for i in range(8): L.append(f"v_mul_f32 v{T+i}, v{regs0+i}, v{regs0+i}")
    for i in range(8): L.append(f"v_fma_f32 v{T+i}, v{T+i}, v{K2}, v{K1}")
    for i in range(8): L.append(f"v_mul_f32 v{T+i}, v{T+i}, v{regs0+i}")
    for i in range(8): L.append(f"v_exp_f32 v{T+i}, v{T+i}")
    for i in range(8): L.append(f"v_fma_f32 v{T+i}, v{T+i}, v{IS}, v{IS}")
    for i in range(8): L.append(f"v_rcp_f32 v{T+i}, v{T+i}")
    for i in range(8): L.append(f"v_mul_f32 v{T+i}, v{T+i}, v{regs0+i}")
    for i in range(4): L.append(f"v_cvt_pk_bf16_f32 v{out+i}, v{T+2*i}, v{T+2*i+1}")
    return L

def wrapinc(a, sreg, step, lim):
    a(f"s_add_u32 s{sreg}, s{sreg}, {step}\ns_cmp_eq_u32 s{sreg}, {lim}\ns_cselect_b32 s{sreg}, 0, s{sreg}")

def reduce3(a, ACC, sM, region, cnt_off, target, xor, mid=None):
    a(f"v_add_u32 v10, s{sM}, v0")
    for j in range(1, 4):
        for i in range(4): a(f"ds_write_b128 v10, {v(ACC+16*j+4*i,4)} offset:{(j-1)*4096 + i*1024}")
    for j in range(1, 4):
        region(26, j)
        a(f"v_add_u32 v{10+j}, s26, v0")
    gbar(a, cnt_off, target)
    if mid: mid()
    for j in range(1, 4):
        for i in range(4): a(f"ds_read_b128 {v(ACC+16*j+4*i,4)}, v{10+j} offset:{(j-1)*4096 + i*1024}")
    for j in range(1, 4):
        a(f"s_waitcnt lgkmcnt({4*(3-j)})")
        for i in range(16): a(f"v_add_f32 v{ACC+i}, v{ACC+i}, v{ACC+16*j+i}")

def reduce3c(a, ACC, sM, region, cnt_off, target):
    BL = 3712
    a(f"""v_add_u32 v10, s{sM}, v0
          v_lshlrev_b32 v14, 2, v1
          v_add_u32 v14, {3584 - 128}, v14
          v_add_u32 v15, s{sM}, v14""")
    for j in range(1, 4):
        for i in range(3): a(f"ds_write_b128 v10, {v(ACC+16*j+4*i,4)} offset:{(j-1)*BL + i*1024}")
    a("s_mov_b64 exec, 0xffffffff")
    for j in range(1, 4): a(f"ds_write_b128 v10, {v(ACC+16*j+12,4)} offset:{(j-1)*BL + 3072}")
    a("s_not_b64 exec, exec")
    for j in range(1, 4): a(f"ds_write_b32 v15, v{ACC+16*j+12} offset:{(j-1)*BL}")
    a("s_mov_b64 exec, -1")
    for j in range(1, 4):
        region(26, j)
        a(f"v_add_u32 v{10+j}, s26, v0\nv_add_u32 v{4+j}, s26, v14")
    gbar(a, cnt_off, target)
    a("s_mov_b64 exec, 0xffffffff")
    for j in range(1, 4): a(f"ds_read_b128 {v(ACC+16*j+12,4)}, v{10+j} offset:{(j-1)*BL + 3072}")
    a("s_not_b64 exec, exec")
    for j in range(1, 4): a(f"ds_read_b32 v{ACC+16*j+12}, v{4+j} offset:{(j-1)*BL}")
    a("s_mov_b64 exec, -1")
    for j in range(1, 4):
        for i in range(3): a(f"ds_read_b128 {v(ACC+16*j+4*i,4)}, v{10+j} offset:{(j-1)*BL + i*1024}")
    for j in range(1, 4):
        a(f"s_waitcnt lgkmcnt({3*(3-j)})")
        for i in range(16): a(f"v_add_f32 v{ACC+i}, v{ACC+i}, v{ACC+16*j+i}")

def unpack(a, dst, src, n):
    for i in range(n):
        a(f"v_lshlrev_b32 v{dst+2*i}, 16, v{src+i}\nv_and_b32 v{dst+2*i+1}, 0xffff0000, v{src+i}")

NBAR_P1 = 10
XB = 112 * 1024
XCH = XB + 16384
def p1a(a):
    a(f"s_setprio {opt('pa1', 2)}")
    ACC, CS, WF, XR, TMP = 16, 80, 96, 136, 248
    sRB, sCB, sTY, sSUB, sTS, sLO, sT = 44, 45, 47, 48, 50, 55, 56
    a(f"""s_and_b32 s26, s2, 7
          s_lshr_b32 s27, s2, 3
          s_lshr_b32 s{sRB}, s26, 1
          s_lshl_b32 s{sRB}, s{sRB}, 2
          s_and_b32 s3, s27, 3
          s_add_u32 s{sRB}, s{sRB}, s3
          s_and_b32 s{sCB}, s26, 1
          s_lshl_b32 s{sCB}, s{sCB}, 3
          s_lshr_b32 s3, s27, 2
          s_add_u32 s{sCB}, s{sCB}, s3
          s_lshr_b32 s{sTY}, s{sCB}, 2
          s_and_b32 s{sSUB}, s{sCB}, 3
          s_cmp_eq_u32 s{sTY}, 3
          s_cselect_b32 s{sTS}, 8, 7
          s_cselect_b32 s{sLO}, -1, 0
          s_lshl_b32 s{sT}, s{sRB}, 2
          s_add_u32 s{sT}, s{sT}, s{sW}""")
    tr_addrs(a, 2, f"s{sTS}", 0, perm=False)
    a(f"""v_and_b32 v8, 15, v1
          v_bfe_u32 v9, v1, 4, 1
          v_cmp_eq_u32 vcc, v8, v9
          v_mov_b32 v8, 0x3f803f80
          v_cndmask_b32 v{CS+4}, 0, v8, vcc
          v_mov_b32 v{CS+5}, v{CS+4}
          v_mov_b32 v{CS+6}, v{CS+4}
          v_mov_b32 v{CS+7}, v{CS+4}
          v_and_b32 v8, 31, v1
          v_lshrrev_b32 v9, 5, v1
          v_bfe_u32 v10, v1, 1, 3
          v_xor_b32 v9, v9, v10
          v_lshlrev_b32 v8, 7, v8
          v_lshl_add_u32 v8, v9, 4, v8
          s_lshl_b32 s3, s{sW}, 12
          s_add_u32 s3, s3, {XB}
          v_add_u32 v{CS+8}, s3, v8
          v_xor_b32 v{CS+9}, 32, v{CS+8}
          v_xor_b32 v{CS+10}, 64, v{CS+8}
          v_xor_b32 v{CS+11}, 96, v{CS+8}
          s_waitcnt lgkmcnt(0)""")
    srd(a, WD, 24, WS_END)
    ONE = TMP
    M0_, M1_, R, DEN = TMP+4, TMP+5, TMP+6, TMP+7
    a(f"""v_and_b32 v10, 31, v1
          v_lshlrev_b32 v10, 2, v10
          v_add_u32 v10, {XCH}, v10
""")
    stamp(a, 12)
    pre = {}
    for c in range(7):
        pre[c] = ["s_barrier"] + [f"ds_read_b128 {v(XR + 16*(c&1) + 4*i, 4)}, v{CS+8+i} offset:{(c % 3)*16384}" for i in range(4)]
        if opt("sqv", 0) == 0:
            pre[("y", c)] = [f"v_dot2_f32_bf16 v{12+(i&1)}, v{XR+16*(c&1)+i}, v{XR+16*(c&1)+i}, {'0' if c == 0 and i < 2 else 'v%d' % (12+(i&1))}" for i in range(16)]
    sq = []
    if opt("sqv", 0):
        a("v_mov_b32 v12, 0\nv_mov_b32 v13, 0")
        for s_ in range(28):
            for i in range(4):
                r_ = XR + 16*((s_ >> 2) & 1) + 4*(s_ & 3) + i
                pre[("m", 5*s_ + 1 + i)] = [f"v_lshlrev_b32 v14, 16, v{r_}", f"v_and_b32 v15, 0xffff0000, v{r_}", "v_fmac_f32 v12, v14, v14", "v_fmac_f32 v13, v15, v15"]
    if common.STAMPS:
        for c, st in ((0, 2), (1, 13), (3, 3)):
            g = A(); stamp(g, st); pre[c] = pre[c][:1] + g.l + pre[c][1:]
    pre[4] += [f"v_add_u32 v{2+t}, 0x10000, v{2+t}" for t in range(5)]
    CSB = opt("csb", 0)
    pre["G"] = opt("p1g", 1); pre["lastorder"] = (3, 0, 1, 2) if CSB else (3, 4, 0, 1, 2)
    kloop(a, ACC, WF, lambda s_: XR + 16*((s_ >> 2) & 1) + 4*(s_ & 3), 2, (0, 1, 2, 3) if CSB else (0, 4, 1, 2, 3), lambda c: (c & 3) * 16384, pre, False, [], R=8, D=opt("p1d", 5), cs=(CS, CS+4))
    stamp(a, 4)
    for i in range(0 if CSB else 2):
        a(f"""v_cvt_pk_bf16_f32 v{WF+i}, v{CS+i}, v{CS+i}
              v_and_b32 v{WF+i}, 0xffff0000, v{WF+i}
              v_sub_f32 v{WF+i}, v{CS+i}, v{WF+i}
              v_cvt_pk_bf16_f32 v{WF+i}, v{CS+i}, v{WF+i}""")
    if not CSB:
        a(f"""s_lshl_b32 s26, s{sW}, 7
              v_add_u32 v11, s26, v10
              s_mov_b64 exec, 0xffff
              ds_write2_b32 v11, v{WF}, v{WF+1} offset1:16
              s_mov_b64 exec, -1""")
    a(f"""v_mov_b32 v14, v{ACC+48+12}
          v_mov_b32 v15, v{ACC+48+12}
          v_add_f32 v13, v12, v13
          v_permlane32_swap_b32 v15, v14
          v_mov_b32 v12, v13
          v_permlane32_swap_b32 v13, v12
          v_add_f32 v13, v13, v12
          v_mul_f32 v12, {fb(1/448)}, v14
          v_mul_f32 v13, {fb(1/448)}, v13
          v_fma_f32 v13, -v12, v12, v13
          v_max_f32 v13, 0, v13""")
    bf16r(a, 15, "v13")
    a(f"""v_add_f32 v9, {fb(EPS)}, v13
          v_add_f32 v15, {fb(EPS)}, v15
          v_mov_b32 v14, {fb(EPS)}
          v_fma_f32 v9, v9, v14, v13""")
    bf16r(a, 15, "v15")
    a(f"""v_sqrt_f32 v9, v9
          v_sqrt_f32 v15, v15
          s_waitcnt lgkmcnt(0)
          s_barrier                              ; barrier 7""")
    stamp(a, 14)
    for t in range(4): a(f"ds_read_b32 v{WF+4*t}, v10 offset:{128*t}")
    mu_frag(a, 12, f"s{sLO}", M0_, M1_)
    a(f"v_mov_b32 v14, s{sLO}")
    bf16r(a, 15, "v15")
    bf16r(a, 10, "v12")
    a(f"""v_bfi_b32 v{DEN}, v14, v9, v15
          v_rcp_f32 v{R}, v{DEN}
          s_waitcnt lgkmcnt(0)""")
    mean_fix(a, ACC, WF, lambda t: WF + 4*t, M0_, M1_)
    a(f"""
          s_lshl_b32 s3, s{sT}, 8
          s_add_u32 s3, s3, {ST1}
          s_cmp_eq_u32 s{sCB}, 0
          s_cselect_b32 s3, s3, {OOB}
          v_lshlrev_b32 v8, 3, v1
          v_and_b32 v8, 0xff, v8
          v_mov_b32 v11, v{R}
          buffer_store_dwordx2 v[10:11], v8, {s(WD,4)}, s3 offen{SC}""")
    a(f"""v_lshrrev_b32 v8, 5, v1
          v_add_u32 v8, -1, v8
          s_cmp_eq_u32 s{sTY}, 3
          s_cbranch_scc1 P1_h
          s_cmp_eq_u32 s{sTY}, 0
          s_cselect_b32 s3, {fb(QSCALE)}, 1.0
          v_mul_f32 v10, s3, v{R}
          v_mul_u32_u24 v12, 12, v1
          s_lshl_b32 s3, s{sSUB}, 8
          s_add_u32 s3, s3, s{sT}
          s_movk_i32 s27, 3584
          s_cmp_eq_u32 s{sTY}, 0
          s_cselect_b32 s27, 1792, s27
          s_mul_i32 s3, s3, s27
          s_lshl_b32 s26, s27, 6
          s_cselect_b32 s27, {QF}, {KVF}
          s_add_u32 s3, s3, s27
          s_cmp_eq_u32 s{sTY}, 2
          s_cbranch_scc1 P1_v""".replace("s_lshl_b32 s26, s27, 6", f"s_lshl_b32 s26, s27, 6\ns_mov_b32 s27, {KVF}\ns_cmp_eq_u32 s{sTY}, 0").replace(f"s_cselect_b32 s27, {QF}, {KVF}", f"s_cselect_b32 s27, {QF}, s27"))
    def pack(t):
        for i in range(8): a(f"v_pk_mul_f32 {v(ACC+16*t+2*i,2)}, {v(ACC+16*t+2*i,2)}, v[10:11] op_sel_hi:[1,0]")
        for i in range(8): a(f"v_cvt_pk_bf16_f32 v{XR+8*t+i}, v{ACC+16*t+2*i}, v{ACC+16*t+2*i+1}")
    def put(t, isv=False):
        if isv:
            for f_ in range(2): a(f"buffer_store_dwordx4 {v(XR+8*t+4*f_,4)}, v13, {s(WD,4)}, s3 offen offset:{1792 + f_*896}{SC}")
        else:
            a(f"buffer_store_dwordx4 {v(XR+8*t,4)}, v0, {s(WD,4)}, s3 offen{SC}")
            a(f"v_permlane32_swap_b32 v{XR+8*t+6}, v{XR+8*t+7}")
            a(f"buffer_store_dwordx3 {v(XR+8*t+4,3)}, v12, {s(WD,4)}, s3 offen offset:1024{SC}")
        if t < 3: a("s_add_u32 s3, s3, s26")
    for t in range(4): pack(t); put(t)
    a("s_branch P1_done")
    a.label("P1_v")
    a(f"""s_mul_i32 s27, s{sW}, 9216
          s_add_u32 s27, s27, 0x10000
          v_and_b32 v9, 31, v1
          v_mul_u32_u24 v9, 72, v9
          v_lshrrev_b32 v14, 5, v1
          v_lshl_add_u32 v9, v14, 3, v9
          v_add_u32 v9, s27, v9
          v_bfe_u32 v15, v1, 2, 2
          v_lshl_add_u32 v14, v14, 2, v15
          v_mul_u32_u24 v14, 72, v14
          v_bfe_u32 v15, v1, 4, 1
          v_lshl_add_u32 v14, v15, 5, v14
          v_and_b32 v15, 3, v1
          v_lshl_add_u32 v14, v15, 3, v14
          v_add_u32 v14, s27, v14
          v_lshrrev_b32 v15, 5, v1
          v_lshlrev_b32 v15, 6, v15
          v_sub_u32 v13, v0, v15
          v_and_b32 v15, 31, v1
          v_cmp_gt_u32 vcc, 28, v15
          v_mov_b32 v15, {OOB}
          v_cndmask_b32 v13, v15, v13, vcc""")
    for t in range(5):
        if t < 4:
            pack(t)
            for j in range(4): a(f"ds_write_b64 v9, {v(XR+8*t+2*j,2)} offset:{t*2304 + 16*j}")
        if t:
            a(f"s_waitcnt lgkmcnt({4 if t < 4 else 0})")
            put(t - 1, True)
        if t < 4:
            a("s_waitcnt lgkmcnt(0)")
            for f_ in range(2):
                for e in range(2): a(f"ds_read_b64_tr_b16 {v(XR+8*t+4*f_+2*e,2)}, v14 offset:{t*2304 + (16*f_+8*e)*72}")
    a("s_branch P1_done")
    a.label("P1_h")
    gelu_consts(a, R, DEN)
    a(f"""s_mul_i32 s3, s{sT}, 28
          s_mul_i32 s27, s{sSUB}, 7
          s_add_u32 s3, s3, s27
          s_lshl_b32 s3, s3, 10
          s_add_u32 s3, s3, {HF}
          s_add_u32 s27, s3, 4096""")
    for f in range(7):
        gelu_pairs(a, [ACC + 8*f + 2*i for i in range(4)], 10, 12, 14, WF)
        for i in range(4): a(f"v_cvt_pk_bf16_f32 v{XR+4*f+i}, v{ACC+8*f+2*i}, v{ACC+8*f+2*i+1}")
        a(f"buffer_store_dwordx4 {v(XR+4*f,4)}, v0, {s(WD,4)}, s{3 if f < 4 else 27} offen offset:{(f&3)*1024}{SC}")
    a.label("P1_done")
    garrive(a, C_X, 1)
    stamp(a, 15)
    a(f"""s_waitcnt vmcnt(0)
          s_lshl_b32 s3, s{sCB}, 4
          s_add_u32 s3, s3, s{sRB}
          s_lshl_b32 s3, s3, 7
          s_add_u32 s3, s3, {FP}""")
    signal(a, 3, C_S1, last=7)
    stamp(a, 5)

O_, Q_, S_, E_, P_, KV = 16, 80, 112, 144, 152, 160
sH, sQB, sKV, sN, sMA, sKB = 44, 45, 50, 51, 47, 52
AR_BASE = 112 * 1024

def unit(a, n, q, extra, qk=True):
    Sc, Sn = S_ + 16*(q & 1), S_ + 16*((q+1) & 1)
    nn, nq = (n, q+1) if q < 3 else ((n+1) & 3, 0)
    pn, pq = (n, q-1) if q > 0 else ((n-1) & 3, 3)
    K, Vc, Vp = KV + 16*nn, KV + 16*n + 8, KV + 16*pn + 8
    e = lambda i: a(f"v_exp_f32 v{E_+(i&7)}, v{Sc+i}")
    c = lambda k: a(f"v_cvt_pk_bf16_f32 v{P_+k}, v{E_+((2*k)&7)}, v{E_+((2*k+1)&7)}")
    for x in extra.get(0, []): a(x)
    if qk: a(f"{MF} {v(Sn,16)}, {v(K,4)}, {v(Q_+8*nq,4)}, 0")
    e(0); c(6); e(1); c(7); e(2); e(3)
    a(f"{MF} {v(O_+16*pq,16)}, {v(Vp+4,4)}, {v(P_+4,4)}, {v(O_+16*pq,16)}")
    for x in extra.get(1, []): a(x)
    e(4); c(0); e(5); c(1); e(6); e(7)
    if qk: a(f"{MF} {v(Sn,16)}, {v(K+4,4)}, {v(Q_+8*nq+4,4)}, {v(Sn,16)}")
    for x in extra.get(2, []): a(x)
    e(8); c(2); e(9); c(3); e(10); e(11)
    a(f"{MF} {v(O_+16*q,16)}, {v(Vc,4)}, {v(P_,4)}, {v(O_+16*q,16)}")
    e(12); c(4); e(13); c(5); e(14); e(15)

sKE, sVM, VV = 53, 54, 224
def kvload(slot, f):
    r = KV + 16*slot + 4*f
    if f == 0: return f"buffer_load_dwordx4 {v(r,4)}, v0, {s(WD,4)}, s{sKV} offen{SC}"
    if f == 1: return f"buffer_load_dwordx3 {v(r,3)}, v4, {s(WD,4)}, s{sKV} offen offset:1024{SC}"
    L = f"buffer_load_dwordx4 {v(r,4)}, v{VV}, {s(WD,4)}, s{sKV} offen offset:{1792 + 896*(f - 2)}{SC}"
    return f"s_mov_b64 exec, {s(sVM,2)}\n" + L if f == 2 else L + "\ns_mov_b64 exec, -1"
def kvnext():
    return [f"s_add_u32 s{sKV}, s{sKV}, 3584", f"s_cmp_eq_u32 s{sKV}, s{sKE}", f"s_cselect_b32 s{sKV}, s{sKB}, s{sKV}"]

EARLY = opt("early", 1)
def att(a):
    if p1stamps():
        global stamp
        stamp = lambda *x: None
    a(f"""s_and_b32 s26, s2, 7
          s_lshr_b32 s27, s2, 3
          s_lshl_b32 s{sH}, s26, 1
          s_and_b32 s3, s27, 1
          s_add_u32 s{sH}, s{sH}, s3
          s_lshr_b32 s{sQB}, s27, 1
          s_mul_i32 s{sMA}, s{sW}, 11136
          s_add_u32 s{sMA}, s{sMA}, {AR_BASE}
          s_lshl_b32 s{sKB}, s{sH}, 2
          s_add_u32 s{sKB}, s{sKB}, s{sW}
          s_mul_i32 s{sKB}, s{sKB}, {16*3584}
          s_add_u32 s{sKB}, s{sKB}, {KVF}
          s_add_u32 s{sKE}, s{sKB}, {16*3584}
          s_and_b32 s27, s{sQB}, {3 if EARLY else 15}
          s_mul_i32 s3, s27, {4*3584 if EARLY else 3584}
          s_add_u32 s{sKV}, s{sKB}, s3
          s_mov_b32 s{sVM}, 0x0fffffff
          s_mov_b32 s{sVM+1}, 0x0fffffff
          v_mul_u32_u24 v4, 12, v1
          v_lshrrev_b32 v11, 5, v1
          v_lshlrev_b32 v12, 6, v11
          v_sub_u32 v{VV}, v0, v12
          v_lshlrev_b32 v11, 4, v11
          v_mov_b32 v12, 0x3f803f80
          v_lshrrev_b32 v13, v11, v12
          v_and_b32 v11, 31, v1
          v_cmp_eq_u32 vcc, 28, v11
          v_cndmask_b32 v12, 0, v12, vcc
          s_lshr_b32 s3, s{sH}, 2
          s_lshl_b32 s3, s3, 4
          v_and_b32 v10, 3, v1
          s_lshl_b32 s26, s{sW}, 2
          s_add_u32 s26, s26, s3
          s_add_u32 s26, s26, 64
          v_add_u32 v10, s26, v10
          v_bfe_u32 v11, v1, 2, 1
          v_lshl_add_u32 v10, v11, 6, v10
          s_add_u32 s3, s3, s{sQB}
          v_writelane_b32 v10, s3, 8             ; lane 8: Q
          v_lshlrev_b32 v10, 7, v10
          v_add_u32 v10, {FP}, v10""")
    for i in range(64): a(f"v_mov_b32 v{O_+i}, 0")
    for i in range(8): a(f"v_mov_b32 v{E_+i}, 0\nv_mov_b32 v{P_+i}, 0")
    for n in range(4):
        a(f"v_mov_b32 v{KV+16*n+7}, v13\nv_mov_b32 v{Q_+8*n+7}, 0")
        for i in range(8): a(f"v_mov_b32 v{KV+16*n+8+i}, v12")
    if EARLY:
        a(f"""v_and_b32 v11, 7, v1
              v_lshlrev_b32 v11, 2, v11
              ds_bpermute_b32 v2, v11, v10
              s_lshl_b32 s27, s27, 2
              v_mov_b32 v11, s27
              v_writelane_b32 v11, 32, 2
              s_add_u32 s27, s27, 16
              v_writelane_b32 v11, s27, 1
              ds_bpermute_b32 v10, v11, v10
              s_waitcnt lgkmcnt(0)""")
        poll(a, 10, 3)
    else: poll(a, 10, 9)
    if opt("ayield", 1): gwait(a, C_X, 4, field=0)
    stamp(a, 8)
    for j in range(4):
        a(f"""s_add_u32 s3, s{sW}, {j + 1}
              s_and_b32 s3, s3, 3
              s_lshl_b32 s26, s{sH}, 4
              s_add_u32 s26, s26, s{sQB}
              s_lshl_b32 s26, s26, 2
              s_add_u32 s3, s3, s26
              s_mul_i32 s3, s3, 1792
              s_add_u32 s3, s3, {QF}
              buffer_load_dwordx4 {v(Q_+8*j,4)}, v0, {s(WD,4)}, s3 offen{SC}
              buffer_load_dwordx3 {v(Q_+8*j+4,3)}, v4, {s(WD,4)}, s3 offen offset:1024{SC}""")
        if j == 0:
            for f in range(4): a(kvload(0, f))
            for x in kvnext(): a(x)
    for n in range(1, 3):
        for f in range(4): a(kvload(n, f))
        for x in kvnext(): a(x)
    a(f"""v_add_u32 v10, s{sMA}, v0
          v_lshlrev_b32 v14, 2, v1
          v_add_u32 v14, {3584 - 128}, v14
          v_add_u32 v15, s{sMA}, v14
          v_mov_b32 v8, {CNT + C_B}""")
    for j in range(3):
        a(f"""s_sub_u32 s26, s{sW}, {j + 1}
              s_and_b32 s26, s26, 3
              s_mul_i32 s26, s26, 11136
              s_add_u32 s26, s26, {AR_BASE}
              v_add_u32 v{11+j}, s26, v0
              v_add_u32 v{5+j}, s26, v14""")
    a(f"s_mov_b32 s{sN}, 4\ns_waitcnt vmcnt(14)")
    a(f"{MF} {v(S_,16)}, {v(KV,4)}, {v(Q_,4)}, 0")
    a(f"{MF} {v(S_,16)}, {v(KV+4,4)}, {v(Q_+4,4)}, {v(S_,16)}")
    a(f"s_setprio {opt('pa2', 0)}\ns_waitcnt vmcnt(8)")
    stamp(a, 9)
    a("s_nop 9")
    a(".p2align 3")
    a.label("AT_loop")
    for n in range(4):
        ld = (n + 3) & 3
        kvl = kvload if not opt("nokv", 0) else (lambda a_, b_: "s_nop 0")
        if opt("kvprio", 1):
            e0 = {1: ["s_setprio 3", kvl(ld, 0), kvl(ld, 1)], 2: [kvl(ld, 2), kvl(ld, 3), f"s_setprio {opt('pa2', 0)}"]}
            if opt("kvprio", 1) == 2: e0 = {1: [kvl(ld, 0), kvl(ld, 1)], 2: [kvl(ld, 2), kvl(ld, 3)]}
            if EARLY and n == 0: e0[1].insert(1 if opt("kvprio", 1) == 1 else 0, f"buffer_load_dword v3, v2, {s(WD,4)}, 0 offen sc1")
            if EARLY and n == 1:
                e0[0] = ["s_waitcnt vmcnt(4)", "v_cmp_eq_u32 vcc, 0, v3"]
                e0[1] = ["s_cbranch_vccnz AT_late", "AT_ok:"] + e0[1]
            unit(a, n, 0, e0)
            e1 = {1: kvnext() if n == 0 or not EARLY else kvnext()[:1]}
            if n == 0: e1[2] = [f"s_cmp_eq_u32 s{sN}, 1", f"s_cselect_b32 s{sKV}, {OOB}, s{sKV}"]
            if n == 3: e1[0] = ["ds_read_b32 v9, v8"]; e1[2] = [f"s_cmp_eq_u32 s{sN}, 1"]
            unit(a, n, 1, e1)
            if n == 3: a("s_cbranch_scc1 AT_tail")
            unit(a, n, 2, {})
            ex = {0: ["s_waitcnt vmcnt(8)"], 2: []}
        else:
            unit(a, n, 0, {2: [kvl(ld, 0)]})
            unit(a, n, 1, {1: [kvl(ld, 1)]})
            unit(a, n, 2, {1: [kvl(ld, 2)]})
            ex = {0: ["s_waitcnt vmcnt(7)"], 1: [kvl(ld, 3)], 2: kvnext()}
        if n == 3: ex[2] += [f"s_sub_u32 s{sN}, s{sN}, 1"]
        unit(a, n, 3, ex)
    a("s_branch AT_loop")
    a.label("AT_tail")
    BL = 3712
    a(f"""s_setprio {opt('pa1', 2)}
          s_waitcnt lgkmcnt(0)
          v_readfirstlane_b32 s3, v9
          s_cmp_ge_u32 s3, 8
          s_cbranch_scc1 AT_free""")
    gwait(a, C_B, 8)
    a.label("AT_free")
    wr = lambda j, i: f"ds_write_b128 v10, {v(O_+16*j+4*i,4)} offset:{j*BL + i*1024}"
    unit(a, 3, 2, {0: [wr(0, 0)], 1: [wr(0, 1)], 2: [wr(0, 2)]})
    unit(a, 3, 3, {0: [wr(1, 0)], 1: [wr(1, 1)], 2: [wr(1, 2)]}, qk=False)
    a(f"v_cvt_pk_bf16_f32 v{P_+6}, v{E_+4}, v{E_+5}\nv_cvt_pk_bf16_f32 v{P_+7}, v{E_+6}, v{E_+7}")
    for i in range(3): a(wr(2, i))
    a(f"{MF} {v(O_+48,16)}, {v(KV+48+12,4)}, {v(P_+4,4)}, {v(O_+48,16)}")
    stamp(a, 10)
    a("s_mov_b64 exec, 0xffffffff")
    for j in range(3): a(wr(j, 3))
    a("s_not_b64 exec, exec")
    for j in range(3): a(f"ds_write_b32 v15, v{O_+16*j+12} offset:{j*BL}")
    a("s_mov_b64 exec, -1")
    gbar(a, C_A, 4)
    a("s_mov_b64 exec, 0xffffffff")
    for j in range(3): a(f"ds_read_b128 {v(O_+16*j+12,4)}, v{11+j} offset:{j*BL + 3072}")
    a("s_not_b64 exec, exec")
    for j in range(3): a(f"ds_read_b32 v{O_+16*j+12}, v{5+j} offset:{j*BL}")
    a("s_mov_b64 exec, -1")
    for j in range(3):
        for i in range(3): a(f"ds_read_b128 {v(O_+16*j+4*i,4)}, v{11+j} offset:{j*BL + i*1024}")
    OT_, QT_ = O_ + 48, Q_ + 24
    for j in range(3):
        a(f"s_waitcnt lgkmcnt({3*(2-j)})")
        for i in range(16): a(f"v_add_f32 v{OT_+i}, v{OT_+i}, v{O_+16*j+i}")
    a(f"""v_mov_b32 v10, v{OT_+12}
          v_mov_b32 v11, v{OT_+12}
          v_permlane32_swap_b32 v11, v10
          v_mov_b32 v12, v10
          v_mov_b32 v13, 0""")
    for i in range(16): a(f"v_fma_f32 v{12+(i&1)}, v{OT_+i}, 0, v{12+(i&1)}")
    a(f"""v_add_f32 v12, v12, v13                ; row sum, or NaN if any accumulator is not finite
          v_cmp_le_f32 vcc, {fb(2.0**-80)}, v12
          v_cmp_ge_f32 s[26:27], s59, v12
          s_and_b64 vcc, vcc, s[26:27]
          s_cmp_eq_u64 vcc, -1
          s_cbranch_scc0 AT_slow""".replace("s59", "s59"))
    a.label("AT_norm")
    a(f"""v_rcp_f32 v10, v10
          v_lshrrev_b32 v8, 5, v1
          v_add_u32 v8, -1, v8""")
    for i in range(16): a(f"v_mul_f32 v{OT_+i}, v{OT_+i}, v10")
    for i in range(8): a(f"v_cvt_pk_bf16_f32 v{P_+i}, v{OT_+2*i}, v{OT_+2*i+1}")
    a(f"""v_and_b32 v{P_+6}, v8, v{P_+6}
          v_and_b32 v{P_+7}, v8, v{P_+7}
          s_lshl_b32 s26, s{sQB}, 2
          s_add_u32 s26, s26, s{sW}
          s_lshl_b32 s26, s26, 4
          s_add_u32 s26, s26, s{sH}
          s_lshl_b32 s3, s26, 11
          s_add_u32 s3, s3, {OF}
          buffer_store_dwordx4 {v(P_,4)}, v0, {s(WD,4)}, s3 offen{SC}
          buffer_store_dwordx4 {v(P_+4,4)}, v0, {s(WD,4)}, s3 offen offset:1024{SC}
          s_lshl_b32 s3, s{sQB}, 4
          s_add_u32 s3, s3, s{sH}
          s_lshl_b32 s3, s3, 7
          s_add_u32 s3, s3, {FA}
          s_waitcnt vmcnt(0)""")
    signal(a, 3, 20)
    stamp(a, 11)
    stamp_out2(a)
    a("s_endpgm")
    if EARLY:
        a.label("AT_late")
        poll(a, 2, 8)
        a("s_branch AT_ok")
    a.label("AT_slow")
    a(f"""s_waitcnt vmcnt(0)
          s_mul_i32 s{sKB}, s{sH}, {64*3584}
          s_add_u32 s{sKB}, s{sKB}, {KVF}
          s_mov_b32 s{sKV}, s{sKB}
          s_mov_b32 s{sN}, 64
          v_mov_b32 v12, 0xff800000""")
    a.label("AT_s1")
    a(kvload(0, 0)); a(kvload(0, 1))
    a(f"""s_add_u32 s{sKV}, s{sKV}, 3584
          s_waitcnt vmcnt(0)
          {MF} {v(S_,16)}, {v(KV,4)}, {v(QT_,4)}, 0
          {MF} {v(S_,16)}, {v(KV+4,4)}, {v(QT_+4,4)}, {v(S_,16)}""")
    for i in range(8): a(f"v_max3_f32 v12, v12, v{S_+2*i}, v{S_+2*i+1}")
    a(f"""s_sub_u32 s{sN}, s{sN}, 1
          s_cmp_lg_u32 s{sN}, 0
          s_cbranch_scc1 AT_s1
          v_mov_b32 v13, v12
          v_permlane32_swap_b32 v12, v13
          v_max_f32 v12, v12, v13
          v_cvt_pk_bf16_f32 v13, -v12, -v12
          v_and_b32 v13, 0xffff0000, v13
          v_sub_f32 v12, -v12, v13
          v_cvt_pk_bf16_f32 v14, v12, v12
          v_and_b32 v14, 0xffff0000, v14
          v_sub_f32 v12, v12, v14
          v_cvt_pk_bf16_f32 v13, v13, v14
          v_cvt_pk_bf16_f32 v14, v12, 0
          v_lshrrev_b32 v8, 5, v1
          v_add_u32 v8, -1, v8
          v_bfi_b32 v{QT_+7}, v8, v13, v14
          s_mov_b32 s{sKV}, s{sKB}
          s_mov_b32 s{sN}, 64""")
    for i in range(16): a(f"v_mov_b32 v{OT_+i}, 0")
    a.label("AT_s2")
    for f in range(4): a(kvload(0, f))
    a(f"""s_add_u32 s{sKV}, s{sKV}, 3584
          s_waitcnt vmcnt(0)
          {MF} {v(S_,16)}, {v(KV,4)}, {v(QT_,4)}, 0
          {MF} {v(S_,16)}, {v(KV+4,4)}, {v(QT_+4,4)}, {v(S_,16)}""")
    for i in range(16): a(f"v_exp_f32 v{S_+i}, v{S_+i}")
    for i in range(8): a(f"v_cvt_pk_bf16_f32 v{P_+i}, v{S_+2*i}, v{S_+2*i+1}")
    a(f"""{MF} {v(OT_,16)}, {v(KV+8,4)}, {v(P_,4)}, {v(OT_,16)}
          {MF} {v(OT_,16)}, {v(KV+12,4)}, {v(P_+4,4)}, {v(OT_,16)}
          s_sub_u32 s{sN}, s{sN}, 1
          s_cmp_lg_u32 s{sN}, 0
          s_cbranch_scc1 AT_s2
          v_mov_b32 v10, v{OT_+12}
          v_mov_b32 v11, v{OT_+12}
          v_permlane32_swap_b32 v11, v10
          s_branch AT_norm""")

B_G3_DONE = 24
G2_BASE = 0
H1 = 56 * 1024
W3B = 60 * 1024
XCH3 = CNT + 1024
RES = 224

def p1b(a):
    bst = (lambda i: common.stamp(a, i)) if p1stamps() else (lambda i: None)
    sRB, sCB, sT = 44, 45, 48
    sROW, sWO, sK, sCOL = 49, 50, 51, 52
    WB = 0x1C000
    XT = 232
    def codepf():
        nseg = opt("nseg", 5)
        a(f"""s_lshr_b32 s57, s2, 3
              s_cmp_ge_u32 s57, {nseg}
              s_cbranch_scc1 PB_nopf
              s_cmp_lg_u32 s{sW}, 0
              s_cbranch_scc1 PB_nopf
              s_getpc_b64 s[62:63]""")
        a.label("PB_pc")
        a(f"""s_lshl_b32 s57, s57, 13
              s_sub_u32 s62, s62, PB_pc-K_start
              s_subb_u32 s63, s63, 0
              s_add_u32 s62, s62, s57
              s_addc_u32 s63, s63, 0
              v_lshlrev_b32 v8, 7, v1
              v_add_u32 v9, s57, v8
              v_cmp_gt_u32 vcc, K_last-K_start, v9
              v_mov_b32 v11, s63
              v_add_co_u32 v10, s[98:99], s62, v8
              v_addc_co_u32 v11, s[98:99], 0, v11, s[98:99]
              s_and_saveexec_b64 s[98:99], vcc
              s_cbranch_execz PB_pfx
              global_load_dword v16, v[10:11], off""")
        a.label("PB_pfx")
        a("s_mov_b64 exec, -1")
        a.label("PB_nopf")
    if opt("codepf", 1) == 1: codepf()
    a(f"""s_and_b32 s26, s2, 1
          s_lshl_b32 s26, s26, 3
          s_lshr_b32 s3, s2, 5
          s_add_u32 s26, s26, s3
          s_bfe_u32 s{sK}, s2, 0x20003
          s_lshl_b32 s54, s{sK}, 1
          s_add_u32 s54, s54, s3
          s_mul_i32 s3, s54, 37
          s_lshr_b32 s3, s3, 8
          s_mul_i32 s3, s3, 7
          s_sub_u32 s54, s54, s3
          s_mul_i32 s54, s54, {opt("rotw", 1)}
          s_bfe_u32 s3, s2, 0x20001
          s_lshl_b32 s3, s3, 2
          s_add_u32 s3, s3, s{sK}
          s_lshl_b32 s3, s3, 2
          s_add_u32 s3, s3, s{sW}
          s_lshl_b32 s56, s3, 5
          s_and_b32 s27, s26, 3
          s_lshr_b32 s3, s27, 1
          s_add_u32 s3, s3, 1
          s_sub_u32 s57, 0, s3
          s_bitcmp1_b32 s27, 0
          s_cselect_b32 s3, s3, s57
          s_movk_i32 s{sROW}, 2688
          s_cmp_ge_u32 s26, 12
          s_cselect_b32 s3, s3, 0
          s_cselect_b32 s{sROW}, 896, s{sROW}
          s_cselect_b32 s27, s27, s26
          s_add_u32 s56, s56, s3
          s_mul_i32 s{sCOL}, s27, 224
          v_lshrrev_b32 v8, 3, v1
          v_add_u32 v8, s56, v8
          s_movk_i32 s3, 896
          v_mul_i32_i24 v8, s3, v8
          v_bfe_u32 v9, v1, 4, 2
          v_and_b32 v10, 7, v1
          v_xor_b32 v9, v9, v10
          v_lshl_add_u32 v2, v9, 4, v8
          v_xor_b32 v9, 4, v9
          v_lshl_add_u32 v3, v9, 4, v8
          v_add_u32 v3, {8*896}, v3
          v_add_u32 v4, {16*896}, v2
          v_add_u32 v5, {16*896}, v3
          v_lshrrev_b32 v8, 4, v1
          v_lshlrev_b32 v9, 2, v8
          v_sub_u32 v9, v1, v9
          v_and_b32 v9, 15, v9
          v_mul_u32_u24 v8, s{sROW}, v8
          v_lshl_add_u32 v7, v9, 4, v8
          v_cmp_gt_u32 s[96:97], 14, v9
          s_lshl_b32 s{sK}, s54, 6
          s_lshl_b32 s54, s54, 7
          s_lshl_b32 s3, s{sW}, 4
          s_mul_i32 s3, s3, s{sROW}
          s_add_u32 s{sCOL}, s{sCOL}, s3
          s_lshl_b32 s53, s{sROW}, 2
          s_lshl_b32 s55, s{sW}, 12
          s_waitcnt lgkmcnt(0)""")
    srd(a, XS, 4, 2048 * 896)
    q = []
    gap = []
    def ride(n):
        for x in gap[:n]: a(x)
        del gap[:n]
    def xchunk(c):
        for g in range(4):
            a(f"s_add_u32 m0, s55, {XB + (c % 3)*16384 + g*1024}")
            a(f"s_nop 0\nbuffer_load_dwordx4 v{2+g}, {s(XS,4)}, s54 offen lds")
            ride(9)
        wrapinc(a, 54, 128, 896)
        q.extend([c] * 4)
    def wchunk(c):
        a(f"""s_mul_i32 s{sWO}, s{sK}, s{sROW}
              s_add_u32 s{sWO}, s{sWO}, s{sCOL}""")
        wrapinc(a, sK, 64, 448)
        a("s_mov_b64 exec, s[96:97]")
        for u in range(4):
            a(f"s_add_u32 m0, s55, {c*16384 + u*1024}")
            if u: a(f"s_add_u32 s{sWO}, s{sWO}, s53")
            a(f"buffer_load_dwordx4 v7, {s(WA,4)}, s{sWO} offen lds")
        a("s_mov_b64 exec, -1")
        q.extend([c] * 4)
    bst(11)
    xchunk(0)
    a(f"""s_cmp_ge_u32 s26, 12
          s_cselect_b32 s{WA}, s12, s6
          s_cselect_b32 s{WA+1}, s13, s7
          s_mul_i32 s{WA+2}, s{sROW}, 448
          s_mov_b32 s{WA+3}, 0x20000""")
    wchunk(0)
    srd(a, WD, 24, WS_END)
    a(f"""s_lshl_b32 s61, s{sW}, 8
          s_or_b32 s61, s61, s2
          v_mov_b32 v22, 0
          s_cmp_ge_u32 s61, {NINIT}
          s_cbranch_scc1 PB_noinit
          v_lshlrev_b32 v13, 7, v1
          s_lshl_b32 s3, s2, 13
          s_add_u32 s3, s3, {FLG}
          buffer_store_dword v22, v13, {s(WD,4)}, s3 offen{SC}""")
    a.label("PB_noinit")
    if opt("codepf", 1) == 2: codepf()
    if opt("tlb", 0):
        a(f"""v_lshlrev_b32 v23, {opt("tlb", 0)}, v1
              v_add_u32 v23, {0x1fff80 if opt("tlb", 0) == 21 else 0xff80}, v23
              s_lshl_b32 s3, s{sW}, {opt("tlb", 0) + 6}
              buffer_load_dword v24, v23, {s(WD,4)}, s3 offen sc1""")
        q.append(1)
    a(f"""v_lshrrev_b32 v8, 1, v1
          v_and_b32 v9, 15, v8
          v_lshrrev_b32 v10, 4, v8
          v_lshlrev_b32 v10, 14, v10
          v_lshl_add_u32 v10, v9, 8, v10
          v_and_b32 v9, 3, v8
          v_lshlrev_b32 v9, 2, v9
          v_and_b32 v8, 1, v1
          v_add3_u32 v9, v9, v8, 14
          v_and_b32 v9, 15, v9
          v_lshl_add_u32 v10, v9, 4, v10
          v_add_u32 v10, s55, v10
          v_add_u32 v11, 0x10000, v10
          v_mov_b32 v12, 0x3f803f80
          v_mov_b32 v13, v12
          v_mov_b32 v14, v12
          v_mov_b32 v15, v12
          ds_write_b128 v10, v[12:15]
          ds_write_b128 v10, v[12:15] offset:32768
          ds_write_b128 v11, v[12:15]
          s_mov_b64 exec, 0xffffffff
          ds_write_b128 v11, v[12:15] offset:32768
          s_mov_b64 exec, -1""")
    srd(a, WD, 24, WS_END)
    srd(a, WB_, 22, 256)
    xchunk(1)
    if opt("w1e", 1): wchunk(1)
    CSB = opt("csb", 0)
    if CSB:
        a("s_cmp_ge_u32 s26, 12\ns_cselect_b32 s57, 8, 7")
        tr_addrs(a, 21, "s57", 0, perm=False, which=(4,))
        a("v_mov_b32 v26, 0\nv_mov_b32 v27, 0")
    small_setup(a, sRB, sCB, sT)
    tail = A()
    tail(f"""s_lshr_b32 s{sFT}, s{sW}, 1
          s_xor_b32 s{sFT}, s{sFT}, s2
          s_and_b32 s{sFT}, s{sFT}, 1
          v_lshrrev_b32 v8, 2, v1
          v_mul_u32_u24 v8, 896, v8
          v_bfe_u32 v9, v1, 4, 2
          v_and_b32 v10, 3, v1
          v_xor_b32 v9, v9, v10
          v_lshl_add_u32 v8, v9, 4, v8
          s_mul_i32 s3, s{sT}, {32*896}
          s_lshl_b32 s26, s{sCB}, 7
          s_add_u32 s3, s3, s26
          s_lshl_b32 s26, s{sFT}, 6
          s_add_u32 s3, s3, s26
          s_add_u32 s26, s3, {16*896}
          buffer_load_dwordx4 {v(XT,4)}, v8, {s(XS,4)}, s3 offen
          buffer_load_dwordx4 {v(XT+4,4)}, v8, {s(XS,4)}, s26 offen""")
    t2, t3, t4 = A(), A(), A()
    srd(t2, WB_, 14, 448*896)
    t2(f"""v_lshlrev_b32 v8, 7, v1
           s_lshr_b32 s57, s2, 3
           s_lshl_b32 s57, s57, 2
           s_add_u32 s57, s57, s{sW}
           s_mul_i32 s3, s57, {25*128}
           s_bfm_b64 exec, 25, 0
           buffer_load_dword v16, v8, {s(WB_,4)}, s3 offen{TF}
           s_mov_b64 exec, -1""")
    srd(t3, WB_, 16, 448*3584)
    t3(f"""s_lshr_b32 s57, s2, 3
           s_lshl_b32 s57, s57, 2
           s_add_u32 s57, s57, s{sW}
           s_mul_i32 s3, s57, 49
           v_add_u32 v9, s3, v1
           v_mul_u32_u24 v10, 9363, v9
           v_lshrrev_b32 v10, 17, v10
           v_mul_u32_u24 v11, 14, v10
           v_sub_u32 v9, v9, v11
           v_mul_u32_u24 v10, 3584, v10
           v_lshl_add_u32 v9, v9, 7, v10
           s_and_b32 s3, s2, 1
           s_mul_i32 s3, s3, 1792
           s_bfm_b64 exec, 49, 0
           buffer_load_dword v17, v9, {s(WB_,4)}, s3 offen{TF}
           s_mov_b64 exec, -1""")
    srd(t4, WB_, 18, 448*3584)
    t4(f"""v_lshlrev_b32 v8, 7, v1
           s_lshl_b32 s57, s2, 2
           s_add_u32 s57, s57, s{sW}
           s_mul_i32 s3, s57, {13*128}
           s_bfm_b64 exec, 13, 0
           buffer_load_dword v18, v8, {s(WB_,4)}, s3 offen{TF}""")
    srd(t4, WB_, 8, 448*896)
    t4(f"""s_lshl_b32 s3, s57, 9
           s_mov_b64 exec, 15
           buffer_load_dword v19, v8, {s(WB_,4)}, s3 offen{TF}
           s_mov_b64 exec, -1""")
    if opt("tmode", 0) & 1:
        t3 = A(); srd(t3, WB_, 16, 448*3584)
        t3(f"""v_lshlrev_b32 v8, 7, v1
               s_lshl_b32 s57, s2, 2
               s_add_u32 s57, s57, s{sW}
               s_mul_i32 s3, s57, {13*128}
               s_bfm_b64 exec, 13, 0
               buffer_load_dword v17, v8, {s(WB_,4)}, s3 offen
               s_mov_b64 exec, -1""")
    if opt("tmode", 0) & 2:
        t2 = A(); srd(t2, WB_, 14, 448*896)
        t2(f"""v_lshlrev_b32 v8, 7, v1
               s_lshl_b32 s57, s2, 2
               s_add_u32 s57, s57, s{sW}
               s_lshl_b32 s3, s57, 9
               s_mov_b64 exec, 15
               buffer_load_dword v16, v8, {s(WB_,4)}, s3 offen
               s_mov_b64 exec, -1""")
    w2, w2b = A(), A()
    w2(f"s_lshl_b32 s47, s{sW}, 11")
    small_addrs(w2, "s47")
    srd(w2, WA, 14, 448 * 896)
    w2(f"""s_mul_i32 s3, s{sW}, {112*896}
           s_lshl_b32 s26, s{sCB}, 7
           s_add_u32 s3, s3, s26
           v_add_u32 v4, s3, v7
           v_add_u32 v5, {8*896}, v4
           s_mul_i32 s50, s{sCB}, {16*896*opt("rot", 1)}""")
    for j in range(7):
        g = w2 if j < 6 else w2b
        g(f"""s_add_u32 m0, s47, {j*8192}
              s_nop 0
              buffer_load_dwordx4 v4, {s(WA,4)}, s50 offen lds
              s_add_u32 m0, s47, {j*8192 + 1024}
              s_nop 0
              buffer_load_dwordx4 v5, {s(WA,4)}, s50 offen lds""")
        if j < 6: wrapinc(g, 50, 16*896, 112*896)
    c3a, c3b = A(), A()
    srd(c3a, WB_, 16, 448*3584)
    c3a(f"""s_mul_i32 s3, s2, 2341
            s_lshr_b32 s3, s3, 16
            s_mul_i32 s57, s3, 28
            s_sub_u32 s57, s2, s57                 ; line = id % 28
            s_lshl_b32 s3, s3, 2
            s_add_u32 s3, s3, s{sW}
            s_mul_i32 s63, s57, 28
            s_add_u32 s63, s63, s3
            s_lshl_b32 s63, s63, 8
            s_add_u32 s63, s63, {CS3P}
            s_cmp_lt_u32 s2, 196
            s_cselect_b32 s63, s63, {OOB}
            s_mul_i32 s3, s3, {16*3584}
            s_lshl_b32 s57, s57, 7
            s_add_u32 s3, s3, s57
            s_add_u32 s57, s3, {8*3584}
            v_lshrrev_b32 v8, 3, v1
            v_mul_u32_u24 v8, 3584, v8
            v_and_b32 v9, 7, v1
            v_lshl_add_u32 v8, v9, 4, v8
            buffer_load_dwordx4 v[32:35], v8, {s(WB_,4)}, s3 offen
            buffer_load_dwordx4 v[36:39], v8, {s(WB_,4)}, s57 offen""")
    unpack(c3b, 40, 32, 8)
    for i in range(8): c3b(f"v_add_f32 v{40+i}, v{40+i}, v{48+i}")
    for i in range(4): c3b(f"v_permlane32_swap_b32 v{40+i}, v{44+i}")
    for i in range(4): c3b(f"v_add_f32 v{40+i}, v{40+i}, v{44+i}")
    for i in range(2): c3b(f"v_permlane16_swap_b32 v{40+i}, v{42+i}")
    for i in range(2): c3b(f"v_add_f32 v{40+i}, v{40+i}, v{42+i}")
    c3b(f"""v_and_b32 v8, 7, v1
            v_lshrrev_b32 v9, 4, v1
            v_lshlrev_b32 v8, 5, v8
            v_lshl_add_u32 v8, v9, 3, v8
            v_add_f32_dpp v40, v40, v40 row_ror:8 row_mask:0xf bank_mask:0xf
            v_add_f32_dpp v41, v41, v41 row_ror:8 row_mask:0xf bank_mask:0xf
            buffer_store_dwordx2 v[40:41], v8, {s(WD,4)}, s63 offen{SC}""")
    extras = [(opt("tl", 4), tail, 2), (opt("c3a", 4), c3a, 2), (opt("tw2", 2), t2, 1), (opt("w2c", 8), w2, 12), (opt("tw3", 4), t3, 1), (opt("tw4", 4), t4, 2), (max(opt("w2d", 6), opt("w2c", 8)), w2b, 2)]
    bst(2)
    for c in range(7):
        last = max(i for i, x in enumerate(q) if x == c)
        a(f"s_waitcnt vmcnt({len(q) - 1 - last}) lgkmcnt(0)")
        bst((3, 12, 13, 4, 5, 14, 8)[c])
        a("s_barrier")
        if CSB:
            if c == 4: a("v_add_u32 v25, 0x10000, v25")
            for i in range(8): a(f"ds_read_b64_tr_b16 {v(56+2*i,2)}, v25 offset:{(c & 3)*16384 + (16*(i>>1) + 4*(i&1))*256}")
            gap.append("s_waitcnt lgkmcnt(0)")
            for i in range(16):
                lo = 28 + 2*(i & 1)
                gap += [f"v_lshlrev_b32 v{lo}, 16, v{56+i}", f"v_and_b32 v{lo+1}, 0xffff0000, v{56+i}",
                        f"v_add_f32 v26, v26, v{lo}", f"v_add_f32 v27, v27, v{lo+1}"]
        if c == 1:
            a(f"""s_cmp_ge_u32 s61, {NINIT}
                  s_cbranch_scc1 PB_noset
                  s_lshl_b32 s3, s2, 2
                  v_mov_b32 v9, 1
                  s_mov_b64 exec, 1
                  buffer_store_dword v9, v22, {s(WB_,4)}, s3 offen{SC}
                  s_mov_b64 exec, -1""")
            a.label("PB_noset")
        if c == 0 and not opt("w1e", 1): wchunk(1)
        if c + 2 < 7: xchunk(c + 2); wchunk(c + 2)
        if c == 3:
            srd(a, WB_, 22, 256)
            a(f"v_min_u32 v20, {NINIT - 1}, v1\nv_lshlrev_b32 v20, 2, v20\nbuffer_load_dword v21, v20, {s(WB_,4)}, 0 offen sc1"); q.append(5)
        if c == 5:
            a("v_cmp_eq_u32 vcc, 0, v21\ns_cbranch_vccz PB_clr")
            srd(a, WB_, 22, 256)
            poll(a, 20, NINIT, WB_)
            a.label("PB_clr")
        for when, code, nv in extras:
            if when == c:
                for x in code.l: a(x)
                q.extend(["c3" if code is c3a or code is tail else 99] * nv)
        ride(999)
    if CSB:
        a("v_add_f32 v26, v26, v27")
        half_sum(a, 26, 27)
        cs_publish(a, 26, 28, XCH)
    a(f"""v_mov_b32 v8, {CNT}
          v_mov_b32 v12, 0
          v_mov_b32 v13, 0
          v_mov_b32 v14, 0
          v_mov_b32 v15, 0
          ds_write_b128 v8, v[12:15]
          ds_write_b128 v8, v[12:15] offset:16
          ds_write_b128 v8, v[12:15] offset:32
          s_waitcnt lgkmcnt(0)
          s_barrier                              ; barrier 7""")
    for when, code, nv in extras:
        if when == 67:
            for x in code.l: a(x)
            q.extend([99] * nv)
    a(f"""s_waitcnt vmcnt({len(q) - 1 - max(i for i, x in enumerate(q) if x == "c3")})""")
    for x in c3b.l: a(x)
    g2_setup(a)
    a(f"""s_and_b32 s3, s2, 1
          s_lshl_b32 s3, s3, 3
          s_lshr_b32 s26, s2, 5
          s_add_u32 s3, s3, s26
          s_lshl_b32 s3, s3, 4
          s_lshr_b32 s26, s{sRB}, 1
          s_add_u32 s3, s3, s26
          s_lshl_b32 s3, s3, 7
          s_add_u32 s3, s3, {FP}
          s_waitcnt vmcnt(0)""")
    signal(a, 3, C_S1, last=7)
    for when, code, nv in extras:
        if when == 7:
            for x in code.l: a(x)
    bst(9)
    gwait(a, C_X, 4, field=1)
    for when, code, nv in extras:
        if when == 8:
            for x in code.l: a(x)
    bst(10); bst(15)

def small_setup(a, sRB, sCB, sT):
    a(f"""s_bfe_u32 s26, s2, 0x20001
          s_lshl_b32 s26, s26, 2
          s_bfe_u32 s3, s2, 0x20003
          s_add_u32 s26, s26, s3
          s_lshl_b32 s{sRB}, s26, 1
          s_and_b32 s3, s2, 1
          s_add_u32 s{sRB}, s{sRB}, s3
          s_lshr_b32 s{sCB}, s2, 5
          s_and_b32 s3, s{sW}, 1
          s_lshl_b32 s{sT}, s{sRB}, 1
          s_add_u32 s{sT}, s{sT}, s3""")

def small_addrs(a, sM, natural=False):
    a(f"""v_lshrrev_b32 v8, 3, v1
          v_bfe_u32 v9, v1, 4, 1
          v_lshlrev_b32 v9, 2, v9
          v_and_b32 v10, 7, v1
          v_xor_b32 v9, v9, v10
          v_mul_u32_u24 v8, 896, v8
          v_lshl_add_u32 v7, v9, 4, v8
          v_lshrrev_b32 v8, 5, v1
          v_bfe_u32 v9, v1, 2, 2
          v_lshl_add_u32 v8, v8, 2, v9
          v_lshlrev_b32 v8, 7, v8
          v_bfe_u32 v10, v1, 4, 1
          v_bfe_u32 v11, v1, 1, 1
          v_lshl_add_u32 v10, v10, 1, v11
          v_bfe_u32 v11, v1, 3, 1
          v_lshl_add_u32 v10, v11, 2, v10
          v_lshl_add_u32 v8, v10, 4, v8
          v_and_b32 v11, 1, v1
          v_lshl_add_u32 v8, v11, 3, v8
          s_lshl_b32 s3, {"0" if natural else "s%d" % sFT}, 6
          v_xor_b32 v8, s3, v8
          v_add_u32 v2, {sM}, v8
          v_xor_b32 v8, 64, v8
          v_add_u32 v3, {sM}, v8""")

def wreads(a, WF, buf, off, va=2):
    for b in range(2):
        for e in range(2): a(f"ds_read_b64_tr_b16 {v(WF+8*buf+4*b+2*e,2)}, v{va+b} offset:{off + 8*e*128}")
def mfmas(a, ACC, WF, buf, act0, act1, first):
    for aa, ar in enumerate((act0, act1)):
        for b in range(2):
            j = 2*aa + b
            a(f"{MF} {v(ACC+16*j,16)}, {v(WF+8*buf+4*b,4)}, {v(ar,4)}, {'0' if first else v(ACC+16*j,16)}")

def g2_setup(a):
    EP = 176
    sRB, sCB, sT, sM, sK, sKA, sX = 44, 45, 48, 47, 50, 51, 53
    sRB3, sCB3, sT3, sK3, sL = 54, 55, 56, 57, 49
    ROT = opt("rot", 1)
    a(f"s_lshl_b32 s{sL}, s{sW}, 11")
    a(f"""s_add_u32 s3, s{sL}, {H1}
          v_add_u32 v10, s3, v0
          v_and_b32 v8, 31, v1
          v_lshlrev_b32 v8, 6, v8
          v_bfe_u32 v9, v1, 2, 2
          v_lshl_add_u32 v8, v9, 4, v8
          v_lshrrev_b32 v9, 5, v1
          v_lshl_add_u32 v8, v9, 3, v8
          v_add_u32 v12, s3, v8
          v_xor_b32 v13, 16, v12
          v_xor_b32 v14, 32, v12
          v_xor_b32 v15, 48, v12
          ds_write_b128 v10, v[232:235]
          ds_write_b128 v10, v[236:239] offset:1024
          s_waitcnt lgkmcnt(0)""")
    for j in range(4): a(f"ds_read_b64 {v(EP+2*j,2)}, v{12+j}")
    a(f"""s_and_b32 s26, s2, 7
          s_lshr_b32 s27, s2, 3
          s_lshr_b32 s{sRB3}, s26, 1
          s_lshl_b32 s{sRB3}, s{sRB3}, 2
          s_and_b32 s3, s27, 3
          s_add_u32 s{sRB3}, s{sRB3}, s3
          s_and_b32 s{sCB3}, s26, 1
          s_mul_i32 s{sCB3}, s{sCB3}, 7
          s_add_u32 s{sCB3}, s{sCB3}, s{sCB}
          s_lshl_b32 s{sT3}, s{sRB3}, 2
          s_add_u32 s{sT3}, s{sT3}, s{sW}
          v_lshrrev_b32 v8, 3, v1
          v_bfe_u32 v9, v1, 4, 1
          v_lshlrev_b32 v9, 2, v9
          v_and_b32 v6, 7, v1
          v_xor_b32 v9, v9, v6
          v_mul_u32_u24 v8, 3584, v8
          v_lshl_add_u32 v6, v9, 4, v8
          s_mul_i32 s3, s{sW}, {16*3584}
          s_lshl_b32 s26, s{sCB3}, 8
          s_add_u32 s3, s3, s26
          v_add_u32 v6, s3, v6                   ; W3 voffset
          s_mul_i32 s{sK3}, s{sCB}, {64*3584*ROT}""")
    srd(a, WB_, 16, 448 * 3584)
    a("s_waitcnt lgkmcnt(0)")
    a(f"""s_mul_i32 s3, s{sT}, 28
          s_mul_i32 s26, s{sW}, 7
          s_add_u32 s3, s3, s26
          s_lshl_b32 s3, s3, 10
          s_add_u32 s3, s3, {HF}
          v_add_u32 v186, s3, v0
          s_xor_b32 s3, s{sT}, 1
          s_mul_i32 s3, s3, 28
          s_add_u32 s3, s3, s26
          s_lshl_b32 s3, s3, 10
          s_add_u32 s3, s3, {HF}
          v_add_u32 v187, s3, v0
          s_mul_i32 s{sKA}, s{sCB}, {1024*ROT}
          s_mul_i32 s{sX}, s{sT}, 28
          s_lshl_b32 s3, s{sCB}, 2
          s_add_u32 s{sX}, s{sX}, s3
          s_lshl_b32 s3, s{sFT}, 1
          s_add_u32 s{sX}, s{sX}, s3
          s_lshl_b32 s{sX}, s{sX}, 10
          s_add_u32 s{sX}, s{sX}, {X1F}
          s_add_u32 s3, s{sW}, 12
          s_lshl_b32 s3, s3, 4
          s_lshr_b32 s26, s{sRB}, 1
          s_add_u32 s3, s3, s26
          s_lshl_b32 s3, s3, 7
          s_add_u32 s3, s3, {FP}
          v_mov_b32 v188, s3
          s_lshl_b32 s3, s26, 7
          s_add_u32 s3, s3, {FP}
          v_mov_b32 v189, s3
          v_lshlrev_b32 v8, 3, v1
          v_and_b32 v15, 0xff, v8
          s_lshl_b32 s27, s{sT}, 8
          s_add_u32 s27, s27, {ST1}""")
    unpack(a, RES, EP, 8)

def roleb(a):
    ACC, WF, AR, EP = 16, 80, 112, 176
    sRB, sCB, sT, sM, sK, sKA, sX = 44, 45, 48, 47, 50, 51, 53
    sRB3, sCB3, sT3, sK3, sL = 54, 55, 56, 57, 49
    ROT = opt("rot", 1)
    a("s_cmp_ge_u32 s2, 224\ns_cbranch_scc0 B_go")
    a(f"""s_mov_b64 exec, 1
          v_mov_b32 v8, {CNT}
          v_mov_b32 v9, {B_G3_DONE // 4}
          ds_add_u32 v8, v9
          s_mov_b64 exec, -1""")
    garrive(a, C_X)
    if opt("idlepf", 0):
        if opt("idlepf", 0) == 2: gwait(a, C_S1, 8)
        else:
            a(f"""s_lshl_b32 s3, s{sRB}, 10
                  s_add_u32 s3, s3, {F2}
                  v_mov_b32 v10, s3""")
            poll(a, 10, 1)
        srd(a, WA, 18, 1792 * 896)
        srd(a, WB_, 8, 448 * 896)
        a(f"""s_lshr_b32 s3, s2, 3
              s_sub_u32 s3, s3, 28
              s_lshl_b32 s3, s3, 2
              s_add_u32 s3, s3, s{sW}
              s_lshl_b32 s26, s3, 13
              s_and_b32 s27, s2, 1
              s_mul_i32 s27, s27, {896*896}
              s_add_u32 s26, s26, s27
              v_lshlrev_b32 v8, 7, v1
              s_mov_b32 s27, 7""")
        a.label("B_pf")
        a(f"""buffer_load_dword v16, v8, {s(WA,4)}, s26 offen{TF}
              s_add_u32 s26, s26, {16*8192}
              s_waitcnt vmcnt(1)
              s_sub_u32 s27, s27, 1
              s_cmp_lg_u32 s27, 0
              s_cbranch_scc1 B_pf
              s_lshl_b32 s26, s3, 13""")
        for i in range(4): a(f"buffer_load_dword v16, v8, {s(WB_,4)}, s26 offen{TF}\ns_add_u32 s26, s26, {16*8192}")
    a("s_endpgm")
    a.label("B_go")
    a(f"s_setprio {opt('pb', 1)}")
    bs2 = (lambda i: common.stamp(a, i)) if opt("g2s", 0) and common.STAMPS else (lambda i: None)
    if opt("g2s", 0):
        global stamp
        keep = stamp
        stamp = lambda a_, i, *x: keep(a_, i, *x) if i in (2, 3) else None
    def w3chunk(c):
        hf, j = (1, c) if c < 7 else (0, c - 7)
        for u in range(2):
            a(f"s_add_u32 m0, s{sL}, {hf*H1 + j*8192 + u*1024}")
            a(f"s_add_u32 s3, s{sK3}, {u*8*3584 + 128*hf}")
            a(f"buffer_load_dwordx4 v6, {s(WB_,4)}, s3 offen lds")
        wrapinc(a, sK3, 64*3584, 448*3584)
    W3A = opt("w3a", 2); W3E = max(W3A, opt("w3e", 6)); assert W3E <= 6
    if W3A:
        gwait(a, C_S1, 8)
        for c in range(W3A): w3chunk(c)
    stamp(a, 2)
    poll(a, 188, 1)
    a(f"buffer_load_dword v12, v189, {s(WD,4)}, 0 offen sc1")
    stamp(a, 3)
    for j in range(7):
        a(f"buffer_load_dwordx4 {v(AR+8*j,4)}, v186, {s(WD,4)}, s{sKA} offen{SC}")
        a(f"buffer_load_dwordx4 {v(AR+8*j+4,4)}, v187, {s(WD,4)}, s{sKA} offen{SC}")
        if j < 6: wrapinc(a, sKA, 1024, 7168)
    a("s_waitcnt vmcnt(14)\nv_cmp_eq_u32 vcc, 0, v12\ns_cbranch_vccz B_st1")
    poll(a, 189, 1)
    a.label("B_st1")
    a(f"buffer_load_dwordx2 {v(EP+8,2)}, v15, {s(WD,4)}, s27 offen{SC}")
    garrive(a, C_X)
    a(f"s_setprio {opt('pg2', 0)}")
    for s_ in range(3): wreads(a, WF, s_, s_*8192)
    NW3 = 0
    for s_ in range(7):
        a(f"s_waitcnt vmcnt({2*(6-s_) + 1 + NW3}) lgkmcnt({4*min(2, 6 - s_)})")
        mfmas(a, ACC, WF, s_ & 3, AR+8*s_, AR+8*s_+4, s_ == 0)
        if s_ + 3 < 7: wreads(a, WF, (s_+3) & 3, (s_+3)*8192)
    U = AR
    a(f"s_setprio {opt('pb', 1)}")
    stamp(a, 12)
    a(f"s_waitcnt vmcnt({NW3})")
    for i in range(16): a(f"v_sub_f32 v{U+i}, v{RES+i}, v{EP+8}")
    def region2(d, j):
        a(f"""s_xor_b32 s{d}, s{sW}, {(j >> 1) + 2*(j & 1)}
              s_mul_i32 s{d}, s{d}, 12288
              s_add_u32 s{d}, s{d}, {W3B + 48*1024}""")
    region2(sM, 0)
    reduce3(a, ACC, sM, region2, 0, 4, True)
    stamp(a, 13)
    for i in range(16): a(f"v_fma_f32 v{U+i}, v{U+i}, v{EP+9}, v{ACC+i}")
    for i in range(8): a(f"v_cvt_pk_bf16_f32 v{EP+i}, v{U+2*i}, v{U+2*i+1}")
    a(f"buffer_store_dwordx4 {v(EP,4)}, v0, {s(WD,4)}, s{sX} offen{SC}")
    a(f"buffer_store_dwordx4 {v(EP+4,4)}, v0, {s(WD,4)}, s{sX} offen offset:1024{SC}")
    if not opt("g2u", 1): unpack(a, U, EP, 8)
    for i in range(16):
        a(f"v_add_f32 v{10+(i&1)}, v{U+i}, {'0' if i < 2 else 'v%d' % (10+(i&1))}")
        a(f"v_fma_f32 v{12+(i&1)}, v{U+i}, v{U+i}, {'0' if i < 2 else 'v%d' % (12+(i&1))}")
    a("v_add_f32 v10, v10, v11\nv_add_f32 v11, v12, v13")
    half_sum(a, 10, 8); half_sum(a, 11, 9)
    a(f"""s_lshl_b32 s26, s{sCB}, 1
          s_add_u32 s26, s26, s{sFT}
          s_mul_i32 s3, s{sT}, 14
          s_add_u32 s3, s3, s26
          s_lshl_b32 s3, s3, 8
          s_add_u32 s3, s3, {ST3}
          buffer_store_dwordx2 v[10:11], v15, {s(WD,4)}, s3 offen{SC}
          s_lshl_b32 s3, s{sRB}, 3
          s_add_u32 s3, s3, s{sCB}
          s_lshl_b32 s3, s3, 7
          s_add_u32 s{sX}, s3, {F2}""")
    garrive(a, 0)
    for i in range(16): a(f"v_add_f32 v{RES+i}, v{RES+i}, v{U+i}")
    lo = lambda: a("s_setprio 0") if opt("kvprio", 1) == 2 else None
    hi = lambda: a(f"s_setprio {opt('pb', 1)}") if opt("kvprio", 1) == 2 else None
    lo()
    for c in range(W3A, W3E): w3chunk(c)
    hi()
    a(f"s_waitcnt vmcnt({2*(W3E - W3A)})")
    signal(a, sX, 12)
    stamp(a, 4)
    gwait(a, 0, 8)
    lo()
    for c in range(W3E, 14): w3chunk(c)
    hi()
    ACC, WF, XR, TMP = 16, 80, 112, 240
    CSP, CS = TMP, ACC + 48
    a(f"""s_lshl_b32 s3, s{sFT}, 6
          s_sub_u32 s26, 0, s{sL}
          v_add_u32 v2, s26, v2
          v_xor_b32 v2, s3, v2
          v_xor_b32 v3, 64, v2
          v_add_u32 v4, {H1}, v2
          v_add_u32 v5, {H1}, v3""")
    a(f"""s_lshr_b32 s3, s{sT3}, 1
          s_lshl_b32 s3, s3, 10
          s_add_u32 s3, s3, {F2}
          v_lshl_add_u32 v11, v1, 7, s3
          s_lshl_b32 s26, s{sCB3}, 1
          s_lshr_b32 s3, s{sW}, 1
          s_add_u32 s26, s26, s3
          v_add_u32 v8, -7, v1
          v_mul_u32_u24 v8, 28, v8
          v_add_u32 v8, s26, v8
          v_and_b32 v9, 1, v8
          v_lshrrev_b32 v10, 5, v8
          v_lshl_add_u32 v9, v9, 3, v10
          v_bfe_u32 v10, v8, 1, 2
          v_lshl_add_u32 v9, v9, 2, v10
          v_bfe_u32 v10, v8, 3, 2
          v_lshl_add_u32 v9, v9, 2, v10
          v_lshlrev_b32 v9, 7, v9
          v_add_u32 v9, {FP}, v9
          v_cmp_gt_u32 vcc, 7, v1
          v_cndmask_b32 v11, v9, v11, vcc
          s_mul_i32 s{sK3}, s26, {28*256}
          s_and_b32 s3, s{sW}, 1
          s_lshl_b32 s3, s3, 7
          s_add_u32 s{sK3}, s{sK3}, s3
          s_add_u32 s{sK3}, s{sK3}, {CS3P}
          v_lshrrev_b32 v10, 5, v1
          v_mul_u32_u24 v10, {14*256}, v10
          v_and_b32 v9, 31, v1
          v_lshl_add_u32 v6, v9, 2, v10
          s_mul_i32 s3, s{sT3}, {28*1024}
          s_add_u32 s3, s3, {X1F}
          v_add_u32 v7, s3, v0
          s_mul_i32 s{sKA}, s{sCB}, {4096*ROT}
          v_lshrrev_b32 v12, 5, v1
          v_mul_u32_u24 v12, {7*256}, v12
          v_and_b32 v13, 31, v1
          v_lshl_add_u32 v12, v13, 3, v12
          s_mul_i32 s27, s{sT3}, {14*256}
          s_add_u32 s27, s27, {ST3}""")
    a("s_waitcnt vmcnt(0)")
    gbar(a, 0, 12)
    CSG = opt("csg", 1)
    def cs_exchange():
        a(f"""v_cvt_pk_bf16_f32 v{WF}, v{CS}, v{CS}
              v_and_b32 v{WF}, 0xffff0000, v{WF}
              v_sub_f32 v{WF}, v{CS}, v{WF}
              v_cvt_pk_bf16_f32 v{WF}, v{CS}, v{WF}
              v_and_b32 v13, 31, v1
              v_lshlrev_b32 v13, 2, v13
              s_lshl_b32 s26, s{sW}, 7
              s_add_u32 s26, s26, {XCH3}
              v_add_u32 v13, s26, v13
              ds_write_b32 v13, v{WF}""")
        a("s_waitcnt lgkmcnt(0)")
        garrive(a, 0)
    def cs_collect():
        gwait(a, 0, 16)
        a(f"v_and_b32 v15, 31, v1\nv_lshlrev_b32 v15, 2, v15\nv_add_u32 v15, {XCH3}, v15")
        for t in range(4): a(f"ds_read_b32 v{CSP+t}, v15 offset:{128*t}")
        a("s_waitcnt lgkmcnt(0)")
    hops = lambda ts: {}
    woff = None
    poll(a, 11, 14)
    stamp(a, 5)
    STL = [WF + 24, WF + 26, WF + 28, WF + 30, TMP + 8, TMP + 10, 14]; ST = STL[0]
    LA = opt("la3", 10)
    def xl(u):
        g = A()
        g(f"buffer_load_dwordx4 {v(XR+4*u,4)}, v7, {s(WD,4)}, s{sKA} offen offset:{(u&3)*1024}{SC}")
        if (u & 3) == 3 and u < 27: wrapinc(g, sKA, 4096, 7*4096)
        return g.l
    L0 = opt("l0", 4)
    for u in range(L0):
        for x in xl(u): a(x)
        if u == 3:
            for i in range(7): a(f"buffer_load_dwordx2 {v(STL[i],2)}, v12, {s(WD,4)}, s27 offen offset:{i*256}{SC}")
            for i in range(14): a(f"buffer_load_dword v{CS+i}, v6, {s(WD,4)}, s{sK3} offen offset:{i*256}{SC}")
    M0_, M1_, R, DEN = TMP+4, TMP+5, TMP+6, TMP+7
    f = A()
    for i in range(1, 7): f(f"v_add_f32 v{ST}, v{ST}, v{STL[i]}\nv_add_f32 v{ST+1}, v{ST+1}, v{STL[i]+1}")
    f(f"v_mov_b32 v12, v{ST}\nv_mov_b32 v13, v{ST+1}")
    half_sum(f, 12, 8); half_sum(f, 13, 9)
    f(f"""v_mul_f32 v12, {fb(1/448)}, v12
          v_mul_f32 v13, {fb(1/448)}, v13
          v_fma_f32 v13, -v12, v12, v13
          v_max_f32 v13, 0, v13
          v_add_f32 v13, {fb(EPS)}, v13
          v_sqrt_f32 v{DEN}, v13
          v_rsq_f32 v{R}, v13""")
    mu_frag(f, 12, "-1", M0_, M1_)
    gelu_consts(f, R, DEN)
    f(f"""s_mul_i32 s{sK}, s{sT3}, 112
          s_lshl_b32 s27, s{sCB3}, 3
          s_add_u32 s{sK}, s{sK}, s27
          s_lshl_b32 s{sK}, s{sK}, 10
          s_add_u32 s{sK}, s{sK}, {HHF}
          s_add_u32 s27, s{sK}, 4096""")
    for i in range(1, 14): f(f"v_add_f32 v{CS}, v{CS}, v{CS+i}")
    half_sum(f, CS, 8)
    f(f"""v_cvt_pk_bf16_f32 v11, v{CS}, v{CS}
          v_and_b32 v11, 0xffff0000, v11
          v_sub_f32 v11, v{CS}, v11
          v_cvt_pk_bf16_f32 v11, v{CS}, v11
          s_lshl_b32 s26, s{sW}, 7
          s_add_u32 s26, s26, {XCH3}
          v_and_b32 v13, 31, v1
          v_lshl_add_u32 v13, v13, 2, s26""")
    NA = opt("na", 2)
    t1 = ((0,) if CSG else (0, 4)) + tuple(range(1, NA)); t2_ = tuple(range(NA, 4))
    pre = hops(t1); pre["fill0"] = 4*len(t1) + 1; pre["G"] = opt("g3g", NA)
    issued = L0
    for s_ in range(28):
        pre[("s", s_)] = [f"s_waitcnt vmcnt({issued - 1 - s_ + (21 if s_ < 4 else 0)})"]
        pre[("t", s_)] = []
        for _ in range(2):
            if issued < min(28, s_ + 1 + LA): pre[("t", s_)] += xl(issued); issued += 1
        if opt("g3s", 0) and common.STAMPS and s_ in (0, 8, 16, 27):
            g = A(); common.stamp(g, {0: 2, 8: 3, 16: 12, 27: 13}[s_]); pre[("s", s_)] += g.l
    g = A(); g("ds_write_b32 v13, v11"); garrive(g, 0); pre[("m", 28*NA - 3)] = g.l
    pre["fillend"] = 28*NA - 4
    if opt("p3h", 8): pre[("s", opt("p3h", 8))] = pre[("s", opt("p3h", 8))] + [f"s_setprio {opt('pb', 1)}"]
    a(f"s_setprio {0 if opt('p3h', 8) else opt('p3a', 1)}")
    kloop(a, ACC, WF, XR, 2, t1, woff, pre, True, f.l, R=6, D=5, cs=(CS, CSP, 32))
    a(f"s_setprio {opt('pb', 1)}")
    cs_collect()
    stamp(a, 13 if False else 14)
    def gfrag(fr, o):
        return gelu8(ACC + 8*fr, 10, 12, 14, TMP + 8, o) + [f"buffer_store_dwordx4 {v(o,4)}, v0, {s(WD,4)}, s{sK if fr < 4 else 27} offen offset:{(fr&3)*1024}{SC}"]
    assert NA == 2 or not opt("w4e", 0)
    garrive(a, 0)
    mean_fix(a, ACC, WF, lambda t: CSP + t, M0_, M1_, tuple(range(NA)))
    srd(a, WA, 18, 1792 * 896)
    a(f"""v_lshrrev_b32 v8, 3, v1
          v_bfe_u32 v9, v1, 4, 1
          v_lshlrev_b32 v9, 2, v9
          v_and_b32 v7, 7, v1
          v_xor_b32 v9, v9, v7
          v_mul_u32_u24 v8, 896, v8
          v_lshl_add_u32 v7, v9, 4, v8
          s_and_b32 s3, s2, 1
          s_mul_i32 s3, s3, 56
          s_add_u32 s3, s3, s{sW}
          s_mul_i32 s3, s3, {16*896}
          s_lshl_b32 s26, s{sCB}, 7
          s_add_u32 s3, s3, s26
          v_add_u32 v7, s3, v7                   ; W4 voffset
          s_mul_i32 s{sK3}, s{sCB}, {8*16*896*ROT}""")
    def w4step(g, j):
        for u in range(2):
            g(f"s_add_u32 m0, s{sL}, {j*8192 + u*1024}\ns_add_u32 s3, s{sK3}, {u*8*896}\nbuffer_load_dwordx4 v7, {s(WA,4)}, s3 offen lds")
        wrapinc(g, sK3, 4*16*896, 896*896)
    nov = opt("nov", 2*NA)
    pre = {"G": opt("g3b", 4 - NA)}
    W4S = opt("w4s", 3)
    W4E = opt("w4e", 0)
    g = A(); g.uid = 2000; gwait(g, 0, 20); pre[("s", W4S if W4E else 26)] = g.l
    for j in range(W4E):
        g = A(); w4step(g, j); pre[("t", W4S + (21 // W4E)*j)] = g.l
    kloop(a, ACC, WF, XR, 2, t2_, woff, pre, True,
          sum((gfrag(fr, XR + 4*fr) for fr in range(nov)), []), R=6, D=5)
    garrive(a, 0)
    OWN = XR
    mean_fix(a, ACC, WF, lambda t: CSP + t, M0_, M1_, tuple(range(NA if NA < 4 else 0, 4)))
    for fr in range(nov, 8):
        if opt("pkg", 0):
            gelu_pairs(a, [ACC + 8*fr + 2*i for i in range(4)], 10, 12, 14, TMP + 8)
            for i in range(4): a(f"v_cvt_pk_bf16_f32 v{XR+4*fr+i}, v{ACC+8*fr+2*i}, v{ACC+8*fr+2*i+1}")
            a(gfrag(fr, XR + 4*fr)[-1])
        else:
            for x in gfrag(fr, OWN + 4*fr): a(x)
    stamp(a, 8)
    ACC, WF, AR, EP = 16, 80, 144, 176
    WOB = 0
    srd(a, WB_, 8, 448 * 896)
    a("s_and_b32 s27, s2, 1")
    gwait(a, 0, B_G3_DONE)
    NP0 = opt("np0", 4)
    lo()
    for j in range(W4E, W4E + NP0): w4step(a, j)
    hi()
    a(f"""s_lshl_b32 s3, s{sRB3}, 4
          s_add_u32 s3, s3, s{sCB3}
          s_lshl_b32 s3, s3, 7
          s_add_u32 s{sX}, s3, {F3}
          s_mul_i32 s3, s{sT3}, 112
          s_mul_i32 s26, s27, 56
          s_add_u32 s3, s3, s26
          s_lshl_b32 s3, s3, 10
          s_add_u32 s3, s3, {HHF}
          v_add_u32 v4, s3, v0
          s_add_u32 s{sKA}, s{sCB}, 1
          s_cmp_eq_u32 s{sKA}, 7
          s_cselect_b32 s{sKA}, 0, s{sKA}
          s_lshl_b32 s{sKA}, s{sKA}, 13
          s_lshl_b32 s26, s{sRB3}, 4
          s_mul_i32 s3, s27, 7
          s_add_u32 s3, s3, s26
          v_add_u32 v10, s3, v1
          v_lshlrev_b32 v10, 7, v10
          v_add_u32 v10, {F3}, v10
          s_lshl_b32 s3, s{sW}, 2
          s_add_u32 s3, s3, s26
          v_and_b32 v14, 3, v1
          v_add_u32 v14, s3, v14
          v_lshlrev_b32 v14, 7, v14
          v_add_u32 v14, {FA}, v14
          s_waitcnt vmcnt({2*NP0})""")
    signal(a, sX, 16)
    stamp(a, 9)
    lo()
    for j in range(W4E + NP0, 14): w4step(a, j)
    hi()
    a(f"""s_mul_i32 s3, s27, {896*896}
          s_mul_i32 s26, s{sW}, {96*896}
          s_sub_u32 s3, s26, s3
          v_add_u32 v7, s3, v7""")
    poll(a, 10, 7)
    gbar(a, 0, B_G3_DONE + 4)
    stamp(a, 10)
    LA4, RA = opt("la4", 12), 14
    PB = opt("pb16", 1); NPS = 8 >> PB
    OR_ = lambda u: 168 + 8*u if u < 7 else 240
    PD, EP = 112, 128
    q = []
    def after(tag):
        return len(q) - 1 - max(i for i, x in enumerate(q) if x == tag)
    def al(u):
        a(f"buffer_load_dwordx4 {v(AR + 4*(u % RA), 4)}, v4, {s(WD,4)}, s{sKA} offen offset:{(u&3)*1024}{SC}"); q.append(("a", u))
        if (u & 3) == 3 and u < 55: wrapinc(a, sKA, 4096, 56*1024)
    def rd(m):
        s_, b = m >> 1, m & 1
        if m == 64: a("v_add_u32 v2, 0x10000, v2\nv_add_u32 v3, 0x10000, v3")
        for e in range(2): a(f"ds_read_b64_tr_b16 {v(WF + 4*(m & 7) + 2*e, 2)}, v{2+b} offset:{(s_ & 31)*2048 + e*1024}")
    def wo(u):
        a(f"s_add_u32 m0, s{sM}, {u*1024}\ns_mov_b32 s3, {u*8*896}\nbuffer_load_dwordx4 v7, {s(WB_,4)}, s3 offen lds"); q.append(("w", u))
    def ol(u):
        for aa in range(2):
            a(f"buffer_load_dwordx4 {v(OR_(u)+4*aa,4)}, v{12+aa}, {s(WD,4)}, {'0' if u < 4 else 's%d' % sL} offen offset:{(u&3)*1024}{SC}"); q.append(("o", u))
    assert ROT
    I0 = opt("i0", 2); nxt = [8 + I0]
    for u in range(8, 8 + I0): al(u)
    a(f"""s_mul_i32 s{sM}, s{sW}, 15360
          s_movk_i32 s{sL}, 4096
          s_lshl_b32 s3, s{sT}, 5
          s_lshl_b32 s26, s{sW}, 3
          s_add_u32 s3, s3, s26
          s_lshl_b32 s3, s3, 10
          s_add_u32 s3, s3, {OF}
          v_add_u32 v12, s3, v0
          v_xor_b32 v13, {32*1024}, v12
          s_setprio {opt('pf', 0)}""")
    D4 = 6
    S_ARR, S_WO, S_FL, S_CHK = 31, opt("swo", 40), opt("sfl", 54), 99
    for m in range(D4): rd(m)
    for m in range(112):
        s_, b = m >> 1, m & 1
        if b == 0: a("s_waitcnt " + (f"vmcnt({after(('a', s_))}) " if s_ >= 8 else "") + f"lgkmcnt({2*max(0, min(D4 - 2, 110 - m))})")
        a(f"{MF} {v(ACC+16*b,16)}, {v(WF + 4*(m & 7), 4)}, {v(AR + 4*(s_ % RA) if s_ >= 8 else OWN + 4*s_, 4)}, {'0' if s_ == 0 else v(ACC+16*b,16)}")
        if m + D4 < 112: rd(m + D4)
        if b == 1:
            if opt("g4s", 0) and s_ in (7, 8, 30, 36, 51): stamp(a, {7: 2, 8: 3, 30: 12, 36: 13, 51: 4}[s_])
            for _ in range(opt("i1", 2) if s_ < 8 else 1):
                if nxt[0] < min(56, max(s_, 7) + 1 + LA4): al(nxt[0]); nxt[0] += 1
            if s_ == S_ARR: garrive(a, 0)
            if s_ == S_WO: gwait(a, 0, B_G3_DONE + 8)
            if S_WO <= s_ < S_WO + 15: wo(s_ - S_WO)
            if s_ == S_FL:
                a(f"buffer_load_dword v15, v14, {s(WD,4)}, 0 offen sc1"); q.append("f")
    a(f"s_setprio {opt('pb', 1)}")
    stamp(a, 11)
    a(f"""s_lshl_b32 s{sX}, s2, 7
          s_add_u32 s{sX}, s{sX}, {FQ}
          s_lshl_b32 s3, s{sFT}, 6
          s_add_u32 s26, s{sM}, 0xffff0000
          v_xor_b32 v2, s3, v2
          v_xor_b32 v3, s3, v3
          v_add_u32 v2, s26, v2
          v_add_u32 v3, s26, v3
          s_xor_b32 s3, s{sRB}, 1
          s_mul_i32 s3, s3, 7
          s_add_u32 s3, s3, s{sCB}
          s_lshl_b32 s3, s3, 1
          s_and_b32 s26, s{sW}, 1
          s_add_u32 s3, s3, s26
          s_lshl_b32 s3, s3, {13 - PB}
          s_add_u32 s3, s3, {PART}
          s_cmp_eq_u32 s{sFT}, 0
          s_cselect_b32 s3, {OOB}, s3
          s_add_u32 s26, s3, 4096""")
    woff2 = lambda u: (28*(u >> 1) + 16*(u & 1)) * 128
    if PB:
        for i in range(16):
            a(f"v_cvt_pk_bf16_f32 v{PD+i}, v{ACC+2*i}, v{ACC+2*i+1}")
            if (i & 3) == 3: a(f"buffer_store_dwordx4 {v(PD+i-3,4)}, v0, {s(WD,4)}, s3 offen offset:{(i>>2)*1024}{SC}")
    else:
        for i in range(8): a(f"buffer_store_dwordx4 {v(ACC+4*i,4)}, v0, {s(WD,4)}, s{3 if i < 4 else 26} offen offset:{(i&3)*1024}{SC}")
    a(f"""s_mov_b32 s{sKA}, 0
          s_waitcnt vmcnt({NPS})
          v_cmp_eq_u32 vcc, 0, v15
          s_cbranch_vccz B_oready
          s_waitcnt vmcnt(0)""")
    signal(a, sX, C_SQ)
    a(f"s_mov_b32 s{sKA}, 1")
    poll(a, 14, 4)
    a.label("B_oready")
    for u in range(8): ol(u)
    stamp(a, 15)
    for u in range(3): wreads(a, WF, u, woff2(u))
    a(f"""s_mul_i32 s27, s{sRB}, 7
          s_add_u32 s27, s27, s{sCB}
          s_lshl_b32 s27, s27, 1
          s_and_b32 s26, s{sW}, 1
          s_add_u32 s27, s27, s26
          s_lshl_b32 s27, s27, 1
          s_add_u32 s27, s27, s{sFT}
          s_lshl_b32 s27, s27, {12 - PB}
          s_add_u32 s{sK}, s27, {PART}
          s_xor_b32 s3, s2, 1
          s_lshl_b32 s3, s3, 7
          s_add_u32 s3, s3, {FQ}
          v_mov_b32 v14, s3
          s_cmp_eq_u32 s{sFT}, 0
          s_cbranch_scc1 B_keep""")
    for i in range(32): a(f"v_mov_b32 v{ACC+i}, 0")
    a.label("B_keep")
    a(f"s_waitcnt vmcnt(16)\ns_cmp_lg_u32 s{sKA}, 0\ns_cbranch_scc1 B_sigd")
    signal(a, sX, C_SQ)
    a.label("B_sigd")
    for u in range(8):
        a(f"s_waitcnt vmcnt({2*(7 - u)}) lgkmcnt({4*min(2, 7 - u)})")
        for aa in range(2):
            for b in range(2):
                j = 2*aa + b
                a(f"{MF} {v(ACC+16*j,16)}, {v(WF+8*(u&3)+4*b,4)}, {v(OR_(u)+4*aa,4)}, {'0' if (u == 0 and aa) else v(ACC+16*j,16)}")
        if u + 3 < 8: wreads(a, WF, (u+3) & 3, woff2(u+3))
    a(f"buffer_load_dword v15, v14, {s(WD,4)}, 0 offen sc1")
    if opt("ts", 0): stamp(a, 2)
    def region3(d, j):
        a(f"s_xor_b32 s{d}, s{sW}, {(j >> 1) + 2*(j & 1)}\ns_mul_i32 s{d}, s{d}, 15360\ns_add_u32 s{d}, s{d}, {WOB}")
    srd(a, XS, 20, 2048 * 896)
    OSC = ["", " sc1", " nt"][opt("osc", 2)]
    OT = WOB + 4*15360
    a(f"""v_and_b32 v4, 31, v1
          s_and_b32 s26, s{sW}, 1
          s_lshl_b32 s26, s26, 5
          v_add_u32 v4, s26, v4
          v_mul_u32_u24 v4, 144, v4
          v_lshrrev_b32 v9, 5, v1
          v_lshl_add_u32 v4, v9, 3, v4
          s_lshl_b32 s26, s{sFT}, 6
          s_add_u32 s26, s26, {OT}
          v_add_u32 v4, s26, v4
          v_lshrrev_b32 v6, 3, v1
          s_lshl_b32 s26, s{sW}, 4
          v_add_u32 v6, s26, v6
          v_and_b32 v9, 7, v1
          v_mul_u32_u24 v5, 144, v6
          v_lshl_add_u32 v5, v9, 4, v5
          v_add_u32 v5, {OT}, v5
          v_mul_u32_u24 v6, 896, v6
          v_lshl_add_u32 v6, v9, 4, v6
          s_mul_i32 s27, s{sRB}, {64*896}
          s_lshl_b32 s26, s{sCB}, 7
          s_add_u32 s27, s27, s26
          s_add_u32 s{sX}, s27, {8*896}""")
    def fetch_partial():
        a("s_waitcnt vmcnt(0)\nv_cmp_eq_u32 vcc, 0, v15\ns_cbranch_vccz B_pready")
        poll(a, 14, 1)
        a.label("B_pready")
        for i in range(4 >> PB): a(f"buffer_load_dwordx4 {v(PD+16*PB+4*i,4)}, v0, {s(WD,4)}, s{sK} offen offset:{i*1024}{SC}")
    reduce3(a, ACC, sM, region3, 0, B_G3_DONE + 12, True, fetch_partial)
    if opt("ts", 0): stamp(a, 3)
    for i in range(16): a(f"v_add_f32 v{ACC+i}, v{ACC+i}, v{RES+i}")
    a("s_waitcnt vmcnt(0)")
    if PB: unpack(a, PD, PD + 16, 8)
    for i in range(16): a(f"v_add_f32 v{ACC+i}, v{ACC+i}, v{PD+i}")
    if opt("ts", 0): stamp(a, 12)
    for i in range(8): a(f"v_cvt_pk_bf16_f32 v{EP+i}, v{ACC+2*i}, v{ACC+2*i+1}")
    for j in range(4): a(f"ds_write_b64 v4, {v(EP+2*j,2)} offset:{16*j}")
    gbar(a, 0, B_G3_DONE + 16)
    if opt("ts", 0): stamp(a, 13)
    a(f"""ds_read_b128 {v(EP,4)}, v5
          ds_read_b128 {v(EP+4,4)}, v5 offset:{8*144}
          s_waitcnt lgkmcnt(1)
          buffer_store_dwordx4 {v(EP,4)}, v6, {s(XS,4)}, s27 offen{OSC}
          s_waitcnt lgkmcnt(0)
          buffer_store_dwordx4 {v(EP+4,4)}, v6, {s(XS,4)}, s{sX} offen{OSC}""")
    stamp_out2(a)
    a("s_endpgm")

def stamp_out2(a):
    if not common.STAMPS: return
    a("s_waitcnt vmcnt(0)")
    common.stamp(a, 6); common.stamp(a, 7, True)
    a("s_waitcnt lgkmcnt(0)")
    for i in range(16): a(f"v_mov_b32 v{16+i}, s{64+2*i}")
    a(f"""s_lshl_b32 s3, s2, 3
          s_add_u32 s3, s3, s60
          s_lshl_b32 s3, s3, 6
          s_add_u32 s3, s3, {TS}
          v_mov_b32 v8, 0""")
    for j in range(4): a(f"buffer_store_dwordx4 v[{16+4*j}:{19+4*j}], v8, {s(WD,4)}, s3 offen offset:{16*j}")

def p1stamps():
    return common.STAMPS and opt("p1s", 0)

def build(name):
    a = A()
    a.label("K_start")
    a("s_cmp_ge_u32 s2, 256\ns_cbranch_scc1 K_end")
    load_args(a)
    a(f"""v_and_b32 v1, 63, v0
          v_lshrrev_b32 v8, 6, v0
          s_mov_b32 s59, {fb(2.0**100)}
          v_readfirstlane_b32 s60, v8
          v_lshlrev_b32 v0, 4, v1
          s_and_b32 s{sW}, s60, 3
          s_cmp_ge_u32 s60, 4""")
    if opt("bfirst", 1):
        a("s_cbranch_scc0 K_rolea")
        p1b(a)
        a("s_branch K_roleb")
        a.label("K_rolea")
        p1a(a)
        att(a)
        a.label("K_roleb")
        roleb(a)
    else:
        a("s_cbranch_scc1 K_roleb")
        p1a(a)
        att(a)
        a.label("K_roleb")
        p1b(a)
        roleb(a)
    a.label("K_end")
    a("s_endpgm")
    a.label("K_last")
    return a

if __name__ == "__main__":
    if "stamp" in sys.argv[1]: common.STAMPS = True
    if "mini" in sys.argv[1]: common.STAMPS = common.MINI = True
    name = "parallel_sum__mha_block__mixer_s_mlp__prompt_kernel"
    HDR = open("parallel_sum__mha_block__mixer_s_mlp__prompt.s.ref").read().split("; Override launch")[0]
    DOC = """;
"""
    out = HDR + "; @launch grid=(256,1,1) block=(512,1,1) lds=163840\n" + DOC + '.amdgcn_target "amdgcn-amd-amdhsa--gfx950"\n'
    out += kernel_head(name) + build(name).text() + kernel_desc(name, vgpr=256, sgpr=102)
    open(sys.argv[1], "w").write(out)
```

```python
import sys
import common
from common import *

FLG = 0x1550000
FP, F2, F3, FA, FQ = FLG, FLG + 0x8000, FLG + 0x10000, FLG + 0x18000, FLG + 0x20000
NINIT = 20
PART = 0x1600000
WS_END = 0x1A00000
sFT = 52
CS3P = 0x800000
XS, WA, WD, WB_ = 28, 32, 36, 40
sW, sSPIN = 46, 58
SC = " sc1"
CNT = 156 * 1024
C_B, C_A, C_S1, C_S2, C_S3, C_SA, C_W, C_X, C_SQ = 0, 4, 8, 12, 16, 20, 24, 28, 32
SPIN_MAX = 1 << 16
import os
OPT = dict(x.split("=") for x in os.environ.get("MKOPT", "").split(",") if x)
def opt(k, d): return int(OPT.get(k, d))
SLEEP = opt("sleep", 1)
DEBUG = "dbg" in sys.argv[1] if len(sys.argv) > 1 else False


def poll(a, vaddr, nlanes, srdreg=WD, soff="0"):
    L, D = a.newlabel("PL"), a.newlabel("PD")
    a(f"s_mov_b32 s{sSPIN}, {SPIN_MAX}")
    a(f"s_mov_b64 exec, {(1 << nlanes) - 1}" if nlanes <= 6 else f"s_bfm_b64 exec, {nlanes}, 0")
    a.label(L)
    a(f"""buffer_load_dword v9, v{vaddr}, {s(srdreg,4)}, {soff} offen sc1
          s_waitcnt vmcnt(0)
          v_cmp_eq_u32 vcc, 0, v9
          s_cbranch_vccz {D}
          s_sleep {SLEEP}
          s_sub_u32 s{sSPIN}, s{sSPIN}, 1
          s_cmp_lg_u32 s{sSPIN}, 0
          s_cbranch_scc1 {L}""")
    a.label(D)
    a("s_mov_b64 exec, -1")
    jitter(a)

TF = ["", " sc1", " nt", " sc0 sc1"][opt("tf", 0)]
SCB = "" if opt("local", 0) else " sc1"
def signal(a, soff, cnt, sc=" sc1", last=3):
    jitter(a)
    a(f"""s_mov_b64 exec, 1
          v_mov_b32 v8, {CNT + cnt}
          v_mov_b32 v9, 1
          ds_add_rtn_u32 v8, v8, v9
          s_waitcnt lgkmcnt(0)
          v_readfirstlane_b32 s26, v8
          v_mov_b32 v8, 0
          s_cmp_eq_u32 s26, {last}
          s_cselect_b32 s26, s{soff}, {OOB}
          buffer_store_dword v9, v8, {s(WD,4)}, s26 offen{sc}
          s_mov_b64 exec, -1""")

JIT = [0]
def jitter(a):
    if not opt("jit", 0): return
    JIT[0] += 1
    L = f"JT_{JIT[0]}"
    a(f"""s_mul_i32 s100, s2, {37 + 2*JIT[0]}
          s_add_u32 s100, s100, s60
          s_mul_i32 s100, s100, {101 + opt("jit", 0)}
          s_bitcmp1_b32 s100, {3 + JIT[0] % 3}
          s_cbranch_scc0 {L}
          s_sleep {20 + 13*(JIT[0] % 7)}""")
    a.label(L)

def garrive(a, off, field=0):
    jitter(a)
    a(f"""s_mov_b64 exec, 1
          v_mov_b32 v8, {CNT + off}
          v_mov_b32 v9, {1 << (4*field)}
          ds_add_u32 v8, v9
          s_mov_b64 exec, -1""")

def gwait(a, off, target, va=8, sr=3, field=None):
    L, D = a.newlabel("GL"), a.newlabel("GD")
    a(f"s_mov_b32 s{sSPIN}, {SPIN_MAX * 8}\nv_mov_b32 v{va}, {CNT + off}")
    a.label(L)
    a(f"""ds_read_b32 v{va+1}, v{va}
          s_sub_u32 s{sSPIN}, s{sSPIN}, 1
          s_cbranch_scc1 {D}
          s_waitcnt lgkmcnt(0)
          v_readfirstlane_b32 s{sr}, v{va+1}
          {"" if field is None else f"s_bfe_u32 s{sr}, s{sr}, {0x40000 + 4*field}"}
          s_cmp_lt_u32 s{sr}, {target}
          s_cbranch_scc1 {L}""")
    a.label(D)
    a("s_waitcnt lgkmcnt(0)")
    jitter(a)

def gbar(a, off, target):
    a("s_waitcnt lgkmcnt(0)")
    garrive(a, off); gwait(a, off, target)

def kloop(a, ACC, WF, XR, vA, tiles, offs, pre, perm, fill=(), R=8, D=6, cs=None):
    ops = [(s_, t) for s_ in range(28) for t in (tiles if s_ < 27 else pre.get("lastorder", tiles))]
    N = len(ops); fill = list(fill); done = 0
    def rd(m):
        s_, t = ops[m]
        if (s_ & 3) == 0 and t == tiles[0]:
            for x in pre.get(s_ >> 2, []): a(x)
        for e in range(2):
            row = 16 * (s_ & 3) + (8 * e if perm else 4 * e)
            a(f"ds_read_b64_tr_b16 {v(WF + 4*(m % R) + 2*e, 2)}, v{vA+t} offset:{offs(s_ >> 2) + row*256 if offs else s_*2048 + e*1024}")
    for m in range(D): rd(m)
    f0 = pre.get("fill0", 1)
    per = max(1, -(-len(fill) // (pre.get("fillend", N - 1) - f0)))
    for m, (s_, t) in enumerate(ops):
        if (s_ & 3) == 0 and t == tiles[0]:
            for x in pre.get(("x", s_ >> 2), []): a(x)
        if t == tiles[0]:
            for x in pre.get(("s", s_), []): a(x)
        G = pre.get("G", 1)
        if m % G == 0: a(f"s_waitcnt lgkmcnt({2*max(0, min(D - G, N - G - m))})")
        if t < 4: a(f"{MF} {v(ACC+16*t,16)}, {v(WF + 4*(m % R), 4)}, {v(XR(s_) if callable(XR) else XR+4*s_,4)}, {'0' if s_ == 0 else v(ACC+16*t,16)}")
        elif len(cs) == 3: a(f"{MF} {v(cs[0],16)}, {v(cs[1],4)}, {v(WF + 4*(m % R), 4)}, {'0' if s_ == 0 else v(cs[0],16)}")
        else: a(f"v_mfma_f32_16x16x32_bf16 {v(cs[0],4)}, {v(cs[1],4)}, {v(WF + 4*(m % R), 4)}, {'0' if s_ == 0 else v(cs[0],4)}")
        if m + D < N: rd(m + D)
        if (s_ & 3) == 0 and t == tiles[0]:
            for x in pre.get(("y", s_ >> 2), []): a(x)
        if t == tiles[min(1, len(tiles) - 1)]:
            for x in pre.get(("t", s_), []): a(x)
        for x in pre.get(("m", m), []): a(x)
        if m >= f0:
            for x in fill[done:done + per]: a(x)
            done += per
    for x in fill[done:]: a(x)

def kburst(a, ACC, WF, XR, vA, offs, pre, fill=()):
    fill = list(fill); per = -(-len(fill) // 26); done = 0
    def rd(s_):
        if (s_ & 3) == 0:
            for x in pre.get(s_ >> 2, []): a(x)
        for t in range(4):
            for e in range(2):
                a(f"ds_read_b64_tr_b16 {v(WF + 16*(s_ & 1) + 4*t + 2*e, 2)}, v{vA+t} offset:{offs(s_ >> 2) + (16*(s_ & 3) + 8*e)*256}")
    rd(0); rd(1)
    for s_ in range(28):
        if (s_ & 3) == 0:
            for x in pre.get(("x", s_ >> 2), []): a(x)
        a(f"s_waitcnt lgkmcnt({8 if s_ < 27 else 0})")
        for t in range(4):
            a(f"{MF} {v(ACC+16*t,16)}, {v(WF + 16*(s_ & 1) + 4*t, 4)}, {v(XR+4*s_,4)}, {'0' if s_ == 0 else v(ACC+16*t,16)}")
        if s_ + 2 < 28: rd(s_ + 2)
        if s_:
            for x in fill[done:done + per]: a(x)
            done += per

def tr_addrs(a, vA, sTS, base, perm, which=(0, 1, 2, 3, 4)):
    a(f"""v_lshrrev_b32 v8, 5, v1
          v_bfe_u32 v9, v1, 2, 2
          v_bfe_u32 v10, v1, 4, 1
          v_and_b32 v11, 3, v1
          v_lshl_add_u32 v10, v10, 2, v11
          v_lshl_add_u32 v8, v8, {2 if perm else 3}, v9
          v_lshlrev_b32 v8, 8, v8
          v_add_u32 v8, {base}, v8
          v_lshlrev_b32 v9, 2, v9""")
    for t in which:
        a(f"s_mul_i32 s26, {sTS}, {t}" if t < 4 else f"s_mul_i32 s26, {sTS}, s{sW}")
        a(f"""v_add_u32 v11, s26, v10
              v_lshrrev_b32 v12, 1, v11
              v_add_u32 v12, v12, v9
              v_and_b32 v12, 15, v12
              v_and_b32 v11, 1, v11
              v_lshlrev_b32 v11, 3, v11
              v_lshl_add_u32 v11, v12, 4, v11
              v_add_u32 v{vA+t}, v8, v11""")

def cs_publish(a, CS, T, xch):
    a(f"""v_cvt_pk_bf16_f32 v{T}, v{CS}, v{CS}
          v_and_b32 v{T+1}, 0xffff0000, v{T}
          v_sub_f32 v{T+1}, v{CS}, v{T+1}
          v_cvt_pk_bf16_f32 v{T}, v{CS}, v{T+1}
          v_and_b32 v10, 31, v1
          v_lshlrev_b32 v10, 2, v10
          v_add_u32 v10, {xch}, v10
          s_lshl_b32 s26, s{sW}, 7
          v_add_u32 v9, s26, v10
          ds_write_b32 v9, v{T}""")

def mean_fix(a, ACC, T, src, vMU0, vMU1, tiles=(0, 1, 2, 3)):
    n = len(tiles)
    a(f"v_mov_b32 v{T+4*n}, v{vMU0}\nv_mov_b32 v{T+4*n+1}, v{vMU1}\nv_mov_b32 v{T+4*n+2}, 0\nv_mov_b32 v{T+4*n+3}, 0")
    for i, t in enumerate(tiles):
        if src(t) != T + 4*i: a(f"v_mov_b32 v{T+4*i}, v{src(t)}")
        a(f"v_and_b32 v{T+4*i+1}, 0xffff, v{src(t)}\nv_mov_b32 v{T+4*i+2}, 0\nv_mov_b32 v{T+4*i+3}, 0")
    for i, t in enumerate(tiles): a(f"{MF} {v(ACC+16*t,16)}, {v(T+4*i,4)}, {v(T+4*n,4)}, {v(ACC+16*t,16)}")

def mu_frag(a, vmu, lo_en, d0, d1):
    a(f"""v_cvt_pk_bf16_f32 v{d0}, -v{vmu}, -v{vmu}
          v_and_b32 v8, 0xffff0000, v{d0}
          v_sub_f32 v8, -v{vmu}, v8
          v_cvt_pk_bf16_f32 v{d1}, v8, 0
          v_and_b32 v{d1}, {lo_en}, v{d1}
          v_lshrrev_b32 v8, 5, v1
          v_add_u32 v8, -1, v8
          v_and_b32 v{d0}, v8, v{d0}
          v_and_b32 v{d1}, v8, v{d1}""")

def gelu_consts(a, R, DEN):
    a(f"""v_mul_f32 v10, {fb(GK1)}, v{R}
          v_mul_f32 v12, v{R}, v{R}
          v_mul_f32 v12, v12, v{R}
          v_mul_f32 v12, {fb(GK2)}, v12
          v_mov_b32 v14, v{DEN}""")

def gelu8(regs0, K1, K2, IS, T, out):
    L = []
    for i in range(8): L.append(f"v_mul_f32 v{T+i}, v{regs0+i}, v{regs0+i}")
    for i in range(8): L.append(f"v_fma_f32 v{T+i}, v{T+i}, v{K2}, v{K1}")
    for i in range(8): L.append(f"v_mul_f32 v{T+i}, v{T+i}, v{regs0+i}")
    for i in range(8): L.append(f"v_exp_f32 v{T+i}, v{T+i}")
    for i in range(8): L.append(f"v_fma_f32 v{T+i}, v{T+i}, v{IS}, v{IS}")
    for i in range(8): L.append(f"v_rcp_f32 v{T+i}, v{T+i}")
    for i in range(8): L.append(f"v_mul_f32 v{T+i}, v{T+i}, v{regs0+i}")
    for i in range(4): L.append(f"v_cvt_pk_bf16_f32 v{out+i}, v{T+2*i}, v{T+2*i+1}")
    return L

def wrapinc(a, sreg, step, lim):
    a(f"s_add_u32 s{sreg}, s{sreg}, {step}\ns_cmp_eq_u32 s{sreg}, {lim}\ns_cselect_b32 s{sreg}, 0, s{sreg}")

def reduce3(a, ACC, sM, region, cnt_off, target, xor, mid=None):
    a(f"v_add_u32 v10, s{sM}, v0")
    for j in range(1, 4):
        for i in range(4): a(f"ds_write_b128 v10, {v(ACC+16*j+4*i,4)} offset:{(j-1)*4096 + i*1024}")
    for j in range(1, 4):
        region(26, j)
        a(f"v_add_u32 v{10+j}, s26, v0")
    gbar(a, cnt_off, target)
    if mid: mid()
    for j in range(1, 4):
        for i in range(4): a(f"ds_read_b128 {v(ACC+16*j+4*i,4)}, v{10+j} offset:{(j-1)*4096 + i*1024}")
    for j in range(1, 4):
        a(f"s_waitcnt lgkmcnt({4*(3-j)})")
        for i in range(16): a(f"v_add_f32 v{ACC+i}, v{ACC+i}, v{ACC+16*j+i}")

def reduce3c(a, ACC, sM, region, cnt_off, target):
    BL = 3712
    a(f"""v_add_u32 v10, s{sM}, v0
          v_lshlrev_b32 v14, 2, v1
          v_add_u32 v14, {3584 - 128}, v14
          v_add_u32 v15, s{sM}, v14""")
    for j in range(1, 4):
        for i in range(3): a(f"ds_write_b128 v10, {v(ACC+16*j+4*i,4)} offset:{(j-1)*BL + i*1024}")
    a("s_mov_b64 exec, 0xffffffff")
    for j in range(1, 4): a(f"ds_write_b128 v10, {v(ACC+16*j+12,4)} offset:{(j-1)*BL + 3072}")
    a("s_not_b64 exec, exec")
    for j in range(1, 4): a(f"ds_write_b32 v15, v{ACC+16*j+12} offset:{(j-1)*BL}")
    a("s_mov_b64 exec, -1")
    for j in range(1, 4):
        region(26, j)
        a(f"v_add_u32 v{10+j}, s26, v0\nv_add_u32 v{4+j}, s26, v14")
    gbar(a, cnt_off, target)
    a("s_mov_b64 exec, 0xffffffff")
    for j in range(1, 4): a(f"ds_read_b128 {v(ACC+16*j+12,4)}, v{10+j} offset:{(j-1)*BL + 3072}")
    a("s_not_b64 exec, exec")
    for j in range(1, 4): a(f"ds_read_b32 v{ACC+16*j+12}, v{4+j} offset:{(j-1)*BL}")
    a("s_mov_b64 exec, -1")
    for j in range(1, 4):
        for i in range(3): a(f"ds_read_b128 {v(ACC+16*j+4*i,4)}, v{10+j} offset:{(j-1)*BL + i*1024}")
    for j in range(1, 4):
        a(f"s_waitcnt lgkmcnt({3*(3-j)})")
        for i in range(16): a(f"v_add_f32 v{ACC+i}, v{ACC+i}, v{ACC+16*j+i}")

def unpack(a, dst, src, n):
    for i in range(n):
        a(f"v_lshlrev_b32 v{dst+2*i}, 16, v{src+i}\nv_and_b32 v{dst+2*i+1}, 0xffff0000, v{src+i}")

NBAR_P1 = 10
XB = 112 * 1024
XCH = XB + 16384
def p1a(a):
    a(f"s_setprio {opt('pa1', 2)}")
    ACC, CS, WF, XR, TMP = 16, 80, 96, 136, 248
    sRB, sCB, sTY, sSUB, sTS, sLO, sT = 44, 45, 47, 48, 50, 55, 56
    a(f"""s_and_b32 s26, s2, 7
          s_lshr_b32 s27, s2, 3
          s_lshr_b32 s{sRB}, s26, 1
          s_lshl_b32 s{sRB}, s{sRB}, 2
          s_and_b32 s3, s27, 3
          s_add_u32 s{sRB}, s{sRB}, s3
          s_and_b32 s{sCB}, s26, 1
          s_lshl_b32 s{sCB}, s{sCB}, 3
          s_lshr_b32 s3, s27, 2
          s_add_u32 s{sCB}, s{sCB}, s3
          s_lshr_b32 s{sTY}, s{sCB}, 2
          s_and_b32 s{sSUB}, s{sCB}, 3
          s_cmp_eq_u32 s{sTY}, 3
          s_cselect_b32 s{sTS}, 8, 7
          s_cselect_b32 s{sLO}, -1, 0
          s_lshl_b32 s{sT}, s{sRB}, 2
          s_add_u32 s{sT}, s{sT}, s{sW}""")
    tr_addrs(a, 2, f"s{sTS}", 0, perm=False)
    a(f"""v_and_b32 v8, 15, v1
          v_bfe_u32 v9, v1, 4, 1
          v_cmp_eq_u32 vcc, v8, v9
          v_mov_b32 v8, 0x3f803f80
          v_cndmask_b32 v{CS+4}, 0, v8, vcc
          v_mov_b32 v{CS+5}, v{CS+4}
          v_mov_b32 v{CS+6}, v{CS+4}
          v_mov_b32 v{CS+7}, v{CS+4}
          v_and_b32 v8, 31, v1
          v_lshrrev_b32 v9, 5, v1
          v_bfe_u32 v10, v1, 1, 3
          v_xor_b32 v9, v9, v10
          v_lshlrev_b32 v8, 7, v8
          v_lshl_add_u32 v8, v9, 4, v8
          s_lshl_b32 s3, s{sW}, 12
          s_add_u32 s3, s3, {XB}
          v_add_u32 v{CS+8}, s3, v8
          v_xor_b32 v{CS+9}, 32, v{CS+8}
          v_xor_b32 v{CS+10}, 64, v{CS+8}
          v_xor_b32 v{CS+11}, 96, v{CS+8}
          s_waitcnt lgkmcnt(0)""")
    srd(a, WD, 24, WS_END)
    ONE = TMP
    M0_, M1_, R, DEN = TMP+4, TMP+5, TMP+6, TMP+7
    a(f"""v_and_b32 v10, 31, v1
          v_lshlrev_b32 v10, 2, v10
          v_add_u32 v10, {XCH}, v10
""")
    stamp(a, 12)
    pre = {}
    for c in range(7):
        pre[c] = ["s_barrier"] + [f"ds_read_b128 {v(XR + 16*(c&1) + 4*i, 4)}, v{CS+8+i} offset:{(c % 3)*16384}" for i in range(4)]
        if opt("sqv", 0) == 0:
            pre[("y", c)] = [f"v_dot2_f32_bf16 v{12+(i&1)}, v{XR+16*(c&1)+i}, v{XR+16*(c&1)+i}, {'0' if c == 0 and i < 2 else 'v%d' % (12+(i&1))}" for i in range(16)]
    sq = []
    if opt("sqv", 0):
        a("v_mov_b32 v12, 0\nv_mov_b32 v13, 0")
        for s_ in range(28):
            for i in range(4):
                r_ = XR + 16*((s_ >> 2) & 1) + 4*(s_ & 3) + i
                pre[("m", 5*s_ + 1 + i)] = [f"v_lshlrev_b32 v14, 16, v{r_}", f"v_and_b32 v15, 0xffff0000, v{r_}", "v_fmac_f32 v12, v14, v14", "v_fmac_f32 v13, v15, v15"]
    if common.STAMPS:
        for c, st in ((0, 2), (1, 13), (3, 3)):
            g = A(); stamp(g, st); pre[c] = pre[c][:1] + g.l + pre[c][1:]
    pre[4] += [f"v_add_u32 v{2+t}, 0x10000, v{2+t}" for t in range(5)]
    CSB = opt("csb", 0)
    pre["G"] = opt("p1g", 1); pre["lastorder"] = (3, 0, 1, 2) if CSB else (3, 4, 0, 1, 2)
    kloop(a, ACC, WF, lambda s_: XR + 16*((s_ >> 2) & 1) + 4*(s_ & 3), 2, (0, 1, 2, 3) if CSB else (0, 4, 1, 2, 3), lambda c: (c & 3) * 16384, pre, False, [], R=8, D=opt("p1d", 5), cs=(CS, CS+4))
    stamp(a, 4)
    for i in range(0 if CSB else 2):
        a(f"""v_cvt_pk_bf16_f32 v{WF+i}, v{CS+i}, v{CS+i}
              v_and_b32 v{WF+i}, 0xffff0000, v{WF+i}
              v_sub_f32 v{WF+i}, v{CS+i}, v{WF+i}
              v_cvt_pk_bf16_f32 v{WF+i}, v{CS+i}, v{WF+i}""")
    if not CSB:
        a(f"""s_lshl_b32 s26, s{sW}, 7
              v_add_u32 v11, s26, v10
              s_mov_b64 exec, 0xffff
              ds_write2_b32 v11, v{WF}, v{WF+1} offset1:16
              s_mov_b64 exec, -1""")
    a(f"""v_mov_b32 v14, v{ACC+48+12}
          v_mov_b32 v15, v{ACC+48+12}
          v_add_f32 v13, v12, v13
          v_permlane32_swap_b32 v15, v14
          v_mov_b32 v12, v13
          v_permlane32_swap_b32 v13, v12
          v_add_f32 v13, v13, v12
          v_mul_f32 v12, {fb(1/448)}, v14
          v_mul_f32 v13, {fb(1/448)}, v13
          v_fma_f32 v13, -v12, v12, v13
          v_max_f32 v13, 0, v13""")
    bf16r(a, 15, "v13")
    a(f"""v_add_f32 v9, {fb(EPS)}, v13
          v_add_f32 v15, {fb(EPS)}, v15
          v_mov_b32 v14, {fb(EPS)}
          v_fma_f32 v9, v9, v14, v13""")
    bf16r(a, 15, "v15")
    a(f"""v_sqrt_f32 v9, v9
          v_sqrt_f32 v15, v15
          s_waitcnt lgkmcnt(0)
          s_barrier                              ; barrier 7""")
    stamp(a, 14)
    for t in range(4): a(f"ds_read_b32 v{WF+4*t}, v10 offset:{128*t}")
    mu_frag(a, 12, f"s{sLO}", M0_, M1_)
    a(f"v_mov_b32 v14, s{sLO}")
    bf16r(a, 15, "v15")
    bf16r(a, 10, "v12")
    a(f"""v_bfi_b32 v{DEN}, v14, v9, v15
          v_rcp_f32 v{R}, v{DEN}
          s_waitcnt lgkmcnt(0)""")
    mean_fix(a, ACC, WF, lambda t: WF + 4*t, M0_, M1_)
    a(f"""
          s_lshl_b32 s3, s{sT}, 8
          s_add_u32 s3, s3, {ST1}
          s_cmp_eq_u32 s{sCB}, 0
          s_cselect_b32 s3, s3, {OOB}
          v_lshlrev_b32 v8, 3, v1
          v_and_b32 v8, 0xff, v8
          v_mov_b32 v11, v{R}
          buffer_store_dwordx2 v[10:11], v8, {s(WD,4)}, s3 offen{SC}""")
    a(f"""v_lshrrev_b32 v8, 5, v1
          v_add_u32 v8, -1, v8
          s_cmp_eq_u32 s{sTY}, 3
          s_cbranch_scc1 P1_h
          s_cmp_eq_u32 s{sTY}, 0
          s_cselect_b32 s3, {fb(QSCALE)}, 1.0
          v_mul_f32 v10, s3, v{R}
          v_mul_u32_u24 v12, 12, v1
          s_lshl_b32 s3, s{sSUB}, 8
          s_add_u32 s3, s3, s{sT}
          s_movk_i32 s27, 3584
          s_cmp_eq_u32 s{sTY}, 0
          s_cselect_b32 s27, 1792, s27
          s_mul_i32 s3, s3, s27
          s_lshl_b32 s26, s27, 6
          s_cselect_b32 s27, {QF}, {KVF}
          s_add_u32 s3, s3, s27
          s_cmp_eq_u32 s{sTY}, 2
          s_cbranch_scc1 P1_v""".replace("s_lshl_b32 s26, s27, 6", f"s_lshl_b32 s26, s27, 6\ns_mov_b32 s27, {KVF}\ns_cmp_eq_u32 s{sTY}, 0").replace(f"s_cselect_b32 s27, {QF}, {KVF}", f"s_cselect_b32 s27, {QF}, s27"))
    def pack(t):
        for i in range(8): a(f"v_pk_mul_f32 {v(ACC+16*t+2*i,2)}, {v(ACC+16*t+2*i,2)}, v[10:11] op_sel_hi:[1,0]")
        for i in range(8): a(f"v_cvt_pk_bf16_f32 v{XR+8*t+i}, v{ACC+16*t+2*i}, v{ACC+16*t+2*i+1}")
    def put(t, isv=False):
        if isv:
            for f_ in range(2): a(f"buffer_store_dwordx4 {v(XR+8*t+4*f_,4)}, v13, {s(WD,4)}, s3 offen offset:{1792 + f_*896}{SC}")
        else:
            a(f"buffer_store_dwordx4 {v(XR+8*t,4)}, v0, {s(WD,4)}, s3 offen{SC}")
            a(f"v_permlane32_swap_b32 v{XR+8*t+6}, v{XR+8*t+7}")
            a(f"buffer_store_dwordx3 {v(XR+8*t+4,3)}, v12, {s(WD,4)}, s3 offen offset:1024{SC}")
        if t < 3: a("s_add_u32 s3, s3, s26")
    for t in range(4): pack(t); put(t)
    a("s_branch P1_done")
    a.label("P1_v")
    a(f"""s_mul_i32 s27, s{sW}, 9216
          s_add_u32 s27, s27, 0x10000
          v_and_b32 v9, 31, v1
          v_mul_u32_u24 v9, 72, v9
          v_lshrrev_b32 v14, 5, v1
          v_lshl_add_u32 v9, v14, 3, v9
          v_add_u32 v9, s27, v9
          v_bfe_u32 v15, v1, 2, 2
          v_lshl_add_u32 v14, v14, 2, v15
          v_mul_u32_u24 v14, 72, v14
          v_bfe_u32 v15, v1, 4, 1
          v_lshl_add_u32 v14, v15, 5, v14
          v_and_b32 v15, 3, v1
          v_lshl_add_u32 v14, v15, 3, v14
          v_add_u32 v14, s27, v14
          v_lshrrev_b32 v15, 5, v1
          v_lshlrev_b32 v15, 6, v15
          v_sub_u32 v13, v0, v15
          v_and_b32 v15, 31, v1
          v_cmp_gt_u32 vcc, 28, v15
          v_mov_b32 v15, {OOB}
          v_cndmask_b32 v13, v15, v13, vcc""")
    for t in range(5):
        if t < 4:
            pack(t)
            for j in range(4): a(f"ds_write_b64 v9, {v(XR+8*t+2*j,2)} offset:{t*2304 + 16*j}")
        if t:
            a(f"s_waitcnt lgkmcnt({4 if t < 4 else 0})")
            put(t - 1, True)
        if t < 4:
            a("s_waitcnt lgkmcnt(0)")
            for f_ in range(2):
                for e in range(2): a(f"ds_read_b64_tr_b16 {v(XR+8*t+4*f_+2*e,2)}, v14 offset:{t*2304 + (16*f_+8*e)*72}")
    a("s_branch P1_done")
    a.label("P1_h")
    gelu_consts(a, R, DEN)
    a(f"""s_mul_i32 s3, s{sT}, 28
          s_mul_i32 s27, s{sSUB}, 7
          s_add_u32 s3, s3, s27
          s_lshl_b32 s3, s3, 10
          s_add_u32 s3, s3, {HF}
          s_add_u32 s27, s3, 4096""")
    for f in range(7):
        gelu_pairs(a, [ACC + 8*f + 2*i for i in range(4)], 10, 12, 14, WF)
        for i in range(4): a(f"v_cvt_pk_bf16_f32 v{XR+4*f+i}, v{ACC+8*f+2*i}, v{ACC+8*f+2*i+1}")
        a(f"buffer_store_dwordx4 {v(XR+4*f,4)}, v0, {s(WD,4)}, s{3 if f < 4 else 27} offen offset:{(f&3)*1024}{SC}")
    a.label("P1_done")
    garrive(a, C_X, 1)
    stamp(a, 15)
    a(f"""s_waitcnt vmcnt(0)
          s_lshl_b32 s3, s{sCB}, 4
          s_add_u32 s3, s3, s{sRB}
          s_lshl_b32 s3, s3, 7
          s_add_u32 s3, s3, {FP}""")
    signal(a, 3, C_S1, last=7)
    stamp(a, 5)

O_, Q_, S_, E_, P_, KV = 16, 80, 112, 144, 152, 160
sH, sQB, sKV, sN, sMA, sKB = 44, 45, 50, 51, 47, 52
AR_BASE = 112 * 1024

def unit(a, n, q, extra, qk=True):
    Sc, Sn = S_ + 16*(q & 1), S_ + 16*((q+1) & 1)
    nn, nq = (n, q+1) if q < 3 else ((n+1) & 3, 0)
    pn, pq = (n, q-1) if q > 0 else ((n-1) & 3, 3)
    K, Vc, Vp = KV + 16*nn, KV + 16*n + 8, KV + 16*pn + 8
    e = lambda i: a(f"v_exp_f32 v{E_+(i&7)}, v{Sc+i}")
    c = lambda k: a(f"v_cvt_pk_bf16_f32 v{P_+k}, v{E_+((2*k)&7)}, v{E_+((2*k+1)&7)}")
    for x in extra.get(0, []): a(x)
    if qk: a(f"{MF} {v(Sn,16)}, {v(K,4)}, {v(Q_+8*nq,4)}, 0")
    e(0); c(6); e(1); c(7); e(2); e(3)
    a(f"{MF} {v(O_+16*pq,16)}, {v(Vp+4,4)}, {v(P_+4,4)}, {v(O_+16*pq,16)}")
    for x in extra.get(1, []): a(x)
    e(4); c(0); e(5); c(1); e(6); e(7)
    if qk: a(f"{MF} {v(Sn,16)}, {v(K+4,4)}, {v(Q_+8*nq+4,4)}, {v(Sn,16)}")
    for x in extra.get(2, []): a(x)
    e(8); c(2); e(9); c(3); e(10); e(11)
    a(f"{MF} {v(O_+16*q,16)}, {v(Vc,4)}, {v(P_,4)}, {v(O_+16*q,16)}")
    e(12); c(4); e(13); c(5); e(14); e(15)

sKE, sVM, VV = 53, 54, 224
def kvload(slot, f):
    r = KV + 16*slot + 4*f
    if f == 0: return f"buffer_load_dwordx4 {v(r,4)}, v0, {s(WD,4)}, s{sKV} offen{SC}"
    if f == 1: return f"buffer_load_dwordx3 {v(r,3)}, v4, {s(WD,4)}, s{sKV} offen offset:1024{SC}"
    L = f"buffer_load_dwordx4 {v(r,4)}, v{VV}, {s(WD,4)}, s{sKV} offen offset:{1792 + 896*(f - 2)}{SC}"
    return f"s_mov_b64 exec, {s(sVM,2)}\n" + L if f == 2 else L + "\ns_mov_b64 exec, -1"
def kvnext():
    return [f"s_add_u32 s{sKV}, s{sKV}, 3584", f"s_cmp_eq_u32 s{sKV}, s{sKE}", f"s_cselect_b32 s{sKV}, s{sKB}, s{sKV}"]

EARLY = opt("early", 1)
def att(a):
    if p1stamps():
        global stamp
        stamp = lambda *x: None
    a(f"""s_and_b32 s26, s2, 7
          s_lshr_b32 s27, s2, 3
          s_lshl_b32 s{sH}, s26, 1
          s_and_b32 s3, s27, 1
          s_add_u32 s{sH}, s{sH}, s3
          s_lshr_b32 s{sQB}, s27, 1
          s_mul_i32 s{sMA}, s{sW}, 11136
          s_add_u32 s{sMA}, s{sMA}, {AR_BASE}
          s_lshl_b32 s{sKB}, s{sH}, 2
          s_add_u32 s{sKB}, s{sKB}, s{sW}
          s_mul_i32 s{sKB}, s{sKB}, {16*3584}
          s_add_u32 s{sKB}, s{sKB}, {KVF}
          s_add_u32 s{sKE}, s{sKB}, {16*3584}
          s_and_b32 s27, s{sQB}, {3 if EARLY else 15}
          s_mul_i32 s3, s27, {4*3584 if EARLY else 3584}
          s_add_u32 s{sKV}, s{sKB}, s3
          s_mov_b32 s{sVM}, 0x0fffffff
          s_mov_b32 s{sVM+1}, 0x0fffffff
          v_mul_u32_u24 v4, 12, v1
          v_lshrrev_b32 v11, 5, v1
          v_lshlrev_b32 v12, 6, v11
          v_sub_u32 v{VV}, v0, v12
          v_lshlrev_b32 v11, 4, v11
          v_mov_b32 v12, 0x3f803f80
          v_lshrrev_b32 v13, v11, v12
          v_and_b32 v11, 31, v1
          v_cmp_eq_u32 vcc, 28, v11
          v_cndmask_b32 v12, 0, v12, vcc
          s_lshr_b32 s3, s{sH}, 2
          s_lshl_b32 s3, s3, 4
          v_and_b32 v10, 3, v1
          s_lshl_b32 s26, s{sW}, 2
          s_add_u32 s26, s26, s3
          s_add_u32 s26, s26, 64
          v_add_u32 v10, s26, v10
          v_bfe_u32 v11, v1, 2, 1
          v_lshl_add_u32 v10, v11, 6, v10
          s_add_u32 s3, s3, s{sQB}
          v_writelane_b32 v10, s3, 8             ; lane 8: Q
          v_lshlrev_b32 v10, 7, v10
          v_add_u32 v10, {FP}, v10""")
    for i in range(64): a(f"v_mov_b32 v{O_+i}, 0")
    for i in range(8): a(f"v_mov_b32 v{E_+i}, 0\nv_mov_b32 v{P_+i}, 0")
    for n in range(4):
        a(f"v_mov_b32 v{KV+16*n+7}, v13\nv_mov_b32 v{Q_+8*n+7}, 0")
        for i in range(8): a(f"v_mov_b32 v{KV+16*n+8+i}, v12")
    if EARLY:
        a(f"""v_and_b32 v11, 7, v1
              v_lshlrev_b32 v11, 2, v11
              ds_bpermute_b32 v2, v11, v10
              s_lshl_b32 s27, s27, 2
              v_mov_b32 v11, s27
              v_writelane_b32 v11, 32, 2
              s_add_u32 s27, s27, 16
              v_writelane_b32 v11, s27, 1
              ds_bpermute_b32 v10, v11, v10
              s_waitcnt lgkmcnt(0)""")
        poll(a, 10, 3)
    else: poll(a, 10, 9)
    if opt("ayield", 1): gwait(a, C_X, 4, field=0)
    stamp(a, 8)
    for j in range(4):
        a(f"""s_add_u32 s3, s{sW}, {j + 1}
              s_and_b32 s3, s3, 3
              s_lshl_b32 s26, s{sH}, 4
              s_add_u32 s26, s26, s{sQB}
              s_lshl_b32 s26, s26, 2
              s_add_u32 s3, s3, s26
              s_mul_i32 s3, s3, 1792
              s_add_u32 s3, s3, {QF}
              buffer_load_dwordx4 {v(Q_+8*j,4)}, v0, {s(WD,4)}, s3 offen{SC}
              buffer_load_dwordx3 {v(Q_+8*j+4,3)}, v4, {s(WD,4)}, s3 offen offset:1024{SC}""")
        if j == 0:
            for f in range(4): a(kvload(0, f))
            for x in kvnext(): a(x)
    for n in range(1, 3):
        for f in range(4): a(kvload(n, f))
        for x in kvnext(): a(x)
    a(f"""v_add_u32 v10, s{sMA}, v0
          v_lshlrev_b32 v14, 2, v1
          v_add_u32 v14, {3584 - 128}, v14
          v_add_u32 v15, s{sMA}, v14
          v_mov_b32 v8, {CNT + C_B}""")
    for j in range(3):
        a(f"""s_sub_u32 s26, s{sW}, {j + 1}
              s_and_b32 s26, s26, 3
              s_mul_i32 s26, s26, 11136
              s_add_u32 s26, s26, {AR_BASE}
              v_add_u32 v{11+j}, s26, v0
              v_add_u32 v{5+j}, s26, v14""")
    a(f"s_mov_b32 s{sN}, 4\ns_waitcnt vmcnt(14)")
    a(f"{MF} {v(S_,16)}, {v(KV,4)}, {v(Q_,4)}, 0")
    a(f"{MF} {v(S_,16)}, {v(KV+4,4)}, {v(Q_+4,4)}, {v(S_,16)}")
    a(f"s_setprio {opt('pa2', 0)}\ns_waitcnt vmcnt(8)")
    stamp(a, 9)
    a("s_nop 9")
    a(".p2align 3")
    a.label("AT_loop")
    for n in range(4):
        ld = (n + 3) & 3
        kvl = kvload if not opt("nokv", 0) else (lambda a_, b_: "s_nop 0")
        if opt("kvprio", 1):
            e0 = {1: ["s_setprio 3", kvl(ld, 0), kvl(ld, 1)], 2: [kvl(ld, 2), kvl(ld, 3), f"s_setprio {opt('pa2', 0)}"]}
            if opt("kvprio", 1) == 2: e0 = {1: [kvl(ld, 0), kvl(ld, 1)], 2: [kvl(ld, 2), kvl(ld, 3)]}
            if EARLY and n == 0: e0[1].insert(1 if opt("kvprio", 1) == 1 else 0, f"buffer_load_dword v3, v2, {s(WD,4)}, 0 offen sc1")
            if EARLY and n == 1:
                e0[0] = ["s_waitcnt vmcnt(4)", "v_cmp_eq_u32 vcc, 0, v3"]
                e0[1] = ["s_cbranch_vccnz AT_late", "AT_ok:"] + e0[1]
            unit(a, n, 0, e0)
            e1 = {1: kvnext() if n == 0 or not EARLY else kvnext()[:1]}
            if n == 0: e1[2] = [f"s_cmp_eq_u32 s{sN}, 1", f"s_cselect_b32 s{sKV}, {OOB}, s{sKV}"]
            if n == 3: e1[0] = ["ds_read_b32 v9, v8"]; e1[2] = [f"s_cmp_eq_u32 s{sN}, 1"]
            unit(a, n, 1, e1)
            if n == 3: a("s_cbranch_scc1 AT_tail")
            unit(a, n, 2, {})
            ex = {0: ["s_waitcnt vmcnt(8)"], 2: []}
        else:
            unit(a, n, 0, {2: [kvl(ld, 0)]})
            unit(a, n, 1, {1: [kvl(ld, 1)]})
            unit(a, n, 2, {1: [kvl(ld, 2)]})
            ex = {0: ["s_waitcnt vmcnt(7)"], 1: [kvl(ld, 3)], 2: kvnext()}
        if n == 3: ex[2] += [f"s_sub_u32 s{sN}, s{sN}, 1"]
        unit(a, n, 3, ex)
    a("s_branch AT_loop")
    a.label("AT_tail")
    BL = 3712
    a(f"""s_setprio {opt('pa1', 2)}
          s_waitcnt lgkmcnt(0)
          v_readfirstlane_b32 s3, v9
          s_cmp_ge_u32 s3, 8
          s_cbranch_scc1 AT_free""")
    gwait(a, C_B, 8)
    a.label("AT_free")
    wr = lambda j, i: f"ds_write_b128 v10, {v(O_+16*j+4*i,4)} offset:{j*BL + i*1024}"
    unit(a, 3, 2, {0: [wr(0, 0)], 1: [wr(0, 1)], 2: [wr(0, 2)]})
    unit(a, 3, 3, {0: [wr(1, 0)], 1: [wr(1, 1)], 2: [wr(1, 2)]}, qk=False)
    a(f"v_cvt_pk_bf16_f32 v{P_+6}, v{E_+4}, v{E_+5}\nv_cvt_pk_bf16_f32 v{P_+7}, v{E_+6}, v{E_+7}")
    for i in range(3): a(wr(2, i))
    a(f"{MF} {v(O_+48,16)}, {v(KV+48+12,4)}, {v(P_+4,4)}, {v(O_+48,16)}")
    stamp(a, 10)
    a("s_mov_b64 exec, 0xffffffff")
    for j in range(3): a(wr(j, 3))
    a("s_not_b64 exec, exec")
    for j in range(3): a(f"ds_write_b32 v15, v{O_+16*j+12} offset:{j*BL}")
    a("s_mov_b64 exec, -1")
    gbar(a, C_A, 4)
    a("s_mov_b64 exec, 0xffffffff")
    for j in range(3): a(f"ds_read_b128 {v(O_+16*j+12,4)}, v{11+j} offset:{j*BL + 3072}")
    a("s_not_b64 exec, exec")
    for j in range(3): a(f"ds_read_b32 v{O_+16*j+12}, v{5+j} offset:{j*BL}")
    a("s_mov_b64 exec, -1")
    for j in range(3):
        for i in range(3): a(f"ds_read_b128 {v(O_+16*j+4*i,4)}, v{11+j} offset:{j*BL + i*1024}")
    OT_, QT_ = O_ + 48, Q_ + 24
    for j in range(3):
        a(f"s_waitcnt lgkmcnt({3*(2-j)})")
        for i in range(16): a(f"v_add_f32 v{OT_+i}, v{OT_+i}, v{O_+16*j+i}")
    a(f"""v_mov_b32 v10, v{OT_+12}
          v_mov_b32 v11, v{OT_+12}
          v_permlane32_swap_b32 v11, v10
          v_mov_b32 v12, v10
          v_mov_b32 v13, 0""")
    for i in range(16): a(f"v_fma_f32 v{12+(i&1)}, v{OT_+i}, 0, v{12+(i&1)}")
    a(f"""v_add_f32 v12, v12, v13                ; row sum, or NaN if any accumulator is not finite
          v_cmp_le_f32 vcc, {fb(2.0**-80)}, v12
          v_cmp_ge_f32 s[26:27], s59, v12
          s_and_b64 vcc, vcc, s[26:27]
          s_cmp_eq_u64 vcc, -1
          s_cbranch_scc0 AT_slow""".replace("s59", "s59"))
    a.label("AT_norm")
    a(f"""v_rcp_f32 v10, v10
          v_lshrrev_b32 v8, 5, v1
          v_add_u32 v8, -1, v8""")
    for i in range(16): a(f"v_mul_f32 v{OT_+i}, v{OT_+i}, v10")
    for i in range(8): a(f"v_cvt_pk_bf16_f32 v{P_+i}, v{OT_+2*i}, v{OT_+2*i+1}")
    a(f"""v_and_b32 v{P_+6}, v8, v{P_+6}
          v_and_b32 v{P_+7}, v8, v{P_+7}
          s_lshl_b32 s26, s{sQB}, 2
          s_add_u32 s26, s26, s{sW}
          s_lshl_b32 s26, s26, 4
          s_add_u32 s26, s26, s{sH}
          s_lshl_b32 s3, s26, 11
          s_add_u32 s3, s3, {OF}
          buffer_store_dwordx4 {v(P_,4)}, v0, {s(WD,4)}, s3 offen{SC}
          buffer_store_dwordx4 {v(P_+4,4)}, v0, {s(WD,4)}, s3 offen offset:1024{SC}
          s_lshl_b32 s3, s{sQB}, 4
          s_add_u32 s3, s3, s{sH}
          s_lshl_b32 s3, s3, 7
          s_add_u32 s3, s3, {FA}
          s_waitcnt vmcnt(0)""")
    signal(a, 3, 20)
    stamp(a, 11)
    stamp_out2(a)
    a("s_endpgm")
    if EARLY:
        a.label("AT_late")
        poll(a, 2, 8)
        a("s_branch AT_ok")
    a.label("AT_slow")
    a(f"""s_waitcnt vmcnt(0)
          s_mul_i32 s{sKB}, s{sH}, {64*3584}
          s_add_u32 s{sKB}, s{sKB}, {KVF}
          s_mov_b32 s{sKV}, s{sKB}
          s_mov_b32 s{sN}, 64
          v_mov_b32 v12, 0xff800000""")
    a.label("AT_s1")
    a(kvload(0, 0)); a(kvload(0, 1))
    a(f"""s_add_u32 s{sKV}, s{sKV}, 3584
          s_waitcnt vmcnt(0)
          {MF} {v(S_,16)}, {v(KV,4)}, {v(QT_,4)}, 0
          {MF} {v(S_,16)}, {v(KV+4,4)}, {v(QT_+4,4)}, {v(S_,16)}""")
    for i in range(8): a(f"v_max3_f32 v12, v12, v{S_+2*i}, v{S_+2*i+1}")
    a(f"""s_sub_u32 s{sN}, s{sN}, 1
          s_cmp_lg_u32 s{sN}, 0
          s_cbranch_scc1 AT_s1
          v_mov_b32 v13, v12
          v_permlane32_swap_b32 v12, v13
          v_max_f32 v12, v12, v13
          v_cvt_pk_bf16_f32 v13, -v12, -v12
          v_and_b32 v13, 0xffff0000, v13
          v_sub_f32 v12, -v12, v13
          v_cvt_pk_bf16_f32 v14, v12, v12
          v_and_b32 v14, 0xffff0000, v14
          v_sub_f32 v12, v12, v14
          v_cvt_pk_bf16_f32 v13, v13, v14
          v_cvt_pk_bf16_f32 v14, v12, 0
          v_lshrrev_b32 v8, 5, v1
          v_add_u32 v8, -1, v8
          v_bfi_b32 v{QT_+7}, v8, v13, v14
          s_mov_b32 s{sKV}, s{sKB}
          s_mov_b32 s{sN}, 64""")
    for i in range(16): a(f"v_mov_b32 v{OT_+i}, 0")
    a.label("AT_s2")
    for f in range(4): a(kvload(0, f))
    a(f"""s_add_u32 s{sKV}, s{sKV}, 3584
          s_waitcnt vmcnt(0)
          {MF} {v(S_,16)}, {v(KV,4)}, {v(QT_,4)}, 0
          {MF} {v(S_,16)}, {v(KV+4,4)}, {v(QT_+4,4)}, {v(S_,16)}""")
    for i in range(16): a(f"v_exp_f32 v{S_+i}, v{S_+i}")
    for i in range(8): a(f"v_cvt_pk_bf16_f32 v{P_+i}, v{S_+2*i}, v{S_+2*i+1}")
    a(f"""{MF} {v(OT_,16)}, {v(KV+8,4)}, {v(P_,4)}, {v(OT_,16)}
          {MF} {v(OT_,16)}, {v(KV+12,4)}, {v(P_+4,4)}, {v(OT_,16)}
          s_sub_u32 s{sN}, s{sN}, 1
          s_cmp_lg_u32 s{sN}, 0
          s_cbranch_scc1 AT_s2
          v_mov_b32 v10, v{OT_+12}
          v_mov_b32 v11, v{OT_+12}
          v_permlane32_swap_b32 v11, v10
          s_branch AT_norm""")

B_G3_DONE = 24
G2_BASE = 0
H1 = 56 * 1024
W3B = 60 * 1024
XCH3 = CNT + 1024
RES = 224

def p1b(a):
    bst = (lambda i: common.stamp(a, i)) if p1stamps() else (lambda i: None)
    sRB, sCB, sT = 44, 45, 48
    sROW, sWO, sK, sCOL = 49, 50, 51, 52
    WB = 0x1C000
    XT = 232
    def codepf():
        nseg = opt("nseg", 5)
        a(f"""s_lshr_b32 s57, s2, 3
              s_cmp_ge_u32 s57, {nseg}
              s_cbranch_scc1 PB_nopf
              s_cmp_lg_u32 s{sW}, 0
              s_cbranch_scc1 PB_nopf
              s_getpc_b64 s[62:63]""")
        a.label("PB_pc")
        a(f"""s_lshl_b32 s57, s57, 13
              s_sub_u32 s62, s62, PB_pc-K_start
              s_subb_u32 s63, s63, 0
              s_add_u32 s62, s62, s57
              s_addc_u32 s63, s63, 0
              v_lshlrev_b32 v8, 7, v1
              v_add_u32 v9, s57, v8
              v_cmp_gt_u32 vcc, K_last-K_start, v9
              v_mov_b32 v11, s63
              v_add_co_u32 v10, s[98:99], s62, v8
              v_addc_co_u32 v11, s[98:99], 0, v11, s[98:99]
              s_and_saveexec_b64 s[98:99], vcc
              s_cbranch_execz PB_pfx
              global_load_dword v16, v[10:11], off""")
        a.label("PB_pfx")
        a("s_mov_b64 exec, -1")
        a.label("PB_nopf")
    if opt("codepf", 1) == 1: codepf()
    a(f"""s_and_b32 s26, s2, 1
          s_lshl_b32 s26, s26, 3
          s_lshr_b32 s3, s2, 5
          s_add_u32 s26, s26, s3
          s_bfe_u32 s{sK}, s2, 0x20003
          s_lshl_b32 s54, s{sK}, 1
          s_add_u32 s54, s54, s3
          s_mul_i32 s3, s54, 37
          s_lshr_b32 s3, s3, 8
          s_mul_i32 s3, s3, 7
          s_sub_u32 s54, s54, s3
          s_mul_i32 s54, s54, {opt("rotw", 1)}
          s_bfe_u32 s3, s2, 0x20001
          s_lshl_b32 s3, s3, 2
          s_add_u32 s3, s3, s{sK}
          s_lshl_b32 s3, s3, 2
          s_add_u32 s3, s3, s{sW}
          s_lshl_b32 s56, s3, 5
          s_and_b32 s27, s26, 3
          s_lshr_b32 s3, s27, 1
          s_add_u32 s3, s3, 1
          s_sub_u32 s57, 0, s3
          s_bitcmp1_b32 s27, 0
          s_cselect_b32 s3, s3, s57
          s_movk_i32 s{sROW}, 2688
          s_cmp_ge_u32 s26, 12
          s_cselect_b32 s3, s3, 0
          s_cselect_b32 s{sROW}, 896, s{sROW}
          s_cselect_b32 s27, s27, s26
          s_add_u32 s56, s56, s3
          s_mul_i32 s{sCOL}, s27, 224
          v_lshrrev_b32 v8, 3, v1
          v_add_u32 v8, s56, v8
          s_movk_i32 s3, 896
          v_mul_i32_i24 v8, s3, v8
          v_bfe_u32 v9, v1, 4, 2
          v_and_b32 v10, 7, v1
          v_xor_b32 v9, v9, v10
          v_lshl_add_u32 v2, v9, 4, v8
          v_xor_b32 v9, 4, v9
          v_lshl_add_u32 v3, v9, 4, v8
          v_add_u32 v3, {8*896}, v3
          v_add_u32 v4, {16*896}, v2
          v_add_u32 v5, {16*896}, v3
          v_lshrrev_b32 v8, 4, v1
          v_lshlrev_b32 v9, 2, v8
          v_sub_u32 v9, v1, v9
          v_and_b32 v9, 15, v9
          v_mul_u32_u24 v8, s{sROW}, v8
          v_lshl_add_u32 v7, v9, 4, v8
          v_cmp_gt_u32 s[96:97], 14, v9
          s_lshl_b32 s{sK}, s54, 6
          s_lshl_b32 s54, s54, 7
          s_lshl_b32 s3, s{sW}, 4
          s_mul_i32 s3, s3, s{sROW}
          s_add_u32 s{sCOL}, s{sCOL}, s3
          s_lshl_b32 s53, s{sROW}, 2
          s_lshl_b32 s55, s{sW}, 12
          s_waitcnt lgkmcnt(0)""")
    srd(a, XS, 4, 2048 * 896)
    q = []
    gap = []
    def ride(n):
        for x in gap[:n]: a(x)
        del gap[:n]
    def xchunk(c):
        for g in range(4):
            a(f"s_add_u32 m0, s55, {XB + (c % 3)*16384 + g*1024}")
            a(f"s_nop 0\nbuffer_load_dwordx4 v{2+g}, {s(XS,4)}, s54 offen lds")
            ride(9)
        wrapinc(a, 54, 128, 896)
        q.extend([c] * 4)
    def wchunk(c):
        a(f"""s_mul_i32 s{sWO}, s{sK}, s{sROW}
              s_add_u32 s{sWO}, s{sWO}, s{sCOL}""")
        wrapinc(a, sK, 64, 448)
        a("s_mov_b64 exec, s[96:97]")
        for u in range(4):
            a(f"s_add_u32 m0, s55, {c*16384 + u*1024}")
            if u: a(f"s_add_u32 s{sWO}, s{sWO}, s53")
            a(f"buffer_load_dwordx4 v7, {s(WA,4)}, s{sWO} offen lds")
        a("s_mov_b64 exec, -1")
        q.extend([c] * 4)
    bst(11)
    xchunk(0)
    a(f"""s_cmp_ge_u32 s26, 12
          s_cselect_b32 s{WA}, s12, s6
          s_cselect_b32 s{WA+1}, s13, s7
          s_mul_i32 s{WA+2}, s{sROW}, 448
          s_mov_b32 s{WA+3}, 0x20000""")
    wchunk(0)
    srd(a, WD, 24, WS_END)
    a(f"""s_lshl_b32 s61, s{sW}, 8
          s_or_b32 s61, s61, s2
          v_mov_b32 v22, 0
          s_cmp_ge_u32 s61, {NINIT}
          s_cbranch_scc1 PB_noinit
          v_lshlrev_b32 v13, 7, v1
          s_lshl_b32 s3, s2, 13
          s_add_u32 s3, s3, {FLG}
          buffer_store_dword v22, v13, {s(WD,4)}, s3 offen{SC}""")
    a.label("PB_noinit")
    if opt("codepf", 1) == 2: codepf()
    if opt("tlb", 0):
        a(f"""v_lshlrev_b32 v23, {opt("tlb", 0)}, v1
              v_add_u32 v23, {0x1fff80 if opt("tlb", 0) == 21 else 0xff80}, v23
              s_lshl_b32 s3, s{sW}, {opt("tlb", 0) + 6}
              buffer_load_dword v24, v23, {s(WD,4)}, s3 offen sc1""")
        q.append(1)
    a(f"""v_lshrrev_b32 v8, 1, v1
          v_and_b32 v9, 15, v8
          v_lshrrev_b32 v10, 4, v8
          v_lshlrev_b32 v10, 14, v10
          v_lshl_add_u32 v10, v9, 8, v10
          v_and_b32 v9, 3, v8
          v_lshlrev_b32 v9, 2, v9
          v_and_b32 v8, 1, v1
          v_add3_u32 v9, v9, v8, 14
          v_and_b32 v9, 15, v9
          v_lshl_add_u32 v10, v9, 4, v10
          v_add_u32 v10, s55, v10
          v_add_u32 v11, 0x10000, v10
          v_mov_b32 v12, 0x3f803f80
          v_mov_b32 v13, v12
          v_mov_b32 v14, v12
          v_mov_b32 v15, v12
          ds_write_b128 v10, v[12:15]
          ds_write_b128 v10, v[12:15] offset:32768
          ds_write_b128 v11, v[12:15]
          s_mov_b64 exec, 0xffffffff
          ds_write_b128 v11, v[12:15] offset:32768
          s_mov_b64 exec, -1""")
    srd(a, WD, 24, WS_END)
    srd(a, WB_, 22, 256)
    xchunk(1)
    if opt("w1e", 1): wchunk(1)
    CSB = opt("csb", 0)
    if CSB:
        a("s_cmp_ge_u32 s26, 12\ns_cselect_b32 s57, 8, 7")
        tr_addrs(a, 21, "s57", 0, perm=False, which=(4,))
        a("v_mov_b32 v26, 0\nv_mov_b32 v27, 0")
    small_setup(a, sRB, sCB, sT)
    tail = A()
    tail(f"""s_lshr_b32 s{sFT}, s{sW}, 1
          s_xor_b32 s{sFT}, s{sFT}, s2
          s_and_b32 s{sFT}, s{sFT}, 1
          v_lshrrev_b32 v8, 2, v1
          v_mul_u32_u24 v8, 896, v8
          v_bfe_u32 v9, v1, 4, 2
          v_and_b32 v10, 3, v1
          v_xor_b32 v9, v9, v10
          v_lshl_add_u32 v8, v9, 4, v8
          s_mul_i32 s3, s{sT}, {32*896}
          s_lshl_b32 s26, s{sCB}, 7
          s_add_u32 s3, s3, s26
          s_lshl_b32 s26, s{sFT}, 6
          s_add_u32 s3, s3, s26
          s_add_u32 s26, s3, {16*896}
          buffer_load_dwordx4 {v(XT,4)}, v8, {s(XS,4)}, s3 offen
          buffer_load_dwordx4 {v(XT+4,4)}, v8, {s(XS,4)}, s26 offen""")
    t2, t3, t4 = A(), A(), A()
    srd(t2, WB_, 14, 448*896)
    t2(f"""v_lshlrev_b32 v8, 7, v1
           s_lshr_b32 s57, s2, 3
           s_lshl_b32 s57, s57, 2
           s_add_u32 s57, s57, s{sW}
           s_mul_i32 s3, s57, {25*128}
           s_bfm_b64 exec, 25, 0
           buffer_load_dword v16, v8, {s(WB_,4)}, s3 offen{TF}
           s_mov_b64 exec, -1""")
    srd(t3, WB_, 16, 448*3584)
    t3(f"""s_lshr_b32 s57, s2, 3
           s_lshl_b32 s57, s57, 2
           s_add_u32 s57, s57, s{sW}
           s_mul_i32 s3, s57, 49
           v_add_u32 v9, s3, v1
           v_mul_u32_u24 v10, 9363, v9
           v_lshrrev_b32 v10, 17, v10
           v_mul_u32_u24 v11, 14, v10
           v_sub_u32 v9, v9, v11
           v_mul_u32_u24 v10, 3584, v10
           v_lshl_add_u32 v9, v9, 7, v10
           s_and_b32 s3, s2, 1
           s_mul_i32 s3, s3, 1792
           s_bfm_b64 exec, 49, 0
           buffer_load_dword v17, v9, {s(WB_,4)}, s3 offen{TF}
           s_mov_b64 exec, -1""")
    srd(t4, WB_, 18, 448*3584)
    t4(f"""v_lshlrev_b32 v8, 7, v1
           s_lshl_b32 s57, s2, 2
           s_add_u32 s57, s57, s{sW}
           s_mul_i32 s3, s57, {13*128}
           s_bfm_b64 exec, 13, 0
           buffer_load_dword v18, v8, {s(WB_,4)}, s3 offen{TF}""")
    srd(t4, WB_, 8, 448*896)
    t4(f"""s_lshl_b32 s3, s57, 9
           s_mov_b64 exec, 15
           buffer_load_dword v19, v8, {s(WB_,4)}, s3 offen{TF}
           s_mov_b64 exec, -1""")
    if opt("tmode", 0) & 1:
        t3 = A(); srd(t3, WB_, 16, 448*3584)
        t3(f"""v_lshlrev_b32 v8, 7, v1
               s_lshl_b32 s57, s2, 2
               s_add_u32 s57, s57, s{sW}
               s_mul_i32 s3, s57, {13*128}
               s_bfm_b64 exec, 13, 0
               buffer_load_dword v17, v8, {s(WB_,4)}, s3 offen
               s_mov_b64 exec, -1""")
    if opt("tmode", 0) & 2:
        t2 = A(); srd(t2, WB_, 14, 448*896)
        t2(f"""v_lshlrev_b32 v8, 7, v1
               s_lshl_b32 s57, s2, 2
               s_add_u32 s57, s57, s{sW}
               s_lshl_b32 s3, s57, 9
               s_mov_b64 exec, 15
               buffer_load_dword v16, v8, {s(WB_,4)}, s3 offen
               s_mov_b64 exec, -1""")
    w2, w2b = A(), A()
    w2(f"s_lshl_b32 s47, s{sW}, 11")
    small_addrs(w2, "s47")
    srd(w2, WA, 14, 448 * 896)
    w2(f"""s_mul_i32 s3, s{sW}, {112*896}
           s_lshl_b32 s26, s{sCB}, 7
           s_add_u32 s3, s3, s26
           v_add_u32 v4, s3, v7
           v_add_u32 v5, {8*896}, v4
           s_mul_i32 s50, s{sCB}, {16*896*opt("rot", 1)}""")
    for j in range(7):
        g = w2 if j < 6 else w2b
        g(f"""s_add_u32 m0, s47, {j*8192}
              s_nop 0
              buffer_load_dwordx4 v4, {s(WA,4)}, s50 offen lds
              s_add_u32 m0, s47, {j*8192 + 1024}
              s_nop 0
              buffer_load_dwordx4 v5, {s(WA,4)}, s50 offen lds""")
        if j < 6: wrapinc(g, 50, 16*896, 112*896)
    c3a, c3b = A(), A()
    srd(c3a, WB_, 16, 448*3584)
    c3a(f"""s_mul_i32 s3, s2, 2341
            s_lshr_b32 s3, s3, 16
            s_mul_i32 s57, s3, 28
            s_sub_u32 s57, s2, s57                 ; line = id % 28
            s_lshl_b32 s3, s3, 2
            s_add_u32 s3, s3, s{sW}
            s_mul_i32 s63, s57, 28
            s_add_u32 s63, s63, s3
            s_lshl_b32 s63, s63, 8
            s_add_u32 s63, s63, {CS3P}
            s_cmp_lt_u32 s2, 196
            s_cselect_b32 s63, s63, {OOB}
            s_mul_i32 s3, s3, {16*3584}
            s_lshl_b32 s57, s57, 7
            s_add_u32 s3, s3, s57
            s_add_u32 s57, s3, {8*3584}
            v_lshrrev_b32 v8, 3, v1
            v_mul_u32_u24 v8, 3584, v8
            v_and_b32 v9, 7, v1
            v_lshl_add_u32 v8, v9, 4, v8
            buffer_load_dwordx4 v[32:35], v8, {s(WB_,4)}, s3 offen
            buffer_load_dwordx4 v[36:39], v8, {s(WB_,4)}, s57 offen""")
    unpack(c3b, 40, 32, 8)
    for i in range(8): c3b(f"v_add_f32 v{40+i}, v{40+i}, v{48+i}")
    for i in range(4): c3b(f"v_permlane32_swap_b32 v{40+i}, v{44+i}")
    for i in range(4): c3b(f"v_add_f32 v{40+i}, v{40+i}, v{44+i}")
    for i in range(2): c3b(f"v_permlane16_swap_b32 v{40+i}, v{42+i}")
    for i in range(2): c3b(f"v_add_f32 v{40+i}, v{40+i}, v{42+i}")
    c3b(f"""v_and_b32 v8, 7, v1
            v_lshrrev_b32 v9, 4, v1
            v_lshlrev_b32 v8, 5, v8
            v_lshl_add_u32 v8, v9, 3, v8
            v_add_f32_dpp v40, v40, v40 row_ror:8 row_mask:0xf bank_mask:0xf
            v_add_f32_dpp v41, v41, v41 row_ror:8 row_mask:0xf bank_mask:0xf
            buffer_store_dwordx2 v[40:41], v8, {s(WD,4)}, s63 offen{SC}""")
    extras = [(opt("tl", 4), tail, 2), (opt("c3a", 4), c3a, 2), (opt("tw2", 2), t2, 1), (opt("w2c", 8), w2, 12), (opt("tw3", 4), t3, 1), (opt("tw4", 4), t4, 2), (max(opt("w2d", 6), opt("w2c", 8)), w2b, 2)]
    bst(2)
    for c in range(7):
        last = max(i for i, x in enumerate(q) if x == c)
        a(f"s_waitcnt vmcnt({len(q) - 1 - last}) lgkmcnt(0)")
        bst((3, 12, 13, 4, 5, 14, 8)[c])
        a("s_barrier")
        jitter(a)
        if CSB:
            if c == 4: a("v_add_u32 v25, 0x10000, v25")
            for i in range(8): a(f"ds_read_b64_tr_b16 {v(56+2*i,2)}, v25 offset:{(c & 3)*16384 + (16*(i>>1) + 4*(i&1))*256}")
            gap.append("s_waitcnt lgkmcnt(0)")
            for i in range(16):
                lo = 28 + 2*(i & 1)
                gap += [f"v_lshlrev_b32 v{lo}, 16, v{56+i}", f"v_and_b32 v{lo+1}, 0xffff0000, v{56+i}",
                        f"v_add_f32 v26, v26, v{lo}", f"v_add_f32 v27, v27, v{lo+1}"]
        if c == 1:
            a(f"""s_cmp_ge_u32 s61, {NINIT}
                  s_cbranch_scc1 PB_noset
                  s_lshl_b32 s3, s2, 2
                  v_mov_b32 v9, 1
                  s_mov_b64 exec, 1
                  buffer_store_dword v9, v22, {s(WB_,4)}, s3 offen{SC}
                  s_mov_b64 exec, -1""")
            a.label("PB_noset")
        if c == 0 and not opt("w1e", 1): wchunk(1)
        if c + 2 < 7: xchunk(c + 2); wchunk(c + 2)
        if c == 3:
            srd(a, WB_, 22, 256)
            a(f"v_min_u32 v20, {NINIT - 1}, v1\nv_lshlrev_b32 v20, 2, v20\nbuffer_load_dword v21, v20, {s(WB_,4)}, 0 offen sc1"); q.append(5)
        if c == 5:
            a("v_cmp_eq_u32 vcc, 0, v21\ns_cbranch_vccz PB_clr")
            srd(a, WB_, 22, 256)
            poll(a, 20, NINIT, WB_)
            a.label("PB_clr")
        for when, code, nv in extras:
            if when == c:
                for x in code.l: a(x)
                q.extend(["c3" if code is c3a or code is tail else 99] * nv)
        ride(999)
    if CSB:
        a("v_add_f32 v26, v26, v27")
        half_sum(a, 26, 27)
        cs_publish(a, 26, 28, XCH)
    a(f"""v_mov_b32 v8, {CNT}
          v_mov_b32 v12, 0
          v_mov_b32 v13, 0
          v_mov_b32 v14, 0
          v_mov_b32 v15, 0
          ds_write_b128 v8, v[12:15]
          ds_write_b128 v8, v[12:15] offset:16
          ds_write_b128 v8, v[12:15] offset:32
          s_waitcnt lgkmcnt(0)
          s_barrier                              ; barrier 7""")
    for when, code, nv in extras:
        if when == 67:
            for x in code.l: a(x)
            q.extend([99] * nv)
    a(f"""s_waitcnt vmcnt({len(q) - 1 - max(i for i, x in enumerate(q) if x == "c3")})""")
    for x in c3b.l: a(x)
    g2_setup(a)
    a(f"""s_and_b32 s3, s2, 1
          s_lshl_b32 s3, s3, 3
          s_lshr_b32 s26, s2, 5
          s_add_u32 s3, s3, s26
          s_lshl_b32 s3, s3, 4
          s_lshr_b32 s26, s{sRB}, 1
          s_add_u32 s3, s3, s26
          s_lshl_b32 s3, s3, 7
          s_add_u32 s3, s3, {FP}
          s_waitcnt vmcnt(0)""")
    signal(a, 3, C_S1, last=7)
    for when, code, nv in extras:
        if when == 7:
            for x in code.l: a(x)
    bst(9)
    gwait(a, C_X, 4, field=1)
    for when, code, nv in extras:
        if when == 8:
            for x in code.l: a(x)
    bst(10); bst(15)

def small_setup(a, sRB, sCB, sT):
    a(f"""s_bfe_u32 s26, s2, 0x20001
          s_lshl_b32 s26, s26, 2
          s_bfe_u32 s3, s2, 0x20003
          s_add_u32 s26, s26, s3
          s_lshl_b32 s{sRB}, s26, 1
          s_and_b32 s3, s2, 1
          s_add_u32 s{sRB}, s{sRB}, s3
          s_lshr_b32 s{sCB}, s2, 5
          s_and_b32 s3, s{sW}, 1
          s_lshl_b32 s{sT}, s{sRB}, 1
          s_add_u32 s{sT}, s{sT}, s3""")

def small_addrs(a, sM, natural=False):
    a(f"""v_lshrrev_b32 v8, 3, v1
          v_bfe_u32 v9, v1, 4, 1
          v_lshlrev_b32 v9, 2, v9
          v_and_b32 v10, 7, v1
          v_xor_b32 v9, v9, v10
          v_mul_u32_u24 v8, 896, v8
          v_lshl_add_u32 v7, v9, 4, v8
          v_lshrrev_b32 v8, 5, v1
          v_bfe_u32 v9, v1, 2, 2
          v_lshl_add_u32 v8, v8, 2, v9
          v_lshlrev_b32 v8, 7, v8
          v_bfe_u32 v10, v1, 4, 1
          v_bfe_u32 v11, v1, 1, 1
          v_lshl_add_u32 v10, v10, 1, v11
          v_bfe_u32 v11, v1, 3, 1
          v_lshl_add_u32 v10, v11, 2, v10
          v_lshl_add_u32 v8, v10, 4, v8
          v_and_b32 v11, 1, v1
          v_lshl_add_u32 v8, v11, 3, v8
          s_lshl_b32 s3, {"0" if natural else "s%d" % sFT}, 6
          v_xor_b32 v8, s3, v8
          v_add_u32 v2, {sM}, v8
          v_xor_b32 v8, 64, v8
          v_add_u32 v3, {sM}, v8""")

def wreads(a, WF, buf, off, va=2):
    for b in range(2):
        for e in range(2): a(f"ds_read_b64_tr_b16 {v(WF+8*buf+4*b+2*e,2)}, v{va+b} offset:{off + 8*e*128}")
def mfmas(a, ACC, WF, buf, act0, act1, first):
    for aa, ar in enumerate((act0, act1)):
        for b in range(2):
            j = 2*aa + b
            a(f"{MF} {v(ACC+16*j,16)}, {v(WF+8*buf+4*b,4)}, {v(ar,4)}, {'0' if first else v(ACC+16*j,16)}")

def g2_setup(a):
    EP = 176
    sRB, sCB, sT, sM, sK, sKA, sX = 44, 45, 48, 47, 50, 51, 53
    sRB3, sCB3, sT3, sK3, sL = 54, 55, 56, 57, 49
    ROT = opt("rot", 1)
    a(f"s_lshl_b32 s{sL}, s{sW}, 11")
    a(f"""s_add_u32 s3, s{sL}, {H1}
          v_add_u32 v10, s3, v0
          v_and_b32 v8, 31, v1
          v_lshlrev_b32 v8, 6, v8
          v_bfe_u32 v9, v1, 2, 2
          v_lshl_add_u32 v8, v9, 4, v8
          v_lshrrev_b32 v9, 5, v1
          v_lshl_add_u32 v8, v9, 3, v8
          v_add_u32 v12, s3, v8
          v_xor_b32 v13, 16, v12
          v_xor_b32 v14, 32, v12
          v_xor_b32 v15, 48, v12
          ds_write_b128 v10, v[232:235]
          ds_write_b128 v10, v[236:239] offset:1024
          s_waitcnt lgkmcnt(0)""")
    for j in range(4): a(f"ds_read_b64 {v(EP+2*j,2)}, v{12+j}")
    a(f"""s_and_b32 s26, s2, 7
          s_lshr_b32 s27, s2, 3
          s_lshr_b32 s{sRB3}, s26, 1
          s_lshl_b32 s{sRB3}, s{sRB3}, 2
          s_and_b32 s3, s27, 3
          s_add_u32 s{sRB3}, s{sRB3}, s3
          s_and_b32 s{sCB3}, s26, 1
          s_mul_i32 s{sCB3}, s{sCB3}, 7
          s_add_u32 s{sCB3}, s{sCB3}, s{sCB}
          s_lshl_b32 s{sT3}, s{sRB3}, 2
          s_add_u32 s{sT3}, s{sT3}, s{sW}
          v_lshrrev_b32 v8, 3, v1
          v_bfe_u32 v9, v1, 4, 1
          v_lshlrev_b32 v9, 2, v9
          v_and_b32 v6, 7, v1
          v_xor_b32 v9, v9, v6
          v_mul_u32_u24 v8, 3584, v8
          v_lshl_add_u32 v6, v9, 4, v8
          s_mul_i32 s3, s{sW}, {16*3584}
          s_lshl_b32 s26, s{sCB3}, 8
          s_add_u32 s3, s3, s26
          v_add_u32 v6, s3, v6                   ; W3 voffset
          s_mul_i32 s{sK3}, s{sCB}, {64*3584*ROT}""")
    srd(a, WB_, 16, 448 * 3584)
    a("s_waitcnt lgkmcnt(0)")
    a(f"""s_mul_i32 s3, s{sT}, 28
          s_mul_i32 s26, s{sW}, 7
          s_add_u32 s3, s3, s26
          s_lshl_b32 s3, s3, 10
          s_add_u32 s3, s3, {HF}
          v_add_u32 v186, s3, v0
          s_xor_b32 s3, s{sT}, 1
          s_mul_i32 s3, s3, 28
          s_add_u32 s3, s3, s26
          s_lshl_b32 s3, s3, 10
          s_add_u32 s3, s3, {HF}
          v_add_u32 v187, s3, v0
          s_mul_i32 s{sKA}, s{sCB}, {1024*ROT}
          s_mul_i32 s{sX}, s{sT}, 28
          s_lshl_b32 s3, s{sCB}, 2
          s_add_u32 s{sX}, s{sX}, s3
          s_lshl_b32 s3, s{sFT}, 1
          s_add_u32 s{sX}, s{sX}, s3
          s_lshl_b32 s{sX}, s{sX}, 10
          s_add_u32 s{sX}, s{sX}, {X1F}
          s_add_u32 s3, s{sW}, 12
          s_lshl_b32 s3, s3, 4
          s_lshr_b32 s26, s{sRB}, 1
          s_add_u32 s3, s3, s26
          s_lshl_b32 s3, s3, 7
          s_add_u32 s3, s3, {FP}
          v_mov_b32 v188, s3
          s_lshl_b32 s3, s26, 7
          s_add_u32 s3, s3, {FP}
          v_mov_b32 v189, s3
          v_lshlrev_b32 v8, 3, v1
          v_and_b32 v15, 0xff, v8
          s_lshl_b32 s27, s{sT}, 8
          s_add_u32 s27, s27, {ST1}""")
    unpack(a, RES, EP, 8)

def roleb(a):
    ACC, WF, AR, EP = 16, 80, 112, 176
    sRB, sCB, sT, sM, sK, sKA, sX = 44, 45, 48, 47, 50, 51, 53
    sRB3, sCB3, sT3, sK3, sL = 54, 55, 56, 57, 49
    ROT = opt("rot", 1)
    a("s_cmp_ge_u32 s2, 224\ns_cbranch_scc0 B_go")
    a(f"""s_mov_b64 exec, 1
          v_mov_b32 v8, {CNT}
          v_mov_b32 v9, {B_G3_DONE // 4}
          ds_add_u32 v8, v9
          s_mov_b64 exec, -1""")
    garrive(a, C_X)
    if opt("idlepf", 0):
        if opt("idlepf", 0) == 2: gwait(a, C_S1, 8)
        else:
            a(f"""s_lshl_b32 s3, s{sRB}, 10
                  s_add_u32 s3, s3, {F2}
                  v_mov_b32 v10, s3""")
            poll(a, 10, 1)
        srd(a, WA, 18, 1792 * 896)
        srd(a, WB_, 8, 448 * 896)
        a(f"""s_lshr_b32 s3, s2, 3
              s_sub_u32 s3, s3, 28
              s_lshl_b32 s3, s3, 2
              s_add_u32 s3, s3, s{sW}
              s_lshl_b32 s26, s3, 13
              s_and_b32 s27, s2, 1
              s_mul_i32 s27, s27, {896*896}
              s_add_u32 s26, s26, s27
              v_lshlrev_b32 v8, 7, v1
              s_mov_b32 s27, 7""")
        a.label("B_pf")
        a(f"""buffer_load_dword v16, v8, {s(WA,4)}, s26 offen{TF}
              s_add_u32 s26, s26, {16*8192}
              s_waitcnt vmcnt(1)
              s_sub_u32 s27, s27, 1
              s_cmp_lg_u32 s27, 0
              s_cbranch_scc1 B_pf
              s_lshl_b32 s26, s3, 13""")
        for i in range(4): a(f"buffer_load_dword v16, v8, {s(WB_,4)}, s26 offen{TF}\ns_add_u32 s26, s26, {16*8192}")
    a("s_endpgm")
    a.label("B_go")
    a(f"s_setprio {opt('pb', 1)}")
    bs2 = (lambda i: common.stamp(a, i)) if opt("g2s", 0) and common.STAMPS else (lambda i: None)
    if opt("g2s", 0):
        global stamp
        keep = stamp
        stamp = lambda a_, i, *x: keep(a_, i, *x) if i in (2, 3) else None
    def w3chunk(c):
        hf, j = (1, c) if c < 7 else (0, c - 7)
        for u in range(2):
            a(f"s_add_u32 m0, s{sL}, {hf*H1 + j*8192 + u*1024}")
            a(f"s_add_u32 s3, s{sK3}, {u*8*3584 + 128*hf}")
            a(f"buffer_load_dwordx4 v6, {s(WB_,4)}, s3 offen lds")
        wrapinc(a, sK3, 64*3584, 448*3584)
    W3A = opt("w3a", 2); W3E = max(W3A, opt("w3e", 6)); assert W3E <= 6
    if W3A:
        gwait(a, C_S1, 8)
        for c in range(W3A): w3chunk(c)
    stamp(a, 2)
    poll(a, 188, 1)
    a(f"buffer_load_dword v12, v189, {s(WD,4)}, 0 offen sc1")
    stamp(a, 3)
    for j in range(7):
        a(f"buffer_load_dwordx4 {v(AR+8*j,4)}, v186, {s(WD,4)}, s{sKA} offen{SC}")
        a(f"buffer_load_dwordx4 {v(AR+8*j+4,4)}, v187, {s(WD,4)}, s{sKA} offen{SC}")
        if j < 6: wrapinc(a, sKA, 1024, 7168)
    a("s_waitcnt vmcnt(14)\nv_cmp_eq_u32 vcc, 0, v12\ns_cbranch_vccz B_st1")
    poll(a, 189, 1)
    a.label("B_st1")
    a(f"buffer_load_dwordx2 {v(EP+8,2)}, v15, {s(WD,4)}, s27 offen{SC}")
    garrive(a, C_X)
    a(f"s_setprio {opt('pg2', 0)}")
    for s_ in range(3): wreads(a, WF, s_, s_*8192)
    NW3 = 0
    for s_ in range(7):
        a(f"s_waitcnt vmcnt({2*(6-s_) + 1 + NW3}) lgkmcnt({4*min(2, 6 - s_)})")
        mfmas(a, ACC, WF, s_ & 3, AR+8*s_, AR+8*s_+4, s_ == 0)
        if s_ + 3 < 7: wreads(a, WF, (s_+3) & 3, (s_+3)*8192)
    U = AR
    a(f"s_setprio {opt('pb', 1)}")
    stamp(a, 12)
    a(f"s_waitcnt vmcnt({NW3})")
    for i in range(16): a(f"v_sub_f32 v{U+i}, v{RES+i}, v{EP+8}")
    def region2(d, j):
        a(f"""s_xor_b32 s{d}, s{sW}, {(j >> 1) + 2*(j & 1)}
              s_mul_i32 s{d}, s{d}, 12288
              s_add_u32 s{d}, s{d}, {W3B + 48*1024}""")
    region2(sM, 0)
    reduce3(a, ACC, sM, region2, 0, 4, True)
    stamp(a, 13)
    for i in range(16): a(f"v_fma_f32 v{U+i}, v{U+i}, v{EP+9}, v{ACC+i}")
    for i in range(8): a(f"v_cvt_pk_bf16_f32 v{EP+i}, v{U+2*i}, v{U+2*i+1}")
    a(f"buffer_store_dwordx4 {v(EP,4)}, v0, {s(WD,4)}, s{sX} offen{SC}")
    a(f"buffer_store_dwordx4 {v(EP+4,4)}, v0, {s(WD,4)}, s{sX} offen offset:1024{SC}")
    if not opt("g2u", 1): unpack(a, U, EP, 8)
    for i in range(16):
        a(f"v_add_f32 v{10+(i&1)}, v{U+i}, {'0' if i < 2 else 'v%d' % (10+(i&1))}")
        a(f"v_fma_f32 v{12+(i&1)}, v{U+i}, v{U+i}, {'0' if i < 2 else 'v%d' % (12+(i&1))}")
    a("v_add_f32 v10, v10, v11\nv_add_f32 v11, v12, v13")
    half_sum(a, 10, 8); half_sum(a, 11, 9)
    a(f"""s_lshl_b32 s26, s{sCB}, 1
          s_add_u32 s26, s26, s{sFT}
          s_mul_i32 s3, s{sT}, 14
          s_add_u32 s3, s3, s26
          s_lshl_b32 s3, s3, 8
          s_add_u32 s3, s3, {ST3}
          buffer_store_dwordx2 v[10:11], v15, {s(WD,4)}, s3 offen{SC}
          s_lshl_b32 s3, s{sRB}, 3
          s_add_u32 s3, s3, s{sCB}
          s_lshl_b32 s3, s3, 7
          s_add_u32 s{sX}, s3, {F2}""")
    garrive(a, 0)
    for i in range(16): a(f"v_add_f32 v{RES+i}, v{RES+i}, v{U+i}")
    lo = lambda: a("s_setprio 0") if opt("kvprio", 1) == 2 else None
    hi = lambda: a(f"s_setprio {opt('pb', 1)}") if opt("kvprio", 1) == 2 else None
    lo()
    for c in range(W3A, W3E): w3chunk(c)
    hi()
    a(f"s_waitcnt vmcnt({2*(W3E - W3A)})")
    signal(a, sX, 12)
    stamp(a, 4)
    gwait(a, 0, 8)
    lo()
    for c in range(W3E, 14): w3chunk(c)
    hi()
    ACC, WF, XR, TMP = 16, 80, 112, 240
    CSP, CS = TMP, ACC + 48
    a(f"""s_lshl_b32 s3, s{sFT}, 6
          s_sub_u32 s26, 0, s{sL}
          v_add_u32 v2, s26, v2
          v_xor_b32 v2, s3, v2
          v_xor_b32 v3, 64, v2
          v_add_u32 v4, {H1}, v2
          v_add_u32 v5, {H1}, v3""")
    a(f"""s_lshr_b32 s3, s{sT3}, 1
          s_lshl_b32 s3, s3, 10
          s_add_u32 s3, s3, {F2}
          v_lshl_add_u32 v11, v1, 7, s3
          s_lshl_b32 s26, s{sCB3}, 1
          s_lshr_b32 s3, s{sW}, 1
          s_add_u32 s26, s26, s3
          v_add_u32 v8, -7, v1
          v_mul_u32_u24 v8, 28, v8
          v_add_u32 v8, s26, v8
          v_and_b32 v9, 1, v8
          v_lshrrev_b32 v10, 5, v8
          v_lshl_add_u32 v9, v9, 3, v10
          v_bfe_u32 v10, v8, 1, 2
          v_lshl_add_u32 v9, v9, 2, v10
          v_bfe_u32 v10, v8, 3, 2
          v_lshl_add_u32 v9, v9, 2, v10
          v_lshlrev_b32 v9, 7, v9
          v_add_u32 v9, {FP}, v9
          v_cmp_gt_u32 vcc, 7, v1
          v_cndmask_b32 v11, v9, v11, vcc
          s_mul_i32 s{sK3}, s26, {28*256}
          s_and_b32 s3, s{sW}, 1
          s_lshl_b32 s3, s3, 7
          s_add_u32 s{sK3}, s{sK3}, s3
          s_add_u32 s{sK3}, s{sK3}, {CS3P}
          v_lshrrev_b32 v10, 5, v1
          v_mul_u32_u24 v10, {14*256}, v10
          v_and_b32 v9, 31, v1
          v_lshl_add_u32 v6, v9, 2, v10
          s_mul_i32 s3, s{sT3}, {28*1024}
          s_add_u32 s3, s3, {X1F}
          v_add_u32 v7, s3, v0
          s_mul_i32 s{sKA}, s{sCB}, {4096*ROT}
          v_lshrrev_b32 v12, 5, v1
          v_mul_u32_u24 v12, {7*256}, v12
          v_and_b32 v13, 31, v1
          v_lshl_add_u32 v12, v13, 3, v12
          s_mul_i32 s27, s{sT3}, {14*256}
          s_add_u32 s27, s27, {ST3}""")
    a("s_waitcnt vmcnt(0)")
    gbar(a, 0, 12)
    CSG = opt("csg", 1)
    def cs_exchange():
        a(f"""v_cvt_pk_bf16_f32 v{WF}, v{CS}, v{CS}
              v_and_b32 v{WF}, 0xffff0000, v{WF}
              v_sub_f32 v{WF}, v{CS}, v{WF}
              v_cvt_pk_bf16_f32 v{WF}, v{CS}, v{WF}
              v_and_b32 v13, 31, v1
              v_lshlrev_b32 v13, 2, v13
              s_lshl_b32 s26, s{sW}, 7
              s_add_u32 s26, s26, {XCH3}
              v_add_u32 v13, s26, v13
              ds_write_b32 v13, v{WF}""")
        a("s_waitcnt lgkmcnt(0)")
        garrive(a, 0)
    def cs_collect():
        gwait(a, 0, 16)
        a(f"v_and_b32 v15, 31, v1\nv_lshlrev_b32 v15, 2, v15\nv_add_u32 v15, {XCH3}, v15")
        for t in range(4): a(f"ds_read_b32 v{CSP+t}, v15 offset:{128*t}")
        a("s_waitcnt lgkmcnt(0)")
    hops = lambda ts: {}
    woff = None
    poll(a, 11, 14)
    stamp(a, 5)
    STL = [WF + 24, WF + 26, WF + 28, WF + 30, TMP + 8, TMP + 10, 14]; ST = STL[0]
    LA = opt("la3", 10)
    def xl(u):
        g = A()
        g(f"buffer_load_dwordx4 {v(XR+4*u,4)}, v7, {s(WD,4)}, s{sKA} offen offset:{(u&3)*1024}{SC}")
        if (u & 3) == 3 and u < 27: wrapinc(g, sKA, 4096, 7*4096)
        return g.l
    L0 = opt("l0", 4)
    for u in range(L0):
        for x in xl(u): a(x)
        if u == 3:
            for i in range(7): a(f"buffer_load_dwordx2 {v(STL[i],2)}, v12, {s(WD,4)}, s27 offen offset:{i*256}{SC}")
            for i in range(14): a(f"buffer_load_dword v{CS+i}, v6, {s(WD,4)}, s{sK3} offen offset:{i*256}{SC}")
    M0_, M1_, R, DEN = TMP+4, TMP+5, TMP+6, TMP+7
    f = A()
    for i in range(1, 7): f(f"v_add_f32 v{ST}, v{ST}, v{STL[i]}\nv_add_f32 v{ST+1}, v{ST+1}, v{STL[i]+1}")
    f(f"v_mov_b32 v12, v{ST}\nv_mov_b32 v13, v{ST+1}")
    half_sum(f, 12, 8); half_sum(f, 13, 9)
    f(f"""v_mul_f32 v12, {fb(1/448)}, v12
          v_mul_f32 v13, {fb(1/448)}, v13
          v_fma_f32 v13, -v12, v12, v13
          v_max_f32 v13, 0, v13
          v_add_f32 v13, {fb(EPS)}, v13
          v_sqrt_f32 v{DEN}, v13
          v_rsq_f32 v{R}, v13""")
    mu_frag(f, 12, "-1", M0_, M1_)
    gelu_consts(f, R, DEN)
    f(f"""s_mul_i32 s{sK}, s{sT3}, 112
          s_lshl_b32 s27, s{sCB3}, 3
          s_add_u32 s{sK}, s{sK}, s27
          s_lshl_b32 s{sK}, s{sK}, 10
          s_add_u32 s{sK}, s{sK}, {HHF}
          s_add_u32 s27, s{sK}, 4096""")
    for i in range(1, 14): f(f"v_add_f32 v{CS}, v{CS}, v{CS+i}")
    half_sum(f, CS, 8)
    f(f"""v_cvt_pk_bf16_f32 v11, v{CS}, v{CS}
          v_and_b32 v11, 0xffff0000, v11
          v_sub_f32 v11, v{CS}, v11
          v_cvt_pk_bf16_f32 v11, v{CS}, v11
          s_lshl_b32 s26, s{sW}, 7
          s_add_u32 s26, s26, {XCH3}
          v_and_b32 v13, 31, v1
          v_lshl_add_u32 v13, v13, 2, s26""")
    NA = opt("na", 2)
    t1 = ((0,) if CSG else (0, 4)) + tuple(range(1, NA)); t2_ = tuple(range(NA, 4))
    pre = hops(t1); pre["fill0"] = 4*len(t1) + 1; pre["G"] = opt("g3g", NA)
    issued = L0
    for s_ in range(28):
        pre[("s", s_)] = [f"s_waitcnt vmcnt({issued - 1 - s_ + (21 if s_ < 4 else 0)})"]
        pre[("t", s_)] = []
        for _ in range(2):
            if issued < min(28, s_ + 1 + LA): pre[("t", s_)] += xl(issued); issued += 1
        if opt("g3s", 0) and common.STAMPS and s_ in (0, 8, 16, 27):
            g = A(); common.stamp(g, {0: 2, 8: 3, 16: 12, 27: 13}[s_]); pre[("s", s_)] += g.l
    g = A(); g("ds_write_b32 v13, v11"); garrive(g, 0); pre[("m", 28*NA - 3)] = g.l
    pre["fillend"] = 28*NA - 4
    if opt("p3h", 8): pre[("s", opt("p3h", 8))] = pre[("s", opt("p3h", 8))] + [f"s_setprio {opt('pb', 1)}"]
    a(f"s_setprio {0 if opt('p3h', 8) else opt('p3a', 1)}")
    kloop(a, ACC, WF, XR, 2, t1, woff, pre, True, f.l, R=6, D=5, cs=(CS, CSP, 32))
    a(f"s_setprio {opt('pb', 1)}")
    cs_collect()
    stamp(a, 13 if False else 14)
    def gfrag(fr, o):
        return gelu8(ACC + 8*fr, 10, 12, 14, TMP + 8, o) + [f"buffer_store_dwordx4 {v(o,4)}, v0, {s(WD,4)}, s{sK if fr < 4 else 27} offen offset:{(fr&3)*1024}{SC}"]
    assert NA == 2 or not opt("w4e", 0)
    garrive(a, 0)
    mean_fix(a, ACC, WF, lambda t: CSP + t, M0_, M1_, tuple(range(NA)))
    srd(a, WA, 18, 1792 * 896)
    a(f"""v_lshrrev_b32 v8, 3, v1
          v_bfe_u32 v9, v1, 4, 1
          v_lshlrev_b32 v9, 2, v9
          v_and_b32 v7, 7, v1
          v_xor_b32 v9, v9, v7
          v_mul_u32_u24 v8, 896, v8
          v_lshl_add_u32 v7, v9, 4, v8
          s_and_b32 s3, s2, 1
          s_mul_i32 s3, s3, 56
          s_add_u32 s3, s3, s{sW}
          s_mul_i32 s3, s3, {16*896}
          s_lshl_b32 s26, s{sCB}, 7
          s_add_u32 s3, s3, s26
          v_add_u32 v7, s3, v7                   ; W4 voffset
          s_mul_i32 s{sK3}, s{sCB}, {8*16*896*ROT}""")
    def w4step(g, j):
        for u in range(2):
            g(f"s_add_u32 m0, s{sL}, {j*8192 + u*1024}\ns_add_u32 s3, s{sK3}, {u*8*896}\nbuffer_load_dwordx4 v7, {s(WA,4)}, s3 offen lds")
        wrapinc(g, sK3, 4*16*896, 896*896)
    nov = opt("nov", 2*NA)
    pre = {"G": opt("g3b", 4 - NA)}
    W4S = opt("w4s", 3)
    W4E = opt("w4e", 0)
    g = A(); g.uid = 2000; gwait(g, 0, 20); pre[("s", W4S if W4E else 26)] = g.l
    for j in range(W4E):
        g = A(); w4step(g, j); pre[("t", W4S + (21 // W4E)*j)] = g.l
    kloop(a, ACC, WF, XR, 2, t2_, woff, pre, True,
          sum((gfrag(fr, XR + 4*fr) for fr in range(nov)), []), R=6, D=5)
    garrive(a, 0)
    OWN = XR
    mean_fix(a, ACC, WF, lambda t: CSP + t, M0_, M1_, tuple(range(NA if NA < 4 else 0, 4)))
    for fr in range(nov, 8):
        if opt("pkg", 0):
            gelu_pairs(a, [ACC + 8*fr + 2*i for i in range(4)], 10, 12, 14, TMP + 8)
            for i in range(4): a(f"v_cvt_pk_bf16_f32 v{XR+4*fr+i}, v{ACC+8*fr+2*i}, v{ACC+8*fr+2*i+1}")
            a(gfrag(fr, XR + 4*fr)[-1])
        else:
            for x in gfrag(fr, OWN + 4*fr): a(x)
    stamp(a, 8)
    ACC, WF, AR, EP = 16, 80, 144, 176
    WOB = 0
    srd(a, WB_, 8, 448 * 896)
    a("s_and_b32 s27, s2, 1")
    gwait(a, 0, B_G3_DONE)
    NP0 = opt("np0", 4)
    lo()
    for j in range(W4E, W4E + NP0): w4step(a, j)
    hi()
    a(f"""s_lshl_b32 s3, s{sRB3}, 4
          s_add_u32 s3, s3, s{sCB3}
          s_lshl_b32 s3, s3, 7
          s_add_u32 s{sX}, s3, {F3}
          s_mul_i32 s3, s{sT3}, 112
          s_mul_i32 s26, s27, 56
          s_add_u32 s3, s3, s26
          s_lshl_b32 s3, s3, 10
          s_add_u32 s3, s3, {HHF}
          v_add_u32 v4, s3, v0
          s_add_u32 s{sKA}, s{sCB}, 1
          s_cmp_eq_u32 s{sKA}, 7
          s_cselect_b32 s{sKA}, 0, s{sKA}
          s_lshl_b32 s{sKA}, s{sKA}, 13
          s_lshl_b32 s26, s{sRB3}, 4
          s_mul_i32 s3, s27, 7
          s_add_u32 s3, s3, s26
          v_add_u32 v10, s3, v1
          v_lshlrev_b32 v10, 7, v10
          v_add_u32 v10, {F3}, v10
          s_lshl_b32 s3, s{sW}, 2
          s_add_u32 s3, s3, s26
          v_and_b32 v14, 3, v1
          v_add_u32 v14, s3, v14
          v_lshlrev_b32 v14, 7, v14
          v_add_u32 v14, {FA}, v14
          s_waitcnt vmcnt({2*NP0})""")
    signal(a, sX, 16)
    stamp(a, 9)
    lo()
    for j in range(W4E + NP0, 14): w4step(a, j)
    hi()
    a(f"""s_mul_i32 s3, s27, {896*896}
          s_mul_i32 s26, s{sW}, {96*896}
          s_sub_u32 s3, s26, s3
          v_add_u32 v7, s3, v7""")
    poll(a, 10, 7)
    gbar(a, 0, B_G3_DONE + 4)
    stamp(a, 10)
    LA4, RA = opt("la4", 12), 14
    PB = opt("pb16", 1); NPS = 8 >> PB
    OR_ = lambda u: 168 + 8*u if u < 7 else 240
    PD, EP = 112, 128
    q = []
    def after(tag):
        return len(q) - 1 - max(i for i, x in enumerate(q) if x == tag)
    def al(u):
        a(f"buffer_load_dwordx4 {v(AR + 4*(u % RA), 4)}, v4, {s(WD,4)}, s{sKA} offen offset:{(u&3)*1024}{SC}"); q.append(("a", u))
        if (u & 3) == 3 and u < 55: wrapinc(a, sKA, 4096, 56*1024)
    def rd(m):
        s_, b = m >> 1, m & 1
        if m == 64: a("v_add_u32 v2, 0x10000, v2\nv_add_u32 v3, 0x10000, v3")
        for e in range(2): a(f"ds_read_b64_tr_b16 {v(WF + 4*(m & 7) + 2*e, 2)}, v{2+b} offset:{(s_ & 31)*2048 + e*1024}")
    def wo(u):
        a(f"s_add_u32 m0, s{sM}, {u*1024}\ns_mov_b32 s3, {u*8*896}\nbuffer_load_dwordx4 v7, {s(WB_,4)}, s3 offen lds"); q.append(("w", u))
    def ol(u):
        for aa in range(2):
            a(f"buffer_load_dwordx4 {v(OR_(u)+4*aa,4)}, v{12+aa}, {s(WD,4)}, {'0' if u < 4 else 's%d' % sL} offen offset:{(u&3)*1024}{SC}"); q.append(("o", u))
    assert ROT
    I0 = opt("i0", 2); nxt = [8 + I0]
    for u in range(8, 8 + I0): al(u)
    a(f"""s_mul_i32 s{sM}, s{sW}, 15360
          s_movk_i32 s{sL}, 4096
          s_lshl_b32 s3, s{sT}, 5
          s_lshl_b32 s26, s{sW}, 3
          s_add_u32 s3, s3, s26
          s_lshl_b32 s3, s3, 10
          s_add_u32 s3, s3, {OF}
          v_add_u32 v12, s3, v0
          v_xor_b32 v13, {32*1024}, v12
          s_setprio {opt('pf', 0)}""")
    D4 = 6
    S_ARR, S_WO, S_FL, S_CHK = 31, opt("swo", 40), opt("sfl", 54), 99
    for m in range(D4): rd(m)
    for m in range(112):
        s_, b = m >> 1, m & 1
        if b == 0: a("s_waitcnt " + (f"vmcnt({after(('a', s_))}) " if s_ >= 8 else "") + f"lgkmcnt({2*max(0, min(D4 - 2, 110 - m))})")
        a(f"{MF} {v(ACC+16*b,16)}, {v(WF + 4*(m & 7), 4)}, {v(AR + 4*(s_ % RA) if s_ >= 8 else OWN + 4*s_, 4)}, {'0' if s_ == 0 else v(ACC+16*b,16)}")
        if m + D4 < 112: rd(m + D4)
        if b == 1:
            if opt("g4s", 0) and s_ in (7, 8, 30, 36, 51): stamp(a, {7: 2, 8: 3, 30: 12, 36: 13, 51: 4}[s_])
            for _ in range(opt("i1", 2) if s_ < 8 else 1):
                if nxt[0] < min(56, max(s_, 7) + 1 + LA4): al(nxt[0]); nxt[0] += 1
            if s_ == S_ARR: garrive(a, 0)
            if s_ == S_WO: gwait(a, 0, B_G3_DONE + 8)
            if S_WO <= s_ < S_WO + 15: wo(s_ - S_WO)
            if s_ == S_FL:
                a(f"buffer_load_dword v15, v14, {s(WD,4)}, 0 offen sc1"); q.append("f")
    a(f"s_setprio {opt('pb', 1)}")
    stamp(a, 11)
    a(f"""s_lshl_b32 s{sX}, s2, 7
          s_add_u32 s{sX}, s{sX}, {FQ}
          s_lshl_b32 s3, s{sFT}, 6
          s_add_u32 s26, s{sM}, 0xffff0000
          v_xor_b32 v2, s3, v2
          v_xor_b32 v3, s3, v3
          v_add_u32 v2, s26, v2
          v_add_u32 v3, s26, v3
          s_xor_b32 s3, s{sRB}, 1
          s_mul_i32 s3, s3, 7
          s_add_u32 s3, s3, s{sCB}
          s_lshl_b32 s3, s3, 1
          s_and_b32 s26, s{sW}, 1
          s_add_u32 s3, s3, s26
          s_lshl_b32 s3, s3, {13 - PB}
          s_add_u32 s3, s3, {PART}
          s_cmp_eq_u32 s{sFT}, 0
          s_cselect_b32 s3, {OOB}, s3
          s_add_u32 s26, s3, 4096""")
    woff2 = lambda u: (28*(u >> 1) + 16*(u & 1)) * 128
    if PB:
        for i in range(16):
            a(f"v_cvt_pk_bf16_f32 v{PD+i}, v{ACC+2*i}, v{ACC+2*i+1}")
            if (i & 3) == 3: a(f"buffer_store_dwordx4 {v(PD+i-3,4)}, v0, {s(WD,4)}, s3 offen offset:{(i>>2)*1024}{SC}")
    else:
        for i in range(8): a(f"buffer_store_dwordx4 {v(ACC+4*i,4)}, v0, {s(WD,4)}, s{3 if i < 4 else 26} offen offset:{(i&3)*1024}{SC}")
    a(f"""s_mov_b32 s{sKA}, 0
          s_waitcnt vmcnt({NPS})
          v_cmp_eq_u32 vcc, 0, v15
          s_cbranch_vccz B_oready
          s_waitcnt vmcnt(0)""")
    signal(a, sX, C_SQ)
    a(f"s_mov_b32 s{sKA}, 1")
    poll(a, 14, 4)
    a.label("B_oready")
    for u in range(8): ol(u)
    stamp(a, 15)
    for u in range(3): wreads(a, WF, u, woff2(u))
    a(f"""s_mul_i32 s27, s{sRB}, 7
          s_add_u32 s27, s27, s{sCB}
          s_lshl_b32 s27, s27, 1
          s_and_b32 s26, s{sW}, 1
          s_add_u32 s27, s27, s26
          s_lshl_b32 s27, s27, 1
          s_add_u32 s27, s27, s{sFT}
          s_lshl_b32 s27, s27, {12 - PB}
          s_add_u32 s{sK}, s27, {PART}
          s_xor_b32 s3, s2, 1
          s_lshl_b32 s3, s3, 7
          s_add_u32 s3, s3, {FQ}
          v_mov_b32 v14, s3
          s_cmp_eq_u32 s{sFT}, 0
          s_cbranch_scc1 B_keep""")
    for i in range(32): a(f"v_mov_b32 v{ACC+i}, 0")
    a.label("B_keep")
    a(f"s_waitcnt vmcnt(16)\ns_cmp_lg_u32 s{sKA}, 0\ns_cbranch_scc1 B_sigd")
    signal(a, sX, C_SQ)
    a.label("B_sigd")
    for u in range(8):
        a(f"s_waitcnt vmcnt({2*(7 - u)}) lgkmcnt({4*min(2, 7 - u)})")
        for aa in range(2):
            for b in range(2):
                j = 2*aa + b
                a(f"{MF} {v(ACC+16*j,16)}, {v(WF+8*(u&3)+4*b,4)}, {v(OR_(u)+4*aa,4)}, {'0' if (u == 0 and aa) else v(ACC+16*j,16)}")
        if u + 3 < 8: wreads(a, WF, (u+3) & 3, woff2(u+3))
    a(f"buffer_load_dword v15, v14, {s(WD,4)}, 0 offen sc1")
    if opt("ts", 0): stamp(a, 2)
    def region3(d, j):
        a(f"s_xor_b32 s{d}, s{sW}, {(j >> 1) + 2*(j & 1)}\ns_mul_i32 s{d}, s{d}, 15360\ns_add_u32 s{d}, s{d}, {WOB}")
    srd(a, XS, 20, 2048 * 896)
    OSC = ["", " sc1", " nt"][opt("osc", 2)]
    OT = WOB + 4*15360
    a(f"""v_and_b32 v4, 31, v1
          s_and_b32 s26, s{sW}, 1
          s_lshl_b32 s26, s26, 5
          v_add_u32 v4, s26, v4
          v_mul_u32_u24 v4, 144, v4
          v_lshrrev_b32 v9, 5, v1
          v_lshl_add_u32 v4, v9, 3, v4
          s_lshl_b32 s26, s{sFT}, 6
          s_add_u32 s26, s26, {OT}
          v_add_u32 v4, s26, v4
          v_lshrrev_b32 v6, 3, v1
          s_lshl_b32 s26, s{sW}, 4
          v_add_u32 v6, s26, v6
          v_and_b32 v9, 7, v1
          v_mul_u32_u24 v5, 144, v6
          v_lshl_add_u32 v5, v9, 4, v5
          v_add_u32 v5, {OT}, v5
          v_mul_u32_u24 v6, 896, v6
          v_lshl_add_u32 v6, v9, 4, v6
          s_mul_i32 s27, s{sRB}, {64*896}
          s_lshl_b32 s26, s{sCB}, 7
          s_add_u32 s27, s27, s26
          s_add_u32 s{sX}, s27, {8*896}""")
    def fetch_partial():
        a("s_waitcnt vmcnt(0)\nv_cmp_eq_u32 vcc, 0, v15\ns_cbranch_vccz B_pready")
        poll(a, 14, 1)
        a.label("B_pready")
        for i in range(4 >> PB): a(f"buffer_load_dwordx4 {v(PD+16*PB+4*i,4)}, v0, {s(WD,4)}, s{sK} offen offset:{i*1024}{SC}")
    reduce3(a, ACC, sM, region3, 0, B_G3_DONE + 12, True, fetch_partial)
    if opt("ts", 0): stamp(a, 3)
    for i in range(16): a(f"v_add_f32 v{ACC+i}, v{ACC+i}, v{RES+i}")
    a("s_waitcnt vmcnt(0)")
    if PB: unpack(a, PD, PD + 16, 8)
    for i in range(16): a(f"v_add_f32 v{ACC+i}, v{ACC+i}, v{PD+i}")
    if opt("ts", 0): stamp(a, 12)
    for i in range(8): a(f"v_cvt_pk_bf16_f32 v{EP+i}, v{ACC+2*i}, v{ACC+2*i+1}")
    for j in range(4): a(f"ds_write_b64 v4, {v(EP+2*j,2)} offset:{16*j}")
    gbar(a, 0, B_G3_DONE + 16)
    if opt("ts", 0): stamp(a, 13)
    a(f"""ds_read_b128 {v(EP,4)}, v5
          ds_read_b128 {v(EP+4,4)}, v5 offset:{8*144}
          s_waitcnt lgkmcnt(1)
          buffer_store_dwordx4 {v(EP,4)}, v6, {s(XS,4)}, s27 offen{OSC}
          s_waitcnt lgkmcnt(0)
          buffer_store_dwordx4 {v(EP+4,4)}, v6, {s(XS,4)}, s{sX} offen{OSC}""")
    stamp_out2(a)
    a("s_endpgm")

def stamp_out2(a):
    if not common.STAMPS: return
    a("s_waitcnt vmcnt(0)")
    common.stamp(a, 6); common.stamp(a, 7, True)
    a("s_waitcnt lgkmcnt(0)")
    for i in range(16): a(f"v_mov_b32 v{16+i}, s{64+2*i}")
    a(f"""s_lshl_b32 s3, s2, 3
          s_add_u32 s3, s3, s60
          s_lshl_b32 s3, s3, 6
          s_add_u32 s3, s3, {TS}
          v_mov_b32 v8, 0""")
    for j in range(4): a(f"buffer_store_dwordx4 v[{16+4*j}:{19+4*j}], v8, {s(WD,4)}, s3 offen offset:{16*j}")

def p1stamps():
    return common.STAMPS and opt("p1s", 0)

def build(name):
    a = A()
    a.label("K_start")
    a("s_cmp_ge_u32 s2, 256\ns_cbranch_scc1 K_end")
    load_args(a)
    a(f"""v_and_b32 v1, 63, v0
          v_lshrrev_b32 v8, 6, v0
          s_mov_b32 s59, {fb(2.0**100)}
          v_readfirstlane_b32 s60, v8
          v_lshlrev_b32 v0, 4, v1
          s_and_b32 s{sW}, s60, 3
          s_cmp_ge_u32 s60, 4""")
    if opt("bfirst", 1):
        a("s_cbranch_scc0 K_rolea")
        p1b(a)
        a("s_branch K_roleb")
        a.label("K_rolea")
        p1a(a)
        att(a)
        a.label("K_roleb")
        roleb(a)
    else:
        a("s_cbranch_scc1 K_roleb")
        p1a(a)
        att(a)
        a.label("K_roleb")
        p1b(a)
        roleb(a)
    a.label("K_end")
    a("s_endpgm")
    a.label("K_last")
    return a

if __name__ == "__main__":
    if "stamp" in sys.argv[1]: common.STAMPS = True
    if "mini" in sys.argv[1]: common.STAMPS = common.MINI = True
    name = "parallel_sum__mha_block__mixer_s_mlp__prompt_kernel"
    HDR = open("parallel_sum__mha_block__mixer_s_mlp__prompt.s.ref").read().split("; Override launch")[0]
    DOC = """;
"""
    out = HDR + "; @launch grid=(256,1,1) block=(512,1,1) lds=163840\n" + DOC + '.amdgcn_target "amdgcn-amd-amdhsa--gfx950"\n'
    out += kernel_head(name) + build(name).text() + kernel_desc(name, vgpr=256, sgpr=102)
    open(sys.argv[1], "w").write(out)
```

```python
import sys
import common
from common import *

FLG = 0x1550000
FP, F2, F3, FA, FQ = FLG, FLG + 0x8000, FLG + 0x10000, FLG + 0x18000, FLG + 0x20000
NINIT = 20
PART = 0x1600000
WS_END = 0x1A00000
sFT = 52
CS3P = 0x800000
XS, WA, WD, WB_ = 28, 32, 36, 40
sW, sSPIN = 46, 58
SC = " sc1"
CNT = 156 * 1024
C_B, C_A, C_S1, C_S2, C_S3, C_SA, C_W, C_X, C_SQ = 0, 4, 8, 12, 16, 20, 24, 28, 32
SPIN_MAX = 1 << 16
import os
OPT = dict(x.split("=") for x in os.environ.get("MKOPT", "").split(",") if x)
def opt(k, d): return int(OPT.get(k, d))
SLEEP = opt("sleep", 1)
DEBUG = "dbg" in sys.argv[1] if len(sys.argv) > 1 else False


def poll(a, vaddr, nlanes, srdreg=WD, soff="0"):
    L, D = a.newlabel("PL"), a.newlabel("PD")
    a(f"s_mov_b32 s{sSPIN}, {SPIN_MAX}")
    a(f"s_mov_b64 exec, {(1 << nlanes) - 1}" if nlanes <= 6 else f"s_bfm_b64 exec, {nlanes}, 0")
    a.label(L)
    a(f"""buffer_load_dword v9, v{vaddr}, {s(srdreg,4)}, {soff} offen sc1
          s_waitcnt vmcnt(0)
          v_cmp_eq_u32 vcc, 0, v9
          s_cbranch_vccz {D}
          s_sleep {SLEEP}
          s_sub_u32 s{sSPIN}, s{sSPIN}, 1
          s_cmp_lg_u32 s{sSPIN}, 0
          s_cbranch_scc1 {L}""")
    a.label(D)
    a("s_mov_b64 exec, -1")
    jitter(a)

TF = ["", " sc1", " nt", " sc0 sc1"][opt("tf", 0)]
SCB = "" if opt("local", 0) else " sc1"
def signal(a, soff, cnt, sc=" sc1", last=3):
    jitter(a)
    a(f"""s_mov_b64 exec, 1
          v_mov_b32 v8, {CNT + cnt}
          v_mov_b32 v9, 1
          ds_add_rtn_u32 v8, v8, v9
          s_waitcnt lgkmcnt(0)
          v_readfirstlane_b32 s26, v8
          v_mov_b32 v8, 0
          s_cmp_eq_u32 s26, {last}
          s_cselect_b32 s26, s{soff}, {OOB}
          buffer_store_dword v9, v8, {s(WD,4)}, s26 offen{sc}
          s_mov_b64 exec, -1""")

JIT = [0]
def jitter(a):
    if not opt("jit", 0): return
    JIT[0] += 1
    L = f"JT_{JIT[0]}"
    a(f"""s_mul_i32 s100, s2, {37 + 2*JIT[0]}
          s_add_u32 s100, s100, s60
          s_mul_i32 s100, s100, {101 + opt("jit", 0)}
          s_bitcmp1_b32 s100, {3 + JIT[0] % 3}
          s_cbranch_scc0 {L}
          s_sleep {20 + 13*(JIT[0] % 7)}""")
    a.label(L)

def garrive(a, off, field=0):
    jitter(a)
    a(f"""s_mov_b64 exec, 1
          v_mov_b32 v8, {CNT + off}
          v_mov_b32 v9, {1 << (4*field)}
          ds_add_u32 v8, v9
          s_mov_b64 exec, -1""")

def gwait(a, off, target, va=8, sr=3, field=None):
    L, D = a.newlabel("GL"), a.newlabel("GD")
    a(f"s_mov_b32 s{sSPIN}, {SPIN_MAX * 8}\nv_mov_b32 v{va}, {CNT + off}")
    a.label(L)
    a(f"""ds_read_b32 v{va+1}, v{va}
          s_sub_u32 s{sSPIN}, s{sSPIN}, 1
          s_cbranch_scc1 {D}
          s_waitcnt lgkmcnt(0)
          v_readfirstlane_b32 s{sr}, v{va+1}
          {"" if field is None else f"s_bfe_u32 s{sr}, s{sr}, {0x40000 + 4*field}"}
          s_cmp_lt_u32 s{sr}, {target}
          s_cbranch_scc1 {L}""")
    a.label(D)
    a("s_waitcnt lgkmcnt(0)")
    jitter(a)

def gbar(a, off, target):
    a("s_waitcnt lgkmcnt(0)")
    garrive(a, off); gwait(a, off, target)

def kloop(a, ACC, WF, XR, vA, tiles, offs, pre, perm, fill=(), R=8, D=6, cs=None):
    ops = [(s_, t) for s_ in range(28) for t in (tiles if s_ < 27 else pre.get("lastorder", tiles))]
    N = len(ops); fill = list(fill); done = 0
    def rd(m):
        s_, t = ops[m]
        if (s_ & 3) == 0 and t == tiles[0]:
            for x in pre.get(s_ >> 2, []): a(x)
        for e in range(2):
            row = 16 * (s_ & 3) + (8 * e if perm else 4 * e)
            a(f"ds_read_b64_tr_b16 {v(WF + 4*(m % R) + 2*e, 2)}, v{vA+t} offset:{offs(s_ >> 2) + row*256 if offs else s_*2048 + e*1024}")
    for m in range(D): rd(m)
    f0 = pre.get("fill0", 1)
    per = max(1, -(-len(fill) // (pre.get("fillend", N - 1) - f0)))
    for m, (s_, t) in enumerate(ops):
        if (s_ & 3) == 0 and t == tiles[0]:
            for x in pre.get(("x", s_ >> 2), []): a(x)
        if t == tiles[0]:
            for x in pre.get(("s", s_), []): a(x)
        G = pre.get("G", 1)
        if m % G == 0: a(f"s_waitcnt lgkmcnt({2*max(0, min(D - G, N - G - m))})")
        if t < 4: a(f"{MF} {v(ACC+16*t,16)}, {v(WF + 4*(m % R), 4)}, {v(XR(s_) if callable(XR) else XR+4*s_,4)}, {'0' if s_ == 0 else v(ACC+16*t,16)}")
        elif len(cs) == 3: a(f"{MF} {v(cs[0],16)}, {v(cs[1],4)}, {v(WF + 4*(m % R), 4)}, {'0' if s_ == 0 else v(cs[0],16)}")
        else: a(f"v_mfma_f32_16x16x32_bf16 {v(cs[0],4)}, {v(cs[1],4)}, {v(WF + 4*(m % R), 4)}, {'0' if s_ == 0 else v(cs[0],4)}")
        if m + D < N: rd(m + D)
        if (s_ & 3) == 0 and t == tiles[0]:
            for x in pre.get(("y", s_ >> 2), []): a(x)
        if t == tiles[min(1, len(tiles) - 1)]:
            for x in pre.get(("t", s_), []): a(x)
        for x in pre.get(("m", m), []): a(x)
        if m >= f0:
            for x in fill[done:done + per]: a(x)
            done += per
    for x in fill[done:]: a(x)

def kburst(a, ACC, WF, XR, vA, offs, pre, fill=()):
    fill = list(fill); per = -(-len(fill) // 26); done = 0
    def rd(s_):
        if (s_ & 3) == 0:
            for x in pre.get(s_ >> 2, []): a(x)
        for t in range(4):
            for e in range(2):
                a(f"ds_read_b64_tr_b16 {v(WF + 16*(s_ & 1) + 4*t + 2*e, 2)}, v{vA+t} offset:{offs(s_ >> 2) + (16*(s_ & 3) + 8*e)*256}")
    rd(0); rd(1)
    for s_ in range(28):
        if (s_ & 3) == 0:
            for x in pre.get(("x", s_ >> 2), []): a(x)
        a(f"s_waitcnt lgkmcnt({8 if s_ < 27 else 0})")
        for t in range(4):
            a(f"{MF} {v(ACC+16*t,16)}, {v(WF + 16*(s_ & 1) + 4*t, 4)}, {v(XR+4*s_,4)}, {'0' if s_ == 0 else v(ACC+16*t,16)}")
        if s_ + 2 < 28: rd(s_ + 2)
        if s_:
            for x in fill[done:done + per]: a(x)
            done += per

def tr_addrs(a, vA, sTS, base, perm, which=(0, 1, 2, 3, 4)):
    a(f"""v_lshrrev_b32 v8, 5, v1
          v_bfe_u32 v9, v1, 2, 2
          v_bfe_u32 v10, v1, 4, 1
          v_and_b32 v11, 3, v1
          v_lshl_add_u32 v10, v10, 2, v11
          v_lshl_add_u32 v8, v8, {2 if perm else 3}, v9
          v_lshlrev_b32 v8, 8, v8
          v_add_u32 v8, {base}, v8
          v_lshlrev_b32 v9, 2, v9""")
    for t in which:
        a(f"s_mul_i32 s26, {sTS}, {t}" if t < 4 else f"s_mul_i32 s26, {sTS}, s{sW}")
        a(f"""v_add_u32 v11, s26, v10
              v_lshrrev_b32 v12, 1, v11
              v_add_u32 v12, v12, v9
              v_and_b32 v12, 15, v12
              v_and_b32 v11, 1, v11
              v_lshlrev_b32 v11, 3, v11
              v_lshl_add_u32 v11, v12, 4, v11
              v_add_u32 v{vA+t}, v8, v11""")

def cs_publish(a, CS, T, xch):
    a(f"""v_cvt_pk_bf16_f32 v{T}, v{CS}, v{CS}
          v_and_b32 v{T+1}, 0xffff0000, v{T}
          v_sub_f32 v{T+1}, v{CS}, v{T+1}
          v_cvt_pk_bf16_f32 v{T}, v{CS}, v{T+1}
          v_and_b32 v10, 31, v1
          v_lshlrev_b32 v10, 2, v10
          v_add_u32 v10, {xch}, v10
          s_lshl_b32 s26, s{sW}, 7
          v_add_u32 v9, s26, v10
          ds_write_b32 v9, v{T}""")

def mean_fix(a, ACC, T, src, vMU0, vMU1, tiles=(0, 1, 2, 3)):
    n = len(tiles)
    a(f"v_mov_b32 v{T+4*n}, v{vMU0}\nv_mov_b32 v{T+4*n+1}, v{vMU1}\nv_mov_b32 v{T+4*n+2}, 0\nv_mov_b32 v{T+4*n+3}, 0")
    for i, t in enumerate(tiles):
        if src(t) != T + 4*i: a(f"v_mov_b32 v{T+4*i}, v{src(t)}")
        a(f"v_and_b32 v{T+4*i+1}, 0xffff, v{src(t)}\nv_mov_b32 v{T+4*i+2}, 0\nv_mov_b32 v{T+4*i+3}, 0")
    for i, t in enumerate(tiles): a(f"{MF} {v(ACC+16*t,16)}, {v(T+4*i,4)}, {v(T+4*n,4)}, {v(ACC+16*t,16)}")

def mu_frag(a, vmu, lo_en, d0, d1):
    a(f"""v_cvt_pk_bf16_f32 v{d0}, -v{vmu}, -v{vmu}
          v_and_b32 v8, 0xffff0000, v{d0}
          v_sub_f32 v8, -v{vmu}, v8
          v_cvt_pk_bf16_f32 v{d1}, v8, 0
          v_and_b32 v{d1}, {lo_en}, v{d1}
          v_lshrrev_b32 v8, 5, v1
          v_add_u32 v8, -1, v8
          v_and_b32 v{d0}, v8, v{d0}
          v_and_b32 v{d1}, v8, v{d1}""")

def gelu_consts(a, R, DEN):
    a(f"""v_mul_f32 v10, {fb(GK1)}, v{R}
          v_mul_f32 v12, v{R}, v{R}
          v_mul_f32 v12, v12, v{R}
          v_mul_f32 v12, {fb(GK2)}, v12
          v_mov_b32 v14, v{DEN}""")

def gelu8(regs0, K1, K2, IS, T, out):
    L = []
    for i in range(8): L.append(f"v_mul_f32 v{T+i}, v{regs0+i}, v{regs0+i}")
    for i in range(8): L.append(f"v_fma_f32 v{T+i}, v{T+i}, v{K2}, v{K1}")
    for i in range(8): L.append(f"v_mul_f32 v{T+i}, v{T+i}, v{regs0+i}")
    for i in range(8): L.append(f"v_exp_f32 v{T+i}, v{T+i}")
    for i in range(8): L.append(f"v_fma_f32 v{T+i}, v{T+i}, v{IS}, v{IS}")
    for i in range(8): L.append(f"v_rcp_f32 v{T+i}, v{T+i}")
    for i in range(8): L.append(f"v_mul_f32 v{T+i}, v{T+i}, v{regs0+i}")
    for i in range(4): L.append(f"v_cvt_pk_bf16_f32 v{out+i}, v{T+2*i}, v{T+2*i+1}")
    return L

def wrapinc(a, sreg, step, lim):
    a(f"s_add_u32 s{sreg}, s{sreg}, {step}\ns_cmp_eq_u32 s{sreg}, {lim}\ns_cselect_b32 s{sreg}, 0, s{sreg}")

def reduce3(a, ACC, sM, region, cnt_off, target, xor, mid=None):
    a(f"v_add_u32 v10, s{sM}, v0")
    for j in range(1, 4):
        for i in range(4): a(f"ds_write_b128 v10, {v(ACC+16*j+4*i,4)} offset:{(j-1)*4096 + i*1024}")
    for j in range(1, 4):
        region(26, j)
        a(f"v_add_u32 v{10+j}, s26, v0")
    gbar(a, cnt_off, target)
    if mid: mid()
    for j in range(1, 4):
        for i in range(4): a(f"ds_read_b128 {v(ACC+16*j+4*i,4)}, v{10+j} offset:{(j-1)*4096 + i*1024}")
    for j in range(1, 4):
        a(f"s_waitcnt lgkmcnt({4*(3-j)})")
        for i in range(16): a(f"v_add_f32 v{ACC+i}, v{ACC+i}, v{ACC+16*j+i}")

def reduce3c(a, ACC, sM, region, cnt_off, target):
    BL = 3712
    a(f"""v_add_u32 v10, s{sM}, v0
          v_lshlrev_b32 v14, 2, v1
          v_add_u32 v14, {3584 - 128}, v14
          v_add_u32 v15, s{sM}, v14""")
    for j in range(1, 4):
        for i in range(3): a(f"ds_write_b128 v10, {v(ACC+16*j+4*i,4)} offset:{(j-1)*BL + i*1024}")
    a("s_mov_b64 exec, 0xffffffff")
    for j in range(1, 4): a(f"ds_write_b128 v10, {v(ACC+16*j+12,4)} offset:{(j-1)*BL + 3072}")
    a("s_not_b64 exec, exec")
    for j in range(1, 4): a(f"ds_write_b32 v15, v{ACC+16*j+12} offset:{(j-1)*BL}")
    a("s_mov_b64 exec, -1")
    for j in range(1, 4):
        region(26, j)
        a(f"v_add_u32 v{10+j}, s26, v0\nv_add_u32 v{4+j}, s26, v14")
    gbar(a, cnt_off, target)
    a("s_mov_b64 exec, 0xffffffff")
    for j in range(1, 4): a(f"ds_read_b128 {v(ACC+16*j+12,4)}, v{10+j} offset:{(j-1)*BL + 3072}")
    a("s_not_b64 exec, exec")
    for j in range(1, 4): a(f"ds_read_b32 v{ACC+16*j+12}, v{4+j} offset:{(j-1)*BL}")
    a("s_mov_b64 exec, -1")
    for j in range(1, 4):
        for i in range(3): a(f"ds_read_b128 {v(ACC+16*j+4*i,4)}, v{10+j} offset:{(j-1)*BL + i*1024}")
    for j in range(1, 4):
        a(f"s_waitcnt lgkmcnt({3*(3-j)})")
        for i in range(16): a(f"v_add_f32 v{ACC+i}, v{ACC+i}, v{ACC+16*j+i}")

def unpack(a, dst, src, n):
    for i in range(n):
        a(f"v_lshlrev_b32 v{dst+2*i}, 16, v{src+i}\nv_and_b32 v{dst+2*i+1}, 0xffff0000, v{src+i}")

NBAR_P1 = 10
XB = 112 * 1024
XCH = XB + 16384
def p1a(a):
    a(f"s_setprio {opt('pa1', 2)}")
    ACC, CS, WF, XR, TMP = 16, 80, 96, 136, 248
    sRB, sCB, sTY, sSUB, sTS, sLO, sT = 44, 45, 47, 48, 50, 55, 56
    a(f"""s_and_b32 s26, s2, 7
          s_lshr_b32 s27, s2, 3
          s_lshr_b32 s{sRB}, s26, 1
          s_lshl_b32 s{sRB}, s{sRB}, 2
          s_and_b32 s3, s27, 3
          s_add_u32 s{sRB}, s{sRB}, s3
          s_and_b32 s{sCB}, s26, 1
          s_lshl_b32 s{sCB}, s{sCB}, 3
          s_lshr_b32 s3, s27, 2
          s_add_u32 s{sCB}, s{sCB}, s3
          s_lshr_b32 s{sTY}, s{sCB}, 2
          s_and_b32 s{sSUB}, s{sCB}, 3
          s_cmp_eq_u32 s{sTY}, 3
          s_cselect_b32 s{sTS}, 8, 7
          s_cselect_b32 s{sLO}, -1, 0
          s_lshl_b32 s{sT}, s{sRB}, 2
          s_add_u32 s{sT}, s{sT}, s{sW}""")
    tr_addrs(a, 2, f"s{sTS}", 0, perm=False)
    a(f"""v_and_b32 v8, 15, v1
          v_bfe_u32 v9, v1, 4, 1
          v_cmp_eq_u32 vcc, v8, v9
          v_mov_b32 v8, 0x3f803f80
          v_cndmask_b32 v{CS+4}, 0, v8, vcc
          v_mov_b32 v{CS+5}, v{CS+4}
          v_mov_b32 v{CS+6}, v{CS+4}
          v_mov_b32 v{CS+7}, v{CS+4}
          v_and_b32 v8, 31, v1
          v_lshrrev_b32 v9, 5, v1
          v_bfe_u32 v10, v1, 1, 3
          v_xor_b32 v9, v9, v10
          v_lshlrev_b32 v8, 7, v8
          v_lshl_add_u32 v8, v9, 4, v8
          s_lshl_b32 s3, s{sW}, 12
          s_add_u32 s3, s3, {XB}
          v_add_u32 v{CS+8}, s3, v8
          v_xor_b32 v{CS+9}, 32, v{CS+8}
          v_xor_b32 v{CS+10}, 64, v{CS+8}
          v_xor_b32 v{CS+11}, 96, v{CS+8}
          s_waitcnt lgkmcnt(0)""")
    srd(a, WD, 24, WS_END)
    ONE = TMP
    M0_, M1_, R, DEN = TMP+4, TMP+5, TMP+6, TMP+7
    a(f"""v_and_b32 v10, 31, v1
          v_lshlrev_b32 v10, 2, v10
          v_add_u32 v10, {XCH}, v10
""")
    stamp(a, 12)
    pre = {}
    for c in range(7):
        pre[c] = ["s_barrier"] + [f"ds_read_b128 {v(XR + 16*(c&1) + 4*i, 4)}, v{CS+8+i} offset:{(c % 3)*16384}" for i in range(4)]
        if opt("sqv", 0) == 0:
            pre[("y", c)] = [f"v_dot2_f32_bf16 v{12+(i&1)}, v{XR+16*(c&1)+i}, v{XR+16*(c&1)+i}, {'0' if c == 0 and i < 2 else 'v%d' % (12+(i&1))}" for i in range(16)]
    sq = []
    if opt("sqv", 0):
        a("v_mov_b32 v12, 0\nv_mov_b32 v13, 0")
        for s_ in range(28):
            for i in range(4):
                r_ = XR + 16*((s_ >> 2) & 1) + 4*(s_ & 3) + i
                pre[("m", 5*s_ + 1 + i)] = [f"v_lshlrev_b32 v14, 16, v{r_}", f"v_and_b32 v15, 0xffff0000, v{r_}", "v_fmac_f32 v12, v14, v14", "v_fmac_f32 v13, v15, v15"]
    if common.STAMPS:
        for c, st in ((0, 2), (1, 13), (3, 3)):
            g = A(); stamp(g, st); pre[c] = pre[c][:1] + g.l + pre[c][1:]
    pre[4] += [f"v_add_u32 v{2+t}, 0x10000, v{2+t}" for t in range(5)]
    CSB = opt("csb", 0)
    pre["G"] = opt("p1g", 1); pre["lastorder"] = (3, 0, 1, 2) if CSB else (3, 4, 0, 1, 2)
    kloop(a, ACC, WF, lambda s_: XR + 16*((s_ >> 2) & 1) + 4*(s_ & 3), 2, (0, 1, 2, 3) if CSB else (0, 4, 1, 2, 3), lambda c: (c & 3) * 16384, pre, False, [], R=8, D=opt("p1d", 5), cs=(CS, CS+4))
    stamp(a, 4)
    for i in range(0 if CSB else 2):
        a(f"""v_cvt_pk_bf16_f32 v{WF+i}, v{CS+i}, v{CS+i}
              v_and_b32 v{WF+i}, 0xffff0000, v{WF+i}
              v_sub_f32 v{WF+i}, v{CS+i}, v{WF+i}
              v_cvt_pk_bf16_f32 v{WF+i}, v{CS+i}, v{WF+i}""")
    if not CSB:
        a(f"""s_lshl_b32 s26, s{sW}, 7
              v_add_u32 v11, s26, v10
              s_mov_b64 exec, 0xffff
              ds_write2_b32 v11, v{WF}, v{WF+1} offset1:16
              s_mov_b64 exec, -1""")
    a(f"""v_mov_b32 v14, v{ACC+48+12}
          v_mov_b32 v15, v{ACC+48+12}
          v_add_f32 v13, v12, v13
          v_permlane32_swap_b32 v15, v14
          v_mov_b32 v12, v13
          v_permlane32_swap_b32 v13, v12
          v_add_f32 v13, v13, v12
          v_mul_f32 v12, {fb(1/448)}, v14
          v_mul_f32 v13, {fb(1/448)}, v13
          v_fma_f32 v13, -v12, v12, v13
          v_max_f32 v13, 0, v13""")
    bf16r(a, 15, "v13")
    a(f"""v_add_f32 v9, {fb(EPS)}, v13
          v_add_f32 v15, {fb(EPS)}, v15
          v_mov_b32 v14, {fb(EPS)}
          v_fma_f32 v9, v9, v14, v13""")
    bf16r(a, 15, "v15")
    a(f"""v_sqrt_f32 v9, v9
          v_sqrt_f32 v15, v15
          s_waitcnt lgkmcnt(0)
          s_barrier                              ; barrier 7""")
    stamp(a, 14)
    for t in range(4): a(f"ds_read_b32 v{WF+4*t}, v10 offset:{128*t}")
    mu_frag(a, 12, f"s{sLO}", M0_, M1_)
    a(f"v_mov_b32 v14, s{sLO}")
    bf16r(a, 15, "v15")
    bf16r(a, 10, "v12")
    a(f"""v_bfi_b32 v{DEN}, v14, v9, v15
          v_rcp_f32 v{R}, v{DEN}
          s_waitcnt lgkmcnt(0)""")
    mean_fix(a, ACC, WF, lambda t: WF + 4*t, M0_, M1_)
    a(f"""
          s_lshl_b32 s3, s{sT}, 8
          s_add_u32 s3, s3, {ST1}
          s_cmp_eq_u32 s{sCB}, 0
          s_cselect_b32 s3, s3, {OOB}
          v_lshlrev_b32 v8, 3, v1
          v_and_b32 v8, 0xff, v8
          v_mov_b32 v11, v{R}
          buffer_store_dwordx2 v[10:11], v8, {s(WD,4)}, s3 offen{SC}""")
    a(f"""v_lshrrev_b32 v8, 5, v1
          v_add_u32 v8, -1, v8
          s_cmp_eq_u32 s{sTY}, 3
          s_cbranch_scc1 P1_h
          s_cmp_eq_u32 s{sTY}, 0
          s_cselect_b32 s3, {fb(QSCALE)}, 1.0
          v_mul_f32 v10, s3, v{R}
          v_mul_u32_u24 v12, 12, v1
          s_lshl_b32 s3, s{sSUB}, 8
          s_add_u32 s3, s3, s{sT}
          s_movk_i32 s27, 3584
          s_cmp_eq_u32 s{sTY}, 0
          s_cselect_b32 s27, 1792, s27
          s_mul_i32 s3, s3, s27
          s_lshl_b32 s26, s27, 6
          s_cselect_b32 s27, {QF}, {KVF}
          s_add_u32 s3, s3, s27
          s_cmp_eq_u32 s{sTY}, 2
          s_cbranch_scc1 P1_v""".replace("s_lshl_b32 s26, s27, 6", f"s_lshl_b32 s26, s27, 6\ns_mov_b32 s27, {KVF}\ns_cmp_eq_u32 s{sTY}, 0").replace(f"s_cselect_b32 s27, {QF}, {KVF}", f"s_cselect_b32 s27, {QF}, s27"))
    def pack(t):
        for i in range(8): a(f"v_pk_mul_f32 {v(ACC+16*t+2*i,2)}, {v(ACC+16*t+2*i,2)}, v[10:11] op_sel_hi:[1,0]")
        for i in range(8): a(f"v_cvt_pk_bf16_f32 v{XR+8*t+i}, v{ACC+16*t+2*i}, v{ACC+16*t+2*i+1}")
    def put(t, isv=False):
        if isv:
            for f_ in range(2): a(f"buffer_store_dwordx4 {v(XR+8*t+4*f_,4)}, v13, {s(WD,4)}, s3 offen offset:{1792 + f_*896}{SC}")
        else:
            a(f"buffer_store_dwordx4 {v(XR+8*t,4)}, v0, {s(WD,4)}, s3 offen{SC}")
            a(f"v_permlane32_swap_b32 v{XR+8*t+6}, v{XR+8*t+7}")
            a(f"buffer_store_dwordx3 {v(XR+8*t+4,3)}, v12, {s(WD,4)}, s3 offen offset:1024{SC}")
        if t < 3: a("s_add_u32 s3, s3, s26")
    for t in range(4): pack(t); put(t)
    a("s_branch P1_done")
    a.label("P1_v")
    a(f"""s_mul_i32 s27, s{sW}, 9216
          s_add_u32 s27, s27, 0x10000
          v_and_b32 v9, 31, v1
          v_mul_u32_u24 v9, 72, v9
          v_lshrrev_b32 v14, 5, v1
          v_lshl_add_u32 v9, v14, 3, v9
          v_add_u32 v9, s27, v9
          v_bfe_u32 v15, v1, 2, 2
          v_lshl_add_u32 v14, v14, 2, v15
          v_mul_u32_u24 v14, 72, v14
          v_bfe_u32 v15, v1, 4, 1
          v_lshl_add_u32 v14, v15, 5, v14
          v_and_b32 v15, 3, v1
          v_lshl_add_u32 v14, v15, 3, v14
          v_add_u32 v14, s27, v14
          v_lshrrev_b32 v15, 5, v1
          v_lshlrev_b32 v15, 6, v15
          v_sub_u32 v13, v0, v15
          v_and_b32 v15, 31, v1
          v_cmp_gt_u32 vcc, 28, v15
          v_mov_b32 v15, {OOB}
          v_cndmask_b32 v13, v15, v13, vcc""")
    for t in range(5):
        if t < 4:
            pack(t)
            for j in range(4): a(f"ds_write_b64 v9, {v(XR+8*t+2*j,2)} offset:{t*2304 + 16*j}")
        if t:
            a(f"s_waitcnt lgkmcnt({4 if t < 4 else 0})")
            put(t - 1, True)
        if t < 4:
            a("s_waitcnt lgkmcnt(0)")
            for f_ in range(2):
                for e in range(2): a(f"ds_read_b64_tr_b16 {v(XR+8*t+4*f_+2*e,2)}, v14 offset:{t*2304 + (16*f_+8*e)*72}")
    a("s_branch P1_done")
    a.label("P1_h")
    gelu_consts(a, R, DEN)
    a(f"""s_mul_i32 s3, s{sT}, 28
          s_mul_i32 s27, s{sSUB}, 7
          s_add_u32 s3, s3, s27
          s_lshl_b32 s3, s3, 10
          s_add_u32 s3, s3, {HF}
          s_add_u32 s27, s3, 4096""")
    for f in range(7):
        gelu_pairs(a, [ACC + 8*f + 2*i for i in range(4)], 10, 12, 14, WF)
        for i in range(4): a(f"v_cvt_pk_bf16_f32 v{XR+4*f+i}, v{ACC+8*f+2*i}, v{ACC+8*f+2*i+1}")
        a(f"buffer_store_dwordx4 {v(XR+4*f,4)}, v0, {s(WD,4)}, s{3 if f < 4 else 27} offen offset:{(f&3)*1024}{SC}")
    a.label("P1_done")
    garrive(a, C_X, 1)
    stamp(a, 15)
    a(f"""s_waitcnt vmcnt(0)
          s_lshl_b32 s3, s{sCB}, 4
          s_add_u32 s3, s3, s{sRB}
          s_lshl_b32 s3, s3, 7
          s_add_u32 s3, s3, {FP}""")
    signal(a, 3, C_S1, last=7)
    stamp(a, 5)

O_, Q_, S_, E_, P_, KV = 16, 80, 112, 144, 152, 160
sH, sQB, sKV, sN, sMA, sKB = 44, 45, 50, 51, 47, 52
AR_BASE = 112 * 1024

def unit(a, n, q, extra, qk=True):
    Sc, Sn = S_ + 16*(q & 1), S_ + 16*((q+1) & 1)
    nn, nq = (n, q+1) if q < 3 else ((n+1) & 3, 0)
    pn, pq = (n, q-1) if q > 0 else ((n-1) & 3, 3)
    K, Vc, Vp = KV + 16*nn, KV + 16*n + 8, KV + 16*pn + 8
    e = lambda i: a(f"v_exp_f32 v{E_+(i&7)}, v{Sc+i}")
    c = lambda k: a(f"v_cvt_pk_bf16_f32 v{P_+k}, v{E_+((2*k)&7)}, v{E_+((2*k+1)&7)}")
    for x in extra.get(0, []): a(x)
    if qk: a(f"{MF} {v(Sn,16)}, {v(K,4)}, {v(Q_+8*nq,4)}, 0")
    e(0); c(6); e(1); c(7); e(2); e(3)
    a(f"{MF} {v(O_+16*pq,16)}, {v(Vp+4,4)}, {v(P_+4,4)}, {v(O_+16*pq,16)}")
    for x in extra.get(1, []): a(x)
    e(4); c(0); e(5); c(1); e(6); e(7)
    if qk: a(f"{MF} {v(Sn,16)}, {v(K+4,4)}, {v(Q_+8*nq+4,4)}, {v(Sn,16)}")
    for x in extra.get(2, []): a(x)
    e(8); c(2); e(9); c(3); e(10); e(11)
    a(f"{MF} {v(O_+16*q,16)}, {v(Vc,4)}, {v(P_,4)}, {v(O_+16*q,16)}")
    e(12); c(4); e(13); c(5); e(14); e(15)

sKE, sVM, VV = 53, 54, 224
def kvload(slot, f):
    r = KV + 16*slot + 4*f
    if f == 0: return f"buffer_load_dwordx4 {v(r,4)}, v0, {s(WD,4)}, s{sKV} offen{SC}"
    if f == 1: return f"buffer_load_dwordx3 {v(r,3)}, v4, {s(WD,4)}, s{sKV} offen offset:1024{SC}"
    L = f"buffer_load_dwordx4 {v(r,4)}, v{VV}, {s(WD,4)}, s{sKV} offen offset:{1792 + 896*(f - 2)}{SC}"
    return f"s_mov_b64 exec, {s(sVM,2)}\n" + L if f == 2 else L + "\ns_mov_b64 exec, -1"
def kvnext():
    return [f"s_add_u32 s{sKV}, s{sKV}, 3584", f"s_cmp_eq_u32 s{sKV}, s{sKE}", f"s_cselect_b32 s{sKV}, s{sKB}, s{sKV}"]

EARLY = opt("early", 1)
def att(a):
    if p1stamps():
        global stamp
        stamp = lambda *x: None
    a(f"""s_and_b32 s26, s2, 7
          s_lshr_b32 s27, s2, 3
          s_lshl_b32 s{sH}, s26, 1
          s_and_b32 s3, s27, 1
          s_add_u32 s{sH}, s{sH}, s3
          s_lshr_b32 s{sQB}, s27, 1
          s_mul_i32 s{sMA}, s{sW}, 11136
          s_add_u32 s{sMA}, s{sMA}, {AR_BASE}
          s_lshl_b32 s{sKB}, s{sH}, 2
          s_add_u32 s{sKB}, s{sKB}, s{sW}
          s_mul_i32 s{sKB}, s{sKB}, {16*3584}
          s_add_u32 s{sKB}, s{sKB}, {KVF}
          s_add_u32 s{sKE}, s{sKB}, {16*3584}
          s_and_b32 s27, s{sQB}, {3 if EARLY else 15}
          s_mul_i32 s3, s27, {4*3584 if EARLY else 3584}
          s_add_u32 s{sKV}, s{sKB}, s3
          s_mov_b32 s{sVM}, 0x0fffffff
          s_mov_b32 s{sVM+1}, 0x0fffffff
          v_mul_u32_u24 v4, 12, v1
          v_lshrrev_b32 v11, 5, v1
          v_lshlrev_b32 v12, 6, v11
          v_sub_u32 v{VV}, v0, v12
          v_lshlrev_b32 v11, 4, v11
          v_mov_b32 v12, 0x3f803f80
          v_lshrrev_b32 v13, v11, v12
          v_and_b32 v11, 31, v1
          v_cmp_eq_u32 vcc, 28, v11
          v_cndmask_b32 v12, 0, v12, vcc
          s_lshr_b32 s3, s{sH}, 2
          s_lshl_b32 s3, s3, 4
          v_and_b32 v10, 3, v1
          s_lshl_b32 s26, s{sW}, 2
          s_add_u32 s26, s26, s3
          s_add_u32 s26, s26, 64
          v_add_u32 v10, s26, v10
          v_bfe_u32 v11, v1, 2, 1
          v_lshl_add_u32 v10, v11, 6, v10
          s_add_u32 s3, s3, s{sQB}
          v_writelane_b32 v10, s3, 8             ; lane 8: Q
          v_lshlrev_b32 v10, 7, v10
          v_add_u32 v10, {FP}, v10""")
    for i in range(64): a(f"v_mov_b32 v{O_+i}, 0")
    for i in range(8): a(f"v_mov_b32 v{E_+i}, 0\nv_mov_b32 v{P_+i}, 0")
    for n in range(4):
        a(f"v_mov_b32 v{KV+16*n+7}, v13\nv_mov_b32 v{Q_+8*n+7}, 0")
        for i in range(8): a(f"v_mov_b32 v{KV+16*n+8+i}, v12")
    if EARLY:
        a(f"""v_and_b32 v11, 7, v1
              v_lshlrev_b32 v11, 2, v11
              ds_bpermute_b32 v2, v11, v10
              s_lshl_b32 s27, s27, 2
              v_mov_b32 v11, s27
              v_writelane_b32 v11, 32, 2
              s_add_u32 s27, s27, 16
              v_writelane_b32 v11, s27, 1
              ds_bpermute_b32 v10, v11, v10
              s_waitcnt lgkmcnt(0)""")
        poll(a, 10, 3)
    else: poll(a, 10, 9)
    if opt("ayield", 1): gwait(a, C_X, 4, field=0)
    stamp(a, 8)
    for j in range(4):
        a(f"""s_add_u32 s3, s{sW}, {j + 1}
              s_and_b32 s3, s3, 3
              s_lshl_b32 s26, s{sH}, 4
              s_add_u32 s26, s26, s{sQB}
              s_lshl_b32 s26, s26, 2
              s_add_u32 s3, s3, s26
              s_mul_i32 s3, s3, 1792
              s_add_u32 s3, s3, {QF}
              buffer_load_dwordx4 {v(Q_+8*j,4)}, v0, {s(WD,4)}, s3 offen{SC}
              buffer_load_dwordx3 {v(Q_+8*j+4,3)}, v4, {s(WD,4)}, s3 offen offset:1024{SC}""")
        if j == 0:
            for f in range(4): a(kvload(0, f))
            for x in kvnext(): a(x)
    for n in range(1, 3):
        for f in range(4): a(kvload(n, f))
        for x in kvnext(): a(x)
    a(f"""v_add_u32 v10, s{sMA}, v0
          v_lshlrev_b32 v14, 2, v1
          v_add_u32 v14, {3584 - 128}, v14
          v_add_u32 v15, s{sMA}, v14
          v_mov_b32 v8, {CNT + C_B}""")
    for j in range(3):
        a(f"""s_sub_u32 s26, s{sW}, {j + 1}
              s_and_b32 s26, s26, 3
              s_mul_i32 s26, s26, 11136
              s_add_u32 s26, s26, {AR_BASE}
              v_add_u32 v{11+j}, s26, v0
              v_add_u32 v{5+j}, s26, v14""")
    a(f"s_mov_b32 s{sN}, 4\ns_waitcnt vmcnt(14)")
    a(f"{MF} {v(S_,16)}, {v(KV,4)}, {v(Q_,4)}, 0")
    a(f"{MF} {v(S_,16)}, {v(KV+4,4)}, {v(Q_+4,4)}, {v(S_,16)}")
    a(f"s_setprio {opt('pa2', 0)}\ns_waitcnt vmcnt(8)")
    stamp(a, 9)
    a("s_nop 9")
    a(".p2align 3")
    a.label("AT_loop")
    for n in range(4):
        ld = (n + 3) & 3
        kvl = kvload if not opt("nokv", 0) else (lambda a_, b_: "s_nop 0")
        if opt("kvprio", 1):
            e0 = {1: ["s_setprio 3", kvl(ld, 0), kvl(ld, 1)], 2: [kvl(ld, 2), kvl(ld, 3), f"s_setprio {opt('pa2', 0)}"]}
            if opt("kvprio", 1) == 2: e0 = {1: [kvl(ld, 0), kvl(ld, 1)], 2: [kvl(ld, 2), kvl(ld, 3)]}
            if EARLY and n == 0: e0[1].insert(1 if opt("kvprio", 1) == 1 else 0, f"buffer_load_dword v3, v2, {s(WD,4)}, 0 offen sc1")
            if EARLY and n == 1:
                e0[0] = ["s_waitcnt vmcnt(4)", "v_cmp_eq_u32 vcc, 0, v3"]
                e0[1] = ["s_cbranch_vccnz AT_late", "AT_ok:"] + e0[1]
            unit(a, n, 0, e0)
            e1 = {1: kvnext() if n == 0 or not EARLY else kvnext()[:1]}
            if n == 0: e1[2] = [f"s_cmp_eq_u32 s{sN}, 1", f"s_cselect_b32 s{sKV}, {OOB}, s{sKV}"]
            if n == 3: e1[0] = ["ds_read_b32 v9, v8"]; e1[2] = [f"s_cmp_eq_u32 s{sN}, 1"]
            unit(a, n, 1, e1)
            if n == 3: a("s_cbranch_scc1 AT_tail")
            unit(a, n, 2, {})
            ex = {0: ["s_waitcnt vmcnt(8)"], 2: []}
        else:
            unit(a, n, 0, {2: [kvl(ld, 0)]})
            unit(a, n, 1, {1: [kvl(ld, 1)]})
            unit(a, n, 2, {1: [kvl(ld, 2)]})
            ex = {0: ["s_waitcnt vmcnt(7)"], 1: [kvl(ld, 3)], 2: kvnext()}
        if n == 3: ex[2] += [f"s_sub_u32 s{sN}, s{sN}, 1"]
        unit(a, n, 3, ex)
    a("s_branch AT_loop")
    a.label("AT_tail")
    BL = 3712
    a(f"""s_setprio {opt('pa1', 2)}
          s_waitcnt lgkmcnt(0)
          v_readfirstlane_b32 s3, v9
          s_cmp_ge_u32 s3, 8
          s_cbranch_scc1 AT_free""")
    gwait(a, C_B, 8)
    a.label("AT_free")
    wr = lambda j, i: f"ds_write_b128 v10, {v(O_+16*j+4*i,4)} offset:{j*BL + i*1024}"
    unit(a, 3, 2, {0: [wr(0, 0)], 1: [wr(0, 1)], 2: [wr(0, 2)]})
    unit(a, 3, 3, {0: [wr(1, 0)], 1: [wr(1, 1)], 2: [wr(1, 2)]}, qk=False)
    a(f"v_cvt_pk_bf16_f32 v{P_+6}, v{E_+4}, v{E_+5}\nv_cvt_pk_bf16_f32 v{P_+7}, v{E_+6}, v{E_+7}")
    for i in range(3): a(wr(2, i))
    a(f"{MF} {v(O_+48,16)}, {v(KV+48+12,4)}, {v(P_+4,4)}, {v(O_+48,16)}")
    stamp(a, 10)
    a("s_mov_b64 exec, 0xffffffff")
    for j in range(3): a(wr(j, 3))
    a("s_not_b64 exec, exec")
    for j in range(3): a(f"ds_write_b32 v15, v{O_+16*j+12} offset:{j*BL}")
    a("s_mov_b64 exec, -1")
    gbar(a, C_A, 4)
    a("s_mov_b64 exec, 0xffffffff")
    for j in range(3): a(f"ds_read_b128 {v(O_+16*j+12,4)}, v{11+j} offset:{j*BL + 3072}")
    a("s_not_b64 exec, exec")
    for j in range(3): a(f"ds_read_b32 v{O_+16*j+12}, v{5+j} offset:{j*BL}")
    a("s_mov_b64 exec, -1")
    for j in range(3):
        for i in range(3): a(f"ds_read_b128 {v(O_+16*j+4*i,4)}, v{11+j} offset:{j*BL + i*1024}")
    OT_, QT_ = O_ + 48, Q_ + 24
    for j in range(3):
        a(f"s_waitcnt lgkmcnt({3*(2-j)})")
        for i in range(16): a(f"v_add_f32 v{OT_+i}, v{OT_+i}, v{O_+16*j+i}")
    a(f"""v_mov_b32 v10, v{OT_+12}
          v_mov_b32 v11, v{OT_+12}
          v_permlane32_swap_b32 v11, v10
          v_mov_b32 v12, v10
          v_mov_b32 v13, 0""")
    for i in range(16): a(f"v_fma_f32 v{12+(i&1)}, v{OT_+i}, 0, v{12+(i&1)}")
    a(f"""v_add_f32 v12, v12, v13                ; row sum, or NaN if any accumulator is not finite
          v_cmp_le_f32 vcc, {fb(2.0**-80)}, v12
          v_cmp_ge_f32 s[26:27], s59, v12
          s_and_b64 vcc, vcc, s[26:27]
          s_cmp_eq_u64 vcc, -1
          s_cbranch_scc0 AT_slow""".replace("s59", "s59"))
    a.label("AT_norm")
    a(f"""v_rcp_f32 v10, v10
          v_lshrrev_b32 v8, 5, v1
          v_add_u32 v8, -1, v8""")
    for i in range(16): a(f"v_mul_f32 v{OT_+i}, v{OT_+i}, v10")
    for i in range(8): a(f"v_cvt_pk_bf16_f32 v{P_+i}, v{OT_+2*i}, v{OT_+2*i+1}")
    a(f"""v_and_b32 v{P_+6}, v8, v{P_+6}
          v_and_b32 v{P_+7}, v8, v{P_+7}
          s_lshl_b32 s26, s{sQB}, 2
          s_add_u32 s26, s26, s{sW}
          s_lshl_b32 s26, s26, 4
          s_add_u32 s26, s26, s{sH}
          s_lshl_b32 s3, s26, 11
          s_add_u32 s3, s3, {OF}
          buffer_store_dwordx4 {v(P_,4)}, v0, {s(WD,4)}, s3 offen{SC}
          buffer_store_dwordx4 {v(P_+4,4)}, v0, {s(WD,4)}, s3 offen offset:1024{SC}
          s_lshl_b32 s3, s{sQB}, 4
          s_add_u32 s3, s3, s{sH}
          s_lshl_b32 s3, s3, 7
          s_add_u32 s3, s3, {FA}
          s_waitcnt vmcnt(0)""")
    signal(a, 3, 20)
    stamp(a, 11)
    stamp_out2(a)
    a("s_endpgm")
    if EARLY:
        a.label("AT_late")
        poll(a, 2, 8)
        a("s_branch AT_ok")
    a.label("AT_slow")
    a(f"""s_waitcnt vmcnt(0)
          s_mul_i32 s{sKB}, s{sH}, {64*3584}
          s_add_u32 s{sKB}, s{sKB}, {KVF}
          s_mov_b32 s{sKV}, s{sKB}
          s_mov_b32 s{sN}, 64
          v_mov_b32 v12, 0xff800000""")
    a.label("AT_s1")
    a(kvload(0, 0)); a(kvload(0, 1))
    a(f"""s_add_u32 s{sKV}, s{sKV}, 3584
          s_waitcnt vmcnt(0)
          {MF} {v(S_,16)}, {v(KV,4)}, {v(QT_,4)}, 0
          {MF} {v(S_,16)}, {v(KV+4,4)}, {v(QT_+4,4)}, {v(S_,16)}""")
    for i in range(8): a(f"v_max3_f32 v12, v12, v{S_+2*i}, v{S_+2*i+1}")
    a(f"""s_sub_u32 s{sN}, s{sN}, 1
          s_cmp_lg_u32 s{sN}, 0
          s_cbranch_scc1 AT_s1
          v_mov_b32 v13, v12
          v_permlane32_swap_b32 v12, v13
          v_max_f32 v12, v12, v13
          v_cvt_pk_bf16_f32 v13, -v12, -v12
          v_and_b32 v13, 0xffff0000, v13
          v_sub_f32 v12, -v12, v13
          v_cvt_pk_bf16_f32 v14, v12, v12
          v_and_b32 v14, 0xffff0000, v14
          v_sub_f32 v12, v12, v14
          v_cvt_pk_bf16_f32 v13, v13, v14
          v_cvt_pk_bf16_f32 v14, v12, 0
          v_lshrrev_b32 v8, 5, v1
          v_add_u32 v8, -1, v8
          v_bfi_b32 v{QT_+7}, v8, v13, v14
          s_mov_b32 s{sKV}, s{sKB}
          s_mov_b32 s{sN}, 64""")
    for i in range(16): a(f"v_mov_b32 v{OT_+i}, 0")
    a.label("AT_s2")
    for f in range(4): a(kvload(0, f))
    a(f"""s_add_u32 s{sKV}, s{sKV}, 3584
          s_waitcnt vmcnt(0)
          {MF} {v(S_,16)}, {v(KV,4)}, {v(QT_,4)}, 0
          {MF} {v(S_,16)}, {v(KV+4,4)}, {v(QT_+4,4)}, {v(S_,16)}""")
    for i in range(16): a(f"v_exp_f32 v{S_+i}, v{S_+i}")
    for i in range(8): a(f"v_cvt_pk_bf16_f32 v{P_+i}, v{S_+2*i}, v{S_+2*i+1}")
    a(f"""{MF} {v(OT_,16)}, {v(KV+8,4)}, {v(P_,4)}, {v(OT_,16)}
          {MF} {v(OT_,16)}, {v(KV+12,4)}, {v(P_+4,4)}, {v(OT_,16)}
          s_sub_u32 s{sN}, s{sN}, 1
          s_cmp_lg_u32 s{sN}, 0
          s_cbranch_scc1 AT_s2
          v_mov_b32 v10, v{OT_+12}
          v_mov_b32 v11, v{OT_+12}
          v_permlane32_swap_b32 v11, v10
          s_branch AT_norm""")

B_G3_DONE = 24
G2_BASE = 0
H1 = 56 * 1024
W3B = 60 * 1024
XCH3 = CNT + 1024
RES = 224

def p1b(a):
    bst = (lambda i: common.stamp(a, i)) if p1stamps() else (lambda i: None)
    sRB, sCB, sT = 44, 45, 48
    sROW, sWO, sK, sCOL = 49, 50, 51, 52
    WB = 0x1C000
    XT = 232
    def codepf():
        nseg = opt("nseg", 5)
        a(f"""s_lshr_b32 s57, s2, 3
              s_cmp_ge_u32 s57, {nseg}
              s_cbranch_scc1 PB_nopf
              s_cmp_lg_u32 s{sW}, 0
              s_cbranch_scc1 PB_nopf
              s_getpc_b64 s[62:63]""")
        a.label("PB_pc")
        a(f"""s_lshl_b32 s57, s57, 13
              s_sub_u32 s62, s62, PB_pc-K_start
              s_subb_u32 s63, s63, 0
              s_add_u32 s62, s62, s57
              s_addc_u32 s63, s63, 0
              v_lshlrev_b32 v8, 7, v1
              v_add_u32 v9, s57, v8
              v_cmp_gt_u32 vcc, K_last-K_start, v9
              v_mov_b32 v11, s63
              v_add_co_u32 v10, s[98:99], s62, v8
              v_addc_co_u32 v11, s[98:99], 0, v11, s[98:99]
              s_and_saveexec_b64 s[98:99], vcc
              s_cbranch_execz PB_pfx
              global_load_dword v16, v[10:11], off""")
        a.label("PB_pfx")
        a("s_mov_b64 exec, -1")
        a.label("PB_nopf")
    if opt("codepf", 1) == 1: codepf()
    a(f"""s_and_b32 s26, s2, 1
          s_lshl_b32 s26, s26, 3
          s_lshr_b32 s3, s2, 5
          s_add_u32 s26, s26, s3
          s_bfe_u32 s{sK}, s2, 0x20003
          s_lshl_b32 s54, s{sK}, 1
          s_add_u32 s54, s54, s3
          s_mul_i32 s3, s54, 37
          s_lshr_b32 s3, s3, 8
          s_mul_i32 s3, s3, 7
          s_sub_u32 s54, s54, s3
          s_mul_i32 s54, s54, {opt("rotw", 1)}
          s_bfe_u32 s3, s2, 0x20001
          s_lshl_b32 s3, s3, 2
          s_add_u32 s3, s3, s{sK}
          s_lshl_b32 s3, s3, 2
          s_add_u32 s3, s3, s{sW}
          s_lshl_b32 s56, s3, 5
          s_and_b32 s27, s26, 3
          s_lshr_b32 s3, s27, 1
          s_add_u32 s3, s3, 1
          s_sub_u32 s57, 0, s3
          s_bitcmp1_b32 s27, 0
          s_cselect_b32 s3, s3, s57
          s_movk_i32 s{sROW}, 2688
          s_cmp_ge_u32 s26, 12
          s_cselect_b32 s3, s3, 0
          s_cselect_b32 s{sROW}, 896, s{sROW}
          s_cselect_b32 s27, s27, s26
          s_add_u32 s56, s56, s3
          s_mul_i32 s{sCOL}, s27, 224
          v_lshrrev_b32 v8, 3, v1
          v_add_u32 v8, s56, v8
          s_movk_i32 s3, 896
          v_mul_i32_i24 v8, s3, v8
          v_bfe_u32 v9, v1, 4, 2
          v_and_b32 v10, 7, v1
          v_xor_b32 v9, v9, v10
          v_lshl_add_u32 v2, v9, 4, v8
          v_xor_b32 v9, 4, v9
          v_lshl_add_u32 v3, v9, 4, v8
          v_add_u32 v3, {8*896}, v3
          v_add_u32 v4, {16*896}, v2
          v_add_u32 v5, {16*896}, v3
          v_lshrrev_b32 v8, 4, v1
          v_lshlrev_b32 v9, 2, v8
          v_sub_u32 v9, v1, v9
          v_and_b32 v9, 15, v9
          v_mul_u32_u24 v8, s{sROW}, v8
          v_lshl_add_u32 v7, v9, 4, v8
          v_cmp_gt_u32 s[96:97], 14, v9
          s_lshl_b32 s{sK}, s54, 6
          s_lshl_b32 s54, s54, 7
          s_lshl_b32 s3, s{sW}, 4
          s_mul_i32 s3, s3, s{sROW}
          s_add_u32 s{sCOL}, s{sCOL}, s3
          s_lshl_b32 s53, s{sROW}, 2
          s_lshl_b32 s55, s{sW}, 12
          s_waitcnt lgkmcnt(0)""")
    srd(a, XS, 4, 2048 * 896)
    q = []
    gap = []
    def ride(n):
        for x in gap[:n]: a(x)
        del gap[:n]
    def xchunk(c):
        for g in range(4):
            a(f"s_add_u32 m0, s55, {XB + (c % 3)*16384 + g*1024}")
            a(f"s_nop 0\nbuffer_load_dwordx4 v{2+g}, {s(XS,4)}, s54 offen lds")
            ride(9)
        wrapinc(a, 54, 128, 896)
        q.extend([c] * 4)
    def wchunk(c):
        a(f"""s_mul_i32 s{sWO}, s{sK}, s{sROW}
              s_add_u32 s{sWO}, s{sWO}, s{sCOL}""")
        wrapinc(a, sK, 64, 448)
        a("s_mov_b64 exec, s[96:97]")
        for u in range(4):
            a(f"s_add_u32 m0, s55, {c*16384 + u*1024}")
            if u: a(f"s_add_u32 s{sWO}, s{sWO}, s53")
            a(f"buffer_load_dwordx4 v7, {s(WA,4)}, s{sWO} offen lds")
        a("s_mov_b64 exec, -1")
        q.extend([c] * 4)
    bst(11)
    xchunk(0)
    a(f"""s_cmp_ge_u32 s26, 12
          s_cselect_b32 s{WA}, s12, s6
          s_cselect_b32 s{WA+1}, s13, s7
          s_mul_i32 s{WA+2}, s{sROW}, 448
          s_mov_b32 s{WA+3}, 0x20000""")
    wchunk(0)
    srd(a, WD, 24, WS_END)
    a(f"""s_lshl_b32 s61, s{sW}, 8
          s_or_b32 s61, s61, s2
          v_mov_b32 v22, 0
          s_cmp_ge_u32 s61, {NINIT}
          s_cbranch_scc1 PB_noinit
          v_lshlrev_b32 v13, 7, v1
          s_lshl_b32 s3, s2, 13
          s_add_u32 s3, s3, {FLG}
          buffer_store_dword v22, v13, {s(WD,4)}, s3 offen{SC}""")
    a.label("PB_noinit")
    if opt("codepf", 1) == 2: codepf()
    if opt("tlb", 0):
        a(f"""v_lshlrev_b32 v23, {opt("tlb", 0)}, v1
              v_add_u32 v23, {0x1fff80 if opt("tlb", 0) == 21 else 0xff80}, v23
              s_lshl_b32 s3, s{sW}, {opt("tlb", 0) + 6}
              buffer_load_dword v24, v23, {s(WD,4)}, s3 offen sc1""")
        q.append(1)
    a(f"""v_lshrrev_b32 v8, 1, v1
          v_and_b32 v9, 15, v8
          v_lshrrev_b32 v10, 4, v8
          v_lshlrev_b32 v10, 14, v10
          v_lshl_add_u32 v10, v9, 8, v10
          v_and_b32 v9, 3, v8
          v_lshlrev_b32 v9, 2, v9
          v_and_b32 v8, 1, v1
          v_add3_u32 v9, v9, v8, 14
          v_and_b32 v9, 15, v9
          v_lshl_add_u32 v10, v9, 4, v10
          v_add_u32 v10, s55, v10
          v_add_u32 v11, 0x10000, v10
          v_mov_b32 v12, 0x3f803f80
          v_mov_b32 v13, v12
          v_mov_b32 v14, v12
          v_mov_b32 v15, v12
          ds_write_b128 v10, v[12:15]
          ds_write_b128 v10, v[12:15] offset:32768
          ds_write_b128 v11, v[12:15]
          s_mov_b64 exec, 0xffffffff
          ds_write_b128 v11, v[12:15] offset:32768
          s_mov_b64 exec, -1""")
    srd(a, WD, 24, WS_END)
    srd(a, WB_, 22, 256)
    xchunk(1)
    if opt("w1e", 1): wchunk(1)
    CSB = opt("csb", 0)
    if CSB:
        a("s_cmp_ge_u32 s26, 12\ns_cselect_b32 s57, 8, 7")
        tr_addrs(a, 21, "s57", 0, perm=False, which=(4,))
        a("v_mov_b32 v26, 0\nv_mov_b32 v27, 0")
    small_setup(a, sRB, sCB, sT)
    tail = A()
    tail(f"""s_lshr_b32 s{sFT}, s{sW}, 1
          s_xor_b32 s{sFT}, s{sFT}, s2
          s_and_b32 s{sFT}, s{sFT}, 1
          v_lshrrev_b32 v8, 2, v1
          v_mul_u32_u24 v8, 896, v8
          v_bfe_u32 v9, v1, 4, 2
          v_and_b32 v10, 3, v1
          v_xor_b32 v9, v9, v10
          v_lshl_add_u32 v8, v9, 4, v8
          s_mul_i32 s3, s{sT}, {32*896}
          s_lshl_b32 s26, s{sCB}, 7
          s_add_u32 s3, s3, s26
          s_lshl_b32 s26, s{sFT}, 6
          s_add_u32 s3, s3, s26
          s_add_u32 s26, s3, {16*896}
          buffer_load_dwordx4 {v(XT,4)}, v8, {s(XS,4)}, s3 offen
          buffer_load_dwordx4 {v(XT+4,4)}, v8, {s(XS,4)}, s26 offen""")
    t2, t3, t4 = A(), A(), A()
    srd(t2, WB_, 14, 448*896)
    t2(f"""v_lshlrev_b32 v8, 7, v1
           s_lshr_b32 s57, s2, 3
           s_lshl_b32 s57, s57, 2
           s_add_u32 s57, s57, s{sW}
           s_mul_i32 s3, s57, {25*128}
           s_bfm_b64 exec, 25, 0
           buffer_load_dword v16, v8, {s(WB_,4)}, s3 offen{TF}
           s_mov_b64 exec, -1""")
    srd(t3, WB_, 16, 448*3584)
    t3(f"""s_lshr_b32 s57, s2, 3
           s_lshl_b32 s57, s57, 2
           s_add_u32 s57, s57, s{sW}
           s_mul_i32 s3, s57, 49
           v_add_u32 v9, s3, v1
           v_mul_u32_u24 v10, 9363, v9
           v_lshrrev_b32 v10, 17, v10
           v_mul_u32_u24 v11, 14, v10
           v_sub_u32 v9, v9, v11
           v_mul_u32_u24 v10, 3584, v10
           v_lshl_add_u32 v9, v9, 7, v10
           s_and_b32 s3, s2, 1
           s_mul_i32 s3, s3, 1792
           s_bfm_b64 exec, 49, 0
           buffer_load_dword v17, v9, {s(WB_,4)}, s3 offen{TF}
           s_mov_b64 exec, -1""")
    srd(t4, WB_, 18, 448*3584)
    t4(f"""v_lshlrev_b32 v8, 7, v1
           s_lshl_b32 s57, s2, 2
           s_add_u32 s57, s57, s{sW}
           s_mul_i32 s3, s57, {13*128}
           s_bfm_b64 exec, 13, 0
           buffer_load_dword v18, v8, {s(WB_,4)}, s3 offen{TF}""")
    srd(t4, WB_, 8, 448*896)
    t4(f"""s_lshl_b32 s3, s57, 9
           s_mov_b64 exec, 15
           buffer_load_dword v19, v8, {s(WB_,4)}, s3 offen{TF}
           s_mov_b64 exec, -1""")
    if opt("tmode", 0) & 1:
        t3 = A(); srd(t3, WB_, 16, 448*3584)
        t3(f"""v_lshlrev_b32 v8, 7, v1
               s_lshl_b32 s57, s2, 2
               s_add_u32 s57, s57, s{sW}
               s_mul_i32 s3, s57, {13*128}
               s_bfm_b64 exec, 13, 0
               buffer_load_dword v17, v8, {s(WB_,4)}, s3 offen
               s_mov_b64 exec, -1""")
    if opt("tmode", 0) & 2:
        t2 = A(); srd(t2, WB_, 14, 448*896)
        t2(f"""v_lshlrev_b32 v8, 7, v1
               s_lshl_b32 s57, s2, 2
               s_add_u32 s57, s57, s{sW}
               s_lshl_b32 s3, s57, 9
               s_mov_b64 exec, 15
               buffer_load_dword v16, v8, {s(WB_,4)}, s3 offen
               s_mov_b64 exec, -1""")
    w2, w2b = A(), A()
    w2(f"s_lshl_b32 s47, s{sW}, 11")
    small_addrs(w2, "s47")
    srd(w2, WA, 14, 448 * 896)
    w2(f"""s_mul_i32 s3, s{sW}, {112*896}
           s_lshl_b32 s26, s{sCB}, 7
           s_add_u32 s3, s3, s26
           v_add_u32 v4, s3, v7
           v_add_u32 v5, {8*896}, v4
           s_mul_i32 s50, s{sCB}, {16*896*opt("rot", 1)}""")
    for j in range(7):
        g = w2 if j < 6 else w2b
        g(f"""s_add_u32 m0, s47, {j*8192}
              s_nop 0
              buffer_load_dwordx4 v4, {s(WA,4)}, s50 offen lds
              s_add_u32 m0, s47, {j*8192 + 1024}
              s_nop 0
              buffer_load_dwordx4 v5, {s(WA,4)}, s50 offen lds""")
        if j < 6: wrapinc(g, 50, 16*896, 112*896)
    c3a, c3b = A(), A()
    srd(c3a, WB_, 16, 448*3584)
    c3a(f"""s_mul_i32 s3, s2, 2341
            s_lshr_b32 s3, s3, 16
            s_mul_i32 s57, s3, 28
            s_sub_u32 s57, s2, s57                 ; line = id % 28
            s_lshl_b32 s3, s3, 2
            s_add_u32 s3, s3, s{sW}
            s_mul_i32 s63, s57, 28
            s_add_u32 s63, s63, s3
            s_lshl_b32 s63, s63, 8
            s_add_u32 s63, s63, {CS3P}
            s_cmp_lt_u32 s2, 196
            s_cselect_b32 s63, s63, {OOB}
            s_mul_i32 s3, s3, {16*3584}
            s_lshl_b32 s57, s57, 7
            s_add_u32 s3, s3, s57
            s_add_u32 s57, s3, {8*3584}
            v_lshrrev_b32 v8, 3, v1
            v_mul_u32_u24 v8, 3584, v8
            v_and_b32 v9, 7, v1
            v_lshl_add_u32 v8, v9, 4, v8
            buffer_load_dwordx4 v[32:35], v8, {s(WB_,4)}, s3 offen
            buffer_load_dwordx4 v[36:39], v8, {s(WB_,4)}, s57 offen""")
    unpack(c3b, 40, 32, 8)
    for i in range(8): c3b(f"v_add_f32 v{40+i}, v{40+i}, v{48+i}")
    for i in range(4): c3b(f"v_permlane32_swap_b32 v{40+i}, v{44+i}")
    for i in range(4): c3b(f"v_add_f32 v{40+i}, v{40+i}, v{44+i}")
    for i in range(2): c3b(f"v_permlane16_swap_b32 v{40+i}, v{42+i}")
    for i in range(2): c3b(f"v_add_f32 v{40+i}, v{40+i}, v{42+i}")
    c3b(f"""v_and_b32 v8, 7, v1
            v_lshrrev_b32 v9, 4, v1
            v_lshlrev_b32 v8, 5, v8
            v_lshl_add_u32 v8, v9, 3, v8
            v_add_f32_dpp v40, v40, v40 row_ror:8 row_mask:0xf bank_mask:0xf
            v_add_f32_dpp v41, v41, v41 row_ror:8 row_mask:0xf bank_mask:0xf
            buffer_store_dwordx2 v[40:41], v8, {s(WD,4)}, s63 offen{SC}""")
    extras = [(opt("tl", 4), tail, 2), (opt("c3a", 4), c3a, 2), (opt("tw2", 2), t2, 1), (opt("w2c", 8), w2, 12), (opt("tw3", 4), t3, 1), (opt("tw4", 4), t4, 2), (max(opt("w2d", 6), opt("w2c", 8)), w2b, 2)]
    bst(2)
    for c in range(7):
        last = max(i for i, x in enumerate(q) if x == c)
        a(f"s_waitcnt vmcnt({len(q) - 1 - last}) lgkmcnt(0)")
        bst((3, 12, 13, 4, 5, 14, 8)[c])
        a("s_barrier")
        jitter(a)
        if CSB:
            if c == 4: a("v_add_u32 v25, 0x10000, v25")
            for i in range(8): a(f"ds_read_b64_tr_b16 {v(56+2*i,2)}, v25 offset:{(c & 3)*16384 + (16*(i>>1) + 4*(i&1))*256}")
            gap.append("s_waitcnt lgkmcnt(0)")
            for i in range(16):
                lo = 28 + 2*(i & 1)
                gap += [f"v_lshlrev_b32 v{lo}, 16, v{56+i}", f"v_and_b32 v{lo+1}, 0xffff0000, v{56+i}",
                        f"v_add_f32 v26, v26, v{lo}", f"v_add_f32 v27, v27, v{lo+1}"]
        if c == 1:
            a(f"""s_cmp_ge_u32 s61, {NINIT}
                  s_cbranch_scc1 PB_noset
                  s_lshl_b32 s3, s2, 2
                  v_mov_b32 v9, 1
                  s_mov_b64 exec, 1
                  buffer_store_dword v9, v22, {s(WB_,4)}, s3 offen{SC}
                  s_mov_b64 exec, -1""")
            a.label("PB_noset")
        if c == 0 and not opt("w1e", 1): wchunk(1)
        if c + 2 < 7: xchunk(c + 2); wchunk(c + 2)
        if c == 3:
            srd(a, WB_, 22, 256)
            a(f"v_min_u32 v20, {NINIT - 1}, v1\nv_lshlrev_b32 v20, 2, v20\nbuffer_load_dword v21, v20, {s(WB_,4)}, 0 offen sc1"); q.append(5)
        if c == 5:
            a("v_cmp_eq_u32 vcc, 0, v21\ns_cbranch_vccz PB_clr")
            srd(a, WB_, 22, 256)
            poll(a, 20, NINIT, WB_)
            a.label("PB_clr")
        for when, code, nv in extras:
            if when == c:
                for x in code.l: a(x)
                q.extend(["c3" if code is c3a or code is tail else 99] * nv)
        ride(999)
    if CSB:
        a("v_add_f32 v26, v26, v27")
        half_sum(a, 26, 27)
        cs_publish(a, 26, 28, XCH)
    a(f"""v_mov_b32 v8, {CNT}
          v_mov_b32 v12, 0
          v_mov_b32 v13, 0
          v_mov_b32 v14, 0
          v_mov_b32 v15, 0
          ds_write_b128 v8, v[12:15]
          ds_write_b128 v8, v[12:15] offset:16
          ds_write_b128 v8, v[12:15] offset:32
          s_waitcnt lgkmcnt(0)
          s_barrier                              ; barrier 7""")
    for when, code, nv in extras:
        if when == 67:
            for x in code.l: a(x)
            q.extend([99] * nv)
    a(f"""s_waitcnt vmcnt({len(q) - 1 - max(i for i, x in enumerate(q) if x == "c3")})""")
    for x in c3b.l: a(x)
    g2_setup(a)
    a(f"""s_and_b32 s3, s2, 1
          s_lshl_b32 s3, s3, 3
          s_lshr_b32 s26, s2, 5
          s_add_u32 s3, s3, s26
          s_lshl_b32 s3, s3, 4
          s_lshr_b32 s26, s{sRB}, 1
          s_add_u32 s3, s3, s26
          s_lshl_b32 s3, s3, 7
          s_add_u32 s3, s3, {FP}
          s_waitcnt vmcnt(0)""")
    signal(a, 3, C_S1, last=7)
    for when, code, nv in extras:
        if when == 7:
            for x in code.l: a(x)
    bst(9)
    gwait(a, C_X, 4, field=1)
    for when, code, nv in extras:
        if when == 8:
            for x in code.l: a(x)
    bst(10); bst(15)

def small_setup(a, sRB, sCB, sT):
    a(f"""s_bfe_u32 s26, s2, 0x20001
          s_lshl_b32 s26, s26, 2
          s_bfe_u32 s3, s2, 0x20003
          s_add_u32 s26, s26, s3
          s_lshl_b32 s{sRB}, s26, 1
          s_and_b32 s3, s2, 1
          s_add_u32 s{sRB}, s{sRB}, s3
          s_lshr_b32 s{sCB}, s2, 5
          s_and_b32 s3, s{sW}, 1
          s_lshl_b32 s{sT}, s{sRB}, 1
          s_add_u32 s{sT}, s{sT}, s3""")

def small_addrs(a, sM, natural=False):
    a(f"""v_lshrrev_b32 v8, 3, v1
          v_bfe_u32 v9, v1, 4, 1
          v_lshlrev_b32 v9, 2, v9
          v_and_b32 v10, 7, v1
          v_xor_b32 v9, v9, v10
          v_mul_u32_u24 v8, 896, v8
          v_lshl_add_u32 v7, v9, 4, v8
          v_lshrrev_b32 v8, 5, v1
          v_bfe_u32 v9, v1, 2, 2
          v_lshl_add_u32 v8, v8, 2, v9
          v_lshlrev_b32 v8, 7, v8
          v_bfe_u32 v10, v1, 4, 1
          v_bfe_u32 v11, v1, 1, 1
          v_lshl_add_u32 v10, v10, 1, v11
          v_bfe_u32 v11, v1, 3, 1
          v_lshl_add_u32 v10, v11, 2, v10
          v_lshl_add_u32 v8, v10, 4, v8
          v_and_b32 v11, 1, v1
          v_lshl_add_u32 v8, v11, 3, v8
          s_lshl_b32 s3, {"0" if natural else "s%d" % sFT}, 6
          v_xor_b32 v8, s3, v8
          v_add_u32 v2, {sM}, v8
          v_xor_b32 v8, 64, v8
          v_add_u32 v3, {sM}, v8""")

def wreads(a, WF, buf, off, va=2):
    for b in range(2):
        for e in range(2): a(f"ds_read_b64_tr_b16 {v(WF+8*buf+4*b+2*e,2)}, v{va+b} offset:{off + 8*e*128}")
def mfmas(a, ACC, WF, buf, act0, act1, first):
    for aa, ar in enumerate((act0, act1)):
        for b in range(2):
            j = 2*aa + b
            a(f"{MF} {v(ACC+16*j,16)}, {v(WF+8*buf+4*b,4)}, {v(ar,4)}, {'0' if first else v(ACC+16*j,16)}")

def g2_setup(a):
    EP = 176
    sRB, sCB, sT, sM, sK, sKA, sX = 44, 45, 48, 47, 50, 51, 53
    sRB3, sCB3, sT3, sK3, sL = 54, 55, 56, 57, 49
    ROT = opt("rot", 1)
    a(f"s_lshl_b32 s{sL}, s{sW}, 11")
    a(f"""s_add_u32 s3, s{sL}, {H1}
          v_add_u32 v10, s3, v0
          v_and_b32 v8, 31, v1
          v_lshlrev_b32 v8, 6, v8
          v_bfe_u32 v9, v1, 2, 2
          v_lshl_add_u32 v8, v9, 4, v8
          v_lshrrev_b32 v9, 5, v1
          v_lshl_add_u32 v8, v9, 3, v8
          v_add_u32 v12, s3, v8
          v_xor_b32 v13, 16, v12
          v_xor_b32 v14, 32, v12
          v_xor_b32 v15, 48, v12
          ds_write_b128 v10, v[232:235]
          ds_write_b128 v10, v[236:239] offset:1024
          s_waitcnt lgkmcnt(0)""")
    for j in range(4): a(f"ds_read_b64 {v(EP+2*j,2)}, v{12+j}")
    a(f"""s_and_b32 s26, s2, 7
          s_lshr_b32 s27, s2, 3
          s_lshr_b32 s{sRB3}, s26, 1
          s_lshl_b32 s{sRB3}, s{sRB3}, 2
          s_and_b32 s3, s27, 3
          s_add_u32 s{sRB3}, s{sRB3}, s3
          s_and_b32 s{sCB3}, s26, 1
          s_mul_i32 s{sCB3}, s{sCB3}, 7
          s_add_u32 s{sCB3}, s{sCB3}, s{sCB}
          s_lshl_b32 s{sT3}, s{sRB3}, 2
          s_add_u32 s{sT3}, s{sT3}, s{sW}
          v_lshrrev_b32 v8, 3, v1
          v_bfe_u32 v9, v1, 4, 1
          v_lshlrev_b32 v9, 2, v9
          v_and_b32 v6, 7, v1
          v_xor_b32 v9, v9, v6
          v_mul_u32_u24 v8, 3584, v8
          v_lshl_add_u32 v6, v9, 4, v8
          s_mul_i32 s3, s{sW}, {16*3584}
          s_lshl_b32 s26, s{sCB3}, 8
          s_add_u32 s3, s3, s26
          v_add_u32 v6, s3, v6                   ; W3 voffset
          s_mul_i32 s{sK3}, s{sCB}, {64*3584*ROT}""")
    srd(a, WB_, 16, 448 * 3584)
    a("s_waitcnt lgkmcnt(0)")
    a(f"""s_mul_i32 s3, s{sT}, 28
          s_mul_i32 s26, s{sW}, 7
          s_add_u32 s3, s3, s26
          s_lshl_b32 s3, s3, 10
          s_add_u32 s3, s3, {HF}
          v_add_u32 v186, s3, v0
          s_xor_b32 s3, s{sT}, 1
          s_mul_i32 s3, s3, 28
          s_add_u32 s3, s3, s26
          s_lshl_b32 s3, s3, 10
          s_add_u32 s3, s3, {HF}
          v_add_u32 v187, s3, v0
          s_mul_i32 s{sKA}, s{sCB}, {1024*ROT}
          s_mul_i32 s{sX}, s{sT}, 28
          s_lshl_b32 s3, s{sCB}, 2
          s_add_u32 s{sX}, s{sX}, s3
          s_lshl_b32 s3, s{sFT}, 1
          s_add_u32 s{sX}, s{sX}, s3
          s_lshl_b32 s{sX}, s{sX}, 10
          s_add_u32 s{sX}, s{sX}, {X1F}
          s_add_u32 s3, s{sW}, 12
          s_lshl_b32 s3, s3, 4
          s_lshr_b32 s26, s{sRB}, 1
          s_add_u32 s3, s3, s26
          s_lshl_b32 s3, s3, 7
          s_add_u32 s3, s3, {FP}
          v_mov_b32 v188, s3
          s_lshl_b32 s3, s26, 7
          s_add_u32 s3, s3, {FP}
          v_mov_b32 v189, s3
          v_lshlrev_b32 v8, 3, v1
          v_and_b32 v15, 0xff, v8
          s_lshl_b32 s27, s{sT}, 8
          s_add_u32 s27, s27, {ST1}""")
    unpack(a, RES, EP, 8)

def roleb(a):
    ACC, WF, AR, EP = 16, 80, 112, 176
    sRB, sCB, sT, sM, sK, sKA, sX = 44, 45, 48, 47, 50, 51, 53
    sRB3, sCB3, sT3, sK3, sL = 54, 55, 56, 57, 49
    ROT = opt("rot", 1)
    a("s_cmp_ge_u32 s2, 224\ns_cbranch_scc0 B_go")
    a(f"""s_mov_b64 exec, 1
          v_mov_b32 v8, {CNT}
          v_mov_b32 v9, {B_G3_DONE // 4}
          ds_add_u32 v8, v9
          s_mov_b64 exec, -1""")
    garrive(a, C_X)
    if opt("idlepf", 1):
        if opt("idlepf", 1) == 2: gwait(a, C_S1, 8)
        else:
            a(f"""s_lshl_b32 s3, s{sRB}, 10
                  s_add_u32 s3, s3, {F2}
                  v_mov_b32 v10, s3""")
            poll(a, 10, 1)
        srd(a, WA, 18, 1792 * 896)
        srd(a, WB_, 8, 448 * 896)
        a(f"""s_lshr_b32 s3, s2, 3
              s_sub_u32 s3, s3, 28
              s_lshl_b32 s3, s3, 2
              s_add_u32 s3, s3, s{sW}
              s_lshl_b32 s26, s3, 13
              s_and_b32 s27, s2, 1
              s_mul_i32 s27, s27, {896*896}
              s_add_u32 s26, s26, s27
              v_lshlrev_b32 v8, 7, v1
              s_mov_b32 s27, 7""")
        a.label("B_pf")
        a(f"""buffer_load_dword v16, v8, {s(WA,4)}, s26 offen{TF}
              s_add_u32 s26, s26, {16*8192}
              s_waitcnt vmcnt(1)
              s_sub_u32 s27, s27, 1
              s_cmp_lg_u32 s27, 0
              s_cbranch_scc1 B_pf
              s_lshl_b32 s26, s3, 13""")
        for i in range(4): a(f"buffer_load_dword v16, v8, {s(WB_,4)}, s26 offen{TF}\ns_add_u32 s26, s26, {16*8192}")
    a("s_endpgm")
    a.label("B_go")
    a(f"s_setprio {opt('pb', 1)}")
    bs2 = (lambda i: common.stamp(a, i)) if opt("g2s", 0) and common.STAMPS else (lambda i: None)
    if opt("g2s", 0):
        global stamp
        keep = stamp
        stamp = lambda a_, i, *x: keep(a_, i, *x) if i in (2, 3) else None
    def w3chunk(c):
        hf, j = (1, c) if c < 7 else (0, c - 7)
        for u in range(2):
            a(f"s_add_u32 m0, s{sL}, {hf*H1 + j*8192 + u*1024}")
            a(f"s_add_u32 s3, s{sK3}, {u*8*3584 + 128*hf}")
            a(f"buffer_load_dwordx4 v6, {s(WB_,4)}, s3 offen lds")
        wrapinc(a, sK3, 64*3584, 448*3584)
    W3A = opt("w3a", 2); W3E = max(W3A, opt("w3e", 6)); assert W3E <= 6
    if W3A:
        gwait(a, C_S1, 8)
        for c in range(W3A): w3chunk(c)
    stamp(a, 2)
    poll(a, 188, 1)
    a(f"buffer_load_dword v12, v189, {s(WD,4)}, 0 offen sc1")
    stamp(a, 3)
    for j in range(7):
        a(f"buffer_load_dwordx4 {v(AR+8*j,4)}, v186, {s(WD,4)}, s{sKA} offen{SC}")
        a(f"buffer_load_dwordx4 {v(AR+8*j+4,4)}, v187, {s(WD,4)}, s{sKA} offen{SC}")
        if j < 6: wrapinc(a, sKA, 1024, 7168)
    a("s_waitcnt vmcnt(14)\nv_cmp_eq_u32 vcc, 0, v12\ns_cbranch_vccz B_st1")
    poll(a, 189, 1)
    a.label("B_st1")
    a(f"buffer_load_dwordx2 {v(EP+8,2)}, v15, {s(WD,4)}, s27 offen{SC}")
    garrive(a, C_X)
    a(f"s_setprio {opt('pg2', 0)}")
    for s_ in range(3): wreads(a, WF, s_, s_*8192)
    NW3 = 0
    for s_ in range(7):
        a(f"s_waitcnt vmcnt({2*(6-s_) + 1 + NW3}) lgkmcnt({4*min(2, 6 - s_)})")
        mfmas(a, ACC, WF, s_ & 3, AR+8*s_, AR+8*s_+4, s_ == 0)
        if s_ + 3 < 7: wreads(a, WF, (s_+3) & 3, (s_+3)*8192)
    U = AR
    a(f"s_setprio {opt('pb', 1)}")
    stamp(a, 12)
    a(f"s_waitcnt vmcnt({NW3})")
    for i in range(16): a(f"v_sub_f32 v{U+i}, v{RES+i}, v{EP+8}")
    def region2(d, j):
        a(f"""s_xor_b32 s{d}, s{sW}, {(j >> 1) + 2*(j & 1)}
              s_mul_i32 s{d}, s{d}, 12288
              s_add_u32 s{d}, s{d}, {W3B + 48*1024}""")
    region2(sM, 0)
    reduce3(a, ACC, sM, region2, 0, 4, True)
    stamp(a, 13)
    for i in range(16): a(f"v_fma_f32 v{U+i}, v{U+i}, v{EP+9}, v{ACC+i}")
    for i in range(8): a(f"v_cvt_pk_bf16_f32 v{EP+i}, v{U+2*i}, v{U+2*i+1}")
    a(f"buffer_store_dwordx4 {v(EP,4)}, v0, {s(WD,4)}, s{sX} offen{SC}")
    a(f"buffer_store_dwordx4 {v(EP+4,4)}, v0, {s(WD,4)}, s{sX} offen offset:1024{SC}")
    if not opt("g2u", 1): unpack(a, U, EP, 8)
    for i in range(16):
        a(f"v_add_f32 v{10+(i&1)}, v{U+i}, {'0' if i < 2 else 'v%d' % (10+(i&1))}")
        a(f"v_fma_f32 v{12+(i&1)}, v{U+i}, v{U+i}, {'0' if i < 2 else 'v%d' % (12+(i&1))}")
    a("v_add_f32 v10, v10, v11\nv_add_f32 v11, v12, v13")
    half_sum(a, 10, 8); half_sum(a, 11, 9)
    a(f"""s_lshl_b32 s26, s{sCB}, 1
          s_add_u32 s26, s26, s{sFT}
          s_mul_i32 s3, s{sT}, 14
          s_add_u32 s3, s3, s26
          s_lshl_b32 s3, s3, 8
          s_add_u32 s3, s3, {ST3}
          buffer_store_dwordx2 v[10:11], v15, {s(WD,4)}, s3 offen{SC}
          s_lshl_b32 s3, s{sRB}, 3
          s_add_u32 s3, s3, s{sCB}
          s_lshl_b32 s3, s3, 7
          s_add_u32 s{sX}, s3, {F2}""")
    garrive(a, 0)
    for i in range(16): a(f"v_add_f32 v{RES+i}, v{RES+i}, v{U+i}")
    lo = lambda: a("s_setprio 0") if opt("kvprio", 1) == 2 else None
    hi = lambda: a(f"s_setprio {opt('pb', 1)}") if opt("kvprio", 1) == 2 else None
    lo()
    for c in range(W3A, W3E): w3chunk(c)
    hi()
    a(f"s_waitcnt vmcnt({2*(W3E - W3A)})")
    signal(a, sX, 12)
    stamp(a, 4)
    gwait(a, 0, 8)
    lo()
    for c in range(W3E, 14): w3chunk(c)
    hi()
    ACC, WF, XR, TMP = 16, 80, 112, 240
    CSP, CS = TMP, ACC + 48
    a(f"""s_lshl_b32 s3, s{sFT}, 6
          s_sub_u32 s26, 0, s{sL}
          v_add_u32 v2, s26, v2
          v_xor_b32 v2, s3, v2
          v_xor_b32 v3, 64, v2
          v_add_u32 v4, {H1}, v2
          v_add_u32 v5, {H1}, v3""")
    a(f"""s_lshr_b32 s3, s{sT3}, 1
          s_lshl_b32 s3, s3, 10
          s_add_u32 s3, s3, {F2}
          v_lshl_add_u32 v11, v1, 7, s3
          s_lshl_b32 s26, s{sCB3}, 1
          s_lshr_b32 s3, s{sW}, 1
          s_add_u32 s26, s26, s3
          v_add_u32 v8, -7, v1
          v_mul_u32_u24 v8, 28, v8
          v_add_u32 v8, s26, v8
          v_and_b32 v9, 1, v8
          v_lshrrev_b32 v10, 5, v8
          v_lshl_add_u32 v9, v9, 3, v10
          v_bfe_u32 v10, v8, 1, 2
          v_lshl_add_u32 v9, v9, 2, v10
          v_bfe_u32 v10, v8, 3, 2
          v_lshl_add_u32 v9, v9, 2, v10
          v_lshlrev_b32 v9, 7, v9
          v_add_u32 v9, {FP}, v9
          v_cmp_gt_u32 vcc, 7, v1
          v_cndmask_b32 v11, v9, v11, vcc
          s_mul_i32 s{sK3}, s26, {28*256}
          s_and_b32 s3, s{sW}, 1
          s_lshl_b32 s3, s3, 7
          s_add_u32 s{sK3}, s{sK3}, s3
          s_add_u32 s{sK3}, s{sK3}, {CS3P}
          v_lshrrev_b32 v10, 5, v1
          v_mul_u32_u24 v10, {14*256}, v10
          v_and_b32 v9, 31, v1
          v_lshl_add_u32 v6, v9, 2, v10
          s_mul_i32 s3, s{sT3}, {28*1024}
          s_add_u32 s3, s3, {X1F}
          v_add_u32 v7, s3, v0
          s_mul_i32 s{sKA}, s{sCB}, {4096*ROT}
          v_lshrrev_b32 v12, 5, v1
          v_mul_u32_u24 v12, {7*256}, v12
          v_and_b32 v13, 31, v1
          v_lshl_add_u32 v12, v13, 3, v12
          s_mul_i32 s27, s{sT3}, {14*256}
          s_add_u32 s27, s27, {ST3}""")
    a("s_waitcnt vmcnt(0)")
    gbar(a, 0, 12)
    CSG = opt("csg", 1)
    def cs_exchange():
        a(f"""v_cvt_pk_bf16_f32 v{WF}, v{CS}, v{CS}
              v_and_b32 v{WF}, 0xffff0000, v{WF}
              v_sub_f32 v{WF}, v{CS}, v{WF}
              v_cvt_pk_bf16_f32 v{WF}, v{CS}, v{WF}
              v_and_b32 v13, 31, v1
              v_lshlrev_b32 v13, 2, v13
              s_lshl_b32 s26, s{sW}, 7
              s_add_u32 s26, s26, {XCH3}
              v_add_u32 v13, s26, v13
              ds_write_b32 v13, v{WF}""")
        a("s_waitcnt lgkmcnt(0)")
        garrive(a, 0)
    def cs_collect():
        gwait(a, 0, 16)
        a(f"v_and_b32 v15, 31, v1\nv_lshlrev_b32 v15, 2, v15\nv_add_u32 v15, {XCH3}, v15")
        for t in range(4): a(f"ds_read_b32 v{CSP+t}, v15 offset:{128*t}")
        a("s_waitcnt lgkmcnt(0)")
    hops = lambda ts: {}
    woff = None
    poll(a, 11, 14)
    stamp(a, 5)
    STL = [WF + 24, WF + 26, WF + 28, WF + 30, TMP + 8, TMP + 10, 14]; ST = STL[0]
    LA = opt("la3", 10)
    def xl(u):
        g = A()
        g(f"buffer_load_dwordx4 {v(XR+4*u,4)}, v7, {s(WD,4)}, s{sKA} offen offset:{(u&3)*1024}{SC}")
        if (u & 3) == 3 and u < 27: wrapinc(g, sKA, 4096, 7*4096)
        return g.l
    L0 = opt("l0", 4)
    for u in range(L0):
        for x in xl(u): a(x)
        if u == 3:
            for i in range(7): a(f"buffer_load_dwordx2 {v(STL[i],2)}, v12, {s(WD,4)}, s27 offen offset:{i*256}{SC}")
            for i in range(14): a(f"buffer_load_dword v{CS+i}, v6, {s(WD,4)}, s{sK3} offen offset:{i*256}{SC}")
    M0_, M1_, R, DEN = TMP+4, TMP+5, TMP+6, TMP+7
    f = A()
    for i in range(1, 7): f(f"v_add_f32 v{ST}, v{ST}, v{STL[i]}\nv_add_f32 v{ST+1}, v{ST+1}, v{STL[i]+1}")
    f(f"v_mov_b32 v12, v{ST}\nv_mov_b32 v13, v{ST+1}")
    half_sum(f, 12, 8); half_sum(f, 13, 9)
    f(f"""v_mul_f32 v12, {fb(1/448)}, v12
          v_mul_f32 v13, {fb(1/448)}, v13
          v_fma_f32 v13, -v12, v12, v13
          v_max_f32 v13, 0, v13
          v_add_f32 v13, {fb(EPS)}, v13
          v_sqrt_f32 v{DEN}, v13
          v_rsq_f32 v{R}, v13""")
    mu_frag(f, 12, "-1", M0_, M1_)
    gelu_consts(f, R, DEN)
    f(f"""s_mul_i32 s{sK}, s{sT3}, 112
          s_lshl_b32 s27, s{sCB3}, 3
          s_add_u32 s{sK}, s{sK}, s27
          s_lshl_b32 s{sK}, s{sK}, 10
          s_add_u32 s{sK}, s{sK}, {HHF}
          s_add_u32 s27, s{sK}, 4096""")
    for i in range(1, 14): f(f"v_add_f32 v{CS}, v{CS}, v{CS+i}")
    half_sum(f, CS, 8)
    f(f"""v_cvt_pk_bf16_f32 v11, v{CS}, v{CS}
          v_and_b32 v11, 0xffff0000, v11
          v_sub_f32 v11, v{CS}, v11
          v_cvt_pk_bf16_f32 v11, v{CS}, v11
          s_lshl_b32 s26, s{sW}, 7
          s_add_u32 s26, s26, {XCH3}
          v_and_b32 v13, 31, v1
          v_lshl_add_u32 v13, v13, 2, s26""")
    NA = opt("na", 2)
    t1 = ((0,) if CSG else (0, 4)) + tuple(range(1, NA)); t2_ = tuple(range(NA, 4))
    pre = hops(t1); pre["fill0"] = 4*len(t1) + 1; pre["G"] = opt("g3g", NA)
    issued = L0
    for s_ in range(28):
        pre[("s", s_)] = [f"s_waitcnt vmcnt({issued - 1 - s_ + (21 if s_ < 4 else 0)})"]
        pre[("t", s_)] = []
        for _ in range(2):
            if issued < min(28, s_ + 1 + LA): pre[("t", s_)] += xl(issued); issued += 1
        if opt("g3s", 0) and common.STAMPS and s_ in (0, 8, 16, 27):
            g = A(); common.stamp(g, {0: 2, 8: 3, 16: 12, 27: 13}[s_]); pre[("s", s_)] += g.l
    g = A(); g("ds_write_b32 v13, v11"); garrive(g, 0); pre[("m", 28*NA - 3)] = g.l
    pre["fillend"] = 28*NA - 4
    if opt("p3h", 0): pre[("s", opt("p3h", 0))] = pre[("s", opt("p3h", 0))] + [f"s_setprio {opt('pb', 1)}"]
    a(f"s_setprio {0 if opt('p3h', 0) else opt('p3a', 1)}")
    kloop(a, ACC, WF, XR, 2, t1, woff, pre, True, f.l, R=6, D=5, cs=(CS, CSP, 32))
    a(f"s_setprio {opt('pb', 1)}")
    cs_collect()
    stamp(a, 13 if False else 14)
    def gfrag(fr, o):
        return gelu8(ACC + 8*fr, 10, 12, 14, TMP + 8, o) + [f"buffer_store_dwordx4 {v(o,4)}, v0, {s(WD,4)}, s{sK if fr < 4 else 27} offen offset:{(fr&3)*1024}{SC}"]
    assert NA == 2 or not opt("w4e", 0)
    garrive(a, 0)
    mean_fix(a, ACC, WF, lambda t: CSP + t, M0_, M1_, tuple(range(NA)))
    srd(a, WA, 18, 1792 * 896)
    a(f"""v_lshrrev_b32 v8, 3, v1
          v_bfe_u32 v9, v1, 4, 1
          v_lshlrev_b32 v9, 2, v9
          v_and_b32 v7, 7, v1
          v_xor_b32 v9, v9, v7
          v_mul_u32_u24 v8, 896, v8
          v_lshl_add_u32 v7, v9, 4, v8
          s_and_b32 s3, s2, 1
          s_mul_i32 s3, s3, 56
          s_add_u32 s3, s3, s{sW}
          s_mul_i32 s3, s3, {16*896}
          s_lshl_b32 s26, s{sCB}, 7
          s_add_u32 s3, s3, s26
          v_add_u32 v7, s3, v7                   ; W4 voffset
          s_mul_i32 s{sK3}, s{sCB}, {8*16*896*ROT}""")
    def w4step(g, j):
        for u in range(2):
            g(f"s_add_u32 m0, s{sL}, {j*8192 + u*1024}\ns_add_u32 s3, s{sK3}, {u*8*896}\nbuffer_load_dwordx4 v7, {s(WA,4)}, s3 offen lds")
        wrapinc(g, sK3, 4*16*896, 896*896)
    nov = opt("nov", 2*NA)
    pre = {"G": opt("g3b", 4 - NA)}
    W4S = opt("w4s", 3)
    W4E = opt("w4e", 0)
    g = A(); g.uid = 2000; gwait(g, 0, 20); pre[("s", W4S if W4E else 26)] = g.l
    for j in range(W4E):
        g = A(); w4step(g, j); pre[("t", W4S + (21 // W4E)*j)] = g.l
    kloop(a, ACC, WF, XR, 2, t2_, woff, pre, True,
          sum((gfrag(fr, XR + 4*fr) for fr in range(nov)), []), R=6, D=5)
    garrive(a, 0)
    OWN = XR
    mean_fix(a, ACC, WF, lambda t: CSP + t, M0_, M1_, tuple(range(NA if NA < 4 else 0, 4)))
    for fr in range(nov, 8):
        if opt("pkg", 0):
            gelu_pairs(a, [ACC + 8*fr + 2*i for i in range(4)], 10, 12, 14, TMP + 8)
            for i in range(4): a(f"v_cvt_pk_bf16_f32 v{XR+4*fr+i}, v{ACC+8*fr+2*i}, v{ACC+8*fr+2*i+1}")
            a(gfrag(fr, XR + 4*fr)[-1])
        else:
            for x in gfrag(fr, OWN + 4*fr): a(x)
    stamp(a, 8)
    ACC, WF, AR, EP = 16, 80, 144, 176
    WOB = 0
    srd(a, WB_, 8, 448 * 896)
    a("s_and_b32 s27, s2, 1")
    gwait(a, 0, B_G3_DONE)
    NP0 = opt("np0", 4)
    lo()
    for j in range(W4E, W4E + NP0): w4step(a, j)
    hi()
    a(f"""s_lshl_b32 s3, s{sRB3}, 4
          s_add_u32 s3, s3, s{sCB3}
          s_lshl_b32 s3, s3, 7
          s_add_u32 s{sX}, s3, {F3}
          s_mul_i32 s3, s{sT3}, 112
          s_mul_i32 s26, s27, 56
          s_add_u32 s3, s3, s26
          s_lshl_b32 s3, s3, 10
          s_add_u32 s3, s3, {HHF}
          v_add_u32 v4, s3, v0
          s_add_u32 s{sKA}, s{sCB}, 1
          s_cmp_eq_u32 s{sKA}, 7
          s_cselect_b32 s{sKA}, 0, s{sKA}
          s_lshl_b32 s{sKA}, s{sKA}, 13
          s_lshl_b32 s26, s{sRB3}, 4
          s_mul_i32 s3, s27, 7
          s_add_u32 s3, s3, s26
          v_add_u32 v10, s3, v1
          v_lshlrev_b32 v10, 7, v10
          v_add_u32 v10, {F3}, v10
          s_lshl_b32 s3, s{sW}, 2
          s_add_u32 s3, s3, s26
          v_and_b32 v14, 3, v1
          v_add_u32 v14, s3, v14
          v_lshlrev_b32 v14, 7, v14
          v_add_u32 v14, {FA}, v14
          s_waitcnt vmcnt({2*NP0})""")
    signal(a, sX, 16)
    stamp(a, 9)
    lo()
    for j in range(W4E + NP0, 14): w4step(a, j)
    hi()
    a(f"""s_mul_i32 s3, s27, {896*896}
          s_mul_i32 s26, s{sW}, {96*896}
          s_sub_u32 s3, s26, s3
          v_add_u32 v7, s3, v7""")
    poll(a, 10, 7)
    gbar(a, 0, B_G3_DONE + 4)
    stamp(a, 10)
    LA4, RA = opt("la4", 12), 14
    PB = opt("pb16", 1); NPS = 8 >> PB
    OR_ = lambda u: 168 + 8*u if u < 7 else 240
    PD, EP = 112, 128
    q = []
    def after(tag):
        return len(q) - 1 - max(i for i, x in enumerate(q) if x == tag)
    def al(u):
        a(f"buffer_load_dwordx4 {v(AR + 4*(u % RA), 4)}, v4, {s(WD,4)}, s{sKA} offen offset:{(u&3)*1024}{SC}"); q.append(("a", u))
        if (u & 3) == 3 and u < 55: wrapinc(a, sKA, 4096, 56*1024)
    def rd(m):
        s_, b = m >> 1, m & 1
        if m == 64: a("v_add_u32 v2, 0x10000, v2\nv_add_u32 v3, 0x10000, v3")
        for e in range(2): a(f"ds_read_b64_tr_b16 {v(WF + 4*(m & 7) + 2*e, 2)}, v{2+b} offset:{(s_ & 31)*2048 + e*1024}")
    def wo(u):
        a(f"s_add_u32 m0, s{sM}, {u*1024}\ns_mov_b32 s3, {u*8*896}\nbuffer_load_dwordx4 v7, {s(WB_,4)}, s3 offen lds"); q.append(("w", u))
    def ol(u):
        for aa in range(2):
            a(f"buffer_load_dwordx4 {v(OR_(u)+4*aa,4)}, v{12+aa}, {s(WD,4)}, {'0' if u < 4 else 's%d' % sL} offen offset:{(u&3)*1024}{SC}"); q.append(("o", u))
    assert ROT
    I0 = opt("i0", 2); nxt = [8 + I0]
    for u in range(8, 8 + I0): al(u)
    a(f"""s_mul_i32 s{sM}, s{sW}, 15360
          s_movk_i32 s{sL}, 4096
          s_lshl_b32 s3, s{sT}, 5
          s_lshl_b32 s26, s{sW}, 3
          s_add_u32 s3, s3, s26
          s_lshl_b32 s3, s3, 10
          s_add_u32 s3, s3, {OF}
          v_add_u32 v12, s3, v0
          v_xor_b32 v13, {32*1024}, v12
          s_setprio {opt('pf', 0)}""")
    D4 = 6
    S_ARR, S_WO, S_FL, S_CHK = 31, opt("swo", 40), opt("sfl", 54), 99
    for m in range(D4): rd(m)
    for m in range(112):
        s_, b = m >> 1, m & 1
        if b == 0: a("s_waitcnt " + (f"vmcnt({after(('a', s_))}) " if s_ >= 8 else "") + f"lgkmcnt({2*max(0, min(D4 - 2, 110 - m))})")
        a(f"{MF} {v(ACC+16*b,16)}, {v(WF + 4*(m & 7), 4)}, {v(AR + 4*(s_ % RA) if s_ >= 8 else OWN + 4*s_, 4)}, {'0' if s_ == 0 else v(ACC+16*b,16)}")
        if m + D4 < 112: rd(m + D4)
        if b == 1:
            if opt("g4s", 0) and s_ in (7, 8, 30, 36, 51): stamp(a, {7: 2, 8: 3, 30: 12, 36: 13, 51: 4}[s_])
            for _ in range(opt("i1", 2) if s_ < 8 else 1):
                if nxt[0] < min(56, max(s_, 7) + 1 + LA4): al(nxt[0]); nxt[0] += 1
            if s_ == S_ARR: garrive(a, 0)
            if s_ == S_WO: gwait(a, 0, B_G3_DONE + 8)
            if S_WO <= s_ < S_WO + 15: wo(s_ - S_WO)
            if s_ == S_FL:
                a(f"buffer_load_dword v15, v14, {s(WD,4)}, 0 offen sc1"); q.append("f")
    a(f"s_setprio {opt('pb', 1)}")
    stamp(a, 11)
    a(f"""s_lshl_b32 s{sX}, s2, 7
          s_add_u32 s{sX}, s{sX}, {FQ}
          s_lshl_b32 s3, s{sFT}, 6
          s_add_u32 s26, s{sM}, 0xffff0000
          v_xor_b32 v2, s3, v2
          v_xor_b32 v3, s3, v3
          v_add_u32 v2, s26, v2
          v_add_u32 v3, s26, v3
          s_xor_b32 s3, s{sRB}, 1
          s_mul_i32 s3, s3, 7
          s_add_u32 s3, s3, s{sCB}
          s_lshl_b32 s3, s3, 1
          s_and_b32 s26, s{sW}, 1
          s_add_u32 s3, s3, s26
          s_lshl_b32 s3, s3, {13 - PB}
          s_add_u32 s3, s3, {PART}
          s_cmp_eq_u32 s{sFT}, 0
          s_cselect_b32 s3, {OOB}, s3
          s_add_u32 s26, s3, 4096""")
    woff2 = lambda u: (28*(u >> 1) + 16*(u & 1)) * 128
    if PB:
        for i in range(16):
            a(f"v_cvt_pk_bf16_f32 v{PD+i}, v{ACC+2*i}, v{ACC+2*i+1}")
            if (i & 3) == 3: a(f"buffer_store_dwordx4 {v(PD+i-3,4)}, v0, {s(WD,4)}, s3 offen offset:{(i>>2)*1024}{SC}")
    else:
        for i in range(8): a(f"buffer_store_dwordx4 {v(ACC+4*i,4)}, v0, {s(WD,4)}, s{3 if i < 4 else 26} offen offset:{(i&3)*1024}{SC}")
    a(f"""s_mov_b32 s{sKA}, 0
          s_waitcnt vmcnt({NPS})
          v_cmp_eq_u32 vcc, 0, v15
          s_cbranch_vccz B_oready
          s_waitcnt vmcnt(0)""")
    signal(a, sX, C_SQ)
    a(f"s_mov_b32 s{sKA}, 1")
    poll(a, 14, 4)
    a.label("B_oready")
    for u in range(8): ol(u)
    stamp(a, 15)
    for u in range(3): wreads(a, WF, u, woff2(u))
    a(f"""s_mul_i32 s27, s{sRB}, 7
          s_add_u32 s27, s27, s{sCB}
          s_lshl_b32 s27, s27, 1
          s_and_b32 s26, s{sW}, 1
          s_add_u32 s27, s27, s26
          s_lshl_b32 s27, s27, 1
          s_add_u32 s27, s27, s{sFT}
          s_lshl_b32 s27, s27, {12 - PB}
          s_add_u32 s{sK}, s27, {PART}
          s_xor_b32 s3, s2, 1
          s_lshl_b32 s3, s3, 7
          s_add_u32 s3, s3, {FQ}
          v_mov_b32 v14, s3
          s_cmp_eq_u32 s{sFT}, 0
          s_cbranch_scc1 B_keep""")
    for i in range(32): a(f"v_mov_b32 v{ACC+i}, 0")
    a.label("B_keep")
    a(f"s_waitcnt vmcnt(16)\ns_cmp_lg_u32 s{sKA}, 0\ns_cbranch_scc1 B_sigd")
    signal(a, sX, C_SQ)
    a.label("B_sigd")
    for u in range(8):
        a(f"s_waitcnt vmcnt({2*(7 - u)}) lgkmcnt({4*min(2, 7 - u)})")
        for aa in range(2):
            for b in range(2):
                j = 2*aa + b
                a(f"{MF} {v(ACC+16*j,16)}, {v(WF+8*(u&3)+4*b,4)}, {v(OR_(u)+4*aa,4)}, {'0' if (u == 0 and aa) else v(ACC+16*j,16)}")
        if u + 3 < 8: wreads(a, WF, (u+3) & 3, woff2(u+3))
    a(f"buffer_load_dword v15, v14, {s(WD,4)}, 0 offen sc1")
    if opt("ts", 0): stamp(a, 2)
    def region3(d, j):
        a(f"s_xor_b32 s{d}, s{sW}, {(j >> 1) + 2*(j & 1)}\ns_mul_i32 s{d}, s{d}, 15360\ns_add_u32 s{d}, s{d}, {WOB}")
    srd(a, XS, 20, 2048 * 896)
    OSC = ["", " sc1", " nt"][opt("osc", 2)]
    OT = WOB + 4*15360
    a(f"""v_and_b32 v4, 31, v1
          s_and_b32 s26, s{sW}, 1
          s_lshl_b32 s26, s26, 5
          v_add_u32 v4, s26, v4
          v_mul_u32_u24 v4, 144, v4
          v_lshrrev_b32 v9, 5, v1
          v_lshl_add_u32 v4, v9, 3, v4
          s_lshl_b32 s26, s{sFT}, 6
          s_add_u32 s26, s26, {OT}
          v_add_u32 v4, s26, v4
          v_lshrrev_b32 v6, 3, v1
          s_lshl_b32 s26, s{sW}, 4
          v_add_u32 v6, s26, v6
          v_and_b32 v9, 7, v1
          v_mul_u32_u24 v5, 144, v6
          v_lshl_add_u32 v5, v9, 4, v5
          v_add_u32 v5, {OT}, v5
          v_mul_u32_u24 v6, 896, v6
          v_lshl_add_u32 v6, v9, 4, v6
          s_mul_i32 s27, s{sRB}, {64*896}
          s_lshl_b32 s26, s{sCB}, 7
          s_add_u32 s27, s27, s26
          s_add_u32 s{sX}, s27, {8*896}""")
    def fetch_partial():
        a("s_waitcnt vmcnt(0)\nv_cmp_eq_u32 vcc, 0, v15\ns_cbranch_vccz B_pready")
        poll(a, 14, 1)
        a.label("B_pready")
        for i in range(4 >> PB): a(f"buffer_load_dwordx4 {v(PD+16*PB+4*i,4)}, v0, {s(WD,4)}, s{sK} offen offset:{i*1024}{SC}")
    reduce3(a, ACC, sM, region3, 0, B_G3_DONE + 12, True, fetch_partial)
    if opt("ts", 0): stamp(a, 3)
    for i in range(16): a(f"v_add_f32 v{ACC+i}, v{ACC+i}, v{RES+i}")
    a("s_waitcnt vmcnt(0)")
    if PB: unpack(a, PD, PD + 16, 8)
    for i in range(16): a(f"v_add_f32 v{ACC+i}, v{ACC+i}, v{PD+i}")
    if opt("ts", 0): stamp(a, 12)
    for i in range(8): a(f"v_cvt_pk_bf16_f32 v{EP+i}, v{ACC+2*i}, v{ACC+2*i+1}")
    for j in range(4): a(f"ds_write_b64 v4, {v(EP+2*j,2)} offset:{16*j}")
    gbar(a, 0, B_G3_DONE + 16)
    if opt("ts", 0): stamp(a, 13)
    a(f"""ds_read_b128 {v(EP,4)}, v5
          ds_read_b128 {v(EP+4,4)}, v5 offset:{8*144}
          s_waitcnt lgkmcnt(1)
          buffer_store_dwordx4 {v(EP,4)}, v6, {s(XS,4)}, s27 offen{OSC}
          s_waitcnt lgkmcnt(0)
          buffer_store_dwordx4 {v(EP+4,4)}, v6, {s(XS,4)}, s{sX} offen{OSC}""")
    stamp_out2(a)
    a("s_endpgm")

def stamp_out2(a):
    if not common.STAMPS: return
    a("s_waitcnt vmcnt(0)")
    common.stamp(a, 6); common.stamp(a, 7, True)
    a("s_waitcnt lgkmcnt(0)")
    for i in range(16): a(f"v_mov_b32 v{16+i}, s{64+2*i}")
    a(f"""s_lshl_b32 s3, s2, 3
          s_add_u32 s3, s3, s60
          s_lshl_b32 s3, s3, 6
          s_add_u32 s3, s3, {TS}
          v_mov_b32 v8, 0""")
    for j in range(4): a(f"buffer_store_dwordx4 v[{16+4*j}:{19+4*j}], v8, {s(WD,4)}, s3 offen offset:{16*j}")

def p1stamps():
    return common.STAMPS and opt("p1s", 0)

def build(name):
    a = A()
    a.label("K_start")
    a("s_cmp_ge_u32 s2, 256\ns_cbranch_scc1 K_end")
    load_args(a)
    a(f"""v_and_b32 v1, 63, v0
          v_lshrrev_b32 v8, 6, v0
          s_mov_b32 s59, {fb(2.0**100)}
          v_readfirstlane_b32 s60, v8
          v_lshlrev_b32 v0, 4, v1
          s_and_b32 s{sW}, s60, 3
          s_cmp_ge_u32 s60, 4""")
    if opt("bfirst", 1):
        a("s_cbranch_scc0 K_rolea")
        p1b(a)
        a("s_branch K_roleb")
        a.label("K_rolea")
        p1a(a)
        att(a)
        a.label("K_roleb")
        roleb(a)
    else:
        a("s_cbranch_scc1 K_roleb")
        p1a(a)
        att(a)
        a.label("K_roleb")
        p1b(a)
        roleb(a)
    a.label("K_end")
    a("s_endpgm")
    a.label("K_last")
    return a

if __name__ == "__main__":
    if "stamp" in sys.argv[1]: common.STAMPS = True
    if "mini" in sys.argv[1]: common.STAMPS = common.MINI = True
    name = "parallel_sum__mha_block__mixer_s_mlp__prompt_kernel"
    HDR = open("parallel_sum__mha_block__mixer_s_mlp__prompt.s.ref").read().split("; Override launch")[0]
    DOC = """;
"""
    out = HDR + "; @launch grid=(256,1,1) block=(512,1,1) lds=163840\n" + DOC + '.amdgcn_target "amdgcn-amd-amdhsa--gfx950"\n'
    out += kernel_head(name) + build(name).text() + kernel_desc(name, vgpr=256, sgpr=102)
    open(sys.argv[1], "w").write(out)
```

```python
import sys
import common
from common import *

FLG = 0x1550000
FP, F2, F3, FA, FQ = FLG, FLG + 0x8000, FLG + 0x10000, FLG + 0x18000, FLG + 0x20000
NINIT = 20
PART = 0x1600000
WS_END = 0x1A00000
sFT = 52
CS3P = 0x800000
XS, WA, WD, WB_ = 28, 32, 36, 40
sW, sSPIN = 46, 58
SC = " sc1"
CNT = 156 * 1024
C_B, C_A, C_S1, C_S2, C_S3, C_SA, C_W, C_X, C_SQ = 0, 4, 8, 12, 16, 20, 24, 28, 32
SPIN_MAX = 1 << 16
import os
OPT = dict(x.split("=") for x in os.environ.get("MKOPT", "").split(",") if x)
def opt(k, d): return int(OPT.get(k, d))
SLEEP = opt("sleep", 1)
DEBUG = "dbg" in sys.argv[1] if len(sys.argv) > 1 else False


def poll(a, vaddr, nlanes, srdreg=WD, soff="0"):
    L, D = a.newlabel("PL"), a.newlabel("PD")
    a(f"s_mov_b32 s{sSPIN}, {SPIN_MAX}")
    a(f"s_mov_b64 exec, {(1 << nlanes) - 1}" if nlanes <= 6 else f"s_bfm_b64 exec, {nlanes}, 0")
    a.label(L)
    a(f"""buffer_load_dword v9, v{vaddr}, {s(srdreg,4)}, {soff} offen sc1
          s_waitcnt vmcnt(0)
          v_cmp_eq_u32 vcc, 0, v9
          s_cbranch_vccz {D}
          s_sleep {SLEEP}
          s_sub_u32 s{sSPIN}, s{sSPIN}, 1
          s_cmp_lg_u32 s{sSPIN}, 0
          s_cbranch_scc1 {L}""")
    a.label(D)
    a("s_mov_b64 exec, -1")
    jitter(a)

TF = ["", " sc1", " nt", " sc0 sc1"][opt("tf", 0)]
SCB = "" if opt("local", 0) else " sc1"
def signal(a, soff, cnt, sc=" sc1", last=3):
    jitter(a)
    a(f"""s_mov_b64 exec, 1
          v_mov_b32 v8, {CNT + cnt}
          v_mov_b32 v9, 1
          ds_add_rtn_u32 v8, v8, v9
          s_waitcnt lgkmcnt(0)
          v_readfirstlane_b32 s26, v8
          v_mov_b32 v8, 0
          s_cmp_eq_u32 s26, {last}
          s_cselect_b32 s26, s{soff}, {OOB}
          buffer_store_dword v9, v8, {s(WD,4)}, s26 offen{sc}
          s_mov_b64 exec, -1""")

JIT = [0]
def jitter(a):
    if not opt("jit", 0): return
    JIT[0] += 1
    L = f"JT_{JIT[0]}"
    a(f"""s_mul_i32 s100, s2, {37 + 2*JIT[0]}
          s_add_u32 s100, s100, s60
          s_mul_i32 s100, s100, {101 + opt("jit", 0)}
          s_bitcmp1_b32 s100, {3 + JIT[0] % 3}
          s_cbranch_scc0 {L}
          s_sleep {20 + 13*(JIT[0] % 7)}""")
    a.label(L)

def garrive(a, off, field=0):
    jitter(a)
    a(f"""s_mov_b64 exec, 1
          v_mov_b32 v8, {CNT + off}
          v_mov_b32 v9, {1 << (4*field)}
          ds_add_u32 v8, v9
          s_mov_b64 exec, -1""")

def gwait(a, off, target, va=8, sr=3, field=None):
    L, D = a.newlabel("GL"), a.newlabel("GD")
    a(f"s_mov_b32 s{sSPIN}, {SPIN_MAX * 8}\nv_mov_b32 v{va}, {CNT + off}")
    a.label(L)
    a(f"""ds_read_b32 v{va+1}, v{va}
          s_sub_u32 s{sSPIN}, s{sSPIN}, 1
          s_cbranch_scc1 {D}
          s_waitcnt lgkmcnt(0)
          v_readfirstlane_b32 s{sr}, v{va+1}
          {"" if field is None else f"s_bfe_u32 s{sr}, s{sr}, {0x40000 + 4*field}"}
          s_cmp_lt_u32 s{sr}, {target}
          s_cbranch_scc1 {L}""")
    a.label(D)
    a("s_waitcnt lgkmcnt(0)")
    jitter(a)

def gbar(a, off, target):
    a("s_waitcnt lgkmcnt(0)")
    garrive(a, off); gwait(a, off, target)

def kloop(a, ACC, WF, XR, vA, tiles, offs, pre, perm, fill=(), R=8, D=6, cs=None):
    ops = [(s_, t) for s_ in range(28) for t in (tiles if s_ < 27 else pre.get("lastorder", tiles))]
    N = len(ops); fill = list(fill); done = 0
    def rd(m):
        s_, t = ops[m]
        if (s_ & 3) == 0 and t == tiles[0]:
            for x in pre.get(s_ >> 2, []): a(x)
        for e in range(2):
            row = 16 * (s_ & 3) + (8 * e if perm else 4 * e)
            a(f"ds_read_b64_tr_b16 {v(WF + 4*(m % R) + 2*e, 2)}, v{vA+t} offset:{offs(s_ >> 2) + row*256 if offs else s_*2048 + e*1024}")
    for m in range(D): rd(m)
    f0 = pre.get("fill0", 1)
    per = max(1, -(-len(fill) // (pre.get("fillend", N - 1) - f0)))
    for m, (s_, t) in enumerate(ops):
        if (s_ & 3) == 0 and t == tiles[0]:
            for x in pre.get(("x", s_ >> 2), []): a(x)
        if t == tiles[0]:
            for x in pre.get(("s", s_), []): a(x)
        G = pre.get("G", 1)
        if m % G == 0: a(f"s_waitcnt lgkmcnt({2*max(0, min(D - G, N - G - m))})")
        if t < 4: a(f"{MF} {v(ACC+16*t,16)}, {v(WF + 4*(m % R), 4)}, {v(XR(s_) if callable(XR) else XR+4*s_,4)}, {'0' if s_ == 0 else v(ACC+16*t,16)}")
        elif len(cs) == 3: a(f"{MF} {v(cs[0],16)}, {v(cs[1],4)}, {v(WF + 4*(m % R), 4)}, {'0' if s_ == 0 else v(cs[0],16)}")
        else: a(f"v_mfma_f32_16x16x32_bf16 {v(cs[0],4)}, {v(cs[1],4)}, {v(WF + 4*(m % R), 4)}, {'0' if s_ == 0 else v(cs[0],4)}")
        if m + D < N: rd(m + D)
        if (s_ & 3) == 0 and t == tiles[0]:
            for x in pre.get(("y", s_ >> 2), []): a(x)
        if t == tiles[min(1, len(tiles) - 1)]:
            for x in pre.get(("t", s_), []): a(x)
        for x in pre.get(("m", m), []): a(x)
        if m >= f0:
            for x in fill[done:done + per]: a(x)
            done += per
    for x in fill[done:]: a(x)

def kburst(a, ACC, WF, XR, vA, offs, pre, fill=()):
    fill = list(fill); per = -(-len(fill) // 26); done = 0
    def rd(s_):
        if (s_ & 3) == 0:
            for x in pre.get(s_ >> 2, []): a(x)
        for t in range(4):
            for e in range(2):
                a(f"ds_read_b64_tr_b16 {v(WF + 16*(s_ & 1) + 4*t + 2*e, 2)}, v{vA+t} offset:{offs(s_ >> 2) + (16*(s_ & 3) + 8*e)*256}")
    rd(0); rd(1)
    for s_ in range(28):
        if (s_ & 3) == 0:
            for x in pre.get(("x", s_ >> 2), []): a(x)
        a(f"s_waitcnt lgkmcnt({8 if s_ < 27 else 0})")
        for t in range(4):
            a(f"{MF} {v(ACC+16*t,16)}, {v(WF + 16*(s_ & 1) + 4*t, 4)}, {v(XR+4*s_,4)}, {'0' if s_ == 0 else v(ACC+16*t,16)}")
        if s_ + 2 < 28: rd(s_ + 2)
        if s_:
            for x in fill[done:done + per]: a(x)
            done += per

def tr_addrs(a, vA, sTS, base, perm, which=(0, 1, 2, 3, 4)):
    a(f"""v_lshrrev_b32 v8, 5, v1
          v_bfe_u32 v9, v1, 2, 2
          v_bfe_u32 v10, v1, 4, 1
          v_and_b32 v11, 3, v1
          v_lshl_add_u32 v10, v10, 2, v11
          v_lshl_add_u32 v8, v8, {2 if perm else 3}, v9
          v_lshlrev_b32 v8, 8, v8
          v_add_u32 v8, {base}, v8
          v_lshlrev_b32 v9, 2, v9""")
    for t in which:
        a(f"s_mul_i32 s26, {sTS}, {t}" if t < 4 else f"s_mul_i32 s26, {sTS}, s{sW}")
        a(f"""v_add_u32 v11, s26, v10
              v_lshrrev_b32 v12, 1, v11
              v_add_u32 v12, v12, v9
              v_and_b32 v12, 15, v12
              v_and_b32 v11, 1, v11
              v_lshlrev_b32 v11, 3, v11
              v_lshl_add_u32 v11, v12, 4, v11
              v_add_u32 v{vA+t}, v8, v11""")

def cs_publish(a, CS, T, xch):
    a(f"""v_cvt_pk_bf16_f32 v{T}, v{CS}, v{CS}
          v_and_b32 v{T+1}, 0xffff0000, v{T}
          v_sub_f32 v{T+1}, v{CS}, v{T+1}
          v_cvt_pk_bf16_f32 v{T}, v{CS}, v{T+1}
          v_and_b32 v10, 31, v1
          v_lshlrev_b32 v10, 2, v10
          v_add_u32 v10, {xch}, v10
          s_lshl_b32 s26, s{sW}, 7
          v_add_u32 v9, s26, v10
          ds_write_b32 v9, v{T}""")

def mean_fix(a, ACC, T, src, vMU0, vMU1, tiles=(0, 1, 2, 3)):
    n = len(tiles)
    a(f"v_mov_b32 v{T+4*n}, v{vMU0}\nv_mov_b32 v{T+4*n+1}, v{vMU1}\nv_mov_b32 v{T+4*n+2}, 0\nv_mov_b32 v{T+4*n+3}, 0")
    for i, t in enumerate(tiles):
        if src(t) != T + 4*i: a(f"v_mov_b32 v{T+4*i}, v{src(t)}")
        a(f"v_and_b32 v{T+4*i+1}, 0xffff, v{src(t)}\nv_mov_b32 v{T+4*i+2}, 0\nv_mov_b32 v{T+4*i+3}, 0")
    for i, t in enumerate(tiles): a(f"{MF} {v(ACC+16*t,16)}, {v(T+4*i,4)}, {v(T+4*n,4)}, {v(ACC+16*t,16)}")

def mu_frag(a, vmu, lo_en, d0, d1):
    a(f"""v_cvt_pk_bf16_f32 v{d0}, -v{vmu}, -v{vmu}
          v_and_b32 v8, 0xffff0000, v{d0}
          v_sub_f32 v8, -v{vmu}, v8
          v_cvt_pk_bf16_f32 v{d1}, v8, 0
          v_and_b32 v{d1}, {lo_en}, v{d1}
          v_lshrrev_b32 v8, 5, v1
          v_add_u32 v8, -1, v8
          v_and_b32 v{d0}, v8, v{d0}
          v_and_b32 v{d1}, v8, v{d1}""")

def gelu_consts(a, R, DEN):
    a(f"""v_mul_f32 v10, {fb(GK1)}, v{R}
          v_mul_f32 v12, v{R}, v{R}
          v_mul_f32 v12, v12, v{R}
          v_mul_f32 v12, {fb(GK2)}, v12
          v_mov_b32 v14, v{DEN}""")

def gelu8(regs0, K1, K2, IS, T, out):
    L = []
    for i in range(8): L.append(f"v_mul_f32 v{T+i}, v{regs0+i}, v{regs0+i}")
    for i in range(8): L.append(f"v_fma_f32 v{T+i}, v{T+i}, v{K2}, v{K1}")
    for i in range(8): L.append(f"v_mul_f32 v{T+i}, v{T+i}, v{regs0+i}")
    for i in range(8): L.append(f"v_exp_f32 v{T+i}, v{T+i}")
    for i in range(8): L.append(f"v_fma_f32 v{T+i}, v{T+i}, v{IS}, v{IS}")
    for i in range(8): L.append(f"v_rcp_f32 v{T+i}, v{T+i}")
    for i in range(8): L.append(f"v_mul_f32 v{T+i}, v{T+i}, v{regs0+i}")
    for i in range(4): L.append(f"v_cvt_pk_bf16_f32 v{out+i}, v{T+2*i}, v{T+2*i+1}")
    return L

def wrapinc(a, sreg, step, lim):
    a(f"s_add_u32 s{sreg}, s{sreg}, {step}\ns_cmp_eq_u32 s{sreg}, {lim}\ns_cselect_b32 s{sreg}, 0, s{sreg}")

def reduce_addrs(a, VA, sM, region):
    a(f"v_add_u32 v{VA}, s{sM}, v0")
    for j in range(1, 4):
        region(26, j)
        a(f"v_add_u32 v{VA+j}, s26, v0")

def reduce3(a, ACC, VA, cnt_off, target, pre=None, mid=None):
    for j in range(1, 4):
        for i in range(4): a(f"ds_write_b128 v{VA}, {v(ACC+16*j+4*i,4)} offset:{(j-1)*4096 + i*1024}")
    a("s_waitcnt lgkmcnt(0)")
    garrive(a, cnt_off)
    if pre: pre()
    gwait(a, cnt_off, target)
    for j in range(1, 4):
        for i in range(4): a(f"ds_read_b128 {v(ACC+16*j+4*i,4)}, v{VA+j} offset:{(j-1)*4096 + i*1024}")
    if mid: mid()
    for j in range(1, 4):
        a(f"s_waitcnt lgkmcnt({4*(3-j)})")
        for i in range(16): a(f"v_add_f32 v{ACC+i}, v{ACC+i}, v{ACC+16*j+i}")

def reduce2(a, ACC, VA, cnt_off, target, pre=None, mid=None):
    for i in range(4): a(f"ds_write_b128 v{VA}, {v(ACC+16+4*i,4)} offset:{i*1024}")
    a("s_waitcnt lgkmcnt(0)")
    garrive(a, cnt_off)
    if pre: pre()
    gwait(a, cnt_off, target)
    for i in range(4): a(f"ds_read_b128 {v(ACC+16+4*i,4)}, v{VA+1} offset:{i*1024}")
    if mid: mid()
    for i in range(16):
        if (i & 3) == 0: a(f"s_waitcnt lgkmcnt({3 - (i >> 2)})")
        a(f"v_add_f32 v{ACC+i}, v{ACC+i}, v{ACC+16+i}")

def pair_addrs(a, VA, base):
    a(f"""s_lshl_b32 s26, s{sW}, 12
          s_add_u32 s26, s26, {base}
          v_add_u32 v{VA}, s26, v0
          v_xor_b32 v{VA+1}, 8192, v{VA}""")

def reduce3c(a, ACC, sM, region, cnt_off, target):
    BL = 3712
    a(f"""v_add_u32 v10, s{sM}, v0
          v_lshlrev_b32 v14, 2, v1
          v_add_u32 v14, {3584 - 128}, v14
          v_add_u32 v15, s{sM}, v14""")
    for j in range(1, 4):
        for i in range(3): a(f"ds_write_b128 v10, {v(ACC+16*j+4*i,4)} offset:{(j-1)*BL + i*1024}")
    a("s_mov_b64 exec, 0xffffffff")
    for j in range(1, 4): a(f"ds_write_b128 v10, {v(ACC+16*j+12,4)} offset:{(j-1)*BL + 3072}")
    a("s_not_b64 exec, exec")
    for j in range(1, 4): a(f"ds_write_b32 v15, v{ACC+16*j+12} offset:{(j-1)*BL}")
    a("s_mov_b64 exec, -1")
    for j in range(1, 4):
        region(26, j)
        a(f"v_add_u32 v{10+j}, s26, v0\nv_add_u32 v{4+j}, s26, v14")
    gbar(a, cnt_off, target)
    a("s_mov_b64 exec, 0xffffffff")
    for j in range(1, 4): a(f"ds_read_b128 {v(ACC+16*j+12,4)}, v{10+j} offset:{(j-1)*BL + 3072}")
    a("s_not_b64 exec, exec")
    for j in range(1, 4): a(f"ds_read_b32 v{ACC+16*j+12}, v{4+j} offset:{(j-1)*BL}")
    a("s_mov_b64 exec, -1")
    for j in range(1, 4):
        for i in range(3): a(f"ds_read_b128 {v(ACC+16*j+4*i,4)}, v{10+j} offset:{(j-1)*BL + i*1024}")
    for j in range(1, 4):
        a(f"s_waitcnt lgkmcnt({3*(3-j)})")
        for i in range(16): a(f"v_add_f32 v{ACC+i}, v{ACC+i}, v{ACC+16*j+i}")

def unpack(a, dst, src, n):
    for i in range(n):
        a(f"v_lshlrev_b32 v{dst+2*i}, 16, v{src+i}\nv_and_b32 v{dst+2*i+1}, 0xffff0000, v{src+i}")

NBAR_P1 = 10
XB = 112 * 1024
XCH = XB + 16384
def p1a(a):
    a(f"s_setprio {opt('pa1', 2)}")
    ACC, CS, WF, XR, TMP = 16, 80, 96, 136, 248
    sRB, sCB, sTY, sSUB, sTS, sLO, sT = 44, 45, 47, 48, 50, 55, 56
    a(f"""s_and_b32 s26, s2, 7
          s_lshr_b32 s27, s2, 3
          s_lshr_b32 s{sRB}, s26, 1
          s_lshl_b32 s{sRB}, s{sRB}, 2
          s_and_b32 s3, s27, 3
          s_add_u32 s{sRB}, s{sRB}, s3
          s_and_b32 s{sCB}, s26, 1
          s_lshl_b32 s{sCB}, s{sCB}, 3
          s_lshr_b32 s3, s27, 2
          s_add_u32 s{sCB}, s{sCB}, s3
          s_lshr_b32 s{sTY}, s{sCB}, 2
          s_and_b32 s{sSUB}, s{sCB}, 3
          s_cmp_eq_u32 s{sTY}, 3
          s_cselect_b32 s{sTS}, 8, 7
          s_cselect_b32 s{sLO}, -1, 0
          s_lshl_b32 s{sT}, s{sRB}, 2
          s_add_u32 s{sT}, s{sT}, s{sW}""")
    tr_addrs(a, 2, f"s{sTS}", 0, perm=False)
    a(f"""v_and_b32 v8, 15, v1
          v_bfe_u32 v9, v1, 4, 1
          v_cmp_eq_u32 vcc, v8, v9
          v_mov_b32 v8, 0x3f803f80
          v_cndmask_b32 v{CS+4}, 0, v8, vcc
          v_mov_b32 v{CS+5}, v{CS+4}
          v_mov_b32 v{CS+6}, v{CS+4}
          v_mov_b32 v{CS+7}, v{CS+4}
          v_and_b32 v8, 31, v1
          v_lshrrev_b32 v9, 5, v1
          v_bfe_u32 v10, v1, 1, 3
          v_xor_b32 v9, v9, v10
          v_lshlrev_b32 v8, 7, v8
          v_lshl_add_u32 v8, v9, 4, v8
          s_lshl_b32 s3, s{sW}, 12
          s_add_u32 s3, s3, {XB}
          v_add_u32 v{CS+8}, s3, v8
          v_xor_b32 v{CS+9}, 32, v{CS+8}
          v_xor_b32 v{CS+10}, 64, v{CS+8}
          v_xor_b32 v{CS+11}, 96, v{CS+8}
          s_waitcnt lgkmcnt(0)""")
    srd(a, WD, 24, WS_END)
    ONE = TMP
    M0_, M1_, R, DEN = TMP+4, TMP+5, TMP+6, TMP+7
    a(f"""v_and_b32 v10, 31, v1
          v_lshlrev_b32 v10, 2, v10
          v_add_u32 v10, {XCH}, v10
""")
    stamp(a, 12)
    pre = {}
    for c in range(7):
        pre[c] = ["s_barrier"] + [f"ds_read_b128 {v(XR + 16*(c&1) + 4*i, 4)}, v{CS+8+i} offset:{(c % 3)*16384}" for i in range(4)]
        if opt("sqv", 0) == 0:
            pre[("y", c)] = [f"v_dot2_f32_bf16 v{12+(i&1)}, v{XR+16*(c&1)+i}, v{XR+16*(c&1)+i}, {'0' if c == 0 and i < 2 else 'v%d' % (12+(i&1))}" for i in range(16)]
    sq = []
    if opt("sqv", 0):
        a("v_mov_b32 v12, 0\nv_mov_b32 v13, 0")
        for s_ in range(28):
            for i in range(4):
                r_ = XR + 16*((s_ >> 2) & 1) + 4*(s_ & 3) + i
                pre[("m", 5*s_ + 1 + i)] = [f"v_lshlrev_b32 v14, 16, v{r_}", f"v_and_b32 v15, 0xffff0000, v{r_}", "v_fmac_f32 v12, v14, v14", "v_fmac_f32 v13, v15, v15"]
    if common.STAMPS:
        for c, st in ((0, 2), (1, 13), (3, 3)):
            g = A(); stamp(g, st); pre[c] = pre[c][:1] + g.l + pre[c][1:]
    pre[4] += [f"v_add_u32 v{2+t}, 0x10000, v{2+t}" for t in range(5)]
    CSB = opt("csb", 0)
    pre["G"] = opt("p1g", 1); pre["lastorder"] = (3, 0, 1, 2) if CSB else (3, 4, 0, 1, 2)
    kloop(a, ACC, WF, lambda s_: XR + 16*((s_ >> 2) & 1) + 4*(s_ & 3), 2, (0, 1, 2, 3) if CSB else (0, 4, 1, 2, 3), lambda c: (c & 3) * 16384, pre, False, [], R=8, D=opt("p1d", 5), cs=(CS, CS+4))
    stamp(a, 4)
    for i in range(0 if CSB else 2):
        a(f"""v_cvt_pk_bf16_f32 v{WF+i}, v{CS+i}, v{CS+i}
              v_and_b32 v{WF+i}, 0xffff0000, v{WF+i}
              v_sub_f32 v{WF+i}, v{CS+i}, v{WF+i}
              v_cvt_pk_bf16_f32 v{WF+i}, v{CS+i}, v{WF+i}""")
    if not CSB:
        a(f"""s_lshl_b32 s26, s{sW}, 7
              v_add_u32 v11, s26, v10
              s_mov_b64 exec, 0xffff
              ds_write2_b32 v11, v{WF}, v{WF+1} offset1:16
              s_mov_b64 exec, -1""")
    a(f"""v_mov_b32 v14, v{ACC+48+12}
          v_mov_b32 v15, v{ACC+48+12}
          v_add_f32 v13, v12, v13
          v_permlane32_swap_b32 v15, v14
          v_mov_b32 v12, v13
          v_permlane32_swap_b32 v13, v12
          v_add_f32 v13, v13, v12
          v_mul_f32 v12, {fb(1/448)}, v14
          v_mul_f32 v13, {fb(1/448)}, v13
          v_fma_f32 v13, -v12, v12, v13
          v_max_f32 v13, 0, v13""")
    bf16r(a, 15, "v13")
    a(f"""v_add_f32 v9, {fb(EPS)}, v13
          v_add_f32 v15, {fb(EPS)}, v15
          v_mov_b32 v14, {fb(EPS)}
          v_fma_f32 v9, v9, v14, v13""")
    bf16r(a, 15, "v15")
    a(f"""v_sqrt_f32 v9, v9
          v_sqrt_f32 v15, v15
          s_waitcnt lgkmcnt(0)
          s_barrier                              ; barrier 7""")
    stamp(a, 14)
    for t in range(4): a(f"ds_read_b32 v{WF+4*t}, v10 offset:{128*t}")
    mu_frag(a, 12, f"s{sLO}", M0_, M1_)
    a(f"v_mov_b32 v14, s{sLO}")
    bf16r(a, 15, "v15")
    bf16r(a, 10, "v12")
    a(f"""v_bfi_b32 v{DEN}, v14, v9, v15
          v_rcp_f32 v{R}, v{DEN}
          s_waitcnt lgkmcnt(0)""")
    mean_fix(a, ACC, WF, lambda t: WF + 4*t, M0_, M1_)
    a(f"""
          s_lshl_b32 s3, s{sT}, 8
          s_add_u32 s3, s3, {ST1}
          s_cmp_eq_u32 s{sCB}, 0
          s_cselect_b32 s3, s3, {OOB}
          v_lshlrev_b32 v8, 3, v1
          v_and_b32 v8, 0xff, v8
          v_mov_b32 v11, v{R}
          buffer_store_dwordx2 v[10:11], v8, {s(WD,4)}, s3 offen{SC}""")
    a(f"""v_lshrrev_b32 v8, 5, v1
          v_add_u32 v8, -1, v8
          s_cmp_eq_u32 s{sTY}, 3
          s_cbranch_scc1 P1_h
          s_cmp_eq_u32 s{sTY}, 0
          s_cselect_b32 s3, {fb(QSCALE)}, 1.0
          v_mul_f32 v10, s3, v{R}
          v_mul_u32_u24 v12, 12, v1
          s_lshl_b32 s3, s{sSUB}, 8
          s_add_u32 s3, s3, s{sT}
          s_movk_i32 s27, 3584
          s_cmp_eq_u32 s{sTY}, 0
          s_cselect_b32 s27, 1792, s27
          s_mul_i32 s3, s3, s27
          s_lshl_b32 s26, s27, 6
          s_cselect_b32 s27, {QF}, {KVF}
          s_add_u32 s3, s3, s27
          s_cmp_eq_u32 s{sTY}, 2
          s_cbranch_scc1 P1_v""".replace("s_lshl_b32 s26, s27, 6", f"s_lshl_b32 s26, s27, 6\ns_mov_b32 s27, {KVF}\ns_cmp_eq_u32 s{sTY}, 0").replace(f"s_cselect_b32 s27, {QF}, {KVF}", f"s_cselect_b32 s27, {QF}, s27"))
    def pack(t):
        for i in range(8): a(f"v_pk_mul_f32 {v(ACC+16*t+2*i,2)}, {v(ACC+16*t+2*i,2)}, v[10:11] op_sel_hi:[1,0]")
        for i in range(8): a(f"v_cvt_pk_bf16_f32 v{XR+8*t+i}, v{ACC+16*t+2*i}, v{ACC+16*t+2*i+1}")
    def put(t, isv=False):
        if isv:
            for f_ in range(2): a(f"buffer_store_dwordx4 {v(XR+8*t+4*f_,4)}, v13, {s(WD,4)}, s3 offen offset:{1792 + f_*896}{SC}")
        else:
            a(f"buffer_store_dwordx4 {v(XR+8*t,4)}, v0, {s(WD,4)}, s3 offen{SC}")
            a(f"v_permlane32_swap_b32 v{XR+8*t+6}, v{XR+8*t+7}")
            a(f"buffer_store_dwordx3 {v(XR+8*t+4,3)}, v12, {s(WD,4)}, s3 offen offset:1024{SC}")
        if t < 3: a("s_add_u32 s3, s3, s26")
    for t in range(4): pack(t); put(t)
    a("s_branch P1_done")
    a.label("P1_v")
    a(f"""s_mul_i32 s27, s{sW}, 9216
          s_add_u32 s27, s27, 0x10000
          v_and_b32 v9, 31, v1
          v_mul_u32_u24 v9, 72, v9
          v_lshrrev_b32 v14, 5, v1
          v_lshl_add_u32 v9, v14, 3, v9
          v_add_u32 v9, s27, v9
          v_bfe_u32 v15, v1, 2, 2
          v_lshl_add_u32 v14, v14, 2, v15
          v_mul_u32_u24 v14, 72, v14
          v_bfe_u32 v15, v1, 4, 1
          v_lshl_add_u32 v14, v15, 5, v14
          v_and_b32 v15, 3, v1
          v_lshl_add_u32 v14, v15, 3, v14
          v_add_u32 v14, s27, v14
          v_lshrrev_b32 v15, 5, v1
          v_lshlrev_b32 v15, 6, v15
          v_sub_u32 v13, v0, v15
          v_and_b32 v15, 31, v1
          v_cmp_gt_u32 vcc, 28, v15
          v_mov_b32 v15, {OOB}
          v_cndmask_b32 v13, v15, v13, vcc""")
    for t in range(5):
        if t < 4:
            pack(t)
            for j in range(4): a(f"ds_write_b64 v9, {v(XR+8*t+2*j,2)} offset:{t*2304 + 16*j}")
        if t:
            a(f"s_waitcnt lgkmcnt({4 if t < 4 else 0})")
            put(t - 1, True)
        if t < 4:
            a("s_waitcnt lgkmcnt(0)")
            for f_ in range(2):
                for e in range(2): a(f"ds_read_b64_tr_b16 {v(XR+8*t+4*f_+2*e,2)}, v14 offset:{t*2304 + (16*f_+8*e)*72}")
    a("s_branch P1_done")
    a.label("P1_h")
    gelu_consts(a, R, DEN)
    a(f"""s_mul_i32 s3, s{sT}, 28
          s_mul_i32 s27, s{sSUB}, 7
          s_add_u32 s3, s3, s27
          s_lshl_b32 s3, s3, 10
          s_add_u32 s3, s3, {HF}
          s_add_u32 s27, s3, 4096""")
    for f in range(7):
        gelu_pairs(a, [ACC + 8*f + 2*i for i in range(4)], 10, 12, 14, WF)
        for i in range(4): a(f"v_cvt_pk_bf16_f32 v{XR+4*f+i}, v{ACC+8*f+2*i}, v{ACC+8*f+2*i+1}")
        a(f"buffer_store_dwordx4 {v(XR+4*f,4)}, v0, {s(WD,4)}, s{3 if f < 4 else 27} offen offset:{(f&3)*1024}{SC}")
    a.label("P1_done")
    garrive(a, C_X, 1)
    stamp(a, 15)
    a(f"""s_waitcnt vmcnt(0)
          s_lshl_b32 s3, s{sCB}, 4
          s_add_u32 s3, s3, s{sRB}
          s_lshl_b32 s3, s3, 7
          s_add_u32 s3, s3, {FP}""")
    signal(a, 3, C_S1, last=7)
    stamp(a, 5)

O_, Q_, S_, E_, P_, KV = 16, 80, 112, 144, 152, 160
sH, sQB, sKV, sN, sMA, sKB = 44, 45, 50, 51, 47, 52
AR_BASE = 112 * 1024

def unit(a, n, q, extra, qk=True):
    Sc, Sn = S_ + 16*(q & 1), S_ + 16*((q+1) & 1)
    nn, nq = (n, q+1) if q < 3 else ((n+1) & 3, 0)
    pn, pq = (n, q-1) if q > 0 else ((n-1) & 3, 3)
    K, Vc, Vp = KV + 16*nn, KV + 16*n + 8, KV + 16*pn + 8
    e = lambda i: a(f"v_exp_f32 v{E_+(i&7)}, v{Sc+i}")
    c = lambda k: a(f"v_cvt_pk_bf16_f32 v{P_+k}, v{E_+((2*k)&7)}, v{E_+((2*k+1)&7)}")
    for x in extra.get(0, []): a(x)
    if qk: a(f"{MF} {v(Sn,16)}, {v(K,4)}, {v(Q_+8*nq,4)}, 0")
    e(0); c(6); e(1); c(7); e(2); e(3)
    a(f"{MF} {v(O_+16*pq,16)}, {v(Vp+4,4)}, {v(P_+4,4)}, {v(O_+16*pq,16)}")
    for x in extra.get(1, []): a(x)
    e(4); c(0); e(5); c(1); e(6); e(7)
    if qk: a(f"{MF} {v(Sn,16)}, {v(K+4,4)}, {v(Q_+8*nq+4,4)}, {v(Sn,16)}")
    for x in extra.get(2, []): a(x)
    e(8); c(2); e(9); c(3); e(10); e(11)
    a(f"{MF} {v(O_+16*q,16)}, {v(Vc,4)}, {v(P_,4)}, {v(O_+16*q,16)}")
    e(12); c(4); e(13); c(5); e(14); e(15)

sKE, sVM, VV = 53, 54, 224
def kvload(slot, f):
    r = KV + 16*slot + 4*f
    if f == 0: return f"buffer_load_dwordx4 {v(r,4)}, v0, {s(WD,4)}, s{sKV} offen{SC}"
    if f == 1: return f"buffer_load_dwordx3 {v(r,3)}, v4, {s(WD,4)}, s{sKV} offen offset:1024{SC}"
    L = f"buffer_load_dwordx4 {v(r,4)}, v{VV}, {s(WD,4)}, s{sKV} offen offset:{1792 + 896*(f - 2)}{SC}"
    return f"s_mov_b64 exec, {s(sVM,2)}\n" + L if f == 2 else L + "\ns_mov_b64 exec, -1"
def kvnext():
    return [f"s_add_u32 s{sKV}, s{sKV}, 3584", f"s_cmp_eq_u32 s{sKV}, s{sKE}", f"s_cselect_b32 s{sKV}, s{sKB}, s{sKV}"]

EARLY = opt("early", 1)
def att(a):
    if p1stamps():
        global stamp
        stamp = lambda *x: None
    a(f"""s_and_b32 s26, s2, 7
          s_lshr_b32 s27, s2, 3
          s_lshl_b32 s{sH}, s26, 1
          s_and_b32 s3, s27, 1
          s_add_u32 s{sH}, s{sH}, s3
          s_lshr_b32 s{sQB}, s27, 1
          s_mul_i32 s{sMA}, s{sW}, 11136
          s_add_u32 s{sMA}, s{sMA}, {AR_BASE}
          s_lshl_b32 s{sKB}, s{sH}, 2
          s_add_u32 s{sKB}, s{sKB}, s{sW}
          s_mul_i32 s{sKB}, s{sKB}, {16*3584}
          s_add_u32 s{sKB}, s{sKB}, {KVF}
          s_add_u32 s{sKE}, s{sKB}, {16*3584}
          s_and_b32 s27, s{sQB}, {3 if EARLY else 15}
          s_mul_i32 s3, s27, {4*3584 if EARLY else 3584}
          s_add_u32 s{sKV}, s{sKB}, s3
          s_mov_b32 s{sVM}, 0x0fffffff
          s_mov_b32 s{sVM+1}, 0x0fffffff
          v_mul_u32_u24 v4, 12, v1
          v_lshrrev_b32 v11, 5, v1
          v_lshlrev_b32 v12, 6, v11
          v_sub_u32 v{VV}, v0, v12
          v_lshlrev_b32 v11, 4, v11
          v_mov_b32 v12, 0x3f803f80
          v_lshrrev_b32 v13, v11, v12
          v_and_b32 v11, 31, v1
          v_cmp_eq_u32 vcc, 28, v11
          v_cndmask_b32 v12, 0, v12, vcc
          s_lshr_b32 s3, s{sH}, 2
          s_lshl_b32 s3, s3, 4
          v_and_b32 v10, 3, v1
          s_lshl_b32 s26, s{sW}, 2
          s_add_u32 s26, s26, s3
          s_add_u32 s26, s26, 64
          v_add_u32 v10, s26, v10
          v_bfe_u32 v11, v1, 2, 1
          v_lshl_add_u32 v10, v11, 6, v10
          s_add_u32 s3, s3, s{sQB}
          v_writelane_b32 v10, s3, 8             ; lane 8: Q
          v_lshlrev_b32 v10, 7, v10
          v_add_u32 v10, {FP}, v10""")
    for i in range(64): a(f"v_mov_b32 v{O_+i}, 0")
    for i in range(8): a(f"v_mov_b32 v{E_+i}, 0\nv_mov_b32 v{P_+i}, 0")
    for n in range(4):
        a(f"v_mov_b32 v{KV+16*n+7}, v13\nv_mov_b32 v{Q_+8*n+7}, 0")
        for i in range(8): a(f"v_mov_b32 v{KV+16*n+8+i}, v12")
    if EARLY:
        a(f"""v_and_b32 v11, 7, v1
              v_lshlrev_b32 v11, 2, v11
              ds_bpermute_b32 v2, v11, v10
              s_lshl_b32 s27, s27, 2
              v_mov_b32 v11, s27
              v_writelane_b32 v11, 32, 2
              s_add_u32 s27, s27, 16
              v_writelane_b32 v11, s27, 1
              ds_bpermute_b32 v10, v11, v10
              s_waitcnt lgkmcnt(0)""")
        poll(a, 10, 3)
    else: poll(a, 10, 9)
    if opt("ayield", 1): gwait(a, C_X, 4, field=0)
    stamp(a, 8)
    for j in range(4):
        a(f"""s_add_u32 s3, s{sW}, {j + 1}
              s_and_b32 s3, s3, 3
              s_lshl_b32 s26, s{sH}, 4
              s_add_u32 s26, s26, s{sQB}
              s_lshl_b32 s26, s26, 2
              s_add_u32 s3, s3, s26
              s_mul_i32 s3, s3, 1792
              s_add_u32 s3, s3, {QF}
              buffer_load_dwordx4 {v(Q_+8*j,4)}, v0, {s(WD,4)}, s3 offen{SC}
              buffer_load_dwordx3 {v(Q_+8*j+4,3)}, v4, {s(WD,4)}, s3 offen offset:1024{SC}""")
        if j == 0:
            for f in range(4): a(kvload(0, f))
            for x in kvnext(): a(x)
    for n in range(1, 3):
        for f in range(4): a(kvload(n, f))
        for x in kvnext(): a(x)
    a(f"""v_add_u32 v10, s{sMA}, v0
          v_lshlrev_b32 v14, 2, v1
          v_add_u32 v14, {3584 - 128}, v14
          v_add_u32 v15, s{sMA}, v14
          v_mov_b32 v8, {CNT + C_B}
          s_lshl_b32 s26, s{sQB}, 2
          s_add_u32 s26, s26, s{sW}
          s_lshl_b32 s26, s26, 4
          s_add_u32 s26, s26, s{sH}
          s_lshl_b32 s62, s26, 11
          s_add_u32 s62, s62, {OF}
          s_lshl_b32 s63, s{sQB}, 4
          s_add_u32 s63, s63, s{sH}
          s_lshl_b32 s63, s63, 7
          s_add_u32 s63, s63, {FA}""")
    for j in range(3):
        a(f"""s_sub_u32 s26, s{sW}, {j + 1}
              s_and_b32 s26, s26, 3
              s_mul_i32 s26, s26, 11136
              s_add_u32 s26, s26, {AR_BASE}
              v_add_u32 v{11+j}, s26, v0
              v_add_u32 v{5+j}, s26, v14""")
    a(f"s_mov_b32 s{sN}, 4\ns_waitcnt vmcnt(14)")
    a(f"{MF} {v(S_,16)}, {v(KV,4)}, {v(Q_,4)}, 0")
    a(f"{MF} {v(S_,16)}, {v(KV+4,4)}, {v(Q_+4,4)}, {v(S_,16)}")
    a(f"s_setprio {opt('pa2', 0)}\ns_waitcnt vmcnt(8)")
    stamp(a, 9)
    a("s_nop 9")
    a(".p2align 3")
    a.label("AT_loop")
    for n in range(4):
        ld = (n + 3) & 3
        kvl = kvload if not opt("nokv", 0) else (lambda a_, b_: "s_nop 0")
        if opt("kvprio", 1):
            e0 = {1: ["s_setprio 3", kvl(ld, 0), kvl(ld, 1)], 2: [kvl(ld, 2), kvl(ld, 3), f"s_setprio {opt('pa2', 0)}"]}
            if opt("kvprio", 1) == 2: e0 = {1: [kvl(ld, 0), kvl(ld, 1)], 2: [kvl(ld, 2), kvl(ld, 3)]}
            if EARLY and n == 0: e0[1].insert(1 if opt("kvprio", 1) == 1 else 0, f"buffer_load_dword v3, v2, {s(WD,4)}, 0 offen sc1")
            if EARLY and n == 1:
                e0[0] = ["s_waitcnt vmcnt(4)", "v_cmp_eq_u32 vcc, 0, v3"]
                e0[1] = ["s_cbranch_vccnz AT_late", "AT_ok:"] + e0[1]
            unit(a, n, 0, e0)
            e1 = {1: kvnext() if n == 0 or not EARLY else kvnext()[:1]}
            if n == 0: e1[2] = [f"s_cmp_eq_u32 s{sN}, 1", f"s_cselect_b32 s{sKV}, {OOB}, s{sKV}"]
            if n == 3: e1[0] = ["ds_read_b32 v9, v8"]; e1[2] = [f"s_cmp_eq_u32 s{sN}, 1"]
            unit(a, n, 1, e1)
            if n == 3: a("s_cbranch_scc1 AT_tail")
            unit(a, n, 2, {})
            ex = {0: ["s_waitcnt vmcnt(8)"], 2: []}
        else:
            unit(a, n, 0, {2: [kvl(ld, 0)]})
            unit(a, n, 1, {1: [kvl(ld, 1)]})
            unit(a, n, 2, {1: [kvl(ld, 2)]})
            ex = {0: ["s_waitcnt vmcnt(7)"], 1: [kvl(ld, 3)], 2: kvnext()}
        if n == 3: ex[2] += [f"s_sub_u32 s{sN}, s{sN}, 1"]
        unit(a, n, 3, ex)
    a("s_branch AT_loop")
    a.label("AT_tail")
    BL = 3712
    a(f"""s_setprio {opt('pa1', 2)}
          s_waitcnt lgkmcnt(0)
          v_readfirstlane_b32 s3, v9
          s_cmp_ge_u32 s3, 8
          s_cbranch_scc1 AT_free""")
    gwait(a, C_B, 8)
    a.label("AT_free")
    wr = lambda j, i: f"ds_write_b128 v10, {v(O_+16*j+4*i,4)} offset:{j*BL + i*1024}"
    unit(a, 3, 2, {0: [wr(0, 0)], 1: [wr(0, 1)], 2: [wr(0, 2)]})
    unit(a, 3, 3, {0: [wr(1, 0)], 1: [wr(1, 1)], 2: [wr(1, 2)]}, qk=False)
    a(f"v_cvt_pk_bf16_f32 v{P_+6}, v{E_+4}, v{E_+5}\nv_cvt_pk_bf16_f32 v{P_+7}, v{E_+6}, v{E_+7}")
    for i in range(3): a(wr(2, i))
    a(f"{MF} {v(O_+48,16)}, {v(KV+48+12,4)}, {v(P_+4,4)}, {v(O_+48,16)}")
    stamp(a, 10)
    a("s_mov_b64 exec, 0xffffffff")
    for j in range(3): a(wr(j, 3))
    a("s_not_b64 exec, exec")
    for j in range(3): a(f"ds_write_b32 v15, v{O_+16*j+12} offset:{j*BL}")
    a("s_mov_b64 exec, -1")
    gbar(a, C_A, 4)
    a("s_mov_b64 exec, 0xffffffff")
    for j in range(3): a(f"ds_read_b128 {v(O_+16*j+12,4)}, v{11+j} offset:{j*BL + 3072}")
    a("s_not_b64 exec, exec")
    for j in range(3): a(f"ds_read_b32 v{O_+16*j+12}, v{5+j} offset:{j*BL}")
    a("s_mov_b64 exec, -1")
    for j in range(3):
        for i in range(3): a(f"ds_read_b128 {v(O_+16*j+4*i,4)}, v{11+j} offset:{j*BL + i*1024}")
    OT_, QT_ = O_ + 48, Q_ + 24
    for j in range(3):
        a(f"s_waitcnt lgkmcnt({3*(2-j)})")
        for i in range(16): a(f"v_add_f32 v{OT_+i}, v{OT_+i}, v{O_+16*j+i}")
    a(f"""v_mov_b32 v10, v{OT_+12}
          v_mov_b32 v11, v{OT_+12}
          v_permlane32_swap_b32 v11, v10
          v_mov_b32 v12, v10
          v_mov_b32 v13, 0""")
    for i in range(16): a(f"v_fma_f32 v{12+(i&1)}, v{OT_+i}, 0, v{12+(i&1)}")
    a(f"""v_add_f32 v12, v12, v13                ; row sum, or NaN if any accumulator is not finite
          v_cmp_le_f32 vcc, {fb(2.0**-80)}, v12
          v_cmp_ge_f32 s[26:27], s59, v12
          s_and_b64 vcc, vcc, s[26:27]
          s_cmp_eq_u64 vcc, -1
          s_cbranch_scc0 AT_slow""".replace("s59", "s59"))
    a.label("AT_norm")
    a(f"""v_rcp_f32 v10, v10
          v_lshrrev_b32 v8, 5, v1
          v_add_u32 v8, -1, v8""")
    for i in range(16): a(f"v_mul_f32 v{OT_+i}, v{OT_+i}, v10")
    for i in range(8): a(f"v_cvt_pk_bf16_f32 v{P_+i}, v{OT_+2*i}, v{OT_+2*i+1}")
    a(f"""v_and_b32 v{P_+6}, v8, v{P_+6}
          v_and_b32 v{P_+7}, v8, v{P_+7}
          buffer_store_dwordx4 {v(P_,4)}, v0, {s(WD,4)}, s62 offen{SC}
          buffer_store_dwordx4 {v(P_+4,4)}, v0, {s(WD,4)}, s62 offen offset:1024{SC}
          s_waitcnt vmcnt(0)""")
    signal(a, 63, 20)
    stamp(a, 11)
    stamp_out2(a)
    a("s_endpgm")
    if EARLY:
        a.label("AT_late")
        poll(a, 2, 8)
        a("s_branch AT_ok")
    a.label("AT_slow")
    a(f"""s_waitcnt vmcnt(0)
          s_mul_i32 s{sKB}, s{sH}, {64*3584}
          s_add_u32 s{sKB}, s{sKB}, {KVF}
          s_mov_b32 s{sKV}, s{sKB}
          s_mov_b32 s{sN}, 64
          v_mov_b32 v12, 0xff800000""")
    a.label("AT_s1")
    a(kvload(0, 0)); a(kvload(0, 1))
    a(f"""s_add_u32 s{sKV}, s{sKV}, 3584
          s_waitcnt vmcnt(0)
          {MF} {v(S_,16)}, {v(KV,4)}, {v(QT_,4)}, 0
          {MF} {v(S_,16)}, {v(KV+4,4)}, {v(QT_+4,4)}, {v(S_,16)}""")
    for i in range(8): a(f"v_max3_f32 v12, v12, v{S_+2*i}, v{S_+2*i+1}")
    a(f"""s_sub_u32 s{sN}, s{sN}, 1
          s_cmp_lg_u32 s{sN}, 0
          s_cbranch_scc1 AT_s1
          v_mov_b32 v13, v12
          v_permlane32_swap_b32 v12, v13
          v_max_f32 v12, v12, v13
          v_cvt_pk_bf16_f32 v13, -v12, -v12
          v_and_b32 v13, 0xffff0000, v13
          v_sub_f32 v12, -v12, v13
          v_cvt_pk_bf16_f32 v14, v12, v12
          v_and_b32 v14, 0xffff0000, v14
          v_sub_f32 v12, v12, v14
          v_cvt_pk_bf16_f32 v13, v13, v14
          v_cvt_pk_bf16_f32 v14, v12, 0
          v_lshrrev_b32 v8, 5, v1
          v_add_u32 v8, -1, v8
          v_bfi_b32 v{QT_+7}, v8, v13, v14
          s_mov_b32 s{sKV}, s{sKB}
          s_mov_b32 s{sN}, 64""")
    for i in range(16): a(f"v_mov_b32 v{OT_+i}, 0")
    a.label("AT_s2")
    for f in range(4): a(kvload(0, f))
    a(f"""s_add_u32 s{sKV}, s{sKV}, 3584
          s_waitcnt vmcnt(0)
          {MF} {v(S_,16)}, {v(KV,4)}, {v(QT_,4)}, 0
          {MF} {v(S_,16)}, {v(KV+4,4)}, {v(QT_+4,4)}, {v(S_,16)}""")
    for i in range(16): a(f"v_exp_f32 v{S_+i}, v{S_+i}")
    for i in range(8): a(f"v_cvt_pk_bf16_f32 v{P_+i}, v{S_+2*i}, v{S_+2*i+1}")
    a(f"""{MF} {v(OT_,16)}, {v(KV+8,4)}, {v(P_,4)}, {v(OT_,16)}
          {MF} {v(OT_,16)}, {v(KV+12,4)}, {v(P_+4,4)}, {v(OT_,16)}
          s_sub_u32 s{sN}, s{sN}, 1
          s_cmp_lg_u32 s{sN}, 0
          s_cbranch_scc1 AT_s2
          v_mov_b32 v10, v{OT_+12}
          v_mov_b32 v11, v{OT_+12}
          v_permlane32_swap_b32 v11, v10
          s_branch AT_norm""")

B_G3_DONE = 24
G2_BASE = 0
H1 = 56 * 1024
W3B = 60 * 1024
XCH3 = CNT + 1024
RES = 224

def p1b(a):
    bst = (lambda i: common.stamp(a, i)) if p1stamps() else (lambda i: None)
    sRB, sCB, sT = 44, 45, 48
    sROW, sWO, sK, sCOL = 49, 50, 51, 52
    WB = 0x1C000
    XT = 232
    def codepf():
        nseg = opt("nseg", 5)
        a(f"""s_lshr_b32 s57, s2, 3
              s_cmp_ge_u32 s57, {nseg}
              s_cbranch_scc1 PB_nopf
              s_cmp_lg_u32 s{sW}, 0
              s_cbranch_scc1 PB_nopf
              s_getpc_b64 s[62:63]""")
        a.label("PB_pc")
        a(f"""s_lshl_b32 s57, s57, 13
              s_sub_u32 s62, s62, PB_pc-K_start
              s_subb_u32 s63, s63, 0
              s_add_u32 s62, s62, s57
              s_addc_u32 s63, s63, 0
              v_lshlrev_b32 v8, 7, v1
              v_add_u32 v9, s57, v8
              v_cmp_gt_u32 vcc, K_last-K_start, v9
              v_mov_b32 v11, s63
              v_add_co_u32 v10, s[98:99], s62, v8
              v_addc_co_u32 v11, s[98:99], 0, v11, s[98:99]
              s_and_saveexec_b64 s[98:99], vcc
              s_cbranch_execz PB_pfx
              global_load_dword v16, v[10:11], off""")
        a.label("PB_pfx")
        a("s_mov_b64 exec, -1")
        a.label("PB_nopf")
    if opt("codepf", 1) == 1: codepf()
    a(f"""s_and_b32 s26, s2, 1
          s_lshl_b32 s26, s26, 3
          s_lshr_b32 s3, s2, 5
          s_add_u32 s26, s26, s3
          s_bfe_u32 s{sK}, s2, 0x20003
          s_lshl_b32 s54, s{sK}, 1
          s_add_u32 s54, s54, s3
          s_mul_i32 s3, s54, 37
          s_lshr_b32 s3, s3, 8
          s_mul_i32 s3, s3, 7
          s_sub_u32 s54, s54, s3
          s_mul_i32 s54, s54, {opt("rotw", 1)}
          s_bfe_u32 s3, s2, 0x20001
          s_lshl_b32 s3, s3, 2
          s_add_u32 s3, s3, s{sK}
          s_lshl_b32 s3, s3, 2
          s_add_u32 s3, s3, s{sW}
          s_lshl_b32 s56, s3, 5
          s_and_b32 s27, s26, 3
          s_lshr_b32 s3, s27, 1
          s_add_u32 s3, s3, 1
          s_sub_u32 s57, 0, s3
          s_bitcmp1_b32 s27, 0
          s_cselect_b32 s3, s3, s57
          s_movk_i32 s{sROW}, 2688
          s_cmp_ge_u32 s26, 12
          s_cselect_b32 s3, s3, 0
          s_cselect_b32 s{sROW}, 896, s{sROW}
          s_cselect_b32 s27, s27, s26
          s_add_u32 s56, s56, s3
          s_mul_i32 s{sCOL}, s27, 224
          v_lshrrev_b32 v8, 3, v1
          v_add_u32 v8, s56, v8
          s_movk_i32 s3, 896
          v_mul_i32_i24 v8, s3, v8
          v_bfe_u32 v9, v1, 4, 2
          v_and_b32 v10, 7, v1
          v_xor_b32 v9, v9, v10
          v_lshl_add_u32 v2, v9, 4, v8
          v_xor_b32 v9, 4, v9
          v_lshl_add_u32 v3, v9, 4, v8
          v_add_u32 v3, {8*896}, v3
          v_add_u32 v4, {16*896}, v2
          v_add_u32 v5, {16*896}, v3
          v_lshrrev_b32 v8, 4, v1
          v_lshlrev_b32 v9, 2, v8
          v_sub_u32 v9, v1, v9
          v_and_b32 v9, 15, v9
          v_mul_u32_u24 v8, s{sROW}, v8
          v_lshl_add_u32 v7, v9, 4, v8
          v_cmp_gt_u32 s[96:97], 14, v9
          s_lshl_b32 s{sK}, s54, 6
          s_lshl_b32 s54, s54, 7
          s_lshl_b32 s3, s{sW}, 4
          s_mul_i32 s3, s3, s{sROW}
          s_add_u32 s{sCOL}, s{sCOL}, s3
          s_lshl_b32 s53, s{sROW}, 2
          s_lshl_b32 s55, s{sW}, 12
          s_waitcnt lgkmcnt(0)""")
    srd(a, XS, 4, 2048 * 896)
    q = []
    gap = []
    def ride(n):
        for x in gap[:n]: a(x)
        del gap[:n]
    def xchunk(c):
        for g in range(4):
            a(f"s_add_u32 m0, s55, {XB + (c % 3)*16384 + g*1024}")
            a(f"s_nop 0\nbuffer_load_dwordx4 v{2+g}, {s(XS,4)}, s54 offen lds")
            ride(9)
        wrapinc(a, 54, 128, 896)
        q.extend([c] * 4)
    def wchunk(c):
        a(f"""s_mul_i32 s{sWO}, s{sK}, s{sROW}
              s_add_u32 s{sWO}, s{sWO}, s{sCOL}""")
        wrapinc(a, sK, 64, 448)
        a("s_mov_b64 exec, s[96:97]")
        for u in range(4):
            a(f"s_add_u32 m0, s55, {c*16384 + u*1024}")
            if u: a(f"s_add_u32 s{sWO}, s{sWO}, s53")
            a(f"buffer_load_dwordx4 v7, {s(WA,4)}, s{sWO} offen lds")
        a("s_mov_b64 exec, -1")
        q.extend([c] * 4)
    bst(11)
    xchunk(0)
    a(f"""s_cmp_ge_u32 s26, 12
          s_cselect_b32 s{WA}, s12, s6
          s_cselect_b32 s{WA+1}, s13, s7
          s_mul_i32 s{WA+2}, s{sROW}, 448
          s_mov_b32 s{WA+3}, 0x20000""")
    wchunk(0)
    srd(a, WD, 24, WS_END)
    a(f"""s_lshl_b32 s61, s{sW}, 8
          s_or_b32 s61, s61, s2
          v_mov_b32 v22, 0
          s_cmp_ge_u32 s61, {NINIT}
          s_cbranch_scc1 PB_noinit
          v_lshlrev_b32 v13, 7, v1
          s_lshl_b32 s3, s2, 13
          s_add_u32 s3, s3, {FLG}
          buffer_store_dword v22, v13, {s(WD,4)}, s3 offen{SC}""")
    a.label("PB_noinit")
    if opt("codepf", 1) == 2: codepf()
    if opt("tlb", 0):
        a(f"""v_lshlrev_b32 v23, {opt("tlb", 0)}, v1
              v_add_u32 v23, {0x1fff80 if opt("tlb", 0) == 21 else 0xff80}, v23
              s_lshl_b32 s3, s{sW}, {opt("tlb", 0) + 6}
              buffer_load_dword v24, v23, {s(WD,4)}, s3 offen sc1""")
        q.append(1)
    a(f"""v_lshrrev_b32 v8, 1, v1
          v_and_b32 v9, 15, v8
          v_lshrrev_b32 v10, 4, v8
          v_lshlrev_b32 v10, 14, v10
          v_lshl_add_u32 v10, v9, 8, v10
          v_and_b32 v9, 3, v8
          v_lshlrev_b32 v9, 2, v9
          v_and_b32 v8, 1, v1
          v_add3_u32 v9, v9, v8, 14
          v_and_b32 v9, 15, v9
          v_lshl_add_u32 v10, v9, 4, v10
          v_add_u32 v10, s55, v10
          v_add_u32 v11, 0x10000, v10
          v_mov_b32 v12, 0x3f803f80
          v_mov_b32 v13, v12
          v_mov_b32 v14, v12
          v_mov_b32 v15, v12
          ds_write_b128 v10, v[12:15]
          ds_write_b128 v10, v[12:15] offset:32768
          ds_write_b128 v11, v[12:15]
          s_mov_b64 exec, 0xffffffff
          ds_write_b128 v11, v[12:15] offset:32768
          s_mov_b64 exec, -1""")
    srd(a, WD, 24, WS_END)
    srd(a, WB_, 22, 256)
    xchunk(1)
    if opt("w1e", 1): wchunk(1)
    CSB = opt("csb", 0)
    if CSB:
        a("s_cmp_ge_u32 s26, 12\ns_cselect_b32 s57, 8, 7")
        tr_addrs(a, 21, "s57", 0, perm=False, which=(4,))
        a("v_mov_b32 v26, 0\nv_mov_b32 v27, 0")
    small_setup(a, sRB, sCB, sT)
    tail = A()
    tail(f"""s_lshr_b32 s{sFT}, s{sW}, 1
          s_xor_b32 s{sFT}, s{sFT}, s2
          s_and_b32 s{sFT}, s{sFT}, 1
          v_lshrrev_b32 v8, 2, v1
          v_mul_u32_u24 v8, 896, v8
          v_bfe_u32 v9, v1, 4, 2
          v_and_b32 v10, 3, v1
          v_xor_b32 v9, v9, v10
          v_lshl_add_u32 v8, v9, 4, v8
          s_mul_i32 s3, s{sT}, {32*896}
          s_lshl_b32 s26, s{sCB}, 7
          s_add_u32 s3, s3, s26
          s_lshl_b32 s26, s{sFT}, 6
          s_add_u32 s3, s3, s26
          s_add_u32 s26, s3, {16*896}
          buffer_load_dwordx4 {v(XT,4)}, v8, {s(XS,4)}, s3 offen
          buffer_load_dwordx4 {v(XT+4,4)}, v8, {s(XS,4)}, s26 offen""")
    t2, t3, t4 = A(), A(), A()
    srd(t2, WB_, 14, 448*896)
    t2(f"""v_lshlrev_b32 v8, 7, v1
           s_lshr_b32 s57, s2, 3
           s_lshl_b32 s57, s57, 2
           s_add_u32 s57, s57, s{sW}
           s_mul_i32 s3, s57, {25*128}
           s_bfm_b64 exec, 25, 0
           buffer_load_dword v16, v8, {s(WB_,4)}, s3 offen{TF}
           s_mov_b64 exec, -1""")
    srd(t3, WB_, 16, 448*3584)
    t3(f"""s_lshr_b32 s57, s2, 3
           s_lshl_b32 s57, s57, 2
           s_add_u32 s57, s57, s{sW}
           s_mul_i32 s3, s57, 49
           v_add_u32 v9, s3, v1
           v_mul_u32_u24 v10, 9363, v9
           v_lshrrev_b32 v10, 17, v10
           v_mul_u32_u24 v11, 14, v10
           v_sub_u32 v9, v9, v11
           v_mul_u32_u24 v10, 3584, v10
           v_lshl_add_u32 v9, v9, 7, v10
           s_and_b32 s3, s2, 1
           s_mul_i32 s3, s3, 1792
           s_bfm_b64 exec, 49, 0
           buffer_load_dword v17, v9, {s(WB_,4)}, s3 offen{TF}
           s_mov_b64 exec, -1""")
    srd(t4, WB_, 18, 448*3584)
    t4(f"""v_lshlrev_b32 v8, 7, v1
           s_lshl_b32 s57, s2, 2
           s_add_u32 s57, s57, s{sW}
           s_mul_i32 s3, s57, {13*128}
           s_bfm_b64 exec, 13, 0
           buffer_load_dword v18, v8, {s(WB_,4)}, s3 offen{TF}""")
    srd(t4, WB_, 8, 448*896)
    t4(f"""s_lshl_b32 s3, s57, 9
           s_mov_b64 exec, 15
           buffer_load_dword v19, v8, {s(WB_,4)}, s3 offen{TF}
           s_mov_b64 exec, -1""")
    if opt("tmode", 0) & 1:
        t3 = A(); srd(t3, WB_, 16, 448*3584)
        t3(f"""v_lshlrev_b32 v8, 7, v1
               s_lshl_b32 s57, s2, 2
               s_add_u32 s57, s57, s{sW}
               s_mul_i32 s3, s57, {13*128}
               s_bfm_b64 exec, 13, 0
               buffer_load_dword v17, v8, {s(WB_,4)}, s3 offen
               s_mov_b64 exec, -1""")
    if opt("tmode", 0) & 2:
        t2 = A(); srd(t2, WB_, 14, 448*896)
        t2(f"""v_lshlrev_b32 v8, 7, v1
               s_lshl_b32 s57, s2, 2
               s_add_u32 s57, s57, s{sW}
               s_lshl_b32 s3, s57, 9
               s_mov_b64 exec, 15
               buffer_load_dword v16, v8, {s(WB_,4)}, s3 offen
               s_mov_b64 exec, -1""")
    w2, w2b = A(), A()
    w2(f"s_lshl_b32 s47, s{sW}, 11")
    small_addrs(w2, "s47")
    srd(w2, WA, 14, 448 * 896)
    w2(f"""s_mul_i32 s3, s{sW}, {112*896}
           s_lshl_b32 s26, s{sCB}, 7
           s_add_u32 s3, s3, s26
           v_add_u32 v4, s3, v7
           v_add_u32 v5, {8*896}, v4
           s_mul_i32 s50, s{sCB}, {16*896*opt("rot", 1)}""")
    for j in range(7):
        g = w2 if j < 6 else w2b
        g(f"""s_add_u32 m0, s47, {j*8192}
              s_nop 0
              buffer_load_dwordx4 v4, {s(WA,4)}, s50 offen lds
              s_add_u32 m0, s47, {j*8192 + 1024}
              s_nop 0
              buffer_load_dwordx4 v5, {s(WA,4)}, s50 offen lds""")
        if j < 6: wrapinc(g, 50, 16*896, 112*896)
    c3a, c3b = A(), A()
    srd(c3a, WB_, 16, 448*3584)
    c3a(f"""s_mul_i32 s3, s2, 2341
            s_lshr_b32 s3, s3, 16
            s_mul_i32 s57, s3, 28
            s_sub_u32 s57, s2, s57                 ; line = id % 28
            s_lshl_b32 s3, s3, 2
            s_add_u32 s3, s3, s{sW}
            s_mul_i32 s63, s57, 28
            s_add_u32 s63, s63, s3
            s_lshl_b32 s63, s63, 8
            s_add_u32 s63, s63, {CS3P}
            s_cmp_lt_u32 s2, 196
            s_cselect_b32 s63, s63, {OOB}
            s_mul_i32 s3, s3, {16*3584}
            s_lshl_b32 s57, s57, 7
            s_add_u32 s3, s3, s57
            s_add_u32 s57, s3, {8*3584}
            v_lshrrev_b32 v8, 3, v1
            v_mul_u32_u24 v8, 3584, v8
            v_and_b32 v9, 7, v1
            v_lshl_add_u32 v8, v9, 4, v8
            buffer_load_dwordx4 v[32:35], v8, {s(WB_,4)}, s3 offen
            buffer_load_dwordx4 v[36:39], v8, {s(WB_,4)}, s57 offen""")
    unpack(c3b, 40, 32, 8)
    for i in range(8): c3b(f"v_add_f32 v{40+i}, v{40+i}, v{48+i}")
    for i in range(4): c3b(f"v_permlane32_swap_b32 v{40+i}, v{44+i}")
    for i in range(4): c3b(f"v_add_f32 v{40+i}, v{40+i}, v{44+i}")
    for i in range(2): c3b(f"v_permlane16_swap_b32 v{40+i}, v{42+i}")
    for i in range(2): c3b(f"v_add_f32 v{40+i}, v{40+i}, v{42+i}")
    c3b(f"""v_and_b32 v8, 7, v1
            v_lshrrev_b32 v9, 4, v1
            v_lshlrev_b32 v8, 5, v8
            v_lshl_add_u32 v8, v9, 3, v8
            v_add_f32_dpp v40, v40, v40 row_ror:8 row_mask:0xf bank_mask:0xf
            v_add_f32_dpp v41, v41, v41 row_ror:8 row_mask:0xf bank_mask:0xf
            buffer_store_dwordx2 v[40:41], v8, {s(WD,4)}, s63 offen{SC}""")
    extras = [(opt("tl", 4), tail, 2), (opt("c3a", 4), c3a, 2), (opt("tw2", 2), t2, 1), (opt("w2c", 8), w2, 12), (opt("tw3", 4), t3, 1), (opt("tw4", 4), t4, 2), (max(opt("w2d", 6), opt("w2c", 8)), w2b, 2)]
    bst(2)
    for c in range(7):
        last = max(i for i, x in enumerate(q) if x == c)
        a(f"s_waitcnt vmcnt({len(q) - 1 - last}) lgkmcnt(0)")
        bst((3, 12, 13, 4, 5, 14, 8)[c])
        a("s_barrier")
        jitter(a)
        if CSB:
            if c == 4: a("v_add_u32 v25, 0x10000, v25")
            for i in range(8): a(f"ds_read_b64_tr_b16 {v(56+2*i,2)}, v25 offset:{(c & 3)*16384 + (16*(i>>1) + 4*(i&1))*256}")
            gap.append("s_waitcnt lgkmcnt(0)")
            for i in range(16):
                lo = 28 + 2*(i & 1)
                gap += [f"v_lshlrev_b32 v{lo}, 16, v{56+i}", f"v_and_b32 v{lo+1}, 0xffff0000, v{56+i}",
                        f"v_add_f32 v26, v26, v{lo}", f"v_add_f32 v27, v27, v{lo+1}"]
        if c == 1:
            a(f"""s_cmp_ge_u32 s61, {NINIT}
                  s_cbranch_scc1 PB_noset
                  s_lshl_b32 s3, s2, 2
                  v_mov_b32 v9, 1
                  s_mov_b64 exec, 1
                  buffer_store_dword v9, v22, {s(WB_,4)}, s3 offen{SC}
                  s_mov_b64 exec, -1""")
            a.label("PB_noset")
        if c == 0 and not opt("w1e", 1): wchunk(1)
        if c + 2 < 7: xchunk(c + 2); wchunk(c + 2)
        if c == 3:
            srd(a, WB_, 22, 256)
            a(f"v_min_u32 v20, {NINIT - 1}, v1\nv_lshlrev_b32 v20, 2, v20\nbuffer_load_dword v21, v20, {s(WB_,4)}, 0 offen sc1"); q.append(5)
        if c == 5:
            a("v_cmp_eq_u32 vcc, 0, v21\ns_cbranch_vccz PB_clr")
            srd(a, WB_, 22, 256)
            poll(a, 20, NINIT, WB_)
            a.label("PB_clr")
        for when, code, nv in extras:
            if when == c:
                for x in code.l: a(x)
                q.extend(["c3" if code is c3a or code is tail else 99] * nv)
        ride(999)
    if CSB:
        a("v_add_f32 v26, v26, v27")
        half_sum(a, 26, 27)
        cs_publish(a, 26, 28, XCH)
    a(f"""v_mov_b32 v8, {CNT}
          v_mov_b32 v12, 0
          v_mov_b32 v13, 0
          v_mov_b32 v14, 0
          v_mov_b32 v15, 0
          ds_write_b128 v8, v[12:15]
          ds_write_b128 v8, v[12:15] offset:16
          ds_write_b128 v8, v[12:15] offset:32
          s_waitcnt lgkmcnt(0)
          s_barrier                              ; barrier 7""")
    for when, code, nv in extras:
        if when == 67:
            for x in code.l: a(x)
            q.extend([99] * nv)
    a(f"""s_waitcnt vmcnt({len(q) - 1 - max(i for i, x in enumerate(q) if x == "c3")})""")
    for x in c3b.l: a(x)
    g2_setup(a)
    a(f"""s_and_b32 s3, s2, 1
          s_lshl_b32 s3, s3, 3
          s_lshr_b32 s26, s2, 5
          s_add_u32 s3, s3, s26
          s_lshl_b32 s3, s3, 4
          s_lshr_b32 s26, s{sRB}, 1
          s_add_u32 s3, s3, s26
          s_lshl_b32 s3, s3, 7
          s_add_u32 s3, s3, {FP}
          s_waitcnt vmcnt(0)""")
    signal(a, 3, C_S1, last=7)
    for when, code, nv in extras:
        if when == 7:
            for x in code.l: a(x)
    bst(9)
    gwait(a, C_X, 4, field=1)
    if opt("w2s", 0): gwait(a, C_S1, 8)
    for when, code, nv in extras:
        if when == 8:
            for x in code.l: a(x)
    bst(10); bst(15)

def small_setup(a, sRB, sCB, sT):
    a(f"""s_bfe_u32 s26, s2, 0x20001
          s_lshl_b32 s26, s26, 2
          s_bfe_u32 s3, s2, 0x20003
          s_add_u32 s26, s26, s3
          s_lshl_b32 s{sRB}, s26, 1
          s_and_b32 s3, s2, 1
          s_add_u32 s{sRB}, s{sRB}, s3
          s_lshr_b32 s{sCB}, s2, 5
          s_and_b32 s3, s{sW}, 1
          s_lshl_b32 s{sT}, s{sRB}, 1
          s_add_u32 s{sT}, s{sT}, s3""")

def small_addrs(a, sM, natural=False):
    a(f"""v_lshrrev_b32 v8, 3, v1
          v_bfe_u32 v9, v1, 4, 1
          v_lshlrev_b32 v9, 2, v9
          v_and_b32 v10, 7, v1
          v_xor_b32 v9, v9, v10
          v_mul_u32_u24 v8, 896, v8
          v_lshl_add_u32 v7, v9, 4, v8
          v_lshrrev_b32 v8, 5, v1
          v_bfe_u32 v9, v1, 2, 2
          v_lshl_add_u32 v8, v8, 2, v9
          v_lshlrev_b32 v8, 7, v8
          v_bfe_u32 v10, v1, 4, 1
          v_bfe_u32 v11, v1, 1, 1
          v_lshl_add_u32 v10, v10, 1, v11
          v_bfe_u32 v11, v1, 3, 1
          v_lshl_add_u32 v10, v11, 2, v10
          v_lshl_add_u32 v8, v10, 4, v8
          v_and_b32 v11, 1, v1
          v_lshl_add_u32 v8, v11, 3, v8
          s_lshl_b32 s3, {"0" if natural else "s%d" % sFT}, 6
          v_xor_b32 v8, s3, v8
          v_add_u32 v2, {sM}, v8
          v_xor_b32 v8, 64, v8
          v_add_u32 v3, {sM}, v8""")

def wreads(a, WF, buf, off, va=2):
    for b in range(2):
        for e in range(2): a(f"ds_read_b64_tr_b16 {v(WF+8*buf+4*b+2*e,2)}, v{va+b} offset:{off + 8*e*128}")
def mfmas(a, ACC, WF, buf, act0, act1, first):
    for aa, ar in enumerate((act0, act1)):
        for b in range(2):
            j = 2*aa + b
            a(f"{MF} {v(ACC+16*j,16)}, {v(WF+8*buf+4*b,4)}, {v(ar,4)}, {'0' if first else v(ACC+16*j,16)}")

def g2_setup(a):
    EP = 176
    sRB, sCB, sT, sM, sK, sKA, sX = 44, 45, 48, 47, 50, 51, 53
    sRB3, sCB3, sT3, sK3, sL = 54, 55, 56, 57, 49
    ROT = opt("rot", 1)
    a(f"s_lshl_b32 s{sL}, s{sW}, 11")
    a(f"""s_add_u32 s3, s{sL}, {H1}
          v_add_u32 v10, s3, v0
          v_and_b32 v8, 31, v1
          v_lshlrev_b32 v8, 6, v8
          v_bfe_u32 v9, v1, 2, 2
          v_lshl_add_u32 v8, v9, 4, v8
          v_lshrrev_b32 v9, 5, v1
          v_lshl_add_u32 v8, v9, 3, v8
          v_add_u32 v12, s3, v8
          v_xor_b32 v13, 16, v12
          v_xor_b32 v14, 32, v12
          v_xor_b32 v15, 48, v12
          ds_write_b128 v10, v[232:235]
          ds_write_b128 v10, v[236:239] offset:1024
          s_waitcnt lgkmcnt(0)""")
    for j in range(4): a(f"ds_read_b64 {v(EP+2*j,2)}, v{12+j}")
    a(f"""s_and_b32 s26, s2, 7
          s_lshr_b32 s27, s2, 3
          s_lshr_b32 s{sRB3}, s26, 1
          s_lshl_b32 s{sRB3}, s{sRB3}, 2
          s_and_b32 s3, s27, 3
          s_add_u32 s{sRB3}, s{sRB3}, s3
          s_and_b32 s{sCB3}, s26, 1
          s_mul_i32 s{sCB3}, s{sCB3}, 7
          s_add_u32 s{sCB3}, s{sCB3}, s{sCB}
          s_lshl_b32 s{sT3}, s{sRB3}, 2
          s_add_u32 s{sT3}, s{sT3}, s{sW}
          v_lshrrev_b32 v8, 3, v1
          v_bfe_u32 v9, v1, 4, 1
          v_lshlrev_b32 v9, 2, v9
          v_and_b32 v6, 7, v1
          v_xor_b32 v9, v9, v6
          v_mul_u32_u24 v8, 3584, v8
          v_lshl_add_u32 v6, v9, 4, v8
          s_mul_i32 s3, s{sW}, {16*3584}
          s_lshl_b32 s26, s{sCB3}, 8
          s_add_u32 s3, s3, s26
          v_add_u32 v6, s3, v6                   ; W3 voffset
          s_mul_i32 s{sK3}, s{sCB}, {64*3584*ROT}""")
    srd(a, WB_, 16, 448 * 3584)
    a("s_waitcnt lgkmcnt(0)")
    a(f"""s_mul_i32 s3, s{sT}, 28
          s_mul_i32 s26, s{sFT}, 14
          s_add_u32 s3, s3, s26
          s_lshl_b32 s3, s3, 10
          s_add_u32 s3, s3, {HF}
          v_add_u32 v186, s3, v0
          v_add_u32 v187, 7168, v186
          s_mul_i32 s{sKA}, s{sCB}, {1024*ROT}
          s_mul_i32 s{sX}, s{sT}, 28
          s_lshl_b32 s3, s{sCB}, 2
          s_add_u32 s{sX}, s{sX}, s3
          s_lshl_b32 s3, s{sFT}, 1
          s_add_u32 s{sX}, s{sX}, s3
          s_lshl_b32 s{sX}, s{sX}, 10
          s_add_u32 s{sX}, s{sX}, {X1F}
          s_lshl_b32 s3, s{sFT}, 1
          s_add_u32 s3, s3, 12
          s_lshl_b32 s3, s3, 4
          s_lshr_b32 s26, s{sRB}, 1
          s_add_u32 s3, s3, s26
          s_lshl_b32 s3, s3, 7
          s_add_u32 s3, s3, {FP}
          v_lshl_add_u32 v188, v1, 11, s3
          s_lshl_b32 s3, s26, 7
          s_add_u32 s3, s3, {FP}
          v_mov_b32 v189, s3
          v_lshlrev_b32 v8, 3, v1
          v_and_b32 v15, 0xff, v8
          s_lshl_b32 s27, s{sT}, 8
          s_add_u32 s27, s27, {ST1}""")
    unpack(a, RES, EP, 8)
    pair_addrs(a, 190, 128 * 1024)
    a(f"""s_lshl_b32 s26, s{sCB}, 1
          s_add_u32 s26, s26, s{sFT}
          s_mul_i32 s62, s{sT}, 14
          s_add_u32 s62, s62, s26
          s_lshl_b32 s62, s62, 8
          s_add_u32 s62, s62, {ST3}
          s_lshl_b32 s63, s{sRB}, 3
          s_add_u32 s63, s63, s{sCB}
          s_lshl_b32 s63, s63, 7
          s_add_u32 s63, s63, {F2}""")

def roleb(a):
    ACC, WF, AR, EP = 16, 80, 112, 176
    sRB, sCB, sT, sM, sK, sKA, sX = 44, 45, 48, 47, 50, 51, 53
    sRB3, sCB3, sT3, sK3, sL = 54, 55, 56, 57, 49
    ROT = opt("rot", 1)
    a("s_cmp_ge_u32 s2, 224\ns_cbranch_scc0 B_go")
    a(f"""s_mov_b64 exec, 1
          v_mov_b32 v8, {CNT}
          v_mov_b32 v9, {B_G3_DONE // 4}
          ds_add_u32 v8, v9
          s_mov_b64 exec, -1""")
    garrive(a, C_X)
    if opt("idlepf", 1):
        if opt("idlepf", 1) == 2: gwait(a, C_S1, 8)
        else:
            a(f"""s_lshl_b32 s3, s{sRB}, 10
                  s_add_u32 s3, s3, {F2}
                  v_mov_b32 v10, s3""")
            poll(a, 10, 1)
        srd(a, WA, 18, 1792 * 896)
        srd(a, WB_, 8, 448 * 896)
        a(f"""s_lshr_b32 s3, s2, 3
              s_sub_u32 s3, s3, 28
              s_lshl_b32 s3, s3, 2
              s_add_u32 s3, s3, s{sW}
              s_lshl_b32 s26, s3, 13
              s_and_b32 s27, s2, 1
              s_mul_i32 s27, s27, {896*896}
              s_add_u32 s26, s26, s27
              v_lshlrev_b32 v8, 7, v1
              s_mov_b32 s27, 7""")
        a.label("B_pf")
        a(f"""buffer_load_dword v16, v8, {s(WA,4)}, s26 offen{TF}
              s_add_u32 s26, s26, {16*8192}
              s_waitcnt vmcnt(1)
              s_sub_u32 s27, s27, 1
              s_cmp_lg_u32 s27, 0
              s_cbranch_scc1 B_pf
              s_lshl_b32 s26, s3, 13""")
        for i in range(4): a(f"buffer_load_dword v16, v8, {s(WB_,4)}, s26 offen{TF}\ns_add_u32 s26, s26, {16*8192}")
    a("s_endpgm")
    a.label("B_go")
    a(f"s_setprio {opt('pb', 1)}")
    bs2 = (lambda i: common.stamp(a, i)) if opt("g2s", 0) and common.STAMPS else (lambda i: None)
    if opt("g2s", 0):
        global stamp
        keep = stamp
        stamp = lambda a_, i, *x: keep(a_, i, *x) if i in (2, 3) else None
    def w3chunk(c):
        hf, j = (1, c) if c < 7 else (0, c - 7)
        for u in range(2):
            a(f"s_add_u32 m0, s{sL}, {hf*H1 + j*8192 + u*1024}")
            a(f"s_add_u32 s3, s{sK3}, {u*8*3584 + 128*hf}")
            a(f"buffer_load_dwordx4 v6, {s(WB_,4)}, s3 offen lds")
        wrapinc(a, sK3, 64*3584, 448*3584)
    W3A = opt("w3a", 0); W3E = max(W3A, opt("w3e", 5)); assert W3E <= 7
    if W3A:
        gwait(a, C_S1, 8)
        for c in range(W3A): w3chunk(c)
    stamp(a, 2)
    a(f"""s_lshl_b32 s3, s{sFT}, 12
          s_sub_u32 s3, s3, s{sL}
          v_add_u32 v4, s3, v2
          v_add_u32 v5, s3, v3""")
    poll(a, 188, 2)
    garrive(a, C_W, 0)
    a(f"buffer_load_dword v12, v189, {s(WD,4)}, 0 offen sc1")
    stamp(a, 3)
    for j in range(7):
        a(f"buffer_load_dwordx4 {v(AR+8*j,4)}, v186, {s(WD,4)}, s{sKA} offen{SC}")
        a(f"buffer_load_dwordx4 {v(AR+8*j+4,4)}, v187, {s(WD,4)}, s{sKA} offen{SC}")
        if j < 6: wrapinc(a, sKA, 1024, 7168)
    a("s_waitcnt vmcnt(14)\nv_cmp_eq_u32 vcc, 0, v12\ns_cbranch_vccz B_st1")
    poll(a, 189, 1)
    a.label("B_st1")
    a(f"buffer_load_dwordx2 {v(EP+8,2)}, v15, {s(WD,4)}, s27 offen{SC}")
    garrive(a, C_X)
    a(f"s_setprio {opt('pg2', 1)}")
    gwait(a, C_W, 4, field=0)
    NW3 = 0
    w2o = lambda u: (u >> 1)*8192 + (u & 1)*2048
    for u in range(3): wreads(a, WF, u, w2o(u), 4)
    for u in range(14):
        a(f"s_waitcnt vmcnt({13 - u + 1}) lgkmcnt({4*min(2, 13 - u)})")
        for b in range(2): a(f"{MF} {v(ACC+16*b,16)}, {v(WF+8*(u&3)+4*b,4)}, {v(AR+4*u,4)}, {'0' if u == 0 else v(ACC+16*b,16)}")
        if u + 3 < 14: wreads(a, WF, (u+3) & 3, w2o(u+3), 4)
    U = AR
    a(f"s_setprio {opt('pb', 1)}")
    stamp(a, 12)
    def centre():
        a(f"s_waitcnt vmcnt({NW3})")
        for i in range(16): a(f"v_sub_f32 v{U+i}, v{RES+i}, v{EP+8}")
    reduce2(a, ACC, 190, 0, 4, pre=centre)
    stamp(a, 13)
    for i in range(16): a(f"v_fma_f32 v{U+i}, v{U+i}, v{EP+9}, v{ACC+i}")
    for i in range(8): a(f"v_cvt_pk_bf16_f32 v{EP+i}, v{U+2*i}, v{U+2*i+1}")
    a(f"buffer_store_dwordx4 {v(EP,4)}, v0, {s(WD,4)}, s{sX} offen{SC}")
    a(f"buffer_store_dwordx4 {v(EP+4,4)}, v0, {s(WD,4)}, s{sX} offen offset:1024{SC}")
    if not opt("g2u", 1): unpack(a, U, EP, 8)
    for i in range(16):
        a(f"v_add_f32 v{10+(i&1)}, v{U+i}, {'0' if i < 2 else 'v%d' % (10+(i&1))}")
        a(f"v_fma_f32 v{12+(i&1)}, v{U+i}, v{U+i}, {'0' if i < 2 else 'v%d' % (12+(i&1))}")
    a("v_add_f32 v10, v10, v11\nv_add_f32 v11, v12, v13")
    half_sum(a, 10, 8); half_sum(a, 11, 9)
    a(f"buffer_store_dwordx2 v[10:11], v15, {s(WD,4)}, s62 offen{SC}\ns_mov_b32 s{sX}, s63")
    garrive(a, 0)
    for i in range(16): a(f"v_add_f32 v{RES+i}, v{RES+i}, v{U+i}")
    lo = lambda: a("s_setprio 0") if opt("kvprio", 1) == 2 else None
    hi = lambda: a(f"s_setprio {opt('pb', 1)}") if opt("kvprio", 1) == 2 else None
    lo()
    for c in range(W3A, W3E): w3chunk(c)
    hi()
    a(f"s_waitcnt vmcnt({2*(W3E - W3A)})")
    signal(a, sX, 12)
    stamp(a, 4)
    gwait(a, 0, 8)
    lo()
    for c in range(W3E, 14): w3chunk(c)
    hi()
    ACC, WF, XR, TMP = 16, 80, 112, 240
    CSP, CS = TMP, ACC + 48
    a(f"""s_lshl_b32 s3, s{sFT}, 6
          s_sub_u32 s26, 0, s{sL}
          v_add_u32 v2, s26, v2
          v_xor_b32 v2, s3, v2
          v_xor_b32 v3, 64, v2
          v_add_u32 v4, {H1}, v2
          v_add_u32 v5, {H1}, v3""")
    a(f"""s_lshr_b32 s3, s{sT3}, 1
          s_lshl_b32 s3, s3, 10
          s_add_u32 s3, s3, {F2}
          v_lshl_add_u32 v11, v1, 7, s3
          s_lshl_b32 s26, s{sCB3}, 1
          s_lshr_b32 s3, s{sW}, 1
          s_add_u32 s26, s26, s3
          v_add_u32 v8, -7, v1
          v_mul_u32_u24 v8, 28, v8
          v_add_u32 v8, s26, v8
          v_and_b32 v9, 1, v8
          v_lshrrev_b32 v10, 5, v8
          v_lshl_add_u32 v9, v9, 3, v10
          v_bfe_u32 v10, v8, 1, 2
          v_lshl_add_u32 v9, v9, 2, v10
          v_bfe_u32 v10, v8, 3, 2
          v_lshl_add_u32 v9, v9, 2, v10
          v_lshlrev_b32 v9, 7, v9
          v_add_u32 v9, {FP}, v9
          v_cmp_gt_u32 vcc, 7, v1
          v_cndmask_b32 v11, v9, v11, vcc
          s_mul_i32 s{sK3}, s26, {28*256}
          s_and_b32 s3, s{sW}, 1
          s_lshl_b32 s3, s3, 7
          s_add_u32 s{sK3}, s{sK3}, s3
          s_add_u32 s{sK3}, s{sK3}, {CS3P}
          v_lshrrev_b32 v10, 5, v1
          v_mul_u32_u24 v10, {14*256}, v10
          v_and_b32 v9, 31, v1
          v_lshl_add_u32 v6, v9, 2, v10
          s_mul_i32 s3, s{sT3}, {28*1024}
          s_add_u32 s3, s3, {X1F}
          v_add_u32 v7, s3, v0
          s_mul_i32 s{sKA}, s{sCB}, {4096*ROT}
          v_lshrrev_b32 v12, 5, v1
          v_mul_u32_u24 v12, {7*256}, v12
          v_and_b32 v13, 31, v1
          v_lshl_add_u32 v12, v13, 3, v12
          s_mul_i32 s27, s{sT3}, {14*256}
          s_add_u32 s27, s27, {ST3}""")
    a("s_waitcnt vmcnt(0)")
    gbar(a, 0, 12)
    CSG = opt("csg", 1)
    def cs_exchange():
        a(f"""v_cvt_pk_bf16_f32 v{WF}, v{CS}, v{CS}
              v_and_b32 v{WF}, 0xffff0000, v{WF}
              v_sub_f32 v{WF}, v{CS}, v{WF}
              v_cvt_pk_bf16_f32 v{WF}, v{CS}, v{WF}
              v_and_b32 v13, 31, v1
              v_lshlrev_b32 v13, 2, v13
              s_lshl_b32 s26, s{sW}, 7
              s_add_u32 s26, s26, {XCH3}
              v_add_u32 v13, s26, v13
              ds_write_b32 v13, v{WF}""")
        a("s_waitcnt lgkmcnt(0)")
        garrive(a, 0)
    def cs_collect():
        gwait(a, 0, 16)
        a(f"v_and_b32 v15, 31, v1\nv_lshlrev_b32 v15, 2, v15\nv_add_u32 v15, {XCH3}, v15")
        for t in range(4): a(f"ds_read_b32 v{CSP+t}, v15 offset:{128*t}")
        a("s_waitcnt lgkmcnt(0)")
    hops = lambda ts: {}
    woff = None
    poll(a, 11, 14)
    stamp(a, 5)
    STL = [WF + 24, WF + 26, WF + 28, WF + 30, TMP + 8, TMP + 10, 14]; ST = STL[0]
    LA = opt("la3", 14)
    def xl(u):
        g = A()
        g(f"buffer_load_dwordx4 {v(XR+4*u,4)}, v7, {s(WD,4)}, s{sKA} offen offset:{(u&3)*1024}{SC}")
        if (u & 3) == 3 and u < 27: wrapinc(g, sKA, 4096, 7*4096)
        return g.l
    L0 = opt("l0", 8)
    for u in range(L0):
        for x in xl(u): a(x)
        if u == 3:
            for i in range(7): a(f"buffer_load_dwordx2 {v(STL[i],2)}, v12, {s(WD,4)}, s27 offen offset:{i*256}{SC}")
            for i in range(14): a(f"buffer_load_dword v{CS+i}, v6, {s(WD,4)}, s{sK3} offen offset:{i*256}{SC}")
    M0_, M1_, R, DEN = TMP+4, TMP+5, TMP+6, TMP+7
    f = A()
    for i in range(1, 7): f(f"v_add_f32 v{ST}, v{ST}, v{STL[i]}\nv_add_f32 v{ST+1}, v{ST+1}, v{STL[i]+1}")
    f(f"v_mov_b32 v12, v{ST}\nv_mov_b32 v13, v{ST+1}")
    half_sum(f, 12, 8); half_sum(f, 13, 9)
    f(f"""v_mul_f32 v12, {fb(1/448)}, v12
          v_mul_f32 v13, {fb(1/448)}, v13
          v_fma_f32 v13, -v12, v12, v13
          v_max_f32 v13, 0, v13
          v_add_f32 v13, {fb(EPS)}, v13
          v_sqrt_f32 v{DEN}, v13
          v_rsq_f32 v{R}, v13""")
    mu_frag(f, 12, "-1", M0_, M1_)
    gelu_consts(f, R, DEN)
    f(f"""s_mul_i32 s{sK}, s{sT3}, 112
          s_lshl_b32 s27, s{sCB3}, 3
          s_add_u32 s{sK}, s{sK}, s27
          s_lshl_b32 s{sK}, s{sK}, 10
          s_add_u32 s{sK}, s{sK}, {HHF}
          s_add_u32 s27, s{sK}, 4096""")
    for i in range(1, 14): f(f"v_add_f32 v{CS}, v{CS}, v{CS+i}")
    half_sum(f, CS, 8)
    f(f"""v_cvt_pk_bf16_f32 v11, v{CS}, v{CS}
          v_and_b32 v11, 0xffff0000, v11
          v_sub_f32 v11, v{CS}, v11
          v_cvt_pk_bf16_f32 v11, v{CS}, v11
          s_lshl_b32 s26, s{sW}, 7
          s_add_u32 s26, s26, {XCH3}
          v_and_b32 v13, 31, v1
          v_lshl_add_u32 v13, v13, 2, s26""")
    NA = opt("na", 2)
    t1 = ((0,) if CSG else (0, 4)) + tuple(range(1, NA)); t2_ = tuple(range(NA, 4))
    pre = hops(t1); pre["fill0"] = 4*len(t1) + 1; pre["G"] = opt("g3g", NA)
    issued = L0
    for s_ in range(28):
        pre[("s", s_)] = [f"s_waitcnt vmcnt({issued - 1 - s_ + (21 if s_ < 4 else 0)})"]
        pre[("t", s_)] = []
        for _ in range(2):
            if issued < min(28, s_ + 1 + LA): pre[("t", s_)] += xl(issued); issued += 1
        if opt("g3s", 0) and common.STAMPS and s_ in (0, 8, 16, 27):
            g = A(); common.stamp(g, {0: 2, 8: 3, 16: 12, 27: 13}[s_]); pre[("s", s_)] += g.l
    g = A(); g("ds_write_b32 v13, v11"); garrive(g, 0); pre[("m", 28*NA - 3)] = g.l
    pre["fillend"] = 28*NA - 4
    if opt("p3h", 0): pre[("s", opt("p3h", 0))] = pre[("s", opt("p3h", 0))] + [f"s_setprio {opt('pb', 1)}"]
    a(f"s_setprio {0 if opt('p3h', 0) else opt('p3a', 1)}")
    kloop(a, ACC, WF, XR, 2, t1, woff, pre, True, f.l, R=6, D=5, cs=(CS, CSP, 32))
    a(f"s_setprio {opt('pb', 1)}")
    cs_collect()
    stamp(a, 13 if False else 14)
    def gfrag(fr, o):
        return gelu8(ACC + 8*fr, 10, 12, 14, TMP + 8, o) + [f"buffer_store_dwordx4 {v(o,4)}, v0, {s(WD,4)}, s{sK if fr < 4 else 27} offen offset:{(fr&3)*1024}{SC}"]
    assert NA == 2 or not opt("w4e", 0)
    garrive(a, 0)
    mean_fix(a, ACC, WF, lambda t: CSP + t, M0_, M1_, tuple(range(NA)))
    srd(a, WA, 18, 1792 * 896)
    a(f"""v_lshrrev_b32 v8, 3, v1
          v_bfe_u32 v9, v1, 4, 1
          v_lshlrev_b32 v9, 2, v9
          v_and_b32 v7, 7, v1
          v_xor_b32 v9, v9, v7
          v_mul_u32_u24 v8, 896, v8
          v_lshl_add_u32 v7, v9, 4, v8
          s_and_b32 s3, s2, 1
          s_mul_i32 s3, s3, 56
          s_add_u32 s3, s3, s{sW}
          s_mul_i32 s3, s3, {16*896}
          s_lshl_b32 s26, s{sCB}, 7
          s_add_u32 s3, s3, s26
          v_add_u32 v7, s3, v7                   ; W4 voffset
          s_mul_i32 s{sK3}, s{sCB}, {8*16*896*ROT}""")
    def w4step(g, j):
        for u in range(2):
            g(f"s_add_u32 m0, s{sL}, {j*8192 + u*1024}\ns_add_u32 s3, s{sK3}, {u*8*896}\nbuffer_load_dwordx4 v7, {s(WA,4)}, s3 offen lds")
        wrapinc(g, sK3, 4*16*896, 896*896)
    nov = opt("nov", 2*NA)
    pre = {"G": opt("g3b", 4 - NA)}
    W4S = opt("w4s", 3)
    W4E = opt("w4e", 0)
    g = A(); g.uid = 2000; gwait(g, 0, 20); pre[("s", W4S if W4E else 26)] = g.l
    for j in range(W4E):
        g = A(); w4step(g, j); pre[("t", W4S + (21 // W4E)*j)] = g.l
    kloop(a, ACC, WF, XR, 2, t2_, woff, pre, True,
          sum((gfrag(fr, XR + 4*fr) for fr in range(nov)), []), R=6, D=5)
    garrive(a, 0)
    OWN = XR
    mean_fix(a, ACC, WF, lambda t: CSP + t, M0_, M1_, tuple(range(NA if NA < 4 else 0, 4)))
    for fr in range(nov, 8):
        if opt("pkg", 0):
            gelu_pairs(a, [ACC + 8*fr + 2*i for i in range(4)], 10, 12, 14, TMP + 8)
            for i in range(4): a(f"v_cvt_pk_bf16_f32 v{XR+4*fr+i}, v{ACC+8*fr+2*i}, v{ACC+8*fr+2*i+1}")
            a(gfrag(fr, XR + 4*fr)[-1])
        else:
            for x in gfrag(fr, OWN + 4*fr): a(x)
    stamp(a, 8)
    ACC, WF, AR, EP = 16, 80, 144, 176
    WOB = 0
    srd(a, WB_, 8, 448 * 896)
    a("s_and_b32 s27, s2, 1")
    gwait(a, 0, B_G3_DONE)
    NP0 = opt("np0", 0)
    lo()
    for j in range(W4E, W4E + NP0): w4step(a, j)
    hi()
    a(f"""s_lshl_b32 s3, s{sRB3}, 4
          s_add_u32 s3, s3, s{sCB3}
          s_lshl_b32 s3, s3, 7
          s_add_u32 s{sX}, s3, {F3}
          s_mul_i32 s3, s{sT3}, 112
          s_mul_i32 s26, s27, 56
          s_add_u32 s3, s3, s26
          s_lshl_b32 s3, s3, 10
          s_add_u32 s3, s3, {HHF}
          v_add_u32 v4, s3, v0
          s_add_u32 s{sKA}, s{sCB}, 1
          s_cmp_eq_u32 s{sKA}, 7
          s_cselect_b32 s{sKA}, 0, s{sKA}
          s_lshl_b32 s{sKA}, s{sKA}, 13
          s_lshl_b32 s26, s{sRB3}, 4
          s_mul_i32 s3, s27, 7
          s_add_u32 s3, s3, s26
          v_add_u32 v10, s3, v1
          v_lshlrev_b32 v10, 7, v10
          v_add_u32 v10, {F3}, v10
          s_lshl_b32 s3, s{sFT}, 3
          s_add_u32 s3, s3, s26
          v_and_b32 v14, 7, v1
          v_add_u32 v14, s3, v14
          v_lshlrev_b32 v14, 7, v14
          v_add_u32 v14, {FA}, v14
          s_waitcnt vmcnt({2*NP0})""")
    signal(a, sX, 16)
    stamp(a, 9)
    lo()
    for j in range(W4E + NP0, 14): w4step(a, j)
    hi()
    a(f"""s_mul_i32 s3, s27, {896*896}
          s_mul_i32 s26, s{sW}, {96*896}
          s_sub_u32 s3, s26, s3
          v_add_u32 v7, s3, v7""")
    poll(a, 10, 7)
    gbar(a, 0, B_G3_DONE + 4)
    stamp(a, 10)
    LA4, RA = opt("la4", 12), 14
    PB = opt("pb16", 1); NPS = 8 >> PB
    OR_ = lambda u: 168 + 8*u if u < 7 else 240
    PD, EP = 112, 128
    q = []
    def after(tag):
        return len(q) - 1 - max(i for i, x in enumerate(q) if x == tag)
    def al(u):
        a(f"buffer_load_dwordx4 {v(AR + 4*(u % RA), 4)}, v4, {s(WD,4)}, s{sKA} offen offset:{(u&3)*1024}{SC}"); q.append(("a", u))
        if (u & 3) == 3 and u < 55: wrapinc(a, sKA, 4096, 56*1024)
    def rd(m):
        s_, b = m >> 1, m & 1
        if m == 64: a("v_add_u32 v2, 0x10000, v2\nv_add_u32 v3, 0x10000, v3")
        for e in range(2): a(f"ds_read_b64_tr_b16 {v(WF + 4*(m & 7) + 2*e, 2)}, v{2+b} offset:{(s_ & 31)*2048 + e*1024}")
    def wo(u):
        a(f"s_add_u32 m0, s{sM}, {u*1024}\ns_mov_b32 s3, {u*8*896}\nbuffer_load_dwordx4 v7, {s(WB_,4)}, s3 offen lds"); q.append(("w", u))
    def ol(u):
        for aa in range(2):
            k = 2*u + aa
            a(f"buffer_load_dwordx4 {v(OR_(u)+4*aa,4)}, v{12 + (k >> 3)}, {s(WD,4)}, {'0' if (k & 7) < 4 else 's%d' % sL} offen offset:{(k&3)*1024}{SC}"); q.append(("o", u))
    assert ROT
    I0 = opt("i0", 2); nxt = [8 + I0]
    for u in range(8, 8 + I0): al(u)
    a(f"""s_mul_i32 s{sM}, s{sW}, 15360
          s_movk_i32 s{sL}, 4096
          s_lshl_b32 s3, s{sT}, 5
          s_lshl_b32 s26, s{sFT}, 4
          s_add_u32 s3, s3, s26
          s_lshl_b32 s3, s3, 10
          s_add_u32 s3, s3, {OF}
          v_add_u32 v12, s3, v0
          v_add_u32 v13, 8192, v12
          s_setprio {opt('pf', 0)}""")
    D4 = 6
    S_ARR, S_WO, S_FL, S_CHK = 31, opt("swo", 40), opt("sfl", 54), 99
    for m in range(D4): rd(m)
    for m in range(112):
        s_, b = m >> 1, m & 1
        if b == 0: a("s_waitcnt " + (f"vmcnt({after(('a', s_))}) " if s_ >= 8 else "") + f"lgkmcnt({2*max(0, min(D4 - 2, 110 - m))})")
        a(f"{MF} {v(ACC+16*b,16)}, {v(WF + 4*(m & 7), 4)}, {v(AR + 4*(s_ % RA) if s_ >= 8 else OWN + 4*s_, 4)}, {'0' if s_ == 0 else v(ACC+16*b,16)}")
        if m + D4 < 112: rd(m + D4)
        if b == 1:
            if opt("g4s", 0) and s_ in (7, 8, 30, 36, 51): stamp(a, {7: 2, 8: 3, 30: 12, 36: 13, 51: 4}[s_])
            for _ in range(opt("i1", 2) if s_ < 8 else 1):
                if nxt[0] < min(56, max(s_, 7) + 1 + LA4): al(nxt[0]); nxt[0] += 1
            if s_ == S_ARR: garrive(a, 0)
            if s_ == S_WO: gwait(a, 0, B_G3_DONE + 8)
            if S_WO <= s_ < S_WO + 15: wo(s_ - S_WO)
            if s_ == S_FL:
                a(f"buffer_load_dword v15, v14, {s(WD,4)}, 0 offen sc1"); q.append("f")
    a(f"s_setprio {opt('pb', 1)}")
    stamp(a, 11)
    a(f"""s_lshl_b32 s{sX}, s2, 7
          s_add_u32 s{sX}, s{sX}, {FQ}
          s_lshl_b32 s3, s{sFT}, 6
          s_mul_i32 s26, s{sFT}, {2*15360}
          s_add_u32 s26, s26, 0xffff0000
          v_xor_b32 v2, s3, v2
          v_xor_b32 v3, s3, v3
          v_add_u32 v2, s26, v2
          v_add_u32 v3, s26, v3
          s_xor_b32 s3, s{sRB}, 1
          s_mul_i32 s3, s3, 7
          s_add_u32 s3, s3, s{sCB}
          s_lshl_b32 s3, s3, 1
          s_and_b32 s26, s{sW}, 1
          s_add_u32 s3, s3, s26
          s_lshl_b32 s3, s3, {13 - PB}
          s_add_u32 s3, s3, {PART}
          s_cmp_eq_u32 s{sFT}, 0
          s_cselect_b32 s3, {OOB}, s3
          s_add_u32 s26, s3, 4096""")
    woff2 = lambda k: (k >> 3)*15360 + (28*((k >> 1) & 3) + 16*(k & 1)) * 128
    if PB:
        for i in range(16):
            a(f"v_cvt_pk_bf16_f32 v{PD+i}, v{ACC+2*i}, v{ACC+2*i+1}")
            if (i & 3) == 3: a(f"buffer_store_dwordx4 {v(PD+i-3,4)}, v0, {s(WD,4)}, s3 offen offset:{(i>>2)*1024}{SC}")
    else:
        for i in range(8): a(f"buffer_store_dwordx4 {v(ACC+4*i,4)}, v0, {s(WD,4)}, s{3 if i < 4 else 26} offen offset:{(i&3)*1024}{SC}")
    a(f"""s_mov_b32 s{sKA}, 0
          s_waitcnt vmcnt({NPS})""")
    garrive(a, C_W, 1)
    a(f"""v_cmp_eq_u32 vcc, 0, v15
          s_cbranch_vccz B_oready
          s_waitcnt vmcnt(0)""")
    signal(a, sX, C_SQ)
    a(f"s_mov_b32 s{sKA}, 1")
    poll(a, 14, 8)
    a.label("B_oready")
    for u in range(8): ol(u)
    stamp(a, 15)
    a(f"""s_mul_i32 s27, s{sRB}, 7
          s_add_u32 s27, s27, s{sCB}
          s_lshl_b32 s27, s27, 1
          s_and_b32 s26, s{sW}, 1
          s_add_u32 s27, s27, s26
          s_lshl_b32 s27, s27, 1
          s_add_u32 s27, s27, s{sFT}
          s_lshl_b32 s27, s27, {12 - PB}
          s_add_u32 s{sK}, s27, {PART}
          s_xor_b32 s3, s2, 1
          s_lshl_b32 s3, s3, 7
          s_add_u32 s3, s3, {FQ}
          v_mov_b32 v14, s3
          s_cmp_eq_u32 s{sFT}, 0
          s_cbranch_scc1 B_keep""")
    for i in range(32): a(f"v_mov_b32 v{ACC+i}, 0")
    a.label("B_keep")
    srd(a, XS, 20, 2048 * 896)
    OSC = ["", " sc1", " nt"][opt("osc", 2)]
    OT = WOB + 4*15360
    a(f"""v_and_b32 v4, 31, v1
          s_and_b32 s26, s{sW}, 1
          s_lshl_b32 s26, s26, 5
          v_add_u32 v4, s26, v4
          v_mul_u32_u24 v4, 144, v4
          v_lshrrev_b32 v9, 5, v1
          v_lshl_add_u32 v4, v9, 3, v4
          s_lshl_b32 s26, s{sFT}, 6
          s_add_u32 s26, s26, {OT}
          v_add_u32 v4, s26, v4
          v_lshrrev_b32 v6, 3, v1
          s_lshl_b32 s26, s{sW}, 4
          v_add_u32 v6, s26, v6
          v_and_b32 v9, 7, v1
          v_mul_u32_u24 v5, 144, v6
          v_lshl_add_u32 v5, v9, 4, v5
          v_add_u32 v5, {OT}, v5
          v_mul_u32_u24 v6, 896, v6
          v_lshl_add_u32 v6, v9, 4, v6
          s_mul_i32 s27, s{sRB}, {64*896}
          s_lshl_b32 s26, s{sCB}, 7
          s_add_u32 s27, s27, s26
          s_add_u32 s62, s27, {8*896}""")
    pair_addrs(a, 10, 80 * 1024)
    gwait(a, C_W, 4, field=1)
    for k in range(3): wreads(a, WF, k, woff2(k))
    a(f"s_waitcnt vmcnt(16)\ns_cmp_lg_u32 s{sKA}, 0\ns_cbranch_scc1 B_sigd")
    signal(a, sX, C_SQ)
    a.label("B_sigd")
    for k in range(16):
        a(f"s_waitcnt vmcnt({15 - k + (k > 11)}) lgkmcnt({4*min(2, 15 - k)})")
        for b in range(2): a(f"{MF} {v(ACC+16*b,16)}, {v(WF+8*(k&3)+4*b,4)}, {v(OR_(k >> 1)+4*(k & 1),4)}, {v(ACC+16*b,16)}")
        if k + 3 < 16: wreads(a, WF, (k+3) & 3, woff2(k+3))
        if k == 11: a(f"buffer_load_dword v15, v14, {s(WD,4)}, 0 offen sc1")
    if opt("ts", 0): stamp(a, 2)
    def fetch_partial():
        a("s_waitcnt vmcnt(0)\nv_cmp_eq_u32 vcc, 0, v15\ns_cbranch_vccz B_pready")
        poll(a, 14, 1)
        a.label("B_pready")
        for i in range(4 >> PB): a(f"buffer_load_dwordx4 {v(PD+16*PB+4*i,4)}, v0, {s(WD,4)}, s{sK} offen offset:{i*1024}{SC}")
    def residual():
        for i in range(16): a(f"v_add_f32 v{ACC+i}, v{ACC+i}, v{RES+i}")
    reduce2(a, ACC, 10, 0, B_G3_DONE + 12, pre=residual, mid=fetch_partial)
    if opt("ts", 0): stamp(a, 3)
    a("s_waitcnt vmcnt(0)")
    if PB: unpack(a, PD, PD + 16, 8)
    for i in range(16): a(f"v_add_f32 v{ACC+i}, v{ACC+i}, v{PD+i}")
    if opt("ts", 0): stamp(a, 12)
    for i in range(8): a(f"v_cvt_pk_bf16_f32 v{EP+i}, v{ACC+2*i}, v{ACC+2*i+1}")
    for j in range(4): a(f"ds_write_b64 v4, {v(EP+2*j,2)} offset:{16*j}")
    gbar(a, 0, B_G3_DONE + 16)
    if opt("ts", 0): stamp(a, 13)
    a(f"""ds_read_b128 {v(EP,4)}, v5
          ds_read_b128 {v(EP+4,4)}, v5 offset:{8*144}
          s_waitcnt lgkmcnt(1)
          buffer_store_dwordx4 {v(EP,4)}, v6, {s(XS,4)}, s27 offen{OSC}
          s_waitcnt lgkmcnt(0)
          buffer_store_dwordx4 {v(EP+4,4)}, v6, {s(XS,4)}, s62 offen{OSC}""")
    stamp_out2(a)
    a("s_endpgm")

def stamp_out2(a):
    if not common.STAMPS: return
    a("s_waitcnt vmcnt(0)")
    common.stamp(a, 6); common.stamp(a, 7, True)
    a("s_waitcnt lgkmcnt(0)")
    for i in range(16): a(f"v_mov_b32 v{16+i}, s{64+2*i}")
    a(f"""s_lshl_b32 s3, s2, 3
          s_add_u32 s3, s3, s60
          s_lshl_b32 s3, s3, 6
          s_add_u32 s3, s3, {TS}
          v_mov_b32 v8, 0""")
    for j in range(4): a(f"buffer_store_dwordx4 v[{16+4*j}:{19+4*j}], v8, {s(WD,4)}, s3 offen offset:{16*j}")

def p1stamps():
    return common.STAMPS and opt("p1s", 0)

def build(name):
    a = A()
    a.label("K_start")
    a("s_cmp_ge_u32 s2, 256\ns_cbranch_scc1 K_end")
    load_args(a)
    a(f"""v_and_b32 v1, 63, v0
          v_lshrrev_b32 v8, 6, v0
          s_mov_b32 s59, {fb(2.0**100)}
          v_readfirstlane_b32 s60, v8
          v_lshlrev_b32 v0, 4, v1
          s_and_b32 s{sW}, s60, 3
          s_cmp_ge_u32 s60, 4""")
    if opt("bfirst", 1):
        a("s_cbranch_scc0 K_rolea")
        p1b(a)
        a("s_branch K_roleb")
        a.label("K_rolea")
        p1a(a)
        att(a)
        a.label("K_roleb")
        roleb(a)
    else:
        a("s_cbranch_scc1 K_roleb")
        p1a(a)
        att(a)
        a.label("K_roleb")
        p1b(a)
        roleb(a)
    a.label("K_end")
    a("s_endpgm")
    a.label("K_last")
    return a

if __name__ == "__main__":
    if "stamp" in sys.argv[1]: common.STAMPS = True
    if "mini" in sys.argv[1]: common.STAMPS = common.MINI = True
    name = "parallel_sum__mha_block__mixer_s_mlp__prompt_kernel"
    HDR = open("parallel_sum__mha_block__mixer_s_mlp__prompt.s.ref").read().split("; Override launch")[0]
    DOC = """;
"""
    out = HDR + "; @launch grid=(256,1,1) block=(512,1,1) lds=163840\n" + DOC + '.amdgcn_target "amdgcn-amd-amdhsa--gfx950"\n'
    out += kernel_head(name) + build(name).text() + kernel_desc(name, vgpr=256, sgpr=102)
    open(sys.argv[1], "w").write(out)
```

```python
import sys
import common
from common import *

FLG = 0x1550000
FP, F2, F3, FA, FQ = FLG, FLG + 0x8000, FLG + 0x10000, FLG + 0x18000, FLG + 0x20000
NINIT = 20
PART = 0x1600000
WS_END = 0x1A00000
sFT = 52
CS3P = 0x800000
XS, WA, WD, WB_ = 28, 32, 36, 40
sW, sSPIN = 46, 58
SC = " sc1"
CNT = 156 * 1024
C_B, C_A, C_S1, C_S2, C_S3, C_SA, C_W, C_X, C_SQ = 0, 4, 8, 12, 16, 20, 24, 28, 32
SPIN_MAX = 1 << 16
import os
OPT = dict(x.split("=") for x in os.environ.get("MKOPT", "").split(",") if x)
def opt(k, d): return int(OPT.get(k, d))
SLEEP = opt("sleep", 1)
DEBUG = "dbg" in sys.argv[1] if len(sys.argv) > 1 else False


def poll(a, vaddr, nlanes, srdreg=WD, soff="0"):
    L, D = a.newlabel("PL"), a.newlabel("PD")
    a(f"s_mov_b32 s{sSPIN}, {SPIN_MAX}")
    a(f"s_mov_b64 exec, {(1 << nlanes) - 1}" if nlanes <= 6 else f"s_bfm_b64 exec, {nlanes}, 0")
    a.label(L)
    a(f"""buffer_load_dword v9, v{vaddr}, {s(srdreg,4)}, {soff} offen sc1
          s_waitcnt vmcnt(0)
          v_cmp_eq_u32 vcc, 0, v9
          s_cbranch_vccz {D}
          s_sleep {SLEEP}
          s_sub_u32 s{sSPIN}, s{sSPIN}, 1
          s_cmp_lg_u32 s{sSPIN}, 0
          s_cbranch_scc1 {L}""")
    a.label(D)
    a("s_mov_b64 exec, -1")
    jitter(a)

TF = ["", " sc1", " nt", " sc0 sc1"][opt("tf", 0)]
SCB = "" if opt("local", 0) else " sc1"
def signal(a, soff, cnt, sc=" sc1", last=3):
    jitter(a)
    a(f"""s_mov_b64 exec, 1
          v_mov_b32 v8, {CNT + cnt}
          v_mov_b32 v9, 1
          ds_add_rtn_u32 v8, v8, v9
          s_waitcnt lgkmcnt(0)
          v_readfirstlane_b32 s26, v8
          v_mov_b32 v8, 0
          s_cmp_eq_u32 s26, {last}
          s_cselect_b32 s26, s{soff}, {OOB}
          buffer_store_dword v9, v8, {s(WD,4)}, s26 offen{sc}
          s_mov_b64 exec, -1""")

JIT = [0]
def jitter(a):
    if not opt("jit", 0): return
    JIT[0] += 1
    L = f"JT_{JIT[0]}"
    a(f"""s_mul_i32 s100, s2, {37 + 2*JIT[0]}
          s_add_u32 s100, s100, s60
          s_mul_i32 s100, s100, {101 + opt("jit", 0)}
          s_bitcmp1_b32 s100, {3 + JIT[0] % 3}
          s_cbranch_scc0 {L}
          s_sleep {20 + 13*(JIT[0] % 7)}""")
    a.label(L)

def garrive(a, off, field=0):
    jitter(a)
    a(f"""s_mov_b64 exec, 1
          v_mov_b32 v8, {CNT + off}
          v_mov_b32 v9, {1 << (4*field)}
          ds_add_u32 v8, v9
          s_mov_b64 exec, -1""")

def gwait(a, off, target, va=8, sr=3, field=None):
    L, D = a.newlabel("GL"), a.newlabel("GD")
    a(f"s_mov_b32 s{sSPIN}, {SPIN_MAX * 8}\nv_mov_b32 v{va}, {CNT + off}")
    a.label(L)
    a(f"""ds_read_b32 v{va+1}, v{va}
          s_sub_u32 s{sSPIN}, s{sSPIN}, 1
          s_cbranch_scc1 {D}
          s_waitcnt lgkmcnt(0)
          v_readfirstlane_b32 s{sr}, v{va+1}
          {"" if field is None else f"s_bfe_u32 s{sr}, s{sr}, {0x40000 + 4*field}"}
          s_cmp_lt_u32 s{sr}, {target}
          s_cbranch_scc1 {L}""")
    a.label(D)
    a("s_waitcnt lgkmcnt(0)")
    jitter(a)

def gbar(a, off, target):
    a("s_waitcnt lgkmcnt(0)")
    garrive(a, off); gwait(a, off, target)

def kloop(a, ACC, WF, XR, vA, tiles, offs, pre, perm, fill=(), R=8, D=6, cs=None):
    ops = [(s_, t) for s_ in range(28) for t in (tiles if s_ < 27 else pre.get("lastorder", tiles))]
    N = len(ops); fill = list(fill); done = 0
    def rd(m):
        s_, t = ops[m]
        if (s_ & 3) == 0 and t == tiles[0]:
            for x in pre.get(s_ >> 2, []): a(x)
        for e in range(2):
            row = 16 * (s_ & 3) + (8 * e if perm else 4 * e)
            a(f"ds_read_b64_tr_b16 {v(WF + 4*(m % R) + 2*e, 2)}, v{vA+t} offset:{offs(s_ >> 2) + row*256 if offs else s_*2048 + e*1024}")
    for m in range(D): rd(m)
    f0 = pre.get("fill0", 1)
    per = max(1, -(-len(fill) // (pre.get("fillend", N - 1) - f0)))
    for m, (s_, t) in enumerate(ops):
        if (s_ & 3) == 0 and t == tiles[0]:
            for x in pre.get(("x", s_ >> 2), []): a(x)
        if t == tiles[0]:
            for x in pre.get(("s", s_), []): a(x)
        G = pre.get("G", 1)
        if m % G == 0: a(f"s_waitcnt lgkmcnt({2*max(0, min(D - G, N - G - m))})")
        if t < 4: a(f"{MF} {v(ACC+16*t,16)}, {v(WF + 4*(m % R), 4)}, {v(XR(s_) if callable(XR) else XR+4*s_,4)}, {'0' if s_ == 0 else v(ACC+16*t,16)}")
        elif len(cs) == 3: a(f"{MF} {v(cs[0],16)}, {v(cs[1],4)}, {v(WF + 4*(m % R), 4)}, {'0' if s_ == 0 else v(cs[0],16)}")
        else: a(f"v_mfma_f32_16x16x32_bf16 {v(cs[0],4)}, {v(cs[1],4)}, {v(WF + 4*(m % R), 4)}, {'0' if s_ == 0 else v(cs[0],4)}")
        if m + D < N: rd(m + D)
        if (s_ & 3) == 0 and t == tiles[0]:
            for x in pre.get(("y", s_ >> 2), []): a(x)
        if t == tiles[min(1, len(tiles) - 1)]:
            for x in pre.get(("t", s_), []): a(x)
        for x in pre.get(("m", m), []): a(x)
        if m >= f0:
            for x in fill[done:done + per]: a(x)
            done += per
    for x in fill[done:]: a(x)

def kburst(a, ACC, WF, XR, vA, offs, pre, fill=()):
    fill = list(fill); per = -(-len(fill) // 26); done = 0
    def rd(s_):
        if (s_ & 3) == 0:
            for x in pre.get(s_ >> 2, []): a(x)
        for t in range(4):
            for e in range(2):
                a(f"ds_read_b64_tr_b16 {v(WF + 16*(s_ & 1) + 4*t + 2*e, 2)}, v{vA+t} offset:{offs(s_ >> 2) + (16*(s_ & 3) + 8*e)*256}")
    rd(0); rd(1)
    for s_ in range(28):
        if (s_ & 3) == 0:
            for x in pre.get(("x", s_ >> 2), []): a(x)
        a(f"s_waitcnt lgkmcnt({8 if s_ < 27 else 0})")
        for t in range(4):
            a(f"{MF} {v(ACC+16*t,16)}, {v(WF + 16*(s_ & 1) + 4*t, 4)}, {v(XR+4*s_,4)}, {'0' if s_ == 0 else v(ACC+16*t,16)}")
        if s_ + 2 < 28: rd(s_ + 2)
        if s_:
            for x in fill[done:done + per]: a(x)
            done += per

def tr_addrs(a, vA, sTS, base, perm, which=(0, 1, 2, 3, 4)):
    a(f"""v_lshrrev_b32 v8, 5, v1
          v_bfe_u32 v9, v1, 2, 2
          v_bfe_u32 v10, v1, 4, 1
          v_and_b32 v11, 3, v1
          v_lshl_add_u32 v10, v10, 2, v11
          v_lshl_add_u32 v8, v8, {2 if perm else 3}, v9
          v_lshlrev_b32 v8, 8, v8
          v_add_u32 v8, {base}, v8
          v_lshlrev_b32 v9, 2, v9""")
    for t in which:
        a(f"s_mul_i32 s26, {sTS}, {t}" if t < 4 else f"s_mul_i32 s26, {sTS}, s{sW}")
        a(f"""v_add_u32 v11, s26, v10
              v_lshrrev_b32 v12, 1, v11
              v_add_u32 v12, v12, v9
              v_and_b32 v12, 15, v12
              v_and_b32 v11, 1, v11
              v_lshlrev_b32 v11, 3, v11
              v_lshl_add_u32 v11, v12, 4, v11
              v_add_u32 v{vA+t}, v8, v11""")

def cs_publish(a, CS, T, xch):
    a(f"""v_cvt_pk_bf16_f32 v{T}, v{CS}, v{CS}
          v_and_b32 v{T+1}, 0xffff0000, v{T}
          v_sub_f32 v{T+1}, v{CS}, v{T+1}
          v_cvt_pk_bf16_f32 v{T}, v{CS}, v{T+1}
          v_and_b32 v10, 31, v1
          v_lshlrev_b32 v10, 2, v10
          v_add_u32 v10, {xch}, v10
          s_lshl_b32 s26, s{sW}, 7
          v_add_u32 v9, s26, v10
          ds_write_b32 v9, v{T}""")

def mean_fix(a, ACC, T, src, vMU0, vMU1, tiles=(0, 1, 2, 3)):
    n = len(tiles)
    a(f"v_mov_b32 v{T+4*n}, v{vMU0}\nv_mov_b32 v{T+4*n+1}, v{vMU1}\nv_mov_b32 v{T+4*n+2}, 0\nv_mov_b32 v{T+4*n+3}, 0")
    for i, t in enumerate(tiles):
        if src(t) != T + 4*i: a(f"v_mov_b32 v{T+4*i}, v{src(t)}")
        a(f"v_and_b32 v{T+4*i+1}, 0xffff, v{src(t)}\nv_mov_b32 v{T+4*i+2}, 0\nv_mov_b32 v{T+4*i+3}, 0")
    for i, t in enumerate(tiles): a(f"{MF} {v(ACC+16*t,16)}, {v(T+4*i,4)}, {v(T+4*n,4)}, {v(ACC+16*t,16)}")

def mu_frag(a, vmu, lo_en, d0, d1):
    a(f"""v_cvt_pk_bf16_f32 v{d0}, -v{vmu}, -v{vmu}
          v_and_b32 v8, 0xffff0000, v{d0}
          v_sub_f32 v8, -v{vmu}, v8
          v_cvt_pk_bf16_f32 v{d1}, v8, 0
          v_and_b32 v{d1}, {lo_en}, v{d1}
          v_lshrrev_b32 v8, 5, v1
          v_add_u32 v8, -1, v8
          v_and_b32 v{d0}, v8, v{d0}
          v_and_b32 v{d1}, v8, v{d1}""")

def gelu_consts(a, R, DEN):
    a(f"""v_mul_f32 v10, {fb(GK1)}, v{R}
          v_mul_f32 v12, v{R}, v{R}
          v_mul_f32 v12, v12, v{R}
          v_mul_f32 v12, {fb(GK2)}, v12
          v_mov_b32 v14, v{DEN}""")

def gelu8(regs0, K1, K2, IS, T, out):
    L = []
    for i in range(8): L.append(f"v_mul_f32 v{T+i}, v{regs0+i}, v{regs0+i}")
    for i in range(8): L.append(f"v_fma_f32 v{T+i}, v{T+i}, v{K2}, v{K1}")
    for i in range(8): L.append(f"v_mul_f32 v{T+i}, v{T+i}, v{regs0+i}")
    for i in range(8): L.append(f"v_exp_f32 v{T+i}, v{T+i}")
    for i in range(8): L.append(f"v_fma_f32 v{T+i}, v{T+i}, v{IS}, v{IS}")
    for i in range(8): L.append(f"v_rcp_f32 v{T+i}, v{T+i}")
    for i in range(8): L.append(f"v_mul_f32 v{T+i}, v{T+i}, v{regs0+i}")
    for i in range(4): L.append(f"v_cvt_pk_bf16_f32 v{out+i}, v{T+2*i}, v{T+2*i+1}")
    return L

def wrapinc(a, sreg, step, lim):
    a(f"s_add_u32 s{sreg}, s{sreg}, {step}\ns_cmp_eq_u32 s{sreg}, {lim}\ns_cselect_b32 s{sreg}, 0, s{sreg}")

def reduce3(a, ACC, sM, region, cnt_off, target, xor, mid=None):
    a(f"v_add_u32 v10, s{sM}, v0")
    for j in range(1, 4):
        for i in range(4): a(f"ds_write_b128 v10, {v(ACC+16*j+4*i,4)} offset:{(j-1)*4096 + i*1024}")
    for j in range(1, 4):
        region(26, j)
        a(f"v_add_u32 v{10+j}, s26, v0")
    gbar(a, cnt_off, target)
    if mid: mid()
    for j in range(1, 4):
        for i in range(4): a(f"ds_read_b128 {v(ACC+16*j+4*i,4)}, v{10+j} offset:{(j-1)*4096 + i*1024}")
    for j in range(1, 4):
        a(f"s_waitcnt lgkmcnt({4*(3-j)})")
        for i in range(16): a(f"v_add_f32 v{ACC+i}, v{ACC+i}, v{ACC+16*j+i}")

def reduce3c(a, ACC, sM, region, cnt_off, target):
    BL = 3712
    a(f"""v_add_u32 v10, s{sM}, v0
          v_lshlrev_b32 v14, 2, v1
          v_add_u32 v14, {3584 - 128}, v14
          v_add_u32 v15, s{sM}, v14""")
    for j in range(1, 4):
        for i in range(3): a(f"ds_write_b128 v10, {v(ACC+16*j+4*i,4)} offset:{(j-1)*BL + i*1024}")
    a("s_mov_b64 exec, 0xffffffff")
    for j in range(1, 4): a(f"ds_write_b128 v10, {v(ACC+16*j+12,4)} offset:{(j-1)*BL + 3072}")
    a("s_not_b64 exec, exec")
    for j in range(1, 4): a(f"ds_write_b32 v15, v{ACC+16*j+12} offset:{(j-1)*BL}")
    a("s_mov_b64 exec, -1")
    for j in range(1, 4):
        region(26, j)
        a(f"v_add_u32 v{10+j}, s26, v0\nv_add_u32 v{4+j}, s26, v14")
    gbar(a, cnt_off, target)
    a("s_mov_b64 exec, 0xffffffff")
    for j in range(1, 4): a(f"ds_read_b128 {v(ACC+16*j+12,4)}, v{10+j} offset:{(j-1)*BL + 3072}")
    a("s_not_b64 exec, exec")
    for j in range(1, 4): a(f"ds_read_b32 v{ACC+16*j+12}, v{4+j} offset:{(j-1)*BL}")
    a("s_mov_b64 exec, -1")
    for j in range(1, 4):
        for i in range(3): a(f"ds_read_b128 {v(ACC+16*j+4*i,4)}, v{10+j} offset:{(j-1)*BL + i*1024}")
    for j in range(1, 4):
        a(f"s_waitcnt lgkmcnt({3*(3-j)})")
        for i in range(16): a(f"v_add_f32 v{ACC+i}, v{ACC+i}, v{ACC+16*j+i}")

def unpack(a, dst, src, n):
    for i in range(n):
        a(f"v_lshlrev_b32 v{dst+2*i}, 16, v{src+i}\nv_and_b32 v{dst+2*i+1}, 0xffff0000, v{src+i}")

NBAR_P1 = 10
XB = 112 * 1024
XCH = XB + 16384
def p1a(a):
    a(f"s_setprio {opt('pa1', 2)}")
    ACC, CS, WF, XR, TMP = 16, 80, 96, 136, 248
    sRB, sCB, sTY, sSUB, sTS, sLO, sT = 44, 45, 47, 48, 50, 55, 56
    a(f"""s_and_b32 s26, s2, 7
          s_lshr_b32 s27, s2, 3
          s_lshr_b32 s{sRB}, s26, 1
          s_lshl_b32 s{sRB}, s{sRB}, 2
          s_and_b32 s3, s27, 3
          s_add_u32 s{sRB}, s{sRB}, s3
          s_and_b32 s{sCB}, s26, 1
          s_lshl_b32 s{sCB}, s{sCB}, 3
          s_lshr_b32 s3, s27, 2
          s_add_u32 s{sCB}, s{sCB}, s3
          s_lshr_b32 s{sTY}, s{sCB}, 2
          s_and_b32 s{sSUB}, s{sCB}, 3
          s_cmp_eq_u32 s{sTY}, 3
          s_cselect_b32 s{sTS}, 8, 7
          s_cselect_b32 s{sLO}, -1, 0
          s_lshl_b32 s{sT}, s{sRB}, 2
          s_add_u32 s{sT}, s{sT}, s{sW}""")
    tr_addrs(a, 2, f"s{sTS}", 0, perm=False)
    a(f"""v_and_b32 v8, 15, v1
          v_bfe_u32 v9, v1, 4, 1
          v_cmp_eq_u32 vcc, v8, v9
          v_mov_b32 v8, 0x3f803f80
          v_cndmask_b32 v{CS+4}, 0, v8, vcc
          v_mov_b32 v{CS+5}, v{CS+4}
          v_mov_b32 v{CS+6}, v{CS+4}
          v_mov_b32 v{CS+7}, v{CS+4}
          v_and_b32 v8, 31, v1
          v_lshrrev_b32 v9, 5, v1
          v_bfe_u32 v10, v1, 1, 3
          v_xor_b32 v9, v9, v10
          v_lshlrev_b32 v8, 7, v8
          v_lshl_add_u32 v8, v9, 4, v8
          s_lshl_b32 s3, s{sW}, 12
          s_add_u32 s3, s3, {XB}
          v_add_u32 v{CS+8}, s3, v8
          v_xor_b32 v{CS+9}, 32, v{CS+8}
          v_xor_b32 v{CS+10}, 64, v{CS+8}
          v_xor_b32 v{CS+11}, 96, v{CS+8}
          s_waitcnt lgkmcnt(0)""")
    srd(a, WD, 24, WS_END)
    ONE = TMP
    M0_, M1_, R, DEN = TMP+4, TMP+5, TMP+6, TMP+7
    a(f"""v_and_b32 v10, 31, v1
          v_lshlrev_b32 v10, 2, v10
          v_add_u32 v10, {XCH}, v10
""")
    stamp(a, 12)
    pre = {}
    for c in range(7):
        pre[c] = ["s_barrier"] + [f"ds_read_b128 {v(XR + 16*(c&1) + 4*i, 4)}, v{CS+8+i} offset:{(c % 3)*16384}" for i in range(4)]
        if opt("sqv", 0) == 0:
            pre[("y", c)] = [f"v_dot2_f32_bf16 v{12+(i&1)}, v{XR+16*(c&1)+i}, v{XR+16*(c&1)+i}, {'0' if c == 0 and i < 2 else 'v%d' % (12+(i&1))}" for i in range(16)]
    sq = []
    if opt("sqv", 0):
        a("v_mov_b32 v12, 0\nv_mov_b32 v13, 0")
        for s_ in range(28):
            for i in range(4):
                r_ = XR + 16*((s_ >> 2) & 1) + 4*(s_ & 3) + i
                pre[("m", 5*s_ + 1 + i)] = [f"v_lshlrev_b32 v14, 16, v{r_}", f"v_and_b32 v15, 0xffff0000, v{r_}", "v_fmac_f32 v12, v14, v14", "v_fmac_f32 v13, v15, v15"]
    if common.STAMPS:
        for c, st in ((0, 2), (1, 13), (3, 3)):
            g = A(); stamp(g, st); pre[c] = pre[c][:1] + g.l + pre[c][1:]
    pre[4] += [f"v_add_u32 v{2+t}, 0x10000, v{2+t}" for t in range(5)]
    CSB = opt("csb", 0)
    pre["G"] = opt("p1g", 1); pre["lastorder"] = (3, 0, 1, 2) if CSB else (3, 4, 0, 1, 2)
    kloop(a, ACC, WF, lambda s_: XR + 16*((s_ >> 2) & 1) + 4*(s_ & 3), 2, (0, 1, 2, 3) if CSB else (0, 4, 1, 2, 3), lambda c: (c & 3) * 16384, pre, False, [], R=8, D=opt("p1d", 5), cs=(CS, CS+4))
    stamp(a, 4)
    for i in range(0 if CSB else 2):
        a(f"""v_cvt_pk_bf16_f32 v{WF+i}, v{CS+i}, v{CS+i}
              v_and_b32 v{WF+i}, 0xffff0000, v{WF+i}
              v_sub_f32 v{WF+i}, v{CS+i}, v{WF+i}
              v_cvt_pk_bf16_f32 v{WF+i}, v{CS+i}, v{WF+i}""")
    if not CSB:
        a(f"""s_lshl_b32 s26, s{sW}, 7
              v_add_u32 v11, s26, v10
              s_mov_b64 exec, 0xffff
              ds_write2_b32 v11, v{WF}, v{WF+1} offset1:16
              s_mov_b64 exec, -1""")
    a(f"""v_mov_b32 v14, v{ACC+48+12}
          v_mov_b32 v15, v{ACC+48+12}
          v_add_f32 v13, v12, v13
          v_permlane32_swap_b32 v15, v14
          v_mov_b32 v12, v13
          v_permlane32_swap_b32 v13, v12
          v_add_f32 v13, v13, v12
          v_mul_f32 v12, {fb(1/448)}, v14
          v_mul_f32 v13, {fb(1/448)}, v13
          v_fma_f32 v13, -v12, v12, v13
          v_max_f32 v13, 0, v13""")
    bf16r(a, 15, "v13")
    a(f"""v_add_f32 v9, {fb(EPS)}, v13
          v_add_f32 v15, {fb(EPS)}, v15
          v_mov_b32 v14, {fb(EPS)}
          v_fma_f32 v9, v9, v14, v13""")
    bf16r(a, 15, "v15")
    a(f"""v_sqrt_f32 v9, v9
          v_sqrt_f32 v15, v15
          s_waitcnt lgkmcnt(0)
          s_barrier                              ; barrier 7""")
    stamp(a, 14)
    for t in range(4): a(f"ds_read_b32 v{WF+4*t}, v10 offset:{128*t}")
    mu_frag(a, 12, f"s{sLO}", M0_, M1_)
    a(f"v_mov_b32 v14, s{sLO}")
    bf16r(a, 15, "v15")
    bf16r(a, 10, "v12")
    a(f"""v_bfi_b32 v{DEN}, v14, v9, v15
          v_rcp_f32 v{R}, v{DEN}
          s_waitcnt lgkmcnt(0)""")
    mean_fix(a, ACC, WF, lambda t: WF + 4*t, M0_, M1_)
    a(f"""
          s_lshl_b32 s3, s{sT}, 8
          s_add_u32 s3, s3, {ST1}
          s_cmp_eq_u32 s{sCB}, 0
          s_cselect_b32 s3, s3, {OOB}
          v_lshlrev_b32 v8, 3, v1
          v_and_b32 v8, 0xff, v8
          v_mov_b32 v11, v{R}
          buffer_store_dwordx2 v[10:11], v8, {s(WD,4)}, s3 offen{SC}""")
    a(f"""v_lshrrev_b32 v8, 5, v1
          v_add_u32 v8, -1, v8
          s_cmp_eq_u32 s{sTY}, 3
          s_cbranch_scc1 P1_h
          s_cmp_eq_u32 s{sTY}, 0
          s_cselect_b32 s3, {fb(QSCALE)}, 1.0
          v_mul_f32 v10, s3, v{R}
          v_mul_u32_u24 v12, 12, v1
          s_lshl_b32 s3, s{sSUB}, 8
          s_add_u32 s3, s3, s{sT}
          s_movk_i32 s27, 3584
          s_cmp_eq_u32 s{sTY}, 0
          s_cselect_b32 s27, 1792, s27
          s_mul_i32 s3, s3, s27
          s_lshl_b32 s26, s27, 6
          s_cselect_b32 s27, {QF}, {KVF}
          s_add_u32 s3, s3, s27
          s_cmp_eq_u32 s{sTY}, 2
          s_cbranch_scc1 P1_v""".replace("s_lshl_b32 s26, s27, 6", f"s_lshl_b32 s26, s27, 6\ns_mov_b32 s27, {KVF}\ns_cmp_eq_u32 s{sTY}, 0").replace(f"s_cselect_b32 s27, {QF}, {KVF}", f"s_cselect_b32 s27, {QF}, s27"))
    def pack(t):
        for i in range(8): a(f"v_pk_mul_f32 {v(ACC+16*t+2*i,2)}, {v(ACC+16*t+2*i,2)}, v[10:11] op_sel_hi:[1,0]")
        for i in range(8): a(f"v_cvt_pk_bf16_f32 v{XR+8*t+i}, v{ACC+16*t+2*i}, v{ACC+16*t+2*i+1}")
    def put(t, isv=False):
        if isv:
            for f_ in range(2): a(f"buffer_store_dwordx4 {v(XR+8*t+4*f_,4)}, v13, {s(WD,4)}, s3 offen offset:{1792 + f_*896}{SC}")
        else:
            a(f"buffer_store_dwordx4 {v(XR+8*t,4)}, v0, {s(WD,4)}, s3 offen{SC}")
            a(f"v_permlane32_swap_b32 v{XR+8*t+6}, v{XR+8*t+7}")
            a(f"buffer_store_dwordx3 {v(XR+8*t+4,3)}, v12, {s(WD,4)}, s3 offen offset:1024{SC}")
        if t < 3: a("s_add_u32 s3, s3, s26")
    for t in range(4): pack(t); put(t)
    a("s_branch P1_done")
    a.label("P1_v")
    a(f"""s_mul_i32 s27, s{sW}, 9216
          s_add_u32 s27, s27, 0x10000
          v_and_b32 v9, 31, v1
          v_mul_u32_u24 v9, 72, v9
          v_lshrrev_b32 v14, 5, v1
          v_lshl_add_u32 v9, v14, 3, v9
          v_add_u32 v9, s27, v9
          v_bfe_u32 v15, v1, 2, 2
          v_lshl_add_u32 v14, v14, 2, v15
          v_mul_u32_u24 v14, 72, v14
          v_bfe_u32 v15, v1, 4, 1
          v_lshl_add_u32 v14, v15, 5, v14
          v_and_b32 v15, 3, v1
          v_lshl_add_u32 v14, v15, 3, v14
          v_add_u32 v14, s27, v14
          v_lshrrev_b32 v15, 5, v1
          v_lshlrev_b32 v15, 6, v15
          v_sub_u32 v13, v0, v15
          v_and_b32 v15, 31, v1
          v_cmp_gt_u32 vcc, 28, v15
          v_mov_b32 v15, {OOB}
          v_cndmask_b32 v13, v15, v13, vcc""")
    for t in range(5):
        if t < 4:
            pack(t)
            for j in range(4): a(f"ds_write_b64 v9, {v(XR+8*t+2*j,2)} offset:{t*2304 + 16*j}")
        if t:
            a(f"s_waitcnt lgkmcnt({4 if t < 4 else 0})")
            put(t - 1, True)
        if t < 4:
            a("s_waitcnt lgkmcnt(0)")
            for f_ in range(2):
                for e in range(2): a(f"ds_read_b64_tr_b16 {v(XR+8*t+4*f_+2*e,2)}, v14 offset:{t*2304 + (16*f_+8*e)*72}")
    a("s_branch P1_done")
    a.label("P1_h")
    gelu_consts(a, R, DEN)
    a(f"""s_mul_i32 s3, s{sT}, 28
          s_mul_i32 s27, s{sSUB}, 7
          s_add_u32 s3, s3, s27
          s_lshl_b32 s3, s3, 10
          s_add_u32 s3, s3, {HF}
          s_add_u32 s27, s3, 4096""")
    for f in range(7):
        gelu_pairs(a, [ACC + 8*f + 2*i for i in range(4)], 10, 12, 14, WF)
        for i in range(4): a(f"v_cvt_pk_bf16_f32 v{XR+4*f+i}, v{ACC+8*f+2*i}, v{ACC+8*f+2*i+1}")
        a(f"buffer_store_dwordx4 {v(XR+4*f,4)}, v0, {s(WD,4)}, s{3 if f < 4 else 27} offen offset:{(f&3)*1024}{SC}")
    a.label("P1_done")
    garrive(a, C_X, 1)
    stamp(a, 15)
    a(f"""s_waitcnt vmcnt(0)
          s_lshl_b32 s3, s{sCB}, 4
          s_add_u32 s3, s3, s{sRB}
          s_lshl_b32 s3, s3, 7
          s_add_u32 s3, s3, {FP}""")
    signal(a, 3, C_S1, last=7)
    stamp(a, 5)

O_, Q_, S_, E_, P_, KV = 16, 80, 112, 144, 152, 160
sH, sQB, sKV, sN, sMA, sKB = 44, 45, 50, 51, 47, 52
AR_BASE = 112 * 1024

def unit(a, n, q, extra, qk=True):
    Sc, Sn = S_ + 16*(q & 1), S_ + 16*((q+1) & 1)
    nn, nq = (n, q+1) if q < 3 else ((n+1) & 3, 0)
    pn, pq = (n, q-1) if q > 0 else ((n-1) & 3, 3)
    K, Vc, Vp = KV + 16*nn, KV + 16*n + 8, KV + 16*pn + 8
    e = lambda i: a(f"v_exp_f32 v{E_+(i&7)}, v{Sc+i}")
    c = lambda k: a(f"v_cvt_pk_bf16_f32 v{P_+k}, v{E_+((2*k)&7)}, v{E_+((2*k+1)&7)}")
    for x in extra.get(0, []): a(x)
    if qk: a(f"{MF} {v(Sn,16)}, {v(K,4)}, {v(Q_+8*nq,4)}, 0")
    e(0); c(6); e(1); c(7); e(2); e(3)
    a(f"{MF} {v(O_+16*pq,16)}, {v(Vp+4,4)}, {v(P_+4,4)}, {v(O_+16*pq,16)}")
    for x in extra.get(1, []): a(x)
    e(4); c(0); e(5); c(1); e(6); e(7)
    if qk: a(f"{MF} {v(Sn,16)}, {v(K+4,4)}, {v(Q_+8*nq+4,4)}, {v(Sn,16)}")
    for x in extra.get(2, []): a(x)
    e(8); c(2); e(9); c(3); e(10); e(11)
    a(f"{MF} {v(O_+16*q,16)}, {v(Vc,4)}, {v(P_,4)}, {v(O_+16*q,16)}")
    e(12); c(4); e(13); c(5); e(14); e(15)

sKE, sVM, VV = 53, 54, 224
def kvload(slot, f):
    r = KV + 16*slot + 4*f
    if f == 0: return f"buffer_load_dwordx4 {v(r,4)}, v0, {s(WD,4)}, s{sKV} offen{SC}"
    if f == 1: return f"buffer_load_dwordx3 {v(r,3)}, v4, {s(WD,4)}, s{sKV} offen offset:1024{SC}"
    L = f"buffer_load_dwordx4 {v(r,4)}, v{VV}, {s(WD,4)}, s{sKV} offen offset:{1792 + 896*(f - 2)}{SC}"
    return f"s_mov_b64 exec, {s(sVM,2)}\n" + L if f == 2 else L + "\ns_mov_b64 exec, -1"
def kvnext():
    return [f"s_add_u32 s{sKV}, s{sKV}, 3584", f"s_cmp_eq_u32 s{sKV}, s{sKE}", f"s_cselect_b32 s{sKV}, s{sKB}, s{sKV}"]

EARLY = opt("early", 1)
def att(a):
    if p1stamps():
        global stamp
        stamp = lambda *x: None
    a(f"""s_and_b32 s26, s2, 7
          s_lshr_b32 s27, s2, 3
          s_lshl_b32 s{sH}, s26, 1
          s_and_b32 s3, s27, 1
          s_add_u32 s{sH}, s{sH}, s3
          s_lshr_b32 s{sQB}, s27, 1
          s_mul_i32 s{sMA}, s{sW}, 11136
          s_add_u32 s{sMA}, s{sMA}, {AR_BASE}
          s_lshl_b32 s{sKB}, s{sH}, 2
          s_add_u32 s{sKB}, s{sKB}, s{sW}
          s_mul_i32 s{sKB}, s{sKB}, {16*3584}
          s_add_u32 s{sKB}, s{sKB}, {KVF}
          s_add_u32 s{sKE}, s{sKB}, {16*3584}
          s_and_b32 s27, s{sQB}, {3 if EARLY else 15}
          s_mul_i32 s3, s27, {4*3584 if EARLY else 3584}
          s_add_u32 s{sKV}, s{sKB}, s3
          s_mov_b32 s{sVM}, 0x0fffffff
          s_mov_b32 s{sVM+1}, 0x0fffffff
          v_mul_u32_u24 v4, 12, v1
          v_lshrrev_b32 v11, 5, v1
          v_lshlrev_b32 v12, 6, v11
          v_sub_u32 v{VV}, v0, v12
          v_lshlrev_b32 v11, 4, v11
          v_mov_b32 v12, 0x3f803f80
          v_lshrrev_b32 v13, v11, v12
          v_and_b32 v11, 31, v1
          v_cmp_eq_u32 vcc, 28, v11
          v_cndmask_b32 v12, 0, v12, vcc
          s_lshr_b32 s3, s{sH}, 2
          s_lshl_b32 s3, s3, 4
          v_and_b32 v10, 3, v1
          s_lshl_b32 s26, s{sW}, 2
          s_add_u32 s26, s26, s3
          s_add_u32 s26, s26, 64
          v_add_u32 v10, s26, v10
          v_bfe_u32 v11, v1, 2, 1
          v_lshl_add_u32 v10, v11, 6, v10
          s_add_u32 s3, s3, s{sQB}
          v_writelane_b32 v10, s3, 8             ; lane 8: Q
          v_lshlrev_b32 v10, 7, v10
          v_add_u32 v10, {FP}, v10""")
    for i in range(64): a(f"v_mov_b32 v{O_+i}, 0")
    for i in range(8): a(f"v_mov_b32 v{E_+i}, 0\nv_mov_b32 v{P_+i}, 0")
    for n in range(4):
        a(f"v_mov_b32 v{KV+16*n+7}, v13\nv_mov_b32 v{Q_+8*n+7}, 0")
        for i in range(8): a(f"v_mov_b32 v{KV+16*n+8+i}, v12")
    if EARLY:
        a(f"""v_and_b32 v11, 7, v1
              v_lshlrev_b32 v11, 2, v11
              ds_bpermute_b32 v2, v11, v10
              s_lshl_b32 s27, s27, 2
              v_mov_b32 v11, s27
              v_writelane_b32 v11, 32, 2
              s_add_u32 s27, s27, 16
              v_writelane_b32 v11, s27, 1
              ds_bpermute_b32 v10, v11, v10
              s_waitcnt lgkmcnt(0)""")
        poll(a, 10, 3)
    else: poll(a, 10, 9)
    if opt("ayield", 1): gwait(a, C_X, 4, field=0)
    stamp(a, 8)
    for j in range(4):
        a(f"""s_add_u32 s3, s{sW}, {j + 1}
              s_and_b32 s3, s3, 3
              s_lshl_b32 s26, s{sH}, 4
              s_add_u32 s26, s26, s{sQB}
              s_lshl_b32 s26, s26, 2
              s_add_u32 s3, s3, s26
              s_mul_i32 s3, s3, 1792
              s_add_u32 s3, s3, {QF}
              buffer_load_dwordx4 {v(Q_+8*j,4)}, v0, {s(WD,4)}, s3 offen{SC}
              buffer_load_dwordx3 {v(Q_+8*j+4,3)}, v4, {s(WD,4)}, s3 offen offset:1024{SC}""")
        if j == 0:
            for f in range(4): a(kvload(0, f))
            for x in kvnext(): a(x)
    for n in range(1, 3):
        for f in range(4): a(kvload(n, f))
        for x in kvnext(): a(x)
    a(f"""v_add_u32 v10, s{sMA}, v0
          v_lshlrev_b32 v14, 2, v1
          v_add_u32 v14, {3584 - 128}, v14
          v_add_u32 v15, s{sMA}, v14
          v_mov_b32 v8, {CNT + C_B}""")
    for j in range(3):
        a(f"""s_sub_u32 s26, s{sW}, {j + 1}
              s_and_b32 s26, s26, 3
              s_mul_i32 s26, s26, 11136
              s_add_u32 s26, s26, {AR_BASE}
              v_add_u32 v{11+j}, s26, v0
              v_add_u32 v{5+j}, s26, v14""")
    a(f"s_mov_b32 s{sN}, 4\ns_waitcnt vmcnt(14)")
    a(f"{MF} {v(S_,16)}, {v(KV,4)}, {v(Q_,4)}, 0")
    a(f"{MF} {v(S_,16)}, {v(KV+4,4)}, {v(Q_+4,4)}, {v(S_,16)}")
    a(f"s_setprio {opt('pa2', 0)}\ns_waitcnt vmcnt(8)")
    stamp(a, 9)
    a("s_nop 9")
    a(".p2align 3")
    a.label("AT_loop")
    for n in range(4):
        ld = (n + 3) & 3
        kvl = kvload if not opt("nokv", 0) else (lambda a_, b_: "s_nop 0")
        if opt("kvprio", 1):
            e0 = {1: ["s_setprio 3", kvl(ld, 0), kvl(ld, 1)], 2: [kvl(ld, 2), kvl(ld, 3), f"s_setprio {opt('pa2', 0)}"]}
            if opt("kvprio", 1) == 2: e0 = {1: [kvl(ld, 0), kvl(ld, 1)], 2: [kvl(ld, 2), kvl(ld, 3)]}
            if EARLY and n == 0: e0[1].insert(1 if opt("kvprio", 1) == 1 else 0, f"buffer_load_dword v3, v2, {s(WD,4)}, 0 offen sc1")
            if EARLY and n == 1:
                e0[0] = ["s_waitcnt vmcnt(4)", "v_cmp_eq_u32 vcc, 0, v3"]
                e0[1] = ["s_cbranch_vccnz AT_late", "AT_ok:"] + e0[1]
            unit(a, n, 0, e0)
            e1 = {1: kvnext() if n == 0 or not EARLY else kvnext()[:1]}
            if n == 0: e1[2] = [f"s_cmp_eq_u32 s{sN}, 1", f"s_cselect_b32 s{sKV}, {OOB}, s{sKV}"]
            if n == 3: e1[0] = ["ds_read_b32 v9, v8"]; e1[2] = [f"s_cmp_eq_u32 s{sN}, 1"]
            unit(a, n, 1, e1)
            if n == 3: a("s_cbranch_scc1 AT_tail")
            unit(a, n, 2, {})
            ex = {0: ["s_waitcnt vmcnt(8)"], 2: []}
        else:
            unit(a, n, 0, {2: [kvl(ld, 0)]})
            unit(a, n, 1, {1: [kvl(ld, 1)]})
            unit(a, n, 2, {1: [kvl(ld, 2)]})
            ex = {0: ["s_waitcnt vmcnt(7)"], 1: [kvl(ld, 3)], 2: kvnext()}
        if n == 3: ex[2] += [f"s_sub_u32 s{sN}, s{sN}, 1"]
        unit(a, n, 3, ex)
    a("s_branch AT_loop")
    a.label("AT_tail")
    BL = 3712
    a(f"""s_setprio {opt('pa1', 2)}
          s_waitcnt lgkmcnt(0)
          v_readfirstlane_b32 s3, v9
          s_cmp_ge_u32 s3, 8
          s_cbranch_scc1 AT_free""")
    gwait(a, C_B, 8)
    a.label("AT_free")
    wr = lambda j, i: f"ds_write_b128 v10, {v(O_+16*j+4*i,4)} offset:{j*BL + i*1024}"
    unit(a, 3, 2, {0: [wr(0, 0)], 1: [wr(0, 1)], 2: [wr(0, 2)]})
    unit(a, 3, 3, {0: [wr(1, 0)], 1: [wr(1, 1)], 2: [wr(1, 2)]}, qk=False)
    a(f"v_cvt_pk_bf16_f32 v{P_+6}, v{E_+4}, v{E_+5}\nv_cvt_pk_bf16_f32 v{P_+7}, v{E_+6}, v{E_+7}")
    for i in range(3): a(wr(2, i))
    a(f"{MF} {v(O_+48,16)}, {v(KV+48+12,4)}, {v(P_+4,4)}, {v(O_+48,16)}")
    stamp(a, 10)
    a("s_mov_b64 exec, 0xffffffff")
    for j in range(3): a(wr(j, 3))
    a("s_not_b64 exec, exec")
    for j in range(3): a(f"ds_write_b32 v15, v{O_+16*j+12} offset:{j*BL}")
    a("s_mov_b64 exec, -1")
    gbar(a, C_A, 4)
    a("s_mov_b64 exec, 0xffffffff")
    for j in range(3): a(f"ds_read_b128 {v(O_+16*j+12,4)}, v{11+j} offset:{j*BL + 3072}")
    a("s_not_b64 exec, exec")
    for j in range(3): a(f"ds_read_b32 v{O_+16*j+12}, v{5+j} offset:{j*BL}")
    a("s_mov_b64 exec, -1")
    for j in range(3):
        for i in range(3): a(f"ds_read_b128 {v(O_+16*j+4*i,4)}, v{11+j} offset:{j*BL + i*1024}")
    OT_, QT_ = O_ + 48, Q_ + 24
    for j in range(3):
        a(f"s_waitcnt lgkmcnt({3*(2-j)})")
        for i in range(16): a(f"v_add_f32 v{OT_+i}, v{OT_+i}, v{O_+16*j+i}")
    a(f"""v_mov_b32 v10, v{OT_+12}
          v_mov_b32 v11, v{OT_+12}
          v_permlane32_swap_b32 v11, v10
          v_mov_b32 v12, v10
          v_mov_b32 v13, 0""")
    for i in range(16): a(f"v_fma_f32 v{12+(i&1)}, v{OT_+i}, 0, v{12+(i&1)}")
    a(f"""v_add_f32 v12, v12, v13                ; row sum, or NaN if any accumulator is not finite
          v_cmp_le_f32 vcc, {fb(2.0**-80)}, v12
          v_cmp_ge_f32 s[26:27], s59, v12
          s_and_b64 vcc, vcc, s[26:27]
          s_cmp_eq_u64 vcc, -1
          s_cbranch_scc0 AT_slow""".replace("s59", "s59"))
    a.label("AT_norm")
    a(f"""v_rcp_f32 v10, v10
          v_lshrrev_b32 v8, 5, v1
          v_add_u32 v8, -1, v8""")
    for i in range(16): a(f"v_mul_f32 v{OT_+i}, v{OT_+i}, v10")
    for i in range(8): a(f"v_cvt_pk_bf16_f32 v{P_+i}, v{OT_+2*i}, v{OT_+2*i+1}")
    a(f"""v_and_b32 v{P_+6}, v8, v{P_+6}
          v_and_b32 v{P_+7}, v8, v{P_+7}
          s_lshl_b32 s26, s{sQB}, 2
          s_add_u32 s26, s26, s{sW}
          s_lshl_b32 s26, s26, 4
          s_add_u32 s26, s26, s{sH}
          s_lshl_b32 s3, s26, 11
          s_add_u32 s3, s3, {OF}
          buffer_store_dwordx4 {v(P_,4)}, v0, {s(WD,4)}, s3 offen{SC}
          buffer_store_dwordx4 {v(P_+4,4)}, v0, {s(WD,4)}, s3 offen offset:1024{SC}
          s_lshl_b32 s3, s{sQB}, 4
          s_add_u32 s3, s3, s{sH}
          s_lshl_b32 s3, s3, 7
          s_add_u32 s3, s3, {FA}
          s_waitcnt vmcnt(0)""")
    signal(a, 3, 20)
    stamp(a, 11)
    stamp_out2(a)
    a("s_endpgm")
    if EARLY:
        a.label("AT_late")
        poll(a, 2, 8)
        a("s_branch AT_ok")
    a.label("AT_slow")
    a(f"""s_waitcnt vmcnt(0)
          s_mul_i32 s{sKB}, s{sH}, {64*3584}
          s_add_u32 s{sKB}, s{sKB}, {KVF}
          s_mov_b32 s{sKV}, s{sKB}
          s_mov_b32 s{sN}, 64
          v_mov_b32 v12, 0xff800000""")
    a.label("AT_s1")
    a(kvload(0, 0)); a(kvload(0, 1))
    a(f"""s_add_u32 s{sKV}, s{sKV}, 3584
          s_waitcnt vmcnt(0)
          {MF} {v(S_,16)}, {v(KV,4)}, {v(QT_,4)}, 0
          {MF} {v(S_,16)}, {v(KV+4,4)}, {v(QT_+4,4)}, {v(S_,16)}""")
    for i in range(8): a(f"v_max3_f32 v12, v12, v{S_+2*i}, v{S_+2*i+1}")
    a(f"""s_sub_u32 s{sN}, s{sN}, 1
          s_cmp_lg_u32 s{sN}, 0
          s_cbranch_scc1 AT_s1
          v_mov_b32 v13, v12
          v_permlane32_swap_b32 v12, v13
          v_max_f32 v12, v12, v13
          v_cvt_pk_bf16_f32 v13, -v12, -v12
          v_and_b32 v13, 0xffff0000, v13
          v_sub_f32 v12, -v12, v13
          v_cvt_pk_bf16_f32 v14, v12, v12
          v_and_b32 v14, 0xffff0000, v14
          v_sub_f32 v12, v12, v14
          v_cvt_pk_bf16_f32 v13, v13, v14
          v_cvt_pk_bf16_f32 v14, v12, 0
          v_lshrrev_b32 v8, 5, v1
          v_add_u32 v8, -1, v8
          v_bfi_b32 v{QT_+7}, v8, v13, v14
          s_mov_b32 s{sKV}, s{sKB}
          s_mov_b32 s{sN}, 64""")
    for i in range(16): a(f"v_mov_b32 v{OT_+i}, 0")
    a.label("AT_s2")
    for f in range(4): a(kvload(0, f))
    a(f"""s_add_u32 s{sKV}, s{sKV}, 3584
          s_waitcnt vmcnt(0)
          {MF} {v(S_,16)}, {v(KV,4)}, {v(QT_,4)}, 0
          {MF} {v(S_,16)}, {v(KV+4,4)}, {v(QT_+4,4)}, {v(S_,16)}""")
    for i in range(16): a(f"v_exp_f32 v{S_+i}, v{S_+i}")
    for i in range(8): a(f"v_cvt_pk_bf16_f32 v{P_+i}, v{S_+2*i}, v{S_+2*i+1}")
    a(f"""{MF} {v(OT_,16)}, {v(KV+8,4)}, {v(P_,4)}, {v(OT_,16)}
          {MF} {v(OT_,16)}, {v(KV+12,4)}, {v(P_+4,4)}, {v(OT_,16)}
          s_sub_u32 s{sN}, s{sN}, 1
          s_cmp_lg_u32 s{sN}, 0
          s_cbranch_scc1 AT_s2
          v_mov_b32 v10, v{OT_+12}
          v_mov_b32 v11, v{OT_+12}
          v_permlane32_swap_b32 v11, v10
          s_branch AT_norm""")

B_G3_DONE = 24
G2_BASE = 0
H1 = 56 * 1024
W3B = 60 * 1024
XCH3 = CNT + 1024
RES = 224

def p1b(a):
    bst = (lambda i: common.stamp(a, i)) if p1stamps() else (lambda i: None)
    sRB, sCB, sT = 44, 45, 48
    sROW, sWO, sK, sCOL = 49, 50, 51, 52
    WB = 0x1C000
    XT = 232
    def codepf():
        nseg = opt("nseg", 5)
        a(f"""s_lshr_b32 s57, s2, 3
              s_cmp_ge_u32 s57, {nseg}
              s_cbranch_scc1 PB_nopf
              s_cmp_lg_u32 s{sW}, 0
              s_cbranch_scc1 PB_nopf
              s_getpc_b64 s[62:63]""")
        a.label("PB_pc")
        a(f"""s_lshl_b32 s57, s57, 13
              s_sub_u32 s62, s62, PB_pc-K_start
              s_subb_u32 s63, s63, 0
              s_add_u32 s62, s62, s57
              s_addc_u32 s63, s63, 0
              v_lshlrev_b32 v8, 7, v1
              v_add_u32 v9, s57, v8
              v_cmp_gt_u32 vcc, K_last-K_start, v9
              v_mov_b32 v11, s63
              v_add_co_u32 v10, s[98:99], s62, v8
              v_addc_co_u32 v11, s[98:99], 0, v11, s[98:99]
              s_and_saveexec_b64 s[98:99], vcc
              s_cbranch_execz PB_pfx
              global_load_dword v16, v[10:11], off""")
        a.label("PB_pfx")
        a("s_mov_b64 exec, -1")
        a.label("PB_nopf")
    if opt("codepf", 1) == 1: codepf()
    a(f"""s_and_b32 s26, s2, 1
          s_lshl_b32 s26, s26, 3
          s_lshr_b32 s3, s2, 5
          s_add_u32 s26, s26, s3
          s_bfe_u32 s{sK}, s2, 0x20003
          s_lshl_b32 s54, s{sK}, 1
          s_add_u32 s54, s54, s3
          s_mul_i32 s3, s54, 37
          s_lshr_b32 s3, s3, 8
          s_mul_i32 s3, s3, 7
          s_sub_u32 s54, s54, s3
          s_mul_i32 s54, s54, {opt("rotw", 1)}
          s_bfe_u32 s3, s2, 0x20001
          s_lshl_b32 s3, s3, 2
          s_add_u32 s3, s3, s{sK}
          s_lshl_b32 s3, s3, 2
          s_add_u32 s3, s3, s{sW}
          s_lshl_b32 s56, s3, 5
          s_and_b32 s27, s26, 3
          s_lshr_b32 s3, s27, 1
          s_add_u32 s3, s3, 1
          s_sub_u32 s57, 0, s3
          s_bitcmp1_b32 s27, 0
          s_cselect_b32 s3, s3, s57
          s_movk_i32 s{sROW}, 2688
          s_cmp_ge_u32 s26, 12
          s_cselect_b32 s3, s3, 0
          s_cselect_b32 s{sROW}, 896, s{sROW}
          s_cselect_b32 s27, s27, s26
          s_add_u32 s56, s56, s3
          s_mul_i32 s{sCOL}, s27, 224
          v_lshrrev_b32 v8, 3, v1
          v_add_u32 v8, s56, v8
          s_movk_i32 s3, 896
          v_mul_i32_i24 v8, s3, v8
          v_bfe_u32 v9, v1, 4, 2
          v_and_b32 v10, 7, v1
          v_xor_b32 v9, v9, v10
          v_lshl_add_u32 v2, v9, 4, v8
          v_xor_b32 v9, 4, v9
          v_lshl_add_u32 v3, v9, 4, v8
          v_add_u32 v3, {8*896}, v3
          v_add_u32 v4, {16*896}, v2
          v_add_u32 v5, {16*896}, v3
          v_lshrrev_b32 v8, 4, v1
          v_lshlrev_b32 v9, 2, v8
          v_sub_u32 v9, v1, v9
          v_and_b32 v9, 15, v9
          v_mul_u32_u24 v8, s{sROW}, v8
          v_lshl_add_u32 v7, v9, 4, v8
          v_cmp_gt_u32 s[96:97], 14, v9
          s_lshl_b32 s{sK}, s54, 6
          s_lshl_b32 s54, s54, 7
          s_lshl_b32 s3, s{sW}, 4
          s_mul_i32 s3, s3, s{sROW}
          s_add_u32 s{sCOL}, s{sCOL}, s3
          s_lshl_b32 s53, s{sROW}, 2
          s_lshl_b32 s55, s{sW}, 12
          s_waitcnt lgkmcnt(0)""")
    srd(a, XS, 4, 2048 * 896)
    q = []
    gap = []
    def ride(n):
        for x in gap[:n]: a(x)
        del gap[:n]
    def xchunk(c):
        for g in range(4):
            a(f"s_add_u32 m0, s55, {XB + (c % 3)*16384 + g*1024}")
            a(f"s_nop 0\nbuffer_load_dwordx4 v{2+g}, {s(XS,4)}, s54 offen lds")
            ride(9)
        wrapinc(a, 54, 128, 896)
        q.extend([c] * 4)
    def wchunk(c):
        a(f"""s_mul_i32 s{sWO}, s{sK}, s{sROW}
              s_add_u32 s{sWO}, s{sWO}, s{sCOL}""")
        wrapinc(a, sK, 64, 448)
        a("s_mov_b64 exec, s[96:97]")
        for u in range(4):
            a(f"s_add_u32 m0, s55, {c*16384 + u*1024}")
            if u: a(f"s_add_u32 s{sWO}, s{sWO}, s53")
            a(f"buffer_load_dwordx4 v7, {s(WA,4)}, s{sWO} offen lds")
        a("s_mov_b64 exec, -1")
        q.extend([c] * 4)
    bst(11)
    xchunk(0)
    a(f"""s_cmp_ge_u32 s26, 12
          s_cselect_b32 s{WA}, s12, s6
          s_cselect_b32 s{WA+1}, s13, s7
          s_mul_i32 s{WA+2}, s{sROW}, 448
          s_mov_b32 s{WA+3}, 0x20000""")
    wchunk(0)
    srd(a, WD, 24, WS_END)
    a(f"""s_lshl_b32 s61, s{sW}, 8
          s_or_b32 s61, s61, s2
          v_mov_b32 v22, 0
          s_cmp_ge_u32 s61, {NINIT}
          s_cbranch_scc1 PB_noinit
          v_lshlrev_b32 v13, 7, v1
          s_lshl_b32 s3, s2, 13
          s_add_u32 s3, s3, {FLG}
          buffer_store_dword v22, v13, {s(WD,4)}, s3 offen{SC}""")
    a.label("PB_noinit")
    if opt("codepf", 1) == 2: codepf()
    if opt("tlb", 0):
        a(f"""v_lshlrev_b32 v23, {opt("tlb", 0)}, v1
              v_add_u32 v23, {0x1fff80 if opt("tlb", 0) == 21 else 0xff80}, v23
              s_lshl_b32 s3, s{sW}, {opt("tlb", 0) + 6}
              buffer_load_dword v24, v23, {s(WD,4)}, s3 offen sc1""")
        q.append(1)
    a(f"""v_lshrrev_b32 v8, 1, v1
          v_and_b32 v9, 15, v8
          v_lshrrev_b32 v10, 4, v8
          v_lshlrev_b32 v10, 14, v10
          v_lshl_add_u32 v10, v9, 8, v10
          v_and_b32 v9, 3, v8
          v_lshlrev_b32 v9, 2, v9
          v_and_b32 v8, 1, v1
          v_add3_u32 v9, v9, v8, 14
          v_and_b32 v9, 15, v9
          v_lshl_add_u32 v10, v9, 4, v10
          v_add_u32 v10, s55, v10
          v_add_u32 v11, 0x10000, v10
          v_mov_b32 v12, 0x3f803f80
          v_mov_b32 v13, v12
          v_mov_b32 v14, v12
          v_mov_b32 v15, v12
          ds_write_b128 v10, v[12:15]
          ds_write_b128 v10, v[12:15] offset:32768
          ds_write_b128 v11, v[12:15]
          s_mov_b64 exec, 0xffffffff
          ds_write_b128 v11, v[12:15] offset:32768
          s_mov_b64 exec, -1""")
    srd(a, WD, 24, WS_END)
    srd(a, WB_, 22, 256)
    xchunk(1)
    if opt("w1e", 1): wchunk(1)
    CSB = opt("csb", 0)
    if CSB:
        a("s_cmp_ge_u32 s26, 12\ns_cselect_b32 s57, 8, 7")
        tr_addrs(a, 21, "s57", 0, perm=False, which=(4,))
        a("v_mov_b32 v26, 0\nv_mov_b32 v27, 0")
    small_setup(a, sRB, sCB, sT)
    tail = A()
    tail(f"""s_lshr_b32 s{sFT}, s{sW}, 1
          s_xor_b32 s{sFT}, s{sFT}, s2
          s_and_b32 s{sFT}, s{sFT}, 1
          v_lshrrev_b32 v8, 2, v1
          v_mul_u32_u24 v8, 896, v8
          v_bfe_u32 v9, v1, 4, 2
          v_and_b32 v10, 3, v1
          v_xor_b32 v9, v9, v10
          v_lshl_add_u32 v8, v9, 4, v8
          s_mul_i32 s3, s{sT}, {32*896}
          s_lshl_b32 s26, s{sCB}, 7
          s_add_u32 s3, s3, s26
          s_lshl_b32 s26, s{sFT}, 6
          s_add_u32 s3, s3, s26
          s_add_u32 s26, s3, {16*896}
          buffer_load_dwordx4 {v(XT,4)}, v8, {s(XS,4)}, s3 offen
          buffer_load_dwordx4 {v(XT+4,4)}, v8, {s(XS,4)}, s26 offen""")
    t2, t3, t4 = A(), A(), A()
    srd(t2, WB_, 14, 448*896)
    t2(f"""v_lshlrev_b32 v8, 7, v1
           s_lshr_b32 s57, s2, 3
           s_lshl_b32 s57, s57, 2
           s_add_u32 s57, s57, s{sW}
           s_mul_i32 s3, s57, {25*128}
           s_bfm_b64 exec, 25, 0
           buffer_load_dword v16, v8, {s(WB_,4)}, s3 offen{TF}
           s_mov_b64 exec, -1""")
    srd(t3, WB_, 16, 448*3584)
    t3(f"""s_lshr_b32 s57, s2, 3
           s_lshl_b32 s57, s57, 2
           s_add_u32 s57, s57, s{sW}
           s_mul_i32 s3, s57, 49
           v_add_u32 v9, s3, v1
           v_mul_u32_u24 v10, 9363, v9
           v_lshrrev_b32 v10, 17, v10
           v_mul_u32_u24 v11, 14, v10
           v_sub_u32 v9, v9, v11
           v_mul_u32_u24 v10, 3584, v10
           v_lshl_add_u32 v9, v9, 7, v10
           s_and_b32 s3, s2, 1
           s_mul_i32 s3, s3, 1792
           s_bfm_b64 exec, 49, 0
           buffer_load_dword v17, v9, {s(WB_,4)}, s3 offen{TF}
           s_mov_b64 exec, -1""")
    srd(t4, WB_, 18, 448*3584)
    t4(f"""v_lshlrev_b32 v8, 7, v1
           s_lshl_b32 s57, s2, 2
           s_add_u32 s57, s57, s{sW}
           s_mul_i32 s3, s57, {13*128}
           s_bfm_b64 exec, 13, 0
           buffer_load_dword v18, v8, {s(WB_,4)}, s3 offen{TF}""")
    srd(t4, WB_, 8, 448*896)
    t4(f"""s_lshl_b32 s3, s57, 9
           s_mov_b64 exec, 15
           buffer_load_dword v19, v8, {s(WB_,4)}, s3 offen{TF}
           s_mov_b64 exec, -1""")
    if opt("tmode", 0) & 1:
        t3 = A(); srd(t3, WB_, 16, 448*3584)
        t3(f"""v_lshlrev_b32 v8, 7, v1
               s_lshl_b32 s57, s2, 2
               s_add_u32 s57, s57, s{sW}
               s_mul_i32 s3, s57, {13*128}
               s_bfm_b64 exec, 13, 0
               buffer_load_dword v17, v8, {s(WB_,4)}, s3 offen
               s_mov_b64 exec, -1""")
    if opt("tmode", 0) & 2:
        t2 = A(); srd(t2, WB_, 14, 448*896)
        t2(f"""v_lshlrev_b32 v8, 7, v1
               s_lshl_b32 s57, s2, 2
               s_add_u32 s57, s57, s{sW}
               s_lshl_b32 s3, s57, 9
               s_mov_b64 exec, 15
               buffer_load_dword v16, v8, {s(WB_,4)}, s3 offen
               s_mov_b64 exec, -1""")
    w2, w2b = A(), A()
    w2(f"s_lshl_b32 s47, s{sW}, 11")
    small_addrs(w2, "s47")
    srd(w2, WA, 14, 448 * 896)
    w2(f"""s_mul_i32 s3, s{sW}, {112*896}
           s_lshl_b32 s26, s{sCB}, 7
           s_add_u32 s3, s3, s26
           v_add_u32 v4, s3, v7
           v_add_u32 v5, {8*896}, v4
           s_mul_i32 s50, s{sCB}, {16*896*opt("rot", 1)}""")
    for j in range(7):
        g = w2 if j < 6 else w2b
        g(f"""s_add_u32 m0, s47, {j*8192}
              s_nop 0
              buffer_load_dwordx4 v4, {s(WA,4)}, s50 offen lds
              s_add_u32 m0, s47, {j*8192 + 1024}
              s_nop 0
              buffer_load_dwordx4 v5, {s(WA,4)}, s50 offen lds""")
        if j < 6: wrapinc(g, 50, 16*896, 112*896)
    c3a, c3b = A(), A()
    srd(c3a, WB_, 16, 448*3584)
    c3a(f"""s_mul_i32 s3, s2, 2341
            s_lshr_b32 s3, s3, 16
            s_mul_i32 s57, s3, 28
            s_sub_u32 s57, s2, s57                 ; line = id % 28
            s_lshl_b32 s3, s3, 2
            s_add_u32 s3, s3, s{sW}
            s_mul_i32 s63, s57, 28
            s_add_u32 s63, s63, s3
            s_lshl_b32 s63, s63, 8
            s_add_u32 s63, s63, {CS3P}
            s_cmp_lt_u32 s2, 196
            s_cselect_b32 s63, s63, {OOB}
            s_mul_i32 s3, s3, {16*3584}
            s_lshl_b32 s57, s57, 7
            s_add_u32 s3, s3, s57
            s_add_u32 s57, s3, {8*3584}
            v_lshrrev_b32 v8, 3, v1
            v_mul_u32_u24 v8, 3584, v8
            v_and_b32 v9, 7, v1
            v_lshl_add_u32 v8, v9, 4, v8
            buffer_load_dwordx4 v[32:35], v8, {s(WB_,4)}, s3 offen
            buffer_load_dwordx4 v[36:39], v8, {s(WB_,4)}, s57 offen""")
    unpack(c3b, 40, 32, 8)
    for i in range(8): c3b(f"v_add_f32 v{40+i}, v{40+i}, v{48+i}")
    for i in range(4): c3b(f"v_permlane32_swap_b32 v{40+i}, v{44+i}")
    for i in range(4): c3b(f"v_add_f32 v{40+i}, v{40+i}, v{44+i}")
    for i in range(2): c3b(f"v_permlane16_swap_b32 v{40+i}, v{42+i}")
    for i in range(2): c3b(f"v_add_f32 v{40+i}, v{40+i}, v{42+i}")
    c3b(f"""v_and_b32 v8, 7, v1
            v_lshrrev_b32 v9, 4, v1
            v_lshlrev_b32 v8, 5, v8
            v_lshl_add_u32 v8, v9, 3, v8
            v_add_f32_dpp v40, v40, v40 row_ror:8 row_mask:0xf bank_mask:0xf
            v_add_f32_dpp v41, v41, v41 row_ror:8 row_mask:0xf bank_mask:0xf
            buffer_store_dwordx2 v[40:41], v8, {s(WD,4)}, s63 offen{SC}""")
    extras = [(opt("tl", 4), tail, 2), (opt("c3a", 4), c3a, 2), (opt("tw2", 2), t2, 1), (opt("w2c", 8), w2, 12), (opt("tw3", 4), t3, 1), (opt("tw4", 4), t4, 2), (max(opt("w2d", 6), opt("w2c", 8)), w2b, 2)]
    bst(2)
    for c in range(7):
        last = max(i for i, x in enumerate(q) if x == c)
        a(f"s_waitcnt vmcnt({len(q) - 1 - last}) lgkmcnt(0)")
        bst((3, 12, 13, 4, 5, 14, 8)[c])
        a("s_barrier")
        jitter(a)
        if CSB:
            if c == 4: a("v_add_u32 v25, 0x10000, v25")
            for i in range(8): a(f"ds_read_b64_tr_b16 {v(56+2*i,2)}, v25 offset:{(c & 3)*16384 + (16*(i>>1) + 4*(i&1))*256}")
            gap.append("s_waitcnt lgkmcnt(0)")
            for i in range(16):
                lo = 28 + 2*(i & 1)
                gap += [f"v_lshlrev_b32 v{lo}, 16, v{56+i}", f"v_and_b32 v{lo+1}, 0xffff0000, v{56+i}",
                        f"v_add_f32 v26, v26, v{lo}", f"v_add_f32 v27, v27, v{lo+1}"]
        if c == 1:
            a(f"""s_cmp_ge_u32 s61, {NINIT}
                  s_cbranch_scc1 PB_noset
                  s_lshl_b32 s3, s2, 2
                  v_mov_b32 v9, 1
                  s_mov_b64 exec, 1
                  buffer_store_dword v9, v22, {s(WB_,4)}, s3 offen{SC}
                  s_mov_b64 exec, -1""")
            a.label("PB_noset")
        if c == 0 and not opt("w1e", 1): wchunk(1)
        if c + 2 < 7: xchunk(c + 2); wchunk(c + 2)
        if c == 3:
            srd(a, WB_, 22, 256)
            a(f"v_min_u32 v20, {NINIT - 1}, v1\nv_lshlrev_b32 v20, 2, v20\nbuffer_load_dword v21, v20, {s(WB_,4)}, 0 offen sc1"); q.append(5)
        if c == 5:
            a("v_cmp_eq_u32 vcc, 0, v21\ns_cbranch_vccz PB_clr")
            srd(a, WB_, 22, 256)
            poll(a, 20, NINIT, WB_)
            a.label("PB_clr")
        for when, code, nv in extras:
            if when == c:
                for x in code.l: a(x)
                q.extend(["c3" if code is c3a or code is tail else 99] * nv)
        ride(999)
    if CSB:
        a("v_add_f32 v26, v26, v27")
        half_sum(a, 26, 27)
        cs_publish(a, 26, 28, XCH)
    a(f"""v_mov_b32 v8, {CNT}
          v_mov_b32 v12, 0
          v_mov_b32 v13, 0
          v_mov_b32 v14, 0
          v_mov_b32 v15, 0
          ds_write_b128 v8, v[12:15]
          ds_write_b128 v8, v[12:15] offset:16
          ds_write_b128 v8, v[12:15] offset:32
          s_waitcnt lgkmcnt(0)
          s_barrier                              ; barrier 7""")
    for when, code, nv in extras:
        if when == 67:
            for x in code.l: a(x)
            q.extend([99] * nv)
    a(f"""s_waitcnt vmcnt({len(q) - 1 - max(i for i, x in enumerate(q) if x == "c3")})""")
    for x in c3b.l: a(x)
    g2_setup(a)
    a(f"""s_and_b32 s3, s2, 1
          s_lshl_b32 s3, s3, 3
          s_lshr_b32 s26, s2, 5
          s_add_u32 s3, s3, s26
          s_lshl_b32 s3, s3, 4
          s_lshr_b32 s26, s{sRB}, 1
          s_add_u32 s3, s3, s26
          s_lshl_b32 s3, s3, 7
          s_add_u32 s3, s3, {FP}
          s_waitcnt vmcnt(0)""")
    signal(a, 3, C_S1, last=7)
    for when, code, nv in extras:
        if when == 7:
            for x in code.l: a(x)
    bst(9)
    gwait(a, C_X, 4, field=1)
    for when, code, nv in extras:
        if when == 8:
            for x in code.l: a(x)
    bst(10); bst(15)

def small_setup(a, sRB, sCB, sT):
    a(f"""s_bfe_u32 s26, s2, 0x20001
          s_lshl_b32 s26, s26, 2
          s_bfe_u32 s3, s2, 0x20003
          s_add_u32 s26, s26, s3
          s_lshl_b32 s{sRB}, s26, 1
          s_and_b32 s3, s2, 1
          s_add_u32 s{sRB}, s{sRB}, s3
          s_lshr_b32 s{sCB}, s2, 5
          s_and_b32 s3, s{sW}, 1
          s_lshl_b32 s{sT}, s{sRB}, 1
          s_add_u32 s{sT}, s{sT}, s3""")

def small_addrs(a, sM, natural=False):
    a(f"""v_lshrrev_b32 v8, 3, v1
          v_bfe_u32 v9, v1, 4, 1
          v_lshlrev_b32 v9, 2, v9
          v_and_b32 v10, 7, v1
          v_xor_b32 v9, v9, v10
          v_mul_u32_u24 v8, 896, v8
          v_lshl_add_u32 v7, v9, 4, v8
          v_lshrrev_b32 v8, 5, v1
          v_bfe_u32 v9, v1, 2, 2
          v_lshl_add_u32 v8, v8, 2, v9
          v_lshlrev_b32 v8, 7, v8
          v_bfe_u32 v10, v1, 4, 1
          v_bfe_u32 v11, v1, 1, 1
          v_lshl_add_u32 v10, v10, 1, v11
          v_bfe_u32 v11, v1, 3, 1
          v_lshl_add_u32 v10, v11, 2, v10
          v_lshl_add_u32 v8, v10, 4, v8
          v_and_b32 v11, 1, v1
          v_lshl_add_u32 v8, v11, 3, v8
          s_lshl_b32 s3, {"0" if natural else "s%d" % sFT}, 6
          v_xor_b32 v8, s3, v8
          v_add_u32 v2, {sM}, v8
          v_xor_b32 v8, 64, v8
          v_add_u32 v3, {sM}, v8""")

def wreads(a, WF, buf, off, va=2):
    for b in range(2):
        for e in range(2): a(f"ds_read_b64_tr_b16 {v(WF+8*buf+4*b+2*e,2)}, v{va+b} offset:{off + 8*e*128}")
def mfmas(a, ACC, WF, buf, act0, act1, first):
    for aa, ar in enumerate((act0, act1)):
        for b in range(2):
            j = 2*aa + b
            a(f"{MF} {v(ACC+16*j,16)}, {v(WF+8*buf+4*b,4)}, {v(ar,4)}, {'0' if first else v(ACC+16*j,16)}")

def g2_setup(a):
    EP = 176
    sRB, sCB, sT, sM, sK, sKA, sX = 44, 45, 48, 47, 50, 51, 53
    sRB3, sCB3, sT3, sK3, sL = 54, 55, 56, 57, 49
    ROT = opt("rot", 1)
    a(f"s_lshl_b32 s{sL}, s{sW}, 11")
    a(f"""s_add_u32 s3, s{sL}, {H1}
          v_add_u32 v10, s3, v0
          v_and_b32 v8, 31, v1
          v_lshlrev_b32 v8, 6, v8
          v_bfe_u32 v9, v1, 2, 2
          v_lshl_add_u32 v8, v9, 4, v8
          v_lshrrev_b32 v9, 5, v1
          v_lshl_add_u32 v8, v9, 3, v8
          v_add_u32 v12, s3, v8
          v_xor_b32 v13, 16, v12
          v_xor_b32 v14, 32, v12
          v_xor_b32 v15, 48, v12
          ds_write_b128 v10, v[232:235]
          ds_write_b128 v10, v[236:239] offset:1024
          s_waitcnt lgkmcnt(0)""")
    for j in range(4): a(f"ds_read_b64 {v(EP+2*j,2)}, v{12+j}")
    a(f"""s_and_b32 s26, s2, 7
          s_lshr_b32 s27, s2, 3
          s_lshr_b32 s{sRB3}, s26, 1
          s_lshl_b32 s{sRB3}, s{sRB3}, 2
          s_and_b32 s3, s27, 3
          s_add_u32 s{sRB3}, s{sRB3}, s3
          s_and_b32 s{sCB3}, s26, 1
          s_mul_i32 s{sCB3}, s{sCB3}, 7
          s_add_u32 s{sCB3}, s{sCB3}, s{sCB}
          s_lshl_b32 s{sT3}, s{sRB3}, 2
          s_add_u32 s{sT3}, s{sT3}, s{sW}
          v_lshrrev_b32 v8, 3, v1
          v_bfe_u32 v9, v1, 4, 1
          v_lshlrev_b32 v9, 2, v9
          v_and_b32 v6, 7, v1
          v_xor_b32 v9, v9, v6
          v_mul_u32_u24 v8, 3584, v8
          v_lshl_add_u32 v6, v9, 4, v8
          s_mul_i32 s3, s{sW}, {16*3584}
          s_lshl_b32 s26, s{sCB3}, 8
          s_add_u32 s3, s3, s26
          v_add_u32 v6, s3, v6                   ; W3 voffset
          s_mul_i32 s{sK3}, s{sCB}, {64*3584*ROT}""")
    srd(a, WB_, 16, 448 * 3584)
    a("s_waitcnt lgkmcnt(0)")
    a(f"""s_mul_i32 s3, s{sT}, 28
          s_mul_i32 s26, s{sW}, 7
          s_add_u32 s3, s3, s26
          s_lshl_b32 s3, s3, 10
          s_add_u32 s3, s3, {HF}
          v_add_u32 v186, s3, v0
          s_xor_b32 s3, s{sT}, 1
          s_mul_i32 s3, s3, 28
          s_add_u32 s3, s3, s26
          s_lshl_b32 s3, s3, 10
          s_add_u32 s3, s3, {HF}
          v_add_u32 v187, s3, v0
          s_mul_i32 s{sKA}, s{sCB}, {1024*ROT}
          s_mul_i32 s{sX}, s{sT}, 28
          s_lshl_b32 s3, s{sCB}, 2
          s_add_u32 s{sX}, s{sX}, s3
          s_lshl_b32 s3, s{sFT}, 1
          s_add_u32 s{sX}, s{sX}, s3
          s_lshl_b32 s{sX}, s{sX}, 10
          s_add_u32 s{sX}, s{sX}, {X1F}
          s_add_u32 s3, s{sW}, 12
          s_lshl_b32 s3, s3, 4
          s_lshr_b32 s26, s{sRB}, 1
          s_add_u32 s3, s3, s26
          s_lshl_b32 s3, s3, 7
          s_add_u32 s3, s3, {FP}
          v_mov_b32 v188, s3
          s_lshl_b32 s3, s26, 7
          s_add_u32 s3, s3, {FP}
          v_mov_b32 v189, s3
          v_lshlrev_b32 v8, 3, v1
          v_and_b32 v15, 0xff, v8
          s_lshl_b32 s27, s{sT}, 8
          s_add_u32 s27, s27, {ST1}""")
    unpack(a, RES, EP, 8)

def roleb(a):
    ACC, WF, AR, EP = 16, 80, 112, 176
    sRB, sCB, sT, sM, sK, sKA, sX = 44, 45, 48, 47, 50, 51, 53
    sRB3, sCB3, sT3, sK3, sL = 54, 55, 56, 57, 49
    ROT = opt("rot", 1)
    a("s_cmp_ge_u32 s2, 224\ns_cbranch_scc0 B_go")
    a(f"""s_mov_b64 exec, 1
          v_mov_b32 v8, {CNT}
          v_mov_b32 v9, {B_G3_DONE // 4}
          ds_add_u32 v8, v9
          s_mov_b64 exec, -1""")
    garrive(a, C_X)
    if opt("idlepf", 1):
        if opt("idlepf", 1) == 2: gwait(a, C_S1, 8)
        else:
            a(f"""s_lshl_b32 s3, s{sRB}, 10
                  s_add_u32 s3, s3, {F2}
                  v_mov_b32 v10, s3""")
            poll(a, 10, 1)
        srd(a, WA, 18, 1792 * 896)
        srd(a, WB_, 8, 448 * 896)
        a(f"""s_lshr_b32 s3, s2, 3
              s_sub_u32 s3, s3, 28
              s_lshl_b32 s3, s3, 2
              s_add_u32 s3, s3, s{sW}
              s_lshl_b32 s26, s3, 13
              s_and_b32 s27, s2, 1
              s_mul_i32 s27, s27, {896*896}
              s_add_u32 s26, s26, s27
              v_lshlrev_b32 v8, 7, v1
              s_mov_b32 s27, 7""")
        a.label("B_pf")
        a(f"""buffer_load_dword v16, v8, {s(WA,4)}, s26 offen{TF}
              s_add_u32 s26, s26, {16*8192}
              s_waitcnt vmcnt(1)
              s_sub_u32 s27, s27, 1
              s_cmp_lg_u32 s27, 0
              s_cbranch_scc1 B_pf
              s_lshl_b32 s26, s3, 13""")
        for i in range(4): a(f"buffer_load_dword v16, v8, {s(WB_,4)}, s26 offen{TF}\ns_add_u32 s26, s26, {16*8192}")
    a("s_endpgm")
    a.label("B_go")
    a(f"s_setprio {opt('pb', 1)}")
    bs2 = (lambda i: common.stamp(a, i)) if opt("g2s", 0) and common.STAMPS else (lambda i: None)
    if opt("g2s", 0):
        global stamp
        keep = stamp
        stamp = lambda a_, i, *x: keep(a_, i, *x) if i in (2, 3) else None
    def w3chunk(c):
        hf, j = (1, c) if c < 7 else (0, c - 7)
        for u in range(2):
            a(f"s_add_u32 m0, s{sL}, {hf*H1 + j*8192 + u*1024}")
            a(f"s_add_u32 s3, s{sK3}, {u*8*3584 + 128*hf}")
            a(f"buffer_load_dwordx4 v6, {s(WB_,4)}, s3 offen lds")
        wrapinc(a, sK3, 64*3584, 448*3584)
    W3A = opt("w3a", 0); W3E = max(W3A, opt("w3e", 6)); assert W3E <= 6
    if W3A:
        gwait(a, C_S1, 8)
        for c in range(W3A): w3chunk(c)
    stamp(a, 2)
    poll(a, 188, 1)
    a(f"buffer_load_dword v12, v189, {s(WD,4)}, 0 offen sc1")
    stamp(a, 3)
    for j in range(7):
        a(f"buffer_load_dwordx4 {v(AR+8*j,4)}, v186, {s(WD,4)}, s{sKA} offen{SC}")
        a(f"buffer_load_dwordx4 {v(AR+8*j+4,4)}, v187, {s(WD,4)}, s{sKA} offen{SC}")
        if j < 6: wrapinc(a, sKA, 1024, 7168)
    a("s_waitcnt vmcnt(14)\nv_cmp_eq_u32 vcc, 0, v12\ns_cbranch_vccz B_st1")
    poll(a, 189, 1)
    a.label("B_st1")
    a(f"buffer_load_dwordx2 {v(EP+8,2)}, v15, {s(WD,4)}, s27 offen{SC}")
    garrive(a, C_X)
    a(f"s_setprio {opt('pg2', 1)}")
    for s_ in range(3): wreads(a, WF, s_, s_*8192)
    NW3 = 0
    for s_ in range(7):
        a(f"s_waitcnt vmcnt({2*(6-s_) + 1 + NW3}) lgkmcnt({4*min(2, 6 - s_)})")
        mfmas(a, ACC, WF, s_ & 3, AR+8*s_, AR+8*s_+4, s_ == 0)
        if s_ + 3 < 7: wreads(a, WF, (s_+3) & 3, (s_+3)*8192)
    U = AR
    a(f"s_setprio {opt('pb', 1)}")
    stamp(a, 12)
    a(f"s_waitcnt vmcnt({NW3})")
    for i in range(16): a(f"v_sub_f32 v{U+i}, v{RES+i}, v{EP+8}")
    def region2(d, j):
        a(f"""s_xor_b32 s{d}, s{sW}, {(j >> 1) + 2*(j & 1)}
              s_mul_i32 s{d}, s{d}, 12288
              s_add_u32 s{d}, s{d}, {W3B + 48*1024}""")
    region2(sM, 0)
    reduce3(a, ACC, sM, region2, 0, 4, True)
    stamp(a, 13)
    for i in range(16): a(f"v_fma_f32 v{U+i}, v{U+i}, v{EP+9}, v{ACC+i}")
    for i in range(8): a(f"v_cvt_pk_bf16_f32 v{EP+i}, v{U+2*i}, v{U+2*i+1}")
    a(f"buffer_store_dwordx4 {v(EP,4)}, v0, {s(WD,4)}, s{sX} offen{SC}")
    a(f"buffer_store_dwordx4 {v(EP+4,4)}, v0, {s(WD,4)}, s{sX} offen offset:1024{SC}")
    if not opt("g2u", 1): unpack(a, U, EP, 8)
    for i in range(16):
        a(f"v_add_f32 v{10+(i&1)}, v{U+i}, {'0' if i < 2 else 'v%d' % (10+(i&1))}")
        a(f"v_fma_f32 v{12+(i&1)}, v{U+i}, v{U+i}, {'0' if i < 2 else 'v%d' % (12+(i&1))}")
    a("v_add_f32 v10, v10, v11\nv_add_f32 v11, v12, v13")
    half_sum(a, 10, 8); half_sum(a, 11, 9)
    a(f"""s_lshl_b32 s26, s{sCB}, 1
          s_add_u32 s26, s26, s{sFT}
          s_mul_i32 s3, s{sT}, 14
          s_add_u32 s3, s3, s26
          s_lshl_b32 s3, s3, 8
          s_add_u32 s3, s3, {ST3}
          buffer_store_dwordx2 v[10:11], v15, {s(WD,4)}, s3 offen{SC}
          s_lshl_b32 s3, s{sRB}, 3
          s_add_u32 s3, s3, s{sCB}
          s_lshl_b32 s3, s3, 7
          s_add_u32 s{sX}, s3, {F2}""")
    garrive(a, 0)
    for i in range(16): a(f"v_add_f32 v{RES+i}, v{RES+i}, v{U+i}")
    lo = lambda: a("s_setprio 0") if opt("kvprio", 1) == 2 else None
    hi = lambda: a(f"s_setprio {opt('pb', 1)}") if opt("kvprio", 1) == 2 else None
    lo()
    for c in range(W3A, W3E): w3chunk(c)
    hi()
    a(f"s_waitcnt vmcnt({2*(W3E - W3A)})")
    signal(a, sX, 12)
    stamp(a, 4)
    gwait(a, 0, 8)
    lo()
    for c in range(W3E, 14): w3chunk(c)
    hi()
    ACC, WF, XR, TMP = 16, 80, 112, 240
    CSP, CS = TMP, ACC + 48
    a(f"""s_lshl_b32 s3, s{sFT}, 6
          s_sub_u32 s26, 0, s{sL}
          v_add_u32 v2, s26, v2
          v_xor_b32 v2, s3, v2
          v_xor_b32 v3, 64, v2
          v_add_u32 v4, {H1}, v2
          v_add_u32 v5, {H1}, v3""")
    a(f"""s_lshr_b32 s3, s{sT3}, 1
          s_lshl_b32 s3, s3, 10
          s_add_u32 s3, s3, {F2}
          v_lshl_add_u32 v11, v1, 7, s3
          s_lshl_b32 s26, s{sCB3}, 1
          s_lshr_b32 s3, s{sW}, 1
          s_add_u32 s26, s26, s3
          v_add_u32 v8, -7, v1
          v_mul_u32_u24 v8, 28, v8
          v_add_u32 v8, s26, v8
          v_and_b32 v9, 1, v8
          v_lshrrev_b32 v10, 5, v8
          v_lshl_add_u32 v9, v9, 3, v10
          v_bfe_u32 v10, v8, 1, 2
          v_lshl_add_u32 v9, v9, 2, v10
          v_bfe_u32 v10, v8, 3, 2
          v_lshl_add_u32 v9, v9, 2, v10
          v_lshlrev_b32 v9, 7, v9
          v_add_u32 v9, {FP}, v9
          v_cmp_gt_u32 vcc, 7, v1
          v_cndmask_b32 v11, v9, v11, vcc
          s_mul_i32 s{sK3}, s26, {28*256}
          s_and_b32 s3, s{sW}, 1
          s_lshl_b32 s3, s3, 7
          s_add_u32 s{sK3}, s{sK3}, s3
          s_add_u32 s{sK3}, s{sK3}, {CS3P}
          v_lshrrev_b32 v10, 5, v1
          v_mul_u32_u24 v10, {14*256}, v10
          v_and_b32 v9, 31, v1
          v_lshl_add_u32 v6, v9, 2, v10
          s_mul_i32 s3, s{sT3}, {28*1024}
          s_add_u32 s3, s3, {X1F}
          v_add_u32 v7, s3, v0
          s_mul_i32 s{sKA}, s{sCB}, {4096*ROT}
          v_lshrrev_b32 v12, 5, v1
          v_mul_u32_u24 v12, {7*256}, v12
          v_and_b32 v13, 31, v1
          v_lshl_add_u32 v12, v13, 3, v12
          s_mul_i32 s27, s{sT3}, {14*256}
          s_add_u32 s27, s27, {ST3}""")
    a("s_waitcnt vmcnt(0)")
    gbar(a, 0, 12)
    CSG = opt("csg", 1)
    def cs_exchange():
        a(f"""v_cvt_pk_bf16_f32 v{WF}, v{CS}, v{CS}
              v_and_b32 v{WF}, 0xffff0000, v{WF}
              v_sub_f32 v{WF}, v{CS}, v{WF}
              v_cvt_pk_bf16_f32 v{WF}, v{CS}, v{WF}
              v_and_b32 v13, 31, v1
              v_lshlrev_b32 v13, 2, v13
              s_lshl_b32 s26, s{sW}, 7
              s_add_u32 s26, s26, {XCH3}
              v_add_u32 v13, s26, v13
              ds_write_b32 v13, v{WF}""")
        a("s_waitcnt lgkmcnt(0)")
        garrive(a, 0)
    def cs_collect():
        gwait(a, 0, 16)
        a(f"v_and_b32 v15, 31, v1\nv_lshlrev_b32 v15, 2, v15\nv_add_u32 v15, {XCH3}, v15")
        for t in range(4): a(f"ds_read_b32 v{CSP+t}, v15 offset:{128*t}")
        a("s_waitcnt lgkmcnt(0)")
    hops = lambda ts: {}
    woff = None
    poll(a, 11, 14)
    stamp(a, 5)
    STL = [WF + 24, WF + 26, WF + 28, WF + 30, TMP + 8, TMP + 10, 14]; ST = STL[0]
    LA = opt("la3", 14)
    def xl(u):
        g = A()
        g(f"buffer_load_dwordx4 {v(XR+4*u,4)}, v7, {s(WD,4)}, s{sKA} offen offset:{(u&3)*1024}{SC}")
        if (u & 3) == 3 and u < 27: wrapinc(g, sKA, 4096, 7*4096)
        return g.l
    L0 = opt("l0", 8)
    for u in range(L0):
        for x in xl(u): a(x)
        if u == 3:
            for i in range(7): a(f"buffer_load_dwordx2 {v(STL[i],2)}, v12, {s(WD,4)}, s27 offen offset:{i*256}{SC}")
            for i in range(14): a(f"buffer_load_dword v{CS+i}, v6, {s(WD,4)}, s{sK3} offen offset:{i*256}{SC}")
    M0_, M1_, R, DEN = TMP+4, TMP+5, TMP+6, TMP+7
    f = A()
    for i in range(1, 7): f(f"v_add_f32 v{ST}, v{ST}, v{STL[i]}\nv_add_f32 v{ST+1}, v{ST+1}, v{STL[i]+1}")
    f(f"v_mov_b32 v12, v{ST}\nv_mov_b32 v13, v{ST+1}")
    half_sum(f, 12, 8); half_sum(f, 13, 9)
    f(f"""v_mul_f32 v12, {fb(1/448)}, v12
          v_mul_f32 v13, {fb(1/448)}, v13
          v_fma_f32 v13, -v12, v12, v13
          v_max_f32 v13, 0, v13
          v_add_f32 v13, {fb(EPS)}, v13
          v_sqrt_f32 v{DEN}, v13
          v_rsq_f32 v{R}, v13""")
    mu_frag(f, 12, "-1", M0_, M1_)
    gelu_consts(f, R, DEN)
    f(f"""s_mul_i32 s{sK}, s{sT3}, 112
          s_lshl_b32 s27, s{sCB3}, 3
          s_add_u32 s{sK}, s{sK}, s27
          s_lshl_b32 s{sK}, s{sK}, 10
          s_add_u32 s{sK}, s{sK}, {HHF}
          s_add_u32 s27, s{sK}, 4096""")
    for i in range(1, 14): f(f"v_add_f32 v{CS}, v{CS}, v{CS+i}")
    half_sum(f, CS, 8)
    f(f"""v_cvt_pk_bf16_f32 v11, v{CS}, v{CS}
          v_and_b32 v11, 0xffff0000, v11
          v_sub_f32 v11, v{CS}, v11
          v_cvt_pk_bf16_f32 v11, v{CS}, v11
          s_lshl_b32 s26, s{sW}, 7
          s_add_u32 s26, s26, {XCH3}
          v_and_b32 v13, 31, v1
          v_lshl_add_u32 v13, v13, 2, s26""")
    NA = opt("na", 2)
    t1 = ((0,) if CSG else (0, 4)) + tuple(range(1, NA)); t2_ = tuple(range(NA, 4))
    pre = hops(t1); pre["fill0"] = 4*len(t1) + 1; pre["G"] = opt("g3g", NA)
    issued = L0
    for s_ in range(28):
        pre[("s", s_)] = [f"s_waitcnt vmcnt({issued - 1 - s_ + (21 if s_ < 4 else 0)})"]
        pre[("t", s_)] = []
        for _ in range(2):
            if issued < min(28, s_ + 1 + LA): pre[("t", s_)] += xl(issued); issued += 1
        if opt("g3s", 0) and common.STAMPS and s_ in (0, 8, 16, 27):
            g = A(); common.stamp(g, {0: 2, 8: 3, 16: 12, 27: 13}[s_]); pre[("s", s_)] += g.l
    g = A(); g("ds_write_b32 v13, v11"); garrive(g, 0); pre[("m", 28*NA - 3)] = g.l
    pre["fillend"] = 28*NA - 4
    if opt("p3h", 0): pre[("s", opt("p3h", 0))] = pre[("s", opt("p3h", 0))] + [f"s_setprio {opt('pb', 1)}"]
    a(f"s_setprio {0 if opt('p3h', 0) else opt('p3a', 1)}")
    kloop(a, ACC, WF, XR, 2, t1, woff, pre, True, f.l, R=6, D=5, cs=(CS, CSP, 32))
    a(f"s_setprio {opt('pb', 1)}")
    cs_collect()
    stamp(a, 13 if False else 14)
    def gfrag(fr, o):
        return gelu8(ACC + 8*fr, 10, 12, 14, TMP + 8, o) + [f"buffer_store_dwordx4 {v(o,4)}, v0, {s(WD,4)}, s{sK if fr < 4 else 27} offen offset:{(fr&3)*1024}{SC}"]
    assert NA == 2 or not opt("w4e", 0)
    garrive(a, 0)
    mean_fix(a, ACC, WF, lambda t: CSP + t, M0_, M1_, tuple(range(NA)))
    srd(a, WA, 18, 1792 * 896)
    a(f"""v_lshrrev_b32 v8, 3, v1
          v_bfe_u32 v9, v1, 4, 1
          v_lshlrev_b32 v9, 2, v9
          v_and_b32 v7, 7, v1
          v_xor_b32 v9, v9, v7
          v_mul_u32_u24 v8, 896, v8
          v_lshl_add_u32 v7, v9, 4, v8
          s_and_b32 s3, s2, 1
          s_mul_i32 s3, s3, 56
          s_add_u32 s3, s3, s{sW}
          s_mul_i32 s3, s3, {16*896}
          s_lshl_b32 s26, s{sCB}, 7
          s_add_u32 s3, s3, s26
          v_add_u32 v7, s3, v7                   ; W4 voffset
          s_mul_i32 s{sK3}, s{sCB}, {8*16*896*ROT}""")
    def w4step(g, j):
        for u in range(2):
            g(f"s_add_u32 m0, s{sL}, {j*8192 + u*1024}\ns_add_u32 s3, s{sK3}, {u*8*896}\nbuffer_load_dwordx4 v7, {s(WA,4)}, s3 offen lds")
        wrapinc(g, sK3, 4*16*896, 896*896)
    nov = opt("nov", 2*NA)
    pre = {"G": opt("g3b", 4 - NA)}
    W4S = opt("w4s", 3)
    W4E = opt("w4e", 0)
    g = A(); g.uid = 2000; gwait(g, 0, 20); pre[("s", W4S if W4E else 26)] = g.l
    for j in range(W4E):
        g = A(); w4step(g, j); pre[("t", W4S + (21 // W4E)*j)] = g.l
    kloop(a, ACC, WF, XR, 2, t2_, woff, pre, True,
          sum((gfrag(fr, XR + 4*fr) for fr in range(nov)), []), R=6, D=5)
    garrive(a, 0)
    OWN = XR
    mean_fix(a, ACC, WF, lambda t: CSP + t, M0_, M1_, tuple(range(NA if NA < 4 else 0, 4)))
    for fr in range(nov, 8):
        if opt("pkg", 0):
            gelu_pairs(a, [ACC + 8*fr + 2*i for i in range(4)], 10, 12, 14, TMP + 8)
            for i in range(4): a(f"v_cvt_pk_bf16_f32 v{XR+4*fr+i}, v{ACC+8*fr+2*i}, v{ACC+8*fr+2*i+1}")
            a(gfrag(fr, XR + 4*fr)[-1])
        else:
            for x in gfrag(fr, OWN + 4*fr): a(x)
    stamp(a, 8)
    ACC, WF, AR, EP = 16, 80, 144, 176
    WOB = 0
    srd(a, WB_, 8, 448 * 896)
    a("s_and_b32 s27, s2, 1")
    gwait(a, 0, B_G3_DONE)
    NP0 = opt("np0", 4)
    lo()
    for j in range(W4E, W4E + NP0): w4step(a, j)
    hi()
    a(f"""s_lshl_b32 s3, s{sRB3}, 4
          s_add_u32 s3, s3, s{sCB3}
          s_lshl_b32 s3, s3, 7
          s_add_u32 s{sX}, s3, {F3}
          s_mul_i32 s3, s{sT3}, 112
          s_mul_i32 s26, s27, 56
          s_add_u32 s3, s3, s26
          s_lshl_b32 s3, s3, 10
          s_add_u32 s3, s3, {HHF}
          v_add_u32 v4, s3, v0
          s_add_u32 s{sKA}, s{sCB}, 1
          s_cmp_eq_u32 s{sKA}, 7
          s_cselect_b32 s{sKA}, 0, s{sKA}
          s_lshl_b32 s{sKA}, s{sKA}, 13
          s_lshl_b32 s26, s{sRB3}, 4
          s_mul_i32 s3, s27, 7
          s_add_u32 s3, s3, s26
          v_add_u32 v10, s3, v1
          v_lshlrev_b32 v10, 7, v10
          v_add_u32 v10, {F3}, v10
          s_lshl_b32 s3, s{sW}, 2
          s_add_u32 s3, s3, s26
          v_and_b32 v14, 3, v1
          v_add_u32 v14, s3, v14
          v_lshlrev_b32 v14, 7, v14
          v_add_u32 v14, {FA}, v14
          s_waitcnt vmcnt({2*NP0})""")
    signal(a, sX, 16)
    stamp(a, 9)
    lo()
    for j in range(W4E + NP0, 14): w4step(a, j)
    hi()
    a(f"""s_mul_i32 s3, s27, {896*896}
          s_mul_i32 s26, s{sW}, {96*896}
          s_sub_u32 s3, s26, s3
          v_add_u32 v7, s3, v7""")
    poll(a, 10, 7)
    gbar(a, 0, B_G3_DONE + 4)
    stamp(a, 10)
    LA4, RA = opt("la4", 12), 14
    PB = opt("pb16", 1); NPS = 8 >> PB
    OR_ = lambda u: 168 + 8*u if u < 7 else 240
    PD, EP = 112, 128
    q = []
    def after(tag):
        return len(q) - 1 - max(i for i, x in enumerate(q) if x == tag)
    def al(u):
        a(f"buffer_load_dwordx4 {v(AR + 4*(u % RA), 4)}, v4, {s(WD,4)}, s{sKA} offen offset:{(u&3)*1024}{SC}"); q.append(("a", u))
        if (u & 3) == 3 and u < 55: wrapinc(a, sKA, 4096, 56*1024)
    def rd(m):
        s_, b = m >> 1, m & 1
        if m == 64: a("v_add_u32 v2, 0x10000, v2\nv_add_u32 v3, 0x10000, v3")
        for e in range(2): a(f"ds_read_b64_tr_b16 {v(WF + 4*(m & 7) + 2*e, 2)}, v{2+b} offset:{(s_ & 31)*2048 + e*1024}")
    def wo(u):
        a(f"s_add_u32 m0, s{sM}, {u*1024}\ns_mov_b32 s3, {u*8*896}\nbuffer_load_dwordx4 v7, {s(WB_,4)}, s3 offen lds"); q.append(("w", u))
    def ol(u):
        for aa in range(2):
            a(f"buffer_load_dwordx4 {v(OR_(u)+4*aa,4)}, v{12+aa}, {s(WD,4)}, {'0' if u < 4 else 's%d' % sL} offen offset:{(u&3)*1024}{SC}"); q.append(("o", u))
    assert ROT
    I0 = opt("i0", 2); nxt = [8 + I0]
    for u in range(8, 8 + I0): al(u)
    a(f"""s_mul_i32 s{sM}, s{sW}, 15360
          s_movk_i32 s{sL}, 4096
          s_lshl_b32 s3, s{sT}, 5
          s_lshl_b32 s26, s{sW}, 3
          s_add_u32 s3, s3, s26
          s_lshl_b32 s3, s3, 10
          s_add_u32 s3, s3, {OF}
          v_add_u32 v12, s3, v0
          v_xor_b32 v13, {32*1024}, v12
          s_setprio {opt('pf', 0)}""")
    D4 = 6
    S_ARR, S_WO, S_FL, S_CHK = 31, opt("swo", 40), opt("sfl", 54), 99
    for m in range(D4): rd(m)
    for m in range(112):
        s_, b = m >> 1, m & 1
        if b == 0: a("s_waitcnt " + (f"vmcnt({after(('a', s_))}) " if s_ >= 8 else "") + f"lgkmcnt({2*max(0, min(D4 - 2, 110 - m))})")
        a(f"{MF} {v(ACC+16*b,16)}, {v(WF + 4*(m & 7), 4)}, {v(AR + 4*(s_ % RA) if s_ >= 8 else OWN + 4*s_, 4)}, {'0' if s_ == 0 else v(ACC+16*b,16)}")
        if m + D4 < 112: rd(m + D4)
        if b == 1:
            if opt("g4s", 0) and s_ in (7, 8, 30, 36, 51): stamp(a, {7: 2, 8: 3, 30: 12, 36: 13, 51: 4}[s_])
            for _ in range(opt("i1", 2) if s_ < 8 else 1):
                if nxt[0] < min(56, max(s_, 7) + 1 + LA4): al(nxt[0]); nxt[0] += 1
            if s_ == S_ARR: garrive(a, 0)
            if s_ == S_WO: gwait(a, 0, B_G3_DONE + 8)
            if S_WO <= s_ < S_WO + 15: wo(s_ - S_WO)
            if s_ == S_FL:
                a(f"buffer_load_dword v15, v14, {s(WD,4)}, 0 offen sc1"); q.append("f")
    a(f"s_setprio {opt('pb', 1)}")
    stamp(a, 11)
    a(f"""s_lshl_b32 s{sX}, s2, 7
          s_add_u32 s{sX}, s{sX}, {FQ}
          s_lshl_b32 s3, s{sFT}, 6
          s_add_u32 s26, s{sM}, 0xffff0000
          v_xor_b32 v2, s3, v2
          v_xor_b32 v3, s3, v3
          v_add_u32 v2, s26, v2
          v_add_u32 v3, s26, v3
          s_xor_b32 s3, s{sRB}, 1
          s_mul_i32 s3, s3, 7
          s_add_u32 s3, s3, s{sCB}
          s_lshl_b32 s3, s3, 1
          s_and_b32 s26, s{sW}, 1
          s_add_u32 s3, s3, s26
          s_lshl_b32 s3, s3, {13 - PB}
          s_add_u32 s3, s3, {PART}
          s_cmp_eq_u32 s{sFT}, 0
          s_cselect_b32 s3, {OOB}, s3
          s_add_u32 s26, s3, 4096""")
    woff2 = lambda u: (28*(u >> 1) + 16*(u & 1)) * 128
    if PB:
        for i in range(16):
            a(f"v_cvt_pk_bf16_f32 v{PD+i}, v{ACC+2*i}, v{ACC+2*i+1}")
            if (i & 3) == 3: a(f"buffer_store_dwordx4 {v(PD+i-3,4)}, v0, {s(WD,4)}, s3 offen offset:{(i>>2)*1024}{SC}")
    else:
        for i in range(8): a(f"buffer_store_dwordx4 {v(ACC+4*i,4)}, v0, {s(WD,4)}, s{3 if i < 4 else 26} offen offset:{(i&3)*1024}{SC}")
    a(f"""s_mov_b32 s{sKA}, 0
          s_waitcnt vmcnt({NPS})
          v_cmp_eq_u32 vcc, 0, v15
          s_cbranch_vccz B_oready
          s_waitcnt vmcnt(0)""")
    signal(a, sX, C_SQ)
    a(f"s_mov_b32 s{sKA}, 1")
    poll(a, 14, 4)
    a.label("B_oready")
    for u in range(8): ol(u)
    stamp(a, 15)
    for u in range(3): wreads(a, WF, u, woff2(u))
    a(f"""s_mul_i32 s27, s{sRB}, 7
          s_add_u32 s27, s27, s{sCB}
          s_lshl_b32 s27, s27, 1
          s_and_b32 s26, s{sW}, 1
          s_add_u32 s27, s27, s26
          s_lshl_b32 s27, s27, 1
          s_add_u32 s27, s27, s{sFT}
          s_lshl_b32 s27, s27, {12 - PB}
          s_add_u32 s{sK}, s27, {PART}
          s_xor_b32 s3, s2, 1
          s_lshl_b32 s3, s3, 7
          s_add_u32 s3, s3, {FQ}
          v_mov_b32 v14, s3
          s_cmp_eq_u32 s{sFT}, 0
          s_cbranch_scc1 B_keep""")
    for i in range(32): a(f"v_mov_b32 v{ACC+i}, 0")
    a.label("B_keep")
    a(f"s_waitcnt vmcnt(16)\ns_cmp_lg_u32 s{sKA}, 0\ns_cbranch_scc1 B_sigd")
    signal(a, sX, C_SQ)
    a.label("B_sigd")
    for u in range(8):
        a(f"s_waitcnt vmcnt({2*(7 - u)}) lgkmcnt({4*min(2, 7 - u)})")
        for aa in range(2):
            for b in range(2):
                j = 2*aa + b
                a(f"{MF} {v(ACC+16*j,16)}, {v(WF+8*(u&3)+4*b,4)}, {v(OR_(u)+4*aa,4)}, {'0' if (u == 0 and aa) else v(ACC+16*j,16)}")
        if u + 3 < 8: wreads(a, WF, (u+3) & 3, woff2(u+3))
    a(f"buffer_load_dword v15, v14, {s(WD,4)}, 0 offen sc1")
    if opt("ts", 0): stamp(a, 2)
    def region3(d, j):
        a(f"s_xor_b32 s{d}, s{sW}, {(j >> 1) + 2*(j & 1)}\ns_mul_i32 s{d}, s{d}, 15360\ns_add_u32 s{d}, s{d}, {WOB}")
    srd(a, XS, 20, 2048 * 896)
    OSC = ["", " sc1", " nt"][opt("osc", 2)]
    OT = WOB + 4*15360
    a(f"""v_and_b32 v4, 31, v1
          s_and_b32 s26, s{sW}, 1
          s_lshl_b32 s26, s26, 5
          v_add_u32 v4, s26, v4
          v_mul_u32_u24 v4, 144, v4
          v_lshrrev_b32 v9, 5, v1
          v_lshl_add_u32 v4, v9, 3, v4
          s_lshl_b32 s26, s{sFT}, 6
          s_add_u32 s26, s26, {OT}
          v_add_u32 v4, s26, v4
          v_lshrrev_b32 v6, 3, v1
          s_lshl_b32 s26, s{sW}, 4
          v_add_u32 v6, s26, v6
          v_and_b32 v9, 7, v1
          v_mul_u32_u24 v5, 144, v6
          v_lshl_add_u32 v5, v9, 4, v5
          v_add_u32 v5, {OT}, v5
          v_mul_u32_u24 v6, 896, v6
          v_lshl_add_u32 v6, v9, 4, v6
          s_mul_i32 s27, s{sRB}, {64*896}
          s_lshl_b32 s26, s{sCB}, 7
          s_add_u32 s27, s27, s26
          s_add_u32 s{sX}, s27, {8*896}""")
    def fetch_partial():
        a("s_waitcnt vmcnt(0)\nv_cmp_eq_u32 vcc, 0, v15\ns_cbranch_vccz B_pready")
        poll(a, 14, 1)
        a.label("B_pready")
        for i in range(4 >> PB): a(f"buffer_load_dwordx4 {v(PD+16*PB+4*i,4)}, v0, {s(WD,4)}, s{sK} offen offset:{i*1024}{SC}")
    reduce3(a, ACC, sM, region3, 0, B_G3_DONE + 12, True, fetch_partial)
    if opt("ts", 0): stamp(a, 3)
    for i in range(16): a(f"v_add_f32 v{ACC+i}, v{ACC+i}, v{RES+i}")
    a("s_waitcnt vmcnt(0)")
    if PB: unpack(a, PD, PD + 16, 8)
    for i in range(16): a(f"v_add_f32 v{ACC+i}, v{ACC+i}, v{PD+i}")
    if opt("ts", 0): stamp(a, 12)
    for i in range(8): a(f"v_cvt_pk_bf16_f32 v{EP+i}, v{ACC+2*i}, v{ACC+2*i+1}")
    for j in range(4): a(f"ds_write_b64 v4, {v(EP+2*j,2)} offset:{16*j}")
    gbar(a, 0, B_G3_DONE + 16)
    if opt("ts", 0): stamp(a, 13)
    a(f"""ds_read_b128 {v(EP,4)}, v5
          ds_read_b128 {v(EP+4,4)}, v5 offset:{8*144}
          s_waitcnt lgkmcnt(1)
          buffer_store_dwordx4 {v(EP,4)}, v6, {s(XS,4)}, s27 offen{OSC}
          s_waitcnt lgkmcnt(0)
          buffer_store_dwordx4 {v(EP+4,4)}, v6, {s(XS,4)}, s{sX} offen{OSC}""")
    stamp_out2(a)
    a("s_endpgm")

def stamp_out2(a):
    if not common.STAMPS: return
    a("s_waitcnt vmcnt(0)")
    common.stamp(a, 6); common.stamp(a, 7, True)
    a("s_waitcnt lgkmcnt(0)")
    for i in range(16): a(f"v_mov_b32 v{16+i}, s{64+2*i}")
    a(f"""s_lshl_b32 s3, s2, 3
          s_add_u32 s3, s3, s60
          s_lshl_b32 s3, s3, 6
          s_add_u32 s3, s3, {TS}
          v_mov_b32 v8, 0""")
    for j in range(4): a(f"buffer_store_dwordx4 v[{16+4*j}:{19+4*j}], v8, {s(WD,4)}, s3 offen offset:{16*j}")

def p1stamps():
    return common.STAMPS and opt("p1s", 0)

def build(name):
    a = A()
    a.label("K_start")
    a("s_cmp_ge_u32 s2, 256\ns_cbranch_scc1 K_end")
    load_args(a)
    a(f"""v_and_b32 v1, 63, v0
          v_lshrrev_b32 v8, 6, v0
          s_mov_b32 s59, {fb(2.0**100)}
          v_readfirstlane_b32 s60, v8
          v_lshlrev_b32 v0, 4, v1
          s_and_b32 s{sW}, s60, 3
          s_cmp_ge_u32 s60, 4""")
    if opt("bfirst", 1):
        a("s_cbranch_scc0 K_rolea")
        p1b(a)
        a("s_branch K_roleb")
        a.label("K_rolea")
        p1a(a)
        att(a)
        a.label("K_roleb")
        roleb(a)
    else:
        a("s_cbranch_scc1 K_roleb")
        p1a(a)
        att(a)
        a.label("K_roleb")
        p1b(a)
        roleb(a)
    a.label("K_end")
    a("s_endpgm")
    a.label("K_last")
    return a

if __name__ == "__main__":
    if "stamp" in sys.argv[1]: common.STAMPS = True
    if "mini" in sys.argv[1]: common.STAMPS = common.MINI = True
    name = "parallel_sum__mha_block__mixer_s_mlp__prompt_kernel"
    HDR = open("parallel_sum__mha_block__mixer_s_mlp__prompt.s.ref").read().split("; Override launch")[0]
    DOC = """;
"""
    out = HDR + "; @launch grid=(256,1,1) block=(512,1,1) lds=163840\n" + DOC + '.amdgcn_target "amdgcn-amd-amdhsa--gfx950"\n'
    out += kernel_head(name) + build(name).text() + kernel_desc(name, vgpr=256, sgpr=102)
    open(sys.argv[1], "w").write(out)
```

```python
import sys
import common
from common import *

FLG = 0x1550000
FP, F2, F3, FA, FQ = FLG, FLG + 0x8000, FLG + 0x10000, FLG + 0x18000, FLG + 0x20000
NINIT = 20
PART = 0x1600000
WS_END = 0x1A00000
sFT = 52
CS3P = 0x800000
XS, WA, WD, WB_ = 28, 32, 36, 40
sW, sSPIN = 46, 58
SC = " sc1"
CNT = 156 * 1024
C_B, C_A, C_S1, C_S2, C_S3, C_SA, C_W, C_X, C_SQ = 0, 4, 8, 12, 16, 20, 24, 28, 32
SPIN_MAX = 1 << 16
import os
OPT = dict(x.split("=") for x in os.environ.get("MKOPT", "").split(",") if x)
def opt(k, d): return int(OPT.get(k, d))
SLEEP = opt("sleep", 1)
DEBUG = "dbg" in sys.argv[1] if len(sys.argv) > 1 else False


def poll(a, vaddr, nlanes, srdreg=WD, soff="0", SLEEP=SLEEP):
    L, D = a.newlabel("PL"), a.newlabel("PD")
    a(f"s_mov_b32 s{sSPIN}, {SPIN_MAX}")
    a(f"s_mov_b64 exec, {(1 << nlanes) - 1}" if nlanes <= 6 else f"s_bfm_b64 exec, {nlanes}, 0")
    a.label(L)
    a(f"""buffer_load_dword v9, v{vaddr}, {s(srdreg,4)}, {soff} offen sc1
          s_waitcnt vmcnt(0)
          v_cmp_eq_u32 vcc, 0, v9
          s_cbranch_vccz {D}
          s_sleep {SLEEP}
          s_sub_u32 s{sSPIN}, s{sSPIN}, 1
          s_cmp_lg_u32 s{sSPIN}, 0
          s_cbranch_scc1 {L}""")
    a.label(D)
    a("s_mov_b64 exec, -1")
    jitter(a)

TF = ["", " sc1", " nt", " sc0 sc1"][opt("tf", 0)]
SCB = "" if opt("local", 0) else " sc1"
def signal(a, soff, cnt, sc=" sc1", last=3):
    jitter(a)
    a(f"""s_mov_b64 exec, 1
          v_mov_b32 v8, {CNT + cnt}
          v_mov_b32 v9, 1
          ds_add_rtn_u32 v8, v8, v9
          s_waitcnt lgkmcnt(0)
          v_readfirstlane_b32 s26, v8
          v_mov_b32 v8, 0
          s_cmp_eq_u32 s26, {last}
          s_cselect_b32 s26, s{soff}, {OOB}
          buffer_store_dword v9, v8, {s(WD,4)}, s26 offen{sc}
          s_mov_b64 exec, -1""")

JIT = [0]
def jitter(a):
    if not opt("jit", 0): return
    JIT[0] += 1
    L = f"JT_{JIT[0]}"
    a(f"""s_mul_i32 s100, s2, {37 + 2*JIT[0]}
          s_add_u32 s100, s100, s60
          s_mul_i32 s100, s100, {101 + opt("jit", 0)}
          s_bitcmp1_b32 s100, {3 + JIT[0] % 3}
          s_cbranch_scc0 {L}
          s_sleep {20 + 13*(JIT[0] % 7)}""")
    a.label(L)

def garrive(a, off, field=0):
    jitter(a)
    a(f"""s_mov_b64 exec, 1
          v_mov_b32 v8, {CNT + off}
          v_mov_b32 v9, {1 << (4*field)}
          ds_add_u32 v8, v9
          s_mov_b64 exec, -1""")

def gwait(a, off, target, va=8, sr=3, field=None):
    L, D = a.newlabel("GL"), a.newlabel("GD")
    a(f"s_mov_b32 s{sSPIN}, {SPIN_MAX * 8}\nv_mov_b32 v{va}, {CNT + off}")
    a.label(L)
    a(f"""ds_read_b32 v{va+1}, v{va}
          s_sub_u32 s{sSPIN}, s{sSPIN}, 1
          s_cbranch_scc1 {D}
          s_waitcnt lgkmcnt(0)
          v_readfirstlane_b32 s{sr}, v{va+1}
          {"" if field is None else f"s_bfe_u32 s{sr}, s{sr}, {0x40000 + 4*field}"}
          s_cmp_lt_u32 s{sr}, {target}
          s_cbranch_scc1 {L}""")
    a.label(D)
    a("s_waitcnt lgkmcnt(0)")
    jitter(a)

def gbar(a, off, target):
    a("s_waitcnt lgkmcnt(0)")
    garrive(a, off); gwait(a, off, target)

def kloop(a, ACC, WF, XR, vA, tiles, offs, pre, perm, fill=(), R=8, D=6, cs=None):
    ops = [(s_, t) for s_ in range(28) for t in (tiles if s_ < 27 else pre.get("lastorder", tiles))]
    N = len(ops); fill = list(fill); done = 0
    def rd(m):
        s_, t = ops[m]
        if (s_ & 3) == 0 and t == tiles[0]:
            for x in pre.get(s_ >> 2, []): a(x)
        for e in range(2):
            row = 16 * (s_ & 3) + (8 * e if perm else 4 * e)
            a(f"ds_read_b64_tr_b16 {v(WF + 4*(m % R) + 2*e, 2)}, v{vA+t} offset:{offs(s_ >> 2) + row*256 if offs else s_*2048 + e*1024}")
    for m in range(D): rd(m)
    f0 = pre.get("fill0", 1)
    per = max(1, -(-len(fill) // (pre.get("fillend", N - 1) - f0)))
    for m, (s_, t) in enumerate(ops):
        if (s_ & 3) == 0 and t == tiles[0]:
            for x in pre.get(("x", s_ >> 2), []): a(x)
        if t == tiles[0]:
            for x in pre.get(("s", s_), []): a(x)
        G = pre.get("G", 1)
        if m % G == 0: a(f"s_waitcnt lgkmcnt({2*max(0, min(D - G, N - G - m))})")
        if t < 4: a(f"{MF} {v(ACC+16*t,16)}, {v(WF + 4*(m % R), 4)}, {v(XR(s_) if callable(XR) else XR+4*s_,4)}, {'0' if s_ == 0 else v(ACC+16*t,16)}")
        elif len(cs) == 3: a(f"{MF} {v(cs[0],16)}, {v(cs[1],4)}, {v(WF + 4*(m % R), 4)}, {'0' if s_ == 0 else v(cs[0],16)}")
        else: a(f"v_mfma_f32_16x16x32_bf16 {v(cs[0],4)}, {v(cs[1],4)}, {v(WF + 4*(m % R), 4)}, {'0' if s_ == 0 else v(cs[0],4)}")
        if m + D < N: rd(m + D)
        if (s_ & 3) == 0 and t == tiles[0]:
            for x in pre.get(("y", s_ >> 2), []): a(x)
        if t == tiles[min(1, len(tiles) - 1)]:
            for x in pre.get(("t", s_), []): a(x)
        for x in pre.get(("m", m), []): a(x)
        if m >= f0:
            for x in fill[done:done + per]: a(x)
            done += per
    for x in fill[done:]: a(x)

def kburst(a, ACC, WF, XR, vA, offs, pre, fill=()):
    fill = list(fill); per = -(-len(fill) // 26); done = 0
    def rd(s_):
        if (s_ & 3) == 0:
            for x in pre.get(s_ >> 2, []): a(x)
        for t in range(4):
            for e in range(2):
                a(f"ds_read_b64_tr_b16 {v(WF + 16*(s_ & 1) + 4*t + 2*e, 2)}, v{vA+t} offset:{offs(s_ >> 2) + (16*(s_ & 3) + 8*e)*256}")
    rd(0); rd(1)
    for s_ in range(28):
        if (s_ & 3) == 0:
            for x in pre.get(("x", s_ >> 2), []): a(x)
        a(f"s_waitcnt lgkmcnt({8 if s_ < 27 else 0})")
        for t in range(4):
            a(f"{MF} {v(ACC+16*t,16)}, {v(WF + 16*(s_ & 1) + 4*t, 4)}, {v(XR+4*s_,4)}, {'0' if s_ == 0 else v(ACC+16*t,16)}")
        if s_ + 2 < 28: rd(s_ + 2)
        if s_:
            for x in fill[done:done + per]: a(x)
            done += per

def tr_addrs(a, vA, sTS, base, perm, which=(0, 1, 2, 3, 4)):
    a(f"""v_lshrrev_b32 v8, 5, v1
          v_bfe_u32 v9, v1, 2, 2
          v_bfe_u32 v10, v1, 4, 1
          v_and_b32 v11, 3, v1
          v_lshl_add_u32 v10, v10, 2, v11
          v_lshl_add_u32 v8, v8, {2 if perm else 3}, v9
          v_lshlrev_b32 v8, 8, v8
          v_add_u32 v8, {base}, v8
          v_lshlrev_b32 v9, 2, v9""")
    for t in which:
        a(f"s_mul_i32 s26, {sTS}, {t}" if t < 4 else f"s_mul_i32 s26, {sTS}, s{sW}")
        a(f"""v_add_u32 v11, s26, v10
              v_lshrrev_b32 v12, 1, v11
              v_add_u32 v12, v12, v9
              v_and_b32 v12, 15, v12
              v_and_b32 v11, 1, v11
              v_lshlrev_b32 v11, 3, v11
              v_lshl_add_u32 v11, v12, 4, v11
              v_add_u32 v{vA+t}, v8, v11""")

def cs_publish(a, CS, T, xch):
    a(f"""v_cvt_pk_bf16_f32 v{T}, v{CS}, v{CS}
          v_and_b32 v{T+1}, 0xffff0000, v{T}
          v_sub_f32 v{T+1}, v{CS}, v{T+1}
          v_cvt_pk_bf16_f32 v{T}, v{CS}, v{T+1}
          v_and_b32 v10, 31, v1
          v_lshlrev_b32 v10, 2, v10
          v_add_u32 v10, {xch}, v10
          s_lshl_b32 s26, s{sW}, 7
          v_add_u32 v9, s26, v10
          ds_write_b32 v9, v{T}""")

def mean_fix(a, ACC, T, src, vMU0, vMU1, tiles=(0, 1, 2, 3)):
    n = len(tiles)
    a(f"v_mov_b32 v{T+4*n}, v{vMU0}\nv_mov_b32 v{T+4*n+1}, v{vMU1}\nv_mov_b32 v{T+4*n+2}, 0\nv_mov_b32 v{T+4*n+3}, 0")
    for i, t in enumerate(tiles):
        if src(t) != T + 4*i: a(f"v_mov_b32 v{T+4*i}, v{src(t)}")
        a(f"v_and_b32 v{T+4*i+1}, 0xffff, v{src(t)}\nv_mov_b32 v{T+4*i+2}, 0\nv_mov_b32 v{T+4*i+3}, 0")
    for i, t in enumerate(tiles): a(f"{MF} {v(ACC+16*t,16)}, {v(T+4*i,4)}, {v(T+4*n,4)}, {v(ACC+16*t,16)}")

def mu_frag(a, vmu, lo_en, d0, d1):
    a(f"""v_cvt_pk_bf16_f32 v{d0}, -v{vmu}, -v{vmu}
          v_and_b32 v8, 0xffff0000, v{d0}
          v_sub_f32 v8, -v{vmu}, v8
          v_cvt_pk_bf16_f32 v{d1}, v8, 0
          v_and_b32 v{d1}, {lo_en}, v{d1}
          v_lshrrev_b32 v8, 5, v1
          v_add_u32 v8, -1, v8
          v_and_b32 v{d0}, v8, v{d0}
          v_and_b32 v{d1}, v8, v{d1}""")

def gelu_consts(a, R, DEN):
    a(f"""v_mul_f32 v10, {fb(GK1)}, v{R}
          v_mul_f32 v12, v{R}, v{R}
          v_mul_f32 v12, v12, v{R}
          v_mul_f32 v12, {fb(GK2)}, v12
          v_mov_b32 v14, v{DEN}""")

def gelu8(regs0, K1, K2, IS, T, out):
    L = []
    for i in range(8): L.append(f"v_mul_f32 v{T+i}, v{regs0+i}, v{regs0+i}")
    for i in range(8): L.append(f"v_fma_f32 v{T+i}, v{T+i}, v{K2}, v{K1}")
    for i in range(8): L.append(f"v_mul_f32 v{T+i}, v{T+i}, v{regs0+i}")
    for i in range(8): L.append(f"v_exp_f32 v{T+i}, v{T+i}")
    for i in range(8): L.append(f"v_fma_f32 v{T+i}, v{T+i}, v{IS}, v{IS}")
    for i in range(8): L.append(f"v_rcp_f32 v{T+i}, v{T+i}")
    for i in range(8): L.append(f"v_mul_f32 v{T+i}, v{T+i}, v{regs0+i}")
    for i in range(4): L.append(f"v_cvt_pk_bf16_f32 v{out+i}, v{T+2*i}, v{T+2*i+1}")
    return L

def wrapinc(a, sreg, step, lim):
    a(f"s_add_u32 s{sreg}, s{sreg}, {step}\ns_cmp_eq_u32 s{sreg}, {lim}\ns_cselect_b32 s{sreg}, 0, s{sreg}")

def reduce_addrs(a, VA, sM, region):
    a(f"v_add_u32 v{VA}, s{sM}, v0")
    for j in range(1, 4):
        region(26, j)
        a(f"v_add_u32 v{VA+j}, s26, v0")

def reduce3(a, ACC, VA, cnt_off, target, pre=None, mid=None):
    for j in range(1, 4):
        for i in range(4): a(f"ds_write_b128 v{VA}, {v(ACC+16*j+4*i,4)} offset:{(j-1)*4096 + i*1024}")
    a("s_waitcnt lgkmcnt(0)")
    garrive(a, cnt_off)
    if pre: pre()
    gwait(a, cnt_off, target)
    for j in range(1, 4):
        for i in range(4): a(f"ds_read_b128 {v(ACC+16*j+4*i,4)}, v{VA+j} offset:{(j-1)*4096 + i*1024}")
    if mid: mid()
    for j in range(1, 4):
        a(f"s_waitcnt lgkmcnt({4*(3-j)})")
        for i in range(16): a(f"v_add_f32 v{ACC+i}, v{ACC+i}, v{ACC+16*j+i}")

def reduce2(a, ACC, VA, cnt_off, target, pre=None, mid=None):
    for i in range(4): a(f"ds_write_b128 v{VA}, {v(ACC+16+4*i,4)} offset:{i*1024}")
    a("s_waitcnt lgkmcnt(0)")
    garrive(a, cnt_off)
    if pre: pre()
    gwait(a, cnt_off, target)
    for i in range(4): a(f"ds_read_b128 {v(ACC+16+4*i,4)}, v{VA+1} offset:{i*1024}")
    if mid: mid()
    for i in range(16):
        if (i & 3) == 0: a(f"s_waitcnt lgkmcnt({3 - (i >> 2)})")
        a(f"v_add_f32 v{ACC+i}, v{ACC+i}, v{ACC+16+i}")

def pair_addrs(a, VA, base):
    a(f"""s_lshl_b32 s26, s{sW}, 12
          s_add_u32 s26, s26, {base}
          v_add_u32 v{VA}, s26, v0
          v_xor_b32 v{VA+1}, 8192, v{VA}""")

def reduce3c(a, ACC, sM, region, cnt_off, target):
    BL = 3712
    a(f"""v_add_u32 v10, s{sM}, v0
          v_lshlrev_b32 v14, 2, v1
          v_add_u32 v14, {3584 - 128}, v14
          v_add_u32 v15, s{sM}, v14""")
    for j in range(1, 4):
        for i in range(3): a(f"ds_write_b128 v10, {v(ACC+16*j+4*i,4)} offset:{(j-1)*BL + i*1024}")
    a("s_mov_b64 exec, 0xffffffff")
    for j in range(1, 4): a(f"ds_write_b128 v10, {v(ACC+16*j+12,4)} offset:{(j-1)*BL + 3072}")
    a("s_not_b64 exec, exec")
    for j in range(1, 4): a(f"ds_write_b32 v15, v{ACC+16*j+12} offset:{(j-1)*BL}")
    a("s_mov_b64 exec, -1")
    for j in range(1, 4):
        region(26, j)
        a(f"v_add_u32 v{10+j}, s26, v0\nv_add_u32 v{4+j}, s26, v14")
    gbar(a, cnt_off, target)
    a("s_mov_b64 exec, 0xffffffff")
    for j in range(1, 4): a(f"ds_read_b128 {v(ACC+16*j+12,4)}, v{10+j} offset:{(j-1)*BL + 3072}")
    a("s_not_b64 exec, exec")
    for j in range(1, 4): a(f"ds_read_b32 v{ACC+16*j+12}, v{4+j} offset:{(j-1)*BL}")
    a("s_mov_b64 exec, -1")
    for j in range(1, 4):
        for i in range(3): a(f"ds_read_b128 {v(ACC+16*j+4*i,4)}, v{10+j} offset:{(j-1)*BL + i*1024}")
    for j in range(1, 4):
        a(f"s_waitcnt lgkmcnt({3*(3-j)})")
        for i in range(16): a(f"v_add_f32 v{ACC+i}, v{ACC+i}, v{ACC+16*j+i}")

def unpack(a, dst, src, n):
    for i in range(n):
        a(f"v_lshlrev_b32 v{dst+2*i}, 16, v{src+i}\nv_and_b32 v{dst+2*i+1}, 0xffff0000, v{src+i}")

NBAR_P1 = 10
XB = 112 * 1024
XCH = XB + 16384
def p1a(a):
    a(f"s_setprio {opt('pa1', 2)}")
    ACC, CS, WF, XR, TMP = 16, 80, 96, 136, 248
    sRB, sCB, sTY, sSUB, sTS, sLO, sT = 44, 45, 47, 48, 50, 55, 56
    a(f"""s_and_b32 s26, s2, 7
          s_lshr_b32 s27, s2, 3
          s_lshr_b32 s{sRB}, s26, 1
          s_lshl_b32 s{sRB}, s{sRB}, 2
          s_and_b32 s3, s27, 3
          s_add_u32 s{sRB}, s{sRB}, s3
          s_and_b32 s{sCB}, s26, 1
          s_lshl_b32 s{sCB}, s{sCB}, 3
          s_lshr_b32 s3, s27, 2
          s_add_u32 s{sCB}, s{sCB}, s3
          s_lshr_b32 s{sTY}, s{sCB}, 2
          s_and_b32 s{sSUB}, s{sCB}, 3
          s_cmp_eq_u32 s{sTY}, 3
          s_cselect_b32 s{sTS}, 8, 7
          s_cselect_b32 s{sLO}, -1, 0
          s_lshl_b32 s{sT}, s{sRB}, 2
          s_add_u32 s{sT}, s{sT}, s{sW}""")
    tr_addrs(a, 2, f"s{sTS}", 0, perm=False)
    a(f"""v_and_b32 v8, 15, v1
          v_bfe_u32 v9, v1, 4, 1
          v_cmp_eq_u32 vcc, v8, v9
          v_mov_b32 v8, 0x3f803f80
          v_cndmask_b32 v{CS+4}, 0, v8, vcc
          v_mov_b32 v{CS+5}, v{CS+4}
          v_mov_b32 v{CS+6}, v{CS+4}
          v_mov_b32 v{CS+7}, v{CS+4}
          v_and_b32 v8, 31, v1
          v_lshrrev_b32 v9, 5, v1
          v_bfe_u32 v10, v1, 1, 3
          v_xor_b32 v9, v9, v10
          v_lshlrev_b32 v8, 7, v8
          v_lshl_add_u32 v8, v9, 4, v8
          s_lshl_b32 s3, s{sW}, 12
          s_add_u32 s3, s3, {XB}
          v_add_u32 v{CS+8}, s3, v8
          v_xor_b32 v{CS+9}, 32, v{CS+8}
          v_xor_b32 v{CS+10}, 64, v{CS+8}
          v_xor_b32 v{CS+11}, 96, v{CS+8}
          s_waitcnt lgkmcnt(0)""")
    srd(a, WD, 24, WS_END)
    ONE = TMP
    M0_, M1_, R, DEN = TMP+4, TMP+5, TMP+6, TMP+7
    a(f"""v_and_b32 v10, 31, v1
          v_lshlrev_b32 v10, 2, v10
          v_add_u32 v10, {XCH}, v10
""")
    stamp(a, 12)
    pre = {}
    for c in range(7):
        pre[c] = ["s_barrier"] + [f"ds_read_b128 {v(XR + 16*(c&1) + 4*i, 4)}, v{CS+8+i} offset:{(c % 3)*16384}" for i in range(4)]
        if opt("sqv", 0) == 0:
            pre[("y", c)] = [f"v_dot2_f32_bf16 v{12+(i&1)}, v{XR+16*(c&1)+i}, v{XR+16*(c&1)+i}, {'0' if c == 0 and i < 2 else 'v%d' % (12+(i&1))}" for i in range(16)]
    sq = []
    if opt("sqv", 0):
        a("v_mov_b32 v12, 0\nv_mov_b32 v13, 0")
        for s_ in range(28):
            for i in range(4):
                r_ = XR + 16*((s_ >> 2) & 1) + 4*(s_ & 3) + i
                pre[("m", 5*s_ + 1 + i)] = [f"v_lshlrev_b32 v14, 16, v{r_}", f"v_and_b32 v15, 0xffff0000, v{r_}", "v_fmac_f32 v12, v14, v14", "v_fmac_f32 v13, v15, v15"]
    if common.STAMPS:
        for c, st in ((0, 2), (1, 13), (3, 3)):
            g = A(); stamp(g, st); pre[c] = pre[c][:1] + g.l + pre[c][1:]
    pre[4] += [f"v_add_u32 v{2+t}, 0x10000, v{2+t}" for t in range(5)]
    CSB = opt("csb", 0)
    pre["G"] = opt("p1g", 1); pre["lastorder"] = (3, 0, 1, 2) if CSB else (3, 4, 0, 1, 2)
    kloop(a, ACC, WF, lambda s_: XR + 16*((s_ >> 2) & 1) + 4*(s_ & 3), 2, (0, 1, 2, 3) if CSB else (0, 4, 1, 2, 3), lambda c: (c & 3) * 16384, pre, False, [], R=8, D=opt("p1d", 5), cs=(CS, CS+4))
    stamp(a, 4)
    for i in range(0 if CSB else 2):
        a(f"""v_cvt_pk_bf16_f32 v{WF+i}, v{CS+i}, v{CS+i}
              v_and_b32 v{WF+i}, 0xffff0000, v{WF+i}
              v_sub_f32 v{WF+i}, v{CS+i}, v{WF+i}
              v_cvt_pk_bf16_f32 v{WF+i}, v{CS+i}, v{WF+i}""")
    if not CSB:
        a(f"""s_lshl_b32 s26, s{sW}, 7
              v_add_u32 v11, s26, v10
              s_mov_b64 exec, 0xffff
              ds_write2_b32 v11, v{WF}, v{WF+1} offset1:16
              s_mov_b64 exec, -1""")
    a(f"""v_mov_b32 v14, v{ACC+48+12}
          v_mov_b32 v15, v{ACC+48+12}
          v_add_f32 v13, v12, v13
          v_permlane32_swap_b32 v15, v14
          v_mov_b32 v12, v13
          v_permlane32_swap_b32 v13, v12
          v_add_f32 v13, v13, v12
          v_mul_f32 v12, {fb(1/448)}, v14
          v_mul_f32 v13, {fb(1/448)}, v13
          v_fma_f32 v13, -v12, v12, v13
          v_max_f32 v13, 0, v13""")
    bf16r(a, 15, "v13")
    a(f"""v_add_f32 v9, {fb(EPS)}, v13
          v_add_f32 v15, {fb(EPS)}, v15
          v_mov_b32 v14, {fb(EPS)}
          v_fma_f32 v9, v9, v14, v13""")
    bf16r(a, 15, "v15")
    a(f"""v_sqrt_f32 v9, v9
          v_sqrt_f32 v15, v15
          s_waitcnt lgkmcnt(0)
          s_barrier                              ; barrier 7""")
    stamp(a, 14)
    for t in range(4): a(f"ds_read_b32 v{WF+4*t}, v10 offset:{128*t}")
    mu_frag(a, 12, f"s{sLO}", M0_, M1_)
    a(f"v_mov_b32 v14, s{sLO}")
    bf16r(a, 15, "v15")
    bf16r(a, 10, "v12")
    a(f"""v_bfi_b32 v{DEN}, v14, v9, v15
          v_rcp_f32 v{R}, v{DEN}
          s_waitcnt lgkmcnt(0)""")
    mean_fix(a, ACC, WF, lambda t: WF + 4*t, M0_, M1_)
    a(f"""
          s_lshl_b32 s3, s{sT}, 8
          s_add_u32 s3, s3, {ST1}
          s_cmp_eq_u32 s{sCB}, 0
          s_cselect_b32 s3, s3, {OOB}
          v_lshlrev_b32 v8, 3, v1
          v_and_b32 v8, 0xff, v8
          v_mov_b32 v11, v{R}
          buffer_store_dwordx2 v[10:11], v8, {s(WD,4)}, s3 offen{SC}""")
    a(f"""v_lshrrev_b32 v8, 5, v1
          v_add_u32 v8, -1, v8
          s_cmp_eq_u32 s{sTY}, 3
          s_cbranch_scc1 P1_h
          s_cmp_eq_u32 s{sTY}, 0
          s_cselect_b32 s3, {fb(QSCALE)}, 1.0
          v_mul_f32 v10, s3, v{R}
          v_mul_u32_u24 v12, 12, v1
          s_lshl_b32 s3, s{sSUB}, 8
          s_add_u32 s3, s3, s{sT}
          s_movk_i32 s27, 3584
          s_cmp_eq_u32 s{sTY}, 0
          s_cselect_b32 s27, 1792, s27
          s_mul_i32 s3, s3, s27
          s_lshl_b32 s26, s27, 6
          s_cselect_b32 s27, {QF}, {KVF}
          s_add_u32 s3, s3, s27
          s_cmp_eq_u32 s{sTY}, 2
          s_cbranch_scc1 P1_v""".replace("s_lshl_b32 s26, s27, 6", f"s_lshl_b32 s26, s27, 6\ns_mov_b32 s27, {KVF}\ns_cmp_eq_u32 s{sTY}, 0").replace(f"s_cselect_b32 s27, {QF}, {KVF}", f"s_cselect_b32 s27, {QF}, s27"))
    def pack(t):
        for i in range(8): a(f"v_pk_mul_f32 {v(ACC+16*t+2*i,2)}, {v(ACC+16*t+2*i,2)}, v[10:11] op_sel_hi:[1,0]")
        for i in range(8): a(f"v_cvt_pk_bf16_f32 v{XR+8*t+i}, v{ACC+16*t+2*i}, v{ACC+16*t+2*i+1}")
    def put(t, isv=False):
        if isv:
            for f_ in range(2): a(f"buffer_store_dwordx4 {v(XR+8*t+4*f_,4)}, v13, {s(WD,4)}, s3 offen offset:{1792 + f_*896}{SC}")
        else:
            a(f"buffer_store_dwordx4 {v(XR+8*t,4)}, v0, {s(WD,4)}, s3 offen{SC}")
            a(f"v_permlane32_swap_b32 v{XR+8*t+6}, v{XR+8*t+7}")
            a(f"buffer_store_dwordx3 {v(XR+8*t+4,3)}, v12, {s(WD,4)}, s3 offen offset:1024{SC}")
        if t < 3: a("s_add_u32 s3, s3, s26")
    for t in range(4): pack(t); put(t)
    a("s_branch P1_done")
    a.label("P1_v")
    a(f"""s_mul_i32 s27, s{sW}, 9216
          s_add_u32 s27, s27, 0x10000
          v_and_b32 v9, 31, v1
          v_mul_u32_u24 v9, 72, v9
          v_lshrrev_b32 v14, 5, v1
          v_lshl_add_u32 v9, v14, 3, v9
          v_add_u32 v9, s27, v9
          v_bfe_u32 v15, v1, 2, 2
          v_lshl_add_u32 v14, v14, 2, v15
          v_mul_u32_u24 v14, 72, v14
          v_bfe_u32 v15, v1, 4, 1
          v_lshl_add_u32 v14, v15, 5, v14
          v_and_b32 v15, 3, v1
          v_lshl_add_u32 v14, v15, 3, v14
          v_add_u32 v14, s27, v14
          v_lshrrev_b32 v15, 5, v1
          v_lshlrev_b32 v15, 6, v15
          v_sub_u32 v13, v0, v15
          v_and_b32 v15, 31, v1
          v_cmp_gt_u32 vcc, 28, v15
          v_mov_b32 v15, {OOB}
          v_cndmask_b32 v13, v15, v13, vcc""")
    for t in range(5):
        if t < 4:
            pack(t)
            for j in range(4): a(f"ds_write_b64 v9, {v(XR+8*t+2*j,2)} offset:{t*2304 + 16*j}")
        if t:
            a(f"s_waitcnt lgkmcnt({4 if t < 4 else 0})")
            put(t - 1, True)
        if t < 4:
            a("s_waitcnt lgkmcnt(0)")
            for f_ in range(2):
                for e in range(2): a(f"ds_read_b64_tr_b16 {v(XR+8*t+4*f_+2*e,2)}, v14 offset:{t*2304 + (16*f_+8*e)*72}")
    a("s_branch P1_done")
    a.label("P1_h")
    gelu_consts(a, R, DEN)
    a(f"""s_mul_i32 s3, s{sT}, 28
          s_mul_i32 s27, s{sSUB}, 7
          s_add_u32 s3, s3, s27
          s_lshl_b32 s3, s3, 10
          s_add_u32 s3, s3, {HF}
          s_add_u32 s27, s3, 4096""")
    for f in range(7):
        gelu_pairs(a, [ACC + 8*f + 2*i for i in range(4)], 10, 12, 14, WF)
        for i in range(4): a(f"v_cvt_pk_bf16_f32 v{XR+4*f+i}, v{ACC+8*f+2*i}, v{ACC+8*f+2*i+1}")
        a(f"buffer_store_dwordx4 {v(XR+4*f,4)}, v0, {s(WD,4)}, s{3 if f < 4 else 27} offen offset:{(f&3)*1024}{SC}")
    a.label("P1_done")
    garrive(a, C_X, 1)
    stamp(a, 15)
    a(f"""s_waitcnt vmcnt(0)
          s_lshl_b32 s3, s{sCB}, 4
          s_add_u32 s3, s3, s{sRB}
          s_lshl_b32 s3, s3, 7
          s_add_u32 s3, s3, {FP}""")
    signal(a, 3, C_S1, last=7)
    stamp(a, 5)

O_, Q_, S_, E_, P_, KV = 16, 80, 112, 144, 152, 160
sH, sQB, sKV, sN, sMA, sKB = 44, 45, 50, 51, 47, 52
AR_BASE = 112 * 1024

def unit(a, n, q, extra, qk=True):
    Sc, Sn = S_ + 16*(q & 1), S_ + 16*((q+1) & 1)
    nn, nq = (n, q+1) if q < 3 else ((n+1) & 3, 0)
    pn, pq = (n, q-1) if q > 0 else ((n-1) & 3, 3)
    K, Vc, Vp = KV + 16*nn, KV + 16*n + 8, KV + 16*pn + 8
    e = lambda i: a(f"v_exp_f32 v{E_+(i&7)}, v{Sc+i}")
    c = lambda k: a(f"v_cvt_pk_bf16_f32 v{P_+k}, v{E_+((2*k)&7)}, v{E_+((2*k+1)&7)}")
    for x in extra.get(0, []): a(x)
    if qk: a(f"{MF} {v(Sn,16)}, {v(K,4)}, {v(Q_+8*nq,4)}, 0")
    e(0); c(6); e(1); c(7); e(2); e(3)
    a(f"{MF} {v(O_+16*pq,16)}, {v(Vp+4,4)}, {v(P_+4,4)}, {v(O_+16*pq,16)}")
    for x in extra.get(1, []): a(x)
    e(4); c(0); e(5); c(1); e(6); e(7)
    if qk: a(f"{MF} {v(Sn,16)}, {v(K+4,4)}, {v(Q_+8*nq+4,4)}, {v(Sn,16)}")
    for x in extra.get(2, []): a(x)
    e(8); c(2); e(9); c(3); e(10); e(11)
    a(f"{MF} {v(O_+16*q,16)}, {v(Vc,4)}, {v(P_,4)}, {v(O_+16*q,16)}")
    e(12); c(4); e(13); c(5); e(14); e(15)

sKE, sVM, VV = 53, 54, 224
def kvload(slot, f):
    r = KV + 16*slot + 4*f
    if f == 0: return f"buffer_load_dwordx4 {v(r,4)}, v0, {s(WD,4)}, s{sKV} offen{SC}"
    if f == 1: return f"buffer_load_dwordx3 {v(r,3)}, v4, {s(WD,4)}, s{sKV} offen offset:1024{SC}"
    L = f"buffer_load_dwordx4 {v(r,4)}, v{VV}, {s(WD,4)}, s{sKV} offen offset:{1792 + 896*(f - 2)}{SC}"
    return f"s_mov_b64 exec, {s(sVM,2)}\n" + L if f == 2 else L + "\ns_mov_b64 exec, -1"
def kvnext():
    return [f"s_add_u32 s{sKV}, s{sKV}, 3584", f"s_cmp_eq_u32 s{sKV}, s{sKE}", f"s_cselect_b32 s{sKV}, s{sKB}, s{sKV}"]

EARLY = opt("early", 1)
def att(a):
    if p1stamps():
        global stamp
        stamp = lambda *x: None
    a(f"""s_and_b32 s26, s2, 7
          s_lshr_b32 s27, s2, 3
          s_lshl_b32 s{sH}, s26, 1
          s_and_b32 s3, s27, 1
          s_add_u32 s{sH}, s{sH}, s3
          s_lshr_b32 s{sQB}, s27, 1
          s_mul_i32 s{sMA}, s{sW}, 11136
          s_add_u32 s{sMA}, s{sMA}, {AR_BASE}
          s_lshl_b32 s{sKB}, s{sH}, 2
          s_add_u32 s{sKB}, s{sKB}, s{sW}
          s_mul_i32 s{sKB}, s{sKB}, {16*3584}
          s_add_u32 s{sKB}, s{sKB}, {KVF}
          s_add_u32 s{sKE}, s{sKB}, {16*3584}
          s_and_b32 s27, s{sQB}, {3 if EARLY else 15}
          s_mul_i32 s3, s27, {4*3584 if EARLY else 3584}
          s_add_u32 s{sKV}, s{sKB}, s3
          s_mov_b32 s{sVM}, 0x0fffffff
          s_mov_b32 s{sVM+1}, 0x0fffffff
          v_mul_u32_u24 v4, 12, v1
          v_lshrrev_b32 v11, 5, v1
          v_lshlrev_b32 v12, 6, v11
          v_sub_u32 v{VV}, v0, v12
          v_lshlrev_b32 v11, 4, v11
          v_mov_b32 v12, 0x3f803f80
          v_lshrrev_b32 v13, v11, v12
          v_and_b32 v11, 31, v1
          v_cmp_eq_u32 vcc, 28, v11
          v_cndmask_b32 v12, 0, v12, vcc
          s_lshr_b32 s3, s{sH}, 2
          s_lshl_b32 s3, s3, 4
          v_and_b32 v10, 3, v1
          s_lshl_b32 s26, s{sW}, 2
          s_add_u32 s26, s26, s3
          s_add_u32 s26, s26, 64
          v_add_u32 v10, s26, v10
          v_bfe_u32 v11, v1, 2, 1
          v_lshl_add_u32 v10, v11, 6, v10
          s_add_u32 s3, s3, s{sQB}
          v_writelane_b32 v10, s3, 8             ; lane 8: Q
          v_lshlrev_b32 v10, 7, v10
          v_add_u32 v10, {FP}, v10""")
    for i in range(64): a(f"v_mov_b32 v{O_+i}, 0")
    for i in range(8): a(f"v_mov_b32 v{E_+i}, 0\nv_mov_b32 v{P_+i}, 0")
    for n in range(4):
        a(f"v_mov_b32 v{KV+16*n+7}, v13\nv_mov_b32 v{Q_+8*n+7}, 0")
        for i in range(8): a(f"v_mov_b32 v{KV+16*n+8+i}, v12")
    if EARLY:
        a(f"""v_and_b32 v11, 7, v1
              v_lshlrev_b32 v11, 2, v11
              ds_bpermute_b32 v2, v11, v10
              s_lshl_b32 s27, s27, 2
              v_mov_b32 v11, s27
              v_writelane_b32 v11, 32, 2
              s_add_u32 s27, s27, 16
              v_writelane_b32 v11, s27, 1
              ds_bpermute_b32 v10, v11, v10
              s_waitcnt lgkmcnt(0)""")
        if opt("ayield", 1) == 2: gwait(a, C_X, 4, field=0)
        poll(a, 10, 3, SLEEP=opt("sl1", 6))
    else: poll(a, 10, 9)
    if opt("ayield", 1) == 1: gwait(a, C_X, 4, field=0)
    stamp(a, 8)
    for j in range(4):
        a(f"""s_add_u32 s3, s{sW}, {j + 1}
              s_and_b32 s3, s3, 3
              s_lshl_b32 s26, s{sH}, 4
              s_add_u32 s26, s26, s{sQB}
              s_lshl_b32 s26, s26, 2
              s_add_u32 s3, s3, s26
              s_mul_i32 s3, s3, 1792
              s_add_u32 s3, s3, {QF}
              buffer_load_dwordx4 {v(Q_+8*j,4)}, v0, {s(WD,4)}, s3 offen{SC}
              buffer_load_dwordx3 {v(Q_+8*j+4,3)}, v4, {s(WD,4)}, s3 offen offset:1024{SC}""")
        if j == 0:
            for f in range(4): a(kvload(0, f))
            for x in kvnext(): a(x)
    for n in range(1, 3):
        for f in range(4): a(kvload(n, f))
        for x in kvnext(): a(x)
    a(f"""v_add_u32 v10, s{sMA}, v0
          v_lshlrev_b32 v14, 2, v1
          v_add_u32 v14, {3584 - 128}, v14
          v_add_u32 v15, s{sMA}, v14
          v_mov_b32 v8, {CNT + C_B}
          s_lshl_b32 s26, s{sQB}, 2
          s_add_u32 s26, s26, s{sW}
          s_lshl_b32 s26, s26, 4
          s_add_u32 s26, s26, s{sH}
          s_lshl_b32 s62, s26, 11
          s_add_u32 s62, s62, {OF}
          s_lshl_b32 s63, s{sQB}, 4
          s_add_u32 s63, s63, s{sH}
          s_lshl_b32 s63, s63, 7
          s_add_u32 s63, s63, {FA}""")
    for j in range(3):
        a(f"""s_sub_u32 s26, s{sW}, {j + 1}
              s_and_b32 s26, s26, 3
              s_mul_i32 s26, s26, 11136
              s_add_u32 s26, s26, {AR_BASE}
              v_add_u32 v{11+j}, s26, v0
              v_add_u32 v{5+j}, s26, v14""")
    a(f"s_mov_b32 s{sN}, 4\ns_waitcnt vmcnt(14)")
    a(f"{MF} {v(S_,16)}, {v(KV,4)}, {v(Q_,4)}, 0")
    a(f"{MF} {v(S_,16)}, {v(KV+4,4)}, {v(Q_+4,4)}, {v(S_,16)}")
    a(f"s_setprio {opt('pa2', 0)}\ns_waitcnt vmcnt(8)")
    stamp(a, 9)
    a("s_nop 9")
    a(".p2align 3")
    a.label("AT_loop")
    for n in range(4):
        ld = (n + 3) & 3
        kvl = kvload if not opt("nokv", 0) else (lambda a_, b_: "s_nop 0")
        if opt("kvprio", 1):
            e0 = {1: ["s_setprio 3", kvl(ld, 0), kvl(ld, 1)], 2: [kvl(ld, 2), kvl(ld, 3), f"s_setprio {opt('pa2', 0)}"]}
            if opt("kvprio", 1) == 2: e0 = {1: [kvl(ld, 0), kvl(ld, 1)], 2: [kvl(ld, 2), kvl(ld, 3)]}
            if EARLY and n == 0: e0[1].insert(1 if opt("kvprio", 1) == 1 else 0, f"buffer_load_dword v3, v2, {s(WD,4)}, 0 offen sc1")
            if EARLY and n == 1:
                e0[0] = ["s_waitcnt vmcnt(4)", "v_cmp_eq_u32 vcc, 0, v3"]
                e0[1] = ["s_cbranch_vccnz AT_late", "AT_ok:"] + e0[1]
            unit(a, n, 0, e0)
            e1 = {1: kvnext() if n == 0 or not EARLY else kvnext()[:1]}
            if n == 0: e1[2] = [f"s_cmp_eq_u32 s{sN}, 1", f"s_cselect_b32 s{sKV}, {OOB}, s{sKV}"]
            if n == 3: e1[0] = ["ds_read_b32 v9, v8"]; e1[2] = [f"s_cmp_eq_u32 s{sN}, 1"]
            unit(a, n, 1, e1)
            if n == 3: a("s_cbranch_scc1 AT_tail")
            unit(a, n, 2, {})
            ex = {0: ["s_waitcnt vmcnt(8)"], 2: []}
        else:
            unit(a, n, 0, {2: [kvl(ld, 0)]})
            unit(a, n, 1, {1: [kvl(ld, 1)]})
            unit(a, n, 2, {1: [kvl(ld, 2)]})
            ex = {0: ["s_waitcnt vmcnt(7)"], 1: [kvl(ld, 3)], 2: kvnext()}
        if n == 3: ex[2] += [f"s_sub_u32 s{sN}, s{sN}, 1"]
        unit(a, n, 3, ex)
    a("s_branch AT_loop")
    a.label("AT_tail")
    BL = 3712
    a(f"""s_setprio {opt('pa1', 2)}
          s_waitcnt lgkmcnt(0)
          v_readfirstlane_b32 s3, v9
          s_cmp_ge_u32 s3, 8
          s_cbranch_scc1 AT_free""")
    gwait(a, C_B, 8)
    a.label("AT_free")
    wr = lambda j, i: f"ds_write_b128 v10, {v(O_+16*j+4*i,4)} offset:{j*BL + i*1024}"
    unit(a, 3, 2, {0: [wr(0, 0)], 1: [wr(0, 1)], 2: [wr(0, 2)]})
    unit(a, 3, 3, {0: [wr(1, 0)], 1: [wr(1, 1)], 2: [wr(1, 2)]}, qk=False)
    a(f"v_cvt_pk_bf16_f32 v{P_+6}, v{E_+4}, v{E_+5}\nv_cvt_pk_bf16_f32 v{P_+7}, v{E_+6}, v{E_+7}")
    for i in range(3): a(wr(2, i))
    a(f"{MF} {v(O_+48,16)}, {v(KV+48+12,4)}, {v(P_+4,4)}, {v(O_+48,16)}")
    stamp(a, 10)
    a("s_mov_b64 exec, 0xffffffff")
    for j in range(3): a(wr(j, 3))
    a("s_not_b64 exec, exec")
    for j in range(3): a(f"ds_write_b32 v15, v{O_+16*j+12} offset:{j*BL}")
    a("s_mov_b64 exec, -1")
    gbar(a, C_A, 4)
    a("s_mov_b64 exec, 0xffffffff")
    for j in range(3): a(f"ds_read_b128 {v(O_+16*j+12,4)}, v{11+j} offset:{j*BL + 3072}")
    a("s_not_b64 exec, exec")
    for j in range(3): a(f"ds_read_b32 v{O_+16*j+12}, v{5+j} offset:{j*BL}")
    a("s_mov_b64 exec, -1")
    for j in range(3):
        for i in range(3): a(f"ds_read_b128 {v(O_+16*j+4*i,4)}, v{11+j} offset:{j*BL + i*1024}")
    OT_, QT_ = O_ + 48, Q_ + 24
    for j in range(3):
        a(f"s_waitcnt lgkmcnt({3*(2-j)})")
        for i in range(16): a(f"v_add_f32 v{OT_+i}, v{OT_+i}, v{O_+16*j+i}")
    a(f"""v_mov_b32 v10, v{OT_+12}
          v_mov_b32 v11, v{OT_+12}
          v_permlane32_swap_b32 v11, v10
          v_mov_b32 v12, v10
          v_mov_b32 v13, 0""")
    for i in range(16): a(f"v_fma_f32 v{12+(i&1)}, v{OT_+i}, 0, v{12+(i&1)}")
    a(f"""v_add_f32 v12, v12, v13                ; row sum, or NaN if any accumulator is not finite
          v_cmp_le_f32 vcc, {fb(2.0**-80)}, v12
          v_cmp_ge_f32 s[26:27], s59, v12
          s_and_b64 vcc, vcc, s[26:27]
          s_cmp_eq_u64 vcc, -1
          s_cbranch_scc0 AT_slow""".replace("s59", "s59"))
    a.label("AT_norm")
    a(f"""v_rcp_f32 v10, v10
          v_lshrrev_b32 v8, 5, v1
          v_add_u32 v8, -1, v8""")
    for i in range(16): a(f"v_mul_f32 v{OT_+i}, v{OT_+i}, v10")
    for i in range(8): a(f"v_cvt_pk_bf16_f32 v{P_+i}, v{OT_+2*i}, v{OT_+2*i+1}")
    a(f"""v_and_b32 v{P_+6}, v8, v{P_+6}
          v_and_b32 v{P_+7}, v8, v{P_+7}
          buffer_store_dwordx4 {v(P_,4)}, v0, {s(WD,4)}, s62 offen{SC}
          buffer_store_dwordx4 {v(P_+4,4)}, v0, {s(WD,4)}, s62 offen offset:1024{SC}
          s_waitcnt vmcnt(0)""")
    signal(a, 63, 20)
    stamp(a, 11)
    stamp_out2(a)
    a("s_endpgm")
    if EARLY:
        a.label("AT_late")
        poll(a, 2, 8)
        a("s_branch AT_ok")
    a.label("AT_slow")
    a(f"""s_waitcnt vmcnt(0)
          s_mul_i32 s{sKB}, s{sH}, {64*3584}
          s_add_u32 s{sKB}, s{sKB}, {KVF}
          s_mov_b32 s{sKV}, s{sKB}
          s_mov_b32 s{sN}, 64
          v_mov_b32 v12, 0xff800000""")
    a.label("AT_s1")
    a(kvload(0, 0)); a(kvload(0, 1))
    a(f"""s_add_u32 s{sKV}, s{sKV}, 3584
          s_waitcnt vmcnt(0)
          {MF} {v(S_,16)}, {v(KV,4)}, {v(QT_,4)}, 0
          {MF} {v(S_,16)}, {v(KV+4,4)}, {v(QT_+4,4)}, {v(S_,16)}""")
    for i in range(8): a(f"v_max3_f32 v12, v12, v{S_+2*i}, v{S_+2*i+1}")
    a(f"""s_sub_u32 s{sN}, s{sN}, 1
          s_cmp_lg_u32 s{sN}, 0
          s_cbranch_scc1 AT_s1
          v_mov_b32 v13, v12
          v_permlane32_swap_b32 v12, v13
          v_max_f32 v12, v12, v13
          v_cvt_pk_bf16_f32 v13, -v12, -v12
          v_and_b32 v13, 0xffff0000, v13
          v_sub_f32 v12, -v12, v13
          v_cvt_pk_bf16_f32 v14, v12, v12
          v_and_b32 v14, 0xffff0000, v14
          v_sub_f32 v12, v12, v14
          v_cvt_pk_bf16_f32 v13, v13, v14
          v_cvt_pk_bf16_f32 v14, v12, 0
          v_lshrrev_b32 v8, 5, v1
          v_add_u32 v8, -1, v8
          v_bfi_b32 v{QT_+7}, v8, v13, v14
          s_mov_b32 s{sKV}, s{sKB}
          s_mov_b32 s{sN}, 64""")
    for i in range(16): a(f"v_mov_b32 v{OT_+i}, 0")
    a.label("AT_s2")
    for f in range(4): a(kvload(0, f))
    a(f"""s_add_u32 s{sKV}, s{sKV}, 3584
          s_waitcnt vmcnt(0)
          {MF} {v(S_,16)}, {v(KV,4)}, {v(QT_,4)}, 0
          {MF} {v(S_,16)}, {v(KV+4,4)}, {v(QT_+4,4)}, {v(S_,16)}""")
    for i in range(16): a(f"v_exp_f32 v{S_+i}, v{S_+i}")
    for i in range(8): a(f"v_cvt_pk_bf16_f32 v{P_+i}, v{S_+2*i}, v{S_+2*i+1}")
    a(f"""{MF} {v(OT_,16)}, {v(KV+8,4)}, {v(P_,4)}, {v(OT_,16)}
          {MF} {v(OT_,16)}, {v(KV+12,4)}, {v(P_+4,4)}, {v(OT_,16)}
          s_sub_u32 s{sN}, s{sN}, 1
          s_cmp_lg_u32 s{sN}, 0
          s_cbranch_scc1 AT_s2
          v_mov_b32 v10, v{OT_+12}
          v_mov_b32 v11, v{OT_+12}
          v_permlane32_swap_b32 v11, v10
          s_branch AT_norm""")

B_G3_DONE = 24
G2_BASE = 0
H1 = 56 * 1024
W3B = 60 * 1024
XCH3 = CNT + 1024
RES = 224

def p1b(a):
    bst = (lambda i: common.stamp(a, i)) if p1stamps() else (lambda i: None)
    sRB, sCB, sT = 44, 45, 48
    sROW, sWO, sK, sCOL = 49, 50, 51, 52
    WB = 0x1C000
    XT = 232
    def codepf():
        nseg = opt("nseg", 5)
        a(f"""s_lshr_b32 s57, s2, 3
              s_cmp_ge_u32 s57, {nseg}
              s_cbranch_scc1 PB_nopf
              s_cmp_lg_u32 s{sW}, 0
              s_cbranch_scc1 PB_nopf
              s_getpc_b64 s[62:63]""")
        a.label("PB_pc")
        a(f"""s_lshl_b32 s57, s57, 13
              s_sub_u32 s62, s62, PB_pc-K_start
              s_subb_u32 s63, s63, 0
              s_add_u32 s62, s62, s57
              s_addc_u32 s63, s63, 0
              v_lshlrev_b32 v8, 7, v1
              v_add_u32 v9, s57, v8
              v_cmp_gt_u32 vcc, K_last-K_start, v9
              v_mov_b32 v11, s63
              v_add_co_u32 v10, s[98:99], s62, v8
              v_addc_co_u32 v11, s[98:99], 0, v11, s[98:99]
              s_and_saveexec_b64 s[98:99], vcc
              s_cbranch_execz PB_pfx
              global_load_dword v16, v[10:11], off""")
        a.label("PB_pfx")
        a("s_mov_b64 exec, -1")
        a.label("PB_nopf")
    if opt("codepf", 1) == 1: codepf()
    a(f"""s_and_b32 s26, s2, 1
          s_lshl_b32 s26, s26, 3
          s_lshr_b32 s3, s2, 5
          s_add_u32 s26, s26, s3
          s_bfe_u32 s{sK}, s2, 0x20003
          s_lshl_b32 s54, s{sK}, 1
          s_add_u32 s54, s54, s3
          s_mul_i32 s3, s54, 37
          s_lshr_b32 s3, s3, 8
          s_mul_i32 s3, s3, 7
          s_sub_u32 s54, s54, s3
          s_mul_i32 s54, s54, {opt("rotw", 1)}
          s_bfe_u32 s3, s2, 0x20001
          s_lshl_b32 s3, s3, 2
          s_add_u32 s3, s3, s{sK}
          s_lshl_b32 s3, s3, 2
          s_add_u32 s3, s3, s{sW}
          s_lshl_b32 s56, s3, 5
          s_and_b32 s27, s26, 3
          s_lshr_b32 s3, s27, 1
          s_add_u32 s3, s3, 1
          s_sub_u32 s57, 0, s3
          s_bitcmp1_b32 s27, 0
          s_cselect_b32 s3, s3, s57
          s_movk_i32 s{sROW}, 2688
          s_cmp_ge_u32 s26, 12
          s_cselect_b32 s3, s3, 0
          s_cselect_b32 s{sROW}, 896, s{sROW}
          s_cselect_b32 s27, s27, s26
          s_add_u32 s56, s56, s3
          s_mul_i32 s{sCOL}, s27, 224
          v_lshrrev_b32 v8, 3, v1
          v_add_u32 v8, s56, v8
          s_movk_i32 s3, 896
          v_mul_i32_i24 v8, s3, v8
          v_bfe_u32 v9, v1, 4, 2
          v_and_b32 v10, 7, v1
          v_xor_b32 v9, v9, v10
          v_lshl_add_u32 v2, v9, 4, v8
          v_xor_b32 v9, 4, v9
          v_lshl_add_u32 v3, v9, 4, v8
          v_add_u32 v3, {8*896}, v3
          v_add_u32 v4, {16*896}, v2
          v_add_u32 v5, {16*896}, v3
          v_lshrrev_b32 v8, 4, v1
          v_lshlrev_b32 v9, 2, v8
          v_sub_u32 v9, v1, v9
          v_and_b32 v9, 15, v9
          v_mul_u32_u24 v8, s{sROW}, v8
          v_lshl_add_u32 v7, v9, 4, v8
          v_cmp_gt_u32 s[96:97], 14, v9
          s_lshl_b32 s{sK}, s54, 6
          s_lshl_b32 s54, s54, 7
          s_lshl_b32 s3, s{sW}, 4
          s_mul_i32 s3, s3, s{sROW}
          s_add_u32 s{sCOL}, s{sCOL}, s3
          s_lshl_b32 s53, s{sROW}, 2
          s_lshl_b32 s55, s{sW}, 12
          s_waitcnt lgkmcnt(0)""")
    srd(a, XS, 4, 2048 * 896)
    q = []
    gap = []
    def ride(n):
        for x in gap[:n]: a(x)
        del gap[:n]
    def xchunk(c):
        for g in range(4):
            a(f"s_add_u32 m0, s55, {XB + (c % 3)*16384 + g*1024}")
            a(f"s_nop 0\nbuffer_load_dwordx4 v{2+g}, {s(XS,4)}, s54 offen lds")
            ride(9)
        wrapinc(a, 54, 128, 896)
        q.extend([c] * 4)
    def wchunk(c):
        a(f"""s_mul_i32 s{sWO}, s{sK}, s{sROW}
              s_add_u32 s{sWO}, s{sWO}, s{sCOL}""")
        wrapinc(a, sK, 64, 448)
        a("s_mov_b64 exec, s[96:97]")
        for u in range(4):
            a(f"s_add_u32 m0, s55, {c*16384 + u*1024}")
            if u: a(f"s_add_u32 s{sWO}, s{sWO}, s53")
            a(f"buffer_load_dwordx4 v7, {s(WA,4)}, s{sWO} offen lds")
        a("s_mov_b64 exec, -1")
        q.extend([c] * 4)
    bst(11)
    xchunk(0)
    a(f"""s_cmp_ge_u32 s26, 12
          s_cselect_b32 s{WA}, s12, s6
          s_cselect_b32 s{WA+1}, s13, s7
          s_mul_i32 s{WA+2}, s{sROW}, 448
          s_mov_b32 s{WA+3}, 0x20000""")
    wchunk(0)
    srd(a, WD, 24, WS_END)
    a(f"""s_lshl_b32 s61, s{sW}, 8
          s_or_b32 s61, s61, s2
          v_mov_b32 v22, 0
          s_cmp_ge_u32 s61, {NINIT}
          s_cbranch_scc1 PB_noinit
          v_lshlrev_b32 v13, 7, v1
          s_lshl_b32 s3, s2, 13
          s_add_u32 s3, s3, {FLG}
          buffer_store_dword v22, v13, {s(WD,4)}, s3 offen{SC}""")
    a.label("PB_noinit")
    if opt("codepf", 1) == 2: codepf()
    if opt("tlb", 0):
        a(f"""v_lshlrev_b32 v23, {opt("tlb", 0)}, v1
              v_add_u32 v23, {0x1fff80 if opt("tlb", 0) == 21 else 0xff80}, v23
              s_lshl_b32 s3, s{sW}, {opt("tlb", 0) + 6}
              buffer_load_dword v24, v23, {s(WD,4)}, s3 offen sc1""")
        q.append(1)
    a(f"""v_lshrrev_b32 v8, 1, v1
          v_and_b32 v9, 15, v8
          v_lshrrev_b32 v10, 4, v8
          v_lshlrev_b32 v10, 14, v10
          v_lshl_add_u32 v10, v9, 8, v10
          v_and_b32 v9, 3, v8
          v_lshlrev_b32 v9, 2, v9
          v_and_b32 v8, 1, v1
          v_add3_u32 v9, v9, v8, 14
          v_and_b32 v9, 15, v9
          v_lshl_add_u32 v10, v9, 4, v10
          v_add_u32 v10, s55, v10
          v_add_u32 v11, 0x10000, v10
          v_mov_b32 v12, 0x3f803f80
          v_mov_b32 v13, v12
          v_mov_b32 v14, v12
          v_mov_b32 v15, v12
          ds_write_b128 v10, v[12:15]
          ds_write_b128 v10, v[12:15] offset:32768
          ds_write_b128 v11, v[12:15]
          s_mov_b64 exec, 0xffffffff
          ds_write_b128 v11, v[12:15] offset:32768
          s_mov_b64 exec, -1""")
    srd(a, WD, 24, WS_END)
    srd(a, WB_, 22, 256)
    xchunk(1)
    if opt("w1e", 1): wchunk(1)
    CSB = opt("csb", 0)
    if CSB:
        a("s_cmp_ge_u32 s26, 12\ns_cselect_b32 s57, 8, 7")
        tr_addrs(a, 21, "s57", 0, perm=False, which=(4,))
        a("v_mov_b32 v26, 0\nv_mov_b32 v27, 0")
    small_setup(a, sRB, sCB, sT)
    tail = A()
    tail(f"""s_lshr_b32 s{sFT}, s{sW}, 1
          s_xor_b32 s{sFT}, s{sFT}, s2
          s_and_b32 s{sFT}, s{sFT}, 1
          v_lshrrev_b32 v8, 2, v1
          v_mul_u32_u24 v8, 896, v8
          v_bfe_u32 v9, v1, 4, 2
          v_and_b32 v10, 3, v1
          v_xor_b32 v9, v9, v10
          v_lshl_add_u32 v8, v9, 4, v8
          s_mul_i32 s3, s{sT}, {32*896}
          s_lshl_b32 s26, s{sCB}, 7
          s_add_u32 s3, s3, s26
          s_lshl_b32 s26, s{sFT}, 6
          s_add_u32 s3, s3, s26
          s_add_u32 s26, s3, {16*896}
          buffer_load_dwordx4 {v(XT,4)}, v8, {s(XS,4)}, s3 offen
          buffer_load_dwordx4 {v(XT+4,4)}, v8, {s(XS,4)}, s26 offen""")
    t2, t3, t4 = A(), A(), A()
    srd(t2, WB_, 14, 448*896)
    t2(f"""v_lshlrev_b32 v8, 7, v1
           s_lshr_b32 s57, s2, 3
           s_lshl_b32 s57, s57, 2
           s_add_u32 s57, s57, s{sW}
           s_mul_i32 s3, s57, {25*128}
           s_bfm_b64 exec, 25, 0
           buffer_load_dword v16, v8, {s(WB_,4)}, s3 offen{TF}
           s_mov_b64 exec, -1""")
    srd(t3, WB_, 16, 448*3584)
    t3(f"""s_lshr_b32 s57, s2, 3
           s_lshl_b32 s57, s57, 2
           s_add_u32 s57, s57, s{sW}
           s_mul_i32 s3, s57, 49
           v_add_u32 v9, s3, v1
           v_mul_u32_u24 v10, 9363, v9
           v_lshrrev_b32 v10, 17, v10
           v_mul_u32_u24 v11, 14, v10
           v_sub_u32 v9, v9, v11
           v_mul_u32_u24 v10, 3584, v10
           v_lshl_add_u32 v9, v9, 7, v10
           s_and_b32 s3, s2, 1
           s_mul_i32 s3, s3, 1792
           s_bfm_b64 exec, 49, 0
           buffer_load_dword v17, v9, {s(WB_,4)}, s3 offen{TF}
           s_mov_b64 exec, -1""")
    srd(t4, WB_, 18, 448*3584)
    t4(f"""v_lshlrev_b32 v8, 7, v1
           s_lshl_b32 s57, s2, 2
           s_add_u32 s57, s57, s{sW}
           s_mul_i32 s3, s57, {13*128}
           s_bfm_b64 exec, 13, 0
           buffer_load_dword v18, v8, {s(WB_,4)}, s3 offen{TF}""")
    srd(t4, WB_, 8, 448*896)
    t4(f"""s_lshl_b32 s3, s57, 9
           s_mov_b64 exec, 15
           buffer_load_dword v19, v8, {s(WB_,4)}, s3 offen{TF}
           s_mov_b64 exec, -1""")
    if opt("tmode", 0) & 1:
        t3 = A(); srd(t3, WB_, 16, 448*3584)
        t3(f"""v_lshlrev_b32 v8, 7, v1
               s_lshl_b32 s57, s2, 2
               s_add_u32 s57, s57, s{sW}
               s_mul_i32 s3, s57, {13*128}
               s_bfm_b64 exec, 13, 0
               buffer_load_dword v17, v8, {s(WB_,4)}, s3 offen
               s_mov_b64 exec, -1""")
    if opt("tmode", 0) & 2:
        t2 = A(); srd(t2, WB_, 14, 448*896)
        t2(f"""v_lshlrev_b32 v8, 7, v1
               s_lshl_b32 s57, s2, 2
               s_add_u32 s57, s57, s{sW}
               s_lshl_b32 s3, s57, 9
               s_mov_b64 exec, 15
               buffer_load_dword v16, v8, {s(WB_,4)}, s3 offen
               s_mov_b64 exec, -1""")
    w2, w2b = A(), A()
    w2(f"s_lshl_b32 s47, s{sW}, 11")
    small_addrs(w2, "s47")
    srd(w2, WA, 14, 448 * 896)
    w2(f"""s_mul_i32 s3, s{sW}, {112*896}
           s_lshl_b32 s26, s{sCB}, 7
           s_add_u32 s3, s3, s26
           v_add_u32 v4, s3, v7
           v_add_u32 v5, {8*896}, v4
           s_mul_i32 s50, s{sCB}, {16*896*opt("rot", 1)}""")
    for j in range(7):
        g = w2 if j < 6 else w2b
        g(f"""s_add_u32 m0, s47, {j*8192}
              s_nop 0
              buffer_load_dwordx4 v4, {s(WA,4)}, s50 offen lds
              s_add_u32 m0, s47, {j*8192 + 1024}
              s_nop 0
              buffer_load_dwordx4 v5, {s(WA,4)}, s50 offen lds""")
        if j < 6: wrapinc(g, 50, 16*896, 112*896)
    c3a, c3b = A(), A()
    srd(c3a, WB_, 16, 448*3584)
    c3a(f"""s_mul_i32 s3, s2, 2341
            s_lshr_b32 s3, s3, 16
            s_mul_i32 s57, s3, 28
            s_sub_u32 s57, s2, s57                 ; line = id % 28
            s_lshl_b32 s3, s3, 2
            s_add_u32 s3, s3, s{sW}
            s_mul_i32 s63, s57, 28
            s_add_u32 s63, s63, s3
            s_lshl_b32 s63, s63, 8
            s_add_u32 s63, s63, {CS3P}
            s_cmp_lt_u32 s2, 196
            s_cselect_b32 s63, s63, {OOB}
            s_mul_i32 s3, s3, {16*3584}
            s_lshl_b32 s57, s57, 7
            s_add_u32 s3, s3, s57
            s_add_u32 s57, s3, {8*3584}
            v_lshrrev_b32 v8, 3, v1
            v_mul_u32_u24 v8, 3584, v8
            v_and_b32 v9, 7, v1
            v_lshl_add_u32 v8, v9, 4, v8
            buffer_load_dwordx4 v[32:35], v8, {s(WB_,4)}, s3 offen
            buffer_load_dwordx4 v[36:39], v8, {s(WB_,4)}, s57 offen""")
    unpack(c3b, 40, 32, 8)
    for i in range(8): c3b(f"v_add_f32 v{40+i}, v{40+i}, v{48+i}")
    for i in range(4): c3b(f"v_permlane32_swap_b32 v{40+i}, v{44+i}")
    for i in range(4): c3b(f"v_add_f32 v{40+i}, v{40+i}, v{44+i}")
    for i in range(2): c3b(f"v_permlane16_swap_b32 v{40+i}, v{42+i}")
    for i in range(2): c3b(f"v_add_f32 v{40+i}, v{40+i}, v{42+i}")
    c3b(f"""v_and_b32 v8, 7, v1
            v_lshrrev_b32 v9, 4, v1
            v_lshlrev_b32 v8, 5, v8
            v_lshl_add_u32 v8, v9, 3, v8
            v_add_f32_dpp v40, v40, v40 row_ror:8 row_mask:0xf bank_mask:0xf
            v_add_f32_dpp v41, v41, v41 row_ror:8 row_mask:0xf bank_mask:0xf
            buffer_store_dwordx2 v[40:41], v8, {s(WD,4)}, s63 offen{SC}""")
    extras = [(opt("tl", 4), tail, 2), (opt("c3a", 4), c3a, 2), (opt("tw2", 2), t2, 1), (opt("w2c", 8), w2, 12), (opt("tw3", 4), t3, 1), (opt("tw4", 4), t4, 2), (max(opt("w2d", 6), opt("w2c", 8)), w2b, 2)]
    bst(2)
    for c in range(7):
        last = max(i for i, x in enumerate(q) if x == c)
        a(f"s_waitcnt vmcnt({len(q) - 1 - last}) lgkmcnt(0)")
        bst((3, 12, 13, 4, 5, 14, 8)[c])
        a("s_barrier")
        jitter(a)
        if CSB:
            if c == 4: a("v_add_u32 v25, 0x10000, v25")
            for i in range(8): a(f"ds_read_b64_tr_b16 {v(56+2*i,2)}, v25 offset:{(c & 3)*16384 + (16*(i>>1) + 4*(i&1))*256}")
            gap.append("s_waitcnt lgkmcnt(0)")
            for i in range(16):
                lo = 28 + 2*(i & 1)
                gap += [f"v_lshlrev_b32 v{lo}, 16, v{56+i}", f"v_and_b32 v{lo+1}, 0xffff0000, v{56+i}",
                        f"v_add_f32 v26, v26, v{lo}", f"v_add_f32 v27, v27, v{lo+1}"]
        if c == 1:
            a(f"""s_cmp_ge_u32 s61, {NINIT}
                  s_cbranch_scc1 PB_noset
                  s_lshl_b32 s3, s2, 2
                  v_mov_b32 v9, 1
                  s_mov_b64 exec, 1
                  buffer_store_dword v9, v22, {s(WB_,4)}, s3 offen{SC}
                  s_mov_b64 exec, -1""")
            a.label("PB_noset")
        if c == 0 and not opt("w1e", 1): wchunk(1)
        if c + 2 < 7: xchunk(c + 2); wchunk(c + 2)
        if c == 3:
            srd(a, WB_, 22, 256)
            a(f"v_min_u32 v20, {NINIT - 1}, v1\nv_lshlrev_b32 v20, 2, v20\nbuffer_load_dword v21, v20, {s(WB_,4)}, 0 offen sc1"); q.append(5)
        if c == 5:
            a("v_cmp_eq_u32 vcc, 0, v21\ns_cbranch_vccz PB_clr")
            srd(a, WB_, 22, 256)
            poll(a, 20, NINIT, WB_)
            a.label("PB_clr")
        for when, code, nv in extras:
            if when == c:
                for x in code.l: a(x)
                q.extend(["c3" if code is c3a or code is tail else 99] * nv)
        ride(999)
    if CSB:
        a("v_add_f32 v26, v26, v27")
        half_sum(a, 26, 27)
        cs_publish(a, 26, 28, XCH)
    a(f"""v_mov_b32 v8, {CNT}
          v_mov_b32 v12, 0
          v_mov_b32 v13, 0
          v_mov_b32 v14, 0
          v_mov_b32 v15, 0
          ds_write_b128 v8, v[12:15]
          ds_write_b128 v8, v[12:15] offset:16
          ds_write_b128 v8, v[12:15] offset:32
          s_waitcnt lgkmcnt(0)
          s_barrier                              ; barrier 7""")
    for when, code, nv in extras:
        if when == 67:
            for x in code.l: a(x)
            q.extend([99] * nv)
    a(f"""s_waitcnt vmcnt({len(q) - 1 - max(i for i, x in enumerate(q) if x == "c3")})""")
    for x in c3b.l: a(x)
    g2_setup(a)
    a(f"""s_and_b32 s3, s2, 1
          s_lshl_b32 s3, s3, 3
          s_lshr_b32 s26, s2, 5
          s_add_u32 s3, s3, s26
          s_lshl_b32 s3, s3, 4
          s_lshr_b32 s26, s{sRB}, 1
          s_add_u32 s3, s3, s26
          s_lshl_b32 s3, s3, 7
          s_add_u32 s3, s3, {FP}
          s_waitcnt vmcnt(0)""")
    signal(a, 3, C_S1, last=7)
    for when, code, nv in extras:
        if when == 7:
            for x in code.l: a(x)
    bst(9)
    gwait(a, C_X, 4, field=1)
    if opt("w2s", 1): gwait(a, C_S1, 8)
    for when, code, nv in extras:
        if when == 8:
            for x in code.l: a(x)
    bst(10); bst(15)

def small_setup(a, sRB, sCB, sT):
    a(f"""s_bfe_u32 s26, s2, 0x20001
          s_lshl_b32 s26, s26, 2
          s_bfe_u32 s3, s2, 0x20003
          s_add_u32 s26, s26, s3
          s_lshl_b32 s{sRB}, s26, 1
          s_and_b32 s3, s2, 1
          s_add_u32 s{sRB}, s{sRB}, s3
          s_lshr_b32 s{sCB}, s2, 5
          s_and_b32 s3, s{sW}, 1
          s_lshl_b32 s{sT}, s{sRB}, 1
          s_add_u32 s{sT}, s{sT}, s3""")

def small_addrs(a, sM, natural=False):
    a(f"""v_lshrrev_b32 v8, 3, v1
          v_bfe_u32 v9, v1, 4, 1
          v_lshlrev_b32 v9, 2, v9
          v_and_b32 v10, 7, v1
          v_xor_b32 v9, v9, v10
          v_mul_u32_u24 v8, 896, v8
          v_lshl_add_u32 v7, v9, 4, v8
          v_lshrrev_b32 v8, 5, v1
          v_bfe_u32 v9, v1, 2, 2
          v_lshl_add_u32 v8, v8, 2, v9
          v_lshlrev_b32 v8, 7, v8
          v_bfe_u32 v10, v1, 4, 1
          v_bfe_u32 v11, v1, 1, 1
          v_lshl_add_u32 v10, v10, 1, v11
          v_bfe_u32 v11, v1, 3, 1
          v_lshl_add_u32 v10, v11, 2, v10
          v_lshl_add_u32 v8, v10, 4, v8
          v_and_b32 v11, 1, v1
          v_lshl_add_u32 v8, v11, 3, v8
          s_lshl_b32 s3, {"0" if natural else "s%d" % sFT}, 6
          v_xor_b32 v8, s3, v8
          v_add_u32 v2, {sM}, v8
          v_xor_b32 v8, 64, v8
          v_add_u32 v3, {sM}, v8""")

def wreads(a, WF, buf, off, va=2):
    for b in range(2):
        for e in range(2): a(f"ds_read_b64_tr_b16 {v(WF+8*buf+4*b+2*e,2)}, v{va+b} offset:{off + 8*e*128}")
def mfmas(a, ACC, WF, buf, act0, act1, first):
    for aa, ar in enumerate((act0, act1)):
        for b in range(2):
            j = 2*aa + b
            a(f"{MF} {v(ACC+16*j,16)}, {v(WF+8*buf+4*b,4)}, {v(ar,4)}, {'0' if first else v(ACC+16*j,16)}")

def g2_setup(a):
    EP = 176
    sRB, sCB, sT, sM, sK, sKA, sX = 44, 45, 48, 47, 50, 51, 53
    sRB3, sCB3, sT3, sK3, sL = 54, 55, 56, 57, 49
    ROT = opt("rot", 1)
    a(f"s_lshl_b32 s{sL}, s{sW}, 11")
    a(f"""s_add_u32 s3, s{sL}, {H1}
          v_add_u32 v10, s3, v0
          v_and_b32 v8, 31, v1
          v_lshlrev_b32 v8, 6, v8
          v_bfe_u32 v9, v1, 2, 2
          v_lshl_add_u32 v8, v9, 4, v8
          v_lshrrev_b32 v9, 5, v1
          v_lshl_add_u32 v8, v9, 3, v8
          v_add_u32 v12, s3, v8
          v_xor_b32 v13, 16, v12
          v_xor_b32 v14, 32, v12
          v_xor_b32 v15, 48, v12
          ds_write_b128 v10, v[232:235]
          ds_write_b128 v10, v[236:239] offset:1024
          s_waitcnt lgkmcnt(0)""")
    for j in range(4): a(f"ds_read_b64 {v(EP+2*j,2)}, v{12+j}")
    a(f"""s_and_b32 s26, s2, 7
          s_lshr_b32 s27, s2, 3
          s_lshr_b32 s{sRB3}, s26, 1
          s_lshl_b32 s{sRB3}, s{sRB3}, 2
          s_and_b32 s3, s27, 3
          s_add_u32 s{sRB3}, s{sRB3}, s3
          s_and_b32 s{sCB3}, s26, 1
          s_mul_i32 s{sCB3}, s{sCB3}, 7
          s_add_u32 s{sCB3}, s{sCB3}, s{sCB}
          s_lshl_b32 s{sT3}, s{sRB3}, 2
          s_add_u32 s{sT3}, s{sT3}, s{sW}
          v_lshrrev_b32 v8, 3, v1
          v_bfe_u32 v9, v1, 4, 1
          v_lshlrev_b32 v9, 2, v9
          v_and_b32 v6, 7, v1
          v_xor_b32 v9, v9, v6
          v_mul_u32_u24 v8, 3584, v8
          v_lshl_add_u32 v6, v9, 4, v8
          s_mul_i32 s3, s{sW}, {16*3584}
          s_lshl_b32 s26, s{sCB3}, 8
          s_add_u32 s3, s3, s26
          v_add_u32 v6, s3, v6                   ; W3 voffset
          s_mul_i32 s{sK3}, s{sCB}, {64*3584*ROT}""")
    srd(a, WB_, 16, 448 * 3584)
    a("s_waitcnt lgkmcnt(0)")
    a(f"""s_mul_i32 s3, s{sT}, 28
          s_mul_i32 s26, s{sFT}, 14
          s_add_u32 s3, s3, s26
          s_lshl_b32 s3, s3, 10
          s_add_u32 s3, s3, {HF}
          v_add_u32 v186, s3, v0
          v_add_u32 v187, 7168, v186
          s_mul_i32 s{sKA}, s{sCB}, {1024*ROT}
          s_mul_i32 s{sX}, s{sT}, 28
          s_lshl_b32 s3, s{sCB}, 2
          s_add_u32 s{sX}, s{sX}, s3
          s_lshl_b32 s3, s{sFT}, 1
          s_add_u32 s{sX}, s{sX}, s3
          s_lshl_b32 s{sX}, s{sX}, 10
          s_add_u32 s{sX}, s{sX}, {X1F}
          s_lshl_b32 s3, s{sFT}, 1
          s_add_u32 s3, s3, 12
          s_lshl_b32 s3, s3, 4
          s_lshr_b32 s26, s{sRB}, 1
          s_add_u32 s3, s3, s26
          s_lshl_b32 s3, s3, 7
          s_add_u32 s3, s3, {FP}
          v_lshl_add_u32 v188, v1, 11, s3
          s_lshl_b32 s3, s26, 7
          s_add_u32 s3, s3, {FP}
          v_mov_b32 v189, s3
          v_lshlrev_b32 v8, 3, v1
          v_and_b32 v15, 0xff, v8
          s_lshl_b32 s27, s{sT}, 8
          s_add_u32 s27, s27, {ST1}""")
    unpack(a, RES, EP, 8)
    pair_addrs(a, 190, 128 * 1024)
    a(f"""s_lshl_b32 s26, s{sCB}, 1
          s_add_u32 s26, s26, s{sFT}
          s_mul_i32 s62, s{sT}, 14
          s_add_u32 s62, s62, s26
          s_lshl_b32 s62, s62, 8
          s_add_u32 s62, s62, {ST3}
          s_lshl_b32 s63, s{sRB}, 3
          s_add_u32 s63, s63, s{sCB}
          s_lshl_b32 s63, s63, 7
          s_add_u32 s63, s63, {F2}""")

def roleb(a):
    ACC, WF, AR, EP = 16, 80, 112, 176
    sRB, sCB, sT, sM, sK, sKA, sX = 44, 45, 48, 47, 50, 51, 53
    sRB3, sCB3, sT3, sK3, sL = 54, 55, 56, 57, 49
    ROT = opt("rot", 1)
    a("s_cmp_ge_u32 s2, 224\ns_cbranch_scc0 B_go")
    a(f"""s_mov_b64 exec, 1
          v_mov_b32 v8, {CNT}
          v_mov_b32 v9, {B_G3_DONE // 4}
          ds_add_u32 v8, v9
          s_mov_b64 exec, -1""")
    garrive(a, C_X)
    if opt("idlepf", 1):
        if opt("idlepf", 1) == 2: gwait(a, C_S1, 8)
        else:
            a(f"""s_lshl_b32 s3, s{sRB}, 10
                  s_add_u32 s3, s3, {F2}
                  v_mov_b32 v10, s3""")
            poll(a, 10, 1)
        srd(a, WA, 18, 1792 * 896)
        srd(a, WB_, 8, 448 * 896)
        a(f"""s_lshr_b32 s3, s2, 3
              s_sub_u32 s3, s3, 28
              s_lshl_b32 s3, s3, 2
              s_add_u32 s3, s3, s{sW}
              s_lshl_b32 s26, s3, 13
              s_and_b32 s27, s2, 1
              s_mul_i32 s27, s27, {896*896}
              s_add_u32 s26, s26, s27
              v_lshlrev_b32 v8, 7, v1
              s_mov_b32 s27, 7""")
        a.label("B_pf")
        a(f"""buffer_load_dword v16, v8, {s(WA,4)}, s26 offen{TF}
              s_add_u32 s26, s26, {16*8192}
              s_waitcnt vmcnt(1)
              s_sub_u32 s27, s27, 1
              s_cmp_lg_u32 s27, 0
              s_cbranch_scc1 B_pf
              s_lshl_b32 s26, s3, 13""")
        for i in range(4): a(f"buffer_load_dword v16, v8, {s(WB_,4)}, s26 offen{TF}\ns_add_u32 s26, s26, {16*8192}")
    a("s_endpgm")
    a.label("B_go")
    a(f"s_setprio {opt('pb', 1)}")
    bs2 = (lambda i: common.stamp(a, i)) if opt("g2s", 0) and common.STAMPS else (lambda i: None)
    if opt("g2s", 0):
        global stamp
        keep = stamp
        stamp = lambda a_, i, *x: keep(a_, i, *x) if i in (2, 3) else None
    def w3chunk(c):
        hf, j = (1, c) if c < 7 else (0, c - 7)
        for u in range(2):
            a(f"s_add_u32 m0, s{sL}, {hf*H1 + j*8192 + u*1024}")
            a(f"s_add_u32 s3, s{sK3}, {u*8*3584 + 128*hf}")
            a(f"buffer_load_dwordx4 v6, {s(WB_,4)}, s3 offen lds")
        wrapinc(a, sK3, 64*3584, 448*3584)
    W3A = opt("w3a", 0); W3E = max(W3A, opt("w3e", 5)); assert W3E <= 7
    if W3A:
        gwait(a, C_S1, 8)
        for c in range(W3A): w3chunk(c)
    stamp(a, 2)
    a(f"""s_lshl_b32 s3, s{sFT}, 12
          s_sub_u32 s3, s3, s{sL}
          v_add_u32 v4, s3, v2
          v_add_u32 v5, s3, v3""")
    poll(a, 188, 2, SLEEP=opt("sl1", 6))
    garrive(a, C_W, 0)
    a(f"buffer_load_dword v12, v189, {s(WD,4)}, 0 offen sc1")
    stamp(a, 3)
    for j in range(7):
        a(f"buffer_load_dwordx4 {v(AR+8*j,4)}, v186, {s(WD,4)}, s{sKA} offen{SC}")
        a(f"buffer_load_dwordx4 {v(AR+8*j+4,4)}, v187, {s(WD,4)}, s{sKA} offen{SC}")
        if j < 6: wrapinc(a, sKA, 1024, 7168)
    a("s_waitcnt vmcnt(14)\nv_cmp_eq_u32 vcc, 0, v12\ns_cbranch_vccz B_st1")
    poll(a, 189, 1)
    a.label("B_st1")
    a(f"buffer_load_dwordx2 {v(EP+8,2)}, v15, {s(WD,4)}, s27 offen{SC}")
    garrive(a, C_X)
    a(f"s_setprio {opt('pg2', 1)}")
    gwait(a, C_W, 4, field=0)
    NW3 = 0
    w2o = lambda u: (u >> 1)*8192 + (u & 1)*2048
    for u in range(3): wreads(a, WF, u, w2o(u), 4)
    for u in range(14):
        a(f"s_waitcnt vmcnt({13 - u + 1}) lgkmcnt({4*min(2, 13 - u)})")
        for b in range(2): a(f"{MF} {v(ACC+16*b,16)}, {v(WF+8*(u&3)+4*b,4)}, {v(AR+4*u,4)}, {'0' if u == 0 else v(ACC+16*b,16)}")
        if u + 3 < 14: wreads(a, WF, (u+3) & 3, w2o(u+3), 4)
    U = AR
    a(f"s_setprio {opt('pb', 1)}")
    stamp(a, 12)
    def centre():
        a(f"s_waitcnt vmcnt({NW3})")
        for i in range(16): a(f"v_sub_f32 v{U+i}, v{RES+i}, v{EP+8}")
    reduce2(a, ACC, 190, 0, 4, pre=centre)
    stamp(a, 13)
    for i in range(16): a(f"v_fma_f32 v{U+i}, v{U+i}, v{EP+9}, v{ACC+i}")
    for i in range(8): a(f"v_cvt_pk_bf16_f32 v{EP+i}, v{U+2*i}, v{U+2*i+1}")
    a(f"buffer_store_dwordx4 {v(EP,4)}, v0, {s(WD,4)}, s{sX} offen{SC}")
    a(f"buffer_store_dwordx4 {v(EP+4,4)}, v0, {s(WD,4)}, s{sX} offen offset:1024{SC}")
    if not opt("g2u", 1): unpack(a, U, EP, 8)
    for i in range(16):
        a(f"v_add_f32 v{10+(i&1)}, v{U+i}, {'0' if i < 2 else 'v%d' % (10+(i&1))}")
        a(f"v_fma_f32 v{12+(i&1)}, v{U+i}, v{U+i}, {'0' if i < 2 else 'v%d' % (12+(i&1))}")
    a("v_add_f32 v10, v10, v11\nv_add_f32 v11, v12, v13")
    half_sum(a, 10, 8); half_sum(a, 11, 9)
    a(f"buffer_store_dwordx2 v[10:11], v15, {s(WD,4)}, s62 offen{SC}\ns_mov_b32 s{sX}, s63")
    garrive(a, 0)
    for i in range(16): a(f"v_add_f32 v{RES+i}, v{RES+i}, v{U+i}")
    lo = lambda: a("s_setprio 0") if opt("kvprio", 1) == 2 else None
    hi = lambda: a(f"s_setprio {opt('pb', 1)}") if opt("kvprio", 1) == 2 else None
    lo()
    for c in range(W3A, W3E): w3chunk(c)
    hi()
    a(f"s_waitcnt vmcnt({2*(W3E - W3A)})")
    signal(a, sX, 12)
    stamp(a, 4)
    gwait(a, 0, 8)
    lo()
    for c in range(W3E, 14): w3chunk(c)
    hi()
    ACC, WF, XR, TMP = 16, 80, 112, 240
    CSP, CS = TMP, ACC + 48
    a(f"""s_lshl_b32 s3, s{sFT}, 6
          s_sub_u32 s26, 0, s{sL}
          v_add_u32 v2, s26, v2
          v_xor_b32 v2, s3, v2
          v_xor_b32 v3, 64, v2
          v_add_u32 v4, {H1}, v2
          v_add_u32 v5, {H1}, v3""")
    a(f"""s_lshr_b32 s3, s{sT3}, 1
          s_lshl_b32 s3, s3, 10
          s_add_u32 s3, s3, {F2}
          v_lshl_add_u32 v11, v1, 7, s3
          s_lshl_b32 s26, s{sCB3}, 1
          s_lshr_b32 s3, s{sW}, 1
          s_add_u32 s26, s26, s3
          v_add_u32 v8, -7, v1
          v_mul_u32_u24 v8, 28, v8
          v_add_u32 v8, s26, v8
          v_and_b32 v9, 1, v8
          v_lshrrev_b32 v10, 5, v8
          v_lshl_add_u32 v9, v9, 3, v10
          v_bfe_u32 v10, v8, 1, 2
          v_lshl_add_u32 v9, v9, 2, v10
          v_bfe_u32 v10, v8, 3, 2
          v_lshl_add_u32 v9, v9, 2, v10
          v_lshlrev_b32 v9, 7, v9
          v_add_u32 v9, {FP}, v9
          v_cmp_gt_u32 vcc, 7, v1
          v_cndmask_b32 v11, v9, v11, vcc
          s_mul_i32 s{sK3}, s26, {28*256}
          s_and_b32 s3, s{sW}, 1
          s_lshl_b32 s3, s3, 7
          s_add_u32 s{sK3}, s{sK3}, s3
          s_add_u32 s{sK3}, s{sK3}, {CS3P}
          v_lshrrev_b32 v10, 5, v1
          v_mul_u32_u24 v10, {14*256}, v10
          v_and_b32 v9, 31, v1
          v_lshl_add_u32 v6, v9, 2, v10
          s_mul_i32 s3, s{sT3}, {28*1024}
          s_add_u32 s3, s3, {X1F}
          v_add_u32 v7, s3, v0
          s_mul_i32 s{sKA}, s{sCB}, {4096*ROT}
          v_lshrrev_b32 v12, 5, v1
          v_mul_u32_u24 v12, {7*256}, v12
          v_and_b32 v13, 31, v1
          v_lshl_add_u32 v12, v13, 3, v12
          s_mul_i32 s27, s{sT3}, {14*256}
          s_add_u32 s27, s27, {ST3}""")
    a("s_waitcnt vmcnt(0)")
    gbar(a, 0, 12)
    CSG = opt("csg", 1)
    def cs_exchange():
        a(f"""v_cvt_pk_bf16_f32 v{WF}, v{CS}, v{CS}
              v_and_b32 v{WF}, 0xffff0000, v{WF}
              v_sub_f32 v{WF}, v{CS}, v{WF}
              v_cvt_pk_bf16_f32 v{WF}, v{CS}, v{WF}
              v_and_b32 v13, 31, v1
              v_lshlrev_b32 v13, 2, v13
              s_lshl_b32 s26, s{sW}, 7
              s_add_u32 s26, s26, {XCH3}
              v_add_u32 v13, s26, v13
              ds_write_b32 v13, v{WF}""")
        a("s_waitcnt lgkmcnt(0)")
        garrive(a, 0)
    def cs_collect():
        gwait(a, 0, 16)
        a(f"v_and_b32 v15, 31, v1\nv_lshlrev_b32 v15, 2, v15\nv_add_u32 v15, {XCH3}, v15")
        for t in range(4): a(f"ds_read_b32 v{CSP+t}, v15 offset:{128*t}")
        a("s_waitcnt lgkmcnt(0)")
    hops = lambda ts: {}
    woff = None
    poll(a, 11, 14)
    stamp(a, 5)
    STL = [WF + 24, WF + 26, WF + 28, WF + 30, TMP + 8, TMP + 10, 14]; ST = STL[0]
    LA = opt("la3", 14)
    def xl(u):
        g = A()
        g(f"buffer_load_dwordx4 {v(XR+4*u,4)}, v7, {s(WD,4)}, s{sKA} offen offset:{(u&3)*1024}{SC}")
        if (u & 3) == 3 and u < 27: wrapinc(g, sKA, 4096, 7*4096)
        return g.l
    L0 = opt("l0", 8)
    for u in range(L0):
        for x in xl(u): a(x)
        if u == 3:
            for i in range(7): a(f"buffer_load_dwordx2 {v(STL[i],2)}, v12, {s(WD,4)}, s27 offen offset:{i*256}{SC}")
            for i in range(14): a(f"buffer_load_dword v{CS+i}, v6, {s(WD,4)}, s{sK3} offen offset:{i*256}{SC}")
    M0_, M1_, R, DEN = TMP+4, TMP+5, TMP+6, TMP+7
    f = A()
    for i in range(1, 7): f(f"v_add_f32 v{ST}, v{ST}, v{STL[i]}\nv_add_f32 v{ST+1}, v{ST+1}, v{STL[i]+1}")
    f(f"v_mov_b32 v12, v{ST}\nv_mov_b32 v13, v{ST+1}")
    half_sum(f, 12, 8); half_sum(f, 13, 9)
    f(f"""v_mul_f32 v12, {fb(1/448)}, v12
          v_mul_f32 v13, {fb(1/448)}, v13
          v_fma_f32 v13, -v12, v12, v13
          v_max_f32 v13, 0, v13
          v_add_f32 v13, {fb(EPS)}, v13
          v_sqrt_f32 v{DEN}, v13
          v_rsq_f32 v{R}, v13""")
    mu_frag(f, 12, "-1", M0_, M1_)
    gelu_consts(f, R, DEN)
    f(f"""s_mul_i32 s{sK}, s{sT3}, 112
          s_lshl_b32 s27, s{sCB3}, 3
          s_add_u32 s{sK}, s{sK}, s27
          s_lshl_b32 s{sK}, s{sK}, 10
          s_add_u32 s{sK}, s{sK}, {HHF}
          s_add_u32 s27, s{sK}, 4096""")
    for i in range(1, 14): f(f"v_add_f32 v{CS}, v{CS}, v{CS+i}")
    half_sum(f, CS, 8)
    f(f"""v_cvt_pk_bf16_f32 v11, v{CS}, v{CS}
          v_and_b32 v11, 0xffff0000, v11
          v_sub_f32 v11, v{CS}, v11
          v_cvt_pk_bf16_f32 v11, v{CS}, v11
          s_lshl_b32 s26, s{sW}, 7
          s_add_u32 s26, s26, {XCH3}
          v_and_b32 v13, 31, v1
          v_lshl_add_u32 v13, v13, 2, s26""")
    NA = opt("na", 2)
    t1 = ((0,) if CSG else (0, 4)) + tuple(range(1, NA)); t2_ = tuple(range(NA, 4))
    pre = hops(t1); pre["fill0"] = 4*len(t1) + 1; pre["G"] = opt("g3g", NA)
    issued = L0
    for s_ in range(28):
        pre[("s", s_)] = [f"s_waitcnt vmcnt({issued - 1 - s_ + (21 if s_ < 4 else 0)})"]
        pre[("t", s_)] = []
        for _ in range(2):
            if issued < min(28, s_ + 1 + LA): pre[("t", s_)] += xl(issued); issued += 1
        if opt("g3s", 0) and common.STAMPS and s_ in (0, 8, 16, 27):
            g = A(); common.stamp(g, {0: 2, 8: 3, 16: 12, 27: 13}[s_]); pre[("s", s_)] += g.l
    g = A(); g("ds_write_b32 v13, v11"); garrive(g, 0); pre[("m", 28*NA - 3)] = g.l
    pre["fillend"] = 28*NA - 4
    if opt("p3h", 0): pre[("s", opt("p3h", 0))] = pre[("s", opt("p3h", 0))] + [f"s_setprio {opt('pb', 1)}"]
    a(f"s_setprio {0 if opt('p3h', 0) else opt('p3a', 1)}")
    kloop(a, ACC, WF, XR, 2, t1, woff, pre, True, f.l, R=6, D=5, cs=(CS, CSP, 32))
    a(f"s_setprio {opt('pb', 1)}")
    cs_collect()
    stamp(a, 13 if False else 14)
    def gfrag(fr, o):
        return gelu8(ACC + 8*fr, 10, 12, 14, TMP + 8, o) + [f"buffer_store_dwordx4 {v(o,4)}, v0, {s(WD,4)}, s{sK if fr < 4 else 27} offen offset:{(fr&3)*1024}{SC}"]
    assert NA == 2 or not opt("w4e", 0)
    garrive(a, 0)
    mean_fix(a, ACC, WF, lambda t: CSP + t, M0_, M1_, tuple(range(NA)))
    srd(a, WA, 18, 1792 * 896)
    a(f"""v_lshrrev_b32 v8, 3, v1
          v_bfe_u32 v9, v1, 4, 1
          v_lshlrev_b32 v9, 2, v9
          v_and_b32 v7, 7, v1
          v_xor_b32 v9, v9, v7
          v_mul_u32_u24 v8, 896, v8
          v_lshl_add_u32 v7, v9, 4, v8
          s_and_b32 s3, s2, 1
          s_mul_i32 s3, s3, 56
          s_add_u32 s3, s3, s{sW}
          s_mul_i32 s3, s3, {16*896}
          s_lshl_b32 s26, s{sCB}, 7
          s_add_u32 s3, s3, s26
          v_add_u32 v7, s3, v7                   ; W4 voffset
          s_mul_i32 s{sK3}, s{sCB}, {8*16*896*ROT}""")
    def w4step(g, j):
        for u in range(2):
            g(f"s_add_u32 m0, s{sL}, {j*8192 + u*1024}\ns_add_u32 s3, s{sK3}, {u*8*896}\nbuffer_load_dwordx4 v7, {s(WA,4)}, s3 offen lds")
        wrapinc(g, sK3, 4*16*896, 896*896)
    nov = opt("nov", 2*NA)
    pre = {"G": opt("g3b", 4 - NA)}
    W4S = opt("w4s", 3)
    W4E = opt("w4e", 0)
    g = A(); g.uid = 2000; gwait(g, 0, 20); pre[("s", W4S if W4E else 26)] = g.l
    for j in range(W4E):
        g = A(); w4step(g, j); pre[("t", W4S + (21 // W4E)*j)] = g.l
    kloop(a, ACC, WF, XR, 2, t2_, woff, pre, True,
          sum((gfrag(fr, XR + 4*fr) for fr in range(nov)), []), R=6, D=5)
    garrive(a, 0)
    OWN = XR
    mean_fix(a, ACC, WF, lambda t: CSP + t, M0_, M1_, tuple(range(NA if NA < 4 else 0, 4)))
    for fr in range(nov, 8):
        if opt("pkg", 0):
            gelu_pairs(a, [ACC + 8*fr + 2*i for i in range(4)], 10, 12, 14, TMP + 8)
            for i in range(4): a(f"v_cvt_pk_bf16_f32 v{XR+4*fr+i}, v{ACC+8*fr+2*i}, v{ACC+8*fr+2*i+1}")
            a(gfrag(fr, XR + 4*fr)[-1])
        else:
            for x in gfrag(fr, OWN + 4*fr): a(x)
    stamp(a, 8)
    ACC, WF, AR, EP = 16, 80, 144, 176
    WOB = 0
    srd(a, WB_, 8, 448 * 896)
    a("s_and_b32 s27, s2, 1")
    gwait(a, 0, B_G3_DONE)
    NP0 = opt("np0", 0)
    lo()
    for j in range(W4E, W4E + NP0): w4step(a, j)
    hi()
    a(f"""s_lshl_b32 s3, s{sRB3}, 4
          s_add_u32 s3, s3, s{sCB3}
          s_lshl_b32 s3, s3, 7
          s_add_u32 s{sX}, s3, {F3}
          s_mul_i32 s3, s{sT3}, 112
          s_mul_i32 s26, s27, 56
          s_add_u32 s3, s3, s26
          s_lshl_b32 s3, s3, 10
          s_add_u32 s3, s3, {HHF}
          v_add_u32 v4, s3, v0
          s_add_u32 s{sKA}, s{sCB}, 1
          s_cmp_eq_u32 s{sKA}, 7
          s_cselect_b32 s{sKA}, 0, s{sKA}
          s_lshl_b32 s{sKA}, s{sKA}, 13
          s_lshl_b32 s26, s{sRB3}, 4
          s_mul_i32 s3, s27, 7
          s_add_u32 s3, s3, s26
          v_add_u32 v10, s3, v1
          v_lshlrev_b32 v10, 7, v10
          v_add_u32 v10, {F3}, v10
          s_lshl_b32 s3, s{sFT}, 3
          s_add_u32 s3, s3, s26
          v_and_b32 v14, 7, v1
          v_add_u32 v14, s3, v14
          v_lshlrev_b32 v14, 7, v14
          v_add_u32 v14, {FA}, v14
          s_waitcnt vmcnt({2*NP0})""")
    signal(a, sX, 16)
    stamp(a, 9)
    lo()
    for j in range(W4E + NP0, 14): w4step(a, j)
    hi()
    a(f"""s_mul_i32 s3, s27, {896*896}
          s_mul_i32 s26, s{sW}, {96*896}
          s_sub_u32 s3, s26, s3
          v_add_u32 v7, s3, v7""")
    poll(a, 10, 7)
    gbar(a, 0, B_G3_DONE + 4)
    stamp(a, 10)
    LA4, RA = opt("la4", 12), 14
    PB = opt("pb16", 1); NPS = 8 >> PB
    OR_ = lambda u: 168 + 8*u if u < 7 else 240
    PD, EP = 112, 128
    q = []
    def after(tag):
        return len(q) - 1 - max(i for i, x in enumerate(q) if x == tag)
    def al(u):
        a(f"buffer_load_dwordx4 {v(AR + 4*(u % RA), 4)}, v4, {s(WD,4)}, s{sKA} offen offset:{(u&3)*1024}{SC}"); q.append(("a", u))
        if (u & 3) == 3 and u < 55: wrapinc(a, sKA, 4096, 56*1024)
    def rd(m):
        s_, b = m >> 1, m & 1
        if m == 64: a("v_add_u32 v2, 0x10000, v2\nv_add_u32 v3, 0x10000, v3")
        for e in range(2): a(f"ds_read_b64_tr_b16 {v(WF + 4*(m & 7) + 2*e, 2)}, v{2+b} offset:{(s_ & 31)*2048 + e*1024}")
    def wo(u):
        a(f"s_add_u32 m0, s{sM}, {u*1024}\ns_mov_b32 s3, {u*8*896}\nbuffer_load_dwordx4 v7, {s(WB_,4)}, s3 offen lds"); q.append(("w", u))
    def ol(u):
        for aa in range(2):
            k = 2*u + aa
            a(f"buffer_load_dwordx4 {v(OR_(u)+4*aa,4)}, v{12 + (k >> 3)}, {s(WD,4)}, {'0' if (k & 7) < 4 else 's%d' % sL} offen offset:{(k&3)*1024}{SC}"); q.append(("o", u))
    assert ROT
    I0 = opt("i0", 2); nxt = [8 + I0]
    for u in range(8, 8 + I0): al(u)
    a(f"""s_mul_i32 s{sM}, s{sW}, 15360
          s_movk_i32 s{sL}, 4096
          s_lshl_b32 s3, s{sT}, 5
          s_lshl_b32 s26, s{sFT}, 4
          s_add_u32 s3, s3, s26
          s_lshl_b32 s3, s3, 10
          s_add_u32 s3, s3, {OF}
          v_add_u32 v12, s3, v0
          v_add_u32 v13, 8192, v12
          s_setprio {opt('pf', 0)}""")
    D4 = 6
    S_ARR, S_WO, S_FL, S_CHK = 31, opt("swo", 40), opt("sfl", 54), 99
    for m in range(D4): rd(m)
    for m in range(112):
        s_, b = m >> 1, m & 1
        if b == 0: a("s_waitcnt " + (f"vmcnt({after(('a', s_))}) " if s_ >= 8 else "") + f"lgkmcnt({2*max(0, min(D4 - 2, 110 - m))})")
        a(f"{MF} {v(ACC+16*b,16)}, {v(WF + 4*(m & 7), 4)}, {v(AR + 4*(s_ % RA) if s_ >= 8 else OWN + 4*s_, 4)}, {'0' if s_ == 0 else v(ACC+16*b,16)}")
        if m + D4 < 112: rd(m + D4)
        if b == 1:
            if opt("g4s", 0) and s_ in (7, 8, 30, 36, 51): stamp(a, {7: 2, 8: 3, 30: 12, 36: 13, 51: 4}[s_])
            for _ in range(opt("i1", 2) if s_ < 8 else 1):
                if nxt[0] < min(56, max(s_, 7) + 1 + LA4): al(nxt[0]); nxt[0] += 1
            if s_ == S_ARR: garrive(a, 0)
            if s_ == S_WO: gwait(a, 0, B_G3_DONE + 8)
            if S_WO <= s_ < S_WO + 15: wo(s_ - S_WO)
            if s_ == S_FL:
                a(f"buffer_load_dword v15, v14, {s(WD,4)}, 0 offen sc1"); q.append("f")
    a(f"s_setprio {opt('pb', 1)}")
    stamp(a, 11)
    a(f"""s_lshl_b32 s{sX}, s2, 7
          s_add_u32 s{sX}, s{sX}, {FQ}
          s_lshl_b32 s3, s{sFT}, 6
          s_mul_i32 s26, s{sFT}, {2*15360}
          s_add_u32 s26, s26, 0xffff0000
          v_xor_b32 v2, s3, v2
          v_xor_b32 v3, s3, v3
          v_add_u32 v2, s26, v2
          v_add_u32 v3, s26, v3
          s_xor_b32 s3, s{sRB}, 1
          s_mul_i32 s3, s3, 7
          s_add_u32 s3, s3, s{sCB}
          s_lshl_b32 s3, s3, 1
          s_and_b32 s26, s{sW}, 1
          s_add_u32 s3, s3, s26
          s_lshl_b32 s3, s3, {13 - PB}
          s_add_u32 s3, s3, {PART}
          s_cmp_eq_u32 s{sFT}, 0
          s_cselect_b32 s3, {OOB}, s3
          s_add_u32 s26, s3, 4096""")
    woff2 = lambda k: (k >> 3)*15360 + (28*((k >> 1) & 3) + 16*(k & 1)) * 128
    if PB:
        for i in range(16):
            a(f"v_cvt_pk_bf16_f32 v{PD+i}, v{ACC+2*i}, v{ACC+2*i+1}")
            if (i & 3) == 3: a(f"buffer_store_dwordx4 {v(PD+i-3,4)}, v0, {s(WD,4)}, s3 offen offset:{(i>>2)*1024}{SC}")
    else:
        for i in range(8): a(f"buffer_store_dwordx4 {v(ACC+4*i,4)}, v0, {s(WD,4)}, s{3 if i < 4 else 26} offen offset:{(i&3)*1024}{SC}")
    a(f"""s_mov_b32 s{sKA}, 0
          s_waitcnt vmcnt({NPS})""")
    garrive(a, C_W, 1)
    a(f"""v_cmp_eq_u32 vcc, 0, v15
          s_cbranch_vccz B_oready
          s_waitcnt vmcnt(0)""")
    signal(a, sX, C_SQ)
    a(f"s_mov_b32 s{sKA}, 1")
    poll(a, 14, 8)
    a.label("B_oready")
    for u in range(8): ol(u)
    stamp(a, 15)
    a(f"""s_mul_i32 s27, s{sRB}, 7
          s_add_u32 s27, s27, s{sCB}
          s_lshl_b32 s27, s27, 1
          s_and_b32 s26, s{sW}, 1
          s_add_u32 s27, s27, s26
          s_lshl_b32 s27, s27, 1
          s_add_u32 s27, s27, s{sFT}
          s_lshl_b32 s27, s27, {12 - PB}
          s_add_u32 s{sK}, s27, {PART}
          s_xor_b32 s3, s2, 1
          s_lshl_b32 s3, s3, 7
          s_add_u32 s3, s3, {FQ}
          v_mov_b32 v14, s3
          s_cmp_eq_u32 s{sFT}, 0
          s_cbranch_scc1 B_keep""")
    for i in range(32): a(f"v_mov_b32 v{ACC+i}, 0")
    a.label("B_keep")
    srd(a, XS, 20, 2048 * 896)
    OSC = ["", " sc1", " nt"][opt("osc", 2)]
    OT = WOB + 4*15360
    a(f"""v_and_b32 v4, 31, v1
          s_and_b32 s26, s{sW}, 1
          s_lshl_b32 s26, s26, 5
          v_add_u32 v4, s26, v4
          v_mul_u32_u24 v4, 144, v4
          v_lshrrev_b32 v9, 5, v1
          v_lshl_add_u32 v4, v9, 3, v4
          s_lshl_b32 s26, s{sFT}, 6
          s_add_u32 s26, s26, {OT}
          v_add_u32 v4, s26, v4
          v_lshrrev_b32 v6, 3, v1
          s_lshl_b32 s26, s{sW}, 4
          v_add_u32 v6, s26, v6
          v_and_b32 v9, 7, v1
          v_mul_u32_u24 v5, 144, v6
          v_lshl_add_u32 v5, v9, 4, v5
          v_add_u32 v5, {OT}, v5
          v_mul_u32_u24 v6, 896, v6
          v_lshl_add_u32 v6, v9, 4, v6
          s_mul_i32 s27, s{sRB}, {64*896}
          s_lshl_b32 s26, s{sCB}, 7
          s_add_u32 s27, s27, s26
          s_add_u32 s62, s27, {8*896}""")
    pair_addrs(a, 10, 80 * 1024)
    gwait(a, C_W, 4, field=1)
    for k in range(3): wreads(a, WF, k, woff2(k))
    a(f"s_waitcnt vmcnt(16)\ns_cmp_lg_u32 s{sKA}, 0\ns_cbranch_scc1 B_sigd")
    signal(a, sX, C_SQ)
    a.label("B_sigd")
    for k in range(16):
        a(f"s_waitcnt vmcnt({15 - k + (k > 11)}) lgkmcnt({4*min(2, 15 - k)})")
        for b in range(2): a(f"{MF} {v(ACC+16*b,16)}, {v(WF+8*(k&3)+4*b,4)}, {v(OR_(k >> 1)+4*(k & 1),4)}, {v(ACC+16*b,16)}")
        if k + 3 < 16: wreads(a, WF, (k+3) & 3, woff2(k+3))
        if k == 11: a(f"buffer_load_dword v15, v14, {s(WD,4)}, 0 offen sc1")
    if opt("ts", 0): stamp(a, 2)
    def fetch_partial():
        a("s_waitcnt vmcnt(0)\nv_cmp_eq_u32 vcc, 0, v15\ns_cbranch_vccz B_pready")
        poll(a, 14, 1)
        a.label("B_pready")
        for i in range(4 >> PB): a(f"buffer_load_dwordx4 {v(PD+16*PB+4*i,4)}, v0, {s(WD,4)}, s{sK} offen offset:{i*1024}{SC}")
    def residual():
        for i in range(16): a(f"v_add_f32 v{ACC+i}, v{ACC+i}, v{RES+i}")
    reduce2(a, ACC, 10, 0, B_G3_DONE + 12, pre=residual, mid=fetch_partial)
    if opt("ts", 0): stamp(a, 3)
    a("s_waitcnt vmcnt(0)")
    if PB: unpack(a, PD, PD + 16, 8)
    for i in range(16): a(f"v_add_f32 v{ACC+i}, v{ACC+i}, v{PD+i}")
    if opt("ts", 0): stamp(a, 12)
    for i in range(8): a(f"v_cvt_pk_bf16_f32 v{EP+i}, v{ACC+2*i}, v{ACC+2*i+1}")
    for j in range(4): a(f"ds_write_b64 v4, {v(EP+2*j,2)} offset:{16*j}")
    gbar(a, 0, B_G3_DONE + 16)
    if opt("ts", 0): stamp(a, 13)
    a(f"""ds_read_b128 {v(EP,4)}, v5
          ds_read_b128 {v(EP+4,4)}, v5 offset:{8*144}
          s_waitcnt lgkmcnt(1)
          buffer_store_dwordx4 {v(EP,4)}, v6, {s(XS,4)}, s27 offen{OSC}
          s_waitcnt lgkmcnt(0)
          buffer_store_dwordx4 {v(EP+4,4)}, v6, {s(XS,4)}, s62 offen{OSC}""")
    stamp_out2(a)
    a("s_endpgm")

def stamp_out2(a):
    if not common.STAMPS: return
    a("s_waitcnt vmcnt(0)")
    common.stamp(a, 6); common.stamp(a, 7, True)
    a("s_waitcnt lgkmcnt(0)")
    for i in range(16): a(f"v_mov_b32 v{16+i}, s{64+2*i}")
    a(f"""s_lshl_b32 s3, s2, 3
          s_add_u32 s3, s3, s60
          s_lshl_b32 s3, s3, 6
          s_add_u32 s3, s3, {TS}
          v_mov_b32 v8, 0""")
    for j in range(4): a(f"buffer_store_dwordx4 v[{16+4*j}:{19+4*j}], v8, {s(WD,4)}, s3 offen offset:{16*j}")

def p1stamps():
    return common.STAMPS and opt("p1s", 0)

def build(name):
    a = A()
    a.label("K_start")
    a("s_cmp_ge_u32 s2, 256\ns_cbranch_scc1 K_end")
    load_args(a)
    a(f"""v_and_b32 v1, 63, v0
          v_lshrrev_b32 v8, 6, v0
          s_mov_b32 s59, {fb(2.0**100)}
          v_readfirstlane_b32 s60, v8
          v_lshlrev_b32 v0, 4, v1
          s_and_b32 s{sW}, s60, 3
          s_cmp_ge_u32 s60, 4""")
    if opt("bfirst", 1):
        a("s_cbranch_scc0 K_rolea")
        p1b(a)
        a("s_branch K_roleb")
        a.label("K_rolea")
        p1a(a)
        att(a)
        a.label("K_roleb")
        roleb(a)
    else:
        a("s_cbranch_scc1 K_roleb")
        p1a(a)
        att(a)
        a.label("K_roleb")
        p1b(a)
        roleb(a)
    a.label("K_end")
    a("s_endpgm")
    a.label("K_last")
    return a

if __name__ == "__main__":
    if "stamp" in sys.argv[1]: common.STAMPS = True
    if "mini" in sys.argv[1]: common.STAMPS = common.MINI = True
    name = "parallel_sum__mha_block__mixer_s_mlp__prompt_kernel"
    HDR = open("parallel_sum__mha_block__mixer_s_mlp__prompt.s.ref").read().split("; Override launch")[0]
    DOC = """;
"""
    out = HDR + "; @launch grid=(256,1,1) block=(512,1,1) lds=163840\n" + DOC + '.amdgcn_target "amdgcn-amd-amdhsa--gfx950"\n'
    out += kernel_head(name) + build(name).text() + kernel_desc(name, vgpr=256, sgpr=102)
    open(sys.argv[1], "w").write(out)
```
